```python
import torch

def _softmax(x, axis=-1):
    return torch.softmax(x, dim=axis)
def _gelu(x):
    return torch.nn.functional.gelu(x, approximate="tanh")
def _silu(x):
    return torch.nn.functional.silu(x)
def _sigmoid(x):
    return torch.sigmoid(x)
def _layernorm(x, axis=-1, eps=1e-5):
    m = x.mean(dim=axis, keepdim=True)
    v = x.var(dim=axis, keepdim=True, unbiased=False)
    return (x - m) / torch.sqrt(v + eps)
def _scatter_add(tgt, idx, src, axis=0):
    return tgt.clone().index_add_(axis, idx, src)
def _segment_sum(src, seg, n):
    out = torch.zeros((n,) + src.shape[1:], dtype=src.dtype)
    return out.index_add_(0, seg, src)
def _pad(x, pw):
    flat = tuple(v for pair in reversed(pw) for v in pair)
    return torch.nn.functional.pad(x, flat)

kernel_name = 'concat_heads__mha_block_cached__gqa_block_cached__near_ridge'

def setup_inputs():

    _w = (lambda a: (lambda t: t.to(torch.bfloat16) if t.is_floating_point() else t)(torch.as_tensor(a)))
    def _A_setup():
        B, Sq, D = 8, 96, 576
        H, Sk, Dh = 32, 1024, 128
        return {
            "x": _w((lambda *s: torch.randn(*s, dtype=torch.bfloat16) * 0.8)(B, Sq, D)),
            "k_cache": _w((lambda *s: torch.randn(*s, dtype=torch.bfloat16) * 0.8)(B, H, Sk, Dh)),
            "v_cache": _w((lambda *s: torch.randn(*s, dtype=torch.bfloat16) * 0.05)(B, H, Sk, Dh)),
            "wq": _w((lambda *s: torch.randn(*s, dtype=torch.bfloat16) * 0.8)(D, H * Dh) * (D ** -0.5)),
            "wo": _w((lambda *s: torch.randn(*s, dtype=torch.bfloat16) * 0.05)(H * Dh, D) * ((H * Dh) ** -0.5)),
        }
    _A_in = _A_setup()

    def _B_setup():
        B, Sq, D = 8, 96, 576
        Hq, Hkv, Sk, Dh = 32, 32, 1024, 128
        assert Hq % Hkv == 0, (Hq, Hkv)
        return {
            "x": _w((lambda *s: torch.randn(*s, dtype=torch.bfloat16) * 0.8)(B, Sq, D)),
            "k_cache": _w((lambda *s: torch.randn(*s, dtype=torch.bfloat16) * 0.8)(B, Hkv, Sk, Dh)),
            "v_cache": _w((lambda *s: torch.randn(*s, dtype=torch.bfloat16) * 0.05)(B, Hkv, Sk, Dh)),
            "wq": _w((lambda *s: torch.randn(*s, dtype=torch.bfloat16) * 0.8)(D, Hq * Dh) * (D ** -0.5)),
            "wo": _w((lambda *s: torch.randn(*s, dtype=torch.bfloat16) * 0.05)(Hq * Dh, D) * ((Hq * Dh) ** -0.5)),
        }
    _B_in = _B_setup()

    return {
        "A_x": _A_in["x"],
        "A_k_cache": _A_in["k_cache"],
        "A_v_cache": _A_in["v_cache"],
        "A_wq": _A_in["wq"],
        "A_wo": _A_in["wo"],
        "B_x": _B_in["x"],
        "B_k_cache": _B_in["k_cache"],
        "B_v_cache": _B_in["v_cache"],
        "B_wq": _B_in["wq"],
        "B_wo": _B_in["wo"],
    }

def reference(A_x, A_k_cache, A_v_cache, A_wq, A_wo, B_x, B_k_cache, B_v_cache, B_wq, B_wo):
    def _A_ref(x, k_cache, v_cache, wq, wo):
        B, Sq, D = x.shape
        H, Dh = 32, 128
        q = (lambda x, *d: x.permute(*d))((x @ wq).reshape(B, Sq, H, Dh), 0, 2, 1, 3)
        scores = torch.einsum("bhqd,bhkd->bhqk", q, k_cache) * (Dh ** -0.5)
        p = _softmax(scores, axis=-1)
        o = torch.einsum("bhqk,bhkd->bhqd", p, v_cache)
        return (lambda x, *d: x.permute(*d))(o, 0, 2, 1, 3).reshape(B, Sq, H * Dh) @ wo

    def _B_ref(x, k_cache, v_cache, wq, wo):
        B, Sq, D = x.shape
        Hq, Dh = 32, 128
        Hkv = k_cache.shape[1]
        rep = Hq // Hkv
        q = (lambda x, *d: x.permute(*d))((x @ wq).reshape(B, Sq, Hq, Dh), 0, 2, 1, 3)
        k = (lambda x, n, axis: torch.repeat_interleave(x, n, dim=axis))(k_cache, rep, axis=1)
        v = (lambda x, n, axis: torch.repeat_interleave(x, n, dim=axis))(v_cache, rep, axis=1)
        scores = torch.einsum("bhqd,bhkd->bhqk", q, k) * (Dh ** -0.5)
        p = _softmax(scores, axis=-1)
        o = torch.einsum("bhqk,bhkd->bhqd", p, v)
        return (lambda x, *d: x.permute(*d))(o, 0, 2, 1, 3).reshape(B, Sq, Hq * Dh) @ wo

    a = _A_ref(A_x, A_k_cache, A_v_cache, A_wq, A_wo)
    b = _B_ref(B_x, B_k_cache, B_v_cache, B_wq, B_wo)
    return torch.concatenate([a, b], axis=-1)
```

```python
import re

TRANS = ("v_exp_f32", "v_log_f32", "v_rcp_f32", "v_rsq_f32", "v_sqrt_f32", "v_sin_f32", "v_cos_f32")

def regs_of(tok):
    tok = tok.strip()
    neg = tok.lstrip("-").replace("abs(", "").replace(")", "").replace("|", "")
    m = re.fullmatch(r"([vas])\[(\d+):(\d+)\]", neg)
    if m: return {f"{m.group(1)}{i}" for i in range(int(m.group(2)), int(m.group(3)) + 1)}
    m = re.fullmatch(r"([vas])(\d+)", neg)
    if m: return {neg}
    if neg in ("vcc", "exec", "m0"): return {neg}
    if neg in ("vcc_lo", "vcc_hi"): return {"vcc"}
    if neg in ("exec_lo", "exec_hi"): return {"exec"}
    return set()

class Ins:
    __slots__ = ("text", "op", "wr", "rd", "cls", "passes", "A", "B", "C", "D", "nops", "sdata")
    def __init__(self, text):
        self.text = text
        t = text.split(";")[0].strip()
        parts = t.split(None, 1)
        self.op = op = parts[0]
        ops = []
        if len(parts) > 1:
            ops = [o.strip() for o in parts[1].split(",")]
            last = ops[-1].split()
            if last: ops[-1] = last[0]; mods = last[1:]
            else: mods = []
        else: mods = []
        self.wr, self.rd = set(), set()
        self.passes = 0; self.A = self.B = self.C = self.D = set(); self.nops = 1; self.sdata = set()
        R = [regs_of(o) for o in ops]
        if op.startswith("v_mfma"):
            self.cls = "mfma"; self.passes = 8 if "32x32x16" in op else 4
            self.D, self.A, self.B, self.C = R[0], R[1], R[2], R[3]
            self.wr = set(self.D); self.rd = self.A | self.B | self.C
        elif op.startswith("v_"):
            self.cls = "valu"
            if op.startswith("v_permlane32_swap") or op.startswith("v_permlane16_swap"):
                self.wr = R[0] | R[1]; self.rd = R[0] | R[1]
            else:
                self.wr = set(R[0])
                k = 1
                if op.startswith(("v_add_co", "v_sub_co", "v_addc_co", "v_subb_co")):
                    self.wr |= R[1]; k = 2
                for r in R[k:]: self.rd |= r
                if op.startswith(("v_fmac", "v_pk_fmac")): self.rd |= R[0]
                if op.startswith("v_cndmask") and len(R) == 3: self.rd.add("vcc")
        elif op.startswith("ds_"):
            self.cls = "ds"
            if op.startswith("ds_read") or op.startswith("ds_bpermute") or op.startswith("ds_swizzle"):
                self.wr = set(R[0])
                for r in R[1:]: self.rd |= r
            else:
                for r in R: self.rd |= r
        elif op.startswith(("buffer_", "global_")):
            self.cls = "vmem"
            islds = "lds" in mods or "_lds_" in op
            if op in ("buffer_wbl2", "buffer_inv"): pass
            elif islds:
                for r in R: self.rd |= r
                self.rd.add("m0"); self.cls = "dma"
            elif "load" in op:
                self.wr = set(R[0])
                for r in R[1:]: self.rd |= r
            elif "atomic" in op:
                for r in R: self.rd |= r
                if "sc0" in mods:
                    self.wr = set(R[0])
            else:
                for r in R: self.rd |= r
                if op.endswith(("x3", "x4")):
                    self.sdata = set(R[0]) if op.startswith("buffer_") else set(R[1])
        elif op == "s_nop":
            self.cls = "nop"; self.nops = int(ops[0], 0) + 1
        elif op == "s_waitcnt":
            self.cls = "wait"
        elif op.startswith(("s_load", "s_buffer_load", "s_memtime", "s_memrealtime")):
            self.cls = "smem"; self.wr = set(R[0])
            for r in R[1:]: self.rd |= r
        elif op.startswith("s_"):
            self.cls = "salu"
            if op.startswith(("s_cmp", "s_cbranch", "s_branch", "s_barrier", "s_sleep", "s_setprio", "s_endpgm", "s_setpc", "s_bitcmp")):
                for r in R: self.rd |= r
            else:
                if R: self.wr = set(R[0])
                for r in R[1:]: self.rd |= r
                if "saveexec" in op: self.wr.add("exec"); self.rd.add("exec")
        else:
            raise ValueError("unknown instruction: " + text)

def need(p, c):
    n = 0
    isv = lambda s: {r for r in s if r[0] in "va" and r != "vcc"}
    iss = lambda s: {r for r in s if r[0] == "s" or r == "vcc"}
    if p.cls == "valu":
        wv = isv(p.wr); ws = iss(p.wr)
        if c.cls == "mfma" and wv & c.rd: n = max(n, 2)
        if c.cls == "valu":
            if c.op.startswith("v_permlane") and wv & c.rd: n = max(n, 2)
            if c.op.startswith(("v_readlane", "v_readfirstlane")) and wv & c.rd: n = max(n, 1)
            if "dpp" in c.text or "row_" in c.text or "quad_perm" in c.text:
                if wv & c.rd: n = max(n, 2)
            if p.op.startswith(TRANS) and not c.op.startswith(TRANS) and wv & (c.rd): n = max(n, 1)
            if ws & c.rd: n = max(n, 4 if c.op.startswith(("v_readlane", "v_writelane")) else 2)
        if p.op.startswith(TRANS) and c.cls in ("ds", "vmem", "mfma") and wv & c.rd: n = max(n, 2)
        if c.cls in ("vmem", "dma") and ws & c.rd: n = max(n, 5)
        if c.cls == "salu" and ws & c.rd: n = max(n, 1)
    if p.cls == "mfma":
        big = p.passes == 8
        if c.cls == "mfma":
            if p.D & (c.A | c.B): n = max(n, 12 if big else 8)
            if p.D & c.C and not (p.D == c.C and p.passes == c.passes): n = max(n, 10 if big else 6)
            if p.D & c.D and not (p.D == c.C and p.passes == c.passes): n = max(n, 12 if big else 8)
        elif c.cls in ("valu", "ds", "vmem", "dma"):
            if p.D & (c.rd | c.wr): n = max(n, 12 if big else 8)
            if c.cls == "valu" and p.C & c.wr: n = max(n, 7 if big else 3)
    if p.cls == "salu" and "m0" in p.wr and c.cls == "dma": n = max(n, 1)
    if p.sdata and p.sdata & c.wr: n = max(n, 2)
    return n

class Asm:
    def __init__(self):
        self.out = []
        self.hist = []
        self.lg = []
        self.vm = []
        self.check = True
        self.npad = 0
    def raw(self, s): self.out.append(s)
    def comment(self, s): self.out.append("; " + s)
    def label(self, name, reset=False):
        self.out.append(name + ":")
        if reset: self.forget()
    def forget(self):
        self.hist = []; self.lg = []; self.vm = []
    def e(self, text):
        for line in text.split("\n"):
            line = line.strip()
            if line: self._e(line)
    def _e(self, text):
        c = Ins(text)
        dist = 0; pad = 0
        for p in reversed(self.hist):
            nd = need(p, c)
            if nd > dist: pad = max(pad, nd - dist)
            dist += p.nops
            if dist >= 24: break
        while pad > 0:
            k = min(pad, 16)
            nop = Ins(f"s_nop {k-1}"); self.hist.append(nop); self.out.append("    " + nop.text); pad -= k; self.npad += k
        if c.cls == "wait":
            m = re.search(r"lgkmcnt\((\d+)\)", text)
            if m:
                n = int(m.group(1)); assert n < 15
                if any(o.cls == "smem" for o in self.lg):
                    if n == 0: self.lg = []
                else: self.lg = self.lg[len(self.lg) - n:] if n else []
            m = re.search(r"vmcnt\((\d+)\)", text)
            if m:
                n = int(m.group(1)); assert n < 63; self.vm = self.vm[max(0, len(self.vm) - n):] if n else []
        elif self.check:
            for o in self.lg + self.vm:
                if o.wr & (c.rd | c.wr):
                    raise RuntimeError(f"missing waitcnt: '{c.text}' touches dest of pending '{o.text}'")
            if c.cls in ("valu", "mfma"):
                pass
        if c.cls in ("ds", "smem"): self.lg.append(c)
        if c.cls in ("vmem", "dma") and c.op not in ("buffer_inv",): self.vm.append(c)
        if len(self.lg) > 15 and c.cls == "ds": pass
        self.hist.append(c)
        if len(self.hist) > 40: self.hist = self.hist[-40:]
        self.out.append("    " + text)
    def vm_out(self): return len(self.vm)
    def text(self): return "\n".join(self.out) + "\n"

def cost(text):
    op = text.split()[0]
    if op.startswith(TRANS): return 2.0
    if op.startswith("buffer_") : return 3.0
    if op.startswith("s_"): return 0.5
    return 1.0

def interleave(prim, fill, per=5.5, lead=0):
    out = []
    tot = sum(cost(f) for f in fill)
    n = len(prim)
    share = tot / n if n else 0
    acc = 0.0; j = 0
    for i, m in enumerate(prim):
        out.append(m)
        target = share * (i + 1)
        while j < len(fill) and acc + cost(fill[j]) * 0.5 <= target:
            out.append(fill[j]); acc += cost(fill[j]); j += 1
    out += fill[j:]
    return out
```

```python
import sys, struct, math
sys.path.insert(0, "dev")
from asmlib import Asm, interleave

NAME = "concat_heads__mha_block_cached__gqa_block_cached__near_ridge"
def f2u(x): return struct.unpack("<I", struct.pack("<f", x))[0]
CSC = math.log2(math.e) / math.sqrt(128.0)
THR_LOG2 = 8.0
WS_BYTES = 289079296
WS_O = 0
WS_P = 16 << 20
WS_STAMP = 64 << 20

class Opt:
    nt = " nt"
    stamps = False
    rot = "rnd"
    touch_sched = {0: [0], 1: [1], 3: [2], 5: [3]}
    ostore = ""
    pstore = ""

def vr(a, n=1): return f"v{a}" if n == 1 else f"v[{a}:{a+n-1}]"
def ar(a, n=1): return f"a{a}" if n == 1 else f"a[{a}:{a+n-1}]"

def header(a, name):
    a.raw(".text"); a.raw(f".globl {name}"); a.raw(".p2align 8"); a.raw(f".type {name},@function")
    a.label(name, reset=True)

def descriptor(name, vgpr=512, accum=256, sgpr=102):
    return "\n".join([f".amdhsa_kernel {name}", f"  .amdhsa_next_free_vgpr {vgpr}", f"  .amdhsa_next_free_sgpr {sgpr}",
        f"  .amdhsa_accum_offset {accum}", "  .amdhsa_group_segment_fixed_size 0", "  .amdhsa_kernarg_size 104",
        "  .amdhsa_user_sgpr_count 2", "  .amdhsa_user_sgpr_kernarg_segment_ptr 1",
        "  .amdhsa_system_sgpr_workgroup_id_x 1", ".end_amdhsa_kernel"]) + "\n"

def decode_ids(a):
    a.e("""v_lshrrev_b32 v1, 6, v0
           s_and_b32 s3, s2, 7
           s_lshr_b32 s29, s3, 2
           s_and_b32 s30, s3, 3
           v_readfirstlane_b32 s28, v1
           s_lshr_b32 s3, s2, 3
           s_lshr_b32 s31, s3, 2
           s_and_b32 s32, s3, 3
           v_and_b32 v1, 63, v0""")

def srd(a, d, lo, hi, nbytes):
    a.e(f"s_mov_b32 s{d}, {lo}\ns_mov_b32 s{d+1}, {hi}\ns_mov_b32 s{d+2}, {nbytes}\ns_mov_b32 s{d+3}, 0x20000")

def stamp(a, idx, opt):
    if opt.stamps:
        a.e(f"s_memrealtime s[{80+2*idx}:{81+2*idx}]\ns_waitcnt lgkmcnt(0)")

def stamp_flush(a, n, kidx, opt, wsrd):
    if not opt.stamps: return
    a.e("s_waitcnt lgkmcnt(0)")
    a.e(f"s_lshl_b32 s3, s2, 2\ns_add_u32 s3, s3, s28\ns_lshl_b32 s3, s3, 6\ns_add_u32 s3, s3, {WS_STAMP + kidx * 65536}")
    a.e("v_mov_b32 v0, 0")
    for i in range(n):
        a.e(f"v_mov_b32 v2, s{80+2*i}\nv_mov_b32 v3, s{81+2*i}")
        a.e(f"buffer_store_dwordx2 v[2:3], v0, s[{wsrd}:{wsrd+3}], s3 offen offset:{8*i}")
        a.e("s_waitcnt vmcnt(0)")

VOFFK, VOFFV, VOFFT = 2, 6, 7
VKA, VVA = 8, 16
MREF, THR, NMC, LSUM, TMAX = 20, 23, 26, 29, 32
VTMP = 35
S0, Q0 = 112, 160
KF, VF = 192, 224
def Sreg(qb, i): return S0 + 16 * qb + i
def Qreg(qb, ks): return Q0 + (qb * 8 + ks) * 4
def Oacc(db, qb): return (db * 3 + qb) * 16

def dma_unit(kind, m0base, soff, opt):
    L = []
    srdn = "s[8:11]" if kind == "K" else "s[12:15]"
    for half in range(2):
        if half == 0:
            L.append(f"s_mov_b32 m0, {m0base}")
            so = soff
        else:
            L.append(f"s_add_u32 m0, {m0base}, 4096")
            L.append(f"s_add_u32 s47, {soff}, 4096")
            so = "s47"
        for j in range(4):
            vo = VOFFK + j if kind == "K" else VOFFV
            L.append(f"buffer_load_dwordx4 v{vo}, {srdn}, {so} offen offset:{j*1024}{opt.nt} lds")
    return L

def softmax(qb, uid):
    L = []
    t = TMAX + qb
    L.append(f"v_max3_f32 v{t}, v{Sreg(qb,0)}, v{Sreg(qb,1)}, v{Sreg(qb,2)}")
    for i in range(3, 15, 2):
        L.append(f"v_max3_f32 v{t}, v{t}, v{Sreg(qb,i)}, v{Sreg(qb,i+1)}")
    L.append(f"v_max_f32 v{t}, v{t}, v{Sreg(qb,15)}")
    L.append(f"v_cmp_gt_f32 vcc, v{t}, v{THR+qb}")
    L.append(f"s_cbranch_vccz L_sk{uid}_{qb}\ns_call_b64 s[40:41], L_rare{qb}\nLABEL L_sk{uid}_{qb}")
    body = []
    for i in range(8):
        a, b = Sreg(qb, 2*i), Sreg(qb, 2*i+1)
        body.append(f"v_fma_f32 v{a}, v{a}, s42, v{NMC+qb}")
        body.append(f"v_fma_f32 v{b}, v{b}, s42, v{NMC+qb}")
        body.append(f"v_exp_f32 v{a}, v{a}")
        body.append(f"v_exp_f32 v{b}, v{b}")
        if i > 0:
            pa, pb = Sreg(qb, 2*i-2), Sreg(qb, 2*i-1)
            body.append(f"v_add_f32 v{LSUM+qb}, v{LSUM+qb}, v{pa}")
            body.append(f"v_add_f32 v{LSUM+qb}, v{LSUM+qb}, v{pb}")
            j = i - 1
            body.append(f"v_cvt_pk_bf16_f32 v{Sreg(qb, 8*(j//4) + j%4)}, v{pa}, v{pb}")
    pa, pb = Sreg(qb, 14), Sreg(qb, 15)
    body.append(f"v_add_f32 v{LSUM+qb}, v{LSUM+qb}, v{pa}")
    body.append(f"v_add_f32 v{LSUM+qb}, v{LSUM+qb}, v{pb}")
    body.append(f"v_cvt_pk_bf16_f32 v{Sreg(qb, 11)}, v{pa}, v{pb}")
    return L, body

def emit_list(a, L):
    for y in L:
        for x in y.split("\n"):
            if x.startswith("LABEL "): a.label(x[6:])
            else: a.e(x)

def kreads():
    return [f"ds_read_b128 {ar(KF+4*s,4)}, v{VKA+s}" for s in range(8)]
def vreads():
    L = []
    for db in range(4):
        for s in range(2):
            for t in range(2):
                L.append(f"ds_read_b64_tr_b16 {ar(VF + db*8 + s*4 + t*2, 2)}, v{VVA+db} offset:{4096*s + 2048*t}")
    return L

def slot_advance(sreg, dreg, vbase, n):
    L = [f"s_add_u32 s48, {sreg}, 65536", "s_cmp_ge_u32 s48, 163840", "s_cselect_b32 s49, 163840, 0",
         "s_sub_u32 s48, s48, s49", f"s_sub_u32 {dreg}, s48, {sreg}", f"s_mov_b32 {sreg}, s48"]
    L += [f"v_add_u32 v{vbase+i}, {dreg}, v{vbase+i}" for i in range(n)]
    return L

def tile_body(a, uid, opt, dmaV=True, dmaK=True, nextK=True, waitV=32, waitK=32):
    qk = lambda qb: [f"v_mfma_f32_32x32x16_bf16 {vr(Sreg(qb,0),16)}, {ar(KF+4*ks,4)}, {vr(Qreg(qb,ks),4)}, " + ("0" if ks == 0 else vr(Sreg(qb,0),16)) for ks in range(8)]
    pv = lambda qb: [f"v_mfma_f32_32x32x16_bf16 {ar(Oacc(db,qb),16)}, {ar(VF+db*8+s*4,4)}, {vr(Sreg(qb,8*s),4)}, {ar(Oacc(db,qb),16)}" for db in range(4) for s in range(2)]
    for ks, m in enumerate(qk(0)):
        a.e(f"s_waitcnt lgkmcnt({7-ks})"); a.e(m)
    h0, b0 = softmax(0, uid); h1, b1 = softmax(1, uid); h2, b2 = softmax(2, uid)
    f = []
    if dmaV:
        f += ["s_add_u32 s50, s37, s38", "s_add_u32 s51, s34, s35"] + dma_unit("V", "s50", "s51", opt)
        f += ["s_add_u32 s35, s35, 16384", "s_and_b32 s35, s35, 0x3ffff"]
    f += slot_advance("s38", "s44", VKA, 8)
    f += h0
    emit_list(a, interleave(qk(1), f))
    f = [f"s_waitcnt vmcnt({waitV})"] + vreads() + b0
    emit_list(a, interleave(qk(2), f))
    a.e("s_waitcnt lgkmcnt(0)")
    f = []
    if dmaK:
        f += ["s_add_u32 s50, s37, s39", "s_add_u32 s51, s34, s36"] + dma_unit("K", "s50", "s51", opt)
        f += ["s_add_u32 s36, s36, 16384", "s_and_b32 s36, s36, 0x3ffff"]
    f = h1 + f + b1
    emit_list(a, interleave(pv(0), f))
    emit_list(a, interleave(pv(1), h2 + b2))
    f = slot_advance("s39", "s45", VVA, 4)
    if nextK: f += [f"s_waitcnt vmcnt({waitK})"] + kreads()
    emit_list(a, interleave(pv(2), f))

def rare(a, qb):
    a.label(f"L_rare{qb}", reset=True)
    t = TMAX + qb; u = VTMP
    a.e(f"""s_nop 15
            v_mov_b32 v{u}, v{t}
            s_nop 1
            v_permlane32_swap_b32 v{t}, v{u}
            s_nop 1
            v_max3_f32 v{MREF+qb}, v{t}, v{u}, v{MREF+qb}
            v_mul_f32 v{u}, s42, v{MREF+qb}
            v_add_f32 v{THR+qb}, s43, v{MREF+qb}
            v_add_f32 v{t}, v{u}, v{NMC+qb}
            v_sub_f32 v{NMC+qb}, 0, v{u}
            v_sub_f32 v{t}, 0, v{t}
            v_exp_f32 v{t}, v{t}
            s_nop 1
            v_mul_f32 v{LSUM+qb}, v{LSUM+qb}, v{t}""")
    for db in range(4):
        for r in range(0, 16, 2):
            o = Oacc(db, qb) + r
            a.e(f"""v_accvgpr_read_b32 v{u}, a{o}
                    v_accvgpr_read_b32 v{u+1}, a{o+1}
                    v_mul_f32 v{u}, v{u}, v{t}
                    v_mul_f32 v{u+1}, v{u+1}, v{t}
                    v_accvgpr_write_b32 a{o}, v{u}
                    v_accvgpr_write_b32 a{o+1}, v{u+1}""")
    a.e("s_nop 3\ns_setpc_b64 s[40:41]")

def attn_kernel(a, name, opt):
    header(a, name)
    a.e("s_cmp_ge_u32 s2, 256\ns_cbranch_scc1 L_attn_done")
    stamp(a, 0, opt)
    a.e("""s_load_dwordx8 s[56:63], s[0:1], 0
           s_load_dwordx8 s[64:71], s[0:1], 40
           s_load_dwordx2 s[72:73], s[0:1], 96""")
    decode_ids(a)
    VW, VXA, VXB, AW, AX, VD = 36, 37, 38, 39, 43, 47
    FA, FB, ACC = 48, 68, 112
    a.e(f"""v_lshrrev_b32 v88, 4, v1            ; g = l>>4
            v_and_b32 v89, 15, v1               ; l&15
            v_lshrrev_b32 v90, 5, v1            ; h
            v_and_b32 v91, 31, v1               ; l&31
            v_lshlrev_b32 v54, 8, v88           ; g*256
            v_xor_b32 v55, v89, v88
            v_lshl_add_u32 v{VOFFK}, v55, 4, v54
            v_xor_b32 v{VOFFK+1}, 64, v{VOFFK}
            v_xor_b32 v{VOFFK+2}, 128, v{VOFFK}
            v_xor_b32 v{VOFFK+3}, 192, v{VOFFK}
            v_lshlrev_b32 v55, 2, v88
            v_xor_b32 v55, v89, v55
            v_lshl_add_u32 v{VOFFV}, v55, 4, v54
            v_lshlrev_b32 v{VOFFT}, 7, v1
            s_lshl_b32 s37, s28, 13""")
    a.e(f"""v_lshrrev_b32 v56, 3, v1
            v_and_b32 v57, 7, v1
            v_and_b32 v92, 1, v88
            v_lshlrev_b32 v59, 2, v92
            v_xor_b32 v59, v57, v59
            v_lshlrev_b32 v59, 4, v59
            v_lshl_add_u32 v{VW}, v56, 13, v59
            v_mul_u32_u24 v60, 1152, v56
            v_xor_b32 v61, v57, v88
            s_and_b32 s3, s28, 1
            s_lshl_b32 s3, s3, 2
            v_xor_b32 v61, s3, v61
            v_lshl_add_u32 v{VXA}, v61, 4, v60
            v_xor_b32 v61, 4, v61
            v_lshl_add_u32 v{VXB}, v61, 4, v60""")
    a.e("s_waitcnt lgkmcnt(0)")
    a.e("s_cmp_eq_u32 s29, 0")
    for d, o in ((16, 0), (8, 2), (12, 4), (20, 6)):
        a.e(f"s_cselect_b32 s{d}, s{56+o}, s{64+o}\ns_cselect_b32 s{d+1}, s{57+o}, s{65+o}")
    for d, n in ((16, 884736), (8, 1 << 26), (12, 1 << 26), (20, 4718592)):
        a.e(f"s_mov_b32 s{d+2}, {n}\ns_mov_b32 s{d+3}, 0x20000")
    srd(a, 24, "s72", "s73", WS_BYTES)
    a.e("""s_lshl_b32 s33, s30, 3
           s_lshl_b32 s3, s32, 1
           s_add_u32 s33, s33, s3              ; h0
           s_lshl_b32 s52, s33, 8
           s_lshl_b32 s3, s28, 7
           s_add_u32 s52, s52, s3
           s_lshr_b32 s3, s28, 1
           s_add_u32 s33, s33, s3              ; h
           s_mul_i32 s53, s31, 110592
           s_mul_i32 s3, s28, 27648
           s_add_u32 s53, s53, s3
           s_mul_i32 s54, s28, 3072
           s_add_u32 s54, s54, 98304""")
    vmc = [0]; done = {}
    def vm(text):
        a.e(text); vmc[0] += 1
    def stage(c):
        buf = c % 3; L = []
        for j in range(8):
            L += [f"s_add_u32 m0, s37, {buf*32768 + j*1024}", f"s_add_u32 s47, s52, {(c*64 + 8*j)*8192}",
                  f"buffer_load_dwordx4 v{VW}, s[20:23], s47 offen{opt.nt} lds"]
        for i in range(3):
            L += [f"s_add_u32 m0, s54, {buf*12288 + i*1024}", f"s_add_u32 s47, s53, {i*8*1152 + c*128}",
                  f"buffer_load_dwordx4 v{VXA if i != 1 else VXB}, s[16:19], s47 offen{opt.nt} lds"]
        vmc[0] += 11; done[c] = vmc[0]
        return L
    emit_list(a, stage(0) + stage(1) + stage(2))
    a.e("""s_lshl_b32 s34, s31, 5
           s_add_u32 s34, s34, s33
           s_lshl_b32 s34, s34, 18
           s_and_b32 s3, s28, 1
           s_lshl_b32 s3, s3, 13
           s_add_u32 s34, s34, s3""")
    if opt.rot == "rnd":
        a.e("""s_lshl_b32 s3, s2, 2
               s_lshr_b32 s4, s28, 1
               s_add_u32 s3, s3, s4
               s_mul_i32 s3, s3, 0x1e3779b1
               s_lshr_b32 s4, s3, 15
               s_xor_b32 s3, s3, s4
               s_mul_i32 s3, s3, 0x2c1b3c6d
               s_lshr_b32 s3, s3, 20
               s_and_b32 s3, s3, 15
               s_lshl_b32 s55, s3, 14""")
    else:
        a.e("s_mov_b32 s55, 0")
    def tile_off(dst, t):
        return [f"s_add_u32 {dst}, s55, {t*16384}", f"s_and_b32 {dst}, {dst}, 0x3ffff", f"s_add_u32 {dst}, {dst}, s34"]
    def touch(u):
        vmc[0] += 1
        return tile_off("s47", u // 2) + [f"buffer_load_dword v{VD}, v{VOFFT}, {'s[8:11]' if u % 2 == 0 else 's[12:15]'}, s47 offen{opt.nt}"]
    def unit(u):
        vmc[0] += 8
        return tile_off("s51", u // 2) + [f"s_add_u32 s50, s37, {u*32768}"] + dma_unit("K" if u % 2 == 0 else "V", "s50", "s51", opt)
    a.check = False
    a.e(f"""s_lshr_b32 s3, s2, 3
            s_lshl_b32 s3, s3, 2
            s_add_u32 s3, s3, s28               ; wi
            v_lshlrev_b32 v60, 13, v88
            v_lshl_add_u32 v60, v89, 7, v60
            s_lshl_b32 s4, s3, 15
            s_lshl_b32 s5, s30, 11
            s_add_u32 s4, s4, s5
            s_add_u32 s4, s4, {192*8192}""")
    vm(f"buffer_load_dword v{VD}, v60, s[20:23], s4 offen{opt.nt}")
    a.e(f"""s_sub_u32 s3, 127, s3
            s_lshl_b32 s3, s3, 6
            v_add_u32 v61, s3, v1               ; y
            v_mul_u32_u24 v62, 43691, v61
            v_lshrrev_b32 v62, 18, v62          ; y/6
            v_mul_u32_u24 v63, 6, v62
            v_sub_u32 v63, v61, v63
            v_mul_u32_u24 v62, 1152, v62
            v_lshl_add_u32 v62, v63, 7, v62""")
    vm(f"buffer_load_dword v{VD}, v62, s[16:19], 0 offen offset:384{opt.nt}")
    for u in opt.touch_sched.get(0, []): emit_list(a, touch(u))
    a.e(f"""v_xor_b32 v55, v90, v89             ; h ^ (l&15)
            v_lshlrev_b32 v55, 4, v55
            v_lshl_add_u32 v55, v91, 8, v55
            v_add_u32 v{VKA}, s37, v55""")
    for s in range(1, 8): a.e(f"v_xor_b32 v{VKA+s}, {32*s}, v{VKA}")
    a.e(f"""v_lshrrev_b32 v56, 2, v89           ; r
            v_and_b32 v57, 3, v1                ; c4
            v_lshl_add_u32 v59, v90, 2, v56     ; 4h + r
            v_lshlrev_b32 v59, 8, v59
            v_lshl_add_u32 v59, v56, 6, v59     ; + r*64
            v_lshl_add_u32 v59, v92, 5, v59     ; + (g&1)*32
            v_lshl_add_u32 v59, v57, 3, v59
            s_add_u32 s3, s37, 32768
            v_add_u32 v{VVA}, s3, v59""")
    for db in range(1, 4): a.e(f"v_xor_b32 v{VVA+db}, {64*db}, v{VVA}")
    a.e(f"""v_lshl_add_u32 v59, v90, 3, v56     ; 8h + r
            v_lshlrev_b32 v59, 7, v59
            v_lshrrev_b32 v60, 1, v56
            v_lshl_add_u32 v59, v60, 6, v59
            v_lshl_add_u32 v59, v92, 5, v59
            v_lshl_add_u32 v59, v57, 3, v59
            v_add_u32 v{AW}, s37, v59
            v_xor_b32 v{AW+1}, 64, v{AW}
            v_add_u32 v{AW+2}, 0x10000, v{AW}
            v_add_u32 v{AW+3}, 0x10000, v{AW+1}
            v_bfe_u32 v60, v1, 1, 3             ; ((l&31)>>1)&7
            v_xor_b32 v60, v60, v90
            v_lshlrev_b32 v60, 4, v60
            v_lshl_add_u32 v60, v91, 7, v60
            v_add_u32 v{AX}, 98304, v60""")
    for s in range(1, 4): a.e(f"v_xor_b32 v{AX+s}, {32*s}, v{AX}")
    a.e(f"""s_mov_b32 s42, {f2u(CSC):#x}
            s_mov_b32 s43, {f2u(THR_LOG2 / CSC):#x}
            s_mov_b32 s38, 0
            s_mov_b32 s39, 32768""")
    for qb in range(3):
        a.e(f"""v_mov_b32 v{MREF+qb}, 0xff800000
                v_mov_b32 v{THR+qb}, 0xff800000
                v_mov_b32 v{NMC+qb}, 0x7f800000
                v_mov_b32 v{LSUM+qb}, 0""")
    a.check = True
    a.vm = [o for o in a.vm]
    zero = [f"v_accvgpr_write_b32 a{i}, 0" for i in range(192)]
    def frag_reads(c, s, F):
        buf = c % 3
        L = []
        for db in range(2):
            for t in range(2):
                ad = AW + db + (2 if buf == 2 else 0)
                off = (32768 if buf == 1 else 0) + (16*s + 4*t) * 128
                L.append(f"ds_read_b64_tr_b16 {vr(F + db*4 + t*2, 2)}, v{ad} offset:{off}")
        for qb in range(3):
            L.append(f"ds_read_b128 {vr(F + 8 + qb*4, 4)}, v{AX+s} offset:{buf*12288 + qb*4096}")
        return L
    a.check = False
    for c in range(9):
        a.e(f"s_waitcnt vmcnt({vmc[0] - done[c]})")
        a.e("s_barrier")
        if c == 0: stamp(a, 1, opt)
        emit_list(a, frag_reads(c, 0, FA))
        fill = []
        if c >= 1:
            fill += stage(c + 2) if c + 2 <= 8 else unit(c - 7)
            for u in opt.touch_sched.get(c, []): fill += touch(u)
        q = (len(fill) + 2) // 3
        for s in range(4):
            F = FA if s % 2 == 0 else FB
            if s < 3:
                emit_list(a, frag_reads(c, s + 1, FB if s % 2 == 0 else FA))
                a.e("s_waitcnt lgkmcnt(7)")
            else:
                a.e("s_waitcnt lgkmcnt(0)")
            ms = []
            for db in range(2):
                for qb in range(3):
                    d = vr(ACC + (db*3 + qb)*16, 16)
                    ms.append(f"v_mfma_f32_32x32x16_bf16 {d}, {vr(F+db*4,4)}, {vr(F+8+qb*4,4)}, " + ("0" if (c == 0 and s == 0) else d))
            z, zero = zero[:6], zero[6:]
            fs, fill = fill[:q], fill[q:]
            emit_list(a, interleave(ms, fs + z))
    a.check = True
    emit_list(a, unit(2))
    a.e("s_barrier")
    a.e(f"""s_and_b32 s3, s28, 1
            s_lshl_b32 s3, s3, 3
            v_xor_b32 v55, s3, v89
            v_lshlrev_b32 v55, 4, v55
            v_lshl_add_u32 v55, v91, 8, v55
            v_lshl_add_u32 v55, v90, 3, v55
            s_lshr_b32 s3, s28, 1
            s_mul_i32 s3, s3, 24576
            s_add_u32 s3, s3, 98304
            v_add_u32 v55, s3, v55""")
    for db in range(2):
        for i in range(4):
            a.e(f"v_xor_b32 v56, {(4*db + i)*16}, v55")
            for qb in range(3):
                r = ACC + (db*3 + qb)*16 + 4*i
                tq = 58 + 2 * qb
                a.e(f"""v_cvt_pk_bf16_f32 v{tq}, v{r}, v{r+1}
                        v_cvt_pk_bf16_f32 v{tq+1}, v{r+2}, v{r+3}
                        ds_write_b64 v56, v[{tq}:{tq+1}] offset:{qb*8192}""")
    a.e("s_waitcnt lgkmcnt(0)\ns_barrier")
    a.e("s_sub_u32 s3, s3, s37")
    for s in range(8): a.e(f"v_add_u32 v{48+s}, s3, v{VKA+s}")
    for qb in range(3):
        for s in range(8):
            a.e(f"ds_read_b128 {vr(Qreg(qb,s),4)}, v{48+s} offset:{qb*8192}")
    a.e("s_waitcnt lgkmcnt(0)\ns_barrier")
    emit_list(a, unit(3) + unit(4))
    a.e(f"s_add_u32 s35, s55, {2*16384}\ns_and_b32 s35, s35, 0x3ffff\ns_add_u32 s36, s55, {3*16384}\ns_and_b32 s36, s36, 0x3ffff")
    stamp(a, 2, opt)
    a.e("s_waitcnt vmcnt(32) lgkmcnt(0)")
    emit_list(a, kreads())
    a.e("s_mov_b32 s46, 13")
    a.raw(".p2align 6")
    a.label("L_tile")
    tile_body(a, 0, opt)
    a.e("s_sub_u32 s46, s46, 1\ns_cmp_lg_u32 s46, 0\ns_cbranch_scc1 L_tile")
    tile_body(a, 1, opt, dmaK=False, waitV=32, waitK=24)
    tile_body(a, 2, opt, dmaV=False, dmaK=False, waitV=16, waitK=8)
    tile_body(a, 3, opt, dmaV=False, dmaK=False, nextK=False, waitV=0)
    stamp(a, 3, opt)
    a.e(f"v_lshlrev_b32 v36, 3, v1\nv_add_u32 v36, s37, v36\nv_add_u32 v36, 98304, v36")
    for qb in range(3):
        a.e(f"""v_mov_b32 v{TMAX+qb}, v{LSUM+qb}
                v_permlane32_swap_b32 v{LSUM+qb}, v{TMAX+qb}
                v_add_f32 v41, v{LSUM+qb}, v{TMAX+qb}
                v_mov_b32 v40, v{NMC+qb}
                v_mov_b32 v{LSUM+qb}, v41
                ds_write_b64 v36, v[40:41] offset:{qb*512}""")
    a.e("s_waitcnt lgkmcnt(0)\ns_barrier")
    a.e("v_xor_b32 v37, 8192, v36")
    for qb in range(3): a.e(f"ds_read_b64 v[{40+2*qb}:{41+2*qb}], v37 offset:{qb*512}")
    a.e("s_waitcnt lgkmcnt(0)")
    SC = MREF
    for qb in range(3):
        pn, pl = 40 + 2*qb, 41 + 2*qb
        a.e(f"""v_min_f32 v38, v{NMC+qb}, v{pn}
                v_sub_f32 v39, v38, v{NMC+qb}
                v_sub_f32 v38, v38, v{pn}
                v_exp_f32 v39, v39
                v_exp_f32 v38, v38
                v_mul_f32 v{LSUM+qb}, v{LSUM+qb}, v39
                v_fmac_f32 v{LSUM+qb}, v{pl}, v38
                v_rcp_f32 v{LSUM+qb}, v{LSUM+qb}
                v_mul_f32 v{SC+qb}, v39, v{LSUM+qb}""")
    a.e(f"""v_lshlrev_b32 v36, 4, v1
            v_add_u32 v36, s37, v36
            v_xor_b32 v37, 8192, v36
            v_add_u32 v44, 0x10000, v36
            v_add_u32 v45, 0x10000, v37
            v_lshlrev_b32 v38, 10, v92
            v_lshl_add_u32 v38, v90, 8, v38
            v_lshl_add_u32 v38, v89, 4, v38
            s_lshl_b32 s3, s29, 3
            s_add_u32 s3, s3, s31
            s_lshl_b32 s3, s3, 5
            s_add_u32 s3, s3, s33
            s_mul_i32 s52, s3, 24576
            s_bitcmp1_b32 s28, 0
            s_cbranch_scc1 L_comb1""")
    saved = (list(a.hist), list(a.lg), list(a.vm))
    for par in range(2):
        if par == 1:
            a.label("L_comb1"); a.hist, a.lg, a.vm = (list(x) for x in saved)
        keep = (0, 1) if par == 0 else (2, 3); send = (2, 3) if par == 0 else (0, 1)
        def slotaddr(k, own):
            sl, off = divmod(k, 8)
            reg = (36 if own else 37) if sl < 2 else (44 if own else 45)
            return reg, (32768 if sl == 1 else 0) + off * 1024
        k = 0
        for db in send:
            for qb in range(3):
                for g in range(4):
                    t = 144 + 4 * (k % 4)
                    for r in range(4): a.e(f"v_accvgpr_read_b32 v{t+r}, a{Oacc(db,qb)+4*g+r}")
                    for r in range(4): a.e(f"v_mul_f32 v{t+r}, v{t+r}, v{SC+qb}")
                    reg, off = slotaddr(k, True)
                    a.e(f"ds_write_b128 v{reg}, v[{t}:{t+3}] offset:{off}")
                    k += 1
        for i, db in enumerate(keep):
            for qb in range(3):
                for r in range(16): a.e(f"v_accvgpr_read_b32 v{160 + (i*3+qb)*16 + r}, a{Oacc(db,qb)+r}")
        a.e("s_waitcnt lgkmcnt(0)\ns_barrier")
        for k in range(24):
            reg, off = slotaddr(k, False)
            a.e(f"ds_read_b128 v[{48+4*k}:{51+4*k}], v{reg} offset:{off}")
        for i, db in enumerate(keep):
            for qb in range(3):
                blk = i*3 + qb
                a.e(f"s_waitcnt lgkmcnt({min(14, 20 - 4*blk)})")
                for r in range(16):
                    a.e(f"v_fma_f32 v{160+blk*16+r}, v{160+blk*16+r}, v{SC+qb}, v{48+blk*16+r}")
                for j in range(8):
                    a.e(f"v_cvt_pk_bf16_f32 v{160+blk*16+8*(j//4)+j%4}, v{160+blk*16+2*j}, v{160+blk*16+2*j+1}")
                a.e(f"s_add_u32 s47, s52, {WS_O + (db*6 + 2*qb)*1024}")
                for s in range(2):
                    a.e(f"buffer_store_dwordx4 {vr(160+blk*16+8*s,4)}, v38, s[24:27], s47 offen offset:{512*s}{opt.ostore}")
        if par == 0: a.e("s_branch L_comb_end")
    a.label("L_comb_end")
    stamp(a, 4, opt)
    stamp_flush(a, 5, 0, opt, 24)
    a.label("L_attn_done")
    a.e("s_endpgm")
    for qb in range(3): rare(a, qb)

def oproj_kernel(a, name, opt):
    header(a, name)
    a.e("s_cmp_ge_u32 s2, 256\ns_cbranch_scc1 L_op_done")
    stamp(a, 0, opt)
    a.e("""s_load_dwordx2 s[56:57], s[0:1], 32
           s_load_dwordx2 s[58:59], s[0:1], 72
           s_load_dwordx2 s[72:73], s[0:1], 96""")
    decode_ids(a)
    VO, AD = 2, 12
    ACC, WF, OF = 16, 128, 0
    a.e("""s_lshr_b32 s33, s28, 1              ; kh
           s_and_b32 s34, s28, 1               ; qh
           s_mul_i32 s3, s34, 576
           v_add_u32 v20, s3, v1""")
    for i in range(9):
        a.e(f"""v_add_u32 v21, {64*i}, v20
                v_mul_u32_u24 v22, 58255, v21
                v_lshrrev_b32 v22, 20, v22
                v_mul_u32_u24 v23, 18, v22
                v_sub_u32 v23, v21, v23
                v_mul_u32_u24 v22, 1152, v22
                v_lshl_add_u32 v{VO+i}, v23, 4, v22""")
    a.e("s_waitcnt lgkmcnt(0)\ns_cmp_eq_u32 s29, 0\ns_cselect_b32 s8, s56, s58\ns_cselect_b32 s9, s57, s59")
    a.e("s_mov_b32 s10, 4718592\ns_mov_b32 s11, 0x20000")
    srd(a, 24, "s72", "s73", WS_BYTES)
    a.e("""s_lshl_b32 s35, s30, 1
           s_add_u32 s35, s35, s33
           s_mul_i32 s35, s35, 589824
           s_mul_i32 s3, s32, 288
           s_add_u32 s35, s35, s3
           s_mul_i32 s36, s28, 9216""")
    vmc = [0]; done = {}
    def vm(t): a.e(t); vmc[0] += 1
    def stage(st):
        a.e(f"s_add_u32 s47, s35, {st*64*1152}")
        for i in range(9):
            a.e(f"s_add_u32 m0, s36, {(st % 4)*36864 + i*1024}")
            vm(f"buffer_load_dwordx4 v{VO+i}, s[8:11], s47 offen{opt.nt} lds")
        done[st] = vmc[0]
    stage(0)
    a.e(f"""s_lshl_b32 s3, s29, 3
            s_add_u32 s3, s3, s31
            s_lshl_b32 s3, s3, 2
            s_add_u32 s3, s3, s30
            s_lshl_b32 s3, s3, 1
            s_add_u32 s3, s3, s33
            s_mul_i32 s37, s3, {4*24576}
            s_mul_i32 s3, s34, 3072
            s_add_u32 s37, s37, s3
            v_lshlrev_b32 v11, 4, v1""")
    def oload(ks):
        a.e(f"s_add_u32 s47, s37, {WS_O + ks*6144}")
        for j in range(3): vm(f"buffer_load_dwordx4 {ar(OF + (ks*3+j)*4, 4)}, v11, s[24:27], s47 offen offset:{j*1024}")
        done[f"o{ks}"] = vmc[0]
    oload(0); oload(1); stage(1); oload(2); oload(3); stage(2)
    for ks in range(4, 10): oload(ks)
    a.e(f"""v_lshrrev_b32 v20, 5, v1
            v_bfe_u32 v21, v1, 4, 1
            v_bfe_u32 v22, v1, 2, 2
            v_and_b32 v23, 3, v1
            v_lshlrev_b32 v20, 4, v20
            v_lshl_add_u32 v20, v21, 2, v20
            v_add_u32 v20, v20, v22
            v_mul_u32_u24 v20, 288, v20
            v_lshl_add_u32 v20, v23, 3, v20
            s_mul_i32 s3, s33, 18432
            v_add_u32 v{AD}, s3, v20
            v_add_u32 v{AD+1}, 73728, v{AD}""")
    def wreads(st, kl, F):
        L = []
        buf = st % 4
        for nb in range(9):
            for t in range(2):
                off = (buf % 2) * 36864 + (32*kl + 8*t) * 288 + 32*nb
                L.append(f"ds_read_b64_tr_b16 {vr(F + nb*4 + 2*t, 2)}, v{AD + buf//2} offset:{off}")
        return L
    nxt_o = 10
    for st in range(8):
        a.e(f"s_waitcnt vmcnt({min(62, vmc[0] - max(done[st], done[f'o{2*st+1}']))})\ns_barrier")
        emit_list(a, wreads(st, 0, WF))
        if st + 3 <= 7: stage(st + 3)
        for _ in range(2):
            if nxt_o < 16: oload(nxt_o); nxt_o += 1
        for kl in range(2):
            ks = 2*st + kl; F = WF + 36*kl
            ms = []
            for nb in range(9):
                for j in range(3):
                    d = vr(ACC + (nb*3+j)*4, 4)
                    ms.append(f"v_mfma_f32_16x16x32_bf16 {d}, {vr(F+nb*4,4)}, {ar(OF+(ks*3+j)*4,4)}, " + ("0" if ks == 0 else d))
            if kl == 0:
                a.e("s_waitcnt lgkmcnt(0)")
                emit_list(a, interleave(ms, wreads(st, 1, WF + 36)))
            else:
                a.e("s_waitcnt lgkmcnt(0)")
                emit_list(a, ms)
    stamp(a, 1, opt)
    a.e("s_barrier")
    a.e(f"""v_lshlrev_b32 v13, 4, v1
            s_lshl_b32 s3, s28, 14
            v_add_u32 v13, s3, v13
            v_xor_b32 v14, 32768, v13
            s_lshl_b32 s52, s29, 3
            s_add_u32 s52, s52, s31
            s_lshl_b32 s52, s52, 2
            s_add_u32 s52, s52, s32
            s_lshl_b32 s52, s52, 2
            s_add_u32 s52, s52, s30
            s_mul_i32 s52, s52, 55296
            s_mul_i32 s3, s34, 3072
            s_add_u32 s52, s52, s3
            s_cmp_eq_u32 s33, 1
            s_cbranch_scc1 L_op1""")
    saved = (list(a.hist), list(a.lg), list(a.vm))
    for kh in range(2):
        if kh == 1:
            a.label("L_op1"); a.hist, a.lg, a.vm = (list(x) for x in saved)
        send = range(5, 9) if kh == 0 else range(0, 5)
        keep = range(0, 5) if kh == 0 else range(5, 9)
        k = 0
        for nb in send:
            for j in range(3):
                a.e(f"ds_write_b128 v13, {vr(ACC+(nb*3+j)*4,4)} offset:{k*1024}"); k += 1
        a.e("s_waitcnt lgkmcnt(0)\ns_barrier")
        k = 0
        for nb in keep:
            for j in range(3):
                a.e(f"ds_read_b128 {vr(WF+4*k,4)}, v14 offset:{k*1024}"); k += 1
        a.e("s_waitcnt lgkmcnt(0)")
        k = 0
        for nb in keep:
            a.e(f"s_add_u32 s47, s52, {WS_P + nb*6144}")
            for j in range(3):
                r = ACC + (nb*3+j)*4
                for i in range(4): a.e(f"v_add_f32 v{r+i}, v{r+i}, v{WF+4*k+i}")
                a.e(f"buffer_store_dwordx4 {vr(r,4)}, v11, s[24:27], s47 offen offset:{j*1024}{opt.pstore}")
                k += 1
        if kh == 0: a.e("s_branch L_op_end")
    a.label("L_op_end")
    stamp(a, 2, opt)
    stamp_flush(a, 3, 1, opt, 24)
    a.label("L_op_done")
    a.e("s_endpgm")

def reduce_kernel(a, name, opt):
    header(a, name)
    a.e("s_cmp_ge_u32 s2, 256\ns_cbranch_scc1 L_rd_done")
    stamp(a, 0, opt)
    a.e("s_load_dwordx2 s[56:57], s[0:1], 80\ns_load_dwordx2 s[72:73], s[0:1], 96")
    decode_ids(a)
    a.e(f"""v_lshlrev_b32 v11, 4, v1
            v_and_b32 v12, 15, v1
            v_mul_u32_u24 v12, 2304, v12
            v_lshrrev_b32 v13, 4, v1
            v_lshl_add_u32 v12, v13, 3, v12
            s_lshl_b32 s52, s29, 3
            s_add_u32 s52, s52, s31
            s_lshl_b32 s52, s52, 2
            s_add_u32 s52, s52, s32
            s_mul_i32 s52, s52, {4*55296}
            s_add_u32 s52, s52, {WS_P}
            s_mul_i32 s53, s31, {96*2304}
            s_mul_i32 s3, s29, 1152
            s_add_u32 s53, s53, s3
            s_mul_i32 s3, s32, 288
            s_add_u32 s53, s53, s3
            s_lshl_b32 s54, s28, 2
            s_add_u32 s54, s54, s30
            s_waitcnt lgkmcnt(0)""")
    srd(a, 8, "s56", "s57", 1769472)
    srd(a, 24, "s72", "s73", WS_BYTES)
    for i in range(4):
        a.e(f"s_add_u32 s{60+i}, s54, {16*i}")
        if i == 3: a.e("s_cmp_ge_u32 s63, 54\ns_cbranch_scc1 L_rd3")
        a.e(f"s_lshl_b32 s47, s{60+i}, 10\ns_add_u32 s47, s47, s52")
        for o in range(4):
            a.e(f"buffer_load_dwordx4 {vr(16+16*i+4*o,4)}, v11, s[24:27], s47 offen")
            if o < 3: a.e("s_add_u32 s47, s47, 55296")
    def fin(i):
        r = 16 + 16*i
        for k in range(4):
            a.e(f"v_add_f32 v{r+k}, v{r+k}, v{r+4+k}\nv_add_f32 v{r+8+k}, v{r+8+k}, v{r+12+k}")
        for k in range(4): a.e(f"v_add_f32 v{r+k}, v{r+k}, v{r+8+k}")
        a.e(f"""v_cvt_pk_bf16_f32 v{r}, v{r}, v{r+1}
                v_cvt_pk_bf16_f32 v{r+1}, v{r+2}, v{r+3}
                s_mul_i32 s3, s{60+i}, 43
                s_lshr_b32 s3, s3, 8
                s_mul_i32 s4, s3, 6
                s_sub_u32 s4, s{60+i}, s4
                s_mul_i32 s4, s4, {16*2304}
                s_lshl_b32 s3, s3, 5
                s_add_u32 s47, s53, s3
                s_add_u32 s47, s47, s4
                buffer_store_dwordx2 v[{r}:{r+1}], v12, s[8:11], s47 offen""")
    a.e("s_waitcnt vmcnt(0)")
    fin(3)
    a.label("L_rd3")
    a.e("s_waitcnt vmcnt(0)")
    for i in range(3): fin(i)
    stamp(a, 1, opt)
    stamp_flush(a, 2, 2, opt, 24)
    a.label("L_rd_done")
    a.e("s_endpgm")

def build(opt):
    a = Asm()
    a.raw("; @launch kernel=attn_kernel grid=(256,1,1) block=(256,1,1) lds=163840")
    a.raw("; @launch kernel=oproj_kernel grid=(256,1,1) block=(256,1,1) lds=147456")
    a.raw("; @launch kernel=reduce_kernel grid=(256,1,1) block=(256,1,1) lds=0")
    a.raw('.amdgcn_target "amdgcn-amd-amdhsa--gfx950"')
    attn_kernel(a, "attn_kernel", opt)
    oproj_kernel(a, "oproj_kernel", opt)
    reduce_kernel(a, "reduce_kernel", opt)
    a.raw('.section .rodata,"a"')
    for n, v, acc in (("attn_kernel", 512, 256), ("oproj_kernel", 512, 256), ("reduce_kernel", 88, 88)):
        a.raw(".p2align 6"); a.raw(descriptor(n, v, acc))
    return a.text()

if __name__ == "__main__":
    opt = Opt()
    out = sys.argv[1] if len(sys.argv) > 1 else "k.s"
    for kv in sys.argv[2:]:
        k, v = kv.split("=", 1)
        setattr(opt, k, eval(v))
    open(out, "w").write(build(opt))
```

```python
import sys, struct, math
sys.path.insert(0, "dev")
from asmlib import Asm, interleave

NAME = "concat_heads__mha_block_cached__gqa_block_cached__near_ridge"
def f2u(x): return struct.unpack("<I", struct.pack("<f", x))[0]
CSC = math.log2(math.e) / math.sqrt(128.0)
THR_LOG2 = 8.0
WS_BYTES = 289079296
WS_O = 0
WS_P = 16 << 20
WS_F = 48 << 20
WS_STAMP = 64 << 20
STB = 82

class Opt:
    nt = " nt"
    stamps = False
    sset = ['q0', 'loop', 't15', 'comb', 'g0', 'chk1', 'gend', 'pub2', 'end']
    rot = "rnd"
    touch_sched = {}
    ostore = " sc1"
    pstore = " sc1"
    hload = " sc1"
    wnt = " nt"
    krot = 1
    late = 3
    cap = 0
    regap = 2
    wont = ''
    wolin = False
    pbf16 = True
    strip = ''
    ns = 3
    wotouch = True
    codetouch = True
    early_wo = True
    clk = "s_memrealtime"
    kvsame = False
    chunk_stamps = False

def vr(a, n=1): return f"v{a}" if n == 1 else f"v[{a}:{a+n-1}]"
def ar(a, n=1): return f"a{a}" if n == 1 else f"a[{a}:{a+n-1}]"

def header(a, name):
    a.raw(".text"); a.raw(f".globl {name}"); a.raw(".p2align 8"); a.raw(f".type {name},@function")
    a.label(name, reset=True)

def descriptor(name, vgpr=512, accum=256, sgpr=102):
    return "\n".join([f".amdhsa_kernel {name}", f"  .amdhsa_next_free_vgpr {vgpr}", f"  .amdhsa_next_free_sgpr {sgpr}",
        f"  .amdhsa_accum_offset {accum}", "  .amdhsa_group_segment_fixed_size 0", "  .amdhsa_kernarg_size 104",
        "  .amdhsa_user_sgpr_count 2", "  .amdhsa_user_sgpr_kernarg_segment_ptr 1",
        "  .amdhsa_system_sgpr_workgroup_id_x 1", ".end_amdhsa_kernel"]) + "\n"

def decode_ids(a):
    a.e("""v_lshrrev_b32 v1, 6, v0
           s_and_b32 s3, s2, 7
           s_lshr_b32 s29, s3, 2
           s_and_b32 s30, s3, 3
           v_readfirstlane_b32 s28, v1
           s_lshr_b32 s3, s2, 3
           s_lshr_b32 s31, s3, 2
           s_and_b32 s32, s3, 3
           v_and_b32 v1, 63, v0""")

def srd(a, d, lo, hi, nbytes):
    a.e(f"s_mov_b32 s{d}, {lo}\ns_mov_b32 s{d+1}, {hi}\ns_mov_b32 s{d+2}, {nbytes}\ns_mov_b32 s{d+3}, 0x20000")

def stamp(a, name, opt):
    if opt.stamps and name in opt.sset:
        idx = 1 + opt.sset.index(name)
        a.e(f"{opt.clk} s[{STB+2*idx}:{STB+1+2*idx}]\ns_waitcnt lgkmcnt(0)")

def stamp_flush(a, n, kidx, opt, wsrd):
    if not opt.stamps: return
    a.e("s_waitcnt lgkmcnt(0)")
    a.e(f"s_lshl_b32 s3, s2, 2\ns_add_u32 s3, s3, s28\ns_lshl_b32 s3, s3, 7\ns_add_u32 s3, s3, {WS_STAMP + kidx * 131072}")
    a.e("v_mov_b32 v0, 0")
    for i in range(n):
        a.e(f"v_mov_b32 v2, s{STB+2*i}\nv_mov_b32 v3, s{STB+1+2*i}")
        a.e(f"buffer_store_dwordx2 v[2:3], v0, s[{wsrd}:{wsrd+3}], s3 offen offset:{8*i}")
        a.e("s_waitcnt vmcnt(0)")

VOFFK, VOFFV, VOFFT = 2, 6, 7
VKA, VVA = 8, 16
MREF, THR, NMC, LSUM, TMAX = 20, 23, 26, 29, 32
VTMP = 86
S0, Q0 = 112, 160
KF, VF = 192, 224
def Sreg(qb, i): return S0 + 16 * qb + i
def Qreg(qb, ks): return Q0 + (qb * 8 + ks) * 4
def Oacc(db, qb): return (db * 3 + qb) * 16

def dma_unit(kind, m0base, soff, opt):
    L = []
    srdn = "s[8:11]" if kind == "K" else "s[12:15]"
    for half in range(2):
        if half == 0:
            L.append(f"s_mov_b32 m0, {m0base}")
            so = soff
        else:
            L.append(f"s_add_u32 m0, {m0base}, 4096")
            L.append(f"s_add_u32 s47, {soff}, 4096")
            so = "s47"
        for j in range(4):
            vo = VOFFK + j if kind == "K" else VOFFV
            L.append(f"buffer_load_dwordx4 v{vo}, {srdn}, {so} offen offset:{j*1024}{opt.nt} lds")
    return L

def softmax(qb, uid, first=False):
    L = []
    t = TMAX + qb
    L.append(f"v_max3_f32 v{t}, v{Sreg(qb,0)}, v{Sreg(qb,1)}, v{Sreg(qb,2)}")
    for i in range(3, 15, 2):
        L.append(f"v_max3_f32 v{t}, v{t}, v{Sreg(qb,i)}, v{Sreg(qb,i+1)}")
    L.append(f"v_max_f32 v{t}, v{t}, v{Sreg(qb,15)}")
    if first:
        L += [f"v_mov_b32 v{VTMP}, v{t}", f"v_permlane32_swap_b32 v{t}, v{VTMP}", f"v_max_f32 v{MREF+qb}, v{t}, v{VTMP}",
              f"v_mul_f32 v{NMC+qb}, s70, v{MREF+qb}", f"v_add_f32 v{THR+qb}, s43, v{MREF+qb}"]
    else:
        L.append(f"v_cmp_gt_f32 vcc, v{t}, v{THR+qb}")
        L.append(f"s_cbranch_vccz L_sk{uid}_{qb}\ns_call_b64 s[40:41], L_rare{qb}\nLABEL L_sk{uid}_{qb}")
    body = []
    for i in range(8):
        a, b = Sreg(qb, 2*i), Sreg(qb, 2*i+1)
        body.append(f"v_fma_f32 v{a}, v{a}, s42, v{NMC+qb}")
        body.append(f"v_fma_f32 v{b}, v{b}, s42, v{NMC+qb}")
        body.append(f"v_exp_f32 v{a}, v{a}")
        body.append(f"v_exp_f32 v{b}, v{b}")
        if i > 0:
            pa, pb = Sreg(qb, 2*i-2), Sreg(qb, 2*i-1)
            body.append(f"v_add_f32 v{LSUM+qb}, v{LSUM+qb}, v{pa}")
            body.append(f"v_add_f32 v{LSUM+qb}, v{LSUM+qb}, v{pb}")
            j = i - 1
            body.append(f"v_cvt_pk_bf16_f32 v{Sreg(qb, 8*(j//4) + j%4)}, v{pa}, v{pb}")
    pa, pb = Sreg(qb, 14), Sreg(qb, 15)
    body.append(f"v_add_f32 v{LSUM+qb}, v{LSUM+qb}, v{pa}")
    body.append(f"v_add_f32 v{LSUM+qb}, v{LSUM+qb}, v{pb}")
    body.append(f"v_cvt_pk_bf16_f32 v{Sreg(qb, 11)}, v{pa}, v{pb}")
    return L, body

def emit_list(a, L):
    for y in L:
        for x in y.split("\n"):
            if x.startswith("LABEL "): a.label(x[6:])
            else: a.e(x)

def kreads():
    return [f"ds_read_b128 {ar(KF+4*s,4)}, v{VKA+s}" for s in range(8)]
def vreads():
    L = []
    for db in range(4):
        for s in range(2):
            for t in range(2):
                L.append(f"ds_read_b64_tr_b16 {ar(VF + db*8 + s*4 + t*2, 2)}, v{VVA+db} offset:{4096*s + 2048*t}")
    return L

def slot_advance(sreg, dreg, vbase, n, ns):
    L = [f"s_add_u32 s48, {sreg}, 65536", f"s_cmp_ge_u32 s48, {ns*32768}", f"s_cselect_b32 s49, {ns*32768}, 0",
         "s_sub_u32 s48, s48, s49", f"s_sub_u32 {dreg}, s48, {sreg}", f"s_mov_b32 {sreg}, s48"]
    L += [f"v_add_u32 v{vbase+i}, {dreg}, v{vbase+i}" for i in range(n)]
    return L

def tile_body(a, uid, opt, t, pre=(), x2=(), x5=(), x6=(), extraV=0):
    ns = opt.ns
    dmaV = 2*t + ns <= 31; dmaK = 2*t + 1 + ns <= 31; nextK = t < 15
    waitV = 8 * len([u for u in range(2*t + 2, 2*t + ns) if u <= 31])
    waitK = 8 * len([u for u in range(2*t + 3, 2*t + ns) if u <= 31])
    k1, k2 = ("V", "K") if ns % 2 else ("K", "V")
    qk = lambda qb: [f"v_mfma_f32_32x32x16_bf16 {vr(Sreg(qb,0),16)}, {ar(KF+4*ks,4)}, {vr(Qreg(qb,ks),4)}, " + ("0" if ks == 0 else vr(Sreg(qb,0),16)) for ks in range(8)]
    pv = lambda qb: [f"v_mfma_f32_32x32x16_bf16 {ar(Oacc(db,qb),16)}, {ar(VF+db*8+s*4,4)}, {vr(Sreg(qb,8*s),4)}, " + ("0" if uid == "f" and s == 0 else ar(Oacc(db,qb),16)) for db in range(4) for s in range(2)]
    emit_list(a, pre); waitV += sum(x.startswith("buffer") for x in pre) + extraV
    x2 = list(x2); nx2 = sum(x.startswith("buffer") for x in x2)
    for ks, m in enumerate(qk(0)):
        a.e(f"s_waitcnt lgkmcnt({7-ks})"); a.e(m)
    h0, b0 = softmax(0, uid, uid == 'f'); h1, b1 = softmax(1, uid, uid == 'f'); h2, b2 = softmax(2, uid, uid == 'f')
    def split(L, n):
        k = 0; cnt = 0
        while k < len(L) and cnt < n:
            cnt += L[k].startswith("buffer"); k += 1
        return L[:k], L[k:]
    def mix(A, B):
        groups = []; cur = []
        for x in B:
            cur.append(x)
            if x.startswith("buffer"): groups.append(cur); cur = []
        if cur:
            if groups: groups[-1] += cur
            else: groups.append(cur)
        out = []; n = len(groups)
        if n == 0: return list(A)
        step = len(A) / n; g = 0
        for i, x in enumerate(A):
            while g < n and i >= g * step: out += groups[g]; g += 1
            out.append(x)
        while g < n: out += groups[g]; g += 1
        return out
    dv = []; dk = []
    if dmaV:
        dv = ["s_add_u32 s50, s37, s38", "s_add_u32 s51, s34, s35"] + dma_unit(k1, "s50", "s51", opt)
        if not opt.kvsame: dv += ["s_add_u32 s35, s35, 16384", "s_and_b32 s35, s35, 0x3ffff"]
    if dmaK:
        dk = ["s_add_u32 s50, s37, s39", "s_add_u32 s51, s34, s36"] + dma_unit(k2, "s50", "s51", opt)
        if not opt.kvsame: dk += ["s_add_u32 s36, s36, 16384", "s_and_b32 s36, s36, 0x3ffff"]
    dv1, dv2 = split(dv, 4)
    if x2: assert not dk; dk = ['s_nop 0', 's_nop 0'] + x2
    dk1, dk2 = split(dk, 3); dk2, dk3 = split(dk2, 3)
    cnt = [0]
    def emit(L):
        for x in L:
            if opt.strip and t < 15:
                if "mfma" in opt.strip and x.startswith("v_mfma"): continue
                if "valu" in opt.strip and x.startswith(("v_fma", "v_exp", "v_add_f32", "v_cvt", "v_max")): continue
            if x == "WAITV": x = f"s_waitcnt vmcnt({waitV + cnt[0]})"
            if x == "WAITK": x = f"s_waitcnt vmcnt({waitK + cnt[0]})"
            if opt.cap and x.startswith("buffer") and x.endswith("lds"): a.e(f"s_waitcnt vmcnt({opt.cap-1})")
            cnt[0] += x.startswith("buffer")
            emit_list(a, [x])
    if dv1: dv1 = dv1[:2] + dv1[2:]
    head = dv1[:2]
    emit(interleave(qk(1), head + mix(slot_advance("s38", "s44", VKA, 8, opt.ns) + h0, dv1[2:])))
    emit(interleave(qk(2), ["WAITV"] + vreads() + mix(b0, dv2)))
    a.e("s_waitcnt lgkmcnt(0)")
    emit(interleave(pv(0), dk1[:2] + mix(h1 + b1, dk1[2:])))
    emit(interleave(pv(1), mix(h2 + b2, dk2) + list(x5)))
    f = dk3 + slot_advance("s39", "s45", VVA, 4, opt.ns)
    if nextK: f += ["WAITK"] + kreads()
    else: f = list(x6)
    emit(interleave(pv(2), f))

def rare(a, qb):
    a.label(f"L_rare{qb}", reset=True)
    t = TMAX + qb; u = VTMP
    a.e(f"""s_nop 15
            v_mov_b32 v{u}, v{t}
            s_nop 1
            v_permlane32_swap_b32 v{t}, v{u}
            s_nop 1
            v_max3_f32 v{MREF+qb}, v{t}, v{u}, v{MREF+qb}
            v_mul_f32 v{u}, s42, v{MREF+qb}
            v_add_f32 v{THR+qb}, s43, v{MREF+qb}
            v_add_f32 v{t}, v{u}, v{NMC+qb}
            v_sub_f32 v{NMC+qb}, 0, v{u}
            v_sub_f32 v{t}, 0, v{t}
            v_exp_f32 v{t}, v{t}
            s_nop 1
            v_mul_f32 v{LSUM+qb}, v{LSUM+qb}, v{t}""")
    for db in range(4):
        for r in range(0, 16, 2):
            o = Oacc(db, qb) + r
            a.e(f"""v_accvgpr_read_b32 v{u}, a{o}
                    v_accvgpr_read_b32 v{u+1}, a{o+1}
                    v_mul_f32 v{u}, v{u}, v{t}
                    v_mul_f32 v{u+1}, v{u+1}, v{t}
                    v_accvgpr_write_b32 a{o}, v{u}
                    v_accvgpr_write_b32 a{o+1}, v{u+1}""")
    a.e("s_nop 3\ns_setpc_b64 s[40:41]")

def attn_kernel(a, name, opt):
    header(a, name)
    a.e("""s_load_dwordx8 s[56:63], s[0:1], 0
           s_load_dwordx8 s[64:71], s[0:1], 40
           s_load_dwordx2 s[72:73], s[0:1], 96
           s_load_dwordx2 s[40:41], s[0:1], 32
           s_load_dwordx2 s[42:43], s[0:1], 72
           s_load_dwordx4 s[44:47], s[0:1], 80
           s_memrealtime s[48:49]""")
    a.e("s_cmp_ge_u32 s2, 256\ns_cbranch_scc1 L_attn_done")
    a.e("s_getpc_b64 s[50:51]")
    a.label("L_pc0")
    if opt.codetouch:
        a.e("v_lshlrev_b32 v111, 7, v0\nv_min_u32 v111, L_end-L_pc0-4, v111\nglobal_load_dword v47, v111, s[50:51] nt")
    if opt.stamps: a.e(f"{opt.clk} s[{STB}:{STB+1}]")
    decode_ids(a)
    VW, VXA, VXB, AW, AX, VD = 36, 37, 38, 39, 43, 47
    FA, FB, ACC = 48, 68, 112
    a.e(f"""v_lshrrev_b32 v88, 4, v1            ; g = l>>4
            v_lshrrev_b32 v56, 3, v1
            v_and_b32 v57, 7, v1
            v_and_b32 v92, 1, v88
            v_lshlrev_b32 v59, 2, v92
            v_xor_b32 v59, v57, v59
            v_lshlrev_b32 v59, 4, v59
            v_lshl_add_u32 v{VW}, v56, 13, v59
            v_mul_u32_u24 v60, 1152, v56
            v_xor_b32 v61, v57, v88
            s_and_b32 s3, s28, 1
            s_lshl_b32 s3, s3, 2
            v_xor_b32 v61, s3, v61
            v_lshl_add_u32 v{VXA}, v61, 4, v60
            v_xor_b32 v61, 4, v61
            v_lshl_add_u32 v{VXB}, v61, 4, v60
            s_lshl_b32 s37, s28, 13
            s_lshl_b32 s33, s30, 3
            s_lshl_b32 s3, s32, 1
            s_add_u32 s33, s33, s3              ; h0
            s_add_u32 s74, s3, s31
            s_lshl_b32 s52, s33, 8
            s_lshl_b32 s3, s28, 7
            s_add_u32 s52, s52, s3
            s_mul_i32 s53, s31, 110592
            s_mul_i32 s3, s28, 27648
            s_add_u32 s53, s53, s3
            s_mul_i32 s54, s28, 3072
            s_add_u32 s54, s54, 98304
            s_cmp_ge_u32 s74, 9
            s_cselect_b32 s3, 9, 0
            s_sub_u32 s74, s74, s3
            s_mov_b32 s18, 884736
            s_mov_b32 s19, 0x20000
            s_mov_b32 s22, 4718592
            s_mov_b32 s23, 0x20000""")
    if opt.krot == 0: a.e("s_mov_b32 s74, 0")
    elif opt.krot == 2: a.e("s_mul_i32 s3, s74, 43\ns_lshr_b32 s3, s3, 7\ns_mul_i32 s74, s3, 3")
    elif opt.krot == 3: a.e("s_and_b32 s74, s74, 1\ns_lshl_b32 s74, s74, 2")
    a.e("s_cmp_eq_u32 s29, 0\ns_waitcnt lgkmcnt(0)")
    for d, o in ((20, 6), (16, 0), (8, 2), (12, 4)):
        a.e(f"s_cselect_b32 s{d}, s{56+o}, s{64+o}\ns_cselect_b32 s{d+1}, s{57+o}, s{65+o}")
    a.e("""s_cselect_b32 s76, s40, s42
           s_cselect_b32 s77, s41, s43
           s_mov_b64 s[78:79], s[44:45]
           s_mov_b64 s[80:81], s[46:47]
           s_or_b32 s75, s48, 1""")
    vmc = [0]; done = {}
    a.e("s_mov_b64 s[68:69], s[50:51]")
    a.check = False
    def vm(text):
        a.e(text); vmc[0] += 1
    def stage(c):
        buf = c % 3
        L = ["s_lshl_b32 s4, s74, 19", "s_add_u32 s4, s4, s52", "s_lshl_b32 s5, s74, 7", "s_add_u32 s5, s5, s53"]
        for j in range(8):
            L += [f"s_add_u32 m0, s37, {buf*32768 + j*1024}"]
            if j: L += [f"s_add_u32 s4, s4, 65536"]
            L += [f"buffer_load_dwordx4 v{VW}, s[20:23], s4 offen{opt.wnt} lds"]
        for i in range(3):
            L += [f"s_add_u32 m0, s54, {buf*12288 + i*1024}"]
            if i: L += [f"s_add_u32 s5, s5, {8*1152}"]
            L += [f"buffer_load_dwordx4 v{VXA if i != 1 else VXB}, s[16:19], s5 offen{opt.wnt} lds"]
        L += ["s_add_u32 s74, s74, 1", "s_cmp_eq_u32 s74, 9", "s_cselect_b32 s74, 0, s74"]
        vmc[0] += 11; done[c] = vmc[0]
        return L
    emit_list(a, stage(0))
    srd(a, 56, "s80", "s81", 256)
    a.e("""s_lshl_b32 s3, s2, 8
           v_add_u32 v106, s3, v0
           v_min_u32 v106, 1, v106
           v_lshlrev_b32 v106, 12, v106
           v_mov_b32 v107, s75""")
    vm("buffer_store_dword v107, v106, s[56:59], 0 offen sc1")
    emit_list(a, stage(1))
    for d, n in ((8, 1 << 26), (12, 1 << 26)):
        a.e(f"s_mov_b32 s{d+2}, {n}\ns_mov_b32 s{d+3}, 0x20000")
    srd(a, 24, "s72", "s73", WS_BYTES)
    a.e(f"""v_and_b32 v89, 15, v1               ; l&15
            v_lshrrev_b32 v90, 5, v1            ; h
            v_and_b32 v91, 31, v1               ; l&31
            v_lshlrev_b32 v54, 8, v88           ; g*256
            v_xor_b32 v55, v89, v88
            v_lshl_add_u32 v{VOFFK}, v55, 4, v54
            v_xor_b32 v{VOFFK+1}, 64, v{VOFFK}
            v_xor_b32 v{VOFFK+2}, 128, v{VOFFK}
            v_xor_b32 v{VOFFK+3}, 192, v{VOFFK}
            v_lshlrev_b32 v55, 2, v88
            v_xor_b32 v55, v89, v55
            v_lshl_add_u32 v{VOFFV}, v55, 4, v54
            v_lshlrev_b32 v{VOFFT}, 7, v1
            s_lshr_b32 s3, s28, 1
            s_add_u32 s33, s33, s3              ; h
            s_lshl_b32 s34, s31, 5
            s_add_u32 s34, s34, s33
            s_lshl_b32 s34, s34, 18
            s_and_b32 s3, s28, 1
            s_lshl_b32 s3, s3, 13
            s_add_u32 s34, s34, s3""")
    if opt.rot == "rnd":
        a.e("""s_lshl_b32 s3, s2, 2
               s_lshr_b32 s4, s28, 1
               s_add_u32 s3, s3, s4
               s_mul_i32 s3, s3, 0x1e3779b1
               s_lshr_b32 s4, s3, 15
               s_xor_b32 s3, s3, s4
               s_mul_i32 s3, s3, 0x2c1b3c6d
               s_lshr_b32 s3, s3, 20
               s_and_b32 s3, s3, 15
               s_lshl_b32 s55, s3, 14""")
    else:
        a.e("s_mov_b32 s55, 0")
    def tile_off(dst, t):
        return [f"s_add_u32 {dst}, s55, {t*16384}", f"s_and_b32 {dst}, {dst}, 0x3ffff", f"s_add_u32 {dst}, {dst}, s34"]
    def touch(u):
        vmc[0] += 1
        return tile_off("s47", u // 2) + [f"buffer_load_dword v{VD}, v{VOFFT}, {'s[8:11]' if u % 2 == 0 else 's[12:15]'}, s47 offen{opt.nt}"]
    def unit(u):
        vmc[0] += 8
        return tile_off("s51", u // 2) + [f"s_add_u32 s50, s37, {u*32768}"] + dma_unit("K" if u % 2 == 0 else "V", "s50", "s51", opt)
    a.check = False
    for u in opt.touch_sched.get(-1, []): emit_list(a, touch(u))
    a.e(f"""v_xor_b32 v55, v90, v89             ; h ^ (l&15)
            v_lshlrev_b32 v55, 4, v55
            v_lshl_add_u32 v55, v91, 8, v55
            v_add_u32 v{VKA}, s37, v55""")
    for s in range(1, 8): a.e(f"v_xor_b32 v{VKA+s}, {32*s}, v{VKA}")
    a.e(f"""v_lshrrev_b32 v56, 2, v89           ; r
            v_and_b32 v57, 3, v1                ; c4
            v_lshl_add_u32 v59, v90, 2, v56     ; 4h + r
            v_lshlrev_b32 v59, 8, v59
            v_lshl_add_u32 v59, v56, 6, v59     ; + r*64
            v_lshl_add_u32 v59, v92, 5, v59     ; + (g&1)*32
            v_lshl_add_u32 v59, v57, 3, v59
            s_and_b32 s4, s28, 1
            s_lshl_b32 s4, s4, 7
            v_xor_b32 v59, s4, v59
            s_add_u32 s3, s37, 32768
            v_add_u32 v{VVA}, s3, v59""")
    for db in range(1, 4): a.e(f"v_xor_b32 v{VVA+db}, {64*db}, v{VVA}")
    a.e(f"""v_lshl_add_u32 v59, v90, 3, v56     ; 8h + r
            v_lshlrev_b32 v59, 7, v59
            v_lshrrev_b32 v60, 1, v56
            v_lshl_add_u32 v59, v60, 6, v59
            v_lshl_add_u32 v59, v92, 5, v59
            v_lshl_add_u32 v59, v57, 3, v59
            v_add_u32 v{AW}, s37, v59
            v_xor_b32 v{AW+1}, 64, v{AW}
            v_add_u32 v{AW+2}, 0x10000, v{AW}
            v_add_u32 v{AW+3}, 0x10000, v{AW+1}
            v_bfe_u32 v60, v1, 1, 3             ; ((l&31)>>1)&7
            v_xor_b32 v60, v60, v90
            v_lshlrev_b32 v60, 4, v60
            v_lshl_add_u32 v60, v91, 7, v60
            v_add_u32 v{AX}, 98304, v60""")
    for s in range(1, 4): a.e(f"v_xor_b32 v{AX+s}, {32*s}, v{AX}")
    a.e(f"""s_mov_b32 s42, {f2u(CSC):#x}
            s_mov_b32 s70, {f2u(-CSC):#x}
            s_mov_b32 s43, {f2u(THR_LOG2 / CSC):#x}
            s_mov_b32 s38, 0
            s_mov_b32 s39, 32768""")
    for qb in range(3):
        a.e(f"v_mov_b32 v{LSUM+qb}, 0")
    a.e("""s_and_b32 s3, s28, 1
           s_mul_i32 s3, s3, 576
           v_add_u32 v50, s3, v1
           s_lshr_b32 s7, s28, 1
           s_cmp_eq_u32 s7, 1
           s_cselect_b64 vcc, -1, 0""")
    for i in range(9):
        a.e(f"""v_add_u32 v51, {64*i}, v50
                v_mul_u32_u24 v52, 58255, v51
                v_lshrrev_b32 v52, 20, v52
                v_mul_u32_u24 v53, 18, v52
                v_sub_u32 v53, v51, v53
                v_xor_b32 v54, 1, v53
                v_sub_u32 v54, 17, v54
                v_cndmask_b32 v53, v53, v54, vcc
                v_mul_u32_u24 v52, 1152, v52
                v_lshl_add_u32 v{93+i}, v53, 4, v52""")
        if opt.wolin: a.e(f"v_lshlrev_b32 v{93+i}, 4, v51")
    a.e(f"""v_lshlrev_b32 v102, 4, v1
            v_lshlrev_b32 v50, 4, v90
            v_lshl_add_u32 v50, v92, 2, v50
            v_add_u32 v50, v50, v56
            v_mul_u32_u24 v50, 288, v50
            v_lshl_add_u32 v50, v57, 3, v50
            s_mul_i32 s3, s7, 18432
            v_add_u32 v103, s3, v50
            v_add_u32 v104, 90112, v103
            v_lshlrev_b32 v105, 10, v92
            v_lshl_add_u32 v105, v90, 8, v105
            v_lshl_add_u32 v105, v89, 4, v105
            v_min_u32 v108, 1, v0
            v_lshlrev_b32 v108, 12, v108        ; only thread 0 is inside the 256-B debug buffer
            s_lshr_b32 s3, s2, 3
            s_lshl_b32 s3, s3, 2
            s_add_u32 s3, s3, s28
            s_mul_i32 s3, s3, 9216
            v_add_u32 v109, s3, v{VOFFT}
            v_add_u32 v110, 8192, v109
            v_cmp_gt_u32 vcc, 8, v1
            v_cndmask_b32 v110, -1, v110, vcc
            v_add_u32 v111, s37, v{VOFFT}
            v_add_u32 v111, L_tail-L_pc0, v111
            v_min_u32 v111, L_end-L_pc0-4, v111
            s_lshl_b32 s35, s30, 4
            s_add_u32 s35, s35, s7
            s_mul_i32 s35, s35, {64*1152}
            s_mul_i32 s3, s32, 288
            s_add_u32 s64, s35, s3
            s_mul_i32 s65, s28, 9216
            s_lshl_b32 s66, s32, 1""")
    srd(a, 60, "s76", "s77", 4718592)
    a.e("s_mul_i32 s67, s30, 1179648")
    def extras(pol=''):
        L = []
        if opt.wotouch:
            L += [f"buffer_load_dword v{VD}, v109, s[60:63], s67 offen{pol}", f"buffer_load_dword v{VD}, v110, s[60:63], s67 offen{pol}"]
        if opt.codetouch: L += [f"global_load_dword v{VD}, v111, s[68:69]"]
        return L
    BUF = (126976, 90112, 0, 36864)
    def wstage(st, VO):
        L = [f"s_add_u32 s4, s66, {st}", "s_and_b32 s4, s4, 7", f"s_mul_i32 s4, s4, {128*1152}", "s_add_u32 s4, s4, s64"]
        for i in range(9):
            L += [f"s_add_u32 m0, s65, {BUF[st % 4] + i*1024}", f"buffer_load_dwordx4 v{VO+i}, s[60:63], s4 offen{opt.wont} lds"]
        vmc[0] += 9; done[st] = vmc[0]
        return L
    zero = []
    def frag_reads(c, s, F):
        buf = c % 3
        L = []
        for db in range(2):
            for t in range(2):
                ad = AW + db + (2 if buf == 2 else 0)
                off = (32768 if buf == 1 else 0) + (16*s + 4*t) * 128
                L.append(f"ds_read_b64_tr_b16 {vr(F + db*4 + t*2, 2)}, v{ad} offset:{off}")
        for qb in range(3):
            L.append(f"ds_read_b128 {vr(F + 8 + qb*4, 4)}, v{AX+s} offset:{buf*12288 + qb*4096}")
        return L
    a.check = False
    a.e(f"s_waitcnt vmcnt({vmc[0] - done[0]})\ns_barrier")
    stamp(a, "q0", opt)
    emit_list(a, frag_reads(0, 0, FA))
    issued = [vmc[0]]
    fill = stage(2); parts = 3
    for c in range(9):
        for s in range(4):
            F = FA if s % 2 == 0 else FB
            nF = FB if s % 2 == 0 else FA
            if s == 3:
                assert not fill
                if c < 8: a.e(f"s_waitcnt vmcnt({vmc[0] - done[c+1]}) lgkmcnt(0)\ns_barrier")
                else: a.e("s_waitcnt lgkmcnt(0)")
                stamp(a, f"c{c}", opt)
                fill = stage(c + 3) if c + 3 <= 8 else unit(c - 6) if c < 8 else []
                if c == -opt.late: x = extras(" nt")[:2]; vmc[0] += 2; fill += x
                if c == -opt.late + opt.regap: x = extras("")[:2]; vmc[0] += 2; fill = x + fill
                if c == 0 and opt.codetouch: x = extras("")[2:]; vmc[0] += 1; fill = x + fill
                parts = 4 if c < 8 else 1
                if c < 8: emit_list(a, frag_reads(c + 1, 0, nF))
            else:
                emit_list(a, frag_reads(c, s + 1, nF))
                a.e("s_waitcnt lgkmcnt(7)")
            ms = []
            for db in range(2):
                for qb in range(3):
                    d = vr(ACC + (db*3 + qb)*16, 16)
                    ms.append(f"v_mfma_f32_32x32x16_bf16 {d}, {vr(F+db*4,4)}, {vr(F+8+qb*4,4)}, " + ("0" if (c == 0 and s == 0) else d))
            z, zero = zero[:6], zero[6:]
            nd = sum(x.startswith("buffer") for x in fill); take = -(-nd // parts); parts -= 1
            k = 0; cnt = 0
            while k < len(fill) and (cnt < take or not any(x.startswith("buffer") for x in fill[k:])):
                cnt += fill[k].startswith("buffer"); k += 1
            fs, fill = fill[:k], fill[k:]
            emit_list(a, interleave(ms, fs + z))
    a.check = True
    a.e("s_barrier")
    a.e(f"""s_and_b32 s3, s28, 1
            s_lshl_b32 s3, s3, 3
            v_xor_b32 v55, s3, v89
            v_lshlrev_b32 v55, 4, v55
            v_lshl_add_u32 v55, v91, 8, v55
            v_lshl_add_u32 v55, v90, 3, v55
            s_lshr_b32 s3, s28, 1
            s_mul_i32 s3, s3, 24576
            s_add_u32 s3, s3, 98304
            v_add_u32 v55, s3, v55""")
    for db in range(2):
        for i in range(4):
            a.e(f"v_xor_b32 v56, {(4*db + i)*16}, v55")
            for qb in range(3):
                r = ACC + (db*3 + qb)*16 + 4*i
                tq = 58 + 2 * qb
                a.e(f"""v_cvt_pk_bf16_f32 v{tq}, v{r}, v{r+1}
                        v_cvt_pk_bf16_f32 v{tq+1}, v{r+2}, v{r+3}
                        ds_write_b64 v56, v[{tq}:{tq+1}] offset:{qb*8192}""")
    a.e("s_waitcnt lgkmcnt(0)\ns_barrier")
    a.e("s_sub_u32 s3, s3, s37")
    for s in range(8): a.e(f"v_add_u32 v{48+s}, s3, v{VKA+s}")
    for qb in range(3):
        for s in range(8):
            a.e(f"ds_read_b128 {vr(Qreg(qb,s),4)}, v{48+s} offset:{qb*8192}")
    a.e("s_waitcnt lgkmcnt(0)\ns_barrier")
    stamp(a, "qx", opt)
    for u in range(2, opt.ns): emit_list(a, unit(u))
    a.e(f"s_add_u32 s35, s55, {(opt.ns//2)*16384}\ns_and_b32 s35, s35, 0x3ffff\ns_add_u32 s36, s55, {((opt.ns+1)//2)*16384}\ns_and_b32 s36, s36, 0x3ffff")
    stamp(a, "loop", opt)
    a.e(f"s_waitcnt vmcnt({8*(opt.ns-1)}) lgkmcnt(0)")
    emit_list(a, kreads())
    nloop = (30 - opt.ns) // 2 + 1
    stamp(a, "k0", opt)
    tile_body(a, "f", opt, 0)
    stamp(a, "t0", opt)
    a.e(f"s_mov_b32 s46, {nloop - 1}")
    a.raw(".p2align 6")
    a.label("L_tile")
    if opt.late > 0:
        a.check = False
        for k, pol in ((opt.late, " nt"), (opt.late - 1, "")):
            a.e(f"s_cmp_lg_u32 s46, {k}\ns_cbranch_scc1 L_nolate{k}")
            emit_list(a, extras(pol)[:2])
            a.label(f"L_nolate{k}")
        a.check = True; a.vm = []
    tile_body(a, 0, opt, 1)
    a.e("s_sub_u32 s46, s46, 1\ns_cmp_lg_u32 s46, 0\ns_cbranch_scc1 L_tile")
    for t in range(nloop, 15):
        tile_body(a, t, opt, t, x2=wstage(0, 93) if (t == 14 and opt.early_wo) else ())
    a.label("L_tail")
    VO, VL16, AD, VOL = 93, 102, 103, 105
    def send(qb):
        L = []
        for i in range(2):
            for g in range(4):
                sl, off = divmod((i*3 + qb)*4 + g, 8)
                L.append(f"ds_write_b128 v{36 if sl < 2 else 44}, {ar(Oacc(2+i,qb) + 4*g, 4)} offset:{(32768 if sl == 1 else 0) + off*1024}")
        return L
    pre = ["buffer_load_dword v106, v108, s[56:59], 0 offen sc1",
           f"v_add_u32 v36, s37, v{VL16}", "v_xor_b32 v37, 8192, v36", "v_add_u32 v44, 0x10000, v36", "v_add_u32 v45, 0x10000, v37",
           "v_lshrrev_b32 v46, 1, v36", "v_and_b32 v46, 0x1f8, v46", "v_add_u32 v46, s37, v46", "v_add_u32 v46, 98304, v46", "v_xor_b32 v47, 8192, v46"]
    st = []
    for qb in range(3):
        st += [f"v_mov_b32 v{39+2*qb}, v{LSUM+qb}", f"v_mov_b32 v{38+2*qb}, v{NMC+qb}"]
    for qb in range(3):
        st += [f"v_permlane32_swap_b32 v{LSUM+qb}, v{39+2*qb}"]
    for qb in range(3):
        st += [f"v_add_f32 v{39+2*qb}, v{LSUM+qb}, v{39+2*qb}", f"ds_write_b64 v46, v[{38+2*qb}:{39+2*qb}] offset:{qb*512}"]
    assert opt.ns == 3 or not opt.early_wo
    tile_body(a, 15, opt, 15, pre=pre, extraV=9 if opt.early_wo else 0, x5=send(0), x6=st + send(1))
    stamp(a, "t15", opt)
    a.e("s_cmp_lg_u32 s28, 0\ns_cbranch_scc1 L_tag_ok\ns_mov_b32 s4, 0x100000")
    a.label("L_tag")
    a.e("""s_waitcnt vmcnt(0)
           v_readfirstlane_b32 s75, v106
           s_cmp_lg_u32 s75, 0
           s_cbranch_scc1 L_tag_put
           buffer_load_dword v106, v108, s[56:59], 0 offen sc1
           s_sub_u32 s4, s4, 1
           s_cmp_lg_u32 s4, 0
           s_cbranch_scc1 L_tag""")
    a.label("L_tag_put")
    a.check = False
    a.e("v_mov_b32 v106, s75\nds_write_b32 v46, v106 offset:1536")
    a.check = True
    a.label("L_tag_ok")
    a.vm = []
    emit_list(a, send(2))
    for r in range(96): a.e(f"v_accvgpr_read_b32 v{160 + r}, a{r}")
    a.e(f"""s_lshr_b32 s5, s28, 1               ; kh
            s_and_b32 s6, s28, 1                ; qh
            s_lshl_b32 s39, s29, 3
            s_add_u32 s39, s39, s31             ; side*8 + b
            s_lshl_b32 s3, s39, 5
            s_add_u32 s3, s3, s33
            s_mul_i32 s52, s3, 24576
            s_mul_i32 s3, s6, 12288
            s_add_u32 s52, s52, s3
            v_sub_u32 v35, v37, v{VL16}
            v_add_u32 v35, v35, v{VOL}
            v_mov_b32 v34, 98304""")
    stamp(a, "c_pre", opt)
    a.e("s_waitcnt lgkmcnt(0)\ns_barrier")
    stamp(a, "c_bar", opt)
    for qb in range(3): a.e(f"ds_read_b64 v[{2+2*qb}:{3+2*qb}], v47 offset:{qb*512}")
    a.e("ds_read_b32 v8, v34 offset:1536")
    RC = (48, 64, 112, 128, 144, 16)
    def recv(blk):
        for g in range(4):
            sl, off = divmod(blk*4 + g, 8)
            a.e(f"ds_read_b128 {vr(RC[blk]+4*g,4)}, v{37 if sl < 2 else 45} offset:{(32768 if sl == 1 else 0) + off*1024}")
    recv(0); recv(1)
    vmc = [0]; done = {}
    if not opt.early_wo: emit_list(a, wstage(0, VO))
    stamp(a, "c_w0", opt)
    a.e("s_waitcnt lgkmcnt(8)\nv_readfirstlane_b32 s75, v8")
    SC = 80
    for qb in range(3):
        pn, pl, on, ol = 2 + 2*qb, 3 + 2*qb, 38 + 2*qb, 39 + 2*qb
        a.e(f"""v_min_f32 v9, v{on}, v{pn}
                v_sub_f32 v10, v9, v{on}
                v_sub_f32 v11, v9, v{pn}
                v_exp_f32 v10, v10
                v_exp_f32 v11, v11
                v_mul_f32 v{ol}, v{ol}, v10
                v_fmac_f32 v{ol}, v{pl}, v11
                v_rcp_f32 v{ol}, v{ol}
                v_mul_f32 v{SC+2*qb}, v10, v{ol}
                v_mul_f32 v{SC+2*qb+1}, v11, v{ol}""")
    recv(2); recv(3); recv(4); recv(5)
    nw = 0
    for blk in range(6):
        stamp(a, f"c_b{blk}", opt)
        i, qb = divmod(blk, 3)
        a.e(f"s_waitcnt lgkmcnt({min(14, 20 - 4*blk + nw)})")
        K = 160 + blk*16; R = RC[blk]
        for r in range(0, 16, 2):
            a.e(f"v_pk_mul_f32 v[{R+r}:{R+r+1}], v[{R+r}:{R+r+1}], v[{SC+2*qb}:{SC+2*qb+1}] op_sel:[0,1] op_sel_hi:[1,1]")
        for r in range(0, 16, 2):
            a.e(f"v_pk_fma_f32 v[{K+r}:{K+r+1}], v[{K+r}:{K+r+1}], v[{SC+2*qb}:{SC+2*qb+1}], v[{R+r}:{R+r+1}] op_sel_hi:[1,0,1]")
        for j in range(8):
            a.e(f"v_cvt_pk_bf16_f32 v{K+8*(j//4)+j%4}, v{K+2*j}, v{K+2*j+1}")
        a.e(f"s_add_u32 s47, s52, {WS_O + (i*6 + 2*qb)*1024}")
        idx = i*6 + 2*qb
        loff = idx*1024 if idx < 8 else 32768 + (idx - 8)*1024
        for s in range(2):
            a.e(f"buffer_store_dwordx4 {vr(K+8*s,4)}, v{VOL}, s[24:27], s47 offen offset:{512*s}{opt.ostore}")
            a.e(f"ds_write_b128 v35, {vr(K+8*s,4)} offset:{loff + 512*s}"); nw += 1
    stamp(a, "comb", opt)
    def publish(tag, foff):
        a.e(f"""s_waitcnt vmcnt(0) lgkmcnt(0)
                s_barrier
                s_cmp_lg_u32 s28, 0
                s_cbranch_scc1 L_pub{tag}
                s_lshl_b32 s3, s2, 7
                s_add_u32 s3, s3, {WS_F + foff}
                v_mov_b32 v15, 0
                v_mov_b32 v14, s75
                buffer_store_dword v14, v15, s[24:27], s3 offen sc1""")
        a.label(f"L_pub{tag}")
    def ask(foff, mask, shift):
        a.e(f"""s_andn2_b32 s7, s2, {mask}
                s_lshl_b32 s7, s7, 7
                s_add_u32 s7, s7, {WS_F + foff}
                v_and_b32 v13, 3, v1
                v_lshlrev_b32 v13, {7 + shift}, v13
                buffer_load_dword v12, v13, s[24:27], s7 offen sc1""")
    def check(tag):
        a.e("s_mov_b32 s4, 0x100000")
        a.label(f"L_poll{tag}")
        a.e(f"""s_waitcnt vmcnt(0)
                v_cmp_ne_u32 vcc, s75, v12
                s_cbranch_vccz L_got{tag}
                s_sleep 1
                buffer_load_dword v12, v13, s[24:27], s7 offen sc1
                s_sub_u32 s4, s4, 1
                s_cmp_lg_u32 s4, 0
                s_cbranch_scc1 L_poll{tag}""")
        a.label(f"L_got{tag}")
        a.e("s_waitcnt vmcnt(0)")
    publish(1, 0)
    a.vm = []
    ACC, WF, OF = 112, 16, 0
    a.e(f"""s_xor_b32 s3, s5, 1
            s_lshl_b32 s3, s3, 13
            v_add_u32 v2, s3, v{VL16}""")
    def wreads(st, kl, F):
        L = []
        b = BUF[st % 4]
        reg, boff = (AD, b) if b < 65536 else (AD+1, b - 90112)
        for nb in range(9):
            for t in range(2):
                L.append(f"ds_read_b64_tr_b16 {vr(F + nb*4 + 2*t, 2)}, v{reg} offset:{boff + (32*kl + 8*t) * 288 + 32*nb}")
        return L
    a.e("s_cmp_eq_u32 s6, 1\ns_cbranch_scc1 L_own1")
    saved = (list(a.hist), list(a.lg), list(a.vm))
    for qh in range(2):
        if qh: a.label("L_own1"); a.hist, a.lg, a.vm = (list(x) for x in saved)
        for hp in range(2):
            for kl in range(2):
                for j in range(3):
                    idx = kl*6 + 3*qh + j
                    a.e(f"ds_read_b128 {ar(OF + ((2*hp+kl)*3+j)*4, 4)}, v2 offset:{hp*16384 + (idx*1024 if idx < 8 else 32768 + (idx-8)*1024)}")
        if qh == 0: a.e("s_branch L_own_end")
    a.label("L_own_end")
    emit_list(a, wreads(0, 0, WF))
    vmc[0] = 0; done = {0: 0}
    w1 = wstage(1, VO)
    a.e(f"""s_lshl_b32 s3, s39, 2
            s_add_u32 s3, s3, s30
            s_mul_i32 s37, s3, {8*24576}
            s_mul_i32 s3, s5, 12288
            s_add_u32 s37, s37, s3
            s_mul_i32 s3, s6, 3072
            s_add_u32 s37, s37, s3""")
    stamp(a, "g0", opt)
    def oload(st):
        L = [f"s_add_u32 s4, s66, {st}", "s_and_b32 s4, s4, 7", "s_mul_i32 s4, s4, 24576", "s_add_u32 s4, s4, s37"]
        for kl in range(2):
            if kl: L += ["s_add_u32 s4, s4, 6144"]
            for j in range(3): L += [f"buffer_load_dwordx4 {ar(OF + ((2*st+kl)*3+j)*4, 4)}, v{VL16}, s[24:27], s4 offen offset:{j*1024}{opt.hload}"]
        vmc[0] += 6; done[f"o{st}"] = vmc[0]
        return L
    def gm(st, kl):
        ks = 2*st + kl; F = WF + 36*kl; ms = []
        for nb in range(9):
            for j in range(3):
                d = vr(ACC + (nb*3+j)*4, 4)
                ms.append(f"v_mfma_f32_16x16x32_bf16 {d}, {vr(F+nb*4,4)}, {ar(OF+(ks*3+j)*4,4)}, " + ("0" if ks == 0 else d))
        return ms
    a.e("s_waitcnt lgkmcnt(0)")
    emit_list(a, interleave(gm(0, 0), wreads(0, 1, WF + 36) + w1))
    stamp(a, "g0h", opt)
    a.e("s_waitcnt vmcnt(0) lgkmcnt(0)\ns_barrier")
    stamp(a, "g0b", opt)
    w234 = wstage(2, VO) + wstage(3, VO) + wstage(4, VO)
    h = len(w234) // 2
    emit_list(a, interleave(gm(0, 1), wreads(1, 0, WF) + w234[:h]))
    stamp(a, "g1", opt)
    a.e("s_waitcnt lgkmcnt(0)")
    emit_list(a, interleave(gm(1, 0), wreads(1, 1, WF + 36) + w234[h:]))
    ask(0, 24, 3)
    stamp(a, "g1h", opt)
    check(1)
    stamp(a, "chk1", opt)
    vmc[0] = 0; done = {2: 0, 3: 0, 4: 0}
    f = oload(2) + oload(3)
    a.e("s_waitcnt lgkmcnt(0)\ns_barrier")
    emit_list(a, interleave(gm(1, 1), f + wreads(2, 0, WF)))
    plan = {(2, 0): ["o4"], (2, 1): ["w5"], (3, 0): ["o5"], (3, 1): ["w6"], (4, 0): ["o6"], (4, 1): ["o7"], (5, 0): ["w7"]}
    def jobs(st, kl):
        L = []
        for j in plan.get((st, kl), []): L += oload(int(j[1])) if j[0] == "o" else wstage(int(j[1]), VO)
        return L
    for st in range(2, 8):
        stamp(a, f"g{st}", opt)
        a.e(f"s_waitcnt vmcnt({vmc[0] - done[f'o{st}']}) lgkmcnt(0)")
        stamp(a, f"g{st}w", opt)
        emit_list(a, interleave(gm(st, 0), wreads(st, 1, WF + 36) + jobs(st, 0)))
        stamp(a, f"g{st}h", opt)
        if st < 7:
            a.e(f"s_waitcnt vmcnt({vmc[0] - done[st+1]}) lgkmcnt(0)\ns_barrier")
            emit_list(a, interleave(gm(st, 1), wreads(st + 1, 0, WF) + jobs(st, 1)))
    a.e(f"""s_lshl_b32 s3, s28, 14
            v_add_u32 v13, s3, v{VL16}
            v_xor_b32 v14, 32768, v13
            s_waitcnt lgkmcnt(0)
            s_barrier""")
    ms = gm(7, 1)
    order = [8, 7, 6, 5, 4, 0, 1, 2, 3]
    ms = [ms[nb*3 + j] for nb in order for j in range(3)]
    snd = [f"ds_write_b128 v13, {vr(ACC+(nb*3+j)*4,4)} offset:{((8-nb)*3+j)*1024}" for nb in range(8, 3, -1) for j in range(3)]
    emit_list(a, ms[:9])
    for k in range(15):
        a.e(ms[9 + k]); a.e(snd[k])
    emit_list(a, ms[24:])
    stamp(a, "gend", opt)
    PT = 512 if opt.pbf16 else 1024
    a.e(f"""s_lshl_b32 s52, s39, 2
            s_add_u32 s52, s52, s32
            s_lshl_b32 s53, s52, 2
            s_add_u32 s53, s53, s30
            s_mul_i32 s53, s53, {54*PT}
            s_mul_i32 s3, s6, {3*PT}
            s_add_u32 s53, s53, s3
            s_mul_i32 s3, s5, {48*PT}
            s_add_u32 s53, s53, s3
            s_add_u32 s47, s53, {WS_P}
            s_mov_b32 s3, {6*PT}
            s_cmp_eq_u32 s5, 1
            s_cselect_b32 s53, {-6*PT}, s3
            v_lshlrev_b32 v9, {3 if opt.pbf16 else 4}, v1""")
    a.e("s_waitcnt lgkmcnt(0)\ns_barrier")
    stamp(a, "r_bar", opt)
    for k in range(15): a.e(f"ds_read_b128 {vr(WF+4*k,4)}, v14 offset:{k*1024}")
    for nb in range(5):
        a.e(f"s_waitcnt lgkmcnt({12 - 3*nb})")
        for j in range(3):
            r = ACC + (nb*3+j)*4; q = WF + (nb*3+j)*4
            a.e(f"v_pk_add_f32 v[{r}:{r+1}], v[{r}:{r+1}], v[{q}:{q+1}]\nv_pk_add_f32 v[{r+2}:{r+3}], v[{r+2}:{r+3}], v[{q+2}:{q+3}]")
            if opt.pbf16:
                a.e(f"v_cvt_pk_bf16_f32 v{r}, v{r}, v{r+1}\nv_cvt_pk_bf16_f32 v{r+1}, v{r+2}, v{r+3}")
                a.e(f"buffer_store_dwordx2 {vr(r,2)}, v9, s[24:27], s47 offen offset:{j*PT}{opt.pstore}")
            else:
                a.e(f"buffer_store_dwordx4 {vr(r,4)}, v9, s[24:27], s47 offen offset:{j*PT}{opt.pstore}")
        if nb < 4: a.e("s_add_u32 s47, s47, s53")
    stamp(a, "r_st", opt)
    publish(2, 32768)
    a.e(f"""v_and_b32 v10, 15, v1
            v_mul_u32_u24 v10, 2304, v10
            v_lshrrev_b32 v11, 4, v1
            v_lshl_add_u32 v10, v11, 3, v10
            s_mul_i32 s52, s52, {4*54*PT}
            s_add_u32 s52, s52, {WS_P}
            s_mul_i32 s53, s31, {96*2304}
            s_mul_i32 s3, s29, 1152
            s_add_u32 s53, s53, s3
            s_mul_i32 s3, s32, 288
            s_add_u32 s53, s53, s3
            s_lshl_b32 s54, s28, 2
            s_add_u32 s54, s54, s30""")
    srd(a, 8, "s78", "s79", 1769472)
    stamp(a, "pub2", opt)
    ask(32768, 3, 0)
    check(2)
    stamp(a, "chk2", opt)
    for i in range(4):
        a.e(f"s_add_u32 s{68+i}, s54, {16*i}")
        if i == 3: a.e("s_cmp_ge_u32 s71, 54\ns_cbranch_scc1 L_rd3")
        a.e(f"s_mul_i32 s47, s{68+i}, {PT}\ns_add_u32 s47, s47, s52")
        for o in range(4):
            if opt.pbf16: a.e(f"buffer_load_dwordx2 {vr(16+16*i+4*o+2,2)}, v9, s[24:27], s47 offen{opt.hload}")
            else: a.e(f"buffer_load_dwordx4 {vr(16+16*i+4*o,4)}, v9, s[24:27], s47 offen{opt.hload}")
            if o < 3: a.e(f"s_add_u32 s47, s47, {54*PT}")
    def fin(i):
        r = 16 + 16*i
        if opt.pbf16:
            for o in range(4):
                b = r + 4*o
                a.e(f"""v_lshlrev_b32 v{b}, 16, v{b+2}
                        v_and_b32 v{b+1}, 0xffff0000, v{b+2}
                        v_lshlrev_b32 v{b+2}, 16, v{b+3}
                        v_and_b32 v{b+3}, 0xffff0000, v{b+3}""")
        for k in range(4):
            a.e(f"v_add_f32 v{r+k}, v{r+k}, v{r+4+k}\nv_add_f32 v{r+8+k}, v{r+8+k}, v{r+12+k}")
        for k in range(4): a.e(f"v_add_f32 v{r+k}, v{r+k}, v{r+8+k}")
        a.e(f"""v_cvt_pk_bf16_f32 v{r}, v{r}, v{r+1}
                v_cvt_pk_bf16_f32 v{r+1}, v{r+2}, v{r+3}
                s_mul_i32 s3, s{68+i}, 43
                s_lshr_b32 s3, s3, 8
                s_mul_i32 s4, s3, 6
                s_sub_u32 s4, s{68+i}, s4
                s_mul_i32 s4, s4, {16*2304}
                s_lshl_b32 s3, s3, 5
                s_add_u32 s47, s53, s3
                s_add_u32 s47, s47, s4
                buffer_store_dwordx2 v[{r}:{r+1}], v10, s[8:11], s47 offen""")
    a.e("s_waitcnt vmcnt(0)")
    fin(3)
    a.label("L_rd3")
    a.e("s_waitcnt vmcnt(0)")
    for i in range(3): fin(i)
    stamp(a, "end", opt)
    stamp_flush(a, 1 + len(opt.sset), 0, opt, 24)
    a.label("L_attn_done")
    a.e("s_endpgm")
    for qb in range(3): rare(a, qb)
    a.label("L_end")

def build(opt):
    a = Asm()
    a.raw("; @launch grid=(256,1,1) block=(256,1,1) lds=163840")
    a.raw('.amdgcn_target "amdgcn-amd-amdhsa--gfx950"')
    attn_kernel(a, NAME + "_kernel", opt)
    a.raw('.section .rodata,"a"')
    a.raw(".p2align 6"); a.raw(descriptor(NAME + "_kernel", 512, 256))
    return a.text()

if __name__ == "__main__":
    opt = Opt()
    out = sys.argv[1] if len(sys.argv) > 1 else "k.s"
    for kv in sys.argv[2:]:
        k, v = kv.split("=", 1)
        setattr(opt, k, eval(v))
    open(out, "w").write(build(opt))
```

```python
import re

TRANS = ("v_exp_f32", "v_log_f32", "v_rcp_f32", "v_rsq_f32", "v_sqrt_f32", "v_sin_f32", "v_cos_f32")

def regs_of(tok):
    tok = tok.strip()
    neg = tok.lstrip("-").replace("abs(", "").replace(")", "").replace("|", "")
    m = re.fullmatch(r"([vas])\[(\d+):(\d+)\]", neg)
    if m: return {f"{m.group(1)}{i}" for i in range(int(m.group(2)), int(m.group(3)) + 1)}
    m = re.fullmatch(r"([vas])(\d+)", neg)
    if m: return {neg}
    if neg in ("vcc", "exec", "m0"): return {neg}
    if neg in ("vcc_lo", "vcc_hi"): return {"vcc"}
    if neg in ("exec_lo", "exec_hi"): return {"exec"}
    return set()

class Ins:
    __slots__ = ("text", "op", "wr", "rd", "cls", "passes", "A", "B", "C", "D", "nops", "sdata", "tag")
    def __init__(self, text):
        m = re.search(r";\s*@(\S+)", text)
        self.tag = m.group(1) if m else None
        self.text = text
        t = text.split(";")[0].strip()
        parts = t.split(None, 1)
        self.op = op = parts[0]
        ops = []
        if len(parts) > 1:
            ops = [o.strip() for o in parts[1].split(",")]
            last = ops[-1].split()
            if last: ops[-1] = last[0]; mods = last[1:]
            else: mods = []
        else: mods = []
        self.wr, self.rd = set(), set()
        self.passes = 0; self.A = self.B = self.C = self.D = set(); self.nops = 1; self.sdata = set()
        R = [regs_of(o) for o in ops]
        if op.startswith("v_mfma"):
            self.cls = "mfma"; self.passes = 8 if "32x32x16" in op else 4
            self.D, self.A, self.B, self.C = R[0], R[1], R[2], R[3]
            self.wr = set(self.D); self.rd = self.A | self.B | self.C
        elif op.startswith("v_"):
            self.cls = "valu"
            if op.startswith("v_permlane32_swap") or op.startswith("v_permlane16_swap"):
                self.wr = R[0] | R[1]; self.rd = R[0] | R[1]
            else:
                self.wr = set(R[0])
                k = 1
                if op.startswith(("v_add_co", "v_sub_co", "v_addc_co", "v_subb_co")):
                    self.wr |= R[1]; k = 2
                for r in R[k:]: self.rd |= r
                if op.startswith(("v_fmac", "v_pk_fmac")): self.rd |= R[0]
                if op.startswith("v_cndmask") and len(R) == 3: self.rd.add("vcc")
        elif op.startswith("ds_"):
            self.cls = "ds"
            if op.startswith("ds_read") or op.startswith("ds_bpermute") or op.startswith("ds_swizzle"):
                self.wr = set(R[0])
                for r in R[1:]: self.rd |= r
            else:
                for r in R: self.rd |= r
        elif op.startswith(("buffer_", "global_")):
            self.cls = "vmem"
            islds = "lds" in mods or "_lds_" in op
            if op in ("buffer_wbl2", "buffer_inv"): pass
            elif islds:
                for r in R: self.rd |= r
                self.rd.add("m0"); self.cls = "dma"
            elif "load" in op:
                self.wr = set(R[0])
                for r in R[1:]: self.rd |= r
            elif "atomic" in op:
                for r in R: self.rd |= r
                if "sc0" in mods:
                    self.wr = set(R[0])
            else:
                for r in R: self.rd |= r
                if op.endswith(("x3", "x4")):
                    self.sdata = set(R[0]) if op.startswith("buffer_") else set(R[1])
        elif op == "s_nop":
            self.cls = "nop"; self.nops = int(ops[0], 0) + 1
        elif op == "s_waitcnt":
            self.cls = "wait"
        elif op.startswith(("s_load", "s_buffer_load", "s_memtime", "s_memrealtime")):
            self.cls = "smem"; self.wr = set(R[0])
            for r in R[1:]: self.rd |= r
        elif op.startswith("s_"):
            self.cls = "salu"
            if op.startswith(("s_cmp", "s_cbranch", "s_branch", "s_barrier", "s_sleep", "s_setprio", "s_endpgm", "s_setpc", "s_bitcmp")):
                for r in R: self.rd |= r
            else:
                if R: self.wr = set(R[0])
                for r in R[1:]: self.rd |= r
                if "saveexec" in op: self.wr.add("exec"); self.rd.add("exec")
        else:
            raise ValueError("unknown instruction: " + text)

def need(p, c):
    n = 0
    isv = lambda s: {r for r in s if r[0] in "va" and r != "vcc"}
    iss = lambda s: {r for r in s if r[0] == "s" or r == "vcc"}
    if p.cls == "valu":
        wv = isv(p.wr); ws = iss(p.wr)
        if c.cls == "mfma" and wv & c.rd: n = max(n, 2)
        if c.cls == "valu":
            if c.op.startswith("v_permlane") and wv & c.rd: n = max(n, 2)
            if c.op.startswith(("v_readlane", "v_readfirstlane")) and wv & c.rd: n = max(n, 1)
            if "dpp" in c.text or "row_" in c.text or "quad_perm" in c.text:
                if wv & c.rd: n = max(n, 2)
            if p.op.startswith(TRANS) and not c.op.startswith(TRANS) and wv & (c.rd): n = max(n, 1)
            if ws & c.rd: n = max(n, 4 if c.op.startswith(("v_readlane", "v_writelane")) else 2)
        if p.op.startswith(TRANS) and c.cls in ("ds", "vmem", "mfma") and wv & c.rd: n = max(n, 2)
        if c.cls in ("vmem", "dma") and ws & c.rd: n = max(n, 5)
        if c.cls == "salu" and ws & c.rd: n = max(n, 1)
    if p.cls == "mfma":
        big = p.passes == 8
        if c.cls == "mfma":
            if p.D & (c.A | c.B): n = max(n, 12 if big else 8)
            if p.D & c.C and not (p.D == c.C and p.passes == c.passes): n = max(n, 10 if big else 6)
            if p.D & c.D and not (p.D == c.C and p.passes == c.passes): n = max(n, 12 if big else 8)
        elif c.cls in ("valu", "ds", "vmem", "dma"):
            if p.D & (c.rd | c.wr): n = max(n, 12 if big else 8)
            if c.cls == "valu" and p.C & c.wr: n = max(n, 7 if big else 3)
    if p.cls == "salu" and "m0" in p.wr and c.cls == "dma": n = max(n, 1)
    if p.sdata and p.sdata & c.wr: n = max(n, 2)
    return n

class Asm:
    def __init__(self):
        self.out = []
        self.hist = []
        self.lg = []
        self.vm = []
        self.check = True
        self.npad = 0
    def raw(self, s): self.out.append(s)
    def comment(self, s): self.out.append("; " + s)
    def label(self, name, reset=False):
        self.out.append(name + ":")
        if reset: self.forget()
    def forget(self):
        self.hist = []; self.lg = []; self.vm = []
    def e(self, text):
        for line in text.split("\n"):
            line = line.strip()
            if line: self._e(line)
    def _e(self, text):
        c = Ins(text)
        dist = 0; pad = 0
        for p in reversed(self.hist):
            nd = need(p, c)
            if nd > dist: pad = max(pad, nd - dist)
            dist += p.nops
            if dist >= 24: break
        while pad > 0:
            k = min(pad, 16)
            nop = Ins(f"s_nop {k-1}"); self.hist.append(nop); self.out.append("    " + nop.text); pad -= k; self.npad += k
        if c.cls == "wait":
            m = re.search(r"lgkmcnt\((\d+)\)", text)
            if m:
                n = int(m.group(1)); assert n < 15
                if any(o.cls == "smem" for o in self.lg):
                    if n == 0: self.lg = []
                else: self.lg = self.lg[len(self.lg) - n:] if n else []
            m = re.search(r"vmcnt\((\d+)\)", text)
            if m:
                n = int(m.group(1)); assert n < 63; self.vm = self.vm[max(0, len(self.vm) - n):] if n else []
        elif self.check:
            for o in self.lg + self.vm:
                if o.tag == "junk": continue
                if o.wr & (c.rd | c.wr):
                    raise RuntimeError(f"missing waitcnt: '{c.text}' touches dest of pending '{o.text}'")
            if c.cls in ("valu", "mfma"):
                pass
        if c.cls in ("ds", "smem"): self.lg.append(c)
        if c.cls in ("vmem", "dma") and c.op not in ("buffer_inv",): self.vm.append(c)
        if len(self.lg) > 15 and c.cls == "ds": pass
        self.hist.append(c)
        if len(self.hist) > 40: self.hist = self.hist[-40:]
        self.out.append("    " + text)
    def vm_count(self, tag):
        idx = [i for i, o in enumerate(self.vm) if o.tag == tag]
        return None if not idx else len(self.vm) - 1 - idx[-1]
    def lg_count(self, regs):
        idx = [i for i, o in enumerate(self.lg) if o.wr & regs]
        return None if not idx else len(self.lg) - 1 - idx[-1]
    def wait(self, vmtags=(), lgregs=None, lg0=False):
        parts = []
        n = [self.vm_count(t) for t in vmtags]; n = [x for x in n if x is not None]
        if n: parts.append(f"vmcnt({min(62, min(n))})")
        if lg0: parts.append("lgkmcnt(0)")
        elif lgregs is not None:
            k = self.lg_count(lgregs)
            if k is not None: parts.append(f"lgkmcnt({min(14, k)})")
        if parts: self.e("s_waitcnt " + " ".join(parts))
    def auto(self, text):
        c = Ins(text)
        self.wait(lgregs=c.rd | c.wr)
        self.e(text)
    def text(self): return "\n".join(self.out) + "\n"

def cost(text):
    op = text.split()[0]
    if op.startswith(TRANS): return 2.0
    if op.startswith("buffer_") : return 3.0
    if op.startswith("s_"): return 0.5
    return 1.0

def interleave(prim, fill, per=5.5, lead=0):
    out = []
    tot = sum(cost(f) for f in fill)
    n = len(prim)
    share = tot / n if n else 0
    acc = 0.0; j = 0
    for i, m in enumerate(prim):
        out.append(m)
        target = share * (i + 1)
        while j < len(fill) and acc + cost(fill[j]) * 0.5 <= target:
            out.append(fill[j]); acc += cost(fill[j]); j += 1
    out += fill[j:]
    return out


def spread(slots, items, lo, hi):
    tot = sum(sum(cost(y) for y in x.split("\n") if not y.startswith("LABEL")) for x in items)
    if not items: return
    acc = 0.0; n = hi - lo
    for x in items:
        c = sum(cost(y) for y in x.split("\n") if not y.startswith("LABEL"))
        k = lo + min(n - 1, int((acc + c * 0.5) / tot * n))
        slots[k].append(x); acc += c
```

```python
import sys, struct, math
sys.path.insert(0, "dev")
from asmlib import Asm, interleave, spread, regs_of

NAME = "concat_heads__mha_block_cached__gqa_block_cached__near_ridge"
def f2u(x): return struct.unpack("<I", struct.pack("<f", x))[0]
CSC = math.log2(math.e) / math.sqrt(128.0)
THR_LOG2 = 8.0
WS_BYTES = 289079296
WS_O = 0
WS_P = 16 << 20
WS_F = 48 << 20
WS_STAMP = 64 << 20
STB = 82

class Opt:
    nt = " nt"
    wnt = " nt"
    stamps = False
    sset = ['q0', 'k0', 't15', 'comb', 'g0', 'chk1', 'gend', 'pub2', 'end']
    clk = "s_memrealtime"
    rot = True
    krot = 3
    wot = 5
    regap = 2
    codetouch = True
    pbf16 = True
    kvsame = False
    unroll = False

def vr(a, n=1): return f"v{a}" if n == 1 else f"v[{a}:{a+n-1}]"
def ar(a, n=1): return f"a{a}" if n == 1 else f"a[{a}:{a+n-1}]"
def srd(a, d, lo, hi, nbytes):
    a.e(f"s_mov_b32 s{d}, {lo}\ns_mov_b32 s{d+1}, {hi}\ns_mov_b32 s{d+2}, {nbytes}\ns_mov_b32 s{d+3}, 0x20000")
def stamp(a, name, opt):
    if opt.stamps and name in opt.sset:
        i = 1 + opt.sset.index(name)
        a.e(f"{opt.clk} s[{STB+2*i}:{STB+1+2*i}]\ns_waitcnt lgkmcnt(0)")
PST = {}
def pcheck(x):
    w = x.replace(",", " ").split()
    if x.startswith("v_mfma_f32_32x32x16") and w[1].startswith("v[") and w[2].startswith("a["):
        for r in regs_of(w[1]): PST[r] = "raw"
    elif x.startswith("v_mfma_f32_32x32x16") and w[1].startswith("a["):
        assert all(PST.get(r) == "pk" for r in regs_of(w[3])), x
    elif x.startswith("v_exp_f32") and w[1] in PST:
        assert PST[w[1]] == "raw", x; PST[w[1]] = "p"
    elif x.startswith("v_cvt_pk") and w[2] in PST and PST.get(w[2]) == "p":
        assert PST[w[3]] == "p", x; PST[w[2]] = PST[w[3]] = "used"; PST[w[1]] = "pk"
    elif x.startswith(("v_max3", "v_max_f32")):
        for r in w[2:]: assert PST.get(r, "raw") == "raw", x
def emit(a, L):
    for y in L:
        for x in y.split("\n"):
            pcheck(x)
            if x.startswith("LABEL "): a.label(x[6:])
            elif x.startswith("WAITVM "): a.wait(vmtags=x.split()[1:])
            elif x.startswith(("v_mfma", "AUTO ")): a.auto(x[5:] if x.startswith("AUTO ") else x)
            else: a.e(x)

VOFFK, VOFFV, VOFFT = 2, 6, 7
VKA, VVA = 8, 16
LSUM, TMAX, VT = 20, 23, 84
NM = 32
S0, Q0 = 112, 160
KF, VF = 192, 224
def Sreg(qb, i): return S0 + 16 * qb + i
def Qreg(qb, ks): return Q0 + (qb * 8 + ks) * 4
def Oacc(db, qb): return (db * 3 + qb) * 16

def dma_unit(u, opt, advance=True):
    kind = "KV"[u % 2]; sreg = "s36" if kind == "K" else "s35"
    srdn = "s[8:11]" if kind == "K" else "s[12:15]"
    G = []
    for j in range(8):
        g = []
        if j == 0: g += [f"s_add_u32 m0, s37, {(u % 3) * 8192}", f"s_add_u32 s51, s34, {sreg}"]
        if j == 1 and advance and not opt.kvsame: g += [f"s_add_u32 {sreg}, {sreg}, 16384", f"s_and_b32 {sreg}, {sreg}, 0x3ffff"]
        if j == 4: g += [f"s_add_u32 m0, s37, {(u % 3) * 8192 + 4096}", "s_add_u32 s51, s51, 4096"]
        vo = VOFFK + j % 4 if kind == "K" else VOFFV
        g.append(f"buffer_load_dwordx4 v{vo}, {srdn}, s51 offen offset:{(j % 4)*1024}{opt.nt} lds ; @u{u}")
        G.append("\n".join(g))
    return G

def softmax(qb, uid, first):
    t = TMAX + qb; L = []
    L.append(f"v_max3_f32 v{t}, v{Sreg(qb,0)}, v{Sreg(qb,1)}, v{Sreg(qb,2)}")
    for i in range(3, 15, 2): L.append(f"v_max3_f32 v{t}, v{t}, v{Sreg(qb,i)}, v{Sreg(qb,i+1)}")
    L.append(f"v_max_f32 v{t}, v{t}, v{Sreg(qb,15)}")
    if first:
        L += [f"v_mov_b32 v{VT}, v{t}", f"v_permlane32_swap_b32 v{t}, v{VT}", f"v_max_f32 v{t}, v{t}, v{VT}"]
        L += [f"v_sub_f32 v{NM+16*qb+i}, 0, v{t}" for i in range(16)]
        L += [f"v_sub_f32 v{Sreg(qb,i)}, v{Sreg(qb,i)}, v{t}" for i in range(16)]
    else:
        L.append(f"v_cmp_lt_f32 vcc, s43, v{t}")
        L.append(f"s_cbranch_vccz L_sk{uid}_{qb}\ns_call_b64 s[40:41], L_rare{qb}\nLABEL L_sk{uid}_{qb}")
    for i in range(9):
        if i < 8: L += [f"v_exp_f32 v{Sreg(qb,2*i)}, v{Sreg(qb,2*i)}", f"v_exp_f32 v{Sreg(qb,2*i+1)}, v{Sreg(qb,2*i+1)}"]
        if i > 0:
            j = i - 1; pa, pb = Sreg(qb, 2*j), Sreg(qb, 2*j+1)
            L += [f"v_add_f32 v{LSUM+qb}, v{LSUM+qb}, v{pa}", f"v_add_f32 v{LSUM+qb}, v{LSUM+qb}, v{pb}",
                  f"v_cvt_pk_bf16_f32 v{Sreg(qb, 8*(j//4) + j%4)}, v{pa}, v{pb}"]
    return L

def kreads(t): return [f"ds_read_b128 {ar(KF+4*s,4)}, v{VKA+s} offset:{((2*t) % 3) * 8192}" for s in range(8)]
def vreads(t):
    return [f"ds_read_b64_tr_b16 {ar(VF + db*8 + s*4 + k*2, 2)}, v{VVA+db} offset:{((2*t+1) % 3)*8192 + 4096*s + 2048*k}"
            for s in range(2) for db in range(4) for k in range(2)]
def qk(qb, first):
    return [f"v_mfma_f32_32x32x16_bf16 {vr(Sreg(qb,0),16)}, {ar(KF+4*ks,4)}, {vr(Qreg(qb,ks),4)}, " +
            (vr(Sreg(qb,0),16) if ks else "0" if first else vr(NM+16*qb,16)) for ks in range(8)]
def pv(qb, first):
    return [f"v_mfma_f32_32x32x16_bf16 {ar(Oacc(db,qb),16)}, {ar(VF+db*8+s*4,4)}, {vr(Sreg(qb,8*s),4)}, " +
            ("0" if first and s == 0 else ar(Oacc(db,qb),16)) for s in range(2) for db in range(4)]

def tile_body(a, opt, t, carry, extra=()):
    first = t == 0
    M = qk(0, first) + (pv(2, t == 1) if t else [None]*8) + qk(1, first) + pv(0, first) + qk(2, first) + pv(1, first)
    sl = [[] for _ in range(48)]
    spread(sl, carry, 0, 9)
    if 2*t + 3 <= 31: spread(sl, dma_unit(2*t + 3, opt), 8, 28)
    spread(sl, [f"WAITVM u{2*t+1}"] + vreads(t), 16, 22)
    if 2*t + 4 <= 31: spread(sl, dma_unit(2*t + 4, opt), 28, 48)
    if t < 15: spread(sl, [f"WAITVM u{2*t+2}"] + kreads(t + 1), 40, 44)
    spread(sl, softmax(0, t, first), 9, 25)
    spread(sl, softmax(1, t, first), 25, 41)
    s2 = softmax(2, t, first)
    tmp = [[] for _ in range(16)]; spread(tmp, s2, 0, 16)
    for i in range(7): sl[41 + i] += tmp[i]
    for e in extra: spread(sl, *e)
    for i in range(48):
        if M[i]: emit(a, [M[i]])
        emit(a, sl[i])
    return [x for y in tmp[7:] for x in y]

def rare(a, qb):
    a.label(f"L_rare{qb}", reset=True)
    t = TMAX + qb; u = VT
    a.e(f"""s_nop 15
            v_mov_b32 v{u}, v{t}
            s_nop 1
            v_permlane32_swap_b32 v{t}, v{u}
            s_nop 1
            v_max3_f32 v{t}, v{t}, v{u}, 0
            v_sub_f32 v{u+2}, 0, v{t}
            v_exp_f32 v{u+2}, v{u+2}""")
    for i in range(16):
        a.e(f"v_sub_f32 v{NM+16*qb+i}, v{NM+16*qb+i}, v{t}\nv_sub_f32 v{Sreg(qb,i)}, v{Sreg(qb,i)}, v{t}")
    a.e(f"v_mul_f32 v{LSUM+qb}, v{LSUM+qb}, v{u+2}")
    for db in range(4):
        for r in range(0, 16, 2):
            o = Oacc(db, qb) + r
            a.e(f"""v_accvgpr_read_b32 v{u}, a{o}
                    v_accvgpr_read_b32 v{u+1}, a{o+1}
                    v_mul_f32 v{u}, v{u}, v{u+2}
                    v_mul_f32 v{u+1}, v{u+1}, v{u+2}
                    v_accvgpr_write_b32 a{o}, v{u}
                    v_accvgpr_write_b32 a{o+1}, v{u+1}""")
    a.e("s_nop 3\ns_setpc_b64 s[40:41]")

def kernel(a, name, opt):
    a.raw(".text"); a.raw(f".globl {name}"); a.raw(".p2align 8"); a.raw(f".type {name},@function")
    a.label(name, reset=True)
    a.e("""s_load_dwordx8 s[56:63], s[0:1], 0
           s_load_dwordx8 s[64:71], s[0:1], 40
           s_load_dwordx2 s[72:73], s[0:1], 96
           s_load_dwordx2 s[40:41], s[0:1], 32
           s_load_dwordx2 s[42:43], s[0:1], 72
           s_load_dwordx4 s[44:47], s[0:1], 80
           s_memrealtime s[48:49]
           s_cmp_ge_u32 s2, 256
           s_cbranch_scc1 L_done
           s_getpc_b64 s[50:51]""")
    a.label("L_pc0")
    if opt.codetouch:
        a.e("v_lshlrev_b32 v111, 7, v0\nv_min_u32 v111, L_end-L_pc0-4, v111\nglobal_load_dword v87, v111, s[50:51] nt ; @junk")
    if opt.stamps: a.e(f"{opt.clk} s[{STB}:{STB+1}]")
    VW, VXA, VXB, AW, AX, VD = 72, 73, 74, 75, 77, 87
    FA, FB, ACC = 32, 52, 112
    G, L15, H, L31, G1, R, C4 = 88, 89, 90, 91, 92, 81, 82
    a.e(f"""v_lshrrev_b32 v1, 6, v0
            s_and_b32 s3, s2, 7
            s_lshr_b32 s29, s3, 2
            s_and_b32 s30, s3, 3
            v_readfirstlane_b32 s28, v1
            s_lshr_b32 s3, s2, 3
            s_lshr_b32 s31, s3, 2
            s_and_b32 s32, s3, 3
            v_and_b32 v1, 63, v0
            v_lshrrev_b32 v{G}, 4, v1
            v_lshrrev_b32 v56, 3, v1
            v_and_b32 v57, 7, v1
            v_and_b32 v{G1}, 1, v{G}
            v_lshlrev_b32 v59, 2, v{G1}
            v_xor_b32 v59, v57, v59
            v_lshlrev_b32 v59, 4, v59
            v_lshl_add_u32 v{VW}, v56, 13, v59
            v_mul_u32_u24 v60, 1152, v56
            v_xor_b32 v61, v57, v{G}
            s_and_b32 s3, s28, 1
            s_lshl_b32 s3, s3, 2
            v_xor_b32 v61, s3, v61
            v_lshl_add_u32 v{VXA}, v61, 4, v60
            v_xor_b32 v61, 4, v61
            v_lshl_add_u32 v{VXB}, v61, 4, v60
            s_mul_i32 s37, s28, 24576
            s_lshl_b32 s33, s30, 3
            s_lshl_b32 s3, s32, 1
            s_add_u32 s33, s33, s3              ; h0
            s_add_u32 s74, s3, s31              ; b + 2p
            s_lshl_b32 s52, s33, 8
            s_lshl_b32 s3, s28, 7
            s_add_u32 s52, s52, s3
            s_mul_i32 s53, s31, 110592
            s_mul_i32 s3, s28, 27648
            s_add_u32 s53, s53, s3
            s_mul_i32 s54, s28, 3072
            s_add_u32 s54, s54, 98304
            s_mov_b32 s18, 884736
            s_mov_b32 s19, 0x20000
            s_mov_b32 s22, 4718592
            s_mov_b32 s23, 0x20000""")
    if opt.krot == 0: a.e("s_mov_b32 s74, 0")
    elif opt.krot == 1: a.e("s_cmp_ge_u32 s74, 9\ns_cselect_b32 s3, 9, 0\ns_sub_u32 s74, s74, s3")
    elif opt.krot == 3: a.e("s_and_b32 s74, s74, 1\ns_lshl_b32 s74, s74, 2")
    a.e("s_cmp_eq_u32 s29, 0\ns_waitcnt lgkmcnt(0)")
    for d, o in ((20, 6), (16, 0), (8, 2), (12, 4)):
        a.e(f"s_cselect_b32 s{d}, s{56+o}, s{64+o}\ns_cselect_b32 s{d+1}, s{57+o}, s{65+o}")
    a.e("""s_cselect_b32 s76, s40, s42
           s_cselect_b32 s77, s41, s43
           s_mov_b64 s[78:79], s[44:45]
           s_mov_b64 s[80:81], s[46:47]
           s_or_b32 s75, s48, 1
           s_mov_b64 s[68:69], s[50:51]""")
    def stage(c):
        buf = c % 3; Gs = []
        for j in range(8):
            g = ["s_lshl_b32 s4, s74, 19", "s_add_u32 s4, s4, s52"] if j == 0 else ["s_add_u32 s4, s4, 65536"]
            g += [f"s_add_u32 m0, s37, {buf*8192 + j*1024}", f"buffer_load_dwordx4 v{VW}, s[20:23], s4 offen{opt.wnt} lds ; @s{c}"]
            Gs.append("\n".join(g))
        for i in range(3):
            g = ["s_lshl_b32 s5, s74, 7", "s_add_u32 s5, s5, s53"] if i == 0 else [f"s_add_u32 s5, s5, {8*1152}"]
            g += [f"s_add_u32 m0, s54, {buf*12288 + i*1024}", f"buffer_load_dwordx4 v{VXA if i != 1 else VXB}, s[16:19], s5 offen{opt.wnt} lds ; @s{c}"]
            if i == 2: g += ["s_add_u32 s74, s74, 1", "s_cmp_eq_u32 s74, 9", "s_cselect_b32 s74, 0, s74"]
            Gs.append("\n".join(g))
        return Gs
    emit(a, stage(0))
    srd(a, 56, "s80", "s81", 256)
    a.e("""s_lshl_b32 s3, s2, 8
           v_add_u32 v106, s3, v0
           v_min_u32 v106, 1, v106
           v_lshlrev_b32 v106, 12, v106
           v_mov_b32 v107, s75
           buffer_store_dword v107, v106, s[56:59], 0 offen sc1""")
    emit(a, stage(1))
    for d in (8, 12): a.e(f"s_mov_b32 s{d+2}, {1 << 26}\ns_mov_b32 s{d+3}, 0x20000")
    srd(a, 24, "s72", "s73", WS_BYTES)
    srd(a, 60, "s76", "s77", 4718592)
    a.e(f"""v_and_b32 v{L15}, 15, v1
            v_lshrrev_b32 v{H}, 5, v1
            v_and_b32 v{L31}, 31, v1
            v_lshlrev_b32 v54, 8, v{G}
            v_xor_b32 v55, v{L15}, v{G}
            v_lshl_add_u32 v{VOFFK}, v55, 4, v54
            v_xor_b32 v{VOFFK+1}, 64, v{VOFFK}
            v_xor_b32 v{VOFFK+2}, 128, v{VOFFK}
            v_xor_b32 v{VOFFK+3}, 192, v{VOFFK}
            v_lshlrev_b32 v55, 2, v{G}
            v_xor_b32 v55, v{L15}, v55
            v_lshl_add_u32 v{VOFFV}, v55, 4, v54
            v_lshlrev_b32 v{VOFFT}, 7, v1
            s_lshr_b32 s7, s28, 1
            s_add_u32 s33, s33, s7              ; h
            s_lshl_b32 s34, s31, 5
            s_add_u32 s34, s34, s33
            s_lshl_b32 s34, s34, 18
            s_and_b32 s6, s28, 1
            s_lshl_b32 s3, s6, 13
            s_add_u32 s34, s34, s3""")
    if opt.rot:
        a.e("""s_lshl_b32 s3, s2, 2
               s_add_u32 s3, s3, s7
               s_mul_i32 s3, s3, 0x1e3779b1
               s_lshr_b32 s4, s3, 15
               s_xor_b32 s3, s3, s4
               s_mul_i32 s3, s3, 0x2c1b3c6d
               s_lshr_b32 s3, s3, 20
               s_and_b32 s3, s3, 15
               s_lshl_b32 s35, s3, 14""")
    else: a.e("s_mov_b32 s35, 0")
    a.e(f"""s_mov_b32 s36, s35
            v_xor_b32 v55, v{H}, v{L15}
            v_lshlrev_b32 v55, 4, v55
            v_lshl_add_u32 v55, v{L31}, 8, v55
            v_add_u32 v{VKA}, s37, v55""")
    for s in range(1, 8): a.e(f"v_xor_b32 v{VKA+s}, {32*s}, v{VKA}")
    a.e(f"""v_lshrrev_b32 v{R}, 2, v{L15}
            v_and_b32 v{C4}, 3, v1
            v_lshl_add_u32 v59, v{H}, 2, v{R}
            v_lshlrev_b32 v59, 8, v59
            v_lshl_add_u32 v59, v{R}, 6, v59
            v_lshl_add_u32 v59, v{G1}, 5, v59
            v_lshl_add_u32 v59, v{C4}, 3, v59
            s_lshl_b32 s4, s6, 7
            v_xor_b32 v59, s4, v59
            v_add_u32 v{VVA}, s37, v59""")
    for db in range(1, 4): a.e(f"v_xor_b32 v{VVA+db}, {64*db}, v{VVA}")
    a.e(f"""v_lshl_add_u32 v59, v{H}, 3, v{R}
            v_lshlrev_b32 v59, 7, v59
            v_lshrrev_b32 v60, 1, v{R}
            v_lshl_add_u32 v59, v60, 6, v59
            v_lshl_add_u32 v59, v{G1}, 5, v59
            v_lshl_add_u32 v59, v{C4}, 3, v59
            v_add_u32 v{AW}, s37, v59
            v_xor_b32 v{AW+1}, 64, v{AW}
            v_bfe_u32 v60, v1, 1, 3
            v_xor_b32 v60, v60, v{H}
            v_lshlrev_b32 v60, 4, v60
            v_lshl_add_u32 v60, v{L31}, 7, v60
            v_add_u32 v{AX}, 98304, v60""")
    for s in range(1, 4): a.e(f"v_xor_b32 v{AX+s}, {32*s}, v{AX}")
    a.e(f"s_mov_b32 s42, {f2u(CSC):#x}\ns_mov_b32 s43, {f2u(THR_LOG2):#x}")
    for qb in range(3): a.e(f"v_mov_b32 v{LSUM+qb}, 0")
    VO, VL16, AD, VOL = 93, 102, 103, 105
    a.e("""s_mul_i32 s3, s6, 576
           v_add_u32 v50, s3, v1
           s_cmp_eq_u32 s7, 1
           s_cselect_b64 vcc, -1, 0""")
    for i in range(9):
        a.e(f"""v_add_u32 v51, {64*i}, v50
                v_mul_u32_u24 v52, 58255, v51
                v_lshrrev_b32 v52, 20, v52
                v_mul_u32_u24 v53, 18, v52
                v_sub_u32 v53, v51, v53
                v_xor_b32 v54, 1, v53
                v_sub_u32 v54, 17, v54
                v_cndmask_b32 v53, v53, v54, vcc
                v_mul_u32_u24 v52, 1152, v52
                v_lshl_add_u32 v{VO+i}, v53, 4, v52""")
    a.e(f"""v_lshlrev_b32 v{VL16}, 4, v1
            v_lshlrev_b32 v50, 4, v{H}
            v_lshl_add_u32 v50, v{G1}, 2, v50
            v_add_u32 v50, v50, v{R}
            v_mul_u32_u24 v50, 288, v50
            v_lshl_add_u32 v50, v{C4}, 3, v50
            s_mul_i32 s3, s7, 18432
            v_add_u32 v{AD}, s3, v50
            v_add_u32 v{AD+1}, 90112, v{AD}
            v_lshlrev_b32 v{VOL}, 10, v{G1}
            v_lshl_add_u32 v{VOL}, v{H}, 8, v{VOL}
            v_lshl_add_u32 v{VOL}, v{L15}, 4, v{VOL}
            v_min_u32 v108, 1, v0
            v_lshlrev_b32 v108, 12, v108
            s_lshr_b32 s3, s2, 3
            s_lshl_b32 s3, s3, 2
            s_add_u32 s3, s3, s28
            s_mul_i32 s3, s3, 9216
            v_add_u32 v109, s3, v{VOFFT}
            v_add_u32 v110, 8192, v109
            v_cmp_gt_u32 vcc, 8, v1
            v_cndmask_b32 v110, -1, v110, vcc
            v_lshlrev_b32 v111, 7, v0
            v_add_u32 v111, L_tail-L_pc0, v111
            v_min_u32 v111, L_end-L_pc0-4, v111
            s_lshl_b32 s4, s30, 4
            s_add_u32 s4, s4, s7
            s_mul_i32 s4, s4, {64*1152}
            s_mul_i32 s3, s32, 288
            s_add_u32 s64, s4, s3
            s_mul_i32 s65, s28, 9216
            s_lshl_b32 s66, s32, 1
            s_mul_i32 s67, s30, 1179648""")
    wtouch = lambda pol: [f"buffer_load_dword v{VD}, v{r}, s[60:63], s67 offen{pol} ; @junk" for r in (109, 110)]
    BUF = (126976, 90112, 0, 36864)
    def wstage(st):
        Gs = []
        for i in range(9):
            g = [f"s_add_u32 s4, s66, {st}", "s_and_b32 s4, s4, 7", f"s_mul_i32 s4, s4, {128*1152}", "s_add_u32 s4, s4, s64"] if i == 0 else []
            g += [f"s_add_u32 m0, s65, {BUF[st % 4] + i*1024}", f"buffer_load_dwordx4 v{VO+i}, s[60:63], s4 offen lds ; @w{st}"]
            Gs.append("\n".join(g))
        return Gs
    def frag_reads(c, s, F):
        buf = c % 3
        L = [f"ds_read_b64_tr_b16 {vr(F + db*4 + k*2, 2)}, v{AW+db} offset:{buf*8192 + (16*s + 4*k) * 128}" for db in range(2) for k in range(2)]
        return L + [f"ds_read_b128 {vr(F + 8 + qb*4, 4)}, v{AX+s} offset:{buf*12288 + qb*4096}" for qb in range(3)]
    a.wait(vmtags=["s0"]); a.e("s_barrier")
    stamp(a, "q0", opt)
    emit(a, frag_reads(0, 0, FA))
    sl = [[] for _ in range(216 + 24)]
    spread(sl, stage(2), 0, 18)
    for c in range(9):
        for s in range(4):
            F, nF = (FA, FB) if s % 2 == 0 else (FB, FA)
            k0 = (c*4 + s) * 6
            if s == 3:
                a.wait(vmtags=[f"s{c+1}"], lg0=True)
                if c < 8: a.e("s_barrier")
                stamp(a, f"c{c}", opt)
                f = []
                if c == 0 and opt.codetouch: f += [f"global_load_dword v{VD}, v111, s[68:69] ; @junk"]
                if c == opt.wot + opt.regap and opt.wot >= 0: f += wtouch("")
                f += stage(c + 3) if c + 3 <= 8 else dma_unit(c - 6, opt) if c < 8 else []
                if c == opt.wot: f += wtouch(" nt")
                spread(sl, f, k0, k0 + 24)
                if c < 8: emit(a, frag_reads(c + 1, 0, nF))
            else:
                emit(a, frag_reads(c, s + 1, nF))
            i = 0
            for db in range(2):
                for qb in range(3):
                    d = vr(ACC + (db*3 + qb)*16, 16)
                    emit(a, [f"v_mfma_f32_32x32x16_bf16 {d}, {vr(F+db*4,4)}, {vr(F+8+qb*4,4)}, " + ("0" if (c == 0 and s == 0) else d)])
                    emit(a, sl[k0 + i]); i += 1
    assert not any(sl[216:])
    a.e("s_barrier")
    a.e(f"""s_lshl_b32 s3, s6, 3
            v_xor_b32 v55, s3, v{L15}
            v_lshlrev_b32 v55, 4, v55
            v_lshl_add_u32 v55, v{L31}, 8, v55
            v_lshl_add_u32 v55, v{H}, 3, v55
            s_mul_i32 s3, s7, 24576
            s_add_u32 s3, s3, 98304
            v_add_u32 v55, s3, v55
            v_mov_b32 v64, s42""")
    for db in range(2):
        for i in range(4):
            a.e(f"v_xor_b32 v56, {(4*db + i)*16}, v55")
            for qb in range(3):
                r = ACC + (db*3 + qb)*16 + 4*i; tq = 58 + 2 * qb
                a.e(f"""v_pk_mul_f32 v[{r}:{r+1}], v[{r}:{r+1}], v[64:65] op_sel_hi:[1,0]
                        v_pk_mul_f32 v[{r+2}:{r+3}], v[{r+2}:{r+3}], v[64:65] op_sel_hi:[1,0]
                        v_cvt_pk_bf16_f32 v{tq}, v{r}, v{r+1}
                        v_cvt_pk_bf16_f32 v{tq+1}, v{r+2}, v{r+3}
                        ds_write_b64 v56, v[{tq}:{tq+1}] offset:{qb*8192}""")
    a.e("s_sub_u32 s3, s3, s37")
    for s in range(8): a.e(f"v_add_u32 v{32+s}, s3, v{VKA+s}")
    a.e("s_waitcnt lgkmcnt(0)\ns_barrier")
    for qb in range(3):
        for s in range(8): a.e(f"ds_read_b128 {vr(Qreg(qb,s),4)}, v{32+s} offset:{qb*8192}")
    stamp(a, "qx", opt)
    emit(a, dma_unit(2, opt))
    a.wait(vmtags=["u0"], lg0=True)
    emit(a, kreads(0))
    stamp(a, "k0", opt)
    carry = tile_body(a, opt, 0, [])
    stamp(a, "t0", opt)
    if opt.unroll:
        for t in range(1, 13): carry = tile_body(a, opt, t, carry)
    else:
        carry = tile_body(a, opt, 1, carry)
        a.e("s_mov_b32 s46, 4")
        a.raw(".p2align 6"); a.label("L_tile")
        for t in (2, 3, 4): carry = tile_body(a, opt, t, carry)
        a.e("s_sub_u32 s46, s46, 1\ns_cmp_lg_u32 s46, 0\ns_cbranch_scc1 L_tile")
        for o in a.vm:
            if o.tag and o.tag[0] == "u": o.tag = f"u{int(o.tag[1:]) + 18}"
    if opt.unroll: carry = tile_body(a, opt, 13, carry)
    a.label("L_tail")
    carry = tile_body(a, opt, 14, carry, extra=[(wstage(0), 28, 48)])
    def send(qb):
        return [f"ds_write_b128 v28, {ar(Oacc(2+i,qb) + 4*g, 4)} offset:{((i*3 + qb)*4 + g)*1024}" for i in range(2) for g in range(4)]
    pre = ["buffer_load_dword v106, v108, s[56:59], 0 offen sc1",
           f"v_add_u32 v28, s37, v{VL16}", "s_xor_b32 s3, s28, 1\ns_mul_i32 s38, s3, 24576", f"v_add_u32 v29, s38, v{VL16}",
           "s_lshl_b32 s3, s28, 11\ns_add_u32 s3, s3, 98304", "v_lshlrev_b32 v30, 3, v1", "v_add_u32 v30, s3, v30", "v_xor_b32 v31, 2048, v30"]
    carry = tile_body(a, opt, 15, carry, extra=[(pre, 8, 16), (send(0), 34, 48)])
    sl = [[] for _ in range(8)]
    emit(a, carry[:len(carry)//2])
    spread(sl, carry[len(carry)//2:], 0, 3)
    st = []
    for qb in range(3): st += [f"v_mov_b32 v{3+2*qb}, v{LSUM+qb}", f"v_mov_b32 v{2+2*qb}, v{NM+16*qb}"]
    for qb in range(3): st += [f"v_permlane32_swap_b32 v{LSUM+qb}, v{3+2*qb}"]
    for qb in range(3): st += [f"v_add_f32 v{3+2*qb}, v{LSUM+qb}, v{3+2*qb}", f"ds_write_b64 v30, v[{2+2*qb}:{3+2*qb}] offset:{qb*512}"]
    spread(sl, st + send(1), 3, 8)
    for m, f in zip(pv(2, False), sl): emit(a, [m] + f)
    stamp(a, "t15", opt)
    a.e("s_cmp_lg_u32 s28, 0\ns_cbranch_scc1 L_tag_ok\ns_mov_b32 s4, 0x100000")
    keepvm = list(a.vm)
    a.label("L_tag")
    a.e("""s_waitcnt vmcnt(0)
           v_readfirstlane_b32 s75, v106
           s_cmp_lg_u32 s75, 0
           s_cbranch_scc1 L_tag_put
           buffer_load_dword v106, v108, s[56:59], 0 offen sc1 ; @junk
           s_sub_u32 s4, s4, 1
           s_cmp_lg_u32 s4, 0
           s_cbranch_scc1 L_tag""")
    a.label("L_tag_put")
    a.e("v_mov_b32 v107, s75\nds_write_b32 v30, v107 offset:1536")
    a.label("L_tag_ok"); a.vm = keepvm
    emit(a, send(2))
    for r in range(96): a.e(f"v_accvgpr_read_b32 v{160 + r}, a{r}")
    a.e(f"""s_mov_b32 s5, s7                    ; kh
            s_lshl_b32 s39, s29, 3
            s_add_u32 s39, s39, s31             ; side*8 + b
            s_lshl_b32 s3, s39, 5
            s_add_u32 s3, s3, s33
            s_mul_i32 s52, s3, 24576
            s_mul_i32 s3, s6, 12288
            s_add_u32 s52, s52, s3
            v_add_u32 v27, s38, v{VOL}
            v_mov_b32 v26, 98304""")
    stamp(a, "c_pre", opt)
    a.e("s_waitcnt lgkmcnt(0)\ns_barrier")
    stamp(a, "c_bar", opt)
    for qb in range(3): a.e(f"ds_read_b64 v[{8+2*qb}:{9+2*qb}], v31 offset:{qb*512}")
    a.e("ds_read_b32 v14, v26 offset:1536")
    RC = (32, 48, 64, 112, 128, 144)
    def recv(blk):
        for g in range(4): a.e(f"ds_read_b128 {vr(RC[blk]+4*g,4)}, v29 offset:{(blk*4 + g)*1024}")
    recv(0); recv(1)
    a.auto("v_readfirstlane_b32 s75, v14")
    SC = 16
    for qb in range(3):
        pn, pl, on, ol = 8 + 2*qb, 9 + 2*qb, 2 + 2*qb, 3 + 2*qb
        a.e(f"""v_min_f32 v22, v{on}, v{pn}
                v_sub_f32 v23, v22, v{on}
                v_sub_f32 v24, v22, v{pn}
                v_exp_f32 v23, v23
                v_exp_f32 v24, v24
                v_mul_f32 v{ol}, v{ol}, v23
                v_fmac_f32 v{ol}, v{pl}, v24
                v_rcp_f32 v{ol}, v{ol}
                v_mul_f32 v{SC+2*qb}, v23, v{ol}
                v_mul_f32 v{SC+2*qb+1}, v24, v{ol}""")
    recv(2); recv(3); recv(4); recv(5)
    for blk in range(6):
        i, qb = divmod(blk, 3)
        K = 160 + blk*16; Rr = RC[blk]
        a.wait(lgregs=regs_of(vr(Rr, 16)))
        for r in range(0, 16, 2):
            a.e(f"v_pk_mul_f32 v[{Rr+r}:{Rr+r+1}], v[{Rr+r}:{Rr+r+1}], v[{SC+2*qb}:{SC+2*qb+1}] op_sel:[0,1] op_sel_hi:[1,1]")
        for r in range(0, 16, 2):
            a.e(f"v_pk_fma_f32 v[{K+r}:{K+r+1}], v[{K+r}:{K+r+1}], v[{SC+2*qb}:{SC+2*qb+1}], v[{Rr+r}:{Rr+r+1}] op_sel_hi:[1,0,1]")
        for j in range(8):
            a.e(f"v_cvt_pk_bf16_f32 v{K+8*(j//4)+j%4}, v{K+2*j}, v{K+2*j+1}")
        idx = i*6 + 2*qb
        a.e(f"s_add_u32 s47, s52, {WS_O + idx*1024}")
        for s in range(2):
            a.e(f"buffer_store_dwordx4 {vr(K+8*s,4)}, v{VOL}, s[24:27], s47 offen offset:{512*s} sc1")
            a.e(f"ds_write_b128 v27, {vr(K+8*s,4)} offset:{idx*1024 + 512*s}")
    stamp(a, "comb", opt)
    def publish(tag, foff):
        a.e(f"""s_waitcnt vmcnt(0) lgkmcnt(0)
                s_barrier
                s_cmp_lg_u32 s28, 0
                s_cbranch_scc1 L_pub{tag}
                s_lshl_b32 s3, s2, 7
                s_add_u32 s3, s3, {WS_F + foff}
                v_mov_b32 v15, 0
                v_mov_b32 v14, s75
                buffer_store_dword v14, v15, s[24:27], s3 offen sc1""")
        a.label(f"L_pub{tag}"); a.vm = []
    def ask(foff, mask, shift):
        a.e(f"""s_andn2_b32 s7, s2, {mask}
                s_lshl_b32 s7, s7, 7
                s_add_u32 s7, s7, {WS_F + foff}
                v_and_b32 v13, 3, v1
                v_lshlrev_b32 v13, {7 + shift}, v13
                buffer_load_dword v12, v13, s[24:27], s7 offen sc1""")
    def check(tag):
        a.e("s_mov_b32 s4, 0x100000")
        a.label(f"L_poll{tag}")
        a.e(f"""s_waitcnt vmcnt(0)
                v_cmp_ne_u32 vcc, s75, v12
                s_cbranch_vccz L_got{tag}
                s_sleep 1
                buffer_load_dword v12, v13, s[24:27], s7 offen sc1
                s_sub_u32 s4, s4, 1
                s_cmp_lg_u32 s4, 0
                s_cbranch_scc1 L_poll{tag}""")
        a.label(f"L_got{tag}")
        a.e("s_waitcnt vmcnt(0)")
    publish(1, 0)
    ACC, WF, OF = 112, 16, 0
    a.e(f"""s_xor_b32 s3, s5, 1
            s_mul_i32 s3, s3, 24576
            s_mul_i32 s4, s6, 3072
            s_add_u32 s3, s3, s4
            v_add_u32 v2, s3, v{VL16}""")
    for hp in range(2):
        for kl in range(2):
            for j in range(3):
                a.e(f"ds_read_b128 {ar(OF + ((2*hp+kl)*3+j)*4, 4)}, v2 offset:{hp*49152 + (kl*6 + j)*1024}")
    def wreads(st, kl, F):
        b = BUF[st % 4]
        reg, boff = (AD, b) if b < 65536 else (AD+1, b - 90112)
        return [f"ds_read_b64_tr_b16 {vr(F + nb*4 + 2*k, 2)}, v{reg} offset:{boff + (32*kl + 8*k) * 288 + 32*nb}" for nb in range(9) for k in range(2)]
    emit(a, wreads(0, 0, WF))
    a.e(f"""s_lshl_b32 s3, s39, 2
            s_add_u32 s3, s3, s30
            s_mul_i32 s37, s3, {8*24576}
            s_mul_i32 s3, s5, 12288
            s_add_u32 s37, s37, s3
            s_add_u32 s37, s37, s4""")
    stamp(a, "g0", opt)
    def oload(st):
        Gs = []
        for kl in range(2):
            for j in range(3):
                g = [f"s_add_u32 s47, s66, {st}", "s_and_b32 s47, s47, 7", "s_mul_i32 s47, s47, 24576", "s_add_u32 s47, s47, s37"] if kl + j == 0 else ["s_add_u32 s47, s47, 6144"] if j == 0 else []
                Gs.append("\n".join(g + [f"buffer_load_dwordx4 {ar(OF + ((2*st+kl)*3+j)*4, 4)}, v{VL16}, s[24:27], s47 offen offset:{j*1024} sc1 ; @o{st}"]))
        return Gs
    def gm(st, kl):
        ks = 2*st + kl; F = WF + 36*kl
        return [f"v_mfma_f32_16x16x32_bf16 {vr(ACC + (nb*3+j)*4, 4)}, {vr(F+nb*4,4)}, {ar(OF+(ks*3+j)*4,4)}, " +
                ("0" if ks == 0 else vr(ACC + (nb*3+j)*4, 4)) for nb in range(9) for j in range(3)]
    def half(st, kl, reads, jobs):
        sl = [[] for _ in range(27)]
        spread(sl, reads, 0, 20); spread(sl, jobs, 0, 27)
        a.e("s_waitcnt lgkmcnt(0)")
        for m, f in zip(gm(st, kl), sl): emit(a, [m] + f)
    half(0, 0, wreads(0, 1, WF + 36), wstage(1))
    stamp(a, "g0h", opt)
    a.e("s_waitcnt vmcnt(0) lgkmcnt(0)\ns_barrier")
    w234 = wstage(2) + wstage(3) + wstage(4)
    half(0, 1, wreads(1, 0, WF), w234[:13])
    half(1, 0, wreads(1, 1, WF + 36), w234[13:])
    ask(0, 24, 3)
    stamp(a, "g1h", opt)
    check(1)
    stamp(a, "chk1", opt)
    a.e("s_waitcnt lgkmcnt(0)\ns_barrier")
    emit(a, oload(2))
    half(1, 1, wreads(2, 0, WF), oload(3))
    plan = {(2, 0): ["o4"], (2, 1): ["w5"], (3, 0): ["o5"], (3, 1): ["w6"], (4, 0): ["o6"], (4, 1): ["o7"], (5, 0): ["w7"]}
    jobs = lambda st, kl: [x for j in plan.get((st, kl), []) for x in (oload(int(j[1])) if j[0] == "o" else wstage(int(j[1])))]
    for st in range(2, 8):
        stamp(a, f"g{st}", opt)
        a.wait(vmtags=[f"o{st}"])
        half(st, 0, wreads(st, 1, WF + 36), jobs(st, 0))
        if st < 7:
            a.wait(vmtags=[f"w{st+1}"], lg0=True); a.e("s_barrier")
            half(st, 1, wreads(st + 1, 0, WF), jobs(st, 1))
    a.e(f"""s_lshl_b32 s3, s28, 14
            v_add_u32 v13, s3, v{VL16}
            v_xor_b32 v14, 32768, v13
            s_waitcnt lgkmcnt(0)
            s_barrier""")
    ms = gm(7, 1); ms = [ms[nb*3 + j] for nb in (8, 7, 6, 5, 4, 0, 1, 2, 3) for j in range(3)]
    snd = [f"ds_write_b128 v13, {vr(ACC+(nb*3+j)*4,4)} offset:{((8-nb)*3+j)*1024}" for nb in range(8, 3, -1) for j in range(3)]
    emit(a, ms[:9])
    for k in range(15): emit(a, [ms[9 + k], snd[k]])
    emit(a, ms[24:])
    stamp(a, "gend", opt)
    PT = 512 if opt.pbf16 else 1024
    a.e(f"""s_lshl_b32 s52, s39, 2
            s_add_u32 s52, s52, s32
            s_lshl_b32 s53, s52, 2
            s_add_u32 s53, s53, s30
            s_mul_i32 s53, s53, {54*PT}
            s_mul_i32 s3, s6, {3*PT}
            s_add_u32 s53, s53, s3
            s_mul_i32 s3, s5, {48*PT}
            s_add_u32 s53, s53, s3
            s_add_u32 s47, s53, {WS_P}
            s_mov_b32 s3, {6*PT}
            s_cmp_eq_u32 s5, 1
            s_cselect_b32 s53, {-6*PT}, s3
            v_lshlrev_b32 v9, {3 if opt.pbf16 else 4}, v1
            s_waitcnt lgkmcnt(0)
            s_barrier""")
    for k in range(15): a.e(f"ds_read_b128 {vr(WF+4*k,4)}, v14 offset:{k*1024}")
    for nb in range(5):
        for j in range(3):
            r = ACC + (nb*3+j)*4; q = WF + (nb*3+j)*4
            a.wait(lgregs=regs_of(vr(q, 4)))
            a.e(f"v_pk_add_f32 v[{r}:{r+1}], v[{r}:{r+1}], v[{q}:{q+1}]\nv_pk_add_f32 v[{r+2}:{r+3}], v[{r+2}:{r+3}], v[{q+2}:{q+3}]")
            if opt.pbf16:
                a.e(f"v_cvt_pk_bf16_f32 v{r}, v{r}, v{r+1}\nv_cvt_pk_bf16_f32 v{r+1}, v{r+2}, v{r+3}")
                a.e(f"buffer_store_dwordx2 {vr(r,2)}, v9, s[24:27], s47 offen offset:{j*PT} sc1")
            else:
                a.e(f"buffer_store_dwordx4 {vr(r,4)}, v9, s[24:27], s47 offen offset:{j*PT} sc1")
        if nb < 4: a.e("s_add_u32 s47, s47, s53")
    publish(2, 32768)
    ask(32768, 3, 0)
    a.e(f"""v_and_b32 v10, 15, v1
            v_mul_u32_u24 v10, 2304, v10
            v_lshrrev_b32 v11, 4, v1
            v_lshl_add_u32 v10, v11, 3, v10
            s_mul_i32 s52, s52, {4*54*PT}
            s_add_u32 s52, s52, {WS_P}
            s_mul_i32 s53, s31, {96*2304}
            s_mul_i32 s3, s29, 1152
            s_add_u32 s53, s53, s3
            s_mul_i32 s3, s32, 288
            s_add_u32 s53, s53, s3
            s_lshl_b32 s54, s28, 2
            s_add_u32 s54, s54, s30""")
    srd(a, 8, "s78", "s79", 1769472)
    stamp(a, "pub2", opt)
    check(2)
    stamp(a, "chk2", opt)
    for i in range(4):
        a.e(f"s_add_u32 s{68+i}, s54, {16*i}")
        if i == 3: a.e("s_cmp_ge_u32 s71, 54\ns_cbranch_scc1 L_rd3")
        a.e(f"s_mul_i32 s47, s{68+i}, {PT}\ns_add_u32 s47, s47, s52")
        for o in range(4):
            if opt.pbf16: a.e(f"buffer_load_dwordx2 {vr(16+16*i+4*o+2,2)}, v9, s[24:27], s47 offen sc1")
            else: a.e(f"buffer_load_dwordx4 {vr(16+16*i+4*o,4)}, v9, s[24:27], s47 offen sc1")
            if o < 3: a.e(f"s_add_u32 s47, s47, {54*PT}")
    def fin(i):
        r = 16 + 16*i
        if opt.pbf16:
            for o in range(4):
                b = r + 4*o
                a.e(f"""v_lshlrev_b32 v{b}, 16, v{b+2}
                        v_and_b32 v{b+1}, 0xffff0000, v{b+2}
                        v_lshlrev_b32 v{b+2}, 16, v{b+3}
                        v_and_b32 v{b+3}, 0xffff0000, v{b+3}""")
        for k in range(4): a.e(f"v_add_f32 v{r+k}, v{r+k}, v{r+4+k}\nv_add_f32 v{r+8+k}, v{r+8+k}, v{r+12+k}")
        for k in range(4): a.e(f"v_add_f32 v{r+k}, v{r+k}, v{r+8+k}")
        a.e(f"""v_cvt_pk_bf16_f32 v{r}, v{r}, v{r+1}
                v_cvt_pk_bf16_f32 v{r+1}, v{r+2}, v{r+3}
                s_mul_i32 s3, s{68+i}, 43
                s_lshr_b32 s3, s3, 8
                s_mul_i32 s4, s3, 6
                s_sub_u32 s4, s{68+i}, s4
                s_mul_i32 s4, s4, {16*2304}
                s_lshl_b32 s3, s3, 5
                s_add_u32 s47, s53, s3
                s_add_u32 s47, s47, s4
                buffer_store_dwordx2 v[{r}:{r+1}], v10, s[8:11], s47 offen""")
    a.e("s_waitcnt vmcnt(0)")
    fin(3)
    a.label("L_rd3")
    a.e("s_waitcnt vmcnt(0)")
    for i in range(3): fin(i)
    stamp(a, "end", opt)
    if opt.stamps:
        a.e(f"s_lshl_b32 s3, s2, 2\ns_add_u32 s3, s3, s28\ns_lshl_b32 s3, s3, 7\ns_add_u32 s3, s3, {WS_STAMP}\nv_mov_b32 v0, 0")
        for i in range(1 + len(opt.sset)):
            a.e(f"v_mov_b32 v2, s{STB+2*i}\nv_mov_b32 v3, s{STB+1+2*i}\nbuffer_store_dwordx2 v[2:3], v0, s[24:27], s3 offen offset:{8*i}\ns_waitcnt vmcnt(0)")
    a.label("L_done")
    a.e("s_endpgm")
    for qb in range(3): rare(a, qb)
    a.label("L_end")

def build(opt):
    a = Asm()
    a.raw("; @launch grid=(256,1,1) block=(256,1,1) lds=163840")
    a.raw('.amdgcn_target "amdgcn-amd-amdhsa--gfx950"')
    kernel(a, NAME + "_kernel", opt)
    a.raw('.section .rodata,"a"\n.p2align 6')
    a.raw("\n".join([f".amdhsa_kernel {NAME}_kernel", "  .amdhsa_next_free_vgpr 512", "  .amdhsa_next_free_sgpr 102",
        "  .amdhsa_accum_offset 256", "  .amdhsa_group_segment_fixed_size 0", "  .amdhsa_kernarg_size 104",
        "  .amdhsa_user_sgpr_count 2", "  .amdhsa_user_sgpr_kernarg_segment_ptr 1",
        "  .amdhsa_system_sgpr_workgroup_id_x 1", ".end_amdhsa_kernel"]))
    return a.text(), a

if __name__ == "__main__":
    opt = Opt()
    out = sys.argv[1] if len(sys.argv) > 1 else "k.s"
    for kv in sys.argv[2:]:
        k, v = kv.split("=", 1); assert hasattr(opt, k), k
        setattr(opt, k, eval(v))
    t, a = build(opt)
    open(out, "w").write(t)
    print(out, "lines", t.count("\n"), "pad", a.npad)
```

```python
import sys, struct, math
sys.path.insert(0, "dev")
from asmlib import Asm, interleave, spread, regs_of

NAME = "concat_heads__mha_block_cached__gqa_block_cached__near_ridge"
def f2u(x): return struct.unpack("<I", struct.pack("<f", x))[0]
CSC = math.log2(math.e) / math.sqrt(128.0)
THR_LOG2 = 8.0
WS_BYTES = 289079296
WS_O = 0
WS_P = 16 << 20
WS_F = 48 << 20
WS_STAMP = 64 << 20
STB = 82

class Opt:
    pol = ("nnn", "ppn")
    side = 0
    @property
    def wnt(self): return " nt" if self.pol[self.side][2] == "n" else ""
    def kv(self, kind): return " nt" if self.pol[self.side]["KV".index(kind)] == "n" else ""
    stamps = False
    sset = ['q0', 'k0', 't15', 'comb', 'g0', 'chk1', 'gend', 'pub2', 'end']
    clk = "s_memrealtime"
    rot = True
    krot = 3
    wot = 5
    regap = 2
    codetouch = True
    pbf16 = True
    kvsame = False
    unroll = False

def vr(a, n=1): return f"v{a}" if n == 1 else f"v[{a}:{a+n-1}]"
def ar(a, n=1): return f"a{a}" if n == 1 else f"a[{a}:{a+n-1}]"
def srd(a, d, lo, hi, nbytes):
    a.e(f"s_mov_b32 s{d}, {lo}\ns_mov_b32 s{d+1}, {hi}\ns_mov_b32 s{d+2}, {nbytes}\ns_mov_b32 s{d+3}, 0x20000")
def stamp(a, name, opt):
    if opt.stamps and name in opt.sset:
        i = 1 + opt.sset.index(name)
        a.e(f"{opt.clk} s[{STB+2*i}:{STB+1+2*i}]\ns_waitcnt lgkmcnt(0)")
PST = {}
def pcheck(x):
    w = x.replace(",", " ").split()
    if x.startswith("v_mfma_f32_32x32x16") and w[1].startswith("v[") and w[2].startswith("a["):
        for r in regs_of(w[1]): PST[r] = "raw"
    elif x.startswith("v_mfma_f32_32x32x16") and w[1].startswith("a["):
        assert all(PST.get(r) == "pk" for r in regs_of(w[3])), x
    elif x.startswith("v_exp_f32") and w[1] in PST:
        assert PST[w[1]] == "raw", x; PST[w[1]] = "p"
    elif x.startswith("v_cvt_pk") and w[2] in PST and PST.get(w[2]) == "p":
        assert PST[w[3]] == "p", x; PST[w[2]] = PST[w[3]] = "used"; PST[w[1]] = "pk"
    elif x.startswith(("v_max3", "v_max_f32")):
        for r in w[2:]: assert PST.get(r, "raw") == "raw", x
def emit(a, L):
    for y in L:
        for x in y.split("\n"):
            pcheck(x)
            if x.startswith("LABEL "): a.label(x[6:])
            elif x.startswith("WAITVM "): a.wait(vmtags=x.split()[1:])
            elif x.startswith(("v_mfma", "AUTO ")): a.auto(x[5:] if x.startswith("AUTO ") else x)
            else: a.e(x)

VOFFK, VOFFV, VOFFT = 2, 6, 7
VKA, VVA = 8, 16
LSUM, TMAX, VT = 20, 23, 84
NM = 32
S0, Q0 = 112, 160
KF, VF = 192, 224
def Sreg(qb, i): return S0 + 16 * qb + i
def Qreg(qb, ks): return Q0 + (qb * 8 + ks) * 4
def Oacc(db, qb): return (db * 3 + qb) * 16

def dma_unit(u, opt, advance=True):
    kind = "KV"[u % 2]; sreg = "s36" if kind == "K" else "s35"
    srdn = "s[8:11]" if kind == "K" else "s[12:15]"
    G = []
    for j in range(8):
        g = []
        if j == 0: g += [f"s_add_u32 m0, s37, {(u % 3) * 8192}", f"s_add_u32 s51, s34, {sreg}"]
        if j == 1 and advance and not opt.kvsame: g += [f"s_add_u32 {sreg}, {sreg}, 16384", f"s_and_b32 {sreg}, {sreg}, 0x3ffff"]
        if j == 4: g += [f"s_add_u32 m0, s37, {(u % 3) * 8192 + 4096}", "s_add_u32 s51, s51, 4096"]
        vo = VOFFK + j % 4 if kind == "K" else VOFFV
        g.append(f"buffer_load_dwordx4 v{vo}, {srdn}, s51 offen offset:{(j % 4)*1024}{opt.kv(kind)} lds ; @u{u}")
        G.append("\n".join(g))
    return G

def softmax(qb, uid, first):
    t = TMAX + qb; L = []
    L.append(f"v_max3_f32 v{t}, v{Sreg(qb,0)}, v{Sreg(qb,1)}, v{Sreg(qb,2)}")
    for i in range(3, 15, 2): L.append(f"v_max3_f32 v{t}, v{t}, v{Sreg(qb,i)}, v{Sreg(qb,i+1)}")
    L.append(f"v_max_f32 v{t}, v{t}, v{Sreg(qb,15)}")
    if first:
        L += [f"v_mov_b32 v{VT}, v{t}", f"v_permlane32_swap_b32 v{t}, v{VT}", f"v_max_f32 v{t}, v{t}, v{VT}"]
        L += [f"v_sub_f32 v{NM+16*qb+i}, 0, v{t}" for i in range(16)]
        L += [f"v_sub_f32 v{Sreg(qb,i)}, v{Sreg(qb,i)}, v{t}" for i in range(16)]
    else:
        L.append(f"v_cmp_lt_f32 vcc, s43, v{t}")
        L.append(f"s_cbranch_vccz L_sk{uid}_{qb}\ns_call_b64 s[40:41], L_rare{qb}\nLABEL L_sk{uid}_{qb}")
    for i in range(9):
        if i < 8: L += [f"v_exp_f32 v{Sreg(qb,2*i)}, v{Sreg(qb,2*i)}", f"v_exp_f32 v{Sreg(qb,2*i+1)}, v{Sreg(qb,2*i+1)}"]
        if i > 0:
            j = i - 1; pa, pb = Sreg(qb, 2*j), Sreg(qb, 2*j+1)
            L += [f"v_add_f32 v{LSUM+qb}, v{LSUM+qb}, v{pa}", f"v_add_f32 v{LSUM+qb}, v{LSUM+qb}, v{pb}",
                  f"v_cvt_pk_bf16_f32 v{Sreg(qb, 8*(j//4) + j%4)}, v{pa}, v{pb}"]
    return L

def kreads(t): return [f"ds_read_b128 {ar(KF+4*s,4)}, v{VKA+s} offset:{((2*t) % 3) * 8192}" for s in range(8)]
def vreads(t):
    return [f"ds_read_b64_tr_b16 {ar(VF + db*8 + s*4 + k*2, 2)}, v{VVA+db} offset:{((2*t+1) % 3)*8192 + 4096*s + 2048*k}"
            for s in range(2) for db in range(4) for k in range(2)]
def qk(qb, first):
    return [f"v_mfma_f32_32x32x16_bf16 {vr(Sreg(qb,0),16)}, {ar(KF+4*ks,4)}, {vr(Qreg(qb,ks),4)}, " +
            (vr(Sreg(qb,0),16) if ks else "0" if first else vr(NM+16*qb,16)) for ks in range(8)]
def pv(qb, first):
    return [f"v_mfma_f32_32x32x16_bf16 {ar(Oacc(db,qb),16)}, {ar(VF+db*8+s*4,4)}, {vr(Sreg(qb,8*s),4)}, " +
            ("0" if first and s == 0 else ar(Oacc(db,qb),16)) for s in range(2) for db in range(4)]

def tile_body(a, opt, t, carry, extra=()):
    first = t == 0
    M = qk(0, first) + (pv(2, t == 1) if t else [None]*8) + qk(1, first) + pv(0, first) + qk(2, first) + pv(1, first)
    sl = [[] for _ in range(48)]
    spread(sl, carry, 0, 9)
    if 2*t + 3 <= 31: spread(sl, dma_unit(2*t + 3, opt), 8, 28)
    spread(sl, [f"WAITVM u{2*t+1}"] + vreads(t), 16, 22)
    if 2*t + 4 <= 31: spread(sl, dma_unit(2*t + 4, opt), 28, 48)
    if t < 15: spread(sl, [f"WAITVM u{2*t+2}"] + kreads(t + 1), 40, 44)
    spread(sl, softmax(0, t, first), 9, 25)
    spread(sl, softmax(1, t, first), 25, 41)
    s2 = softmax(2, t, first)
    tmp = [[] for _ in range(16)]; spread(tmp, s2, 0, 16)
    for i in range(7): sl[41 + i] += tmp[i]
    for e in extra: spread(sl, *e)
    for i in range(48):
        if M[i]: emit(a, [M[i]])
        emit(a, sl[i])
    return [x for y in tmp[7:] for x in y]

def rare(a, qb):
    a.label(f"L_rare{qb}", reset=True)
    t = TMAX + qb; u = VT
    a.e(f"""s_nop 15
            v_mov_b32 v{u}, v{t}
            s_nop 1
            v_permlane32_swap_b32 v{t}, v{u}
            s_nop 1
            v_max3_f32 v{t}, v{t}, v{u}, 0
            v_sub_f32 v{u+2}, 0, v{t}
            v_exp_f32 v{u+2}, v{u+2}""")
    for i in range(16):
        a.e(f"v_sub_f32 v{NM+16*qb+i}, v{NM+16*qb+i}, v{t}\nv_sub_f32 v{Sreg(qb,i)}, v{Sreg(qb,i)}, v{t}")
    a.e(f"v_mul_f32 v{LSUM+qb}, v{LSUM+qb}, v{u+2}")
    for db in range(4):
        for r in range(0, 16, 2):
            o = Oacc(db, qb) + r
            a.e(f"""v_accvgpr_read_b32 v{u}, a{o}
                    v_accvgpr_read_b32 v{u+1}, a{o+1}
                    v_mul_f32 v{u}, v{u}, v{u+2}
                    v_mul_f32 v{u+1}, v{u+1}, v{u+2}
                    v_accvgpr_write_b32 a{o}, v{u}
                    v_accvgpr_write_b32 a{o+1}, v{u+1}""")
    a.e("s_nop 3\ns_setpc_b64 s[40:41]")

def kernel(a, name, opt):
    a.raw(".text"); a.raw(f".globl {name}"); a.raw(".p2align 8"); a.raw(f".type {name},@function")
    a.label(name, reset=True)
    a.e("""s_load_dwordx2 s[72:73], s[0:1], 96
           s_load_dwordx4 s[44:47], s[0:1], 80
           s_memrealtime s[48:49]
           s_cmp_ge_u32 s2, 256
           s_cbranch_scc1 L_exit
           s_bitcmp1_b32 s2, 2
           s_cbranch_scc1 L_side1""")
    for side in range(2):
        opt.side = side
        n0 = len(a.out)
        if side: a.raw(".p2align 8"); a.label("L_side")
        a.hist = []; a.vm = []
        body(a, opt)
        import re
        for i in range(n0, len(a.out)):
            a.out[i] = re.sub(r"\b(L_[a-z_0-9]+)\b", lambda m: m.group(1) + f"x{side}" if m.group(1) != "L_side" else "L_side1", a.out[i])
    a.label("L_exit")
    a.e("s_endpgm")

def body(a, opt):
    a.e(f"""s_load_dwordx8 s[56:63], s[0:1], {40*opt.side}
            s_load_dwordx2 s[76:77], s[0:1], {40*opt.side + 32}
            s_getpc_b64 s[50:51]""")
    a.label("L_pc0")
    if opt.codetouch:
        a.e("v_lshlrev_b32 v111, 7, v0\nv_min_u32 v111, L_end-L_pc0-4, v111\nglobal_load_dword v87, v111, s[50:51] nt ; @junk")
    if opt.stamps: a.e(f"{opt.clk} s[{STB}:{STB+1}]")
    VW, VXA, VXB, AW, AX, VD = 72, 73, 74, 75, 77, 87
    FA, FB, ACC = 32, 52, 112
    G, L15, H, L31, G1, R, C4 = 88, 89, 90, 91, 92, 81, 82
    a.e(f"""v_lshrrev_b32 v1, 6, v0
            s_and_b32 s3, s2, 7
            s_lshr_b32 s29, s3, 2
            s_and_b32 s30, s3, 3
            v_readfirstlane_b32 s28, v1
            s_lshr_b32 s3, s2, 3
            s_lshr_b32 s31, s3, 2
            s_and_b32 s32, s3, 3
            v_and_b32 v1, 63, v0
            v_lshrrev_b32 v{G}, 4, v1
            v_lshrrev_b32 v56, 3, v1
            v_and_b32 v57, 7, v1
            v_and_b32 v{G1}, 1, v{G}
            v_lshlrev_b32 v59, 2, v{G1}
            v_xor_b32 v59, v57, v59
            v_lshlrev_b32 v59, 4, v59
            v_lshl_add_u32 v{VW}, v56, 13, v59
            v_mul_u32_u24 v60, 1152, v56
            v_xor_b32 v61, v57, v{G}
            s_and_b32 s3, s28, 1
            s_lshl_b32 s3, s3, 2
            v_xor_b32 v61, s3, v61
            v_lshl_add_u32 v{VXA}, v61, 4, v60
            v_xor_b32 v61, 4, v61
            v_lshl_add_u32 v{VXB}, v61, 4, v60
            s_mul_i32 s37, s28, 24576
            s_lshl_b32 s33, s30, 3
            s_lshl_b32 s3, s32, 1
            s_add_u32 s33, s33, s3              ; h0
            s_add_u32 s74, s3, s31              ; b + 2p
            s_lshl_b32 s52, s33, 8
            s_lshl_b32 s3, s28, 7
            s_add_u32 s52, s52, s3
            s_mul_i32 s53, s31, 110592
            s_mul_i32 s3, s28, 27648
            s_add_u32 s53, s53, s3
            s_mul_i32 s54, s28, 3072
            s_add_u32 s54, s54, 98304
            s_mov_b32 s18, 884736
            s_mov_b32 s19, 0x20000
            s_mov_b32 s22, 4718592
            s_mov_b32 s23, 0x20000""")
    if opt.krot == 0: a.e("s_mov_b32 s74, 0")
    elif opt.krot == 1: a.e("s_cmp_ge_u32 s74, 9\ns_cselect_b32 s3, 9, 0\ns_sub_u32 s74, s74, s3")
    elif opt.krot == 3: a.e("s_and_b32 s74, s74, 1\ns_lshl_b32 s74, s74, 2")
    a.e("s_waitcnt lgkmcnt(0)")
    for d, o in ((20, 6), (16, 0), (8, 2), (12, 4)):
        a.e(f"s_mov_b64 s[{d}:{d+1}], s[{56+o}:{57+o}]")
    a.e("""s_mov_b64 s[78:79], s[44:45]
           s_mov_b64 s[80:81], s[46:47]
           s_or_b32 s75, s48, 1
           s_mov_b64 s[68:69], s[50:51]""")
    def stage(c):
        buf = c % 3; Gs = []
        for j in range(8):
            g = ["s_lshl_b32 s4, s74, 19", "s_add_u32 s4, s4, s52"] if j == 0 else ["s_add_u32 s4, s4, 65536"]
            g += [f"s_add_u32 m0, s37, {buf*8192 + j*1024}", f"buffer_load_dwordx4 v{VW}, s[20:23], s4 offen{opt.wnt} lds ; @s{c}"]
            Gs.append("\n".join(g))
        for i in range(3):
            g = ["s_lshl_b32 s5, s74, 7", "s_add_u32 s5, s5, s53"] if i == 0 else [f"s_add_u32 s5, s5, {8*1152}"]
            g += [f"s_add_u32 m0, s54, {buf*12288 + i*1024}", f"buffer_load_dwordx4 v{VXA if i != 1 else VXB}, s[16:19], s5 offen{opt.wnt} lds ; @s{c}"]
            if i == 2: g += ["s_add_u32 s74, s74, 1", "s_cmp_eq_u32 s74, 9", "s_cselect_b32 s74, 0, s74"]
            Gs.append("\n".join(g))
        return Gs
    emit(a, stage(0))
    srd(a, 56, "s80", "s81", 256)
    a.e("""s_lshl_b32 s3, s2, 8
           v_add_u32 v106, s3, v0
           v_min_u32 v106, 1, v106
           v_lshlrev_b32 v106, 12, v106
           v_mov_b32 v107, s75
           buffer_store_dword v107, v106, s[56:59], 0 offen sc1""")
    emit(a, stage(1))
    for d in (8, 12): a.e(f"s_mov_b32 s{d+2}, {1 << 26}\ns_mov_b32 s{d+3}, 0x20000")
    srd(a, 24, "s72", "s73", WS_BYTES)
    srd(a, 60, "s76", "s77", 4718592)
    a.e(f"""v_and_b32 v{L15}, 15, v1
            v_lshrrev_b32 v{H}, 5, v1
            v_and_b32 v{L31}, 31, v1
            v_lshlrev_b32 v54, 8, v{G}
            v_xor_b32 v55, v{L15}, v{G}
            v_lshl_add_u32 v{VOFFK}, v55, 4, v54
            v_xor_b32 v{VOFFK+1}, 64, v{VOFFK}
            v_xor_b32 v{VOFFK+2}, 128, v{VOFFK}
            v_xor_b32 v{VOFFK+3}, 192, v{VOFFK}
            v_lshlrev_b32 v55, 2, v{G}
            v_xor_b32 v55, v{L15}, v55
            v_lshl_add_u32 v{VOFFV}, v55, 4, v54
            v_lshlrev_b32 v{VOFFT}, 7, v1
            s_lshr_b32 s7, s28, 1
            s_add_u32 s33, s33, s7              ; h
            s_lshl_b32 s34, s31, 5
            s_add_u32 s34, s34, s33
            s_lshl_b32 s34, s34, 18
            s_and_b32 s6, s28, 1
            s_lshl_b32 s3, s6, 13
            s_add_u32 s34, s34, s3""")
    if opt.rot:
        a.e("""s_lshl_b32 s3, s2, 2
               s_add_u32 s3, s3, s7
               s_mul_i32 s3, s3, 0x1e3779b1
               s_lshr_b32 s4, s3, 15
               s_xor_b32 s3, s3, s4
               s_mul_i32 s3, s3, 0x2c1b3c6d
               s_lshr_b32 s3, s3, 20
               s_and_b32 s3, s3, 15
               s_lshl_b32 s35, s3, 14""")
    else: a.e("s_mov_b32 s35, 0")
    a.e(f"""s_mov_b32 s36, s35
            v_xor_b32 v55, v{H}, v{L15}
            v_lshlrev_b32 v55, 4, v55
            v_lshl_add_u32 v55, v{L31}, 8, v55
            v_add_u32 v{VKA}, s37, v55""")
    for s in range(1, 8): a.e(f"v_xor_b32 v{VKA+s}, {32*s}, v{VKA}")
    a.e(f"""v_lshrrev_b32 v{R}, 2, v{L15}
            v_and_b32 v{C4}, 3, v1
            v_lshl_add_u32 v59, v{H}, 2, v{R}
            v_lshlrev_b32 v59, 8, v59
            v_lshl_add_u32 v59, v{R}, 6, v59
            v_lshl_add_u32 v59, v{G1}, 5, v59
            v_lshl_add_u32 v59, v{C4}, 3, v59
            s_lshl_b32 s4, s6, 7
            v_xor_b32 v59, s4, v59
            v_add_u32 v{VVA}, s37, v59""")
    for db in range(1, 4): a.e(f"v_xor_b32 v{VVA+db}, {64*db}, v{VVA}")
    a.e(f"""v_lshl_add_u32 v59, v{H}, 3, v{R}
            v_lshlrev_b32 v59, 7, v59
            v_lshrrev_b32 v60, 1, v{R}
            v_lshl_add_u32 v59, v60, 6, v59
            v_lshl_add_u32 v59, v{G1}, 5, v59
            v_lshl_add_u32 v59, v{C4}, 3, v59
            v_add_u32 v{AW}, s37, v59
            v_xor_b32 v{AW+1}, 64, v{AW}
            v_bfe_u32 v60, v1, 1, 3
            v_xor_b32 v60, v60, v{H}
            v_lshlrev_b32 v60, 4, v60
            v_lshl_add_u32 v60, v{L31}, 7, v60
            v_add_u32 v{AX}, 98304, v60""")
    for s in range(1, 4): a.e(f"v_xor_b32 v{AX+s}, {32*s}, v{AX}")
    a.e(f"s_mov_b32 s42, {f2u(CSC):#x}\ns_mov_b32 s43, {f2u(THR_LOG2):#x}")
    for qb in range(3): a.e(f"v_mov_b32 v{LSUM+qb}, 0")
    VO, VL16, AD, VOL = 93, 102, 103, 105
    a.e("""s_mul_i32 s3, s6, 576
           v_add_u32 v50, s3, v1
           s_cmp_eq_u32 s7, 1
           s_cselect_b64 vcc, -1, 0""")
    for i in range(9):
        a.e(f"""v_add_u32 v51, {64*i}, v50
                v_mul_u32_u24 v52, 58255, v51
                v_lshrrev_b32 v52, 20, v52
                v_mul_u32_u24 v53, 18, v52
                v_sub_u32 v53, v51, v53
                v_xor_b32 v54, 1, v53
                v_sub_u32 v54, 17, v54
                v_cndmask_b32 v53, v53, v54, vcc
                v_mul_u32_u24 v52, 1152, v52
                v_lshl_add_u32 v{VO+i}, v53, 4, v52""")
    a.e(f"""v_lshlrev_b32 v{VL16}, 4, v1
            v_lshlrev_b32 v50, 4, v{H}
            v_lshl_add_u32 v50, v{G1}, 2, v50
            v_add_u32 v50, v50, v{R}
            v_mul_u32_u24 v50, 288, v50
            v_lshl_add_u32 v50, v{C4}, 3, v50
            s_mul_i32 s3, s7, 18432
            v_add_u32 v{AD}, s3, v50
            v_add_u32 v{AD+1}, 90112, v{AD}
            v_lshlrev_b32 v{VOL}, 10, v{G1}
            v_lshl_add_u32 v{VOL}, v{H}, 8, v{VOL}
            v_lshl_add_u32 v{VOL}, v{L15}, 4, v{VOL}
            v_min_u32 v108, 1, v0
            v_lshlrev_b32 v108, 12, v108
            s_lshr_b32 s3, s2, 3
            s_lshl_b32 s3, s3, 2
            s_add_u32 s3, s3, s28
            s_mul_i32 s3, s3, 9216
            v_add_u32 v109, s3, v{VOFFT}
            v_add_u32 v110, 8192, v109
            v_cmp_gt_u32 vcc, 8, v1
            v_cndmask_b32 v110, -1, v110, vcc
            v_lshlrev_b32 v111, 7, v0
            v_add_u32 v111, L_tail-L_pc0, v111
            v_min_u32 v111, L_end-L_pc0-4, v111
            s_lshl_b32 s4, s30, 4
            s_add_u32 s4, s4, s7
            s_mul_i32 s4, s4, {64*1152}
            s_mul_i32 s3, s32, 288
            s_add_u32 s64, s4, s3
            s_mul_i32 s65, s28, 9216
            s_lshl_b32 s66, s32, 1
            s_mul_i32 s67, s30, 1179648""")
    wtouch = lambda pol: [f"buffer_load_dword v{VD}, v{r}, s[60:63], s67 offen{pol} ; @junk" for r in (109, 110)]
    BUF = (126976, 90112, 0, 36864)
    def wstage(st):
        Gs = []
        for i in range(9):
            g = [f"s_add_u32 s4, s66, {st}", "s_and_b32 s4, s4, 7", f"s_mul_i32 s4, s4, {128*1152}", "s_add_u32 s4, s4, s64"] if i == 0 else []
            g += [f"s_add_u32 m0, s65, {BUF[st % 4] + i*1024}", f"buffer_load_dwordx4 v{VO+i}, s[60:63], s4 offen lds ; @w{st}"]
            Gs.append("\n".join(g))
        return Gs
    def frag_reads(c, s, F):
        buf = c % 3
        L = [f"ds_read_b64_tr_b16 {vr(F + db*4 + k*2, 2)}, v{AW+db} offset:{buf*8192 + (16*s + 4*k) * 128}" for db in range(2) for k in range(2)]
        return L + [f"ds_read_b128 {vr(F + 8 + qb*4, 4)}, v{AX+s} offset:{buf*12288 + qb*4096}" for qb in range(3)]
    a.wait(vmtags=["s0"]); a.e("s_barrier")
    stamp(a, "q0", opt)
    emit(a, frag_reads(0, 0, FA))
    sl = [[] for _ in range(216 + 24)]
    spread(sl, stage(2), 0, 18)
    for c in range(9):
        for s in range(4):
            F, nF = (FA, FB) if s % 2 == 0 else (FB, FA)
            k0 = (c*4 + s) * 6
            if s == 3:
                a.wait(vmtags=[f"s{c+1}"], lg0=True)
                if c < 8: a.e("s_barrier")
                stamp(a, f"c{c}", opt)
                f = []
                if c == 0 and opt.codetouch: f += [f"global_load_dword v{VD}, v111, s[68:69] ; @junk"]
                if c == opt.wot + opt.regap and opt.wot >= 0: f += wtouch("")
                f += stage(c + 3) if c + 3 <= 8 else dma_unit(c - 6, opt) if c < 8 else []
                if c == opt.wot: f += wtouch(" nt")
                spread(sl, f, k0, k0 + 24)
                if c < 8: emit(a, frag_reads(c + 1, 0, nF))
            else:
                emit(a, frag_reads(c, s + 1, nF))
            i = 0
            for db in range(2):
                for qb in range(3):
                    d = vr(ACC + (db*3 + qb)*16, 16)
                    emit(a, [f"v_mfma_f32_32x32x16_bf16 {d}, {vr(F+db*4,4)}, {vr(F+8+qb*4,4)}, " + ("0" if (c == 0 and s == 0) else d)])
                    emit(a, sl[k0 + i]); i += 1
    assert not any(sl[216:])
    a.e("s_barrier")
    a.e(f"""s_lshl_b32 s3, s6, 3
            v_xor_b32 v55, s3, v{L15}
            v_lshlrev_b32 v55, 4, v55
            v_lshl_add_u32 v55, v{L31}, 8, v55
            v_lshl_add_u32 v55, v{H}, 3, v55
            s_mul_i32 s3, s7, 24576
            s_add_u32 s3, s3, 98304
            v_add_u32 v55, s3, v55
            v_mov_b32 v64, s42""")
    for db in range(2):
        for i in range(4):
            a.e(f"v_xor_b32 v56, {(4*db + i)*16}, v55")
            for qb in range(3):
                r = ACC + (db*3 + qb)*16 + 4*i; tq = 58 + 2 * qb
                a.e(f"""v_pk_mul_f32 v[{r}:{r+1}], v[{r}:{r+1}], v[64:65] op_sel_hi:[1,0]
                        v_pk_mul_f32 v[{r+2}:{r+3}], v[{r+2}:{r+3}], v[64:65] op_sel_hi:[1,0]
                        v_cvt_pk_bf16_f32 v{tq}, v{r}, v{r+1}
                        v_cvt_pk_bf16_f32 v{tq+1}, v{r+2}, v{r+3}
                        ds_write_b64 v56, v[{tq}:{tq+1}] offset:{qb*8192}""")
    a.e("s_sub_u32 s3, s3, s37")
    for s in range(8): a.e(f"v_add_u32 v{32+s}, s3, v{VKA+s}")
    a.e("s_waitcnt lgkmcnt(0)\ns_barrier")
    for qb in range(3):
        for s in range(8): a.e(f"ds_read_b128 {vr(Qreg(qb,s),4)}, v{32+s} offset:{qb*8192}")
    stamp(a, "qx", opt)
    emit(a, dma_unit(2, opt))
    a.wait(vmtags=["u0"], lg0=True)
    emit(a, kreads(0))
    stamp(a, "k0", opt)
    carry = tile_body(a, opt, 0, [])
    stamp(a, "t0", opt)
    if opt.unroll:
        for t in range(1, 13): carry = tile_body(a, opt, t, carry)
    else:
        carry = tile_body(a, opt, 1, carry)
        a.e("s_mov_b32 s46, 4")
        a.raw(".p2align 6"); a.label("L_tile")
        for t in (2, 3, 4): carry = tile_body(a, opt, t, carry)
        a.e("s_sub_u32 s46, s46, 1\ns_cmp_lg_u32 s46, 0\ns_cbranch_scc1 L_tile")
        for o in a.vm:
            if o.tag and o.tag[0] == "u": o.tag = f"u{int(o.tag[1:]) + 18}"
    if opt.unroll: carry = tile_body(a, opt, 13, carry)
    a.label("L_tail")
    carry = tile_body(a, opt, 14, carry, extra=[(wstage(0), 28, 48)])
    def send(qb):
        return [f"ds_write_b128 v28, {ar(Oacc(2+i,qb) + 4*g, 4)} offset:{((i*3 + qb)*4 + g)*1024}" for i in range(2) for g in range(4)]
    pre = ["buffer_load_dword v106, v108, s[56:59], 0 offen sc1",
           f"v_add_u32 v28, s37, v{VL16}", "s_xor_b32 s3, s28, 1\ns_mul_i32 s38, s3, 24576", f"v_add_u32 v29, s38, v{VL16}",
           "s_lshl_b32 s3, s28, 11\ns_add_u32 s3, s3, 98304", "v_lshlrev_b32 v30, 3, v1", "v_add_u32 v30, s3, v30", "v_xor_b32 v31, 2048, v30"]
    carry = tile_body(a, opt, 15, carry, extra=[(pre, 8, 16), (send(0), 34, 48)])
    sl = [[] for _ in range(8)]
    emit(a, carry[:len(carry)//2])
    spread(sl, carry[len(carry)//2:], 0, 3)
    st = []
    for qb in range(3): st += [f"v_mov_b32 v{3+2*qb}, v{LSUM+qb}", f"v_mov_b32 v{2+2*qb}, v{NM+16*qb}"]
    for qb in range(3): st += [f"v_permlane32_swap_b32 v{LSUM+qb}, v{3+2*qb}"]
    for qb in range(3): st += [f"v_add_f32 v{3+2*qb}, v{LSUM+qb}, v{3+2*qb}", f"ds_write_b64 v30, v[{2+2*qb}:{3+2*qb}] offset:{qb*512}"]
    spread(sl, st + send(1), 3, 8)
    for m, f in zip(pv(2, False), sl): emit(a, [m] + f)
    stamp(a, "t15", opt)
    a.e("s_cmp_lg_u32 s28, 0\ns_cbranch_scc1 L_tag_ok\ns_mov_b32 s4, 0x100000")
    keepvm = list(a.vm)
    a.label("L_tag")
    a.e("""s_waitcnt vmcnt(0)
           v_readfirstlane_b32 s75, v106
           s_cmp_lg_u32 s75, 0
           s_cbranch_scc1 L_tag_put
           buffer_load_dword v106, v108, s[56:59], 0 offen sc1 ; @junk
           s_sub_u32 s4, s4, 1
           s_cmp_lg_u32 s4, 0
           s_cbranch_scc1 L_tag""")
    a.label("L_tag_put")
    a.e("v_mov_b32 v107, s75\nds_write_b32 v30, v107 offset:1536")
    a.label("L_tag_ok"); a.vm = keepvm
    emit(a, send(2))
    for r in range(96): a.e(f"v_accvgpr_read_b32 v{160 + r}, a{r}")
    a.e(f"""s_mov_b32 s5, s7                    ; kh
            s_lshl_b32 s39, s29, 3
            s_add_u32 s39, s39, s31             ; side*8 + b
            s_lshl_b32 s3, s39, 5
            s_add_u32 s3, s3, s33
            s_mul_i32 s52, s3, 24576
            s_mul_i32 s3, s6, 12288
            s_add_u32 s52, s52, s3
            v_add_u32 v27, s38, v{VOL}
            v_mov_b32 v26, 98304""")
    stamp(a, "c_pre", opt)
    a.e("s_waitcnt lgkmcnt(0)\ns_barrier")
    stamp(a, "c_bar", opt)
    for qb in range(3): a.e(f"ds_read_b64 v[{8+2*qb}:{9+2*qb}], v31 offset:{qb*512}")
    a.e("ds_read_b32 v14, v26 offset:1536")
    RC = (32, 48, 64, 112, 128, 144)
    def recv(blk):
        for g in range(4): a.e(f"ds_read_b128 {vr(RC[blk]+4*g,4)}, v29 offset:{(blk*4 + g)*1024}")
    recv(0); recv(1)
    a.auto("v_readfirstlane_b32 s75, v14")
    SC = 16
    for qb in range(3):
        pn, pl, on, ol = 8 + 2*qb, 9 + 2*qb, 2 + 2*qb, 3 + 2*qb
        a.e(f"""v_min_f32 v22, v{on}, v{pn}
                v_sub_f32 v23, v22, v{on}
                v_sub_f32 v24, v22, v{pn}
                v_exp_f32 v23, v23
                v_exp_f32 v24, v24
                v_mul_f32 v{ol}, v{ol}, v23
                v_fmac_f32 v{ol}, v{pl}, v24
                v_rcp_f32 v{ol}, v{ol}
                v_mul_f32 v{SC+2*qb}, v23, v{ol}
                v_mul_f32 v{SC+2*qb+1}, v24, v{ol}""")
    recv(2); recv(3); recv(4); recv(5)
    for blk in range(6):
        i, qb = divmod(blk, 3)
        K = 160 + blk*16; Rr = RC[blk]
        a.wait(lgregs=regs_of(vr(Rr, 16)))
        for r in range(0, 16, 2):
            a.e(f"v_pk_mul_f32 v[{Rr+r}:{Rr+r+1}], v[{Rr+r}:{Rr+r+1}], v[{SC+2*qb}:{SC+2*qb+1}] op_sel:[0,1] op_sel_hi:[1,1]")
        for r in range(0, 16, 2):
            a.e(f"v_pk_fma_f32 v[{K+r}:{K+r+1}], v[{K+r}:{K+r+1}], v[{SC+2*qb}:{SC+2*qb+1}], v[{Rr+r}:{Rr+r+1}] op_sel_hi:[1,0,1]")
        for j in range(8):
            a.e(f"v_cvt_pk_bf16_f32 v{K+8*(j//4)+j%4}, v{K+2*j}, v{K+2*j+1}")
        idx = i*6 + 2*qb
        a.e(f"s_add_u32 s47, s52, {WS_O + idx*1024}")
        for s in range(2):
            a.e(f"buffer_store_dwordx4 {vr(K+8*s,4)}, v{VOL}, s[24:27], s47 offen offset:{512*s} sc1")
            a.e(f"ds_write_b128 v27, {vr(K+8*s,4)} offset:{idx*1024 + 512*s}")
    stamp(a, "comb", opt)
    def publish(tag, foff):
        a.e(f"""s_waitcnt vmcnt(0) lgkmcnt(0)
                s_barrier
                s_cmp_lg_u32 s28, 0
                s_cbranch_scc1 L_pub{tag}
                s_lshl_b32 s3, s2, 7
                s_add_u32 s3, s3, {WS_F + foff}
                v_mov_b32 v15, 0
                v_mov_b32 v14, s75
                buffer_store_dword v14, v15, s[24:27], s3 offen sc1""")
        a.label(f"L_pub{tag}"); a.vm = []
    def ask(foff, mask, shift):
        a.e(f"""s_andn2_b32 s7, s2, {mask}
                s_lshl_b32 s7, s7, 7
                s_add_u32 s7, s7, {WS_F + foff}
                v_and_b32 v13, 3, v1
                v_lshlrev_b32 v13, {7 + shift}, v13
                buffer_load_dword v12, v13, s[24:27], s7 offen sc1""")
    def check(tag):
        a.e("s_mov_b32 s4, 0x100000")
        a.label(f"L_poll{tag}")
        a.e(f"""s_waitcnt vmcnt(0)
                v_cmp_ne_u32 vcc, s75, v12
                s_cbranch_vccz L_got{tag}
                s_sleep 1
                buffer_load_dword v12, v13, s[24:27], s7 offen sc1
                s_sub_u32 s4, s4, 1
                s_cmp_lg_u32 s4, 0
                s_cbranch_scc1 L_poll{tag}""")
        a.label(f"L_got{tag}")
        a.e("s_waitcnt vmcnt(0)")
    publish(1, 0)
    ACC, WF, OF = 112, 16, 0
    a.e(f"""s_xor_b32 s3, s5, 1
            s_mul_i32 s3, s3, 24576
            s_mul_i32 s4, s6, 3072
            s_add_u32 s3, s3, s4
            v_add_u32 v2, s3, v{VL16}""")
    for hp in range(2):
        for kl in range(2):
            for j in range(3):
                a.e(f"ds_read_b128 {ar(OF + ((2*hp+kl)*3+j)*4, 4)}, v2 offset:{hp*49152 + (kl*6 + j)*1024}")
    def wreads(st, kl, F):
        b = BUF[st % 4]
        reg, boff = (AD, b) if b < 65536 else (AD+1, b - 90112)
        return [f"ds_read_b64_tr_b16 {vr(F + nb*4 + 2*k, 2)}, v{reg} offset:{boff + (32*kl + 8*k) * 288 + 32*nb}" for nb in range(9) for k in range(2)]
    emit(a, wreads(0, 0, WF))
    a.e(f"""s_lshl_b32 s3, s39, 2
            s_add_u32 s3, s3, s30
            s_mul_i32 s37, s3, {8*24576}
            s_mul_i32 s3, s5, 12288
            s_add_u32 s37, s37, s3
            s_add_u32 s37, s37, s4""")
    stamp(a, "g0", opt)
    def oload(st):
        Gs = []
        for kl in range(2):
            for j in range(3):
                g = [f"s_add_u32 s47, s66, {st}", "s_and_b32 s47, s47, 7", "s_mul_i32 s47, s47, 24576", "s_add_u32 s47, s47, s37"] if kl + j == 0 else ["s_add_u32 s47, s47, 6144"] if j == 0 else []
                Gs.append("\n".join(g + [f"buffer_load_dwordx4 {ar(OF + ((2*st+kl)*3+j)*4, 4)}, v{VL16}, s[24:27], s47 offen offset:{j*1024} sc1 ; @o{st}"]))
        return Gs
    def gm(st, kl):
        ks = 2*st + kl; F = WF + 36*kl
        return [f"v_mfma_f32_16x16x32_bf16 {vr(ACC + (nb*3+j)*4, 4)}, {vr(F+nb*4,4)}, {ar(OF+(ks*3+j)*4,4)}, " +
                ("0" if ks == 0 else vr(ACC + (nb*3+j)*4, 4)) for nb in range(9) for j in range(3)]
    def half(st, kl, reads, jobs):
        sl = [[] for _ in range(27)]
        spread(sl, reads, 0, 20); spread(sl, jobs, 0, 27)
        a.e("s_waitcnt lgkmcnt(0)")
        for m, f in zip(gm(st, kl), sl): emit(a, [m] + f)
    half(0, 0, wreads(0, 1, WF + 36), wstage(1))
    stamp(a, "g0h", opt)
    a.e("s_waitcnt vmcnt(0) lgkmcnt(0)\ns_barrier")
    w234 = wstage(2) + wstage(3) + wstage(4)
    half(0, 1, wreads(1, 0, WF), w234[:13])
    half(1, 0, wreads(1, 1, WF + 36), w234[13:])
    ask(0, 24, 3)
    stamp(a, "g1h", opt)
    check(1)
    stamp(a, "chk1", opt)
    a.e("s_waitcnt lgkmcnt(0)\ns_barrier")
    emit(a, oload(2))
    half(1, 1, wreads(2, 0, WF), oload(3))
    plan = {(2, 0): ["o4"], (2, 1): ["w5"], (3, 0): ["o5"], (3, 1): ["w6"], (4, 0): ["o6"], (4, 1): ["o7"], (5, 0): ["w7"]}
    jobs = lambda st, kl: [x for j in plan.get((st, kl), []) for x in (oload(int(j[1])) if j[0] == "o" else wstage(int(j[1])))]
    for st in range(2, 8):
        stamp(a, f"g{st}", opt)
        a.wait(vmtags=[f"o{st}"])
        half(st, 0, wreads(st, 1, WF + 36), jobs(st, 0))
        if st < 7:
            a.wait(vmtags=[f"w{st+1}"], lg0=True); a.e("s_barrier")
            half(st, 1, wreads(st + 1, 0, WF), jobs(st, 1))
    a.e(f"""s_lshl_b32 s3, s28, 14
            v_add_u32 v13, s3, v{VL16}
            v_xor_b32 v14, 32768, v13
            s_waitcnt lgkmcnt(0)
            s_barrier""")
    ms = gm(7, 1); ms = [ms[nb*3 + j] for nb in (8, 7, 6, 5, 4, 0, 1, 2, 3) for j in range(3)]
    snd = [f"ds_write_b128 v13, {vr(ACC+(nb*3+j)*4,4)} offset:{((8-nb)*3+j)*1024}" for nb in range(8, 3, -1) for j in range(3)]
    emit(a, ms[:9])
    for k in range(15): emit(a, [ms[9 + k], snd[k]])
    emit(a, ms[24:])
    stamp(a, "gend", opt)
    PT = 512 if opt.pbf16 else 1024
    a.e(f"""s_lshl_b32 s52, s39, 2
            s_add_u32 s52, s52, s32
            s_lshl_b32 s53, s52, 2
            s_add_u32 s53, s53, s30
            s_mul_i32 s53, s53, {54*PT}
            s_mul_i32 s3, s6, {3*PT}
            s_add_u32 s53, s53, s3
            s_mul_i32 s3, s5, {48*PT}
            s_add_u32 s53, s53, s3
            s_add_u32 s47, s53, {WS_P}
            s_mov_b32 s3, {6*PT}
            s_cmp_eq_u32 s5, 1
            s_cselect_b32 s53, {-6*PT}, s3
            v_lshlrev_b32 v9, {3 if opt.pbf16 else 4}, v1
            s_waitcnt lgkmcnt(0)
            s_barrier""")
    for k in range(15): a.e(f"ds_read_b128 {vr(WF+4*k,4)}, v14 offset:{k*1024}")
    for nb in range(5):
        for j in range(3):
            r = ACC + (nb*3+j)*4; q = WF + (nb*3+j)*4
            a.wait(lgregs=regs_of(vr(q, 4)))
            a.e(f"v_pk_add_f32 v[{r}:{r+1}], v[{r}:{r+1}], v[{q}:{q+1}]\nv_pk_add_f32 v[{r+2}:{r+3}], v[{r+2}:{r+3}], v[{q+2}:{q+3}]")
            if opt.pbf16:
                a.e(f"v_cvt_pk_bf16_f32 v{r}, v{r}, v{r+1}\nv_cvt_pk_bf16_f32 v{r+1}, v{r+2}, v{r+3}")
                a.e(f"buffer_store_dwordx2 {vr(r,2)}, v9, s[24:27], s47 offen offset:{j*PT} sc1")
            else:
                a.e(f"buffer_store_dwordx4 {vr(r,4)}, v9, s[24:27], s47 offen offset:{j*PT} sc1")
        if nb < 4: a.e("s_add_u32 s47, s47, s53")
    publish(2, 32768)
    ask(32768, 3, 0)
    a.e(f"""v_and_b32 v10, 15, v1
            v_mul_u32_u24 v10, 2304, v10
            v_lshrrev_b32 v11, 4, v1
            v_lshl_add_u32 v10, v11, 3, v10
            s_mul_i32 s52, s52, {4*54*PT}
            s_add_u32 s52, s52, {WS_P}
            s_mul_i32 s53, s31, {96*2304}
            s_mul_i32 s3, s29, 1152
            s_add_u32 s53, s53, s3
            s_mul_i32 s3, s32, 288
            s_add_u32 s53, s53, s3
            s_lshl_b32 s54, s28, 2
            s_add_u32 s54, s54, s30""")
    srd(a, 8, "s78", "s79", 1769472)
    stamp(a, "pub2", opt)
    check(2)
    stamp(a, "chk2", opt)
    for i in range(4):
        a.e(f"s_add_u32 s{68+i}, s54, {16*i}")
        if i == 3: a.e("s_cmp_ge_u32 s71, 54\ns_cbranch_scc1 L_rd3")
        a.e(f"s_mul_i32 s47, s{68+i}, {PT}\ns_add_u32 s47, s47, s52")
        for o in range(4):
            if opt.pbf16: a.e(f"buffer_load_dwordx2 {vr(16+16*i+4*o+2,2)}, v9, s[24:27], s47 offen sc1")
            else: a.e(f"buffer_load_dwordx4 {vr(16+16*i+4*o,4)}, v9, s[24:27], s47 offen sc1")
            if o < 3: a.e(f"s_add_u32 s47, s47, {54*PT}")
    def fin(i):
        r = 16 + 16*i
        if opt.pbf16:
            for o in range(4):
                b = r + 4*o
                a.e(f"""v_lshlrev_b32 v{b}, 16, v{b+2}
                        v_and_b32 v{b+1}, 0xffff0000, v{b+2}
                        v_lshlrev_b32 v{b+2}, 16, v{b+3}
                        v_and_b32 v{b+3}, 0xffff0000, v{b+3}""")
        for k in range(4): a.e(f"v_add_f32 v{r+k}, v{r+k}, v{r+4+k}\nv_add_f32 v{r+8+k}, v{r+8+k}, v{r+12+k}")
        for k in range(4): a.e(f"v_add_f32 v{r+k}, v{r+k}, v{r+8+k}")
        a.e(f"""v_cvt_pk_bf16_f32 v{r}, v{r}, v{r+1}
                v_cvt_pk_bf16_f32 v{r+1}, v{r+2}, v{r+3}
                s_mul_i32 s3, s{68+i}, 43
                s_lshr_b32 s3, s3, 8
                s_mul_i32 s4, s3, 6
                s_sub_u32 s4, s{68+i}, s4
                s_mul_i32 s4, s4, {16*2304}
                s_lshl_b32 s3, s3, 5
                s_add_u32 s47, s53, s3
                s_add_u32 s47, s47, s4
                buffer_store_dwordx2 v[{r}:{r+1}], v10, s[8:11], s47 offen""")
    a.e("s_waitcnt vmcnt(0)")
    fin(3)
    a.label("L_rd3")
    a.e("s_waitcnt vmcnt(0)")
    for i in range(3): fin(i)
    stamp(a, "end", opt)
    if opt.stamps:
        a.e(f"s_lshl_b32 s3, s2, 2\ns_add_u32 s3, s3, s28\ns_lshl_b32 s3, s3, 7\ns_add_u32 s3, s3, {WS_STAMP}\nv_mov_b32 v0, 0")
        for i in range(1 + len(opt.sset)):
            a.e(f"v_mov_b32 v2, s{STB+2*i}\nv_mov_b32 v3, s{STB+1+2*i}\nbuffer_store_dwordx2 v[2:3], v0, s[24:27], s3 offen offset:{8*i}\ns_waitcnt vmcnt(0)")
    a.label("L_done")
    a.e("s_endpgm")
    for qb in range(3): rare(a, qb)
    a.label("L_end")

def build(opt):
    a = Asm()
    a.raw("; @launch grid=(256,1,1) block=(256,1,1) lds=163840")
    a.raw('.amdgcn_target "amdgcn-amd-amdhsa--gfx950"')
    kernel(a, NAME + "_kernel", opt)
    a.raw('.section .rodata,"a"\n.p2align 6')
    a.raw("\n".join([f".amdhsa_kernel {NAME}_kernel", "  .amdhsa_next_free_vgpr 512", "  .amdhsa_next_free_sgpr 102",
        "  .amdhsa_accum_offset 256", "  .amdhsa_group_segment_fixed_size 0", "  .amdhsa_kernarg_size 104",
        "  .amdhsa_user_sgpr_count 2", "  .amdhsa_user_sgpr_kernarg_segment_ptr 1",
        "  .amdhsa_system_sgpr_workgroup_id_x 1", ".end_amdhsa_kernel"]))
    return a.text(), a

if __name__ == "__main__":
    opt = Opt()
    out = sys.argv[1] if len(sys.argv) > 1 else "k.s"
    for kv in sys.argv[2:]:
        k, v = kv.split("=", 1); assert hasattr(opt, k), k
        setattr(opt, k, eval(v))
    t, a = build(opt)
    open(out, "w").write(t)
    print(out, "lines", t.count("\n"), "pad", a.npad)
```

```python
import re

TRANS = ("v_exp_f32", "v_log_f32", "v_rcp_f32", "v_rsq_f32", "v_sqrt_f32", "v_sin_f32", "v_cos_f32")

def regs_of(tok):
    tok = tok.strip()
    neg = tok.lstrip("-").replace("abs(", "").replace(")", "").replace("|", "")
    m = re.fullmatch(r"([vas])\[(\d+):(\d+)\]", neg)
    if m: return {f"{m.group(1)}{i}" for i in range(int(m.group(2)), int(m.group(3)) + 1)}
    m = re.fullmatch(r"([vas])(\d+)", neg)
    if m: return {neg}
    if neg in ("vcc", "exec", "m0"): return {neg}
    if neg in ("vcc_lo", "vcc_hi"): return {"vcc"}
    if neg in ("exec_lo", "exec_hi"): return {"exec"}
    return set()

class Ins:
    __slots__ = ("text", "op", "wr", "rd", "cls", "passes", "A", "B", "C", "D", "nops", "sdata", "tag")
    def __init__(self, text):
        m = re.search(r";\s*@(\S+)", text)
        self.tag = m.group(1) if m else None
        self.text = text
        t = text.split(";")[0].strip()
        parts = t.split(None, 1)
        self.op = op = parts[0]
        ops = []
        if len(parts) > 1:
            ops = [o.strip() for o in parts[1].split(",")]
            last = ops[-1].split()
            if last: ops[-1] = last[0]; mods = last[1:]
            else: mods = []
        else: mods = []
        self.wr, self.rd = set(), set()
        self.passes = 0; self.A = self.B = self.C = self.D = set(); self.nops = 1; self.sdata = set()
        R = [regs_of(o) for o in ops]
        if op.startswith("v_mfma"):
            self.cls = "mfma"; self.passes = 8 if "32x32x16" in op else 4
            self.D, self.A, self.B, self.C = R[0], R[1], R[2], R[3]
            self.wr = set(self.D); self.rd = self.A | self.B | self.C
        elif op.startswith("v_"):
            self.cls = "valu"
            if op.startswith("v_permlane32_swap") or op.startswith("v_permlane16_swap"):
                self.wr = R[0] | R[1]; self.rd = R[0] | R[1]
            else:
                self.wr = set(R[0])
                k = 1
                if op.startswith(("v_add_co", "v_sub_co", "v_addc_co", "v_subb_co")):
                    self.wr |= R[1]; k = 2
                for r in R[k:]: self.rd |= r
                if op.startswith(("v_fmac", "v_pk_fmac")): self.rd |= R[0]
                if op.startswith("v_cndmask") and len(R) == 3: self.rd.add("vcc")
        elif op.startswith("ds_"):
            self.cls = "ds"
            if op.startswith("ds_read") or op.startswith("ds_bpermute") or op.startswith("ds_swizzle"):
                self.wr = set(R[0])
                for r in R[1:]: self.rd |= r
            else:
                for r in R: self.rd |= r
        elif op.startswith(("buffer_", "global_")):
            self.cls = "vmem"
            islds = "lds" in mods or "_lds_" in op
            if op in ("buffer_wbl2", "buffer_inv"): pass
            elif islds:
                for r in R: self.rd |= r
                self.rd.add("m0"); self.cls = "dma"
            elif "load" in op:
                self.wr = set(R[0])
                for r in R[1:]: self.rd |= r
            elif "atomic" in op:
                for r in R: self.rd |= r
                if "sc0" in mods:
                    self.wr = set(R[0])
            else:
                for r in R: self.rd |= r
                if op.endswith(("x3", "x4")):
                    self.sdata = set(R[0]) if op.startswith("buffer_") else set(R[1])
        elif op == "s_nop":
            self.cls = "nop"; self.nops = int(ops[0], 0) + 1
        elif op == "s_waitcnt":
            self.cls = "wait"
        elif op.startswith(("s_load", "s_buffer_load", "s_memtime", "s_memrealtime")):
            self.cls = "smem"; self.wr = set(R[0])
            for r in R[1:]: self.rd |= r
        elif op.startswith("s_"):
            self.cls = "salu"
            if op.startswith(("s_cmp", "s_cbranch", "s_branch", "s_barrier", "s_sleep", "s_setprio", "s_endpgm", "s_setpc", "s_bitcmp")):
                for r in R: self.rd |= r
            else:
                if R: self.wr = set(R[0])
                for r in R[1:]: self.rd |= r
                if "saveexec" in op: self.wr.add("exec"); self.rd.add("exec")
        else:
            raise ValueError("unknown instruction: " + text)

def need(p, c):
    n = 0
    isv = lambda s: {r for r in s if r[0] in "va" and r != "vcc"}
    iss = lambda s: {r for r in s if r[0] == "s" or r == "vcc"}
    if p.cls == "valu":
        wv = isv(p.wr); ws = iss(p.wr)
        if c.cls == "mfma" and wv & c.rd: n = max(n, 2)
        if c.cls == "valu":
            if c.op.startswith("v_permlane") and wv & c.rd: n = max(n, 2)
            if c.op.startswith(("v_readlane", "v_readfirstlane")) and wv & c.rd: n = max(n, 1)
            if "dpp" in c.text or "row_" in c.text or "quad_perm" in c.text:
                if wv & c.rd: n = max(n, 2)
            if p.op.startswith(TRANS) and not c.op.startswith(TRANS) and wv & (c.rd): n = max(n, 1)
            if ws & c.rd: n = max(n, 4 if c.op.startswith(("v_readlane", "v_writelane")) else 2)
        if p.op.startswith(TRANS) and c.cls in ("ds", "vmem", "mfma") and wv & c.rd: n = max(n, 2)
        if c.cls in ("vmem", "dma") and ws & c.rd: n = max(n, 5)
        if c.cls == "salu" and ws & c.rd: n = max(n, 1)
    if p.cls == "mfma":
        big = p.passes == 8
        if c.cls == "mfma":
            if p.D & (c.A | c.B): n = max(n, 12 if big else 8)
            if p.D & c.C and not (p.D == c.C and p.passes == c.passes): n = max(n, 10 if big else 6)
            if p.D & c.D and not (p.D == c.C and p.passes == c.passes): n = max(n, 12 if big else 8)
        elif c.cls in ("valu", "ds", "vmem", "dma"):
            if p.D & (c.rd | c.wr): n = max(n, 12 if big else 8)
            if c.cls == "valu" and p.C & c.wr: n = max(n, 7 if big else 3)
    if p.cls == "salu" and "m0" in p.wr and c.cls == "dma": n = max(n, 1)
    if p.sdata and p.sdata & c.wr: n = max(n, 2)
    return n

class Asm:
    def __init__(self):
        self.out = []
        self.hist = []
        self.lg = []
        self.vm = []
        self.check = True
        self.npad = 0
    def raw(self, s): self.out.append(s)
    def comment(self, s): self.out.append("; " + s)
    def label(self, name, reset=False):
        self.out.append(name + ":")
        if reset: self.forget()
    def forget(self):
        self.hist = []; self.lg = []; self.vm = []
    def e(self, text):
        for line in text.split("\n"):
            line = line.strip()
            if line: self._e(line)
    def _e(self, text):
        c = Ins(text)
        dist = 0; pad = 0
        for p in reversed(self.hist):
            nd = need(p, c)
            if nd > dist: pad = max(pad, nd - dist)
            dist += p.nops
            if dist >= 24: break
        while pad > 0:
            k = min(pad, 16)
            nop = Ins(f"s_nop {k-1}"); self.hist.append(nop); self.out.append("    " + nop.text); pad -= k; self.npad += k
        if c.cls == "wait":
            m = re.search(r"lgkmcnt\((\d+)\)", text)
            if m:
                n = int(m.group(1)); assert n < 15
                if any(o.cls == "smem" for o in self.lg):
                    if n == 0: self.lg = []
                else: self.lg = self.lg[len(self.lg) - n:] if n else []
            m = re.search(r"vmcnt\((\d+)\)", text)
            if m:
                n = int(m.group(1)); assert n < 63; self.vm = self.vm[max(0, len(self.vm) - n):] if n else []
        elif self.check:
            for o in self.lg + self.vm:
                if o.tag == "junk": continue
                if o.wr & (c.rd | c.wr):
                    raise RuntimeError(f"missing waitcnt: '{c.text}' touches dest of pending '{o.text}'")
            if c.cls in ("valu", "mfma"):
                pass
        if c.cls in ("ds", "smem"): self.lg.append(c)
        if c.cls in ("vmem", "dma") and c.op not in ("buffer_inv",): self.vm.append(c)
        if len(self.lg) > 15 and c.cls == "ds": pass
        self.hist.append(c)
        if len(self.hist) > 40: self.hist = self.hist[-40:]
        self.out.append("    " + text)
    def vm_count(self, tag):
        idx = [i for i, o in enumerate(self.vm) if o.tag == tag]
        return None if not idx else len(self.vm) - 1 - idx[-1]
    def lg_count(self, regs):
        idx = [i for i, o in enumerate(self.lg) if o.wr & regs]
        return None if not idx else len(self.lg) - 1 - idx[-1]
    def wait(self, vmtags=(), lgregs=None, lg0=False):
        parts = []
        n = [self.vm_count(t) for t in vmtags]; n = [x for x in n if x is not None]
        if n: parts.append(f"vmcnt({min(62, min(n))})")
        if lg0: parts.append("lgkmcnt(0)")
        elif lgregs is not None:
            k = self.lg_count(lgregs)
            if k is not None: parts.append(f"lgkmcnt({min(14, k)})")
        if parts: self.e("s_waitcnt " + " ".join(parts))
    def auto(self, text):
        c = Ins(text)
        self.wait(lgregs=c.rd | c.wr)
        self.e(text)
    def text(self): return "\n".join(self.out) + "\n"

def cost(text):
    op = text.split()[0]
    if op.startswith(TRANS): return 2.0
    if op.startswith("buffer_") : return 3.0
    if op.startswith("s_"): return 0.5
    return 1.0

def interleave(prim, fill, per=5.5, lead=0):
    out = []
    tot = sum(cost(f) for f in fill)
    n = len(prim)
    share = tot / n if n else 0
    acc = 0.0; j = 0
    for i, m in enumerate(prim):
        out.append(m)
        target = share * (i + 1)
        while j < len(fill) and acc + cost(fill[j]) * 0.5 <= target:
            out.append(fill[j]); acc += cost(fill[j]); j += 1
    out += fill[j:]
    return out


def spread(slots, items, lo, hi):
    tot = sum(sum(cost(y) for y in x.split("\n") if not y.startswith("LABEL")) for x in items)
    if not items: return
    acc = 0.0; n = hi - lo
    for x in items:
        c = sum(cost(y) for y in x.split("\n") if not y.startswith("LABEL"))
        k = lo + min(n - 1, int((acc + c * 0.5) / tot * n))
        slots[k].append(x); acc += c

def icost(x, dma=4.0):
    c = 0.0
    for y in x.split("\n"):
        if y.startswith(("LABEL", "s_call", "RAW")): continue
        op = y.split()[0]
        c += 2.0 if op.startswith(TRANS) else dma if op.startswith("buffer_") else 1.0
    return c

def level_fill(slots, items, lo, hi, dma=4.0):
    base = [sum(icost(x, dma) for x in slots[i]) for i in range(lo, hi)]
    def place(level):
        out = []; k = 0; cur = base[0]
        for x in items:
            c = icost(x, dma)
            while k < len(base) and cur + c > level + 1e-9:
                k += 1
                if k < len(base): cur = base[k]
            if k >= len(base): return None
            out.append(k); cur += c
        return out
    level = 2.0
    while True:
        p = place(level)
        if p is not None: break
        level += 0.5
    for x, k in zip(items, p): slots[lo + k].append(x)
    return level
```

```python
import sys, struct, math
sys.path.insert(0, "dev")
from asmlib import Asm, interleave, spread, regs_of

NAME = "concat_heads__mha_block_cached__gqa_block_cached__near_ridge"
def f2u(x): return struct.unpack("<I", struct.pack("<f", x))[0]
CSC = math.log2(math.e) / math.sqrt(128.0)
THR_LOG2 = 8.0
WS_BYTES = 289079296
WS_O = 0
WS_P = 16 << 20
WS_F = 48 << 20
WS_STAMP = 64 << 20
STB = 82

class Opt:
    pol = ("nnp", "nnp")
    side = 0
    @property
    def wnt(self): return " nt" if self.pol[self.side][2] == "n" else ""
    def kv(self, kind): return " nt" if self.pol[self.side]["KV".index(kind)] == "n" else ""
    stamps = False
    sset = ['q0', 'k0', 't15', 'comb', 'g0', 'chk1', 'gend', 'pub2', 'end']
    clk = "s_memrealtime"
    rot = True
    krot = 3
    wot = 5
    regap = 2
    codetouch = True
    late = 0
    latecode = False
    pbf16 = True
    cap = 0
    kvsame = False
    unroll = False

def vr(a, n=1): return f"v{a}" if n == 1 else f"v[{a}:{a+n-1}]"
def ar(a, n=1): return f"a{a}" if n == 1 else f"a[{a}:{a+n-1}]"
def srd(a, d, lo, hi, nbytes):
    a.e(f"s_mov_b32 s{d}, {lo}\ns_mov_b32 s{d+1}, {hi}\ns_mov_b32 s{d+2}, {nbytes}\ns_mov_b32 s{d+3}, 0x20000")
def stamp(a, name, opt):
    if opt.stamps and name + "_c" in opt.sset:
        i = 1 + opt.sset.index(name + "_c")
        a.e(f"s_memtime s[{STB+2*i}:{STB+1+2*i}]")
    if opt.stamps and name in opt.sset:
        i = 1 + opt.sset.index(name)
        a.e(f"{opt.clk} s[{STB+2*i}:{STB+1+2*i}]\ns_waitcnt lgkmcnt(0)")
PST = {}
def pcheck(x):
    w = x.replace(",", " ").split()
    if x.startswith("v_mfma_f32_32x32x16") and w[1].startswith("v[") and w[2].startswith("a["):
        for r in regs_of(w[1]): PST[r] = "raw"
    elif x.startswith("v_mfma_f32_32x32x16") and w[1].startswith("a["):
        assert all(PST.get(r) == "pk" for r in regs_of(w[3])), x
    elif x.startswith("v_exp_f32") and w[1] in PST:
        assert PST[w[1]] == "raw", x; PST[w[1]] = "p"
    elif x.startswith("v_cvt_pk") and w[2] in PST and PST.get(w[2]) == "p":
        assert PST[w[3]] == "p", x; PST[w[2]] = PST[w[3]] = "used"; PST[w[1]] = "pk"
    elif x.startswith(("v_max3", "v_max_f32")):
        for r in w[2:]: assert PST.get(r, "raw") == "raw", x
def emit(a, L):
    for y in L:
        for x in y.split("\n"):
            pcheck(x)
            if x.startswith("LABEL "): a.label(x[6:])
            elif x.startswith("RAW "): a.raw("    " + x[4:])
            elif x.startswith("WAITVM "): a.wait(vmtags=x.split()[1:])
            elif x.startswith(("v_mfma", "AUTO ")): a.auto(x[5:] if x.startswith("AUTO ") else x)
            else: a.e(x)

VOFFK, VOFFV, VOFFT = 2, 6, 7
VKA, VVA = 8, 16
LSUM, TMAX, VT = 20, 23, 84
NM = 32
S0, Q0 = 112, 160
KF, VF = 192, 224
def Sreg(qb, i): return S0 + 16 * qb + i
def Qreg(qb, ks): return Q0 + (qb * 8 + ks) * 4
def Oacc(db, qb): return (db * 3 + qb) * 16

def dma_unit(u, opt, advance=True):
    kind = "KV"[u % 2]; sreg = "s36" if kind == "K" else "s35"
    srdn = "s[8:11]" if kind == "K" else "s[12:15]"
    G = []
    for j in range(8):
        g = []
        if j == 0: g += [f"s_add_u32 m0, s37, {(u % 3) * 8192}", f"s_add_u32 s51, s34, {sreg}"]
        if j == 1 and advance and not opt.kvsame: g += [f"s_add_u32 {sreg}, {sreg}, 16384", f"s_and_b32 {sreg}, {sreg}, 0x3ffff"]
        if j == 4: g += [f"s_add_u32 m0, s37, {(u % 3) * 8192 + 4096}", "s_add_u32 s51, s51, 4096"]
        vo = VOFFK + j % 4 if kind == "K" else VOFFV
        if opt.cap and u >= 3: g.append(f"s_waitcnt vmcnt({opt.cap - 1})")
        g.append(f"buffer_load_dwordx4 v{vo}, {srdn}, s51 offen offset:{(j % 4)*1024}{opt.kv(kind)} lds ; @u{u}")
        G.append("\n".join(g))
    return G

def softmax(qb, uid, first):
    t = TMAX + qb; L = []
    L.append(f"v_max3_f32 v{t}, v{Sreg(qb,0)}, v{Sreg(qb,1)}, v{Sreg(qb,2)}")
    for i in range(3, 15, 2): L.append(f"v_max3_f32 v{t}, v{t}, v{Sreg(qb,i)}, v{Sreg(qb,i+1)}")
    L.append(f"v_max_f32 v{t}, v{t}, v{Sreg(qb,15)}")
    if first:
        L += [f"v_mov_b32 v{VT}, v{t}", f"v_permlane32_swap_b32 v{t}, v{VT}", f"v_max_f32 v{t}, v{t}, v{VT}"]
        L += [f"v_sub_f32 v{NM+16*qb+i}, 0, v{t}" for i in range(16)]
        L += [f"v_sub_f32 v{Sreg(qb,i)}, v{Sreg(qb,i)}, v{t}" for i in range(16)]
    else:
        L.append(f"v_cmp_lt_f32 vcc, s43, v{t}")
        L.append(f"s_cbranch_vccz L_sk{uid}_{qb}\ns_call_b64 s[40:41], L_rare{qb}\nLABEL L_sk{uid}_{qb}")
    for i in range(9):
        if i < 8: L += [f"v_exp_f32 v{Sreg(qb,2*i)}, v{Sreg(qb,2*i)}", f"v_exp_f32 v{Sreg(qb,2*i+1)}, v{Sreg(qb,2*i+1)}"]
        if i > 0:
            j = i - 1; pa, pb = Sreg(qb, 2*j), Sreg(qb, 2*j+1)
            L += [f"v_add_f32 v{LSUM+qb}, v{LSUM+qb}, v{pa}", f"v_add_f32 v{LSUM+qb}, v{LSUM+qb}, v{pb}",
                  f"v_cvt_pk_bf16_f32 v{Sreg(qb, 8*(j//4) + j%4)}, v{pa}, v{pb}"]
    return L

def kreads(t): return [f"ds_read_b128 {ar(KF+4*s,4)}, v{VKA+s} offset:{((2*t) % 3) * 8192}" for s in range(8)]
def vreads(t):
    return [f"ds_read_b64_tr_b16 {ar(VF + db*8 + s*4 + k*2, 2)}, v{VVA+db} offset:{((2*t+1) % 3)*8192 + 4096*s + 2048*k}"
            for s in range(2) for db in range(4) for k in range(2)]
def qk(qb, first):
    return [f"v_mfma_f32_32x32x16_bf16 {vr(Sreg(qb,0),16)}, {ar(KF+4*ks,4)}, {vr(Qreg(qb,ks),4)}, " +
            (vr(Sreg(qb,0),16) if ks else "0" if first else vr(NM+16*qb,16)) for ks in range(8)]
def pv(qb, first):
    return [f"v_mfma_f32_32x32x16_bf16 {ar(Oacc(db,qb),16)}, {ar(VF+db*8+s*4,4)}, {vr(Sreg(qb,8*s),4)}, " +
            ("0" if first and s == 0 else ar(Oacc(db,qb),16)) for s in range(2) for db in range(4)]

def tile_body(a, opt, t, carry, extra=()):
    first = t == 0
    M = qk(0, first) + (pv(2, t == 1) if t else [None]*8) + qk(1, first) + pv(0, first) + qk(2, first) + pv(1, first)
    sl = [[] for _ in range(48)]
    spread(sl, carry, 0, 9)
    if 2*t + 3 <= 31: spread(sl, dma_unit(2*t + 3, opt), 8, 28)
    spread(sl, [f"WAITVM u{2*t+1}"] + vreads(t), 16, 22)
    if 2*t + 4 <= 31: spread(sl, dma_unit(2*t + 4, opt), 28, 48)
    if t < 15: spread(sl, [f"WAITVM u{2*t+2}"] + kreads(t + 1), 40, 44)
    spread(sl, softmax(0, t, first), 9, 25)
    spread(sl, softmax(1, t, first), 25, 41)
    s2 = softmax(2, t, first)
    tmp = [[] for _ in range(16)]; spread(tmp, s2, 0, 16)
    for i in range(7): sl[41 + i] += tmp[i]
    for e in extra: spread(sl, *e)
    for i in range(48):
        if M[i]: emit(a, [M[i]])
        emit(a, sl[i])
    return [x for y in tmp[7:] for x in y]

def rare(a, qb):
    a.label(f"L_rare{qb}", reset=True)
    t = TMAX + qb; u = VT
    a.e(f"""s_nop 15
            v_mov_b32 v{u}, v{t}
            s_nop 1
            v_permlane32_swap_b32 v{t}, v{u}
            s_nop 1
            v_max3_f32 v{t}, v{t}, v{u}, 0
            v_sub_f32 v{u+2}, 0, v{t}
            v_exp_f32 v{u+2}, v{u+2}""")
    for i in range(16):
        a.e(f"v_sub_f32 v{NM+16*qb+i}, v{NM+16*qb+i}, v{t}\nv_sub_f32 v{Sreg(qb,i)}, v{Sreg(qb,i)}, v{t}")
    a.e(f"v_mul_f32 v{LSUM+qb}, v{LSUM+qb}, v{u+2}")
    for db in range(4):
        for r in range(0, 16, 2):
            o = Oacc(db, qb) + r
            a.e(f"""v_accvgpr_read_b32 v{u}, a{o}
                    v_accvgpr_read_b32 v{u+1}, a{o+1}
                    v_mul_f32 v{u}, v{u}, v{u+2}
                    v_mul_f32 v{u+1}, v{u+1}, v{u+2}
                    v_accvgpr_write_b32 a{o}, v{u}
                    v_accvgpr_write_b32 a{o+1}, v{u+1}""")
    a.e("s_nop 3\ns_setpc_b64 s[40:41]")

def kernel(a, name, opt):
    a.raw(".text"); a.raw(f".globl {name}"); a.raw(".p2align 8"); a.raw(f".type {name},@function")
    a.label(name, reset=True)
    a.e("""s_load_dwordx2 s[72:73], s[0:1], 96
           s_load_dwordx4 s[44:47], s[0:1], 80
           s_memrealtime s[48:49]
           s_cmp_ge_u32 s2, 256
           s_cbranch_scc1 L_exit
           s_bitcmp1_b32 s2, 2
           s_cbranch_scc1 L_side1""")
    for side in range(2):
        opt.side = side
        n0 = len(a.out)
        if side: a.raw(".p2align 8"); a.label("L_side")
        a.hist = []; a.vm = []
        body(a, opt)
        import re
        for i in range(n0, len(a.out)):
            a.out[i] = re.sub(r"\b(L_[a-z_0-9]+)\b", lambda m: m.group(1) + f"x{side}" if m.group(1) != "L_side" else "L_side1", a.out[i])
    a.label("L_exit")
    a.e("s_endpgm")

def body(a, opt):
    a.e(f"""s_load_dwordx8 s[56:63], s[0:1], {40*opt.side}
            s_load_dwordx2 s[76:77], s[0:1], {40*opt.side + 32}
            s_getpc_b64 s[50:51]""")
    a.label("L_pc0")
    if opt.codetouch:
        a.e("v_lshlrev_b32 v111, 7, v0\nv_min_u32 v111, L_end-L_pc0-4, v111\nglobal_load_dword v87, v111, s[50:51] nt ; @junk")
    if opt.stamps: a.e(f"{opt.clk} s[{STB}:{STB+1}]")
    VW, VXA, VXB, AW, AX, VD = 72, 73, 74, 75, 77, 87
    FA, FB, ACC = 32, 52, 112
    G, L15, H, L31, G1, R, C4 = 88, 89, 90, 91, 92, 81, 82
    a.e(f"""v_lshrrev_b32 v1, 6, v0
            s_and_b32 s3, s2, 7
            s_lshr_b32 s29, s3, 2
            s_and_b32 s30, s3, 3
            v_readfirstlane_b32 s28, v1
            s_lshr_b32 s3, s2, 3
            s_lshr_b32 s31, s3, 2
            s_and_b32 s32, s3, 3
            v_and_b32 v1, 63, v0
            v_lshrrev_b32 v{G}, 4, v1
            v_lshrrev_b32 v56, 3, v1
            v_and_b32 v57, 7, v1
            v_and_b32 v{G1}, 1, v{G}
            v_lshlrev_b32 v59, 2, v{G1}
            v_xor_b32 v59, v57, v59
            v_lshlrev_b32 v59, 4, v59
            v_lshl_add_u32 v{VW}, v56, 13, v59
            v_mul_u32_u24 v60, 1152, v56
            v_xor_b32 v61, v57, v{G}
            s_and_b32 s3, s28, 1
            s_lshl_b32 s3, s3, 2
            v_xor_b32 v61, s3, v61
            v_lshl_add_u32 v{VXA}, v61, 4, v60
            v_xor_b32 v61, 4, v61
            v_lshl_add_u32 v{VXB}, v61, 4, v60
            s_mul_i32 s37, s28, 24576
            s_lshl_b32 s33, s30, 3
            s_lshl_b32 s3, s32, 1
            s_add_u32 s33, s33, s3              ; h0
            s_add_u32 s74, s3, s31              ; b + 2p
            s_lshl_b32 s52, s33, 8
            s_lshl_b32 s3, s28, 7
            s_add_u32 s52, s52, s3
            s_mul_i32 s53, s31, 110592
            s_mul_i32 s3, s28, 27648
            s_add_u32 s53, s53, s3
            s_mul_i32 s54, s28, 3072
            s_add_u32 s54, s54, 98304
            s_mov_b32 s18, 884736
            s_mov_b32 s19, 0x20000
            s_mov_b32 s22, 4718592
            s_mov_b32 s23, 0x20000""")
    if opt.krot == 0: a.e("s_mov_b32 s74, 0")
    elif opt.krot == 1: a.e("s_cmp_ge_u32 s74, 9\ns_cselect_b32 s3, 9, 0\ns_sub_u32 s74, s74, s3")
    elif opt.krot == 3: a.e("s_and_b32 s74, s74, 1\ns_lshl_b32 s74, s74, 2")
    a.e("s_waitcnt lgkmcnt(0)")
    for d, o in ((20, 6), (16, 0), (8, 2), (12, 4)):
        a.e(f"s_mov_b64 s[{d}:{d+1}], s[{56+o}:{57+o}]")
    a.e("""s_mov_b64 s[78:79], s[44:45]
           s_mov_b64 s[80:81], s[46:47]
           s_or_b32 s75, s48, 1
           s_mov_b64 s[68:69], s[50:51]""")
    def stage(c):
        buf = c % 3; Gs = []
        for j in range(8):
            g = ["s_lshl_b32 s4, s74, 19", "s_add_u32 s4, s4, s52"] if j == 0 else ["s_add_u32 s4, s4, 65536"]
            g += [f"s_add_u32 m0, s37, {buf*8192 + j*1024}", f"buffer_load_dwordx4 v{VW}, s[20:23], s4 offen{opt.wnt} lds ; @s{c}"]
            Gs.append("\n".join(g))
        for i in range(3):
            g = ["s_lshl_b32 s5, s74, 7", "s_add_u32 s5, s5, s53"] if i == 0 else [f"s_add_u32 s5, s5, {8*1152}"]
            g += [f"s_add_u32 m0, s54, {buf*12288 + i*1024}", f"buffer_load_dwordx4 v{VXA if i != 1 else VXB}, s[16:19], s5 offen{opt.wnt} lds ; @s{c}"]
            if i == 2: g += ["s_add_u32 s74, s74, 1", "s_cmp_eq_u32 s74, 9", "s_cselect_b32 s74, 0, s74"]
            Gs.append("\n".join(g))
        return Gs
    emit(a, stage(0))
    srd(a, 56, "s80", "s81", 256)
    a.e("""s_lshl_b32 s3, s2, 8
           v_add_u32 v106, s3, v0
           v_min_u32 v106, 1, v106
           v_lshlrev_b32 v106, 12, v106
           v_mov_b32 v107, s75
           buffer_store_dword v107, v106, s[56:59], 0 offen sc1""")
    emit(a, stage(1))
    for d in (8, 12): a.e(f"s_mov_b32 s{d+2}, {1 << 26}\ns_mov_b32 s{d+3}, 0x20000")
    srd(a, 24, "s72", "s73", WS_BYTES)
    srd(a, 60, "s76", "s77", 4718592)
    a.e(f"""v_and_b32 v{L15}, 15, v1
            v_lshrrev_b32 v{H}, 5, v1
            v_and_b32 v{L31}, 31, v1
            v_lshlrev_b32 v54, 8, v{G}
            v_xor_b32 v55, v{L15}, v{G}
            v_lshl_add_u32 v{VOFFK}, v55, 4, v54
            v_xor_b32 v{VOFFK+1}, 64, v{VOFFK}
            v_xor_b32 v{VOFFK+2}, 128, v{VOFFK}
            v_xor_b32 v{VOFFK+3}, 192, v{VOFFK}
            v_lshlrev_b32 v55, 2, v{G}
            v_xor_b32 v55, v{L15}, v55
            v_lshl_add_u32 v{VOFFV}, v55, 4, v54
            v_lshlrev_b32 v{VOFFT}, 7, v1
            s_lshr_b32 s7, s28, 1
            s_add_u32 s33, s33, s7              ; h
            s_lshl_b32 s34, s31, 5
            s_add_u32 s34, s34, s33
            s_lshl_b32 s34, s34, 18
            s_and_b32 s6, s28, 1
            s_lshl_b32 s3, s6, 13
            s_add_u32 s34, s34, s3""")
    if opt.rot:
        a.e("""s_lshl_b32 s3, s2, 2
               s_add_u32 s3, s3, s7
               s_mul_i32 s3, s3, 0x1e3779b1
               s_lshr_b32 s4, s3, 15
               s_xor_b32 s3, s3, s4
               s_mul_i32 s3, s3, 0x2c1b3c6d
               s_lshr_b32 s3, s3, 20
               s_and_b32 s3, s3, 15
               s_lshl_b32 s35, s3, 14""")
    else: a.e("s_mov_b32 s35, 0")
    a.e(f"""s_mov_b32 s36, s35
            v_xor_b32 v55, v{H}, v{L15}
            v_lshlrev_b32 v55, 4, v55
            v_lshl_add_u32 v55, v{L31}, 8, v55
            v_add_u32 v{VKA}, s37, v55""")
    for s in range(1, 8): a.e(f"v_xor_b32 v{VKA+s}, {32*s}, v{VKA}")
    a.e(f"""v_lshrrev_b32 v{R}, 2, v{L15}
            v_and_b32 v{C4}, 3, v1
            v_lshl_add_u32 v59, v{H}, 2, v{R}
            v_lshlrev_b32 v59, 8, v59
            v_lshl_add_u32 v59, v{R}, 6, v59
            v_lshl_add_u32 v59, v{G1}, 5, v59
            v_lshl_add_u32 v59, v{C4}, 3, v59
            s_lshl_b32 s4, s6, 7
            v_xor_b32 v59, s4, v59
            v_add_u32 v{VVA}, s37, v59""")
    for db in range(1, 4): a.e(f"v_xor_b32 v{VVA+db}, {64*db}, v{VVA}")
    a.e(f"""v_lshl_add_u32 v59, v{H}, 3, v{R}
            v_lshlrev_b32 v59, 7, v59
            v_lshrrev_b32 v60, 1, v{R}
            v_lshl_add_u32 v59, v60, 6, v59
            v_lshl_add_u32 v59, v{G1}, 5, v59
            v_lshl_add_u32 v59, v{C4}, 3, v59
            v_add_u32 v{AW}, s37, v59
            v_xor_b32 v{AW+1}, 64, v{AW}
            v_bfe_u32 v60, v1, 1, 3
            v_xor_b32 v60, v60, v{H}
            v_lshlrev_b32 v60, 4, v60
            v_lshl_add_u32 v60, v{L31}, 7, v60
            v_add_u32 v{AX}, 98304, v60""")
    for s in range(1, 4): a.e(f"v_xor_b32 v{AX+s}, {32*s}, v{AX}")
    a.e(f"s_mov_b32 s42, {f2u(CSC):#x}\ns_mov_b32 s43, {f2u(THR_LOG2):#x}")
    for qb in range(3): a.e(f"v_mov_b32 v{LSUM+qb}, 0")
    VO, VL16, AD, VOL = 93, 102, 103, 105
    a.e("""s_mul_i32 s3, s6, 576
           v_add_u32 v50, s3, v1
           s_cmp_eq_u32 s7, 1
           s_cselect_b64 vcc, -1, 0""")
    for i in range(9):
        a.e(f"""v_add_u32 v51, {64*i}, v50
                v_mul_u32_u24 v52, 58255, v51
                v_lshrrev_b32 v52, 20, v52
                v_mul_u32_u24 v53, 18, v52
                v_sub_u32 v53, v51, v53
                v_xor_b32 v54, 1, v53
                v_sub_u32 v54, 17, v54
                v_cndmask_b32 v53, v53, v54, vcc
                v_mul_u32_u24 v52, 1152, v52
                v_lshl_add_u32 v{VO+i}, v53, 4, v52""")
    a.e(f"""v_lshlrev_b32 v{VL16}, 4, v1
            v_lshlrev_b32 v50, 4, v{H}
            v_lshl_add_u32 v50, v{G1}, 2, v50
            v_add_u32 v50, v50, v{R}
            v_mul_u32_u24 v50, 288, v50
            v_lshl_add_u32 v50, v{C4}, 3, v50
            s_mul_i32 s3, s7, 18432
            v_add_u32 v{AD}, s3, v50
            v_add_u32 v{AD+1}, 90112, v{AD}
            v_lshlrev_b32 v{VOL}, 10, v{G1}
            v_lshl_add_u32 v{VOL}, v{H}, 8, v{VOL}
            v_lshl_add_u32 v{VOL}, v{L15}, 4, v{VOL}
            v_min_u32 v108, 1, v0
            v_lshlrev_b32 v108, 12, v108
            s_lshr_b32 s3, s2, 3
            s_lshl_b32 s3, s3, 2
            s_add_u32 s3, s3, s28
            s_mul_i32 s3, s3, 9216
            v_add_u32 v109, s3, v{VOFFT}
            v_add_u32 v110, 8192, v109
            v_cmp_gt_u32 vcc, 8, v1
            v_cndmask_b32 v110, -1, v110, vcc
            v_lshlrev_b32 v111, 7, v0
            v_add_u32 v111, L_tail-L_pc0, v111
            v_min_u32 v111, L_end-L_pc0-4, v111
            s_lshl_b32 s4, s30, 4
            s_add_u32 s4, s4, s7
            s_mul_i32 s4, s4, {64*1152}
            s_mul_i32 s3, s32, 288
            s_add_u32 s64, s4, s3
            s_mul_i32 s65, s28, 9216
            s_lshl_b32 s66, s32, 1
            s_mul_i32 s67, s30, 1179648""")
    wtouch = lambda pol: [f"buffer_load_dword v{VD}, v{r}, s[60:63], s67 offen{pol} ; @junk" for r in (109, 110)]
    BUF = (126976, 90112, 0, 36864)
    def wstage(st):
        Gs = []
        for i in range(9):
            g = [f"s_add_u32 s4, s66, {st}", "s_and_b32 s4, s4, 7", f"s_mul_i32 s4, s4, {128*1152}", "s_add_u32 s4, s4, s64"] if i == 0 else []
            g += [f"s_add_u32 m0, s65, {BUF[st % 4] + i*1024}", f"buffer_load_dwordx4 v{VO+i}, s[60:63], s4 offen lds ; @w{st}"]
            Gs.append("\n".join(g))
        return Gs
    def frag_reads(c, s, F):
        buf = c % 3
        L = [f"ds_read_b64_tr_b16 {vr(F + db*4 + k*2, 2)}, v{AW+db} offset:{buf*8192 + (16*s + 4*k) * 128}" for db in range(2) for k in range(2)]
        return L + [f"ds_read_b128 {vr(F + 8 + qb*4, 4)}, v{AX+s} offset:{buf*12288 + qb*4096}" for qb in range(3)]
    a.wait(vmtags=["s0"]); a.e("s_barrier")
    stamp(a, "q0", opt)
    emit(a, frag_reads(0, 0, FA))
    sl = [[] for _ in range(216 + 24)]
    spread(sl, stage(2), 0, 18)
    for c in range(9):
        for s in range(4):
            F, nF = (FA, FB) if s % 2 == 0 else (FB, FA)
            k0 = (c*4 + s) * 6
            if s == 3:
                a.wait(vmtags=[f"s{c+1}"], lg0=True)
                if c < 8: a.e("s_barrier")
                stamp(a, f"c{c}", opt)
                f = []
                if c == 0 and opt.codetouch: f += [f"global_load_dword v{VD}, v111, s[68:69] ; @junk"]
                if c == opt.wot + opt.regap and opt.wot >= 0: f += wtouch("")
                f += stage(c + 3) if c + 3 <= 8 else dma_unit(c - 6, opt) if c < 8 else []
                if c == opt.wot: f += wtouch(" nt")
                spread(sl, f, k0, k0 + 24)
                if c < 8: emit(a, frag_reads(c + 1, 0, nF))
            else:
                emit(a, frag_reads(c, s + 1, nF))
            i = 0
            for db in range(2):
                for qb in range(3):
                    d = vr(ACC + (db*3 + qb)*16, 16)
                    emit(a, [f"v_mfma_f32_32x32x16_bf16 {d}, {vr(F+db*4,4)}, {vr(F+8+qb*4,4)}, " + ("0" if (c == 0 and s == 0) else d)])
                    emit(a, sl[k0 + i]); i += 1
    assert not any(sl[216:])
    a.e("s_barrier")
    a.e(f"""s_lshl_b32 s3, s6, 3
            v_xor_b32 v55, s3, v{L15}
            v_lshlrev_b32 v55, 4, v55
            v_lshl_add_u32 v55, v{L31}, 8, v55
            v_lshl_add_u32 v55, v{H}, 3, v55
            s_mul_i32 s3, s7, 24576
            s_add_u32 s3, s3, 98304
            v_add_u32 v55, s3, v55
            v_mov_b32 v64, s42""")
    for db in range(2):
        for i in range(4):
            a.e(f"v_xor_b32 v56, {(4*db + i)*16}, v55")
            for qb in range(3):
                r = ACC + (db*3 + qb)*16 + 4*i; tq = 58 + 2 * qb
                a.e(f"""v_pk_mul_f32 v[{r}:{r+1}], v[{r}:{r+1}], v[64:65] op_sel_hi:[1,0]
                        v_pk_mul_f32 v[{r+2}:{r+3}], v[{r+2}:{r+3}], v[64:65] op_sel_hi:[1,0]
                        v_cvt_pk_bf16_f32 v{tq}, v{r}, v{r+1}
                        v_cvt_pk_bf16_f32 v{tq+1}, v{r+2}, v{r+3}
                        ds_write_b64 v56, v[{tq}:{tq+1}] offset:{qb*8192}""")
    a.e("s_sub_u32 s3, s3, s37")
    for s in range(8): a.e(f"v_add_u32 v{32+s}, s3, v{VKA+s}")
    a.e("s_waitcnt lgkmcnt(0)\ns_barrier")
    for qb in range(3):
        for s in range(8): a.e(f"ds_read_b128 {vr(Qreg(qb,s),4)}, v{32+s} offset:{qb*8192}")
    stamp(a, "qx", opt)
    emit(a, dma_unit(2, opt))
    a.wait(vmtags=["u0"], lg0=True)
    emit(a, kreads(0))
    stamp(a, "k0", opt)
    carry = tile_body(a, opt, 0, [])
    stamp(a, "t0", opt)
    if opt.unroll:
        for t in range(1, 13): carry = tile_body(a, opt, t, carry)
    else:
        carry = tile_body(a, opt, 1, carry)
        a.e("s_mov_b32 s46, 4")
        a.raw(".p2align 6"); a.label("L_tile")
        if opt.late:
            a.e(f"s_cmp_lg_u32 s46, {opt.late}\ns_cbranch_scc1 L_nolate")
            keep = list(a.vm); emit(a, wtouch("") + ([f"global_load_dword v{VD}, v111, s[68:69] ; @junk"] if opt.latecode else [])); a.vm = keep
            a.label("L_nolate")
        for t in (2, 3, 4): carry = tile_body(a, opt, t, carry)
        a.e("s_sub_u32 s46, s46, 1\ns_cmp_lg_u32 s46, 0\ns_cbranch_scc1 L_tile")
        for o in a.vm:
            if o.tag and o.tag[0] == "u": o.tag = f"u{int(o.tag[1:]) + 18}"
    if opt.unroll: carry = tile_body(a, opt, 13, carry)
    a.label("L_tail")
    carry = tile_body(a, opt, 14, carry, extra=[(wstage(0), 28, 48)])
    def send(qb):
        return [f"ds_write_b128 v28, {ar(Oacc(2+i,qb) + 4*g, 4)} offset:{((i*3 + qb)*4 + g)*1024}" for i in range(2) for g in range(4)]
    pre = ["buffer_load_dword v106, v108, s[56:59], 0 offen sc1",
           f"v_add_u32 v28, s37, v{VL16}", "s_xor_b32 s3, s28, 1\ns_mul_i32 s38, s3, 24576", f"v_add_u32 v29, s38, v{VL16}",
           "s_lshl_b32 s3, s28, 11\ns_add_u32 s3, s3, 98304", "v_lshlrev_b32 v30, 3, v1", "v_add_u32 v30, s3, v30", "v_xor_b32 v31, 2048, v30"]
    carry = tile_body(a, opt, 15, carry, extra=[(pre, 8, 16), (send(0), 34, 48)])
    sl = [[] for _ in range(8)]
    emit(a, carry[:len(carry)//2])
    spread(sl, carry[len(carry)//2:], 0, 3)
    st = []
    for qb in range(3): st += [f"v_mov_b32 v{3+2*qb}, v{LSUM+qb}", f"v_mov_b32 v{2+2*qb}, v{NM+16*qb}"]
    for qb in range(3): st += [f"v_permlane32_swap_b32 v{LSUM+qb}, v{3+2*qb}"]
    for qb in range(3): st += [f"v_add_f32 v{3+2*qb}, v{LSUM+qb}, v{3+2*qb}", f"ds_write_b64 v30, v[{2+2*qb}:{3+2*qb}] offset:{qb*512}"]
    spread(sl, st + send(1), 3, 8)
    for m, f in zip(pv(2, False), sl): emit(a, [m] + f)
    stamp(a, "t15", opt)
    a.e("s_cmp_lg_u32 s28, 0\ns_cbranch_scc1 L_tag_ok\ns_mov_b32 s4, 0x100000")
    keepvm = list(a.vm)
    a.label("L_tag")
    a.e("""s_waitcnt vmcnt(0)
           v_readfirstlane_b32 s75, v106
           s_cmp_lg_u32 s75, 0
           s_cbranch_scc1 L_tag_put
           buffer_load_dword v106, v108, s[56:59], 0 offen sc1 ; @junk
           s_sub_u32 s4, s4, 1
           s_cmp_lg_u32 s4, 0
           s_cbranch_scc1 L_tag""")
    a.label("L_tag_put")
    a.e("v_mov_b32 v107, s75\nds_write_b32 v30, v107 offset:1536")
    a.label("L_tag_ok"); a.vm = keepvm
    emit(a, send(2))
    for r in range(96): a.e(f"v_accvgpr_read_b32 v{160 + r}, a{r}")
    a.e(f"""s_mov_b32 s5, s7                    ; kh
            s_lshl_b32 s39, s29, 3
            s_add_u32 s39, s39, s31             ; side*8 + b
            s_lshl_b32 s3, s39, 5
            s_add_u32 s3, s3, s33
            s_mul_i32 s52, s3, 24576
            s_mul_i32 s3, s6, 12288
            s_add_u32 s52, s52, s3
            v_add_u32 v27, s38, v{VOL}
            v_mov_b32 v26, 98304""")
    stamp(a, "c_pre", opt)
    a.e("s_waitcnt lgkmcnt(0)\ns_barrier")
    stamp(a, "c_bar", opt)
    for qb in range(3): a.e(f"ds_read_b64 v[{8+2*qb}:{9+2*qb}], v31 offset:{qb*512}")
    a.e("ds_read_b32 v14, v26 offset:1536")
    RC = (32, 48, 64, 112, 128, 144)
    def recv(blk):
        for g in range(4): a.e(f"ds_read_b128 {vr(RC[blk]+4*g,4)}, v29 offset:{(blk*4 + g)*1024}")
    recv(0); recv(1)
    a.auto("v_readfirstlane_b32 s75, v14")
    SC = 16
    for qb in range(3):
        pn, pl, on, ol = 8 + 2*qb, 9 + 2*qb, 2 + 2*qb, 3 + 2*qb
        a.e(f"""v_min_f32 v22, v{on}, v{pn}
                v_sub_f32 v23, v22, v{on}
                v_sub_f32 v24, v22, v{pn}
                v_exp_f32 v23, v23
                v_exp_f32 v24, v24
                v_mul_f32 v{ol}, v{ol}, v23
                v_fmac_f32 v{ol}, v{pl}, v24
                v_rcp_f32 v{ol}, v{ol}
                v_mul_f32 v{SC+2*qb}, v23, v{ol}
                v_mul_f32 v{SC+2*qb+1}, v24, v{ol}""")
    recv(2); recv(3); recv(4); recv(5)
    for blk in range(6):
        i, qb = divmod(blk, 3)
        K = 160 + blk*16; Rr = RC[blk]
        a.wait(lgregs=regs_of(vr(Rr, 16)))
        for r in range(0, 16, 2):
            a.e(f"v_pk_mul_f32 v[{Rr+r}:{Rr+r+1}], v[{Rr+r}:{Rr+r+1}], v[{SC+2*qb}:{SC+2*qb+1}] op_sel:[0,1] op_sel_hi:[1,1]")
        for r in range(0, 16, 2):
            a.e(f"v_pk_fma_f32 v[{K+r}:{K+r+1}], v[{K+r}:{K+r+1}], v[{SC+2*qb}:{SC+2*qb+1}], v[{Rr+r}:{Rr+r+1}] op_sel_hi:[1,0,1]")
        for j in range(8):
            a.e(f"v_cvt_pk_bf16_f32 v{K+8*(j//4)+j%4}, v{K+2*j}, v{K+2*j+1}")
        idx = i*6 + 2*qb
        a.e(f"s_add_u32 s47, s52, {WS_O + idx*1024}")
        for s in range(2):
            a.e(f"buffer_store_dwordx4 {vr(K+8*s,4)}, v{VOL}, s[24:27], s47 offen offset:{512*s} sc1")
            a.e(f"ds_write_b128 v27, {vr(K+8*s,4)} offset:{idx*1024 + 512*s}")
    stamp(a, "comb", opt)
    def publish(tag, foff):
        a.e(f"""s_waitcnt vmcnt(0) lgkmcnt(0)
                s_barrier
                s_cmp_lg_u32 s28, 0
                s_cbranch_scc1 L_pub{tag}
                s_lshl_b32 s3, s2, 7
                s_add_u32 s3, s3, {WS_F + foff}
                v_mov_b32 v15, 0
                v_mov_b32 v14, s75
                buffer_store_dword v14, v15, s[24:27], s3 offen sc1""")
        a.label(f"L_pub{tag}"); a.vm = []
    def ask(foff, mask, shift):
        a.e(f"""s_andn2_b32 s7, s2, {mask}
                s_lshl_b32 s7, s7, 7
                s_add_u32 s7, s7, {WS_F + foff}
                v_and_b32 v13, 3, v1
                v_lshlrev_b32 v13, {7 + shift}, v13
                buffer_load_dword v12, v13, s[24:27], s7 offen sc1""")
    def check(tag):
        a.e("s_mov_b32 s4, 0x100000")
        a.label(f"L_poll{tag}")
        a.e(f"""s_waitcnt vmcnt(0)
                v_cmp_ne_u32 vcc, s75, v12
                s_cbranch_vccz L_got{tag}
                s_sleep 1
                buffer_load_dword v12, v13, s[24:27], s7 offen sc1
                s_sub_u32 s4, s4, 1
                s_cmp_lg_u32 s4, 0
                s_cbranch_scc1 L_poll{tag}""")
        a.label(f"L_got{tag}")
        a.e("s_waitcnt vmcnt(0)")
    publish(1, 0)
    ACC, WF, OF = 112, 16, 0
    a.e(f"""s_xor_b32 s3, s5, 1
            s_mul_i32 s3, s3, 24576
            s_mul_i32 s4, s6, 3072
            s_add_u32 s3, s3, s4
            v_add_u32 v2, s3, v{VL16}""")
    for hp in range(2):
        for kl in range(2):
            for j in range(3):
                a.e(f"ds_read_b128 {ar(OF + ((2*hp+kl)*3+j)*4, 4)}, v2 offset:{hp*49152 + (kl*6 + j)*1024}")
    def wreads(st, kl, F):
        b = BUF[st % 4]
        reg, boff = (AD, b) if b < 65536 else (AD+1, b - 90112)
        return [f"ds_read_b64_tr_b16 {vr(F + nb*4 + 2*k, 2)}, v{reg} offset:{boff + (32*kl + 8*k) * 288 + 32*nb}" for nb in range(9) for k in range(2)]
    emit(a, wreads(0, 0, WF))
    a.e(f"""s_lshl_b32 s3, s39, 2
            s_add_u32 s3, s3, s30
            s_mul_i32 s37, s3, {8*24576}
            s_mul_i32 s3, s5, 12288
            s_add_u32 s37, s37, s3
            s_add_u32 s37, s37, s4""")
    stamp(a, "g0", opt)
    def oload(st):
        Gs = []
        for kl in range(2):
            for j in range(3):
                g = [f"s_add_u32 s47, s66, {st}", "s_and_b32 s47, s47, 7", "s_mul_i32 s47, s47, 24576", "s_add_u32 s47, s47, s37"] if kl + j == 0 else ["s_add_u32 s47, s47, 6144"] if j == 0 else []
                Gs.append("\n".join(g + [f"buffer_load_dwordx4 {ar(OF + ((2*st+kl)*3+j)*4, 4)}, v{VL16}, s[24:27], s47 offen offset:{j*1024} sc1 ; @o{st}"]))
        return Gs
    def gm(st, kl):
        ks = 2*st + kl; F = WF + 36*kl
        return [f"v_mfma_f32_16x16x32_bf16 {vr(ACC + (nb*3+j)*4, 4)}, {vr(F+nb*4,4)}, {ar(OF+(ks*3+j)*4,4)}, " +
                ("0" if ks == 0 else vr(ACC + (nb*3+j)*4, 4)) for nb in range(9) for j in range(3)]
    def half(st, kl, reads, jobs):
        sl = [[] for _ in range(27)]
        spread(sl, reads, 0, 20); spread(sl, jobs, 0, 27)
        a.e("s_waitcnt lgkmcnt(0)")
        for m, f in zip(gm(st, kl), sl): emit(a, [m] + f)
    half(0, 0, wreads(0, 1, WF + 36), wstage(1))
    stamp(a, "g0h", opt)
    a.e("s_waitcnt vmcnt(0) lgkmcnt(0)\ns_barrier")
    w234 = wstage(2) + wstage(3) + wstage(4)
    half(0, 1, wreads(1, 0, WF), w234[:13])
    half(1, 0, wreads(1, 1, WF + 36), w234[13:])
    ask(0, 24, 3)
    stamp(a, "g1h", opt)
    check(1)
    stamp(a, "chk1", opt)
    a.e("s_waitcnt lgkmcnt(0)\ns_barrier")
    emit(a, oload(2))
    half(1, 1, wreads(2, 0, WF), oload(3))
    plan = {(2, 0): ["o4"], (2, 1): ["w5"], (3, 0): ["o5"], (3, 1): ["w6"], (4, 0): ["o6"], (4, 1): ["o7"], (5, 0): ["w7"]}
    jobs = lambda st, kl: [x for j in plan.get((st, kl), []) for x in (oload(int(j[1])) if j[0] == "o" else wstage(int(j[1])))]
    for st in range(2, 8):
        stamp(a, f"g{st}", opt)
        a.wait(vmtags=[f"o{st}"])
        half(st, 0, wreads(st, 1, WF + 36), jobs(st, 0))
        if st < 7:
            a.wait(vmtags=[f"w{st+1}"], lg0=True); a.e("s_barrier")
            half(st, 1, wreads(st + 1, 0, WF), jobs(st, 1))
    a.e(f"""s_lshl_b32 s3, s28, 14
            v_add_u32 v13, s3, v{VL16}
            v_xor_b32 v14, 32768, v13
            s_waitcnt lgkmcnt(0)
            s_barrier""")
    ms = gm(7, 1); ms = [ms[nb*3 + j] for nb in (8, 7, 6, 5, 4, 0, 1, 2, 3) for j in range(3)]
    snd = [f"ds_write_b128 v13, {vr(ACC+(nb*3+j)*4,4)} offset:{((8-nb)*3+j)*1024}" for nb in range(8, 3, -1) for j in range(3)]
    emit(a, ms[:9])
    for k in range(15): emit(a, [ms[9 + k], snd[k]])
    emit(a, ms[24:])
    stamp(a, "gend", opt)
    PT = 512 if opt.pbf16 else 1024
    a.e(f"""s_lshl_b32 s52, s39, 2
            s_add_u32 s52, s52, s32
            s_lshl_b32 s53, s52, 2
            s_add_u32 s53, s53, s30
            s_mul_i32 s53, s53, {54*PT}
            s_mul_i32 s3, s6, {3*PT}
            s_add_u32 s53, s53, s3
            s_mul_i32 s3, s5, {48*PT}
            s_add_u32 s53, s53, s3
            s_add_u32 s47, s53, {WS_P}
            s_mov_b32 s3, {6*PT}
            s_cmp_eq_u32 s5, 1
            s_cselect_b32 s53, {-6*PT}, s3
            v_lshlrev_b32 v9, {3 if opt.pbf16 else 4}, v1
            s_waitcnt lgkmcnt(0)
            s_barrier""")
    for k in range(15): a.e(f"ds_read_b128 {vr(WF+4*k,4)}, v14 offset:{k*1024}")
    for nb in range(5):
        for j in range(3):
            r = ACC + (nb*3+j)*4; q = WF + (nb*3+j)*4
            a.wait(lgregs=regs_of(vr(q, 4)))
            a.e(f"v_pk_add_f32 v[{r}:{r+1}], v[{r}:{r+1}], v[{q}:{q+1}]\nv_pk_add_f32 v[{r+2}:{r+3}], v[{r+2}:{r+3}], v[{q+2}:{q+3}]")
            if opt.pbf16:
                a.e(f"v_cvt_pk_bf16_f32 v{r}, v{r}, v{r+1}\nv_cvt_pk_bf16_f32 v{r+1}, v{r+2}, v{r+3}")
                a.e(f"buffer_store_dwordx2 {vr(r,2)}, v9, s[24:27], s47 offen offset:{j*PT} sc1")
            else:
                a.e(f"buffer_store_dwordx4 {vr(r,4)}, v9, s[24:27], s47 offen offset:{j*PT} sc1")
        if nb < 4: a.e("s_add_u32 s47, s47, s53")
    publish(2, 32768)
    ask(32768, 3, 0)
    a.e(f"""v_and_b32 v10, 15, v1
            v_mul_u32_u24 v10, 2304, v10
            v_lshrrev_b32 v11, 4, v1
            v_lshl_add_u32 v10, v11, 3, v10
            s_mul_i32 s52, s52, {4*54*PT}
            s_add_u32 s52, s52, {WS_P}
            s_mul_i32 s53, s31, {96*2304}
            s_mul_i32 s3, s29, 1152
            s_add_u32 s53, s53, s3
            s_mul_i32 s3, s32, 288
            s_add_u32 s53, s53, s3
            s_lshl_b32 s54, s28, 2
            s_add_u32 s54, s54, s30""")
    srd(a, 8, "s78", "s79", 1769472)
    stamp(a, "pub2", opt)
    check(2)
    stamp(a, "chk2", opt)
    for i in range(4):
        a.e(f"s_add_u32 s{68+i}, s54, {16*i}")
        if i == 3: a.e("s_cmp_ge_u32 s71, 54\ns_cbranch_scc1 L_rd3")
        a.e(f"s_mul_i32 s47, s{68+i}, {PT}\ns_add_u32 s47, s47, s52")
        for o in range(4):
            if opt.pbf16: a.e(f"buffer_load_dwordx2 {vr(16+16*i+4*o+2,2)}, v9, s[24:27], s47 offen sc1")
            else: a.e(f"buffer_load_dwordx4 {vr(16+16*i+4*o,4)}, v9, s[24:27], s47 offen sc1")
            if o < 3: a.e(f"s_add_u32 s47, s47, {54*PT}")
    def fin(i):
        r = 16 + 16*i
        if opt.pbf16:
            for o in range(4):
                b = r + 4*o
                a.e(f"""v_lshlrev_b32 v{b}, 16, v{b+2}
                        v_and_b32 v{b+1}, 0xffff0000, v{b+2}
                        v_lshlrev_b32 v{b+2}, 16, v{b+3}
                        v_and_b32 v{b+3}, 0xffff0000, v{b+3}""")
        for k in range(4): a.e(f"v_add_f32 v{r+k}, v{r+k}, v{r+4+k}\nv_add_f32 v{r+8+k}, v{r+8+k}, v{r+12+k}")
        for k in range(4): a.e(f"v_add_f32 v{r+k}, v{r+k}, v{r+8+k}")
        a.e(f"""v_cvt_pk_bf16_f32 v{r}, v{r}, v{r+1}
                v_cvt_pk_bf16_f32 v{r+1}, v{r+2}, v{r+3}
                s_mul_i32 s3, s{68+i}, 43
                s_lshr_b32 s3, s3, 8
                s_mul_i32 s4, s3, 6
                s_sub_u32 s4, s{68+i}, s4
                s_mul_i32 s4, s4, {16*2304}
                s_lshl_b32 s3, s3, 5
                s_add_u32 s47, s53, s3
                s_add_u32 s47, s47, s4
                buffer_store_dwordx2 v[{r}:{r+1}], v10, s[8:11], s47 offen""")
    a.e("s_waitcnt vmcnt(0)")
    fin(3)
    a.label("L_rd3")
    a.e("s_waitcnt vmcnt(0)")
    for i in range(3): fin(i)
    stamp(a, "end", opt)
    if opt.stamps:
        a.e(f"s_lshl_b32 s3, s2, 2\ns_add_u32 s3, s3, s28\ns_lshl_b32 s3, s3, 7\ns_add_u32 s3, s3, {WS_STAMP}\nv_mov_b32 v0, 0")
        for i in range(1 + len(opt.sset)):
            a.e(f"v_mov_b32 v2, s{STB+2*i}\nv_mov_b32 v3, s{STB+1+2*i}\nbuffer_store_dwordx2 v[2:3], v0, s[24:27], s3 offen offset:{8*i}\ns_waitcnt vmcnt(0)")
    a.label("L_done")
    a.e("s_endpgm")
    for qb in range(3): rare(a, qb)
    a.label("L_end")

def build(opt):
    a = Asm()
    a.raw("; @launch grid=(256,1,1) block=(256,1,1) lds=163840")
    a.raw('.amdgcn_target "amdgcn-amd-amdhsa--gfx950"')
    kernel(a, NAME + "_kernel", opt)
    a.raw('.section .rodata,"a"\n.p2align 6')
    a.raw("\n".join([f".amdhsa_kernel {NAME}_kernel", "  .amdhsa_next_free_vgpr 512", "  .amdhsa_next_free_sgpr 102",
        "  .amdhsa_accum_offset 256", "  .amdhsa_group_segment_fixed_size 0", "  .amdhsa_kernarg_size 104",
        "  .amdhsa_user_sgpr_count 2", "  .amdhsa_user_sgpr_kernarg_segment_ptr 1",
        "  .amdhsa_system_sgpr_workgroup_id_x 1", ".end_amdhsa_kernel"]))
    return a.text(), a

if __name__ == "__main__":
    opt = Opt()
    out = sys.argv[1] if len(sys.argv) > 1 else "k.s"
    for kv in sys.argv[2:]:
        k, v = kv.split("=", 1); assert hasattr(opt, k), k
        setattr(opt, k, eval(v))
    t, a = build(opt)
    open(out, "w").write(t)
    print(out, "lines", t.count("\n"), "pad", a.npad)
```

```python
import sys, struct, math
sys.path.insert(0, "dev")
from asmlib import Asm, spread, regs_of, level_fill
import gen5
from gen5 import (NAME, f2u, CSC, THR_LOG2, WS_BYTES, WS_O, WS_P, WS_F, WS_STAMP, STB, vr, ar, srd, stamp, emit,
                  VOFFK, VOFFV, VKA, VVA, LSUM, TMAX, VT, NM, S0, Q0, KF, VF, Sreg, Qreg, Oacc, softmax, qk, pv, rare)

class Opt:
    wp = "pppp"
    noB = False
    stamps = False
    sset = ['q0', 'k0', 't15', 'comb', 'join', 'chk1', 'gend', 'pub2', 'end']
    thr0 = -9.0
    thr1 = 1.5
    clk = "s_memrealtime"
    rot = True
    krot = 3
    pbf16 = True
    cap = 0
    kvsame = False
    unroll = False
    a0at = 2
    late = 0
    prio = 0
    gate = 12
    pace = 1.0
    d1 = (8, 10, 12, 14, 22, 24, 26, 27)
    d2 = (29, 31, 33, 35, 37, 39, 44, 47)
    dcost = 4.0
    acct = 0
    w0 = 10
    askat = 2
    fewwait = True
    vwin = (16, 22)
    kwin = (40, 44)
    tpol = ''
    wopol = ''

SLOT = 16384
STG = lambda i: 45056 + 28672 * i
TOP = 159744
SB = (122880, 0, 86016, 49152)
NS = 3
YB = 49152

def dma_unit(u, opt):
    kind = "KV"[u % 2]; sreg = "s36" if kind == "K" else "s35"
    srdn = "s[8:11]" if kind == "K" else "s[12:15]"
    G = []
    for j in range(8):
        g = []
        if j == 0: g += [f"s_add_u32 m0, s37, {(u % NS) * SLOT}", f"s_add_u32 s51, s34, {sreg}"]
        if j == 1 and not opt.kvsame: g += [f"s_add_u32 {sreg}, {sreg}, 16384", f"s_and_b32 {sreg}, {sreg}, 0x3ffff"]
        if j == 4: g += [f"s_add_u32 m0, s37, {(u % NS) * SLOT + 4096}", "s_add_u32 s51, s51, 4096"]
        vo = VOFFK + j % 4 if kind == "K" else VOFFV
        if opt.cap and u >= 3: g.append(f"s_waitcnt vmcnt({opt.cap - 1})")
        g.append(f"buffer_load_dwordx4 v{vo}, {srdn}, s51 offen offset:{(j % 4)*1024} nt lds ; @u{u}")
        G.append("\n".join(g))
    return G
def kreads(t): return [f"ds_read_b128 {ar(KF+4*s,4)}, v{VKA+s} offset:{((2*t) % NS) * SLOT}" for s in range(8)]
def vreads(t):
    return [f"ds_read_b64_tr_b16 {ar(VF + db*8 + s*4 + k*2, 2)}, v{VVA+db} offset:{((2*t+1) % NS)*SLOT + 4096*s + 2048*k}"
            for s in range(2) for db in range(4) for k in range(2)]
def tile_body(a, opt, t, carry, extra=()):
    first = t == 0
    M = qk(0, first) + (pv(2, t == 1) if t else [None]*8) + qk(1, first) + pv(0, first) + qk(2, first) + pv(1, first)
    W = opt.w0
    sl = [[] for _ in range(48 + W)]
    def at(G, slots):
        for g, k in zip(G, slots): sl[k].append(g)
    if 2*t + NS <= 31: at(dma_unit(2*t + NS, opt), opt.d1)
    spread(sl, [f"WAITVM u{2*t+1}"] + vreads(t), *opt.vwin)
    if 2*t + NS + 1 <= 31: at(dma_unit(2*t + NS + 1, opt), opt.d2)
    if t < 15: spread(sl, [f"WAITVM u{2*t+2}"] + kreads(t + 1), *opt.kwin)
    sl[46].append("s_add_u32 s45, s45, 1\nv_mov_b32 v27, s45\nds_write_b32 v109, v27 offset:16")
    if 1 <= t <= 14:
        sl[44].append("ds_read_b64 v[30:31], v26")
        sl[47].append(f"""AUTO v_min_u32 v30, v30, v31
s_add_u32 s38, s38, s50
v_readfirstlane_b32 s3, v30
s_lshl_b32 s3, s3, 2
s_cmp_ge_i32 s3, s38
s_cbranch_scc1 L_go{t}
s_call_b64 s[40:41], L_hold
LABEL L_go{t}""")
    for e in extra: spread(sl, *e)
    for i, x in enumerate(carry): sl[i] = x + sl[i]
    ghost = {48 + k: g for g, k in zip(dma_unit(4, opt), opt.d1) if k < W}
    for k, g in ghost.items(): sl[k].append(g)
    level_fill(sl, softmax(0, t, first), W, W + 16, opt.dcost)
    level_fill(sl, softmax(1, t, first), W + 16, W + 32, opt.dcost)
    level_fill(sl, softmax(2, t, first), W + 32, W + 48, opt.dcost)
    for k in ghost: sl[k] = sl[k][1:]
    for i in range(48):
        if opt.fewwait:
            if i == 0: a.wait(lgregs=regs_of(ar(KF, 32)))
            if i == 24: a.wait(lgregs=regs_of(ar(VF, 32)))
        if M[i]: emit(a, [M[i]])
        for x in sl[i]:
            if opt.acct and x.startswith("WAITVM"):
                keep = list(a.lg)
                a.e("s_memtime s[94:95]"); emit(a, [x]); a.e("s_memtime s[96:97]\ns_waitcnt lgkmcnt(0)\ns_sub_u32 s96, s96, s94")
                r = 98 if int(x.split("u")[1]) % 2 else 100
                a.e(f"s_add_u32 s{r}, s{r}, s96")
            elif opt.acct == 2 and "lds ;" in x:
                a.e("s_memtime s[94:95]"); emit(a, [x]); a.e("s_memtime s[96:97]\ns_waitcnt lgkmcnt(0)\ns_sub_u32 s96, s96, s94\ns_add_u32 s92, s92, s96")
            else: emit(a, [x])
    return sl[48:]

def save(a): return (list(a.hist), list(a.lg), list(a.vm))
def load(a, st): a.hist, a.lg, a.vm = (list(x) for x in st)

def kernel(a, name, opt):
    assert opt.thr0 + opt.thr1 * (int(opt.pace * 7) - 1) <= 0
    a.raw(".text"); a.raw(f".globl {name}"); a.raw(".p2align 8"); a.raw(f".type {name},@function")
    a.label(name, reset=True)
    a.e("""s_load_dwordx8 s[56:63], s[0:1], 0
           s_load_dwordx8 s[64:71], s[0:1], 40
           s_load_dwordx2 s[72:73], s[0:1], 96
           s_load_dwordx2 s[40:41], s[0:1], 32
           s_load_dwordx2 s[42:43], s[0:1], 72
           s_load_dwordx4 s[44:47], s[0:1], 80
           s_memrealtime s[48:49]
           s_cmp_ge_u32 s2, 256
           s_cbranch_scc1 L_done""")
    if opt.stamps: a.e(f"{opt.clk} s[{STB}:{STB+1}]")
    VW, VXA, VXB, AW, AX, VD = 72, 73, 74, 76, 64, 111
    G, L15, H, L31, G1, R, C4 = 88, 89, 90, 91, 92, 81, 82
    VFO, VFP = 109, 110
    a.e(f"""v_lshrrev_b32 v1, 6, v0
            s_and_b32 s3, s2, 7
            s_lshr_b32 s29, s3, 2
            s_and_b32 s30, s3, 3
            v_readfirstlane_b32 s28, v1
            s_lshr_b32 s3, s2, 3
            s_lshr_b32 s31, s3, 2
            s_and_b32 s32, s3, 3
            v_and_b32 v1, 63, v0
            v_lshrrev_b32 v{G}, 4, v1
            v_and_b32 v{L15}, 15, v1
            v_lshlrev_b32 v55, 2, v{G}
            v_xor_b32 v55, v{L15}, v55
            v_lshlrev_b32 v55, 4, v55
            v_lshl_add_u32 v{VW}, v{G}, 13, v55
            v_lshl_add_u32 v{VOFFV}, v{G}, 8, v55
            v_lshrrev_b32 v56, 3, v1
            v_and_b32 v57, 7, v1
            v_mul_u32_u24 v60, 1152, v56
            v_xor_b32 v61, v57, v{G}
            s_and_b32 s6, s28, 1
            s_lshr_b32 s7, s28, 1
            s_lshl_b32 s3, s6, 2
            v_xor_b32 v61, s3, v61
            v_lshl_add_u32 v{VXA}, v61, 4, v60
            v_xor_b32 v61, 4, v61
            v_lshl_add_u32 v{VXB}, v61, 4, v60
            s_lshl_b32 s33, s30, 3
            s_lshl_b32 s3, s32, 1
            s_add_u32 s33, s33, s3              ; head X
            s_add_u32 s74, s3, s31              ; b + 2p
            s_lshl_b32 s52, s33, 8
            s_lshl_b32 s3, s28, 17
            s_add_u32 s52, s52, s3
            s_mul_i32 s53, s31, 110592
            s_mul_i32 s3, s28, 27648
            s_add_u32 s53, s53, s3              ; x rows 24w..
            s_lshl_b32 s54, s28, 12
            s_mul_i32 s55, s28, 3072
            s_mov_b32 s18, 884736
            s_mov_b32 s19, 0x20000
            s_mov_b32 s22, 4718592
            s_mov_b32 s23, 0x20000""")
    if opt.krot == 0: a.e("s_mov_b32 s74, 0")
    elif opt.krot == 1: a.e("s_cmp_ge_u32 s74, 9\ns_cselect_b32 s3, 9, 0\ns_sub_u32 s74, s74, s3")
    elif opt.krot == 3: a.e("s_and_b32 s74, s74, 1\ns_lshl_b32 s74, s74, 2")
    a.e("s_cmp_eq_u32 s29, 0\ns_waitcnt lgkmcnt(0)")
    for d, o in ((20, 6), (16, 0), (8, 2), (12, 4)):
        a.e(f"s_cselect_b32 s{d}, s{56+o}, s{64+o}\ns_cselect_b32 s{d+1}, s{57+o}, s{65+o}")
    a.e("""s_cselect_b32 s76, s40, s42
           s_cselect_b32 s77, s41, s43
           s_mov_b64 s[78:79], s[44:45]
           s_mov_b64 s[80:81], s[46:47]
           s_or_b32 s75, s48, 1""")
    def stage(tag, buf, nw, nx, pw='', px=''):
        Gs = []
        for j in range(nw):
            g = ["s_lshl_b32 s4, s74, 19", "s_add_u32 s4, s4, s52"] if j == 0 else ["s_add_u32 s4, s4, 32768"]
            g += [f"s_add_u32 m0, s54, {STG(buf) + j*1024}", f"buffer_load_dwordx4 v{VW}, s[20:23], s4 offen{pw} lds ; @{tag}"]
            Gs.append("\n".join(g))
        for i in range(nx):
            g = ["s_lshl_b32 s5, s74, 7", "s_add_u32 s5, s5, s53"] if i == 0 else [f"s_add_u32 s5, s5, {8*1152}"]
            g += [f"s_add_u32 m0, s55, {STG(buf) + 16384 + i*1024}", f"buffer_load_dwordx4 v{VXB if i % 2 else VXA}, s[16:19], s5 offen{px} lds ; @{tag}"]
            if i == nx - 1: g += ["s_add_u32 s74, s74, 1", "s_cmp_eq_u32 s74, 9", "s_cselect_b32 s74, 0, s74"]
            Gs.append("\n".join(g))
        return Gs
    P = lambda ch: " nt" if ch == "n" else ""
    stA = lambda c: stage(f"s{c}", c % 4, 4, 3, P(opt.wp[0]), P(opt.wp[1]))
    emit(a, stA(0) + stA(1))
    srd(a, 56, "s80", "s81", 256)
    a.e("""s_lshl_b32 s3, s2, 8
           v_add_u32 v106, s3, v0
           v_min_u32 v106, 1, v106
           v_lshlrev_b32 v106, 12, v106
           v_mov_b32 v107, s75
           buffer_store_dword v107, v106, s[56:59], 0 offen sc1""")
    emit(a, stA(2))
    for d in (8, 12): a.e(f"s_mov_b32 s{d+2}, {1 << 26}\ns_mov_b32 s{d+3}, 0x20000")
    srd(a, 24, "s72", "s73", WS_BYTES)
    srd(a, 60, "s76", "s77", 4718592)
    a.e(f"""v_lshrrev_b32 v{H}, 5, v1
            v_and_b32 v{L31}, 31, v1
            v_and_b32 v{G1}, 1, v{G}
            v_lshrrev_b32 v{R}, 2, v{L15}
            v_and_b32 v{C4}, 3, v1
            v_lshl_add_u32 v59, v{H}, 3, v{R}
            v_lshlrev_b32 v59, 8, v59
            v_lshl_add_u32 v59, v{R}, 6, v59
            v_lshl_add_u32 v59, v{G1}, 5, v59
            v_lshl_add_u32 v75, v{C4}, 3, v59
            s_lshl_b32 s3, s28, 6
            v_xor_b32 v59, s3, v75
            v_add_u32 v{AW}, {STG(0)}, v59
            v_add_u32 v{AW+2}, {STG(2)}, v59
            v_bfe_u32 v60, v1, 1, 3
            v_xor_b32 v60, v60, v{H}
            v_lshlrev_b32 v60, 4, v60
            v_lshl_add_u32 v60, v{L31}, 7, v60""")
    for s in range(4):
        a.e(f"v_xor_b32 v61, {32*s}, v60\nv_add_u32 v{AX+s}, {STG(0)+16384}, v61\nv_add_u32 v{AX+4+s}, {STG(2)+16384}, v61")
    a.e(f"""s_lshl_b32 s3, s28, 2
            s_add_u32 s3, s3, {TOP + 3072}
            v_mov_b32 v{VFO}, s3
            v_xor_b32 v{VFP}, 4, v{VFO}
            v_mov_b32 v61, 0
            ds_write_b32 v{VFO}, v61
            ds_write_b32 v{VFO}, v61 offset:16
            s_mov_b32 s44, 0
            s_mov_b32 s45, 0""")
    def frag_reads(buf, s, F, ndb):
        hi = buf // 2; off = (buf % 2) * 28672
        L = [f"ds_read_b64_tr_b16 {vr(F + db*4 + k*2, 2)}, v{AW+db+2*hi} offset:{off + (16*s + 4*k) * 256}" for db in range(ndb) for k in range(2)]
        return L + [f"ds_read_b128 {vr(F + 4*ndb + qb*4, 4)}, v{AX+s+4*hi} offset:{off + qb*4096}" for qb in range(3)]
    setup = f"""v_lshlrev_b32 v26, 8, v{G}
            v_xor_b32 v27, v{L15}, v{G}
            v_lshl_add_u32 v{VOFFK}, v27, 4, v26
            v_xor_b32 v{VOFFK+1}, 64, v{VOFFK}
            v_xor_b32 v{VOFFK+2}, 128, v{VOFFK}
            v_xor_b32 v{VOFFK+3}, 192, v{VOFFK}
            s_mul_i32 s37, s7, {YB}
            s_lshl_b32 s3, s6, 13
            s_add_u32 s37, s37, s3
            s_add_u32 s33, s33, s7
            s_lshl_b32 s34, s31, 5
            s_add_u32 s34, s34, s33
            s_lshl_b32 s34, s34, 18
            s_add_u32 s34, s34, s3"""
    if opt.rot:
        setup += """
            s_lshl_b32 s3, s2, 2
            s_add_u32 s3, s3, s7
            s_mul_i32 s3, s3, 0x1e3779b1
            s_lshr_b32 s47, s3, 15
            s_xor_b32 s3, s3, s47
            s_mul_i32 s3, s3, 0x2c1b3c6d
            s_lshr_b32 s3, s3, 20
            s_and_b32 s3, s3, 15
            s_lshl_b32 s35, s3, 14"""
    else: setup += "\ns_mov_b32 s35, 0"
    setup += f"""
            s_mov_b32 s36, s35
            v_xor_b32 v27, v{H}, v{L15}
            v_lshlrev_b32 v27, 4, v27
            v_lshl_add_u32 v27, v{L31}, 8, v27
            v_add_u32 v{VKA}, s37, v27"""
    for s in range(1, 8): setup += f"\nv_xor_b32 v{VKA+s}, {32*s}, v{VKA}"
    setup += f"""
            v_lshl_add_u32 v28, v{H}, 2, v{R}
            v_lshlrev_b32 v28, 8, v28
            v_lshl_add_u32 v28, v{R}, 6, v28
            v_lshl_add_u32 v28, v{G1}, 5, v28
            v_lshl_add_u32 v28, v{C4}, 3, v28
            s_lshl_b32 s47, s6, 7
            v_xor_b32 v28, s47, v28
            v_add_u32 v{VVA}, s37, v28"""
    for db in range(1, 4): setup += f"\nv_xor_b32 v{VVA+db}, {64*db}, v{VVA}"
    setup += f"\ns_mov_b32 s42, {f2u(CSC):#x}\ns_mov_b32 s43, {f2u(THR_LOG2):#x}"
    for qb in range(3): setup += f"\nv_mov_b32 v{LSUM+qb}, 0"
    setup = [x.strip() for x in setup.split("\n")]
    VO, VL16, AD, VOL = 93, 102, 103, 107
    def vo_calc(dst, rev):
        L = []
        for i in range(9):
            L += [f"v_add_u32 v84, {64*i}, v1", "v_mul_u32_u24 v85, 58255, v84", "v_lshrrev_b32 v85, 20, v85", "v_mul_u32_u24 v86, 18, v85",
                  "v_sub_u32 v86, v84, v86", "v_xor_b32 v87, 1, v86", "v_sub_u32 v87, 17, v87"]
            if rev == "vcc": L += ["v_cndmask_b32 v87, v86, v87, vcc"]
            L += ["v_mul_u32_u24 v85, 1152, v85", f"v_lshl_add_u32 v{dst+i}, v87, 4, v85"]
        return L
    setup2 = ["s_cmp_eq_u32 s7, 1\ns_cselect_b64 vcc, -1, 0"] + vo_calc(VO, "vcc") + [x.strip() for x in f"""v_lshlrev_b32 v{VL16}, 4, v1
            v_lshlrev_b32 v84, 4, v{H}
            v_lshl_add_u32 v84, v{G1}, 2, v84
            v_add_u32 v84, v84, v{R}
            v_mul_u32_u24 v84, 288, v84
            v_lshl_add_u32 v84, v{C4}, 3, v84
            s_mul_i32 s3, s7, 18432
            v_add_u32 v{AD+1}, s3, v84
            v_add_u32 v{AD}, {SB[0]}, v{AD+1}
            v_lshlrev_b32 v{VOL}, 10, v{G1}
            v_lshl_add_u32 v{VOL}, v{H}, 8, v{VOL}
            v_lshl_add_u32 v{VOL}, v{L15}, 4, v{VOL}
            v_mov_b32 v108, 0
            s_mul_i32 s67, s30, 1179648
            s_mul_i32 s3, s32, 288
            s_add_u32 s64, s67, s3              ; wo: rows of the octet, columns 144p..
            s_lshl_b32 s39, s29, 3
            s_add_u32 s39, s39, s31""".split("\n")]
    def psync(pre_wait=True):
        psync.n += 1; n = psync.n
        a.e(f"""s_add_u32 s44, s44, 1
                v_mov_b32 v{VD}, s44
                ds_write_b32 v{VFO}, v{VD}
                s_mov_b32 s47, 0x400000""")
        a.label(f"L_ps{n}")
        a.e(f"""ds_read_b32 v{VD}, v{VFP}
                s_sub_u32 s47, s47, 1
                s_waitcnt lgkmcnt(0)
                v_readfirstlane_b32 s3, v{VD}
                s_cmp_eq_u32 s47, 0
                s_cselect_b32 s3, s44, s3
                s_cmp_lt_u32 s3, s44
                s_cbranch_scc1 L_ps{n}""")
    psync.n = 0
    def other_pair(name, word, val, T=84):
        a.e(f"v_mov_b32 v{T+2}, {TOP + 3072 + word}\ns_mov_b32 s47, 0x400000")
        a.label(name)
        a.e(f"""s_sleep 2
                ds_read_b64 v[{T}:{T+1}], v{T+2}
                s_sub_u32 s47, s47, 1
                s_waitcnt lgkmcnt(0)
                v_min_u32 v{T}, v{T}, v{T+1}
                v_readfirstlane_b32 s3, v{T}
                s_cmp_eq_u32 s47, 0
                s_cselect_b32 s3, {val}, s3
                s_cmp_lt_u32 s3, {val}
                s_cbranch_scc1 {name}""")

    ACC = 112
    FS = (32, 48, 160, 176)
    a.wait(vmtags=["s0"], lg0=True); a.e("s_barrier")
    stamp(a, "q0", opt)
    emit(a, frag_reads(0, 0, FS[0], 1) + frag_reads(0, 1, FS[1], 1))
    def chunkA(c, sl, fill):
        for s in range(4):
            F = FS[s]; k0 = (c*4 + s) * 3
            if s == 2:
                a.wait(vmtags=[f"s{c+1}"]); a.e("s_barrier")
                stamp(a, f"c{c}", opt)
                spread(sl, fill, k0, k0 + 12)
            if s < 2: emit(a, frag_reads(c % 4, s + 2, FS[s + 2], 1))
            elif c < 8: emit(a, frag_reads((c + 1) % 4, s - 2, FS[s - 2], 1))
            for qb in range(3):
                d = vr(ACC + qb*16, 16)
                emit(a, [f"v_mfma_f32_32x32x16_bf16 {d}, {vr(F,4)}, {vr(F+4+qb*4,4)}, " + ("0" if (c == 0 and s == 0) else d)] + sl[k0 + qb])
    sl = [[] for _ in range(120)]
    spread(sl, setup, 0, 45)
    for c in range(6): chunkA(c, sl, stA(c + 3))
    a.e("s_cmp_eq_u32 s7, 1\ns_cbranch_scc1 L_roleY")
    st0 = save(a); sl0 = [list(x) for x in sl]
    def qwrite(blocks, dreg, area):
        a.e(f"""v_xor_b32 v55, {dreg}, v{L15}
                v_lshlrev_b32 v55, 4, v55
                v_lshl_add_u32 v55, v{L31}, 8, v55
                v_lshl_add_u32 v55, v{H}, 3, v55
                v_add_u32 v55, {area}, v55
                v_mov_b32 v62, s42""")
        for db in range(blocks):
            for i in range(4):
                a.e(f"v_xor_b32 v54, {(4*db + i)*16}, v55")
                for qb in range(3):
                    r = ACC + (db*3 + qb)*16 + 4*i; tq = 56 + 2 * qb
                    a.e(f"""v_pk_mul_f32 v[{r}:{r+1}], v[{r}:{r+1}], v[62:63] op_sel_hi:[1,0]
                            v_pk_mul_f32 v[{r+2}:{r+3}], v[{r+2}:{r+3}], v[62:63] op_sel_hi:[1,0]
                            v_cvt_pk_bf16_f32 v{tq}, v{r}, v{r+1}
                            v_cvt_pk_bf16_f32 v{tq+1}, v{r+2}, v{r+3}
                            ds_write_b64 v54, v[{tq}:{tq+1}] offset:{qb*8192}""")
    def qread(area):
        a.e(f"s_sub_u32 s3, {area}, s37")
        for s in range(8): a.e(f"v_add_u32 v{32+s}, s3, v{VKA+s}")
        for qb in range(3):
            for s in range(8): a.e(f"ds_read_b128 {vr(Qreg(qb,s),4)}, v{32+s} offset:{qb*8192}")
    def finishA(sl, fills):
        for c in range(6, 9): chunkA(c, sl, fills.get(c, []))
        for x in sl[108:]: emit(a, x)
        a.e("s_barrier\ns_lshl_b32 s3, s28, 2")
        qwrite(1, "s3", STG(3))
        a.e("s_waitcnt lgkmcnt(0)\ns_barrier")
    u0, u1 = dma_unit(0, opt), dma_unit(1, opt)
    finishA(sl, {6: u0, 7: u1})
    qread(STG(3))
    stamp(a, "qx", opt)
    emit(a, dma_unit(2, opt))
    a.e("s_branch L_attn")
    stX = save(a)
    a.label("L_roleY"); load(a, st0)
    finishA(sl0, {})
    a.e(f"""s_add_u32 s52, s33, 0
            s_lshl_b32 s52, s52, 8
            s_lshl_b32 s3, s6, 18
            s_add_u32 s52, s52, s3
            s_mul_i32 s53, s31, 110592
            s_mul_i32 s3, s6, 55296
            s_add_u32 s53, s53, s3
            s_lshl_b32 s54, s6, 13
            s_mul_i32 s55, s6, 6144
            s_cmp_eq_u32 s6, 1
            s_cselect_b64 vcc, -1, 0
            v_cndmask_b32 v54, v{VXA}, v{VXB}, vcc
            v_cndmask_b32 v{VXB}, v{VXB}, v{VXA}, vcc
            v_mov_b32 v{VXA}, v54
            s_lshl_b32 s3, s6, 7
            v_xor_b32 v59, s3, v75
            v_add_u32 v{AW}, {STG(0)}, v59
            v_add_u32 v{AW+2}, {STG(2)}, v59
            v_xor_b32 v59, 64, v59
            v_add_u32 v{AW+1}, {STG(0)}, v59
            v_add_u32 v{AW+3}, {STG(2)}, v59""")
    stB = lambda c: [] if opt.noB else stage(f"y{c}", 1 + c % 3, 8, 6, P(opt.wp[2]), P(opt.wp[3]))
    emit(a, stB(0) + stB(1))
    FA, FB = 24, 44
    a.wait(vmtags=["y0"]); psync()
    stamp(a, "y0", opt)
    emit(a, frag_reads(1, 0, FA, 2))
    sl = [[] for _ in range(240)]
    other_pair("L_qx", 16, 1)
    spread(sl, stB(2), 0, 18)
    for c in range(9):
        for s in range(4):
            F, nF = (FA, FB) if s % 2 == 0 else (FB, FA)
            k0 = (c*4 + s) * 6
            if s == 3:
                a.wait(vmtags=[f"y{c+1}"], lg0=True); psync()
                stamp(a, f"y{c+1}", opt)
                if c + 3 <= 8:
                    if int(opt.pace * (c + 2)) > 1: other_pair(f"L_pace{c}", 16, int(opt.pace * (c + 2)))
                    spread(sl, stB(c + 3), k0, k0 + 24)
                elif c < 8: spread(sl, dma_unit(c - 6, opt), k0, k0 + 24)
                if c < 8: emit(a, frag_reads(1 + (c + 1) % 3, 0, nF, 2))
            else: emit(a, frag_reads(1 + c % 3, s + 1, nF, 2))
            i = 0
            for db in range(2):
                for qb in range(3):
                    d = vr(ACC + (db*3 + qb)*16, 16)
                    emit(a, [f"v_mfma_f32_32x32x16_bf16 {d}, {vr(F+db*4,4)}, {vr(F+8+qb*4,4)}, " + ("0" if (c == 0 and s == 0) else d)] + sl[k0 + i]); i += 1
    assert not any(sl[216:])
    a.e("s_lshl_b32 s3, s6, 3")
    qwrite(2, "s3", STG(2))
    a.e("s_waitcnt lgkmcnt(0)"); psync()
    qread(STG(2))
    a.e(f"s_waitcnt lgkmcnt(0)\ns_add_u32 s44, s44, 1\nv_mov_b32 v{VD}, s44\nds_write_b32 v{VFO}, v{VD}")
    ydone = psync.n + 1
    stamp(a, "qy", opt)
    emit(a, dma_unit(2, opt))
    assert [o.tag for o in a.vm][-8*NS:] == [o.tag for o in stX[2]][-8*NS:]
    a.label("L_attn")
    a.wait(vmtags=["u0"], lg0=True)
    emit(a, kreads(0))
    stamp(a, "k0", opt)
    a.e(f"""v_mov_b32 v26, {TOP + 3072 + 24}
            s_cmp_eq_u32 s7, 0
            s_cselect_b32 s50, {int(opt.thr1 * 4)}, 0
            s_mov_b32 s38, {int((opt.thr0 + opt.thr1) * 4)}""")
    if opt.acct: a.e(f"s_mov_b64 s[98:99], s[{STB}:{STB+1}]\ns_mov_b64 s[100:101], s[{STB}:{STB+1}]\ns_mov_b64 s[92:93], s[{STB}:{STB+1}]")
    def wpieces(tag, head, rows, lds, voreg):
        Gs = []
        for i in range(9):
            g = [f"s_add_u32 s4, s66, {head}", "s_and_b32 s4, s4, 7", f"s_mul_i32 s4, s4, {128*1152}", "s_add_u32 s4, s4, s68",
                 f"s_add_u32 s4, s4, {rows*1152}"] if i == 0 else []
            g += [f"s_add_u32 m0, s65, {lds + i*1024}", f"buffer_load_dwordx4 v{voreg+i}, s[60:63], s4 offen{opt.wopol} lds ; @{tag}"]
            Gs.append("\n".join(g))
        return Gs
    HEAD = (0, 2, 4, 6, 1, 3, 5, 7)
    wS = lambda st: wpieces(f"w{st}", HEAD[st], 0, SB[st % 4], VO)
    wX = lambda st, VOR: wpieces(f"w{st}", HEAD[st], 0, SB[st % 4], VO) + wpieces(f"w{st}", HEAD[st], 64, SB[st % 4] + 18432, VOR)
    setW = ["s_lshl_b32 s66, s32, 1", "s_mul_i32 s65, s28, 9216", f"s_mul_i32 s68, s28, {32*1152}", "s_add_u32 s68, s68, s64"]
    carry = tile_body(a, opt, 0, [])
    carry = tile_body(a, opt, 1, carry)
    emit(a, setup2 + setW)
    if opt.unroll:
        for t in range(2, 14):
            stamp(a, f'r{t}', opt); carry = tile_body(a, opt, t, carry)
    else:
        stamp(a, "l0", opt)
        a.e("s_mov_b32 s46, 4")
        a.raw(".p2align 6"); a.label("L_tile")
        keep = list(a.vm)
        if opt.late:
            a.e(f"""s_lshl_b32 s3, s7, 3
                    s_add_u32 s3, s3, s46
                    s_cmp_lg_u32 s3, {opt.late}
                    s_cbranch_scc1 L_nolate
                    s_lshr_b32 s3, s2, 3
                    s_lshl_b32 s3, s3, 1
                    s_add_u32 s3, s3, s6
                    s_mul_i32 s3, s3, 18432
                    v_lshlrev_b32 v84, 7, v1
                    v_add_u32 v84, s3, v84
                    v_add_u32 v85, 8192, v84
                    v_add_u32 v86, 16384, v84
                    v_cmp_gt_u32 vcc, 16, v1
                    v_cndmask_b32 v86, -1, v86, vcc""")
            emit(a, [f"buffer_load_dword v87, v{r}, s[60:63], s67 offen{opt.tpol} ; @junk" for r in (84, 85, 86)])
            a.label("L_nolate")
        a.vm = keep
        for t in (2, 3, 4): carry = tile_body(a, opt, t, carry)
        a.e("s_sub_u32 s46, s46, 1\ns_cmp_lg_u32 s46, 0\ns_cbranch_scc1 L_tile")
        for o in a.vm:
            if o.tag and o.tag[0] == "u": o.tag = f"u{int(o.tag[1:]) + 18}"
    stamp(a, "l1", opt)
    carry = tile_body(a, opt, 14, carry)
    xo = lambda k: (k // 8) * SLOT + (k % 8) * 1024
    def send(qb):
        return [f"ds_write_b128 v28, {ar(Oacc(2+i,qb) + 4*g, 4)} offset:{xo((i*3 + qb)*4 + g)}" for i in range(2) for g in range(4)]
    pre = ["buffer_load_dword v106, v108, s[56:59], 0 offen sc1 ; @tag",
           f"v_add_u32 v28, s37, v{VL16}", "s_lshl_b32 s3, s6, 14\ns_sub_u32 s3, 8192, s3", "v_add_u32 v29, s3, v28",
           f"s_mul_i32 s3, s28, 768\ns_add_u32 s3, s3, {TOP}", f"v_lshlrev_b32 v30, 3, v{L31}", "v_add_u32 v30, s3, v30",
           f"s_xor_b32 s3, s28, 1\ns_mul_i32 s3, s3, 768\ns_add_u32 s3, s3, {TOP}", f"v_lshlrev_b32 v31, 3, v{L31}", "v_add_u32 v31, s3, v31"]
    team = "v_and_b32 v13, 3, v1\nv_lshlrev_b32 v13, 10, v13\nv_and_b32 v14, 4, v1\nv_add_u32 v13, v13, v14"
    askX = [f"s_andn2_b32 s71, s2, 24\ns_lshl_b32 s71, s71, 7\ns_add_u32 s69, s71, {WS_F}"] + team.split("\n") + ["buffer_load_dword v12, v13, s[24:27], s69 offen sc1"]
    carry = tile_body(a, opt, 15, carry, extra=[(pre, 8, 16), (askX, 28, 34), (send(0), 34, 48)])
    sl = [[] for _ in range(8)]
    carry = [x for y in carry for x in y]
    emit(a, carry[:len(carry)//2])
    spread(sl, carry[len(carry)//2:], 0, 3)
    st = []
    for qb in range(3): st += [f"v_mov_b32 v{3+2*qb}, v{LSUM+qb}", f"v_mov_b32 v{2+2*qb}, v{NM+16*qb}"]
    for qb in range(3): st += [f"v_permlane32_swap_b32 v{LSUM+qb}, v{3+2*qb}"]
    for qb in range(3): st += [f"v_add_f32 v{3+2*qb}, v{LSUM+qb}, v{3+2*qb}", f"ds_write_b64 v30, v[{2+2*qb}:{3+2*qb}] offset:{qb*256}"]
    spread(sl, st + send(1), 3, 8)
    for m, f in zip(pv(2, False), sl): emit(a, [m] + f)
    stamp(a, "t15", opt)
    emit(a, send(2))
    for r in range(96): a.e(f"v_accvgpr_read_b32 v{160 + r}, a{r}")
    a.e("s_mov_b32 s4, 0x100000")
    a.label("L_tag")
    a.e("""s_waitcnt vmcnt(0)
           v_readfirstlane_b32 s75, v106
           s_cmp_lg_u32 s75, 0
           s_cbranch_scc1 L_tag_ok
           buffer_load_dword v106, v108, s[56:59], 0 offen sc1 ; @junk
           s_sub_u32 s4, s4, 1
           s_cmp_lg_u32 s4, 0
           s_cbranch_scc1 L_tag""")
    a.label("L_tag_ok"); a.vm = []
    a.e(f"""s_lshl_b32 s3, s39, 5
            s_add_u32 s3, s3, s33
            s_mul_i32 s52, s3, 24576
            s_mul_i32 s3, s6, 12288
            s_add_u32 s52, s52, s3
            s_waitcnt lgkmcnt(0)""")
    ACC, WF, OF = 112, 16, 0
    def ask(base, lanes):
        a.e(f"s_add_u32 s69, {base}, {WS_F}\n{lanes}\nbuffer_load_dword v12, v13, s[24:27], s69 offen sc1")
    def check(tag):
        a.e("s_mov_b32 s4, 0x100000")
        a.label(f"L_poll{tag}")
        a.e(f"""s_waitcnt vmcnt(0)
                v_cmp_ne_u32 vcc, s75, v12
                s_cbranch_vccz L_got{tag}
                s_sleep 1
                buffer_load_dword v12, v13, s[24:27], s69 offen sc1
                s_sub_u32 s4, s4, 1
                s_cmp_lg_u32 s4, 0
                s_cbranch_scc1 L_poll{tag}""")
        a.label(f"L_got{tag}")
        a.e("s_waitcnt vmcnt(0)")
    def wreads(buf, rows, F):
        reg, boff = (AD, AD + 1, 220, 221)[buf], 0
        return [f"ds_read_b64_tr_b16 {vr(F + nb*4 + 2*k, 2)}, v{reg} offset:{boff + (rows + 8*k) * 288 + 32*nb}" for nb in range(9) for k in range(2)]
    def oload(tag, head, db0, nks, dst):
        Gs = []
        for kl in range(nks):
            for j in range(3):
                g = [f"s_add_u32 s47, s66, {head}", "s_and_b32 s47, s47, 7", "s_mul_i32 s47, s47, 24576", "s_add_u32 s47, s47, s37"] + \
                    ([f"s_add_u32 s47, s47, {db0}"] if db0 else []) if kl + j == 0 else ["s_add_u32 s47, s47, 6144"] if j == 0 else []
                Gs.append("\n".join(g + [f"buffer_load_dwordx4 {ar(dst + (kl*3+j)*4, 4)}, v{VL16}, s[24:27], s47 offen offset:{j*1024} sc1 ; @{tag}"]))
        return Gs
    def kstep(F, O, zero, reads, jobs):
        ms = [f"v_mfma_f32_16x16x32_bf16 {vr(ACC + (nb*3+j)*4, 4)}, {vr(F+nb*4,4)}, {ar(O+j*4,4)}, " + ("0" if zero else vr(ACC + (nb*3+j)*4, 4))
              for nb in range(9) for j in range(3)]
        sl = [[] for _ in range(27)]
        spread(sl, reads, 0, 20); spread(sl, jobs, 0, 27)
        a.e("s_waitcnt lgkmcnt(0)")
        for m, f in zip(ms, sl): emit(a, [m] + f)
        return ms
    team = "v_and_b32 v13, 3, v1\nv_lshlrev_b32 v13, 10, v13\nv_and_b32 v14, 4, v1\nv_add_u32 v13, v13, v14"
    a.e(f"""s_lshl_b32 s3, s2, 7
            s_lshl_b32 s4, s28, 2
            s_add_u32 s70, s3, s4
            s_add_u32 s70, s70, {WS_F}
            s_lshl_b32 s3, s39, 2
            s_add_u32 s3, s3, s30
            s_mul_i32 s37, s3, {8*24576}
            s_mul_i32 s4, s6, 3072
            s_add_u32 s37, s37, s4
            s_mul_i32 s4, s7, 12288
            s_add_u32 s37, s37, s4
            s_mov_b32 s45, 0
            s_cmp_eq_u32 s7, 0
            s_cbranch_scc1 L_noearly
            v_cmp_ne_u32 vcc, s75, v12
            s_cbranch_vccnz L_noearly
            s_mov_b32 s45, 1""")
    for st in range(4): emit(a, oload(f"o{st}", HEAD[st], 0, 2, 24*st))
    a.label("L_noearly"); a.vm = []
    a.e(f"v_sub_u32 v27, v29, v{VL16}\nv_add_u32 v27, v27, v{VOL}")
    psync()
    stamp(a, "c_bar", opt)
    for qb in range(3): a.e(f"ds_read_b64 v[{8+2*qb}:{9+2*qb}], v31 offset:{qb*256}")
    RC = (32, 48, 64, 112, 128, 144)
    def recv(blk):
        for g in range(4): a.e(f"ds_read_b128 {vr(RC[blk]+4*g,4)}, v29 offset:{xo(blk*4 + g)}")
    recv(0); recv(1)
    SC = 16
    for qb in range(3):
        pn, pl, on, ol = 8 + 2*qb, 9 + 2*qb, 2 + 2*qb, 3 + 2*qb
        a.auto(f"v_min_f32 v22, v{on}, v{pn}")
        a.e(f"""v_sub_f32 v23, v22, v{on}
                v_sub_f32 v24, v22, v{pn}
                v_exp_f32 v23, v23
                v_exp_f32 v24, v24
                v_mul_f32 v{ol}, v{ol}, v23
                v_fmac_f32 v{ol}, v{pl}, v24
                v_rcp_f32 v{ol}, v{ol}
                v_mul_f32 v{SC+2*qb}, v23, v{ol}
                v_mul_f32 v{SC+2*qb+1}, v24, v{ol}""")
    recv(2); recv(3); recv(4); recv(5)
    for blk in range(6):
        i, qb = divmod(blk, 3)
        K = 160 + blk*16; Rr = RC[blk]
        a.wait(lgregs=regs_of(vr(Rr, 16)))
        for r in range(0, 16, 2):
            a.e(f"v_pk_mul_f32 v[{Rr+r}:{Rr+r+1}], v[{Rr+r}:{Rr+r+1}], v[{SC+2*qb}:{SC+2*qb+1}] op_sel:[0,1] op_sel_hi:[1,1]")
        for r in range(0, 16, 2):
            a.e(f"v_pk_fma_f32 v[{K+r}:{K+r+1}], v[{K+r}:{K+r+1}], v[{SC+2*qb}:{SC+2*qb+1}], v[{Rr+r}:{Rr+r+1}] op_sel_hi:[1,0,1]")
        for j in range(8):
            a.e(f"v_cvt_pk_bf16_f32 v{K+8*(j//4)+j%4}, v{K+2*j}, v{K+2*j+1}")
        a.e(f"s_add_u32 s47, s52, {WS_O + (i*6 + 2*qb)*1024}")
        for s in range(2):
            a.e(f"buffer_store_dwordx4 {vr(K+8*s,4)}, v{VOL}, s[24:27], s47 offen offset:{512*s} sc1")
            a.e(f"ds_write_b128 v27, {vr(K+8*s,4)} offset:{xo(i*6 + 2*qb) + 512*s}")
    stamp(a, "comb", opt)
    a.e("v_mov_b32 v14, s75\ns_cmp_eq_u32 s7, 1\ns_cbranch_scc1 L_tailY")
    stT = save(a)
    a.e("s_waitcnt vmcnt(0)\nbuffer_store_dword v14, v108, s[24:27], s70 offen sc1")
    VOR = 224
    emit(a, vo_calc(VOR, "rev"))
    other_pair("L_yq", 8, ydone)
    emit(a, wX(0, VOR))
    psync()
    emit(a, wX(1, VOR))
    ask("s71", team); check("A")
    stamp(a, "chkA", opt)
    for st in range(4): emit(a, oload(f"o{st}", HEAD[st], 0, 2, 24*st))
    a.e("s_waitcnt vmcnt(0)\ns_branch L_join")
    a.label("L_tailY"); load(a, stT)
    a.e("s_cmp_eq_u32 s45, 1\ns_cbranch_scc1 L_hadearly")
    sv = save(a)
    ask("s71", team); check("Y")
    a.vm = list(sv[2])
    for st in range(4): emit(a, oload(f"o{st}", HEAD[st], 0, 2, 24*st))
    a.label("L_hadearly")
    a.e("s_waitcnt lgkmcnt(0)")
    a.label("L_join"); a.lg = []
    a.e(f"""s_add_u32 s71, s71, 8
            v_add_u32 v220, {SB[2] - SB[1]}, v{AD+1}
            v_add_u32 v221, {SB[3] - SB[1]}, v{AD+1}
            s_mul_i32 s3, s7, -8192
            s_mul_i32 s4, s6, 3072
            s_add_u32 s3, s3, s4
            s_add_u32 s3, s3, {YB + 8192}
            v_add_u32 v2, s3, v{VL16}
            s_barrier""")
    stamp(a, "join", opt)
    emit(a, wreads(0, 0, WF))
    a.e("s_cmp_eq_u32 s6, 1\ns_cbranch_scc1 L_own1")
    sv = save(a)
    for qh in range(2):
        if qh: a.label("L_own1"); load(a, sv)
        for kl in range(2):
            for j in range(3): a.e(f"ds_read_b128 {ar(96 + (kl*3+j)*4, 4)}, v2 offset:{xo(kl*6 + 3*qh + j) - 3072*qh}")
        if qh == 0: a.e("s_branch L_own2")
    a.label("L_own2")
    a.wait(vmtags=["o0"])
    kstep(WF, 0, True, wreads(0, 32, WF + 36), wS(2))
    a.e("s_cmp_eq_u32 s7, 0\ns_cbranch_scc1 L_nopub\ns_waitcnt vmcnt(9)\nv_mov_b32 v14, s75\nbuffer_store_dword v14, v108, s[24:27], s70 offen sc1 ; @junk")
    a.label("L_nopub"); a.vm = a.vm[:-1]
    a.vm = [o for o in a.vm if o.tag == "w2"]
    a.e("s_waitcnt lgkmcnt(0)\ns_barrier")
    kstep(WF + 36, 12, False, wreads(1, 0, WF), wS(3))
    stamp(a, "g1", opt)
    A = opt.askat
    plan = {(1, 0): "w4", (1, 1): "w5", (A, 1): "o5", (A + 1, 0): "o6", (A + 1, 1): "o7", (A + 2, 0): "w6", (A + 2, 1): "w7"}
    job = lambda st, kl: [] if (st, kl) not in plan else wS(int(plan[st, kl][1])) if plan[st, kl][0] == "w" else \
        oload(plan[st, kl], HEAD[int(plan[st, kl][1])], 0, 2, 24*int(plan[st, kl][1]))
    for st in range(1, 8):
        stamp(a, f"s{st}", opt)
        if st == A: ask("s71", team)
        if st >= 5: a.wait(vmtags=[f"o{st}"])
        kstep(WF, 24*st, False, wreads(st % 4, 32, WF + 36), job(st, 0))
        if st == A: check("B"); stamp(a, "chk1", opt)
        stamp(a, f"h{st}", opt)
        if st < 7:
            a.wait(vmtags=[f"w{st+1}"], lg0=True); a.e("s_barrier")
            stamp(a, f"b{st}", opt)
            kstep(WF + 36, 24*st + 12, False, wreads((st + 1) % 4, 0, WF), job(st, 1))
    a.e(f"""s_lshl_b32 s3, s28, 14
            v_add_u32 v13, s3, v{VL16}
            v_xor_b32 v14, 32768, v13
            s_waitcnt lgkmcnt(0)
            s_barrier""")
    F, O = WF + 36, 180
    ms = [f"v_mfma_f32_16x16x32_bf16 {vr(ACC + (nb*3+j)*4, 4)}, {vr(F+nb*4,4)}, {ar(O+j*4,4)}, {vr(ACC + (nb*3+j)*4, 4)}" for nb in (8, 7, 6, 5, 4, 0, 1, 2, 3) for j in range(3)]
    snd = [f"ds_write_b128 v13, {vr(ACC+(nb*3+j)*4,4)} offset:{((8-nb)*3+j)*1024}" for nb in range(8, 3, -1) for j in range(3)]
    emit(a, ms[:9])
    for k in range(15): emit(a, [ms[9 + k], snd[k]])
    emit(a, ms[24:])
    stamp(a, "gend", opt)
    PT = 512 if opt.pbf16 else 1024
    a.e(f"""s_lshl_b32 s52, s39, 2
            s_add_u32 s52, s52, s32
            s_lshl_b32 s53, s52, 2
            s_add_u32 s53, s53, s30
            s_mul_i32 s53, s53, {54*PT}
            s_mul_i32 s3, s6, {3*PT}
            s_add_u32 s53, s53, s3
            s_mul_i32 s3, s7, {48*PT}
            s_add_u32 s53, s53, s3
            s_add_u32 s47, s53, {WS_P}
            s_mov_b32 s3, {6*PT}
            s_cmp_eq_u32 s7, 1
            s_cselect_b32 s53, {-6*PT}, s3
            v_lshlrev_b32 v9, {3 if opt.pbf16 else 4}, v1
            s_waitcnt lgkmcnt(0)
            s_barrier""")
    stamp(a, "rbar", opt)
    for k in range(15): a.e(f"ds_read_b128 {vr(WF+4*k,4)}, v14 offset:{k*1024}")
    for nb in range(5):
        for j in range(3):
            r = ACC + (nb*3+j)*4; q = WF + (nb*3+j)*4
            a.wait(lgregs=regs_of(vr(q, 4)))
            a.e(f"v_pk_add_f32 v[{r}:{r+1}], v[{r}:{r+1}], v[{q}:{q+1}]\nv_pk_add_f32 v[{r+2}:{r+3}], v[{r+2}:{r+3}], v[{q+2}:{q+3}]")
            if opt.pbf16:
                a.e(f"v_cvt_pk_bf16_f32 v{r}, v{r}, v{r+1}\nv_cvt_pk_bf16_f32 v{r+1}, v{r+2}, v{r+3}")
                a.e(f"buffer_store_dwordx2 {vr(r,2)}, v9, s[24:27], s47 offen offset:{j*PT} sc1")
            else:
                a.e(f"buffer_store_dwordx4 {vr(r,4)}, v9, s[24:27], s47 offen offset:{j*PT} sc1")
        if nb < 4: a.e("s_add_u32 s47, s47, s53")
    a.e(f"""s_add_u32 s70, s70, 32768
            v_mov_b32 v14, s75
            s_andn2_b32 s71, s2, 3
            s_lshl_b32 s71, s71, 7
            s_add_u32 s71, s71, 32768
            v_and_b32 v10, 15, v1
            v_mul_u32_u24 v10, 2304, v10
            v_lshrrev_b32 v11, 4, v1
            v_lshl_add_u32 v10, v11, 3, v10
            s_mul_i32 s52, s52, {4*54*PT}
            s_add_u32 s52, s52, {WS_P}
            s_mul_i32 s53, s31, {96*2304}
            s_mul_i32 s3, s29, 1152
            s_add_u32 s53, s53, s3
            s_mul_i32 s3, s32, 288
            s_add_u32 s53, s53, s3
            s_lshl_b32 s54, s28, 2
            s_add_u32 s54, s54, s30""")
    srd(a, 8, "s78", "s79", 1769472)
    stamp(a, "rst", opt)
    a.e("s_waitcnt vmcnt(0)\nbuffer_store_dword v14, v108, s[24:27], s70 offen sc1")
    stamp(a, "pub2", opt)
    ask("s71", "v_and_b32 v13, 3, v1\nv_lshlrev_b32 v13, 7, v13\nv_and_b32 v14, 12, v1\nv_add_u32 v13, v13, v14")
    check(2)
    stamp(a, "chk2", opt)
    for i in range(4):
        a.e(f"s_add_u32 s{68+i}, s54, {16*i}")
        if i == 3: a.e("s_cmp_ge_u32 s71, 54\ns_cbranch_scc1 L_rd3")
        a.e(f"s_mul_i32 s47, s{68+i}, {PT}\ns_add_u32 s47, s47, s52")
        for o in range(4):
            if opt.pbf16: a.e(f"buffer_load_dwordx2 {vr(16+16*i+4*o+2,2)}, v9, s[24:27], s47 offen sc1")
            else: a.e(f"buffer_load_dwordx4 {vr(16+16*i+4*o,4)}, v9, s[24:27], s47 offen sc1")
            if o < 3: a.e(f"s_add_u32 s47, s47, {54*PT}")
    def fin(i):
        r = 16 + 16*i
        if opt.pbf16:
            for o in range(4):
                b = r + 4*o
                a.e(f"""v_lshlrev_b32 v{b}, 16, v{b+2}
                        v_and_b32 v{b+1}, 0xffff0000, v{b+2}
                        v_lshlrev_b32 v{b+2}, 16, v{b+3}
                        v_and_b32 v{b+3}, 0xffff0000, v{b+3}""")
        for k in range(4): a.e(f"v_add_f32 v{r+k}, v{r+k}, v{r+4+k}\nv_add_f32 v{r+8+k}, v{r+8+k}, v{r+12+k}")
        for k in range(4): a.e(f"v_add_f32 v{r+k}, v{r+k}, v{r+8+k}")
        a.e(f"""v_cvt_pk_bf16_f32 v{r}, v{r}, v{r+1}
                v_cvt_pk_bf16_f32 v{r+1}, v{r+2}, v{r+3}
                s_mul_i32 s3, s{68+i}, 43
                s_lshr_b32 s3, s3, 8
                s_mul_i32 s4, s3, 6
                s_sub_u32 s4, s{68+i}, s4
                s_mul_i32 s4, s4, {16*2304}
                s_lshl_b32 s3, s3, 5
                s_add_u32 s47, s53, s3
                s_add_u32 s47, s47, s4
                buffer_store_dwordx2 v[{r}:{r+1}], v10, s[8:11], s47 offen""")
    sv = save(a)
    for i in range(4):
        a.e(f"s_waitcnt vmcnt({12 - 3*i})"); fin(i)
    a.e("s_branch L_rd4")
    a.label("L_rd3"); load(a, sv); a.vm = a.vm[:-4]
    for i in range(3):
        a.e(f"s_waitcnt vmcnt({8 - 3*i})"); fin(i)
    a.label("L_rd4")
    stamp(a, "end", opt)
    if opt.stamps:
        a.e(f"s_lshl_b32 s3, s2, 2\ns_add_u32 s3, s3, s28\ns_lshl_b32 s3, s3, 7\ns_add_u32 s3, s3, {WS_STAMP}\nv_mov_b32 v0, 0")
        for i in range(1 + len(opt.sset)):
            a.e(f"v_mov_b32 v2, s{STB+2*i}\nv_mov_b32 v3, s{STB+1+2*i}\nbuffer_store_dwordx2 v[2:3], v0, s[24:27], s3 offen offset:{8*i}\ns_waitcnt vmcnt(0)")
    a.label("L_done")
    a.e("s_endpgm")
    for qb in range(3): rare(a, qb)
    a.label("L_hold", reset=True)
    a.e("s_mov_b32 s47, 0x400000")
    a.label("L_hold1")
    a.e("""s_sleep 4
           ds_read_b64 v[30:31], v26
           s_sub_u32 s47, s47, 1
           s_waitcnt lgkmcnt(0)
           v_min_u32 v30, v30, v31
           v_readfirstlane_b32 s3, v30
           s_lshl_b32 s3, s3, 2
           s_cmp_eq_u32 s47, 0
           s_cselect_b32 s3, s38, s3
           s_cmp_lt_i32 s3, s38
           s_cbranch_scc1 L_hold1
           s_setpc_b64 s[40:41]""")

def build(opt):
    a = Asm()
    a.raw("; @launch grid=(256,1,1) block=(256,1,1) lds=163840")
    a.raw('.amdgcn_target "amdgcn-amd-amdhsa--gfx950"')
    kernel(a, NAME + "_kernel", opt)
    a.raw('.section .rodata,"a"\n.p2align 6')
    a.raw("\n".join([f".amdhsa_kernel {NAME}_kernel", "  .amdhsa_next_free_vgpr 512", "  .amdhsa_next_free_sgpr 102",
        "  .amdhsa_accum_offset 256", "  .amdhsa_group_segment_fixed_size 0", "  .amdhsa_kernarg_size 104",
        "  .amdhsa_user_sgpr_count 2", "  .amdhsa_user_sgpr_kernarg_segment_ptr 1",
        "  .amdhsa_system_sgpr_workgroup_id_x 1", ".end_amdhsa_kernel"]))
    return a.text(), a

if __name__ == "__main__":
    opt = Opt()
    out = sys.argv[1] if len(sys.argv) > 1 else "k.s"
    for kv in sys.argv[2:]:
        k, v = kv.split("=", 1); assert hasattr(opt, k), k
        setattr(opt, k, eval(v))
    t, a = build(opt)
    open(out, "w").write(t)
    print(out, "lines", t.count("\n"), "pad", a.npad)
```

```python
import sys, struct, math
sys.path.insert(0, "dev")
from asmlib import Asm, spread, regs_of, level_fill
import gen5
from gen5 import (NAME, f2u, CSC, THR_LOG2, WS_BYTES, WS_O, WS_P, WS_F, WS_STAMP, STB, vr, ar, srd, stamp, emit,
                  VOFFK, VOFFV, VKA, VVA, LSUM, TMAX, VT, NM, S0, Q0, KF, VF, Sreg, Qreg, Oacc, qk, pv, rare)

class Opt:
    wp = "pppp"
    noB = False
    stamps = False
    sset = ['q0', 'k0', 't15', 'comb', 'join', 'chk1', 'gend', 'pub2', 'end']
    thr0 = -9.0
    thr1 = 1.5
    clk = "s_memrealtime"
    rot = True
    krot = 3
    pbf16 = True
    cap = (4, 7)
    loose = 0
    hold = True
    kvsame = False
    unroll = False
    a0at = 2
    late = 0
    prio = 0
    gate = 12
    pace = 1.0
    d1 = (8, 10, 12, 14, 22, 24, 26, 27)
    d2 = (29, 31, 33, 35, 37, 39, 44, 47)
    dcost = 4.0
    acct = 0
    w0 = 10
    askat = 2
    fewwait = True
    vwin = (16, 22)
    kwin = (40, 44)
    tpol = ''
    wopol = ''

SLOT = 16384
STG = lambda i: 45056 + 28672 * i
TOP = 159744
SB = (122880, 0, 86016, 49152)
NS = 3
YB = 49152

def dma_unit(u, opt):
    kind = "KV"[u % 2]; sreg = "s36" if kind == "K" else "s35"
    srdn = "s[8:11]" if kind == "K" else "s[12:15]"
    G = []
    for j in range(8):
        g = []
        if j == 0: g += [f"s_add_u32 m0, s37, {(u % NS) * SLOT}", f"s_add_u32 s51, s34, {sreg}"]
        if j == 1 and not opt.kvsame: g += [f"s_add_u32 {sreg}, {sreg}, 16384", f"s_and_b32 {sreg}, {sreg}, 0x3ffff"]
        if j == 4: g += [f"s_add_u32 m0, s37, {(u % NS) * SLOT + 4096}", "s_add_u32 s51, s51, 4096"]
        vo = VOFFK + j % 4 if kind == "K" else VOFFV
        if opt.cap and u >= 3:
            cx, cy = (c if isinstance(c, int) else c[j % len(c)] for c in opt.cap)
            dma_unit.n += 1; n = dma_unit.n
            if opt.loose: g.append(f"s_waitcnt vmcnt({opt.loose - 1})")
            g += [f"s_cbranch_vccz L_cap{n}", f"RAW s_waitcnt vmcnt({max(cx, cy) - 1})"]
            if cx != cy: g += [f"RAW s_cmp_eq_u32 s7, {1 if cx < cy else 0}", f"RAW s_cbranch_scc1 L_cap{n}", f"RAW s_waitcnt vmcnt({min(cx, cy) - 1})"]
            g += [f"LABEL L_cap{n}"]
        g.append(f"buffer_load_dwordx4 v{vo}, {srdn}, s51 offen offset:{(j % 4)*1024} nt lds ; @u{u}")
        G.append("\n".join(g))
    return G
dma_unit.n = 0
def softmax(qb, t, first):
    L = gen5.softmax(qb, t, first)
    return [x + '\ns_mov_b64 vcc, s[48:49]' if x.startswith('s_cbranch_vccz L_sk') else x for x in L]
def kreads(t): return [f"ds_read_b128 {ar(KF+4*s,4)}, v{VKA+s} offset:{((2*t) % NS) * SLOT}" for s in range(8)]
def vreads(t):
    return [f"ds_read_b64_tr_b16 {ar(VF + db*8 + s*4 + k*2, 2)}, v{VVA+db} offset:{((2*t+1) % NS)*SLOT + 4096*s + 2048*k}"
            for s in range(2) for db in range(4) for k in range(2)]
def tile_body(a, opt, t, carry, extra=()):
    first = t == 0
    M = qk(0, first) + (pv(2, t == 1) if t else [None]*8) + qk(1, first) + pv(0, first) + qk(2, first) + pv(1, first)
    W = opt.w0
    sl = [[] for _ in range(48 + W)]
    def at(G, slots):
        for g, k in zip(G, slots): sl[k].append(g)
    if 2*t + NS <= 31: at(dma_unit(2*t + NS, opt), opt.d1)
    spread(sl, [f"WAITVM u{2*t+1}"] + vreads(t), *opt.vwin)
    if 2*t + NS + 1 <= 31: at(dma_unit(2*t + NS + 1, opt), opt.d2)
    if t < 15: spread(sl, [f"WAITVM u{2*t+2}"] + kreads(t + 1), *opt.kwin)
    sl[46].append("s_add_u32 s45, s45, 1\nv_mov_b32 v27, s45\nds_write_b32 v109, v27 offset:16")
    if t <= 14:
        sl[44].append("ds_read_b64 v[30:31], v26")
        g = """AUTO v_min_u32 v30, v30, v31
s_add_u32 s38, s38, s50
v_readfirstlane_b32 s3, v30
s_add_u32 s47, s3, s7
s_sub_u32 s47, s47, 1
s_cmp_lt_u32 s47, 16
s_cselect_b64 s[48:49], -1, 0
s_mov_b64 vcc, s[48:49]"""
        if opt.hold: g += f"""
s_lshl_b32 s3, s3, 2
s_cmp_ge_i32 s3, s38
s_cbranch_scc1 L_go{t}
s_call_b64 s[40:41], L_hold
LABEL L_go{t}"""
        sl[47].append(g)
    for e in extra: spread(sl, *e)
    for i, x in enumerate(carry): sl[i] = x + sl[i]
    ghost = {48 + k: "buffer_x\ns_nop 0\ns_nop 0" for k in opt.d1 if k < W}
    for k, g in ghost.items(): sl[k].append(g)
    level_fill(sl, softmax(0, t, first), W, W + 16, opt.dcost)
    level_fill(sl, softmax(1, t, first), W + 16, W + 32, opt.dcost)
    level_fill(sl, softmax(2, t, first), W + 32, W + 48, opt.dcost)
    for k in ghost: sl[k] = sl[k][1:]
    for i in range(48):
        if opt.fewwait:
            if i == 0: a.wait(lgregs=regs_of(ar(KF, 32)))
            if i == 24: a.wait(lgregs=regs_of(ar(VF, 32)))
        if M[i]: emit(a, [M[i]])
        for x in sl[i]:
            if opt.acct and x.startswith("WAITVM"):
                keep = list(a.lg)
                a.e("s_memtime s[94:95]"); emit(a, [x]); a.e("s_memtime s[96:97]\ns_waitcnt lgkmcnt(0)\ns_sub_u32 s96, s96, s94")
                r = 98 if int(x.split("u")[1]) % 2 else 100
                a.e(f"s_add_u32 s{r}, s{r}, s96")
            elif opt.acct == 2 and "lds ;" in x:
                a.e("s_memtime s[94:95]"); emit(a, [x]); a.e("s_memtime s[96:97]\ns_waitcnt lgkmcnt(0)\ns_sub_u32 s96, s96, s94\ns_add_u32 s92, s92, s96")
            else: emit(a, [x])
    return sl[48:]

def save(a): return (list(a.hist), list(a.lg), list(a.vm))
def load(a, st): a.hist, a.lg, a.vm = (list(x) for x in st)

def kernel(a, name, opt):
    assert opt.thr0 + opt.thr1 * (int(opt.pace * 7) - 1) <= 0
    a.raw(".text"); a.raw(f".globl {name}"); a.raw(".p2align 8"); a.raw(f".type {name},@function")
    a.label(name, reset=True)
    a.e("""s_load_dwordx8 s[56:63], s[0:1], 0
           s_load_dwordx8 s[64:71], s[0:1], 40
           s_load_dwordx2 s[72:73], s[0:1], 96
           s_load_dwordx2 s[40:41], s[0:1], 32
           s_load_dwordx2 s[42:43], s[0:1], 72
           s_load_dwordx4 s[44:47], s[0:1], 80
           s_memrealtime s[48:49]
           s_cmp_ge_u32 s2, 256
           s_cbranch_scc1 L_done""")
    if opt.stamps: a.e(f"{opt.clk} s[{STB}:{STB+1}]")
    VW, VXA, VXB, AW, AX, VD = 72, 73, 74, 76, 64, 111
    G, L15, H, L31, G1, R, C4 = 88, 89, 90, 91, 92, 81, 82
    VFO, VFP = 109, 110
    a.e(f"""v_lshrrev_b32 v1, 6, v0
            s_and_b32 s3, s2, 7
            s_lshr_b32 s29, s3, 2
            s_and_b32 s30, s3, 3
            v_readfirstlane_b32 s28, v1
            s_lshr_b32 s3, s2, 3
            s_lshr_b32 s31, s3, 2
            s_and_b32 s32, s3, 3
            v_and_b32 v1, 63, v0
            v_lshrrev_b32 v{G}, 4, v1
            v_and_b32 v{L15}, 15, v1
            v_lshlrev_b32 v55, 2, v{G}
            v_xor_b32 v55, v{L15}, v55
            v_lshlrev_b32 v55, 4, v55
            v_lshl_add_u32 v{VW}, v{G}, 13, v55
            v_lshl_add_u32 v{VOFFV}, v{G}, 8, v55
            v_lshrrev_b32 v56, 3, v1
            v_and_b32 v57, 7, v1
            v_mul_u32_u24 v60, 1152, v56
            v_xor_b32 v61, v57, v{G}
            s_and_b32 s6, s28, 1
            s_lshr_b32 s7, s28, 1
            s_lshl_b32 s3, s6, 2
            v_xor_b32 v61, s3, v61
            v_lshl_add_u32 v{VXA}, v61, 4, v60
            v_xor_b32 v61, 4, v61
            v_lshl_add_u32 v{VXB}, v61, 4, v60
            s_lshl_b32 s33, s30, 3
            s_lshl_b32 s3, s32, 1
            s_add_u32 s33, s33, s3              ; head X
            s_add_u32 s74, s3, s31              ; b + 2p
            s_lshl_b32 s52, s33, 8
            s_lshl_b32 s3, s28, 17
            s_add_u32 s52, s52, s3
            s_mul_i32 s53, s31, 110592
            s_mul_i32 s3, s28, 27648
            s_add_u32 s53, s53, s3              ; x rows 24w..
            s_lshl_b32 s54, s28, 12
            s_mul_i32 s55, s28, 3072
            s_mov_b32 s18, 884736
            s_mov_b32 s19, 0x20000
            s_mov_b32 s22, 4718592
            s_mov_b32 s23, 0x20000""")
    if opt.krot == 0: a.e("s_mov_b32 s74, 0")
    elif opt.krot == 1: a.e("s_cmp_ge_u32 s74, 9\ns_cselect_b32 s3, 9, 0\ns_sub_u32 s74, s74, s3")
    elif opt.krot == 3: a.e("s_and_b32 s74, s74, 1\ns_lshl_b32 s74, s74, 2")
    a.e("s_cmp_eq_u32 s29, 0\ns_waitcnt lgkmcnt(0)")
    for d, o in ((20, 6), (16, 0), (8, 2), (12, 4)):
        a.e(f"s_cselect_b32 s{d}, s{56+o}, s{64+o}\ns_cselect_b32 s{d+1}, s{57+o}, s{65+o}")
    a.e("""s_cselect_b32 s76, s40, s42
           s_cselect_b32 s77, s41, s43
           s_mov_b64 s[78:79], s[44:45]
           s_mov_b64 s[80:81], s[46:47]
           s_or_b32 s75, s48, 1""")
    def stage(tag, buf, nw, nx, pw='', px=''):
        Gs = []
        for j in range(nw):
            g = ["s_lshl_b32 s4, s74, 19", "s_add_u32 s4, s4, s52"] if j == 0 else ["s_add_u32 s4, s4, 32768"]
            g += [f"s_add_u32 m0, s54, {STG(buf) + j*1024}", f"buffer_load_dwordx4 v{VW}, s[20:23], s4 offen{pw} lds ; @{tag}"]
            Gs.append("\n".join(g))
        for i in range(nx):
            g = ["s_lshl_b32 s5, s74, 7", "s_add_u32 s5, s5, s53"] if i == 0 else [f"s_add_u32 s5, s5, {8*1152}"]
            g += [f"s_add_u32 m0, s55, {STG(buf) + 16384 + i*1024}", f"buffer_load_dwordx4 v{VXB if i % 2 else VXA}, s[16:19], s5 offen{px} lds ; @{tag}"]
            if i == nx - 1: g += ["s_add_u32 s74, s74, 1", "s_cmp_eq_u32 s74, 9", "s_cselect_b32 s74, 0, s74"]
            Gs.append("\n".join(g))
        return Gs
    P = lambda ch: " nt" if ch == "n" else ""
    stA = lambda c: stage(f"s{c}", c % 4, 4, 3, P(opt.wp[0]), P(opt.wp[1]))
    emit(a, stA(0) + stA(1))
    srd(a, 56, "s80", "s81", 256)
    a.e("""s_lshl_b32 s3, s2, 8
           v_add_u32 v106, s3, v0
           v_min_u32 v106, 1, v106
           v_lshlrev_b32 v106, 12, v106
           v_mov_b32 v107, s75
           buffer_store_dword v107, v106, s[56:59], 0 offen sc1""")
    emit(a, stA(2))
    for d in (8, 12): a.e(f"s_mov_b32 s{d+2}, {1 << 26}\ns_mov_b32 s{d+3}, 0x20000")
    srd(a, 24, "s72", "s73", WS_BYTES)
    srd(a, 60, "s76", "s77", 4718592)
    a.e(f"""v_lshrrev_b32 v{H}, 5, v1
            v_and_b32 v{L31}, 31, v1
            v_and_b32 v{G1}, 1, v{G}
            v_lshrrev_b32 v{R}, 2, v{L15}
            v_and_b32 v{C4}, 3, v1
            v_lshl_add_u32 v59, v{H}, 3, v{R}
            v_lshlrev_b32 v59, 8, v59
            v_lshl_add_u32 v59, v{R}, 6, v59
            v_lshl_add_u32 v59, v{G1}, 5, v59
            v_lshl_add_u32 v75, v{C4}, 3, v59
            s_lshl_b32 s3, s28, 6
            v_xor_b32 v59, s3, v75
            v_add_u32 v{AW}, {STG(0)}, v59
            v_add_u32 v{AW+2}, {STG(2)}, v59
            v_bfe_u32 v60, v1, 1, 3
            v_xor_b32 v60, v60, v{H}
            v_lshlrev_b32 v60, 4, v60
            v_lshl_add_u32 v60, v{L31}, 7, v60""")
    for s in range(4):
        a.e(f"v_xor_b32 v61, {32*s}, v60\nv_add_u32 v{AX+s}, {STG(0)+16384}, v61\nv_add_u32 v{AX+4+s}, {STG(2)+16384}, v61")
    a.e(f"""s_lshl_b32 s3, s28, 2
            s_add_u32 s3, s3, {TOP + 3072}
            v_mov_b32 v{VFO}, s3
            v_xor_b32 v{VFP}, 4, v{VFO}
            v_mov_b32 v61, 0
            ds_write_b32 v{VFO}, v61
            ds_write_b32 v{VFO}, v61 offset:16
            s_mov_b32 s44, 0
            s_mov_b32 s45, 0""")
    def frag_reads(buf, s, F, ndb):
        hi = buf // 2; off = (buf % 2) * 28672
        L = [f"ds_read_b64_tr_b16 {vr(F + db*4 + k*2, 2)}, v{AW+db+2*hi} offset:{off + (16*s + 4*k) * 256}" for db in range(ndb) for k in range(2)]
        return L + [f"ds_read_b128 {vr(F + 4*ndb + qb*4, 4)}, v{AX+s+4*hi} offset:{off + qb*4096}" for qb in range(3)]
    setup = f"""v_lshlrev_b32 v26, 8, v{G}
            v_xor_b32 v27, v{L15}, v{G}
            v_lshl_add_u32 v{VOFFK}, v27, 4, v26
            v_xor_b32 v{VOFFK+1}, 64, v{VOFFK}
            v_xor_b32 v{VOFFK+2}, 128, v{VOFFK}
            v_xor_b32 v{VOFFK+3}, 192, v{VOFFK}
            s_mul_i32 s37, s7, {YB}
            s_lshl_b32 s3, s6, 13
            s_add_u32 s37, s37, s3
            s_add_u32 s33, s33, s7
            s_lshl_b32 s34, s31, 5
            s_add_u32 s34, s34, s33
            s_lshl_b32 s34, s34, 18
            s_add_u32 s34, s34, s3"""
    if opt.rot:
        setup += """
            s_lshl_b32 s3, s2, 2
            s_add_u32 s3, s3, s7
            s_mul_i32 s3, s3, 0x1e3779b1
            s_lshr_b32 s47, s3, 15
            s_xor_b32 s3, s3, s47
            s_mul_i32 s3, s3, 0x2c1b3c6d
            s_lshr_b32 s3, s3, 20
            s_and_b32 s3, s3, 15
            s_lshl_b32 s35, s3, 14"""
    else: setup += "\ns_mov_b32 s35, 0"
    setup += f"""
            s_mov_b32 s36, s35
            v_xor_b32 v27, v{H}, v{L15}
            v_lshlrev_b32 v27, 4, v27
            v_lshl_add_u32 v27, v{L31}, 8, v27
            v_add_u32 v{VKA}, s37, v27"""
    for s in range(1, 8): setup += f"\nv_xor_b32 v{VKA+s}, {32*s}, v{VKA}"
    setup += f"""
            v_lshl_add_u32 v28, v{H}, 2, v{R}
            v_lshlrev_b32 v28, 8, v28
            v_lshl_add_u32 v28, v{R}, 6, v28
            v_lshl_add_u32 v28, v{G1}, 5, v28
            v_lshl_add_u32 v28, v{C4}, 3, v28
            s_lshl_b32 s47, s6, 7
            v_xor_b32 v28, s47, v28
            v_add_u32 v{VVA}, s37, v28"""
    for db in range(1, 4): setup += f"\nv_xor_b32 v{VVA+db}, {64*db}, v{VVA}"
    setup += f"\ns_mov_b32 s42, {f2u(CSC):#x}\ns_mov_b32 s43, {f2u(THR_LOG2):#x}"
    for qb in range(3): setup += f"\nv_mov_b32 v{LSUM+qb}, 0"
    setup = [x.strip() for x in setup.split("\n")]
    VO, VL16, AD, VOL = 93, 102, 103, 107
    def vo_calc(dst, rev):
        L = []
        for i in range(9):
            L += [f"v_add_u32 v84, {64*i}, v1", "v_mul_u32_u24 v85, 58255, v84", "v_lshrrev_b32 v85, 20, v85", "v_mul_u32_u24 v86, 18, v85",
                  "v_sub_u32 v86, v84, v86", "v_xor_b32 v87, 1, v86", "v_sub_u32 v87, 17, v87"]
            if rev == "vcc": L += ["v_cndmask_b32 v87, v86, v87, vcc"]
            L += ["v_mul_u32_u24 v85, 1152, v85", f"v_lshl_add_u32 v{dst+i}, v87, 4, v85"]
        return L
    setup2 = ["s_cmp_eq_u32 s7, 1\ns_cselect_b64 vcc, -1, 0"] + vo_calc(VO, "vcc") + [x.strip() for x in f"""v_lshlrev_b32 v{VL16}, 4, v1
            v_lshlrev_b32 v84, 4, v{H}
            v_lshl_add_u32 v84, v{G1}, 2, v84
            v_add_u32 v84, v84, v{R}
            v_mul_u32_u24 v84, 288, v84
            v_lshl_add_u32 v84, v{C4}, 3, v84
            s_mul_i32 s3, s7, 18432
            v_add_u32 v{AD+1}, s3, v84
            v_add_u32 v{AD}, {SB[0]}, v{AD+1}
            v_lshlrev_b32 v{VOL}, 10, v{G1}
            v_lshl_add_u32 v{VOL}, v{H}, 8, v{VOL}
            v_lshl_add_u32 v{VOL}, v{L15}, 4, v{VOL}
            v_mov_b32 v108, 0
            s_mul_i32 s67, s30, 1179648
            s_mul_i32 s3, s32, 288
            s_add_u32 s64, s67, s3              ; wo: rows of the octet, columns 144p..
            s_lshl_b32 s39, s29, 3
            s_add_u32 s39, s39, s31""".split("\n")]
    def psync(pre_wait=True):
        psync.n += 1; n = psync.n
        a.e(f"""s_add_u32 s44, s44, 1
                v_mov_b32 v{VD}, s44
                ds_write_b32 v{VFO}, v{VD}
                s_mov_b32 s47, 0x400000""")
        a.label(f"L_ps{n}")
        a.e(f"""ds_read_b32 v{VD}, v{VFP}
                s_sub_u32 s47, s47, 1
                s_waitcnt lgkmcnt(0)
                v_readfirstlane_b32 s3, v{VD}
                s_cmp_eq_u32 s47, 0
                s_cselect_b32 s3, s44, s3
                s_cmp_lt_u32 s3, s44
                s_cbranch_scc1 L_ps{n}""")
    psync.n = 0
    def other_pair(name, word, val, T=84):
        a.e(f"v_mov_b32 v{T+2}, {TOP + 3072 + word}\ns_mov_b32 s47, 0x400000")
        a.label(name)
        a.e(f"""s_sleep 2
                ds_read_b64 v[{T}:{T+1}], v{T+2}
                s_sub_u32 s47, s47, 1
                s_waitcnt lgkmcnt(0)
                v_min_u32 v{T}, v{T}, v{T+1}
                v_readfirstlane_b32 s3, v{T}
                s_cmp_eq_u32 s47, 0
                s_cselect_b32 s3, {val}, s3
                s_cmp_lt_u32 s3, {val}
                s_cbranch_scc1 {name}""")

    ACC = 112
    FS = (32, 48, 160, 176)
    a.wait(vmtags=["s0"], lg0=True); a.e("s_barrier")
    stamp(a, "q0", opt)
    emit(a, frag_reads(0, 0, FS[0], 1) + frag_reads(0, 1, FS[1], 1))
    def chunkA(c, sl, fill):
        for s in range(4):
            F = FS[s]; k0 = (c*4 + s) * 3
            if s == 2:
                a.wait(vmtags=[f"s{c+1}"]); a.e("s_barrier")
                stamp(a, f"c{c}", opt)
                spread(sl, fill, k0, k0 + 12)
            if s < 2: emit(a, frag_reads(c % 4, s + 2, FS[s + 2], 1))
            elif c < 8: emit(a, frag_reads((c + 1) % 4, s - 2, FS[s - 2], 1))
            for qb in range(3):
                d = vr(ACC + qb*16, 16)
                emit(a, [f"v_mfma_f32_32x32x16_bf16 {d}, {vr(F,4)}, {vr(F+4+qb*4,4)}, " + ("0" if (c == 0 and s == 0) else d)] + sl[k0 + qb])
    sl = [[] for _ in range(120)]
    spread(sl, setup, 0, 45)
    for c in range(6): chunkA(c, sl, stA(c + 3))
    a.e("s_cmp_eq_u32 s7, 1\ns_cbranch_scc1 L_roleY")
    st0 = save(a); sl0 = [list(x) for x in sl]
    def qwrite(blocks, dreg, area):
        a.e(f"""v_xor_b32 v55, {dreg}, v{L15}
                v_lshlrev_b32 v55, 4, v55
                v_lshl_add_u32 v55, v{L31}, 8, v55
                v_lshl_add_u32 v55, v{H}, 3, v55
                v_add_u32 v55, {area}, v55
                v_mov_b32 v62, s42""")
        for db in range(blocks):
            for i in range(4):
                a.e(f"v_xor_b32 v54, {(4*db + i)*16}, v55")
                for qb in range(3):
                    r = ACC + (db*3 + qb)*16 + 4*i; tq = 56 + 2 * qb
                    a.e(f"""v_pk_mul_f32 v[{r}:{r+1}], v[{r}:{r+1}], v[62:63] op_sel_hi:[1,0]
                            v_pk_mul_f32 v[{r+2}:{r+3}], v[{r+2}:{r+3}], v[62:63] op_sel_hi:[1,0]
                            v_cvt_pk_bf16_f32 v{tq}, v{r}, v{r+1}
                            v_cvt_pk_bf16_f32 v{tq+1}, v{r+2}, v{r+3}
                            ds_write_b64 v54, v[{tq}:{tq+1}] offset:{qb*8192}""")
    def qread(area):
        a.e(f"s_sub_u32 s3, {area}, s37")
        for s in range(8): a.e(f"v_add_u32 v{32+s}, s3, v{VKA+s}")
        for qb in range(3):
            for s in range(8): a.e(f"ds_read_b128 {vr(Qreg(qb,s),4)}, v{32+s} offset:{qb*8192}")
    def finishA(sl, fills):
        for c in range(6, 9): chunkA(c, sl, fills.get(c, []))
        for x in sl[108:]: emit(a, x)
        a.e("s_barrier\ns_lshl_b32 s3, s28, 2")
        qwrite(1, "s3", STG(3))
        a.e("s_waitcnt lgkmcnt(0)\ns_barrier")
    u0, u1 = dma_unit(0, opt), dma_unit(1, opt)
    finishA(sl, {6: u0, 7: u1})
    qread(STG(3))
    stamp(a, "qx", opt)
    emit(a, dma_unit(2, opt))
    a.e("s_branch L_attn")
    stX = save(a)
    a.label("L_roleY"); load(a, st0)
    finishA(sl0, {})
    a.e(f"""s_add_u32 s52, s33, 0
            s_lshl_b32 s52, s52, 8
            s_lshl_b32 s3, s6, 18
            s_add_u32 s52, s52, s3
            s_mul_i32 s53, s31, 110592
            s_mul_i32 s3, s6, 55296
            s_add_u32 s53, s53, s3
            s_lshl_b32 s54, s6, 13
            s_mul_i32 s55, s6, 6144
            s_cmp_eq_u32 s6, 1
            s_cselect_b64 vcc, -1, 0
            v_cndmask_b32 v54, v{VXA}, v{VXB}, vcc
            v_cndmask_b32 v{VXB}, v{VXB}, v{VXA}, vcc
            v_mov_b32 v{VXA}, v54
            s_lshl_b32 s3, s6, 7
            v_xor_b32 v59, s3, v75
            v_add_u32 v{AW}, {STG(0)}, v59
            v_add_u32 v{AW+2}, {STG(2)}, v59
            v_xor_b32 v59, 64, v59
            v_add_u32 v{AW+1}, {STG(0)}, v59
            v_add_u32 v{AW+3}, {STG(2)}, v59""")
    stB = lambda c: [] if opt.noB else stage(f"y{c}", 1 + c % 3, 8, 6, P(opt.wp[2]), P(opt.wp[3]))
    emit(a, stB(0) + stB(1))
    FA, FB = 24, 44
    a.wait(vmtags=["y0"]); psync()
    stamp(a, "y0", opt)
    emit(a, frag_reads(1, 0, FA, 2))
    sl = [[] for _ in range(240)]
    other_pair("L_qx", 16, 1)
    spread(sl, stB(2), 0, 18)
    for c in range(9):
        for s in range(4):
            F, nF = (FA, FB) if s % 2 == 0 else (FB, FA)
            k0 = (c*4 + s) * 6
            if s == 3:
                a.wait(vmtags=[f"y{c+1}"], lg0=True); psync()
                stamp(a, f"y{c+1}", opt)
                if c + 3 <= 8:
                    if int(opt.pace * (c + 2)) > 1: other_pair(f"L_pace{c}", 16, int(opt.pace * (c + 2)))
                    spread(sl, stB(c + 3), k0, k0 + 24)
                elif c < 8: spread(sl, dma_unit(c - 6, opt), k0, k0 + 24)
                if c < 8: emit(a, frag_reads(1 + (c + 1) % 3, 0, nF, 2))
            else: emit(a, frag_reads(1 + c % 3, s + 1, nF, 2))
            i = 0
            for db in range(2):
                for qb in range(3):
                    d = vr(ACC + (db*3 + qb)*16, 16)
                    emit(a, [f"v_mfma_f32_32x32x16_bf16 {d}, {vr(F+db*4,4)}, {vr(F+8+qb*4,4)}, " + ("0" if (c == 0 and s == 0) else d)] + sl[k0 + i]); i += 1
    assert not any(sl[216:])
    a.e("s_lshl_b32 s3, s6, 3")
    qwrite(2, "s3", STG(2))
    a.e("s_waitcnt lgkmcnt(0)"); psync()
    qread(STG(2))
    a.e(f"s_waitcnt lgkmcnt(0)\ns_add_u32 s44, s44, 1\nv_mov_b32 v{VD}, s44\nds_write_b32 v{VFO}, v{VD}")
    ydone = psync.n + 1
    stamp(a, "qy", opt)
    emit(a, dma_unit(2, opt))
    assert [o.tag for o in a.vm][-8*NS:] == [o.tag for o in stX[2]][-8*NS:]
    a.label("L_attn")
    a.wait(vmtags=["u0"], lg0=True)
    emit(a, kreads(0))
    stamp(a, "k0", opt)
    a.e(f"""s_lshl_b32 s3, s7, 3
            s_sub_u32 s3, {TOP + 3072 + 24}, s3
            v_mov_b32 v26, s3
            s_cmp_eq_u32 s7, 0
            s_cselect_b32 s50, {int(opt.thr1 * 4)}, 0
            s_mov_b32 s38, {int(opt.thr0 * 4)}
            s_cselect_b64 s[48:49], 0, -1
            s_mov_b64 vcc, s[48:49]""")
    if opt.acct: a.e(f"s_mov_b64 s[98:99], s[{STB}:{STB+1}]\ns_mov_b64 s[100:101], s[{STB}:{STB+1}]\ns_mov_b64 s[92:93], s[{STB}:{STB+1}]")
    def wpieces(tag, head, rows, lds, voreg):
        Gs = []
        for i in range(9):
            g = [f"s_add_u32 s4, s66, {head}", "s_and_b32 s4, s4, 7", f"s_mul_i32 s4, s4, {128*1152}", "s_add_u32 s4, s4, s68",
                 f"s_add_u32 s4, s4, {rows*1152}"] if i == 0 else []
            g += [f"s_add_u32 m0, s65, {lds + i*1024}", f"buffer_load_dwordx4 v{voreg+i}, s[60:63], s4 offen{opt.wopol} lds ; @{tag}"]
            Gs.append("\n".join(g))
        return Gs
    HEAD = (0, 2, 4, 6, 1, 3, 5, 7)
    wS = lambda st: wpieces(f"w{st}", HEAD[st], 0, SB[st % 4], VO)
    wX = lambda st, VOR: wpieces(f"w{st}", HEAD[st], 0, SB[st % 4], VO) + wpieces(f"w{st}", HEAD[st], 64, SB[st % 4] + 18432, VOR)
    setW = ["s_lshl_b32 s66, s32, 1", "s_mul_i32 s65, s28, 9216", f"s_mul_i32 s68, s28, {32*1152}", "s_add_u32 s68, s68, s64"]
    carry = tile_body(a, opt, 0, [])
    carry = tile_body(a, opt, 1, carry)
    emit(a, setup2 + setW + ['s_mov_b64 vcc, s[48:49]'])
    if opt.unroll:
        for t in range(2, 14):
            stamp(a, f'r{t}', opt); carry = tile_body(a, opt, t, carry)
    else:
        stamp(a, "l0", opt)
        a.e("s_mov_b32 s46, 4")
        a.raw(".p2align 6"); a.label("L_tile")
        keep = list(a.vm)
        if opt.late:
            a.e(f"""s_lshl_b32 s3, s7, 3
                    s_add_u32 s3, s3, s46
                    s_cmp_lg_u32 s3, {opt.late}
                    s_cbranch_scc1 L_nolate
                    s_lshr_b32 s3, s2, 3
                    s_lshl_b32 s3, s3, 1
                    s_add_u32 s3, s3, s6
                    s_mul_i32 s3, s3, 18432
                    v_lshlrev_b32 v84, 7, v1
                    v_add_u32 v84, s3, v84
                    v_add_u32 v85, 8192, v84
                    v_add_u32 v86, 16384, v84
                    v_cmp_gt_u32 vcc, 16, v1
                    v_cndmask_b32 v86, -1, v86, vcc""")
            emit(a, [f"buffer_load_dword v87, v{r}, s[60:63], s67 offen{opt.tpol} ; @junk" for r in (84, 85, 86)])
            a.e("s_mov_b64 vcc, s[48:49]")
            a.label("L_nolate")
        a.vm = keep
        for t in (2, 3, 4): carry = tile_body(a, opt, t, carry)
        a.e("s_sub_u32 s46, s46, 1\ns_cmp_lg_u32 s46, 0\ns_cbranch_scc1 L_tile")
        for o in a.vm:
            if o.tag and o.tag[0] == "u": o.tag = f"u{int(o.tag[1:]) + 18}"
    stamp(a, "l1", opt)
    carry = tile_body(a, opt, 14, carry)
    xo = lambda k: (k // 8) * SLOT + (k % 8) * 1024
    def send(qb):
        return [f"ds_write_b128 v28, {ar(Oacc(2+i,qb) + 4*g, 4)} offset:{xo((i*3 + qb)*4 + g)}" for i in range(2) for g in range(4)]
    pre = ["buffer_load_dword v106, v108, s[56:59], 0 offen sc1 ; @tag",
           f"v_add_u32 v28, s37, v{VL16}", "s_lshl_b32 s3, s6, 14\ns_sub_u32 s3, 8192, s3", "v_add_u32 v29, s3, v28",
           f"s_mul_i32 s3, s28, 768\ns_add_u32 s3, s3, {TOP}", f"v_lshlrev_b32 v30, 3, v{L31}", "v_add_u32 v30, s3, v30",
           f"s_xor_b32 s3, s28, 1\ns_mul_i32 s3, s3, 768\ns_add_u32 s3, s3, {TOP}", f"v_lshlrev_b32 v31, 3, v{L31}", "v_add_u32 v31, s3, v31"]
    team = "v_and_b32 v13, 3, v1\nv_lshlrev_b32 v13, 10, v13\nv_and_b32 v14, 4, v1\nv_add_u32 v13, v13, v14"
    askX = [f"s_andn2_b32 s71, s2, 24\ns_lshl_b32 s71, s71, 7\ns_add_u32 s69, s71, {WS_F}"] + team.split("\n") + ["buffer_load_dword v12, v13, s[24:27], s69 offen sc1"]
    carry = tile_body(a, opt, 15, carry, extra=[(pre, 8, 16), (askX, 28, 34), (send(0), 34, 48)])
    sl = [[] for _ in range(8)]
    carry = [x for y in carry for x in y]
    emit(a, carry[:len(carry)//2])
    spread(sl, carry[len(carry)//2:], 0, 3)
    st = []
    for qb in range(3): st += [f"v_mov_b32 v{3+2*qb}, v{LSUM+qb}", f"v_mov_b32 v{2+2*qb}, v{NM+16*qb}"]
    for qb in range(3): st += [f"v_permlane32_swap_b32 v{LSUM+qb}, v{3+2*qb}"]
    for qb in range(3): st += [f"v_add_f32 v{3+2*qb}, v{LSUM+qb}, v{3+2*qb}", f"ds_write_b64 v30, v[{2+2*qb}:{3+2*qb}] offset:{qb*256}"]
    spread(sl, st + send(1), 3, 8)
    for m, f in zip(pv(2, False), sl): emit(a, [m] + f)
    stamp(a, "t15", opt)
    emit(a, send(2))
    for r in range(96): a.e(f"v_accvgpr_read_b32 v{160 + r}, a{r}")
    a.e("s_mov_b32 s4, 0x100000")
    a.label("L_tag")
    a.e("""s_waitcnt vmcnt(0)
           v_readfirstlane_b32 s75, v106
           s_cmp_lg_u32 s75, 0
           s_cbranch_scc1 L_tag_ok
           buffer_load_dword v106, v108, s[56:59], 0 offen sc1 ; @junk
           s_sub_u32 s4, s4, 1
           s_cmp_lg_u32 s4, 0
           s_cbranch_scc1 L_tag""")
    a.label("L_tag_ok"); a.vm = []
    a.e(f"""s_lshl_b32 s3, s39, 5
            s_add_u32 s3, s3, s33
            s_mul_i32 s52, s3, 24576
            s_mul_i32 s3, s6, 12288
            s_add_u32 s52, s52, s3
            s_waitcnt lgkmcnt(0)""")
    ACC, WF, OF = 112, 16, 0
    def ask(base, lanes):
        a.e(f"s_add_u32 s69, {base}, {WS_F}\n{lanes}\nbuffer_load_dword v12, v13, s[24:27], s69 offen sc1")
    def check(tag):
        a.e("s_mov_b32 s4, 0x100000")
        a.label(f"L_poll{tag}")
        a.e(f"""s_waitcnt vmcnt(0)
                v_cmp_ne_u32 vcc, s75, v12
                s_cbranch_vccz L_got{tag}
                s_sleep 1
                buffer_load_dword v12, v13, s[24:27], s69 offen sc1
                s_sub_u32 s4, s4, 1
                s_cmp_lg_u32 s4, 0
                s_cbranch_scc1 L_poll{tag}""")
        a.label(f"L_got{tag}")
        a.e("s_waitcnt vmcnt(0)")
    def wreads(buf, rows, F):
        reg, boff = (AD, AD + 1, 220, 221)[buf], 0
        return [f"ds_read_b64_tr_b16 {vr(F + nb*4 + 2*k, 2)}, v{reg} offset:{boff + (rows + 8*k) * 288 + 32*nb}" for nb in range(9) for k in range(2)]
    def oload(tag, head, db0, nks, dst):
        Gs = []
        for kl in range(nks):
            for j in range(3):
                g = [f"s_add_u32 s47, s66, {head}", "s_and_b32 s47, s47, 7", "s_mul_i32 s47, s47, 24576", "s_add_u32 s47, s47, s37"] + \
                    ([f"s_add_u32 s47, s47, {db0}"] if db0 else []) if kl + j == 0 else ["s_add_u32 s47, s47, 6144"] if j == 0 else []
                Gs.append("\n".join(g + [f"buffer_load_dwordx4 {ar(dst + (kl*3+j)*4, 4)}, v{VL16}, s[24:27], s47 offen offset:{j*1024} sc1 ; @{tag}"]))
        return Gs
    def kstep(F, O, zero, reads, jobs):
        ms = [f"v_mfma_f32_16x16x32_bf16 {vr(ACC + (nb*3+j)*4, 4)}, {vr(F+nb*4,4)}, {ar(O+j*4,4)}, " + ("0" if zero else vr(ACC + (nb*3+j)*4, 4))
              for nb in range(9) for j in range(3)]
        sl = [[] for _ in range(27)]
        spread(sl, reads, 0, 20); spread(sl, jobs, 0, 27)
        a.e("s_waitcnt lgkmcnt(0)")
        for m, f in zip(ms, sl): emit(a, [m] + f)
        return ms
    team = "v_and_b32 v13, 3, v1\nv_lshlrev_b32 v13, 10, v13\nv_and_b32 v14, 4, v1\nv_add_u32 v13, v13, v14"
    a.e(f"""s_lshl_b32 s3, s2, 7
            s_lshl_b32 s4, s28, 2
            s_add_u32 s70, s3, s4
            s_add_u32 s70, s70, {WS_F}
            s_lshl_b32 s3, s39, 2
            s_add_u32 s3, s3, s30
            s_mul_i32 s37, s3, {8*24576}
            s_mul_i32 s4, s6, 3072
            s_add_u32 s37, s37, s4
            s_mul_i32 s4, s7, 12288
            s_add_u32 s37, s37, s4
            s_mov_b32 s45, 0
            s_cmp_eq_u32 s7, 0
            s_cbranch_scc1 L_noearly
            v_cmp_ne_u32 vcc, s75, v12
            s_cbranch_vccnz L_noearly
            s_mov_b32 s45, 1""")
    for st in range(4): emit(a, oload(f"o{st}", HEAD[st], 0, 2, 24*st))
    a.label("L_noearly"); a.vm = []
    a.e(f"v_sub_u32 v27, v29, v{VL16}\nv_add_u32 v27, v27, v{VOL}")
    psync()
    stamp(a, "c_bar", opt)
    for qb in range(3): a.e(f"ds_read_b64 v[{8+2*qb}:{9+2*qb}], v31 offset:{qb*256}")
    RC = (32, 48, 64, 112, 128, 144)
    def recv(blk):
        for g in range(4): a.e(f"ds_read_b128 {vr(RC[blk]+4*g,4)}, v29 offset:{xo(blk*4 + g)}")
    recv(0); recv(1)
    SC = 16
    for qb in range(3):
        pn, pl, on, ol = 8 + 2*qb, 9 + 2*qb, 2 + 2*qb, 3 + 2*qb
        a.auto(f"v_min_f32 v22, v{on}, v{pn}")
        a.e(f"""v_sub_f32 v23, v22, v{on}
                v_sub_f32 v24, v22, v{pn}
                v_exp_f32 v23, v23
                v_exp_f32 v24, v24
                v_mul_f32 v{ol}, v{ol}, v23
                v_fmac_f32 v{ol}, v{pl}, v24
                v_rcp_f32 v{ol}, v{ol}
                v_mul_f32 v{SC+2*qb}, v23, v{ol}
                v_mul_f32 v{SC+2*qb+1}, v24, v{ol}""")
    recv(2); recv(3); recv(4); recv(5)
    for blk in range(6):
        i, qb = divmod(blk, 3)
        K = 160 + blk*16; Rr = RC[blk]
        a.wait(lgregs=regs_of(vr(Rr, 16)))
        for r in range(0, 16, 2):
            a.e(f"v_pk_mul_f32 v[{Rr+r}:{Rr+r+1}], v[{Rr+r}:{Rr+r+1}], v[{SC+2*qb}:{SC+2*qb+1}] op_sel:[0,1] op_sel_hi:[1,1]")
        for r in range(0, 16, 2):
            a.e(f"v_pk_fma_f32 v[{K+r}:{K+r+1}], v[{K+r}:{K+r+1}], v[{SC+2*qb}:{SC+2*qb+1}], v[{Rr+r}:{Rr+r+1}] op_sel_hi:[1,0,1]")
        for j in range(8):
            a.e(f"v_cvt_pk_bf16_f32 v{K+8*(j//4)+j%4}, v{K+2*j}, v{K+2*j+1}")
        a.e(f"s_add_u32 s47, s52, {WS_O + (i*6 + 2*qb)*1024}")
        for s in range(2):
            a.e(f"buffer_store_dwordx4 {vr(K+8*s,4)}, v{VOL}, s[24:27], s47 offen offset:{512*s} sc1")
            a.e(f"ds_write_b128 v27, {vr(K+8*s,4)} offset:{xo(i*6 + 2*qb) + 512*s}")
    stamp(a, "comb", opt)
    a.e("v_mov_b32 v14, s75\ns_cmp_eq_u32 s7, 1\ns_cbranch_scc1 L_tailY")
    stT = save(a)
    a.e("s_waitcnt vmcnt(0)\nbuffer_store_dword v14, v108, s[24:27], s70 offen sc1")
    VOR = 224
    emit(a, vo_calc(VOR, "rev"))
    other_pair("L_yq", 8, ydone)
    emit(a, wX(0, VOR))
    psync()
    emit(a, wX(1, VOR))
    ask("s71", team); check("A")
    stamp(a, "chkA", opt)
    for st in range(4): emit(a, oload(f"o{st}", HEAD[st], 0, 2, 24*st))
    a.e("s_waitcnt vmcnt(0)\ns_branch L_join")
    a.label("L_tailY"); load(a, stT)
    a.e("s_cmp_eq_u32 s45, 1\ns_cbranch_scc1 L_hadearly")
    sv = save(a)
    ask("s71", team); check("Y")
    a.vm = list(sv[2])
    for st in range(4): emit(a, oload(f"o{st}", HEAD[st], 0, 2, 24*st))
    a.label("L_hadearly")
    a.e("s_waitcnt lgkmcnt(0)")
    a.label("L_join"); a.lg = []
    a.e(f"""s_add_u32 s71, s71, 8
            v_add_u32 v220, {SB[2] - SB[1]}, v{AD+1}
            v_add_u32 v221, {SB[3] - SB[1]}, v{AD+1}
            s_mul_i32 s3, s7, -8192
            s_mul_i32 s4, s6, 3072
            s_add_u32 s3, s3, s4
            s_add_u32 s3, s3, {YB + 8192}
            v_add_u32 v2, s3, v{VL16}
            s_barrier""")
    stamp(a, "join", opt)
    emit(a, wreads(0, 0, WF))
    a.e("s_cmp_eq_u32 s6, 1\ns_cbranch_scc1 L_own1")
    sv = save(a)
    for qh in range(2):
        if qh: a.label("L_own1"); load(a, sv)
        for kl in range(2):
            for j in range(3): a.e(f"ds_read_b128 {ar(96 + (kl*3+j)*4, 4)}, v2 offset:{xo(kl*6 + 3*qh + j) - 3072*qh}")
        if qh == 0: a.e("s_branch L_own2")
    a.label("L_own2")
    a.wait(vmtags=["o0"])
    kstep(WF, 0, True, wreads(0, 32, WF + 36), wS(2))
    a.e("s_cmp_eq_u32 s7, 0\ns_cbranch_scc1 L_nopub\ns_waitcnt vmcnt(9)\nv_mov_b32 v14, s75\nbuffer_store_dword v14, v108, s[24:27], s70 offen sc1 ; @junk")
    a.label("L_nopub"); a.vm = a.vm[:-1]
    a.vm = [o for o in a.vm if o.tag == "w2"]
    a.e("s_waitcnt lgkmcnt(0)\ns_barrier")
    kstep(WF + 36, 12, False, wreads(1, 0, WF), wS(3))
    stamp(a, "g1", opt)
    A = opt.askat
    plan = {(1, 0): "w4", (1, 1): "w5", (A, 1): "o5", (A + 1, 0): "o6", (A + 1, 1): "o7", (A + 2, 0): "w6", (A + 2, 1): "w7"}
    job = lambda st, kl: [] if (st, kl) not in plan else wS(int(plan[st, kl][1])) if plan[st, kl][0] == "w" else \
        oload(plan[st, kl], HEAD[int(plan[st, kl][1])], 0, 2, 24*int(plan[st, kl][1]))
    for st in range(1, 8):
        stamp(a, f"s{st}", opt)
        if st == A: ask("s71", team)
        if st >= 5: a.wait(vmtags=[f"o{st}"])
        kstep(WF, 24*st, False, wreads(st % 4, 32, WF + 36), job(st, 0))
        if st == A: check("B"); stamp(a, "chk1", opt)
        stamp(a, f"h{st}", opt)
        if st < 7:
            a.wait(vmtags=[f"w{st+1}"], lg0=True); a.e("s_barrier")
            stamp(a, f"b{st}", opt)
            kstep(WF + 36, 24*st + 12, False, wreads((st + 1) % 4, 0, WF), job(st, 1))
    a.e(f"""s_lshl_b32 s3, s28, 14
            v_add_u32 v13, s3, v{VL16}
            v_xor_b32 v14, 32768, v13
            s_waitcnt lgkmcnt(0)
            s_barrier""")
    F, O = WF + 36, 180
    ms = [f"v_mfma_f32_16x16x32_bf16 {vr(ACC + (nb*3+j)*4, 4)}, {vr(F+nb*4,4)}, {ar(O+j*4,4)}, {vr(ACC + (nb*3+j)*4, 4)}" for nb in (8, 7, 6, 5, 4, 0, 1, 2, 3) for j in range(3)]
    snd = [f"ds_write_b128 v13, {vr(ACC+(nb*3+j)*4,4)} offset:{((8-nb)*3+j)*1024}" for nb in range(8, 3, -1) for j in range(3)]
    emit(a, ms[:9])
    for k in range(15): emit(a, [ms[9 + k], snd[k]])
    emit(a, ms[24:])
    stamp(a, "gend", opt)
    PT = 512 if opt.pbf16 else 1024
    a.e(f"""s_lshl_b32 s52, s39, 2
            s_add_u32 s52, s52, s32
            s_lshl_b32 s53, s52, 2
            s_add_u32 s53, s53, s30
            s_mul_i32 s53, s53, {54*PT}
            s_mul_i32 s3, s6, {3*PT}
            s_add_u32 s53, s53, s3
            s_mul_i32 s3, s7, {48*PT}
            s_add_u32 s53, s53, s3
            s_add_u32 s47, s53, {WS_P}
            s_mov_b32 s3, {6*PT}
            s_cmp_eq_u32 s7, 1
            s_cselect_b32 s53, {-6*PT}, s3
            v_lshlrev_b32 v9, {3 if opt.pbf16 else 4}, v1
            s_waitcnt lgkmcnt(0)
            s_barrier""")
    stamp(a, "rbar", opt)
    for k in range(15): a.e(f"ds_read_b128 {vr(WF+4*k,4)}, v14 offset:{k*1024}")
    for nb in range(5):
        for j in range(3):
            r = ACC + (nb*3+j)*4; q = WF + (nb*3+j)*4
            a.wait(lgregs=regs_of(vr(q, 4)))
            a.e(f"v_pk_add_f32 v[{r}:{r+1}], v[{r}:{r+1}], v[{q}:{q+1}]\nv_pk_add_f32 v[{r+2}:{r+3}], v[{r+2}:{r+3}], v[{q+2}:{q+3}]")
            if opt.pbf16:
                a.e(f"v_cvt_pk_bf16_f32 v{r}, v{r}, v{r+1}\nv_cvt_pk_bf16_f32 v{r+1}, v{r+2}, v{r+3}")
                a.e(f"buffer_store_dwordx2 {vr(r,2)}, v9, s[24:27], s47 offen offset:{j*PT} sc1")
            else:
                a.e(f"buffer_store_dwordx4 {vr(r,4)}, v9, s[24:27], s47 offen offset:{j*PT} sc1")
        if nb < 4: a.e("s_add_u32 s47, s47, s53")
    a.e(f"""s_add_u32 s70, s70, 32768
            v_mov_b32 v14, s75
            s_andn2_b32 s71, s2, 3
            s_lshl_b32 s71, s71, 7
            s_add_u32 s71, s71, 32768
            v_and_b32 v10, 15, v1
            v_mul_u32_u24 v10, 2304, v10
            v_lshrrev_b32 v11, 4, v1
            v_lshl_add_u32 v10, v11, 3, v10
            s_mul_i32 s52, s52, {4*54*PT}
            s_add_u32 s52, s52, {WS_P}
            s_mul_i32 s53, s31, {96*2304}
            s_mul_i32 s3, s29, 1152
            s_add_u32 s53, s53, s3
            s_mul_i32 s3, s32, 288
            s_add_u32 s53, s53, s3
            s_lshl_b32 s54, s28, 2
            s_add_u32 s54, s54, s30""")
    srd(a, 8, "s78", "s79", 1769472)
    stamp(a, "rst", opt)
    a.e("s_waitcnt vmcnt(0)\nbuffer_store_dword v14, v108, s[24:27], s70 offen sc1")
    stamp(a, "pub2", opt)
    ask("s71", "v_and_b32 v13, 3, v1\nv_lshlrev_b32 v13, 7, v13\nv_and_b32 v14, 12, v1\nv_add_u32 v13, v13, v14")
    check(2)
    stamp(a, "chk2", opt)
    for i in range(4):
        a.e(f"s_add_u32 s{68+i}, s54, {16*i}")
        if i == 3: a.e("s_cmp_ge_u32 s71, 54\ns_cbranch_scc1 L_rd3")
        a.e(f"s_mul_i32 s47, s{68+i}, {PT}\ns_add_u32 s47, s47, s52")
        for o in range(4):
            if opt.pbf16: a.e(f"buffer_load_dwordx2 {vr(16+16*i+4*o+2,2)}, v9, s[24:27], s47 offen sc1")
            else: a.e(f"buffer_load_dwordx4 {vr(16+16*i+4*o,4)}, v9, s[24:27], s47 offen sc1")
            if o < 3: a.e(f"s_add_u32 s47, s47, {54*PT}")
    def fin(i):
        r = 16 + 16*i
        if opt.pbf16:
            for o in range(4):
                b = r + 4*o
                a.e(f"""v_lshlrev_b32 v{b}, 16, v{b+2}
                        v_and_b32 v{b+1}, 0xffff0000, v{b+2}
                        v_lshlrev_b32 v{b+2}, 16, v{b+3}
                        v_and_b32 v{b+3}, 0xffff0000, v{b+3}""")
        for k in range(4): a.e(f"v_add_f32 v{r+k}, v{r+k}, v{r+4+k}\nv_add_f32 v{r+8+k}, v{r+8+k}, v{r+12+k}")
        for k in range(4): a.e(f"v_add_f32 v{r+k}, v{r+k}, v{r+8+k}")
        a.e(f"""v_cvt_pk_bf16_f32 v{r}, v{r}, v{r+1}
                v_cvt_pk_bf16_f32 v{r+1}, v{r+2}, v{r+3}
                s_mul_i32 s3, s{68+i}, 43
                s_lshr_b32 s3, s3, 8
                s_mul_i32 s4, s3, 6
                s_sub_u32 s4, s{68+i}, s4
                s_mul_i32 s4, s4, {16*2304}
                s_lshl_b32 s3, s3, 5
                s_add_u32 s47, s53, s3
                s_add_u32 s47, s47, s4
                buffer_store_dwordx2 v[{r}:{r+1}], v10, s[8:11], s47 offen""")
    sv = save(a)
    for i in range(4):
        a.e(f"s_waitcnt vmcnt({12 - 3*i})"); fin(i)
    a.e("s_branch L_rd4")
    a.label("L_rd3"); load(a, sv); a.vm = a.vm[:-4]
    for i in range(3):
        a.e(f"s_waitcnt vmcnt({8 - 3*i})"); fin(i)
    a.label("L_rd4")
    stamp(a, "end", opt)
    if opt.stamps:
        a.e(f"s_lshl_b32 s3, s2, 2\ns_add_u32 s3, s3, s28\ns_lshl_b32 s3, s3, 7\ns_add_u32 s3, s3, {WS_STAMP}\nv_mov_b32 v0, 0")
        for i in range(1 + len(opt.sset)):
            a.e(f"v_mov_b32 v2, s{STB+2*i}\nv_mov_b32 v3, s{STB+1+2*i}\nbuffer_store_dwordx2 v[2:3], v0, s[24:27], s3 offen offset:{8*i}\ns_waitcnt vmcnt(0)")
    a.label("L_done")
    a.e("s_endpgm")
    for qb in range(3): rare(a, qb)
    a.label("L_hold", reset=True)
    a.e("s_mov_b32 s47, 0x400000")
    a.label("L_hold1")
    a.e("""s_sleep 4
           ds_read_b64 v[30:31], v26
           s_sub_u32 s47, s47, 1
           s_waitcnt lgkmcnt(0)
           v_min_u32 v30, v30, v31
           v_readfirstlane_b32 s3, v30
           s_lshl_b32 s3, s3, 2
           s_cmp_eq_u32 s47, 0
           s_cselect_b32 s3, s38, s3
           s_cmp_lt_i32 s3, s38
           s_cbranch_scc1 L_hold1
           s_setpc_b64 s[40:41]""")

def build(opt):
    a = Asm()
    a.raw("; @launch grid=(256,1,1) block=(256,1,1) lds=163840")
    a.raw('.amdgcn_target "amdgcn-amd-amdhsa--gfx950"')
    kernel(a, NAME + "_kernel", opt)
    a.raw('.section .rodata,"a"\n.p2align 6')
    a.raw("\n".join([f".amdhsa_kernel {NAME}_kernel", "  .amdhsa_next_free_vgpr 512", "  .amdhsa_next_free_sgpr 102",
        "  .amdhsa_accum_offset 256", "  .amdhsa_group_segment_fixed_size 0", "  .amdhsa_kernarg_size 104",
        "  .amdhsa_user_sgpr_count 2", "  .amdhsa_user_sgpr_kernarg_segment_ptr 1",
        "  .amdhsa_system_sgpr_workgroup_id_x 1", ".end_amdhsa_kernel"]))
    return a.text(), a

if __name__ == "__main__":
    opt = Opt()
    out = sys.argv[1] if len(sys.argv) > 1 else "k.s"
    for kv in sys.argv[2:]:
        k, v = kv.split("=", 1); assert hasattr(opt, k), k
        setattr(opt, k, eval(v))
    t, a = build(opt)
    open(out, "w").write(t)
    print(out, "lines", t.count("\n"), "pad", a.npad)
```

```python
import sys, struct, math
sys.path.insert(0, "dev")
from asmlib import Asm, spread, regs_of, level_fill
import gen5
from gen5 import (NAME, f2u, CSC, THR_LOG2, WS_BYTES, WS_O, WS_P, WS_F, WS_STAMP, STB, vr, ar, srd, stamp, emit,
                  VOFFK, VOFFV, VKA, VVA, LSUM, TMAX, VT, NM, S0, Q0, KF, VF, Sreg, Qreg, Oacc, softmax, qk, pv, rare)

class Opt:
    wp = "pppp"
    noB = False
    stamps = False
    sset = ['q0', 'k0', 't15', 'comb', 'join', 'chk1', 'gend', 'pub2', 'end']
    thr0 = 0.0
    thr1 = 1.25
    clk = "s_memrealtime"
    rot = True
    krot = 3
    pbf16 = True
    cap = (6, 5)
    capend = 30
    hold = False
    ylast = 1
    kvsame = False
    unroll = False
    a0at = 2
    late = 0
    prio = 0
    gate = 12
    pace = 1.0
    d1 = (8, 10, 12, 14, 22, 24, 26, 27)
    d2 = (29, 31, 33, 35, 37, 39, 44, 47)
    dcost = 4.0
    acct = 0
    w0 = 10
    askat = 2
    fewwait = True
    vwin = (16, 22)
    kwin = (40, 44)
    tpol = ''
    wopol = ''

SLOT = 16384
STG = lambda i: 45056 + 28672 * i
TOP = 159744
SB = (122880, 0, 86016, 49152)
NS = 3
YB = 49152

def dma_unit(u, opt):
    kind = "KV"[u % 2]; sreg = "s36" if kind == "K" else "s35"
    srdn = "s[8:11]" if kind == "K" else "s[12:15]"
    G = []
    for j in range(8):
        g = []
        if j == 0: g += [f"s_add_u32 m0, s37, {(u % NS) * SLOT}", f"s_add_u32 s51, s34, {sreg}"]
        if j == 1 and not opt.kvsame: g += [f"s_add_u32 {sreg}, {sreg}, 16384", f"s_and_b32 {sreg}, {sreg}, 0x3ffff"]
        if j == 4: g += [f"s_add_u32 m0, s37, {(u % NS) * SLOT + 4096}", "s_add_u32 s51, s51, 4096"]
        vo = VOFFK + j % 4 if kind == "K" else VOFFV
        if opt.cap and 3 <= u <= opt.capend:
            cx, cy = opt.cap
            cx, cy = (c if isinstance(c, int) else c[j % len(c)] for c in (cx, cy))
            g.append(f"s_waitcnt vmcnt({cx - 1})")
            if cy < cx:
                dma_unit.n += 1
                g += ["s_cmp_eq_u32 s50, 0", f"s_cbranch_scc1 L_cap{dma_unit.n}", f"RAW s_waitcnt vmcnt({cy - 1})", f"LABEL L_cap{dma_unit.n}"]
        g.append(f"buffer_load_dwordx4 v{vo}, {srdn}, s51 offen offset:{(j % 4)*1024} nt lds ; @u{u}")
        G.append("\n".join(g))
    return G
dma_unit.n = 0
def kreads(t): return [f"ds_read_b128 {ar(KF+4*s,4)}, v{VKA+s} offset:{((2*t) % NS) * SLOT}" for s in range(8)]
def vreads(t):
    return [f"ds_read_b64_tr_b16 {ar(VF + db*8 + s*4 + k*2, 2)}, v{VVA+db} offset:{((2*t+1) % NS)*SLOT + 4096*s + 2048*k}"
            for s in range(2) for db in range(4) for k in range(2)]
def tile_body(a, opt, t, carry, extra=()):
    first = t == 0
    M = qk(0, first) + (pv(2, t == 1) if t else [None]*8) + qk(1, first) + pv(0, first) + qk(2, first) + pv(1, first)
    W = opt.w0
    sl = [[] for _ in range(48 + W)]
    def at(G, slots):
        for g, k in zip(G, slots): sl[k].append(g)
    if 2*t + NS <= 31: at(dma_unit(2*t + NS, opt), opt.d1)
    spread(sl, [f"WAITVM u{2*t+1}"] + vreads(t), *opt.vwin)
    if 2*t + NS + 1 <= 31: at(dma_unit(2*t + NS + 1, opt), opt.d2)
    if t < 15: spread(sl, [f"WAITVM u{2*t+2}"] + kreads(t + 1), *opt.kwin)
    sl[46].append("s_add_u32 s45, s45, 1\nv_mov_b32 v27, s45\nds_write_b32 v109, v27 offset:16")
    if 1 <= t <= 14 and opt.hold:
        sl[44].append("ds_read_b64 v[30:31], v26")
        sl[47].append(f"""AUTO v_min_u32 v30, v30, v31
s_add_u32 s38, s38, s50
s_min_i32 s38, s38, 256
v_readfirstlane_b32 s3, v30
s_lshl_b32 s3, s3, 4
s_cmp_ge_i32 s3, s38
s_cbranch_scc1 L_go{t}
s_call_b64 s[40:41], L_hold
LABEL L_go{t}""")
    for e in extra: spread(sl, *e)
    for i, x in enumerate(carry): sl[i] = x + sl[i]
    ghost = {48 + k: "buffer_x\ns_nop 0\ns_nop 0" for k in opt.d1 if k < W}
    for k, g in ghost.items(): sl[k].append(g)
    level_fill(sl, softmax(0, t, first), W, W + 16, opt.dcost)
    level_fill(sl, softmax(1, t, first), W + 16, W + 32, opt.dcost)
    level_fill(sl, softmax(2, t, first), W + 32, W + 48, opt.dcost)
    for k in ghost: sl[k] = sl[k][1:]
    for i in range(48):
        if opt.fewwait:
            if i == 0: a.wait(lgregs=regs_of(ar(KF, 32)))
            if i == 24: a.wait(lgregs=regs_of(ar(VF, 32)))
        if M[i]: emit(a, [M[i]])
        for x in sl[i]:
            if opt.acct and x.startswith("WAITVM"):
                keep = list(a.lg)
                a.e("s_memtime s[94:95]"); emit(a, [x]); a.e("s_memtime s[96:97]\ns_waitcnt lgkmcnt(0)\ns_sub_u32 s96, s96, s94")
                r = 98 if int(x.split("u")[1]) % 2 else 100
                a.e(f"s_add_u32 s{r}, s{r}, s96")
            elif opt.acct == 2 and "lds ;" in x:
                a.e("s_memtime s[94:95]"); emit(a, [x]); a.e("s_memtime s[96:97]\ns_waitcnt lgkmcnt(0)\ns_sub_u32 s96, s96, s94\ns_add_u32 s92, s92, s96")
            else: emit(a, [x])
    return sl[48:]

def save(a): return (list(a.hist), list(a.lg), list(a.vm))
def load(a, st): a.hist, a.lg, a.vm = (list(x) for x in st)

def kernel(a, name, opt):
    a.raw(".text"); a.raw(f".globl {name}"); a.raw(".p2align 8"); a.raw(f".type {name},@function")
    a.label(name, reset=True)
    a.e("""s_load_dwordx8 s[56:63], s[0:1], 0
           s_load_dwordx8 s[64:71], s[0:1], 40
           s_load_dwordx2 s[72:73], s[0:1], 96
           s_load_dwordx2 s[40:41], s[0:1], 32
           s_load_dwordx2 s[42:43], s[0:1], 72
           s_load_dwordx4 s[44:47], s[0:1], 80
           s_memrealtime s[48:49]
           s_cmp_ge_u32 s2, 256
           s_cbranch_scc1 L_done""")
    if opt.stamps: a.e(f"{opt.clk} s[{STB}:{STB+1}]")
    VW, VXA, VXB, AW, AX, VD = 72, 73, 74, 76, 64, 111
    G, L15, H, L31, G1, R, C4 = 88, 89, 90, 91, 92, 81, 82
    VFO, VFP = 109, 110
    a.e(f"""v_lshrrev_b32 v1, 6, v0
            s_and_b32 s3, s2, 7
            s_lshr_b32 s29, s3, 2
            s_and_b32 s30, s3, 3
            v_readfirstlane_b32 s28, v1
            s_lshr_b32 s3, s2, 3
            s_lshr_b32 s31, s3, 2
            s_and_b32 s32, s3, 3
            v_and_b32 v1, 63, v0
            v_lshrrev_b32 v{G}, 4, v1
            v_and_b32 v{L15}, 15, v1
            v_lshrrev_b32 v56, 3, v1
            v_and_b32 v57, 7, v1
            v_and_b32 v{G1}, 1, v{G}
            v_lshlrev_b32 v59, 2, v{G1}
            v_xor_b32 v59, v57, v59
            v_lshlrev_b32 v59, 4, v59
            v_lshl_add_u32 v{VW}, v56, 13, v59
            v_mul_u32_u24 v60, 1152, v56
            v_xor_b32 v61, v57, v{G}
            s_and_b32 s6, s28, 1
            s_lshr_b32 s7, s28, 1
            s_lshl_b32 s3, s6, 2
            v_xor_b32 v61, s3, v61
            v_lshl_add_u32 v{VXA}, v61, 4, v60
            v_xor_b32 v61, 4, v61
            v_lshl_add_u32 v{VXB}, v61, 4, v60
            s_mul_i32 s37, s7, {YB}
            s_lshl_b32 s3, s6, 13
            s_add_u32 s37, s37, s3
            s_lshl_b32 s33, s30, 3
            s_lshl_b32 s3, s32, 1
            s_add_u32 s33, s33, s3              ; head X
            s_add_u32 s74, s3, s31              ; b + 2p
            s_lshl_b32 s52, s33, 8
            s_lshl_b32 s3, s28, 7
            s_add_u32 s52, s52, s3
            s_mul_i32 s53, s31, 110592
            s_mul_i32 s3, s28, 27648
            s_add_u32 s53, s53, s3              ; x rows 24w..
            s_mul_i32 s55, s28, 3072
            s_mov_b32 s18, 884736
            s_mov_b32 s19, 0x20000
            s_mov_b32 s22, 4718592
            s_mov_b32 s23, 0x20000""")
    if opt.krot == 0: a.e("s_mov_b32 s74, 0")
    elif opt.krot == 1: a.e("s_cmp_ge_u32 s74, 9\ns_cselect_b32 s3, 9, 0\ns_sub_u32 s74, s74, s3")
    elif opt.krot == 3: a.e("s_and_b32 s74, s74, 1\ns_lshl_b32 s74, s74, 2")
    a.e("s_cmp_eq_u32 s29, 0\ns_waitcnt lgkmcnt(0)")
    for d, o in ((20, 6), (16, 0), (8, 2), (12, 4)):
        a.e(f"s_cselect_b32 s{d}, s{56+o}, s{64+o}\ns_cselect_b32 s{d+1}, s{57+o}, s{65+o}")
    a.e("""s_cselect_b32 s76, s40, s42
           s_cselect_b32 s77, s41, s43
           s_mov_b64 s[78:79], s[44:45]
           s_mov_b64 s[80:81], s[46:47]
           s_or_b32 s75, s48, 1""")
    P = lambda ch: " nt" if ch == "n" else ""
    XS = 98304
    def stage(c):
        buf = c % 3; Gs = []
        for j in range(8):
            g = ["s_lshl_b32 s4, s74, 19", "s_add_u32 s4, s4, s52"] if j == 0 else ["s_add_u32 s4, s4, 65536"]
            g += [f"s_add_u32 m0, s37, {buf*SLOT + j*1024}", f"buffer_load_dwordx4 v{VW}, s[20:23], s4 offen{P(opt.wp[0])} lds ; @s{c}"]
            Gs.append("\n".join(g))
        for i in range(3):
            g = ["s_lshl_b32 s5, s74, 7", "s_add_u32 s5, s5, s53"] if i == 0 else [f"s_add_u32 s5, s5, {8*1152}"]
            g += [f"s_add_u32 m0, s55, {XS + buf*12288 + i*1024}", f"buffer_load_dwordx4 v{VXB if i % 2 else VXA}, s[16:19], s5 offen{P(opt.wp[1])} lds ; @s{c}"]
            if i == 2: g += ["s_add_u32 s74, s74, 1", "s_cmp_eq_u32 s74, 9", "s_cselect_b32 s74, 0, s74"]
            Gs.append("\n".join(g))
        return Gs
    emit(a, stage(0))
    srd(a, 56, "s80", "s81", 256)
    a.e("""s_lshl_b32 s3, s2, 8
           v_add_u32 v106, s3, v0
           v_min_u32 v106, 1, v106
           v_lshlrev_b32 v106, 12, v106
           v_mov_b32 v107, s75
           buffer_store_dword v107, v106, s[56:59], 0 offen sc1""")
    emit(a, stage(1))
    for d in (8, 12): a.e(f"s_mov_b32 s{d+2}, {1 << 26}\ns_mov_b32 s{d+3}, 0x20000")
    srd(a, 24, "s72", "s73", WS_BYTES)
    srd(a, 60, "s76", "s77", 4718592)
    a.e(f"""v_lshrrev_b32 v{H}, 5, v1
            v_and_b32 v{L31}, 31, v1
            v_lshrrev_b32 v{R}, 2, v{L15}
            v_and_b32 v{C4}, 3, v1
            v_lshl_add_u32 v59, v{H}, 3, v{R}
            v_lshlrev_b32 v59, 7, v59
            v_lshrrev_b32 v60, 1, v{R}
            v_lshl_add_u32 v59, v60, 6, v59
            v_lshl_add_u32 v59, v{G1}, 5, v59
            v_lshl_add_u32 v59, v{C4}, 3, v59
            v_add_u32 v{AW}, s37, v59
            v_xor_b32 v{AW+1}, 64, v{AW}
            v_bfe_u32 v60, v1, 1, 3
            v_xor_b32 v60, v60, v{H}
            v_lshlrev_b32 v60, 4, v60
            v_lshl_add_u32 v60, v{L31}, 7, v60
            v_add_u32 v{AX}, {XS}, v60""")
    for s in range(1, 4): a.e(f"v_xor_b32 v{AX+s}, {32*s}, v{AX}")
    a.e(f"""s_lshl_b32 s3, s28, 2
            s_add_u32 s3, s3, {TOP + 3072}
            v_mov_b32 v{VFO}, s3
            v_xor_b32 v{VFP}, 4, v{VFO}
            v_mov_b32 v61, 0
            ds_write_b32 v{VFO}, v61
            ds_write_b32 v{VFO}, v61 offset:16
            s_mov_b32 s44, 0
            s_mov_b32 s45, 0""")
    def frag_reads(c, s, F):
        buf = c % 3
        L = [f"ds_read_b64_tr_b16 {vr(F + db*4 + k*2, 2)}, v{AW+db} offset:{buf*SLOT + (16*s + 4*k) * 128}" for db in range(2) for k in range(2)]
        return L + [f"ds_read_b128 {vr(F + 8 + qb*4, 4)}, v{AX+s} offset:{buf*12288 + qb*4096}" for qb in range(3)]
    setup = f"""v_lshlrev_b32 v26, 8, v{G}
            v_xor_b32 v27, v{L15}, v{G}
            v_lshl_add_u32 v{VOFFK}, v27, 4, v26
            v_xor_b32 v{VOFFK+1}, 64, v{VOFFK}
            v_xor_b32 v{VOFFK+2}, 128, v{VOFFK}
            v_xor_b32 v{VOFFK+3}, 192, v{VOFFK}
            v_lshlrev_b32 v27, 2, v{G}
            v_xor_b32 v27, v{L15}, v27
            v_lshl_add_u32 v{VOFFV}, v27, 4, v26
            s_lshl_b32 s3, s6, 13
            s_add_u32 s33, s33, s7
            s_lshl_b32 s34, s31, 5
            s_add_u32 s34, s34, s33
            s_lshl_b32 s34, s34, 18
            s_add_u32 s34, s34, s3"""
    if opt.rot:
        setup += """
            s_lshl_b32 s3, s2, 2
            s_add_u32 s3, s3, s7
            s_mul_i32 s3, s3, 0x1e3779b1
            s_lshr_b32 s47, s3, 15
            s_xor_b32 s3, s3, s47
            s_mul_i32 s3, s3, 0x2c1b3c6d
            s_lshr_b32 s3, s3, 20
            s_and_b32 s3, s3, 15
            s_lshl_b32 s35, s3, 14"""
    else: setup += "\ns_mov_b32 s35, 0"
    setup += f"""
            s_mov_b32 s36, s35
            v_xor_b32 v27, v{H}, v{L15}
            v_lshlrev_b32 v27, 4, v27
            v_lshl_add_u32 v27, v{L31}, 8, v27
            v_add_u32 v{VKA}, s37, v27"""
    for s in range(1, 8): setup += f"\nv_xor_b32 v{VKA+s}, {32*s}, v{VKA}"
    setup += f"""
            v_lshl_add_u32 v28, v{H}, 2, v{R}
            v_lshlrev_b32 v28, 8, v28
            v_lshl_add_u32 v28, v{R}, 6, v28
            v_lshl_add_u32 v28, v{G1}, 5, v28
            v_lshl_add_u32 v28, v{C4}, 3, v28
            s_lshl_b32 s47, s6, 7
            v_xor_b32 v28, s47, v28
            v_add_u32 v{VVA}, s37, v28"""
    for db in range(1, 4): setup += f"\nv_xor_b32 v{VVA+db}, {64*db}, v{VVA}"
    setup += f"\ns_mov_b32 s42, {f2u(CSC):#x}\ns_mov_b32 s43, {f2u(THR_LOG2):#x}"
    for qb in range(3): setup += f"\nv_mov_b32 v{LSUM+qb}, 0"
    setup = [x.strip() for x in setup.split("\n")]
    VO, VL16, AD, VOL = 93, 102, 103, 107
    def vo_calc(dst, rev):
        L = []
        for i in range(9):
            L += [f"v_add_u32 v84, {64*i}, v1", "v_mul_u32_u24 v85, 58255, v84", "v_lshrrev_b32 v85, 20, v85", "v_mul_u32_u24 v86, 18, v85",
                  "v_sub_u32 v86, v84, v86", "v_xor_b32 v87, 1, v86", "v_sub_u32 v87, 17, v87"]
            if rev == "vcc": L += ["v_cndmask_b32 v87, v86, v87, vcc"]
            L += ["v_mul_u32_u24 v85, 1152, v85", f"v_lshl_add_u32 v{dst+i}, v87, 4, v85"]
        return L
    setup2 = ["s_cmp_eq_u32 s7, 1\ns_cselect_b64 vcc, -1, 0"] + vo_calc(VO, "vcc") + [x.strip() for x in f"""v_lshlrev_b32 v{VL16}, 4, v1
            v_lshlrev_b32 v84, 4, v{H}
            v_lshl_add_u32 v84, v{G1}, 2, v84
            v_add_u32 v84, v84, v{R}
            v_mul_u32_u24 v84, 288, v84
            v_lshl_add_u32 v84, v{C4}, 3, v84
            s_mul_i32 s3, s7, 18432
            v_add_u32 v{AD+1}, s3, v84
            v_add_u32 v{AD}, {SB[0]}, v{AD+1}
            v_lshlrev_b32 v{VOL}, 10, v{G1}
            v_lshl_add_u32 v{VOL}, v{H}, 8, v{VOL}
            v_lshl_add_u32 v{VOL}, v{L15}, 4, v{VOL}
            v_mov_b32 v108, 0
            s_mul_i32 s67, s30, 1179648
            s_mul_i32 s3, s32, 288
            s_add_u32 s64, s67, s3              ; wo: rows of the octet, columns 144p..
            s_lshl_b32 s39, s29, 3
            s_add_u32 s39, s39, s31""".split("\n")]
    setW = ["s_lshl_b32 s66, s32, 1", "s_mul_i32 s65, s28, 9216", f"s_mul_i32 s68, s28, {32*1152}", "s_add_u32 s68, s68, s64"]
    def psync(pre_wait=True):
        psync.n += 1; n = psync.n
        a.e(f"""s_add_u32 s44, s44, 1
                v_mov_b32 v{VD}, s44
                ds_write_b32 v{VFO}, v{VD}
                s_mov_b32 s47, 0x400000""")
        a.label(f"L_ps{n}")
        a.e(f"""ds_read_b32 v{VD}, v{VFP}
                s_sub_u32 s47, s47, 1
                s_waitcnt lgkmcnt(0)
                v_readfirstlane_b32 s3, v{VD}
                s_cmp_eq_u32 s47, 0
                s_cselect_b32 s3, s44, s3
                s_cmp_lt_u32 s3, s44
                s_cbranch_scc1 L_ps{n}""")
    psync.n = 0
    def other_pair(name, word, val, T=84):
        a.e(f"v_mov_b32 v{T+2}, {TOP + 3072 + word}\ns_mov_b32 s47, 0x400000")
        a.label(name)
        a.e(f"""s_sleep 2
                ds_read_b64 v[{T}:{T+1}], v{T+2}
                s_sub_u32 s47, s47, 1
                s_waitcnt lgkmcnt(0)
                v_min_u32 v{T}, v{T}, v{T+1}
                v_readfirstlane_b32 s3, v{T}
                s_cmp_eq_u32 s47, 0
                s_cselect_b32 s3, {val}, s3
                s_cmp_lt_u32 s3, {val}
                s_cbranch_scc1 {name}""")

    ACC = 112
    def qwrite(blocks, dreg, area):
        a.e(f"""v_xor_b32 v55, {dreg}, v{L15}
                v_lshlrev_b32 v55, 4, v55
                v_lshl_add_u32 v55, v{L31}, 8, v55
                v_lshl_add_u32 v55, v{H}, 3, v55
                v_add_u32 v55, {area}, v55
                v_mov_b32 v62, s42""")
        for db in range(blocks):
            for i in range(4):
                a.e(f"v_xor_b32 v54, {(4*db + i)*16}, v55")
                for qb in range(3):
                    r = ACC + (db*3 + qb)*16 + 4*i; tq = 56 + 2 * qb
                    a.e(f"""v_pk_mul_f32 v[{r}:{r+1}], v[{r}:{r+1}], v[62:63] op_sel_hi:[1,0]
                            v_pk_mul_f32 v[{r+2}:{r+3}], v[{r+2}:{r+3}], v[62:63] op_sel_hi:[1,0]
                            v_cvt_pk_bf16_f32 v{tq}, v{r}, v{r+1}
                            v_cvt_pk_bf16_f32 v{tq+1}, v{r+2}, v{r+3}
                            ds_write_b64 v54, v[{tq}:{tq+1}] offset:{qb*8192}""")
    def qread(area):
        a.e(f"s_sub_u32 s3, {area}, s37")
        for s in range(8): a.e(f"v_add_u32 v{32+s}, s3, v{VKA+s}")
        for qb in range(3):
            for s in range(8): a.e(f"ds_read_b128 {vr(Qreg(qb,s),4)}, v{32+s} offset:{qb*8192}")
    FA, FB = 208, 228
    a.wait(vmtags=["s0"], lg0=True); a.e("s_barrier")
    stamp(a, "q0", opt)
    emit(a, frag_reads(0, 0, FA))
    sl = [[] for _ in range(216 + 24)]
    spread(sl, stage(2), 0, 18)
    spread(sl, setup + setup2 + setW, 0, 120)
    for c in range(9):
        for s in range(4):
            F, nF = (FA, FB) if s % 2 == 0 else (FB, FA)
            k0 = (c*4 + s) * 6
            if s == 3:
                a.wait(vmtags=[f"s{c+1}"], lg0=True); a.e("s_barrier")
                stamp(a, f"c{c}", opt)
                spread(sl, stage(c + 3) if c + 3 <= 8 else dma_unit(c - 6, opt) if c < 8 else [], k0, k0 + 24)
                if c < 8: emit(a, frag_reads(c + 1, 0, nF))
            else: emit(a, frag_reads(c, s + 1, nF))
            i = 0
            for db in range(2):
                for qb in range(3):
                    d = vr(ACC + (db*3 + qb)*16, 16)
                    emit(a, [f"v_mfma_f32_32x32x16_bf16 {d}, {vr(F+db*4,4)}, {vr(F+8+qb*4,4)}, " + ("0" if (c == 0 and s == 0) else d)] + sl[k0 + i]); i += 1
    assert not any(sl[216:])
    a.e(f"s_lshl_b32 s3, s6, 3\ns_mul_i32 s4, s7, 24576\ns_add_u32 s4, s4, {XS}")
    qwrite(2, "s3", "s4")
    a.e("s_waitcnt lgkmcnt(0)\ns_barrier")
    qread("s4")
    stamp(a, "qx", opt)
    emit(a, dma_unit(2, opt))
    a.wait(vmtags=["u0"], lg0=True)
    emit(a, kreads(0))
    stamp(a, "k0", opt)
    a.e(f"""v_mov_b32 v26, {TOP + 3072 + 16}
            s_cmp_eq_u32 s7, 1
            s_cselect_b32 s50, {round(opt.thr1 * 16)}, 0
            s_cselect_b32 s38, {round((opt.thr0 + opt.thr1) * 16)}, -1""")
    if not opt.hold: a.e("s_mov_b32 s50, s7")
    if opt.acct: a.e(f"s_mov_b64 s[98:99], s[{STB}:{STB+1}]\ns_mov_b64 s[100:101], s[{STB}:{STB+1}]\ns_mov_b64 s[92:93], s[{STB}:{STB+1}]")
    def wpieces(tag, head, rows, lds, voreg):
        Gs = []
        for i in range(9):
            g = [f"s_add_u32 s4, s66, {head}", "s_and_b32 s4, s4, 7", f"s_mul_i32 s4, s4, {128*1152}", "s_add_u32 s4, s4, s68",
                 f"s_add_u32 s4, s4, {rows*1152}"] if i == 0 else []
            g += [f"s_add_u32 m0, s65, {lds + i*1024}", f"buffer_load_dwordx4 v{voreg+i}, s[60:63], s4 offen{opt.wopol} lds ; @{tag}"]
            Gs.append("\n".join(g))
        return Gs
    HEAD = (0, 2, 4, 6, 1, 3, 5, 7)
    wS = lambda st: wpieces(f"w{st}", HEAD[st], 0, SB[st % 4], VO)
    wX = lambda st, VOR: wpieces(f"w{st}", HEAD[st], 0, SB[st % 4], VO) + wpieces(f"w{st}", HEAD[st], 64, SB[st % 4] + 18432, VOR)
    carry = tile_body(a, opt, 0, [])
    carry = tile_body(a, opt, 1, carry)
    if opt.unroll:
        for t in range(2, 14):
            stamp(a, f'r{t}', opt); carry = tile_body(a, opt, t, carry)
    else:
        stamp(a, "l0", opt)
        a.e("s_mov_b32 s46, 4")
        a.raw(".p2align 6"); a.label("L_tile")
        keep = list(a.vm)
        if not opt.hold: a.e(f"s_cmp_gt_u32 s46, {opt.ylast}\ns_cselect_b32 s50, s7, 0")
        if opt.late:
            a.e(f"""s_lshl_b32 s3, s7, 3
                    s_add_u32 s3, s3, s46
                    s_cmp_lg_u32 s3, {opt.late}
                    s_cbranch_scc1 L_nolate
                    s_lshr_b32 s3, s2, 3
                    s_lshl_b32 s3, s3, 1
                    s_add_u32 s3, s3, s6
                    s_mul_i32 s3, s3, 18432
                    v_lshlrev_b32 v84, 7, v1
                    v_add_u32 v84, s3, v84
                    v_add_u32 v85, 8192, v84
                    v_add_u32 v86, 16384, v84
                    v_cmp_gt_u32 vcc, 16, v1
                    v_cndmask_b32 v86, -1, v86, vcc""")
            emit(a, [f"buffer_load_dword v87, v{r}, s[60:63], s67 offen{opt.tpol} ; @junk" for r in (84, 85, 86)])
            a.label("L_nolate")
        a.vm = keep
        for t in (2, 3, 4): carry = tile_body(a, opt, t, carry)
        a.e("s_sub_u32 s46, s46, 1\ns_cmp_lg_u32 s46, 0\ns_cbranch_scc1 L_tile")
        for o in a.vm:
            if o.tag and o.tag[0] == "u": o.tag = f"u{int(o.tag[1:]) + 18}"
    stamp(a, "l1", opt)
    carry = tile_body(a, opt, 14, carry)
    xo = lambda k: (k // 8) * SLOT + (k % 8) * 1024
    def send(qb):
        return [f"ds_write_b128 v28, {ar(Oacc(2+i,qb) + 4*g, 4)} offset:{xo((i*3 + qb)*4 + g)}" for i in range(2) for g in range(4)]
    pre = ["buffer_load_dword v106, v108, s[56:59], 0 offen sc1 ; @tag",
           f"v_add_u32 v28, s37, v{VL16}", "s_lshl_b32 s3, s6, 14\ns_sub_u32 s3, 8192, s3", "v_add_u32 v29, s3, v28",
           f"s_mul_i32 s3, s28, 768\ns_add_u32 s3, s3, {TOP}", f"v_lshlrev_b32 v30, 3, v{L31}", "v_add_u32 v30, s3, v30",
           f"s_xor_b32 s3, s28, 1\ns_mul_i32 s3, s3, 768\ns_add_u32 s3, s3, {TOP}", f"v_lshlrev_b32 v31, 3, v{L31}", "v_add_u32 v31, s3, v31"]
    team = "v_and_b32 v13, 3, v1\nv_lshlrev_b32 v13, 10, v13\nv_and_b32 v14, 4, v1\nv_add_u32 v13, v13, v14"
    askX = [f"s_andn2_b32 s71, s2, 24\ns_lshl_b32 s71, s71, 7\ns_add_u32 s69, s71, {WS_F}"] + team.split("\n") + ["buffer_load_dword v12, v13, s[24:27], s69 offen sc1"]
    carry = tile_body(a, opt, 15, carry, extra=[(pre, 8, 16), (askX, 28, 34), (send(0), 34, 48)])
    sl = [[] for _ in range(8)]
    carry = [x for y in carry for x in y]
    emit(a, carry[:len(carry)//2])
    spread(sl, carry[len(carry)//2:], 0, 3)
    st = []
    for qb in range(3): st += [f"v_mov_b32 v{3+2*qb}, v{LSUM+qb}", f"v_mov_b32 v{2+2*qb}, v{NM+16*qb}"]
    for qb in range(3): st += [f"v_permlane32_swap_b32 v{LSUM+qb}, v{3+2*qb}"]
    for qb in range(3): st += [f"v_add_f32 v{3+2*qb}, v{LSUM+qb}, v{3+2*qb}", f"ds_write_b64 v30, v[{2+2*qb}:{3+2*qb}] offset:{qb*256}"]
    spread(sl, st + send(1), 3, 8)
    for m, f in zip(pv(2, False), sl): emit(a, [m] + f)
    stamp(a, "t15", opt)
    emit(a, send(2))
    for r in range(96): a.e(f"v_accvgpr_read_b32 v{160 + r}, a{r}")
    a.e("s_mov_b32 s4, 0x100000")
    a.label("L_tag")
    a.e("""s_waitcnt vmcnt(0)
           v_readfirstlane_b32 s75, v106
           s_cmp_lg_u32 s75, 0
           s_cbranch_scc1 L_tag_ok
           buffer_load_dword v106, v108, s[56:59], 0 offen sc1 ; @junk
           s_sub_u32 s4, s4, 1
           s_cmp_lg_u32 s4, 0
           s_cbranch_scc1 L_tag""")
    a.label("L_tag_ok"); a.vm = []
    a.e(f"""s_lshl_b32 s3, s39, 5
            s_add_u32 s3, s3, s33
            s_mul_i32 s52, s3, 24576
            s_mul_i32 s3, s6, 12288
            s_add_u32 s52, s52, s3
            s_waitcnt lgkmcnt(0)""")
    ACC, WF, OF = 112, 16, 0
    def ask(base, lanes):
        a.e(f"s_add_u32 s69, {base}, {WS_F}\n{lanes}\nbuffer_load_dword v12, v13, s[24:27], s69 offen sc1")
    def check(tag):
        a.e("s_mov_b32 s4, 0x100000")
        a.label(f"L_poll{tag}")
        a.e(f"""s_waitcnt vmcnt(0)
                v_cmp_ne_u32 vcc, s75, v12
                s_cbranch_vccz L_got{tag}
                s_sleep 1
                buffer_load_dword v12, v13, s[24:27], s69 offen sc1
                s_sub_u32 s4, s4, 1
                s_cmp_lg_u32 s4, 0
                s_cbranch_scc1 L_poll{tag}""")
        a.label(f"L_got{tag}")
        a.e("s_waitcnt vmcnt(0)")
    def wreads(buf, rows, F):
        reg, boff = (AD, AD + 1, 220, 221)[buf], 0
        return [f"ds_read_b64_tr_b16 {vr(F + nb*4 + 2*k, 2)}, v{reg} offset:{boff + (rows + 8*k) * 288 + 32*nb}" for nb in range(9) for k in range(2)]
    def oload(tag, head, db0, nks, dst):
        Gs = []
        for kl in range(nks):
            for j in range(3):
                g = [f"s_add_u32 s47, s66, {head}", "s_and_b32 s47, s47, 7", "s_mul_i32 s47, s47, 24576", "s_add_u32 s47, s47, s37"] + \
                    ([f"s_add_u32 s47, s47, {db0}"] if db0 else []) if kl + j == 0 else ["s_add_u32 s47, s47, 6144"] if j == 0 else []
                Gs.append("\n".join(g + [f"buffer_load_dwordx4 {ar(dst + (kl*3+j)*4, 4)}, v{VL16}, s[24:27], s47 offen offset:{j*1024} sc1 ; @{tag}"]))
        return Gs
    def kstep(F, O, zero, reads, jobs):
        ms = [f"v_mfma_f32_16x16x32_bf16 {vr(ACC + (nb*3+j)*4, 4)}, {vr(F+nb*4,4)}, {ar(O+j*4,4)}, " + ("0" if zero else vr(ACC + (nb*3+j)*4, 4))
              for nb in range(9) for j in range(3)]
        sl = [[] for _ in range(27)]
        spread(sl, reads, 0, 20); spread(sl, jobs, 0, 27)
        a.e("s_waitcnt lgkmcnt(0)")
        for m, f in zip(ms, sl): emit(a, [m] + f)
        return ms
    team = "v_and_b32 v13, 3, v1\nv_lshlrev_b32 v13, 10, v13\nv_and_b32 v14, 4, v1\nv_add_u32 v13, v13, v14"
    a.e(f"""s_lshl_b32 s3, s2, 7
            s_lshl_b32 s4, s28, 2
            s_add_u32 s70, s3, s4
            s_add_u32 s70, s70, {WS_F}
            s_lshl_b32 s3, s39, 2
            s_add_u32 s3, s3, s30
            s_mul_i32 s37, s3, {8*24576}
            s_mul_i32 s4, s6, 3072
            s_add_u32 s37, s37, s4
            s_mul_i32 s4, s7, 12288
            s_add_u32 s37, s37, s4
            s_mov_b32 s45, 0
            s_cmp_eq_u32 s7, 0
            s_cbranch_scc1 L_noearly
            v_cmp_ne_u32 vcc, s75, v12
            s_cbranch_vccnz L_noearly
            s_mov_b32 s45, 1""")
    for st in range(4): emit(a, oload(f"o{st}", HEAD[st], 0, 2, 24*st))
    a.label("L_noearly"); a.vm = []
    a.e(f"v_sub_u32 v27, v29, v{VL16}\nv_add_u32 v27, v27, v{VOL}")
    psync()
    stamp(a, "c_bar", opt)
    for qb in range(3): a.e(f"ds_read_b64 v[{8+2*qb}:{9+2*qb}], v31 offset:{qb*256}")
    RC = (32, 48, 64, 112, 128, 144)
    def recv(blk):
        for g in range(4): a.e(f"ds_read_b128 {vr(RC[blk]+4*g,4)}, v29 offset:{xo(blk*4 + g)}")
    recv(0); recv(1)
    SC = 16
    for qb in range(3):
        pn, pl, on, ol = 8 + 2*qb, 9 + 2*qb, 2 + 2*qb, 3 + 2*qb
        a.auto(f"v_min_f32 v22, v{on}, v{pn}")
        a.e(f"""v_sub_f32 v23, v22, v{on}
                v_sub_f32 v24, v22, v{pn}
                v_exp_f32 v23, v23
                v_exp_f32 v24, v24
                v_mul_f32 v{ol}, v{ol}, v23
                v_fmac_f32 v{ol}, v{pl}, v24
                v_rcp_f32 v{ol}, v{ol}
                v_mul_f32 v{SC+2*qb}, v23, v{ol}
                v_mul_f32 v{SC+2*qb+1}, v24, v{ol}""")
    recv(2); recv(3); recv(4); recv(5)
    for blk in range(6):
        i, qb = divmod(blk, 3)
        K = 160 + blk*16; Rr = RC[blk]
        a.wait(lgregs=regs_of(vr(Rr, 16)))
        for r in range(0, 16, 2):
            a.e(f"v_pk_mul_f32 v[{Rr+r}:{Rr+r+1}], v[{Rr+r}:{Rr+r+1}], v[{SC+2*qb}:{SC+2*qb+1}] op_sel:[0,1] op_sel_hi:[1,1]")
        for r in range(0, 16, 2):
            a.e(f"v_pk_fma_f32 v[{K+r}:{K+r+1}], v[{K+r}:{K+r+1}], v[{SC+2*qb}:{SC+2*qb+1}], v[{Rr+r}:{Rr+r+1}] op_sel_hi:[1,0,1]")
        for j in range(8):
            a.e(f"v_cvt_pk_bf16_f32 v{K+8*(j//4)+j%4}, v{K+2*j}, v{K+2*j+1}")
        a.e(f"s_add_u32 s47, s52, {WS_O + (i*6 + 2*qb)*1024}")
        for s in range(2):
            a.e(f"buffer_store_dwordx4 {vr(K+8*s,4)}, v{VOL}, s[24:27], s47 offen offset:{512*s} sc1")
            a.e(f"ds_write_b128 v27, {vr(K+8*s,4)} offset:{xo(i*6 + 2*qb) + 512*s}")
    stamp(a, "comb", opt)
    a.e("v_mov_b32 v14, s75\ns_cmp_eq_u32 s7, 1\ns_cbranch_scc1 L_tailY")
    stT = save(a)
    a.e("s_waitcnt vmcnt(0)\nbuffer_store_dword v14, v108, s[24:27], s70 offen sc1")
    VOR = 224
    emit(a, vo_calc(VOR, "rev"))
    other_pair("L_yq", 24, 1)
    emit(a, wX(0, VOR))
    psync()
    emit(a, wX(1, VOR))
    ask("s71", team); check("A")
    stamp(a, "chkA", opt)
    for st in range(4): emit(a, oload(f"o{st}", HEAD[st], 0, 2, 24*st))
    a.e("s_waitcnt vmcnt(0)\ns_branch L_join")
    a.label("L_tailY"); load(a, stT)
    a.e("s_cmp_eq_u32 s45, 1\ns_cbranch_scc1 L_hadearly")
    sv = save(a)
    ask("s71", team); check("Y")
    a.vm = list(sv[2])
    for st in range(4): emit(a, oload(f"o{st}", HEAD[st], 0, 2, 24*st))
    a.label("L_hadearly")
    a.e("s_waitcnt lgkmcnt(0)")
    a.label("L_join"); a.lg = []
    a.e(f"""s_add_u32 s71, s71, 8
            v_add_u32 v220, {SB[2] - SB[1]}, v{AD+1}
            v_add_u32 v221, {SB[3] - SB[1]}, v{AD+1}
            s_mul_i32 s3, s7, -8192
            s_mul_i32 s4, s6, 3072
            s_add_u32 s3, s3, s4
            s_add_u32 s3, s3, {YB + 8192}
            v_add_u32 v2, s3, v{VL16}
            s_barrier""")
    stamp(a, "join", opt)
    emit(a, wreads(0, 0, WF))
    a.e("s_cmp_eq_u32 s6, 1\ns_cbranch_scc1 L_own1")
    sv = save(a)
    for qh in range(2):
        if qh: a.label("L_own1"); load(a, sv)
        for kl in range(2):
            for j in range(3): a.e(f"ds_read_b128 {ar(96 + (kl*3+j)*4, 4)}, v2 offset:{xo(kl*6 + 3*qh + j) - 3072*qh}")
        if qh == 0: a.e("s_branch L_own2")
    a.label("L_own2")
    a.wait(vmtags=["o0"])
    kstep(WF, 0, True, wreads(0, 32, WF + 36), wS(2))
    a.e("s_cmp_eq_u32 s7, 0\ns_cbranch_scc1 L_nopub\ns_waitcnt vmcnt(9)\nv_mov_b32 v14, s75\nbuffer_store_dword v14, v108, s[24:27], s70 offen sc1 ; @junk")
    a.label("L_nopub"); a.vm = a.vm[:-1]
    a.vm = [o for o in a.vm if o.tag == "w2"]
    a.e("s_waitcnt lgkmcnt(0)\ns_barrier")
    kstep(WF + 36, 12, False, wreads(1, 0, WF), wS(3))
    stamp(a, "g1", opt)
    A = opt.askat
    plan = {(1, 0): "w4", (1, 1): "w5", (A, 1): "o5", (A + 1, 0): "o6", (A + 1, 1): "o7", (A + 2, 0): "w6", (A + 2, 1): "w7"}
    job = lambda st, kl: [] if (st, kl) not in plan else wS(int(plan[st, kl][1])) if plan[st, kl][0] == "w" else \
        oload(plan[st, kl], HEAD[int(plan[st, kl][1])], 0, 2, 24*int(plan[st, kl][1]))
    for st in range(1, 8):
        stamp(a, f"s{st}", opt)
        if st == A: ask("s71", team)
        if st >= 5: a.wait(vmtags=[f"o{st}"])
        kstep(WF, 24*st, False, wreads(st % 4, 32, WF + 36), job(st, 0))
        if st == A: check("B"); stamp(a, "chk1", opt)
        stamp(a, f"h{st}", opt)
        if st < 7:
            a.wait(vmtags=[f"w{st+1}"], lg0=True); a.e("s_barrier")
            stamp(a, f"b{st}", opt)
            kstep(WF + 36, 24*st + 12, False, wreads((st + 1) % 4, 0, WF), job(st, 1))
    a.e(f"""s_lshl_b32 s3, s28, 14
            v_add_u32 v13, s3, v{VL16}
            v_xor_b32 v14, 32768, v13
            s_waitcnt lgkmcnt(0)
            s_barrier""")
    F, O = WF + 36, 180
    ms = [f"v_mfma_f32_16x16x32_bf16 {vr(ACC + (nb*3+j)*4, 4)}, {vr(F+nb*4,4)}, {ar(O+j*4,4)}, {vr(ACC + (nb*3+j)*4, 4)}" for nb in (8, 7, 6, 5, 4, 0, 1, 2, 3) for j in range(3)]
    snd = [f"ds_write_b128 v13, {vr(ACC+(nb*3+j)*4,4)} offset:{((8-nb)*3+j)*1024}" for nb in range(8, 3, -1) for j in range(3)]
    emit(a, ms[:9])
    for k in range(15): emit(a, [ms[9 + k], snd[k]])
    emit(a, ms[24:])
    stamp(a, "gend", opt)
    PT = 512 if opt.pbf16 else 1024
    a.e(f"""s_lshl_b32 s52, s39, 2
            s_add_u32 s52, s52, s32
            s_lshl_b32 s53, s52, 2
            s_add_u32 s53, s53, s30
            s_mul_i32 s53, s53, {54*PT}
            s_mul_i32 s3, s6, {3*PT}
            s_add_u32 s53, s53, s3
            s_mul_i32 s3, s7, {48*PT}
            s_add_u32 s53, s53, s3
            s_add_u32 s47, s53, {WS_P}
            s_mov_b32 s3, {6*PT}
            s_cmp_eq_u32 s7, 1
            s_cselect_b32 s53, {-6*PT}, s3
            v_lshlrev_b32 v9, {3 if opt.pbf16 else 4}, v1
            s_waitcnt lgkmcnt(0)
            s_barrier""")
    stamp(a, "rbar", opt)
    for k in range(15): a.e(f"ds_read_b128 {vr(WF+4*k,4)}, v14 offset:{k*1024}")
    for nb in range(5):
        for j in range(3):
            r = ACC + (nb*3+j)*4; q = WF + (nb*3+j)*4
            a.wait(lgregs=regs_of(vr(q, 4)))
            a.e(f"v_pk_add_f32 v[{r}:{r+1}], v[{r}:{r+1}], v[{q}:{q+1}]\nv_pk_add_f32 v[{r+2}:{r+3}], v[{r+2}:{r+3}], v[{q+2}:{q+3}]")
            if opt.pbf16:
                a.e(f"v_cvt_pk_bf16_f32 v{r}, v{r}, v{r+1}\nv_cvt_pk_bf16_f32 v{r+1}, v{r+2}, v{r+3}")
                a.e(f"buffer_store_dwordx2 {vr(r,2)}, v9, s[24:27], s47 offen offset:{j*PT} sc1")
            else:
                a.e(f"buffer_store_dwordx4 {vr(r,4)}, v9, s[24:27], s47 offen offset:{j*PT} sc1")
        if nb < 4: a.e("s_add_u32 s47, s47, s53")
    a.e(f"""s_add_u32 s70, s70, 32768
            v_mov_b32 v14, s75
            s_andn2_b32 s71, s2, 3
            s_lshl_b32 s71, s71, 7
            s_add_u32 s71, s71, 32768
            v_and_b32 v10, 15, v1
            v_mul_u32_u24 v10, 2304, v10
            v_lshrrev_b32 v11, 4, v1
            v_lshl_add_u32 v10, v11, 3, v10
            s_mul_i32 s52, s52, {4*54*PT}
            s_add_u32 s52, s52, {WS_P}
            s_mul_i32 s53, s31, {96*2304}
            s_mul_i32 s3, s29, 1152
            s_add_u32 s53, s53, s3
            s_mul_i32 s3, s32, 288
            s_add_u32 s53, s53, s3
            s_lshl_b32 s54, s28, 2
            s_add_u32 s54, s54, s30""")
    srd(a, 8, "s78", "s79", 1769472)
    stamp(a, "rst", opt)
    a.e("s_waitcnt vmcnt(0)\nbuffer_store_dword v14, v108, s[24:27], s70 offen sc1")
    stamp(a, "pub2", opt)
    ask("s71", "v_and_b32 v13, 3, v1\nv_lshlrev_b32 v13, 7, v13\nv_and_b32 v14, 12, v1\nv_add_u32 v13, v13, v14")
    check(2)
    stamp(a, "chk2", opt)
    for i in range(4):
        a.e(f"s_add_u32 s{68+i}, s54, {16*i}")
        if i == 3: a.e("s_cmp_ge_u32 s71, 54\ns_cbranch_scc1 L_rd3")
        a.e(f"s_mul_i32 s47, s{68+i}, {PT}\ns_add_u32 s47, s47, s52")
        for o in range(4):
            if opt.pbf16: a.e(f"buffer_load_dwordx2 {vr(16+16*i+4*o+2,2)}, v9, s[24:27], s47 offen sc1")
            else: a.e(f"buffer_load_dwordx4 {vr(16+16*i+4*o,4)}, v9, s[24:27], s47 offen sc1")
            if o < 3: a.e(f"s_add_u32 s47, s47, {54*PT}")
    def fin(i):
        r = 16 + 16*i
        if opt.pbf16:
            for o in range(4):
                b = r + 4*o
                a.e(f"""v_lshlrev_b32 v{b}, 16, v{b+2}
                        v_and_b32 v{b+1}, 0xffff0000, v{b+2}
                        v_lshlrev_b32 v{b+2}, 16, v{b+3}
                        v_and_b32 v{b+3}, 0xffff0000, v{b+3}""")
        for k in range(4): a.e(f"v_add_f32 v{r+k}, v{r+k}, v{r+4+k}\nv_add_f32 v{r+8+k}, v{r+8+k}, v{r+12+k}")
        for k in range(4): a.e(f"v_add_f32 v{r+k}, v{r+k}, v{r+8+k}")
        a.e(f"""v_cvt_pk_bf16_f32 v{r}, v{r}, v{r+1}
                v_cvt_pk_bf16_f32 v{r+1}, v{r+2}, v{r+3}
                s_mul_i32 s3, s{68+i}, 43
                s_lshr_b32 s3, s3, 8
                s_mul_i32 s4, s3, 6
                s_sub_u32 s4, s{68+i}, s4
                s_mul_i32 s4, s4, {16*2304}
                s_lshl_b32 s3, s3, 5
                s_add_u32 s47, s53, s3
                s_add_u32 s47, s47, s4
                buffer_store_dwordx2 v[{r}:{r+1}], v10, s[8:11], s47 offen""")
    sv = save(a)
    for i in range(4):
        a.e(f"s_waitcnt vmcnt({12 - 3*i})"); fin(i)
    a.e("s_branch L_rd4")
    a.label("L_rd3"); load(a, sv); a.vm = a.vm[:-4]
    for i in range(3):
        a.e(f"s_waitcnt vmcnt({8 - 3*i})"); fin(i)
    a.label("L_rd4")
    stamp(a, "end", opt)
    if opt.stamps:
        a.e(f"s_lshl_b32 s3, s2, 2\ns_add_u32 s3, s3, s28\ns_lshl_b32 s3, s3, 7\ns_add_u32 s3, s3, {WS_STAMP}\nv_mov_b32 v0, 0")
        for i in range(1 + len(opt.sset)):
            a.e(f"v_mov_b32 v2, s{STB+2*i}\nv_mov_b32 v3, s{STB+1+2*i}\nbuffer_store_dwordx2 v[2:3], v0, s[24:27], s3 offen offset:{8*i}\ns_waitcnt vmcnt(0)")
    a.label("L_done")
    a.e("s_endpgm")
    for qb in range(3): rare(a, qb)
    a.label("L_hold", reset=True)
    a.e("s_mov_b32 s47, 0x400000")
    a.label("L_hold1")
    a.e("""s_sleep 4
           ds_read_b64 v[30:31], v26
           s_sub_u32 s47, s47, 1
           s_waitcnt lgkmcnt(0)
           v_min_u32 v30, v30, v31
           v_readfirstlane_b32 s3, v30
           s_lshl_b32 s3, s3, 4
           s_cmp_eq_u32 s47, 0
           s_cselect_b32 s3, s38, s3
           s_cmp_lt_i32 s3, s38
           s_cbranch_scc1 L_hold1
           s_setpc_b64 s[40:41]""")

def build(opt):
    a = Asm()
    a.raw("; @launch grid=(256,1,1) block=(256,1,1) lds=163840")
    a.raw('.amdgcn_target "amdgcn-amd-amdhsa--gfx950"')
    kernel(a, NAME + "_kernel", opt)
    a.raw('.section .rodata,"a"\n.p2align 6')
    a.raw("\n".join([f".amdhsa_kernel {NAME}_kernel", "  .amdhsa_next_free_vgpr 512", "  .amdhsa_next_free_sgpr 102",
        "  .amdhsa_accum_offset 256", "  .amdhsa_group_segment_fixed_size 0", "  .amdhsa_kernarg_size 104",
        "  .amdhsa_user_sgpr_count 2", "  .amdhsa_user_sgpr_kernarg_segment_ptr 1",
        "  .amdhsa_system_sgpr_workgroup_id_x 1", ".end_amdhsa_kernel"]))
    return a.text(), a

if __name__ == "__main__":
    opt = Opt()
    out = sys.argv[1] if len(sys.argv) > 1 else "k.s"
    for kv in sys.argv[2:]:
        k, v = kv.split("=", 1); assert hasattr(opt, k), k
        setattr(opt, k, eval(v))
    t, a = build(opt)
    open(out, "w").write(t)
    print(out, "lines", t.count("\n"), "pad", a.npad)
```

```python
import sys, struct, math
sys.path.insert(0, "dev")
from asmlib import Asm, spread, regs_of, level_fill
import gen5
from gen5 import (NAME, f2u, CSC, THR_LOG2, WS_BYTES, WS_O, WS_P, WS_F, WS_STAMP, STB, vr, ar, srd, stamp, emit,
                  VOFFK, VOFFV, VKA, VVA, LSUM, TMAX, VT, NM, S0, Q0, KF, VF, Sreg, Qreg, Oacc, softmax, qk, pv, rare)

class Opt:
    wp = "pppp"
    noB = False
    stamps = False
    sset = ['q0', 'k0', 't15', 'comb', 'join', 'chk1', 'gend', 'pub2', 'end']
    thr0 = 0.0
    thr1 = 1.25
    clk = "s_memrealtime"
    rot = True
    krot = 3
    pbf16 = True
    cap = (6, 5)
    capend = 30
    hold = False
    xgate = 0
    last = (1, 1)
    ylast = 1
    kvsame = False
    unroll = False
    a0at = 2
    opol = ''
    late = 2
    prio = 0
    gate = 12
    pace = 1.0
    d1 = (8, 10, 12, 14, 22, 24, 26, 27)
    d2 = (29, 31, 33, 35, 37, 39, 44, 47)
    dcost = 4.0
    acct = 0
    w0 = 10
    askat = 3
    fewwait = True
    vwin = (16, 22)
    kwin = (40, 44)
    tpol = ''
    wopol = ''

SLOT = 16384
STG = lambda i: 45056 + 28672 * i
TOP = 159744
SB = (122880, 0, 86016, 49152)
NS = 3
YB = 49152

def dma_unit(u, opt):
    kind = "KV"[u % 2]; sreg = "s36" if kind == "K" else "s35"
    srdn = "s[8:11]" if kind == "K" else "s[12:15]"
    G = []
    for j in range(8):
        g = []
        if j == 0: g += [f"s_add_u32 m0, s37, {(u % NS) * SLOT}", f"s_add_u32 s51, s34, {sreg}"]
        if j == 1 and not opt.kvsame: g += [f"s_add_u32 {sreg}, {sreg}, 16384", f"s_and_b32 {sreg}, {sreg}, 0x3ffff"]
        if j == 4: g += [f"s_add_u32 m0, s37, {(u % NS) * SLOT + 4096}", "s_add_u32 s51, s51, 4096"]
        vo = VOFFK + j % 4 if kind == "K" else VOFFV
        if opt.cap and 3 <= u <= opt.capend:
            cx, cy = opt.cap
            cx, cy = (c if isinstance(c, int) else c[j % len(c)] for c in (cx, cy))
            dma_unit.n += 1; n = dma_unit.n
            g += ["s_cmp_eq_u32 s50, 0", f"s_cbranch_scc1 L_cap{n}", f"RAW s_waitcnt vmcnt({cx - 1})"]
            if cy < cx: g += ["RAW s_cmp_eq_u32 s50, 1", f"RAW s_cbranch_scc1 L_cap{n}", f"RAW s_waitcnt vmcnt({cy - 1})"]
            g += [f"LABEL L_cap{n}"]
        g.append(f"buffer_load_dwordx4 v{vo}, {srdn}, s51 offen offset:{(j % 4)*1024} nt lds ; @u{u}")
        G.append("\n".join(g))
    return G
dma_unit.n = 0
def kreads(t): return [f"ds_read_b128 {ar(KF+4*s,4)}, v{VKA+s} offset:{((2*t) % NS) * SLOT}" for s in range(8)]
def vreads(t):
    return [f"ds_read_b64_tr_b16 {ar(VF + db*8 + s*4 + k*2, 2)}, v{VVA+db} offset:{((2*t+1) % NS)*SLOT + 4096*s + 2048*k}"
            for s in range(2) for db in range(4) for k in range(2)]
def tile_body(a, opt, t, carry, extra=()):
    first = t == 0
    M = qk(0, first) + (pv(2, t == 1) if t else [None]*8) + qk(1, first) + pv(0, first) + qk(2, first) + pv(1, first)
    W = opt.w0
    sl = [[] for _ in range(48 + W)]
    def at(G, slots):
        for g, k in zip(G, slots): sl[k].append(g)
    if 2*t + NS <= 31: at(dma_unit(2*t + NS, opt), opt.d1)
    spread(sl, [f"WAITVM u{2*t+1}"] + vreads(t), *opt.vwin)
    if 2*t + NS + 1 <= 31: at(dma_unit(2*t + NS + 1, opt), opt.d2)
    if t < 15: spread(sl, [f"WAITVM u{2*t+2}"] + kreads(t + 1), *opt.kwin)
    if t == 14 and opt.xgate: sl[30].append('v_mov_b32 v27, 2\nds_write_b32 v109, v27 offset:16')
    if opt.hold or t == 0: sl[46].append("s_add_u32 s45, s45, 1\nv_mov_b32 v27, s45\nds_write_b32 v109, v27 offset:16")
    if 1 <= t <= 14 and opt.hold:
        sl[44].append("ds_read_b64 v[30:31], v26")
        sl[47].append(f"""AUTO v_min_u32 v30, v30, v31
s_add_u32 s38, s38, s50
s_min_i32 s38, s38, 256
v_readfirstlane_b32 s3, v30
s_lshl_b32 s3, s3, 4
s_cmp_ge_i32 s3, s38
s_cbranch_scc1 L_go{t}
s_call_b64 s[40:41], L_hold
LABEL L_go{t}""")
    for e in extra: spread(sl, *e)
    for i, x in enumerate(carry): sl[i] = x + sl[i]
    ghost = {48 + k: "buffer_x\ns_nop 0\ns_nop 0" for k in opt.d1 if k < W}
    for k, g in ghost.items(): sl[k].append(g)
    level_fill(sl, softmax(0, t, first), W, W + 16, opt.dcost)
    level_fill(sl, softmax(1, t, first), W + 16, W + 32, opt.dcost)
    level_fill(sl, softmax(2, t, first), W + 32, W + 48, opt.dcost)
    for k in ghost: sl[k] = sl[k][1:]
    for i in range(48):
        if opt.fewwait:
            if i == 0: a.wait(lgregs=regs_of(ar(KF, 32)))
            if i == 24: a.wait(lgregs=regs_of(ar(VF, 32)))
        if M[i]: emit(a, [M[i]])
        for x in sl[i]:
            if opt.acct and x.startswith("WAITVM"):
                keep = list(a.lg)
                a.e("s_memtime s[94:95]"); emit(a, [x]); a.e("s_memtime s[96:97]\ns_waitcnt lgkmcnt(0)\ns_sub_u32 s96, s96, s94")
                r = 98 if int(x.split("u")[1]) % 2 else 100
                a.e(f"s_add_u32 s{r}, s{r}, s96")
            elif opt.acct == 2 and "lds ;" in x:
                a.e("s_memtime s[94:95]"); emit(a, [x]); a.e("s_memtime s[96:97]\ns_waitcnt lgkmcnt(0)\ns_sub_u32 s96, s96, s94\ns_add_u32 s92, s92, s96")
            else: emit(a, [x])
    return sl[48:]

def save(a): return (list(a.hist), list(a.lg), list(a.vm))
def load(a, st): a.hist, a.lg, a.vm = (list(x) for x in st)

def kernel(a, name, opt):
    a.raw(".text"); a.raw(f".globl {name}"); a.raw(".p2align 8"); a.raw(f".type {name},@function")
    a.label(name, reset=True)
    a.e("""s_load_dwordx8 s[56:63], s[0:1], 0
           s_load_dwordx8 s[64:71], s[0:1], 40
           s_load_dwordx2 s[72:73], s[0:1], 96
           s_load_dwordx2 s[40:41], s[0:1], 32
           s_load_dwordx2 s[42:43], s[0:1], 72
           s_load_dwordx4 s[44:47], s[0:1], 80
           s_memrealtime s[48:49]
           s_cmp_ge_u32 s2, 256
           s_cbranch_scc1 L_done""")
    if opt.stamps: a.e(f"{opt.clk} s[{STB}:{STB+1}]")
    VW, VXA, VXB, AW, AX, VD = 72, 73, 74, 76, 64, 111
    G, L15, H, L31, G1, R, C4 = 88, 89, 90, 91, 92, 81, 82
    VFO, VFP = 109, 110
    a.e(f"""v_lshrrev_b32 v1, 6, v0
            s_and_b32 s3, s2, 7
            s_lshr_b32 s29, s3, 2
            s_and_b32 s30, s3, 3
            v_readfirstlane_b32 s28, v1
            s_lshr_b32 s3, s2, 3
            s_lshr_b32 s31, s3, 2
            s_and_b32 s32, s3, 3
            v_and_b32 v1, 63, v0
            v_lshrrev_b32 v{G}, 4, v1
            v_and_b32 v{L15}, 15, v1
            v_lshrrev_b32 v56, 3, v1
            v_and_b32 v57, 7, v1
            v_and_b32 v{G1}, 1, v{G}
            v_lshlrev_b32 v59, 2, v{G1}
            v_xor_b32 v59, v57, v59
            v_lshlrev_b32 v59, 4, v59
            v_lshl_add_u32 v{VW}, v56, 13, v59
            v_mul_u32_u24 v60, 1152, v56
            v_xor_b32 v61, v57, v{G}
            s_and_b32 s6, s28, 1
            s_lshr_b32 s7, s28, 1
            s_lshl_b32 s3, s6, 2
            v_xor_b32 v61, s3, v61
            v_lshl_add_u32 v{VXA}, v61, 4, v60
            v_xor_b32 v61, 4, v61
            v_lshl_add_u32 v{VXB}, v61, 4, v60
            s_mul_i32 s37, s7, {YB}
            s_lshl_b32 s3, s6, 13
            s_add_u32 s37, s37, s3
            s_lshl_b32 s33, s30, 3
            s_lshl_b32 s3, s32, 1
            s_add_u32 s33, s33, s3              ; head X
            s_add_u32 s74, s3, s31              ; b + 2p
            s_lshl_b32 s52, s33, 8
            s_lshl_b32 s3, s28, 7
            s_add_u32 s52, s52, s3
            s_mul_i32 s53, s31, 110592
            s_mul_i32 s3, s28, 27648
            s_add_u32 s53, s53, s3              ; x rows 24w..
            s_mul_i32 s55, s28, 3072
            s_mov_b32 s18, 884736
            s_mov_b32 s19, 0x20000
            s_mov_b32 s22, 4718592
            s_mov_b32 s23, 0x20000""")
    if opt.krot == 0: a.e("s_mov_b32 s74, 0")
    elif opt.krot == 1: a.e("s_cmp_ge_u32 s74, 9\ns_cselect_b32 s3, 9, 0\ns_sub_u32 s74, s74, s3")
    elif opt.krot == 3: a.e("s_and_b32 s74, s74, 1\ns_lshl_b32 s74, s74, 2")
    a.e("s_cmp_eq_u32 s29, 0\ns_waitcnt lgkmcnt(0)")
    for d, o in ((20, 6), (16, 0), (8, 2), (12, 4)):
        a.e(f"s_cselect_b32 s{d}, s{56+o}, s{64+o}\ns_cselect_b32 s{d+1}, s{57+o}, s{65+o}")
    a.e("""s_cselect_b32 s76, s40, s42
           s_cselect_b32 s77, s41, s43
           s_mov_b64 s[78:79], s[44:45]
           s_mov_b64 s[80:81], s[46:47]
           s_or_b32 s75, s48, 1""")
    P = lambda ch: " nt" if ch == "n" else ""
    XS = 98304
    def stage(c):
        buf = c % 3; Gs = []
        for j in range(8):
            g = ["s_lshl_b32 s4, s74, 19", "s_add_u32 s4, s4, s52"] if j == 0 else ["s_add_u32 s4, s4, 65536"]
            g += [f"s_add_u32 m0, s37, {buf*SLOT + j*1024}", f"buffer_load_dwordx4 v{VW}, s[20:23], s4 offen{P(opt.wp[0])} lds ; @s{c}"]
            Gs.append("\n".join(g))
        for i in range(3):
            g = ["s_lshl_b32 s5, s74, 7", "s_add_u32 s5, s5, s53"] if i == 0 else [f"s_add_u32 s5, s5, {8*1152}"]
            g += [f"s_add_u32 m0, s55, {XS + buf*12288 + i*1024}", f"buffer_load_dwordx4 v{VXB if i % 2 else VXA}, s[16:19], s5 offen{P(opt.wp[1])} lds ; @s{c}"]
            if i == 2: g += ["s_add_u32 s74, s74, 1", "s_cmp_eq_u32 s74, 9", "s_cselect_b32 s74, 0, s74"]
            Gs.append("\n".join(g))
        return Gs
    stamp(a, 'ka', opt)
    emit(a, stage(0))
    stamp(a, 'i0', opt)
    srd(a, 56, "s80", "s81", 256)
    a.e("""s_lshl_b32 s3, s2, 8
           v_add_u32 v106, s3, v0
           v_min_u32 v106, 1, v106
           v_lshlrev_b32 v106, 12, v106
           v_mov_b32 v107, s75
           buffer_store_dword v107, v106, s[56:59], 0 offen sc1""")
    emit(a, stage(1))
    for d in (8, 12): a.e(f"s_mov_b32 s{d+2}, {1 << 26}\ns_mov_b32 s{d+3}, 0x20000")
    srd(a, 24, "s72", "s73", WS_BYTES)
    srd(a, 60, "s76", "s77", 4718592)
    a.e(f"""v_lshrrev_b32 v{H}, 5, v1
            v_and_b32 v{L31}, 31, v1
            v_lshrrev_b32 v{R}, 2, v{L15}
            v_and_b32 v{C4}, 3, v1
            v_lshl_add_u32 v59, v{H}, 3, v{R}
            v_lshlrev_b32 v59, 7, v59
            v_lshrrev_b32 v60, 1, v{R}
            v_lshl_add_u32 v59, v60, 6, v59
            v_lshl_add_u32 v59, v{G1}, 5, v59
            v_lshl_add_u32 v59, v{C4}, 3, v59
            v_add_u32 v{AW}, s37, v59
            v_xor_b32 v{AW+1}, 64, v{AW}
            v_bfe_u32 v60, v1, 1, 3
            v_xor_b32 v60, v60, v{H}
            v_lshlrev_b32 v60, 4, v60
            v_lshl_add_u32 v60, v{L31}, 7, v60
            v_add_u32 v{AX}, {XS}, v60""")
    for s in range(1, 4): a.e(f"v_xor_b32 v{AX+s}, {32*s}, v{AX}")
    a.e(f"""s_lshl_b32 s3, s28, 2
            s_add_u32 s3, s3, {TOP + 3072}
            v_mov_b32 v{VFO}, s3
            v_xor_b32 v{VFP}, 4, v{VFO}
            v_mov_b32 v61, 0
            ds_write_b32 v{VFO}, v61
            ds_write_b32 v{VFO}, v61 offset:16
            s_mov_b32 s44, 0
            s_mov_b32 s45, 0""")
    def frag_reads(c, s, F):
        buf = c % 3
        L = [f"ds_read_b64_tr_b16 {vr(F + db*4 + k*2, 2)}, v{AW+db} offset:{buf*SLOT + (16*s + 4*k) * 128}" for db in range(2) for k in range(2)]
        return L + [f"ds_read_b128 {vr(F + 8 + qb*4, 4)}, v{AX+s} offset:{buf*12288 + qb*4096}" for qb in range(3)]
    setup = f"""v_lshlrev_b32 v26, 8, v{G}
            v_xor_b32 v27, v{L15}, v{G}
            v_lshl_add_u32 v{VOFFK}, v27, 4, v26
            v_xor_b32 v{VOFFK+1}, 64, v{VOFFK}
            v_xor_b32 v{VOFFK+2}, 128, v{VOFFK}
            v_xor_b32 v{VOFFK+3}, 192, v{VOFFK}
            v_lshlrev_b32 v27, 2, v{G}
            v_xor_b32 v27, v{L15}, v27
            v_lshl_add_u32 v{VOFFV}, v27, 4, v26
            s_lshl_b32 s3, s6, 13
            s_add_u32 s33, s33, s7
            s_lshl_b32 s34, s31, 5
            s_add_u32 s34, s34, s33
            s_lshl_b32 s34, s34, 18
            s_add_u32 s34, s34, s3"""
    if opt.rot:
        setup += """
            s_lshl_b32 s3, s2, 2
            s_add_u32 s3, s3, s7
            s_mul_i32 s3, s3, 0x1e3779b1
            s_lshr_b32 s47, s3, 15
            s_xor_b32 s3, s3, s47
            s_mul_i32 s3, s3, 0x2c1b3c6d
            s_lshr_b32 s3, s3, 20
            s_and_b32 s3, s3, 15
            s_lshl_b32 s35, s3, 14"""
    else: setup += "\ns_mov_b32 s35, 0"
    setup += f"""
            s_mov_b32 s36, s35
            v_xor_b32 v27, v{H}, v{L15}
            v_lshlrev_b32 v27, 4, v27
            v_lshl_add_u32 v27, v{L31}, 8, v27
            v_add_u32 v{VKA}, s37, v27"""
    for s in range(1, 8): setup += f"\nv_xor_b32 v{VKA+s}, {32*s}, v{VKA}"
    setup += f"""
            v_lshl_add_u32 v28, v{H}, 2, v{R}
            v_lshlrev_b32 v28, 8, v28
            v_lshl_add_u32 v28, v{R}, 6, v28
            v_lshl_add_u32 v28, v{G1}, 5, v28
            v_lshl_add_u32 v28, v{C4}, 3, v28
            s_lshl_b32 s47, s6, 7
            v_xor_b32 v28, s47, v28
            v_add_u32 v{VVA}, s37, v28"""
    for db in range(1, 4): setup += f"\nv_xor_b32 v{VVA+db}, {64*db}, v{VVA}"
    setup += f"\ns_mov_b32 s42, {f2u(CSC):#x}\ns_mov_b32 s43, {f2u(THR_LOG2):#x}"
    for qb in range(3): setup += f"\nv_mov_b32 v{LSUM+qb}, 0"
    setup = [x.strip() for x in setup.split("\n")]
    VO, VL16, AD, VOL = 93, 102, 103, 107
    def vo_calc(dst, rev):
        L = []
        for i in range(9):
            L += [f"v_add_u32 v84, {64*i}, v1", "v_mul_u32_u24 v85, 58255, v84", "v_lshrrev_b32 v85, 20, v85", "v_mul_u32_u24 v86, 18, v85",
                  "v_sub_u32 v86, v84, v86", "v_xor_b32 v87, 1, v86", "v_sub_u32 v87, 17, v87"]
            if rev == "vcc": L += ["v_cndmask_b32 v87, v86, v87, vcc"]
            L += ["v_mul_u32_u24 v85, 1152, v85", f"v_lshl_add_u32 v{dst+i}, v87, 4, v85"]
        return L
    setup2 = ["s_cmp_eq_u32 s7, 1\ns_cselect_b64 vcc, -1, 0"] + vo_calc(VO, "vcc") + [x.strip() for x in f"""v_lshlrev_b32 v{VL16}, 4, v1
            v_lshlrev_b32 v84, 4, v{H}
            v_lshl_add_u32 v84, v{G1}, 2, v84
            v_add_u32 v84, v84, v{R}
            v_mul_u32_u24 v84, 288, v84
            v_lshl_add_u32 v84, v{C4}, 3, v84
            s_mul_i32 s3, s7, 18432
            v_add_u32 v{AD+1}, s3, v84
            v_add_u32 v{AD}, {SB[0]}, v{AD+1}
            v_lshlrev_b32 v{VOL}, 10, v{G1}
            v_lshl_add_u32 v{VOL}, v{H}, 8, v{VOL}
            v_lshl_add_u32 v{VOL}, v{L15}, 4, v{VOL}
            v_mov_b32 v108, 0
            s_mul_i32 s67, s30, 1179648
            s_mul_i32 s3, s32, 288
            s_add_u32 s64, s67, s3              ; wo: rows of the octet, columns 144p..
            s_lshl_b32 s39, s29, 3
            s_add_u32 s39, s39, s31""".split("\n")]
    setW = ["s_lshl_b32 s66, s32, 1", "s_mul_i32 s65, s28, 9216", f"s_mul_i32 s68, s28, {32*1152}", "s_add_u32 s68, s68, s64"]
    def psync(pre_wait=True):
        psync.n += 1; n = psync.n
        a.e(f"""s_add_u32 s44, s44, 1
                v_mov_b32 v{VD}, s44
                ds_write_b32 v{VFO}, v{VD}
                s_mov_b32 s47, 0x400000""")
        a.label(f"L_ps{n}")
        a.e(f"""ds_read_b32 v{VD}, v{VFP}
                s_sub_u32 s47, s47, 1
                s_waitcnt lgkmcnt(0)
                v_readfirstlane_b32 s3, v{VD}
                s_cmp_eq_u32 s47, 0
                s_cselect_b32 s3, s44, s3
                s_cmp_lt_u32 s3, s44
                s_cbranch_scc1 L_ps{n}""")
    psync.n = 0
    def other_pair(name, word, val, T=84):
        a.e(f"v_mov_b32 v{T+2}, {TOP + 3072 + word}\ns_mov_b32 s47, 0x400000")
        a.label(name)
        a.e(f"""s_sleep 2
                ds_read_b64 v[{T}:{T+1}], v{T+2}
                s_sub_u32 s47, s47, 1
                s_waitcnt lgkmcnt(0)
                v_min_u32 v{T}, v{T}, v{T+1}
                v_readfirstlane_b32 s3, v{T}
                s_cmp_eq_u32 s47, 0
                s_cselect_b32 s3, {val}, s3
                s_cmp_lt_u32 s3, {val}
                s_cbranch_scc1 {name}""")

    ACC = 112
    def qwrite(blocks, dreg, area):
        a.e(f"""v_xor_b32 v55, {dreg}, v{L15}
                v_lshlrev_b32 v55, 4, v55
                v_lshl_add_u32 v55, v{L31}, 8, v55
                v_lshl_add_u32 v55, v{H}, 3, v55
                v_add_u32 v55, {area}, v55
                v_mov_b32 v62, s42""")
        for db in range(blocks):
            for i in range(4):
                a.e(f"v_xor_b32 v54, {(4*db + i)*16}, v55")
                for qb in range(3):
                    r = ACC + (db*3 + qb)*16 + 4*i; tq = 56 + 2 * qb
                    a.e(f"""v_pk_mul_f32 v[{r}:{r+1}], v[{r}:{r+1}], v[62:63] op_sel_hi:[1,0]
                            v_pk_mul_f32 v[{r+2}:{r+3}], v[{r+2}:{r+3}], v[62:63] op_sel_hi:[1,0]
                            v_cvt_pk_bf16_f32 v{tq}, v{r}, v{r+1}
                            v_cvt_pk_bf16_f32 v{tq+1}, v{r+2}, v{r+3}
                            ds_write_b64 v54, v[{tq}:{tq+1}] offset:{qb*8192}""")
    def qread(area):
        a.e(f"s_sub_u32 s3, {area}, s37")
        for s in range(8): a.e(f"v_add_u32 v{32+s}, s3, v{VKA+s}")
        for qb in range(3):
            for s in range(8): a.e(f"ds_read_b128 {vr(Qreg(qb,s),4)}, v{32+s} offset:{qb*8192}")
    FA, FB = 208, 228
    a.wait(vmtags=["s0"], lg0=True); a.e("s_barrier")
    stamp(a, "q0", opt)
    emit(a, frag_reads(0, 0, FA))
    sl = [[] for _ in range(216 + 24)]
    spread(sl, stage(2), 0, 18)
    spread(sl, setup, 0, 18)
    spread(sl, setup2 + setW, 18, 150)
    for c in range(9):
        for s in range(4):
            F, nF = (FA, FB) if s % 2 == 0 else (FB, FA)
            k0 = (c*4 + s) * 6
            if s == 3:
                a.wait(vmtags=[f"s{c+1}"], lg0=True); a.e("s_barrier")
                stamp(a, f"c{c}", opt)
                spread(sl, stage(c + 3) if c + 3 <= 8 else dma_unit(c - 6, opt) if c < 8 else [], k0, k0 + 24)
                if c < 8: emit(a, frag_reads(c + 1, 0, nF))
            else: emit(a, frag_reads(c, s + 1, nF))
            i = 0
            for db in range(2):
                for qb in range(3):
                    d = vr(ACC + (db*3 + qb)*16, 16)
                    emit(a, [f"v_mfma_f32_32x32x16_bf16 {d}, {vr(F+db*4,4)}, {vr(F+8+qb*4,4)}, " + ("0" if (c == 0 and s == 0) else d)] + sl[k0 + i]); i += 1
    assert not any(sl[216:])
    a.e(f"s_lshl_b32 s3, s6, 3\ns_mul_i32 s4, s7, 24576\ns_add_u32 s4, s4, {XS}")
    qwrite(2, "s3", "s4")
    a.e("s_waitcnt lgkmcnt(0)\ns_barrier")
    qread("s4")
    stamp(a, "qx", opt)
    emit(a, dma_unit(2, opt))
    a.wait(vmtags=["u0"], lg0=True)
    emit(a, kreads(0))
    stamp(a, "k0", opt)
    a.e(f"""v_mov_b32 v26, {TOP + 3072 + 16}
            s_cmp_eq_u32 s7, 1
            s_cselect_b32 s50, {round(opt.thr1 * 16)}, 0
            s_cselect_b32 s38, {round((opt.thr0 + opt.thr1) * 16)}, -1""")
    if not opt.hold: a.e("s_add_u32 s50, s7, 1")
    if opt.acct: a.e(f"s_mov_b64 s[98:99], s[{STB}:{STB+1}]\ns_mov_b64 s[100:101], s[{STB}:{STB+1}]\ns_mov_b64 s[92:93], s[{STB}:{STB+1}]")
    def wpieces(tag, head, rows, lds, voreg):
        Gs = []
        for i in range(9):
            g = [f"s_add_u32 s4, s66, {head}", "s_and_b32 s4, s4, 7", f"s_mul_i32 s4, s4, {128*1152}", "s_add_u32 s4, s4, s68",
                 f"s_add_u32 s4, s4, {rows*1152}"] if i == 0 else []
            g += [f"s_add_u32 m0, s65, {lds + i*1024}", f"buffer_load_dwordx4 v{voreg+i}, s[60:63], s4 offen{opt.wopol} lds ; @{tag}"]
            Gs.append("\n".join(g))
        return Gs
    HEAD = (0, 2, 4, 6, 1, 3, 5, 7)
    BUFOF = (0, 1, 0, 2, 3, 1, 0, 2)
    wS = lambda st: wpieces(f"w{st}", HEAD[st], 0, SB[BUFOF[st]], VO)
    wX = lambda st, VOR: wpieces(f"w{st}", HEAD[st], 0, SB[BUFOF[st]], VO) + wpieces(f"w{st}", HEAD[st], 64, SB[BUFOF[st]] + 18432, VOR)
    carry = tile_body(a, opt, 0, [])
    carry = tile_body(a, opt, 1, carry)
    if opt.unroll:
        for t in range(2, 14):
            stamp(a, f'r{t}', opt); carry = tile_body(a, opt, t, carry)
    else:
        stamp(a, "l0", opt)
        a.e("s_mov_b32 s46, 4")
        a.raw(".p2align 6"); a.label("L_tile")
        keep = list(a.vm)
        if not opt.hold: a.e(f"s_cmp_eq_u32 s7, 0\ns_cselect_b32 s3, {opt.last[0]}, {opt.last[1]}\ns_cmp_gt_u32 s46, 1\ns_cselect_b32 s50, s50, s3")
        if opt.late:
            a.e(f"""s_lshl_b32 s3, s7, 3
                    s_add_u32 s3, s3, s46
                    s_cmp_lg_u32 s3, {opt.late}
                    s_cbranch_scc1 L_nolate
                    s_lshr_b32 s3, s2, 3
                    s_lshl_b32 s3, s3, 1
                    s_add_u32 s3, s3, s6
                    s_mul_i32 s3, s3, 18432
                    v_lshlrev_b32 v84, 7, v1
                    v_add_u32 v84, s3, v84
                    v_add_u32 v85, 8192, v84
                    v_add_u32 v86, 16384, v84
                    v_cmp_gt_u32 vcc, 16, v1
                    v_cndmask_b32 v86, -1, v86, vcc""")
            emit(a, [f"buffer_load_dword v87, v{r}, s[60:63], s67 offen{opt.tpol} ; @junk" for r in (84, 85, 86)])
            a.label("L_nolate")
        a.vm = keep
        for t in (2, 3, 4): carry = tile_body(a, opt, t, carry)
        a.e("s_sub_u32 s46, s46, 1\ns_cmp_lg_u32 s46, 0\ns_cbranch_scc1 L_tile")
        for o in a.vm:
            if o.tag and o.tag[0] == "u": o.tag = f"u{int(o.tag[1:]) + 18}"
    stamp(a, "l1", opt)
    carry = tile_body(a, opt, 14, carry)
    xo = lambda k: (k // 8) * SLOT + (k % 8) * 1024
    def send(qb):
        return [f"ds_write_b128 v28, {ar(Oacc(2+i,qb) + 4*g, 4)} offset:{xo((i*3 + qb)*4 + g)}" for i in range(2) for g in range(4)]
    pre = ["buffer_load_dword v106, v108, s[56:59], 0 offen sc1 ; @tag",
           f"v_add_u32 v28, s37, v{VL16}", "s_lshl_b32 s3, s6, 14\ns_sub_u32 s3, 8192, s3", "v_add_u32 v29, s3, v28",
           f"s_mul_i32 s3, s28, 768\ns_add_u32 s3, s3, {TOP}", f"v_lshlrev_b32 v30, 3, v{L31}", "v_add_u32 v30, s3, v30",
           f"s_xor_b32 s3, s28, 1\ns_mul_i32 s3, s3, 768\ns_add_u32 s3, s3, {TOP}", f"v_lshlrev_b32 v31, 3, v{L31}", "v_add_u32 v31, s3, v31"]
    team = "v_and_b32 v13, 3, v1\nv_lshlrev_b32 v13, 10, v13\nv_and_b32 v14, 4, v1\nv_add_u32 v13, v13, v14"
    askX = [f"s_andn2_b32 s71, s2, 24\ns_lshl_b32 s71, s71, 7\ns_add_u32 s69, s71, {WS_F}"] + team.split("\n") + ["buffer_load_dword v12, v13, s[24:27], s69 offen sc1"]
    carry = tile_body(a, opt, 15, carry, extra=[(pre, 8, 16), (askX, 28, 34), (send(0), 34, 48)])
    sl = [[] for _ in range(8)]
    carry = [x for y in carry for x in y]
    emit(a, carry[:len(carry)//2])
    spread(sl, carry[len(carry)//2:], 0, 3)
    st = []
    for qb in range(3): st += [f"v_mov_b32 v{3+2*qb}, v{LSUM+qb}", f"v_mov_b32 v{2+2*qb}, v{NM+16*qb}"]
    for qb in range(3): st += [f"v_permlane32_swap_b32 v{LSUM+qb}, v{3+2*qb}"]
    for qb in range(3): st += [f"v_add_f32 v{3+2*qb}, v{LSUM+qb}, v{3+2*qb}", f"ds_write_b64 v30, v[{2+2*qb}:{3+2*qb}] offset:{qb*256}"]
    spread(sl, st + send(1), 3, 8)
    for m, f in zip(pv(2, False), sl): emit(a, [m] + f)
    stamp(a, "t15", opt)
    emit(a, send(2))
    for r in range(96): a.e(f"v_accvgpr_read_b32 v{160 + r}, a{r}")
    a.e("s_mov_b32 s4, 0x100000")
    a.label("L_tag")
    a.e("""s_waitcnt vmcnt(0)
           v_readfirstlane_b32 s75, v106
           s_cmp_lg_u32 s75, 0
           s_cbranch_scc1 L_tag_ok
           buffer_load_dword v106, v108, s[56:59], 0 offen sc1 ; @junk
           s_sub_u32 s4, s4, 1
           s_cmp_lg_u32 s4, 0
           s_cbranch_scc1 L_tag""")
    a.label("L_tag_ok"); a.vm = []
    a.e(f"""s_lshl_b32 s3, s39, 5
            s_add_u32 s3, s3, s33
            s_mul_i32 s52, s3, 24576
            s_mul_i32 s3, s6, 12288
            s_add_u32 s52, s52, s3
            s_waitcnt lgkmcnt(0)""")
    ACC, WF, OF = 112, 16, 0
    def ask(base, lanes):
        a.e(f"s_add_u32 s69, {base}, {WS_F}\n{lanes}\nbuffer_load_dword v12, v13, s[24:27], s69 offen sc1")
    def check(tag):
        a.e("s_mov_b32 s4, 0x100000")
        a.label(f"L_poll{tag}")
        a.e(f"""s_waitcnt vmcnt(0)
                v_cmp_ne_u32 vcc, s75, v12
                s_cbranch_vccz L_got{tag}
                s_sleep 1
                buffer_load_dword v12, v13, s[24:27], s69 offen sc1
                s_sub_u32 s4, s4, 1
                s_cmp_lg_u32 s4, 0
                s_cbranch_scc1 L_poll{tag}""")
        a.label(f"L_got{tag}")
        a.e("s_waitcnt vmcnt(0)")
    def wreads(buf, rows, F):
        reg, boff = (AD, AD + 1, 220, 221)[buf], 0
        return [f"ds_read_b64_tr_b16 {vr(F + nb*4 + 2*k, 2)}, v{reg} offset:{boff + (rows + 8*k) * 288 + 32*nb}" for nb in range(9) for k in range(2)]
    def oload(tag, head, db0, nks, dst):
        Gs = []
        for kl in range(nks):
            for j in range(3):
                g = [f"s_add_u32 s47, s66, {head}", "s_and_b32 s47, s47, 7", "s_mul_i32 s47, s47, 24576", "s_add_u32 s47, s47, s37"] + \
                    ([f"s_add_u32 s47, s47, {db0}"] if db0 else []) if kl + j == 0 else ["s_add_u32 s47, s47, 6144"] if j == 0 else []
                Gs.append("\n".join(g + [f"buffer_load_dwordx4 {ar(dst + (kl*3+j)*4, 4)}, v{VL16}, s[24:27], s47 offen offset:{j*1024} sc1 ; @{tag}"]))
        return Gs
    def kstep(F, O, zero, reads, jobs):
        ms = [f"v_mfma_f32_16x16x32_bf16 {vr(ACC + (nb*3+j)*4, 4)}, {vr(F+nb*4,4)}, {ar(O+j*4,4)}, " + ("0" if zero else vr(ACC + (nb*3+j)*4, 4))
              for nb in range(9) for j in range(3)]
        sl = [[] for _ in range(27)]
        spread(sl, reads, 0, 20); spread(sl, jobs, 0, 27)
        a.e("s_waitcnt lgkmcnt(0)")
        for m, f in zip(ms, sl): emit(a, [m] + f)
        return ms
    team = "v_and_b32 v13, 3, v1\nv_lshlrev_b32 v13, 10, v13\nv_and_b32 v14, 4, v1\nv_add_u32 v13, v13, v14"
    a.e(f"""s_lshl_b32 s3, s2, 7
            s_lshl_b32 s4, s28, 2
            s_add_u32 s70, s3, s4
            s_add_u32 s70, s70, {WS_F}
            s_lshl_b32 s3, s39, 2
            s_add_u32 s3, s3, s30
            s_mul_i32 s37, s3, {8*24576}
            s_mul_i32 s4, s6, 3072
            s_add_u32 s37, s37, s4
            s_mul_i32 s4, s7, 12288
            s_add_u32 s37, s37, s4
            s_mov_b32 s45, 0
            s_cmp_eq_u32 s7, 0
            s_cbranch_scc1 L_noearly
            v_cmp_ne_u32 vcc, s75, v12
            s_cbranch_vccnz L_noearly
            s_mov_b32 s45, 1""")
    for st in range(1, 4): emit(a, oload(f"o{st}", HEAD[st], 0, 2, 24*st))
    a.label("L_noearly"); a.vm = []
    a.e(f"v_sub_u32 v27, v29, v{VL16}\nv_add_u32 v27, v27, v{VOL}")
    psync()
    stamp(a, "c_bar", opt)
    for qb in range(3): a.e(f"ds_read_b64 v[{8+2*qb}:{9+2*qb}], v31 offset:{qb*256}")
    RC = (32, 48, 64, 112, 128, 144)
    def recv(blk):
        for g in range(4): a.e(f"ds_read_b128 {vr(RC[blk]+4*g,4)}, v29 offset:{xo(blk*4 + g)}")
    recv(0); recv(1)
    SC = 16
    for qb in range(3):
        pn, pl, on, ol = 8 + 2*qb, 9 + 2*qb, 2 + 2*qb, 3 + 2*qb
        a.auto(f"v_min_f32 v22, v{on}, v{pn}")
        a.e(f"""v_sub_f32 v23, v22, v{on}
                v_sub_f32 v24, v22, v{pn}
                v_exp_f32 v23, v23
                v_exp_f32 v24, v24
                v_mul_f32 v{ol}, v{ol}, v23
                v_fmac_f32 v{ol}, v{pl}, v24
                v_rcp_f32 v{ol}, v{ol}
                v_mul_f32 v{SC+2*qb}, v23, v{ol}
                v_mul_f32 v{SC+2*qb+1}, v24, v{ol}""")
    recv(2); recv(3); recv(4); recv(5)
    for blk in range(6):
        i, qb = divmod(blk, 3)
        K = 160 + blk*16; Rr = RC[blk]
        a.wait(lgregs=regs_of(vr(Rr, 16)))
        for r in range(0, 16, 2):
            a.e(f"v_pk_mul_f32 v[{Rr+r}:{Rr+r+1}], v[{Rr+r}:{Rr+r+1}], v[{SC+2*qb}:{SC+2*qb+1}] op_sel:[0,1] op_sel_hi:[1,1]")
        for r in range(0, 16, 2):
            a.e(f"v_pk_fma_f32 v[{K+r}:{K+r+1}], v[{K+r}:{K+r+1}], v[{SC+2*qb}:{SC+2*qb+1}], v[{Rr+r}:{Rr+r+1}] op_sel_hi:[1,0,1]")
        for j in range(8):
            a.e(f"v_cvt_pk_bf16_f32 v{K+8*(j//4)+j%4}, v{K+2*j}, v{K+2*j+1}")
        a.e(f"s_add_u32 s47, s52, {WS_O + (i*6 + 2*qb)*1024}")
        for s in range(2):
            a.e(f"buffer_store_dwordx4 {vr(K+8*s,4)}, v{VOL}, s[24:27], s47 offen offset:{512*s} sc1")
            a.e(f"ds_write_b128 v27, {vr(K+8*s,4)} offset:{xo(i*6 + 2*qb) + 512*s}")
    stamp(a, "comb", opt)
    a.e("v_mov_b32 v14, s75\ns_cmp_eq_u32 s7, 1\ns_cbranch_scc1 L_tailY")
    stT = save(a)
    other_pair("L_yq", 24, 1 + opt.xgate)
    emit(a, wX(0, VO))
    a.e(f"""s_waitcnt vmcnt(18)
            buffer_store_dword v14, v108, s[24:27], s70 offen sc1
            v_add_u32 v3, 8192, v{VL16}
            s_waitcnt lgkmcnt(0)""")
    psync()
    a.e("s_cmp_eq_u32 s6, 1\ns_cbranch_scc1 L_x1")
    sv = save(a)
    for qh in range(2):
        if qh: a.label("L_x1"); load(a, sv)
        for db in range(4):
            for j in range(3): a.e(f"ds_read_b128 {ar(192 + (db*3+j)*4, 4)}, v{3 if db < 2 else VL16} offset:{xo((db % 2)*6 + 3*qh + j)}")
        if qh == 0: a.e("s_branch L_x2")
    a.label("L_x2")
    VOR = 224
    emit(a, vo_calc(VOR, "rev"))
    a.wait(vmtags=["w0"], lg0=True); psync()
    emit(a, wreads(0, 0, WF))
    w1 = wX(1, VOR)
    kstep(WF, 192, True, wreads(0, 32, WF + 36), w1[:6])
    kstep(WF + 36, 204, False, wreads(0, 64, WF), w1[6:12])
    kstep(WF, 216, False, wreads(0, 96, WF + 36), w1[12:])
    ask("s71", team)
    a.e("s_waitcnt lgkmcnt(0)"); psync()
    kstep(WF + 36, 228, False, [], wX(2, VOR))
    check("A")
    stamp(a, "chkA", opt)
    for st in range(1, 4): emit(a, oload(f"o{st}", HEAD[st], 0, 2, 24*st))
    a.e("s_waitcnt vmcnt(0)\ns_branch L_join")
    a.label("L_tailY"); load(a, stT)
    a.e("s_cmp_eq_u32 s45, 1\ns_cbranch_scc1 L_hadearly")
    sv = save(a)
    ask("s71", team); check("Y")
    a.vm = list(sv[2])
    for st in range(1, 4): emit(a, oload(f"o{st}", HEAD[st], 0, 2, 24*st))
    a.label("L_hadearly")
    a.e("s_waitcnt lgkmcnt(0)")
    a.label("L_join"); a.lg = []
    a.e(f"""s_add_u32 s71, s71, 8
            v_add_u32 v220, {SB[2] - SB[1]}, v{AD+1}
            v_add_u32 v221, {SB[3] - SB[1]}, v{AD+1}
            s_mul_i32 s3, s7, -8192
            s_add_u32 s3, s3, {YB + 8192}
            v_add_u32 v2, s3, v{VL16}
            v_mov_b32 v15, s75
            s_barrier""")
    stamp(a, "join", opt)
    emit(a, wreads(1, 0, WF))
    a.e("s_cmp_eq_u32 s6, 1\ns_cbranch_scc1 L_own1")
    sv = save(a)
    for qh in range(2):
        if qh: a.label("L_own1"); load(a, sv)
        for kl in range(2):
            for j in range(3): a.e(f"ds_read_b128 {ar(96 + (kl*3+j)*4, 4)}, v2 offset:{xo(kl*6 + 3*qh + j)}")
        if qh == 0: a.e("s_branch L_own2")
    a.label("L_own2")
    a.wait(vmtags=["o1"])
    a.e("s_cmp_eq_u32 s7, 1\ns_cbranch_scc1 L_fy")
    sv = save(a)
    kstep(WF, 24, False, wreads(1, 32, WF + 36), wS(3))
    a.e("s_branch L_fx")
    a.label("L_fy"); load(a, sv)
    kstep(WF, 24, True, wreads(1, 32, WF + 36), wS(3))
    a.e("s_waitcnt vmcnt(9)\nbuffer_store_dword v15, v108, s[24:27], s70 offen sc1 ; @junk")
    a.label("L_fx"); a.vm = [o for o in a.vm if o.tag == "w3"]
    a.e("s_waitcnt lgkmcnt(0)\ns_barrier")
    kstep(WF + 36, 36, False, wreads(0, 0, WF), wS(4))
    stamp(a, "g1", opt)
    A = opt.askat
    plan = {(2, 0): "w5", (2, 1): "w6", (A, 1): "o5", (A + 1, 0): "o6", (A + 1, 1): "w7", (A + 2, 0): "o7"}
    if A == 2: plan = {(2, 0): "w5", (2, 1): "o5", (3, 0): "o6", (3, 1): "w6", (4, 0): "o7", (4, 1): "w7"}
    job = lambda st, kl: [] if (st, kl) not in plan else wS(int(plan[st, kl][1])) if plan[st, kl][0] == "w" else \
        oload(plan[st, kl], HEAD[int(plan[st, kl][1])], 0, 2, 24*int(plan[st, kl][1]))
    for st in range(2, 8):
        stamp(a, f"s{st}", opt)
        if st == A: ask("s71", team)
        if st >= 5: a.wait(vmtags=[f"o{st}"])
        kstep(WF, 24*st, False, wreads(BUFOF[st], 32, WF + 36), job(st, 0))
        if st == A: check("B"); stamp(a, "chk1", opt)
        stamp(a, f"h{st}", opt)
        if st < 7:
            a.wait(vmtags=[f"w{st+1}"], lg0=True); a.e("s_barrier")
            kstep(WF + 36, 24*st + 12, False, wreads(BUFOF[st + 1], 0, WF), job(st, 1))
    a.e(f"""s_lshl_b32 s3, s28, 14
            v_add_u32 v13, s3, v{VL16}
            v_xor_b32 v14, 32768, v13
            s_lshl_b32 s52, s39, 2
            s_add_u32 s52, s52, s32
            s_lshl_b32 s53, s52, 2
            s_add_u32 s53, s53, s30
            s_mul_i32 s53, s53, 36864
            s_mul_i32 s3, s28, 9216
            s_add_u32 s53, s53, s3
            s_add_u32 s47, s53, {WS_P}
            s_waitcnt lgkmcnt(0)
            s_barrier""")
    F, O = WF + 36, 180
    T = lambda nb, j: ACC + (nb*3+j)*4
    ms = [f"v_mfma_f32_16x16x32_bf16 {vr(T(nb,j), 4)}, {vr(F+nb*4,4)}, {ar(O+j*4,4)}, {vr(T(nb,j), 4)}" for nb in (8, 7, 6, 5, 4, 0, 1, 2, 3) for j in range(3)]
    snd = [f"ds_write_b128 v13, {vr(T(nb,j),4)} offset:{((8-nb)*3+j)*1024}" for nb in range(8, 3, -1) for j in range(3)]
    emit(a, ms[:6])
    for k in range(15): emit(a, [ms[6 + k], snd[k]])
    emit(a, ms[21:])
    stamp(a, "gend", opt)
    a.e("s_waitcnt lgkmcnt(0)\ns_barrier")
    order = [(k, j) for k in range(3) for j in range(3)]
    for k, j in order:
        for nb in range(2*k, min(2*k + 2, 5)): a.e(f"ds_read_b128 {vr(WF + (nb*3+j)*4, 4)}, v14 offset:{(nb*3+j)*1024}")
    for k, j in order:
        r = T(2*k, j)
        for h, nb in enumerate(range(2*k, min(2*k + 2, 5))):
            t, q = T(nb, j), WF + (nb*3+j)*4
            a.wait(lgregs=regs_of(vr(q, 4)))
            a.e(f"v_pk_add_f32 v[{t}:{t+1}], v[{t}:{t+1}], v[{q}:{q+1}]\nv_pk_add_f32 v[{t+2}:{t+3}], v[{t+2}:{t+3}], v[{q+2}:{q+3}]")
            a.e(f"v_cvt_pk_bf16_f32 v{r+2*h}, v{t}, v{t+1}\nv_cvt_pk_bf16_f32 v{r+2*h+1}, v{t+2}, v{t+3}")
        if k < 2: a.e(f"buffer_store_dwordx4 {vr(r,4)}, v{VL16}, s[24:27], s47 offen offset:{j*1024} sc1")
        else: a.e(f"buffer_store_dwordx2 {vr(r,2)}, v{VL16}, s[24:27], s47 offen offset:{j*1024} sc1")
        if j == 2 and k < 2: a.e("s_add_u32 s47, s47, 3072")
    a.e(f"""s_add_u32 s70, s70, 32768
            s_andn2_b32 s71, s2, 3
            s_lshl_b32 s71, s71, 7
            s_add_u32 s71, s71, 32768
            v_and_b32 v10, 15, v1
            v_mul_u32_u24 v10, 2304, v10
            v_lshrrev_b32 v11, 4, v1
            v_lshl_add_u32 v10, v11, 3, v10
            s_mul_i32 s52, s52, {4*36864}
            s_add_u32 s52, s52, {WS_P}
            s_mul_i32 s53, s31, {96*2304}
            s_mul_i32 s3, s29, 1152
            s_add_u32 s53, s53, s3
            s_mul_i32 s3, s32, 288
            s_add_u32 s53, s53, s3
            s_lshl_b32 s54, s30, 2
            s_add_u32 s54, s54, s28""")
    srd(a, 8, "s78", "s79", 1769472)
    def decode(i):
        A, B, C = 56 + 4*i, 57 + 4*i, 58 + 4*i
        a.e(f"""s_add_u32 s3, s54, {16*i}
                s_mul_i32 s4, s3, 43
                s_lshr_b32 s4, s4, 8
                s_mul_i32 s5, s4, 6
                s_sub_u32 s3, s3, s5            ; q16
                s_mul_i32 s{B}, s3, {16*2304}
                s_add_u32 s{B}, s{B}, s53
                s_cmp_ge_u32 s3, 3
                s_cselect_b32 s5, {9216 - 3072}, 0
                s_lshl_b32 s3, s3, 10
                s_add_u32 s{A}, s3, s5          ; qh * 9216 + j * 1024
                s_add_u32 s{A}, s{A}, s52
                s_and_b32 s3, s4, 1
                s_cmp_eq_u32 s4, 4
                s_cselect_b32 s3, 2, s3         ; k
                s_cselect_b32 s{C}, 0, 32
                s_mul_i32 s5, s3, 3072
                s_add_u32 s{A}, s{A}, s5
                s_lshl_b32 s3, s3, 6
                s_and_b32 s4, s4, 2
                s_cmp_eq_u32 s4, 2
                s_cselect_b32 s5, 18432, 0
                s_add_u32 s{A}, s{A}, s5
                s_cmp_eq_u32 s4, 2
                s_cselect_b32 s{C}, -32, s{C}
                s_sub_u32 s5, 256, s3
                s_cmp_eq_u32 s4, 2
                s_cselect_b32 s3, s5, s3
                s_add_u32 s{B}, s{B}, s3""")
    decode(0); decode(1)
    a.e("s_waitcnt vmcnt(0)\nbuffer_store_dword v15, v108, s[24:27], s70 offen sc1")
    stamp(a, "pub2", opt)
    ask("s71", "v_and_b32 v13, 3, v1\nv_lshlrev_b32 v13, 7, v13\nv_and_b32 v14, 12, v1\nv_add_u32 v13, v13, v14"); check(2)
    stamp(a, "chk2", opt)
    def loads(i):
        for o in range(4):
            a.e(f"buffer_load_dwordx4 {vr(16+16*i+4*o,4)}, v{VL16}, s[24:27], s{56+4*i} offen sc1")
            if o < 3: a.e(f"s_add_u32 s{56+4*i}, s{56+4*i}, 36864")
    def fin(i, left):
        b, D = 16 + 16*i, 112 + 16*i
        for o in range(4):
            a.e(f"s_waitcnt vmcnt({left + 3 - o})")
            for k in range(4):
                r = b + 4*o + k
                if o == 0: a.e(f"v_lshlrev_b32 v{D+2*k}, 16, v{r}\nv_and_b32 v{D+2*k+1}, 0xffff0000, v{r}")
                else: a.e(f"v_lshlrev_b32 v{D+8}, 16, v{r}\nv_and_b32 v{r}, 0xffff0000, v{r}\nv_add_f32 v{D+2*k}, v{D+2*k}, v{D+8}\nv_add_f32 v{D+2*k+1}, v{D+2*k+1}, v{r}")
        for k in range(4): a.e(f"v_cvt_pk_bf16_f32 v{D+k}, v{D+2*k}, v{D+2*k+1}")
        a.e(f"""buffer_store_dwordx2 v[{D}:{D+1}], v10, s[8:11], s{57+4*i} offen{opt.opol}
                s_add_u32 s{57+4*i}, s{57+4*i}, s{58+4*i}""")
        if i == 1: a.e("s_cmp_eq_u32 s62, 0\ns_cbranch_scc1 L_rd2")
        a.e(f"buffer_store_dwordx2 v[{D+2}:{D+3}], v10, s[8:11], s{57+4*i} offen{opt.opol}")
    loads(0)
    a.e("s_cmp_ge_u32 s54, 14\ns_cbranch_scc1 L_rd1")
    sv = save(a)
    loads(1); fin(0, 4); fin(1, 2)
    a.e("s_branch L_rd2")
    a.label("L_rd1"); load(a, sv)
    fin(0, 0)
    a.label("L_rd2")
    stamp(a, "end", opt)
    if opt.stamps:
        a.e(f"s_lshl_b32 s3, s2, 2\ns_add_u32 s3, s3, s28\ns_lshl_b32 s3, s3, 7\ns_add_u32 s3, s3, {WS_STAMP}\nv_mov_b32 v0, 0")
        for i in range(1 + len(opt.sset)):
            a.e(f"v_mov_b32 v2, s{STB+2*i}\nv_mov_b32 v3, s{STB+1+2*i}\nbuffer_store_dwordx2 v[2:3], v0, s[24:27], s3 offen offset:{8*i}\ns_waitcnt vmcnt(0)")
    a.label("L_done")
    a.e("s_endpgm")
    for qb in range(3): rare(a, qb)
    a.label("L_hold", reset=True)
    a.e("s_mov_b32 s47, 0x400000")
    a.label("L_hold1")
    a.e("""s_sleep 4
           ds_read_b64 v[30:31], v26
           s_sub_u32 s47, s47, 1
           s_waitcnt lgkmcnt(0)
           v_min_u32 v30, v30, v31
           v_readfirstlane_b32 s3, v30
           s_lshl_b32 s3, s3, 4
           s_cmp_eq_u32 s47, 0
           s_cselect_b32 s3, s38, s3
           s_cmp_lt_i32 s3, s38
           s_cbranch_scc1 L_hold1
           s_setpc_b64 s[40:41]""")

def build(opt):
    a = Asm()
    a.raw("; @launch grid=(256,1,1) block=(256,1,1) lds=163840")
    a.raw('.amdgcn_target "amdgcn-amd-amdhsa--gfx950"')
    kernel(a, NAME + "_kernel", opt)
    a.raw('.section .rodata,"a"\n.p2align 6')
    a.raw("\n".join([f".amdhsa_kernel {NAME}_kernel", "  .amdhsa_next_free_vgpr 512", "  .amdhsa_next_free_sgpr 102",
        "  .amdhsa_accum_offset 256", "  .amdhsa_group_segment_fixed_size 0", "  .amdhsa_kernarg_size 104",
        "  .amdhsa_user_sgpr_count 2", "  .amdhsa_user_sgpr_kernarg_segment_ptr 1",
        "  .amdhsa_system_sgpr_workgroup_id_x 1", ".end_amdhsa_kernel"]))
    return a.text(), a

if __name__ == "__main__":
    opt = Opt()
    out = sys.argv[1] if len(sys.argv) > 1 else "k.s"
    for kv in sys.argv[2:]:
        k, v = kv.split("=", 1); assert hasattr(opt, k), k
        setattr(opt, k, eval(v))
    t, a = build(opt)
    open(out, "w").write(t)
    print(out, "lines", t.count("\n"), "pad", a.npad)
```

```python
import sys, struct, math
sys.path.insert(0, "dev")
from asmlib import Asm, spread, regs_of, level_fill
import gen5
from gen5 import (NAME, f2u, CSC, THR_LOG2, WS_BYTES, WS_O, WS_P, WS_F, WS_STAMP, STB, vr, ar, srd, stamp, emit,
                  VOFFK, VOFFV, VKA, VVA, LSUM, TMAX, VT, NM, S0, Q0, KF, VF, Sreg, Qreg, Oacc, softmax, qk, pv, rare)

class Opt:
    wp = "pppp"
    noB = False
    stamps = False
    sset = ['q0', 'k0', 't15', 'comb', 'join', 'chk1', 'gend', 'pub2', 'end']
    thr0 = 0.0
    thr1 = 1.25
    clk = "s_memrealtime"
    rot = True
    krot = 3
    pbf16 = True
    k1early = False
    wot = None
    nx = 1
    accearly = True
    cap = (7, 6)
    capend = 30
    hold = False
    xgate = 0
    last = (0, 0)
    ylast = 1
    kvsame = False
    unroll = False
    a0at = 2
    opol = ''
    late = 2
    prio = 0
    gate = 12
    pace = 1.0
    d1 = (8, 10, 12, 14, 22, 24, 26, 27)
    d2 = (29, 31, 33, 35, 37, 39, 44, 47)
    dcost = 4.0
    acct = 0
    w0 = 10
    askat = 3
    fewwait = True
    vwin = (16, 22)
    kwin = (40, 44)
    tpol = ''
    wopol = ''

SLOT = 16384
STG = lambda i: 45056 + 28672 * i
TOP = 159744
SB = (122880, 0, 86016, 49152)
NS = 3
YB = 49152

def dma_unit(u, opt):
    kind = "KV"[u % 2]; sreg = "s36" if kind == "K" else "s35"
    srdn = "s[8:11]" if kind == "K" else "s[12:15]"
    G = []
    for j in range(8):
        g = []
        if j == 0: g += [f"s_add_u32 m0, s37, {(u % NS) * SLOT}", f"s_add_u32 s51, s34, {sreg}"]
        if j == 1 and not opt.kvsame: g += [f"s_add_u32 {sreg}, {sreg}, 16384", f"s_and_b32 {sreg}, {sreg}, 0x3ffff"]
        if j == 4: g += [f"s_add_u32 m0, s37, {(u % NS) * SLOT + 4096}", "s_add_u32 s51, s51, 4096"]
        vo = VOFFK + j % 4 if kind == "K" else VOFFV
        if opt.cap and 3 <= u <= opt.capend:
            cx, cy = opt.cap
            cx, cy = (c if isinstance(c, int) else c[j % len(c)] for c in (cx, cy))
            dma_unit.n += 1; n = dma_unit.n
            g += ["s_cmp_eq_u32 s50, 0", f"s_cbranch_scc1 L_cap{n}", f"RAW s_waitcnt vmcnt({cx - 1})"]
            if cy < cx: g += ["RAW s_cmp_eq_u32 s50, 1", f"RAW s_cbranch_scc1 L_cap{n}", f"RAW s_waitcnt vmcnt({cy - 1})"]
            g += [f"LABEL L_cap{n}"]
        g.append(f"buffer_load_dwordx4 v{vo}, {srdn}, s51 offen offset:{(j % 4)*1024} nt lds ; @u{u}")
        G.append("\n".join(g))
    return G
dma_unit.n = 0
def kreads(t): return [f"ds_read_b128 {ar(KF+4*s,4)}, v{VKA+s} offset:{((2*t) % NS) * SLOT}" for s in range(8)]
def vreads(t):
    return [f"ds_read_b64_tr_b16 {ar(VF + db*8 + s*4 + k*2, 2)}, v{VVA+db} offset:{((2*t+1) % NS)*SLOT + 4096*s + 2048*k}"
            for s in range(2) for db in range(4) for k in range(2)]
def tile_body(a, opt, t, carry, extra=()):
    first = t == 0
    M = qk(0, first) + (pv(2, t == 1) if t else [None]*8) + qk(1, first) + pv(0, first) + qk(2, first) + pv(1, first)
    W = opt.w0
    sl = [[] for _ in range(48 + W)]
    def at(G, slots):
        for g, k in zip(G, slots): sl[k].append(g)
    if 2*t + NS <= 31: at(dma_unit(2*t + NS, opt), opt.d1)
    spread(sl, [f"WAITVM u{2*t+1}"] + vreads(t), *opt.vwin)
    if 2*t + NS + 1 <= 31: at(dma_unit(2*t + NS + 1, opt), opt.d2)
    if t < 15: spread(sl, [f"WAITVM u{2*t+2}"] + kreads(t + 1), *opt.kwin)
    if t == 14 and opt.xgate: sl[30].append('v_mov_b32 v27, 2\nds_write_b32 v109, v27 offset:16')
    if opt.hold or t == 0: sl[46].append("s_add_u32 s45, s45, 1\nv_mov_b32 v27, s45\nds_write_b32 v109, v27 offset:16")
    if 1 <= t <= 14 and opt.hold:
        sl[44].append("ds_read_b64 v[30:31], v26")
        sl[47].append(f"""AUTO v_min_u32 v30, v30, v31
s_add_u32 s38, s38, s50
s_min_i32 s38, s38, 256
v_readfirstlane_b32 s3, v30
s_lshl_b32 s3, s3, 4
s_cmp_ge_i32 s3, s38
s_cbranch_scc1 L_go{t}
s_call_b64 s[40:41], L_hold
LABEL L_go{t}""")
    for e in extra: spread(sl, *e)
    for i, x in enumerate(carry): sl[i] = x + sl[i]
    ghost = {48 + k: "buffer_x\ns_nop 0\ns_nop 0" for k in opt.d1 if k < W}
    for k, g in ghost.items(): sl[k].append(g)
    level_fill(sl, softmax(0, t, first), W, W + 16, opt.dcost)
    level_fill(sl, softmax(1, t, first), W + 16, W + 32, opt.dcost)
    level_fill(sl, softmax(2, t, first), W + 32, W + 48, opt.dcost)
    for k in ghost: sl[k] = sl[k][1:]
    for i in range(48):
        if opt.fewwait:
            if i == 0: a.wait(lgregs=regs_of(ar(KF, 32)))
            if i == 24: a.wait(lgregs=regs_of(ar(VF, 32)))
        if M[i]: emit(a, [M[i]])
        for x in sl[i]:
            if opt.acct and x.startswith("WAITVM"):
                keep = list(a.lg)
                a.e("s_memtime s[94:95]"); emit(a, [x]); a.e("s_memtime s[96:97]\ns_waitcnt lgkmcnt(0)\ns_sub_u32 s96, s96, s94")
                r = 98 if int(x.split("u")[1]) % 2 else 100
                a.e(f"s_add_u32 s{r}, s{r}, s96")
            elif opt.acct == 2 and "lds ;" in x:
                a.e("s_memtime s[94:95]"); emit(a, [x]); a.e("s_memtime s[96:97]\ns_waitcnt lgkmcnt(0)\ns_sub_u32 s96, s96, s94\ns_add_u32 s92, s92, s96")
            else: emit(a, [x])
    return sl[48:]

def save(a): return (list(a.hist), list(a.lg), list(a.vm))
def load(a, st): a.hist, a.lg, a.vm = (list(x) for x in st)

def kernel(a, name, opt):
    a.raw(".text"); a.raw(f".globl {name}"); a.raw(".p2align 8"); a.raw(f".type {name},@function")
    a.label(name, reset=True)
    a.e("""s_load_dwordx8 s[56:63], s[0:1], 0
           s_load_dwordx8 s[64:71], s[0:1], 40
           s_load_dwordx2 s[72:73], s[0:1], 96
           s_load_dwordx2 s[40:41], s[0:1], 32
           s_load_dwordx2 s[42:43], s[0:1], 72
           s_load_dwordx4 s[44:47], s[0:1], 80
           s_memrealtime s[48:49]
           s_cmp_ge_u32 s2, 256
           s_cbranch_scc1 L_done""")
    if opt.stamps: a.e(f"{opt.clk} s[{STB}:{STB+1}]")
    VW, VXA, VXB, AW, AX, VD = 72, 73, 74, 76, 64, 111
    G, L15, H, L31, G1, R, C4 = 88, 89, 90, 91, 92, 81, 82
    VFO, VFP = 109, 110
    a.e(f"""v_lshrrev_b32 v1, 6, v0
            s_and_b32 s3, s2, 7
            s_lshr_b32 s29, s3, 2
            s_and_b32 s30, s3, 3
            v_readfirstlane_b32 s28, v1
            s_lshr_b32 s3, s2, 3
            s_lshr_b32 s31, s3, 2
            s_and_b32 s32, s3, 3
            v_and_b32 v1, 63, v0
            v_lshrrev_b32 v{G}, 4, v1
            v_and_b32 v{L15}, 15, v1
            v_lshrrev_b32 v56, 3, v1
            v_and_b32 v57, 7, v1
            v_and_b32 v{G1}, 1, v{G}
            v_lshlrev_b32 v59, 2, v{G1}
            v_xor_b32 v59, v57, v59
            v_lshlrev_b32 v59, 4, v59
            v_lshl_add_u32 v{VW}, v56, 13, v59
            v_mul_u32_u24 v60, 1152, v56
            v_xor_b32 v61, v57, v{G}
            s_and_b32 s6, s28, 1
            s_lshr_b32 s7, s28, 1
            s_lshl_b32 s3, s6, 2
            v_xor_b32 v61, s3, v61
            v_lshl_add_u32 v{VXA}, v61, 4, v60
            v_xor_b32 v61, 4, v61
            v_lshl_add_u32 v{VXB}, v61, 4, v60
            s_mul_i32 s37, s7, {YB}
            s_lshl_b32 s3, s6, 13
            s_add_u32 s37, s37, s3
            s_lshl_b32 s33, s30, 3
            s_lshl_b32 s3, s32, 1
            s_add_u32 s33, s33, s3              ; head X
            s_add_u32 s74, s3, s31              ; b + 2p
            s_lshl_b32 s52, s33, 8
            s_lshl_b32 s3, s28, 7
            s_add_u32 s52, s52, s3
            s_mul_i32 s53, s31, 110592
            s_mul_i32 s3, s28, 27648
            s_add_u32 s53, s53, s3              ; x rows 24w..
            s_mul_i32 s55, s28, 3072
            s_mov_b32 s18, 884736
            s_mov_b32 s19, 0x20000
            s_mov_b32 s22, 4718592
            s_mov_b32 s23, 0x20000""")
    if opt.krot == 0: a.e("s_mov_b32 s74, 0")
    elif opt.krot == 1: a.e("s_cmp_ge_u32 s74, 9\ns_cselect_b32 s3, 9, 0\ns_sub_u32 s74, s74, s3")
    elif opt.krot == 3: a.e("s_and_b32 s74, s74, 1\ns_lshl_b32 s74, s74, 2")
    a.e("s_cmp_eq_u32 s29, 0\ns_waitcnt lgkmcnt(0)")
    for d, o in ((20, 6), (16, 0), (8, 2), (12, 4)):
        a.e(f"s_cselect_b32 s{d}, s{56+o}, s{64+o}\ns_cselect_b32 s{d+1}, s{57+o}, s{65+o}")
    a.e("""s_cselect_b32 s76, s40, s42
           s_cselect_b32 s77, s41, s43
           s_mov_b64 s[78:79], s[44:45]
           s_mov_b64 s[80:81], s[46:47]
           s_or_b32 s75, s48, 1""")
    P = lambda ch: " nt" if ch == "n" else ""
    XS = 98304
    def stage(c):
        buf = c % 3; Gs = []
        for j in range(8):
            g = ["s_lshl_b32 s4, s74, 19", "s_add_u32 s4, s4, s52"] if j == 0 else ["s_add_u32 s4, s4, 65536"]
            g += [f"s_add_u32 m0, s37, {buf*SLOT + j*1024}", f"buffer_load_dwordx4 v{VW}, s[20:23], s4 offen{P(opt.wp[0])} lds ; @s{c}"]
            Gs.append("\n".join(g))
        for i in range(3):
            g = ["s_lshl_b32 s5, s74, 7", "s_add_u32 s5, s5, s53"] if i == 0 else [f"s_add_u32 s5, s5, {8*1152}"]
            g += [f"s_add_u32 m0, s55, {XS + buf*12288 + i*1024}", f"buffer_load_dwordx4 v{VXB if i % 2 else VXA}, s[16:19], s5 offen{P(opt.wp[1])} lds ; @s{c}"]
            if i == 2: g += ["s_add_u32 s74, s74, 1", "s_cmp_eq_u32 s74, 9", "s_cselect_b32 s74, 0, s74"]
            Gs.append("\n".join(g))
        return Gs
    stamp(a, 'ka', opt)
    wtouch = [x.strip() for x in """s_lshr_b32 s3, s2, 3
            s_lshl_b32 s3, s3, 2
            s_add_u32 s3, s3, s28
            s_mul_i32 s3, s3, 9216
            s_mul_i32 s47, s30, 1179648
            v_lshlrev_b32 v24, 7, v1
            v_add_u32 v24, s3, v24
            v_add_u32 v25, 8192, v24
            v_cmp_gt_u32 s[70:71], 8, v1
            v_cndmask_b32 v25, -1, v25, s[70:71]""".split("\n")]
    wtouch = ["\n".join(wtouch + ["buffer_load_dword v23, v24, s[60:63], s47 offen ; @junk"]), "s_mul_i32 s47, s30, 1179648\nbuffer_load_dword v23, v25, s[60:63], s47 offen ; @junk"]
    if opt.wot is not None: srd(a, 60, "s76", "s77", 4718592)
    if opt.wot == 'a': emit(a, wtouch)
    emit(a, stage(0))
    if opt.wot == 'b': emit(a, wtouch)
    stamp(a, 'i0', opt)
    srd(a, 56, "s80", "s81", 256)
    a.e("""s_lshl_b32 s3, s2, 8
           v_add_u32 v106, s3, v0
           v_min_u32 v106, 1, v106
           v_lshlrev_b32 v106, 12, v106
           v_mov_b32 v107, s75
           buffer_store_dword v107, v106, s[56:59], 0 offen sc1""")
    emit(a, stage(1))
    if opt.wot == 'c': emit(a, wtouch)
    for d in (8, 12): a.e(f"s_mov_b32 s{d+2}, {1 << 26}\ns_mov_b32 s{d+3}, 0x20000")
    srd(a, 24, "s72", "s73", WS_BYTES)
    srd(a, 60, "s76", "s77", 4718592)
    a.e(f"""v_lshrrev_b32 v{H}, 5, v1
            v_and_b32 v{L31}, 31, v1
            v_lshrrev_b32 v{R}, 2, v{L15}
            v_and_b32 v{C4}, 3, v1
            v_lshl_add_u32 v59, v{H}, 3, v{R}
            v_lshlrev_b32 v59, 7, v59
            v_lshrrev_b32 v60, 1, v{R}
            v_lshl_add_u32 v59, v60, 6, v59
            v_lshl_add_u32 v59, v{G1}, 5, v59
            v_lshl_add_u32 v59, v{C4}, 3, v59
            v_add_u32 v{AW}, s37, v59
            v_xor_b32 v{AW+1}, 64, v{AW}
            v_bfe_u32 v60, v1, 1, 3
            v_xor_b32 v60, v60, v{H}
            v_lshlrev_b32 v60, 4, v60
            v_lshl_add_u32 v60, v{L31}, 7, v60
            v_add_u32 v{AX}, {XS}, v60""")
    for s in range(1, 4): a.e(f"v_xor_b32 v{AX+s}, {32*s}, v{AX}")
    a.e(f"""s_lshl_b32 s3, s28, 2
            s_add_u32 s3, s3, {TOP + 3072}
            v_mov_b32 v{VFO}, s3
            v_xor_b32 v{VFP}, 4, v{VFO}
            v_mov_b32 v61, 0
            ds_write_b32 v{VFO}, v61
            ds_write_b32 v{VFO}, v61 offset:16
            s_mov_b32 s44, 0
            s_mov_b32 s45, 0""")
    def frag_reads(c, s, F):
        buf = c % 3
        L = [f"ds_read_b64_tr_b16 {vr(F + db*4 + k*2, 2)}, v{AW+db} offset:{buf*SLOT + (16*s + 4*k) * 128}" for db in range(2) for k in range(2)]
        return L + [f"ds_read_b128 {vr(F + 8 + qb*4, 4)}, v{AX+s} offset:{buf*12288 + qb*4096}" for qb in range(3)]
    setup = f"""v_lshlrev_b32 v26, 8, v{G}
            v_xor_b32 v27, v{L15}, v{G}
            v_lshl_add_u32 v{VOFFK}, v27, 4, v26
            v_xor_b32 v{VOFFK+1}, 64, v{VOFFK}
            v_xor_b32 v{VOFFK+2}, 128, v{VOFFK}
            v_xor_b32 v{VOFFK+3}, 192, v{VOFFK}
            v_lshlrev_b32 v27, 2, v{G}
            v_xor_b32 v27, v{L15}, v27
            v_lshl_add_u32 v{VOFFV}, v27, 4, v26
            s_lshl_b32 s3, s6, 13
            s_add_u32 s33, s33, s7
            s_lshl_b32 s34, s31, 5
            s_add_u32 s34, s34, s33
            s_lshl_b32 s34, s34, 18
            s_add_u32 s34, s34, s3"""
    if opt.rot:
        setup += """
            s_lshl_b32 s3, s2, 2
            s_add_u32 s3, s3, s7
            s_mul_i32 s3, s3, 0x1e3779b1
            s_lshr_b32 s47, s3, 15
            s_xor_b32 s3, s3, s47
            s_mul_i32 s3, s3, 0x2c1b3c6d
            s_lshr_b32 s3, s3, 20
            s_and_b32 s3, s3, 15
            s_lshl_b32 s35, s3, 14"""
    else: setup += "\ns_mov_b32 s35, 0"
    setup += f"""
            s_mov_b32 s36, s35
            v_xor_b32 v27, v{H}, v{L15}
            v_lshlrev_b32 v27, 4, v27
            v_lshl_add_u32 v27, v{L31}, 8, v27
            v_add_u32 v{VKA}, s37, v27"""
    for s in range(1, 8): setup += f"\nv_xor_b32 v{VKA+s}, {32*s}, v{VKA}"
    setup += f"""
            v_lshl_add_u32 v28, v{H}, 2, v{R}
            v_lshlrev_b32 v28, 8, v28
            v_lshl_add_u32 v28, v{R}, 6, v28
            v_lshl_add_u32 v28, v{G1}, 5, v28
            v_lshl_add_u32 v28, v{C4}, 3, v28
            s_lshl_b32 s47, s6, 7
            v_xor_b32 v28, s47, v28
            v_add_u32 v{VVA}, s37, v28"""
    for db in range(1, 4): setup += f"\nv_xor_b32 v{VVA+db}, {64*db}, v{VVA}"
    setup += f"\ns_mov_b32 s42, {f2u(CSC):#x}\ns_mov_b32 s43, {f2u(THR_LOG2):#x}"
    for qb in range(3): setup += f"\nv_mov_b32 v{LSUM+qb}, 0"
    setup = [x.strip() for x in setup.split("\n")]
    VO, VL16, AD, VOL = 93, 102, 103, 107
    def vo_calc(dst, rev):
        L = []
        for i in range(9):
            L += [f"v_add_u32 v84, {64*i}, v1", "v_mul_u32_u24 v85, 58255, v84", "v_lshrrev_b32 v85, 20, v85", "v_mul_u32_u24 v86, 18, v85",
                  "v_sub_u32 v86, v84, v86", "v_xor_b32 v87, 1, v86", "v_sub_u32 v87, 17, v87"]
            if rev == "vcc": L += ["v_cndmask_b32 v87, v86, v87, vcc"]
            L += ["v_mul_u32_u24 v85, 1152, v85", f"v_lshl_add_u32 v{dst+i}, v87, 4, v85"]
        return L
    setup2 = ["s_cmp_eq_u32 s7, 1\ns_cselect_b64 vcc, -1, 0"] + vo_calc(VO, "vcc") + [x.strip() for x in f"""v_lshlrev_b32 v{VL16}, 4, v1
            v_lshlrev_b32 v84, 4, v{H}
            v_lshl_add_u32 v84, v{G1}, 2, v84
            v_add_u32 v84, v84, v{R}
            v_mul_u32_u24 v84, 288, v84
            v_lshl_add_u32 v84, v{C4}, 3, v84
            s_mul_i32 s3, s7, 18432
            v_add_u32 v{AD+1}, s3, v84
            v_add_u32 v{AD}, {SB[0]}, v{AD+1}
            v_lshlrev_b32 v{VOL}, 10, v{G1}
            v_lshl_add_u32 v{VOL}, v{H}, 8, v{VOL}
            v_lshl_add_u32 v{VOL}, v{L15}, 4, v{VOL}
            v_mov_b32 v108, 0
            s_mul_i32 s67, s30, 1179648
            s_mul_i32 s3, s32, 288
            s_add_u32 s64, s67, s3              ; wo: rows of the octet, columns 144p..
            s_lshl_b32 s39, s29, 3
            s_add_u32 s39, s39, s31""".split("\n")]
    setW = ["s_lshl_b32 s66, s32, 1", "s_mul_i32 s65, s28, 9216", f"s_mul_i32 s68, s28, {32*1152}", "s_add_u32 s68, s68, s64"]
    def psync(pre_wait=True):
        psync.n += 1; n = psync.n
        a.e(f"""s_add_u32 s44, s44, 1
                v_mov_b32 v{VD}, s44
                ds_write_b32 v{VFO}, v{VD}
                s_mov_b32 s47, 0x400000""")
        a.label(f"L_ps{n}")
        a.e(f"""ds_read_b32 v{VD}, v{VFP}
                s_sub_u32 s47, s47, 1
                s_waitcnt lgkmcnt(0)
                v_readfirstlane_b32 s3, v{VD}
                s_cmp_eq_u32 s47, 0
                s_cselect_b32 s3, s44, s3
                s_cmp_lt_u32 s3, s44
                s_cbranch_scc1 L_ps{n}""")
    psync.n = 0
    def other_pair(name, word, val, T=84):
        a.e(f"v_mov_b32 v{T+2}, {TOP + 3072 + word}\ns_mov_b32 s47, 0x400000")
        a.label(name)
        a.e(f"""s_sleep 2
                ds_read_b64 v[{T}:{T+1}], v{T+2}
                s_sub_u32 s47, s47, 1
                s_waitcnt lgkmcnt(0)
                v_min_u32 v{T}, v{T}, v{T+1}
                v_readfirstlane_b32 s3, v{T}
                s_cmp_eq_u32 s47, 0
                s_cselect_b32 s3, {val}, s3
                s_cmp_lt_u32 s3, {val}
                s_cbranch_scc1 {name}""")

    ACC = 112
    def qwrite(blocks, dreg, area, extra=()):
        a.e(f"""v_xor_b32 v55, {dreg}, v{L15}
                v_lshlrev_b32 v55, 4, v55
                v_lshl_add_u32 v55, v{L31}, 8, v55
                v_lshl_add_u32 v55, v{H}, 3, v55
                v_add_u32 v55, {area}, v55
                v_mov_b32 v62, s42""")
        for db in range(blocks):
            for i in range(4):
                a.e(f"v_xor_b32 v54, {(4*db + i)*16}, v55")
                if extra: emit(a, [extra[4*db + i]])
                for qb in range(3):
                    r = ACC + (db*3 + qb)*16 + 4*i; tq = 56 + 2 * qb
                    a.e(f"""v_pk_mul_f32 v[{r}:{r+1}], v[{r}:{r+1}], v[62:63] op_sel_hi:[1,0]
                            v_pk_mul_f32 v[{r+2}:{r+3}], v[{r+2}:{r+3}], v[62:63] op_sel_hi:[1,0]
                            v_cvt_pk_bf16_f32 v{tq}, v{r}, v{r+1}
                            v_cvt_pk_bf16_f32 v{tq+1}, v{r+2}, v{r+3}
                            ds_write_b64 v54, v[{tq}:{tq+1}] offset:{qb*8192}""")
    def qread(area):
        a.e(f"s_sub_u32 s3, {area}, s37")
        for s in range(8): a.e(f"v_add_u32 v{32+s}, s3, v{VKA+s}")
        for qb in range(3):
            for s in range(8): a.e(f"ds_read_b128 {vr(Qreg(qb,s),4)}, v{32+s} offset:{qb*8192}")
    FA, FB = 208, 228
    a.wait(vmtags=["s0"], lg0=True); a.e("s_barrier")
    stamp(a, "q0", opt)
    emit(a, frag_reads(0, 0, FA))
    sl = [[] for _ in range(216 + 24)]
    spread(sl, stage(2), 0, 18)
    spread(sl, setup, 0, 18)
    spread(sl, setup2 + setW, 18, 150)
    for c in range(9):
        for s in range(4):
            F, nF = (FA, FB) if s % 2 == 0 else (FB, FA)
            k0 = (c*4 + s) * 6
            if s == 3:
                a.wait(vmtags=[f"s{c+1}"], lg0=True); a.e("s_barrier")
                stamp(a, f"c{c}", opt)
                spread(sl, (stage(c + 3) if c + 3 <= 8 else dma_unit(c - 6, opt) if c < 8 else []) + (wtouch if opt.wot == c else []), k0, k0 + 24)
                if c < 8: emit(a, frag_reads(c + 1, 0, nF))
            else: emit(a, frag_reads(c, s + 1, nF))
            i = 0
            for db in range(2):
                for qb in range(3):
                    d = vr(ACC + (db*3 + qb)*16, 16)
                    emit(a, [f"v_mfma_f32_32x32x16_bf16 {d}, {vr(F+db*4,4)}, {vr(F+8+qb*4,4)}, " + ("0" if (c == 0 and s == 0) else d)] + sl[k0 + i]); i += 1
    assert not any(sl[216:])
    a.e(f"s_lshl_b32 s3, s6, 3\ns_mul_i32 s4, s7, 24576\ns_add_u32 s4, s4, {XS}")
    qwrite(2, "s3", "s4", dma_unit(2, opt) if opt.k1early else ())
    a.e("s_waitcnt lgkmcnt(0)\ns_barrier")
    qread("s4")
    stamp(a, "qx", opt)
    if not opt.k1early: emit(a, dma_unit(2, opt))
    a.wait(vmtags=["u0"], lg0=True)
    emit(a, kreads(0))
    stamp(a, "k0", opt)
    a.e(f"""v_mov_b32 v26, {TOP + 3072 + 16}
            s_cmp_eq_u32 s7, 1
            s_cselect_b32 s50, {round(opt.thr1 * 16)}, 0
            s_cselect_b32 s38, {round((opt.thr0 + opt.thr1) * 16)}, -1""")
    if not opt.hold: a.e("s_add_u32 s50, s7, 1")
    if opt.acct: a.e(f"s_mov_b64 s[98:99], s[{STB}:{STB+1}]\ns_mov_b64 s[100:101], s[{STB}:{STB+1}]\ns_mov_b64 s[92:93], s[{STB}:{STB+1}]")
    def wpieces(tag, head, rows, lds, voreg):
        Gs = []
        for i in range(9):
            g = [f"s_add_u32 s4, s66, {head}", "s_and_b32 s4, s4, 7", f"s_mul_i32 s4, s4, {128*1152}", "s_add_u32 s4, s4, s68",
                 f"s_add_u32 s4, s4, {rows*1152}"] if i == 0 else []
            g += [f"s_add_u32 m0, s65, {lds + i*1024}", f"buffer_load_dwordx4 v{voreg+i}, s[60:63], s4 offen{opt.wopol} lds ; @{tag}"]
            Gs.append("\n".join(g))
        return Gs
    HEAD = (0, 2, 4, 6, 1, 3, 5, 7)
    NX = opt.nx
    BUFOF = [st % 2 for st in range(NX + 2)] + [2, 3]
    while len(BUFOF) < 8: BUFOF.append(BUFOF[len(BUFOF) - 4])
    wS = lambda st: wpieces(f"w{st}", HEAD[st], 0, SB[BUFOF[st]], VO)
    wX = lambda st, VOR: wpieces(f"w{st}", HEAD[st], 0, SB[BUFOF[st]], VO) + wpieces(f"w{st}", HEAD[st], 64, SB[BUFOF[st]] + 18432, VOR)
    carry = tile_body(a, opt, 0, [])
    carry = tile_body(a, opt, 1, carry)
    if opt.unroll:
        for t in range(2, 14):
            stamp(a, f'r{t}', opt); carry = tile_body(a, opt, t, carry)
    else:
        stamp(a, "l0", opt)
        a.e("s_mov_b32 s46, 4")
        a.raw(".p2align 6"); a.label("L_tile")
        keep = list(a.vm)
        if not opt.hold: a.e(f"s_cmp_eq_u32 s7, 0\ns_cselect_b32 s3, {opt.last[0]}, {opt.last[1]}\ns_cmp_gt_u32 s46, 1\ns_cselect_b32 s50, s50, s3")
        if opt.late:
            a.e(f"""s_lshl_b32 s3, s7, 3
                    s_add_u32 s3, s3, s46
                    s_cmp_lg_u32 s3, {opt.late}
                    s_cbranch_scc1 L_nolate
                    s_lshr_b32 s3, s2, 3
                    s_lshl_b32 s3, s3, 1
                    s_add_u32 s3, s3, s6
                    s_mul_i32 s3, s3, 18432
                    v_lshlrev_b32 v84, 7, v1
                    v_add_u32 v84, s3, v84
                    v_add_u32 v85, 8192, v84
                    v_add_u32 v86, 16384, v84
                    v_cmp_gt_u32 vcc, 16, v1
                    v_cndmask_b32 v86, -1, v86, vcc""")
            emit(a, [f"buffer_load_dword v87, v{r}, s[60:63], s67 offen{opt.tpol} ; @junk" for r in (84, 85, 86)])
            a.label("L_nolate")
        a.vm = keep
        for t in (2, 3, 4): carry = tile_body(a, opt, t, carry)
        a.e("s_sub_u32 s46, s46, 1\ns_cmp_lg_u32 s46, 0\ns_cbranch_scc1 L_tile")
        for o in a.vm:
            if o.tag and o.tag[0] == "u": o.tag = f"u{int(o.tag[1:]) + 18}"
    stamp(a, "l1", opt)
    carry = tile_body(a, opt, 14, carry)
    xo = lambda k: (k // 8) * SLOT + (k % 8) * 1024
    def send(qb):
        return [f"ds_write_b128 v28, {ar(Oacc(2+i,qb) + 4*g, 4)} offset:{xo((i*3 + qb)*4 + g)}" for i in range(2) for g in range(4)]
    accr = lambda qb: [f"v_accvgpr_read_b32 v{160 + (i*3+qb)*16 + r}, a{Oacc(i,qb) + r}" for i in range(2) for r in range(16)]
    pre = ["buffer_load_dword v106, v108, s[56:59], 0 offen sc1 ; @tag",
           f"v_add_u32 v28, s37, v{VL16}", "s_lshl_b32 s3, s6, 14\ns_sub_u32 s3, 8192, s3", "v_add_u32 v29, s3, v28",
           f"s_mul_i32 s3, s28, 768\ns_add_u32 s3, s3, {TOP}", f"v_lshlrev_b32 v30, 3, v{L31}", "v_add_u32 v30, s3, v30",
           f"s_xor_b32 s3, s28, 1\ns_mul_i32 s3, s3, 768\ns_add_u32 s3, s3, {TOP}", f"v_lshlrev_b32 v31, 3, v{L31}", "v_add_u32 v31, s3, v31"]
    team = "v_and_b32 v13, 3, v1\nv_lshlrev_b32 v13, 10, v13\nv_and_b32 v14, 4, v1\nv_add_u32 v13, v13, v14"
    askX = [f"s_andn2_b32 s71, s2, 24\ns_lshl_b32 s71, s71, 7\ns_add_u32 s69, s71, {WS_F}"] + team.split("\n") + ["buffer_load_dword v12, v13, s[24:27], s69 offen sc1"]
    carry = tile_body(a, opt, 15, carry, extra=[(pre, 8, 16), (askX, 28, 34), (send(0), 34, 48)] + ([(accr(0), 33, 44)] if opt.accearly else []))
    sl = [[] for _ in range(8)]
    carry = [x for y in carry for x in y]
    cut = max([i + 1 for i, x in enumerate(carry) if x.startswith(f"v_cvt_pk_bf16_f32 v{Sreg(2,3)},")] + [len(carry) - 16, 0])
    emit(a, carry[:cut])
    spread(sl, carry[cut:], 0, 3)
    st = []
    for qb in range(3): st += [f"v_mov_b32 v{3+2*qb}, v{LSUM+qb}", f"v_mov_b32 v{2+2*qb}, v{NM+16*qb}"]
    for qb in range(3): st += [f"v_permlane32_swap_b32 v{LSUM+qb}, v{3+2*qb}"]
    for qb in range(3): st += [f"v_add_f32 v{3+2*qb}, v{LSUM+qb}, v{3+2*qb}", f"ds_write_b64 v30, v[{2+2*qb}:{3+2*qb}] offset:{qb*256}"]
    spread(sl, st + send(1), 3, 8)
    for m, f in zip(pv(2, False), sl): emit(a, [m] + f)
    stamp(a, "t15", opt)
    emit(a, accr(1)[:12] + send(2))
    emit(a, ([] if opt.accearly else accr(0)) + accr(1)[12:] + accr(2))
    a.e("s_mov_b32 s4, 0x100000")
    a.label("L_tag")
    a.e("""s_waitcnt vmcnt(0)
           v_readfirstlane_b32 s75, v106
           s_cmp_lg_u32 s75, 0
           s_cbranch_scc1 L_tag_ok
           buffer_load_dword v106, v108, s[56:59], 0 offen sc1 ; @junk
           s_sub_u32 s4, s4, 1
           s_cmp_lg_u32 s4, 0
           s_cbranch_scc1 L_tag""")
    a.label("L_tag_ok"); a.vm = []
    a.e(f"""s_lshl_b32 s3, s39, 5
            s_add_u32 s3, s3, s33
            s_mul_i32 s52, s3, 24576
            s_mul_i32 s3, s6, 12288
            s_add_u32 s52, s52, s3
            s_waitcnt lgkmcnt(0)""")
    ACC, WF, OF = 112, 16, 0
    def ask(base, lanes):
        a.e(f"s_add_u32 s69, {base}, {WS_F}\n{lanes}\nbuffer_load_dword v12, v13, s[24:27], s69 offen sc1")
    def check(tag):
        a.e("s_mov_b32 s4, 0x100000")
        a.label(f"L_poll{tag}")
        a.e(f"""s_waitcnt vmcnt(0)
                v_cmp_ne_u32 vcc, s75, v12
                s_cbranch_vccz L_got{tag}
                s_sleep 1
                buffer_load_dword v12, v13, s[24:27], s69 offen sc1
                s_sub_u32 s4, s4, 1
                s_cmp_lg_u32 s4, 0
                s_cbranch_scc1 L_poll{tag}""")
        a.label(f"L_got{tag}")
        a.e("s_waitcnt vmcnt(0)")
    def wreads(buf, rows, F):
        reg, boff = (AD, AD + 1, 220, 221)[buf], 0
        return [f"ds_read_b64_tr_b16 {vr(F + nb*4 + 2*k, 2)}, v{reg} offset:{boff + (rows + 8*k) * 288 + 32*nb}" for nb in range(9) for k in range(2)]
    def oload(tag, head, db0, nks, dst):
        Gs = []
        for kl in range(nks):
            for j in range(3):
                g = [f"s_add_u32 s47, s66, {head}", "s_and_b32 s47, s47, 7", "s_mul_i32 s47, s47, 24576", "s_add_u32 s47, s47, s37"] + \
                    ([f"s_add_u32 s47, s47, {db0}"] if db0 else []) if kl + j == 0 else ["s_add_u32 s47, s47, 6144"] if j == 0 else []
                Gs.append("\n".join(g + [f"buffer_load_dwordx4 {ar(dst + (kl*3+j)*4, 4)}, v{VL16}, s[24:27], s47 offen offset:{j*1024} sc1 ; @{tag}"]))
        return Gs
    def kstep(F, O, zero, reads, jobs):
        ms = [f"v_mfma_f32_16x16x32_bf16 {vr(ACC + (nb*3+j)*4, 4)}, {vr(F+nb*4,4)}, {ar(O+j*4,4)}, " + ("0" if zero else vr(ACC + (nb*3+j)*4, 4))
              for nb in range(9) for j in range(3)]
        sl = [[] for _ in range(27)]
        spread(sl, reads, 0, 20); spread(sl, jobs, 0, 27)
        a.e("s_waitcnt lgkmcnt(0)")
        for m, f in zip(ms, sl): emit(a, [m] + f)
        return ms
    team = "v_and_b32 v13, 3, v1\nv_lshlrev_b32 v13, 10, v13\nv_and_b32 v14, 4, v1\nv_add_u32 v13, v13, v14"
    a.e(f"""s_lshl_b32 s3, s2, 7
            s_lshl_b32 s4, s28, 2
            s_add_u32 s70, s3, s4
            s_add_u32 s70, s70, {WS_F}
            s_lshl_b32 s3, s39, 2
            s_add_u32 s3, s3, s30
            s_mul_i32 s37, s3, {8*24576}
            s_mul_i32 s4, s6, 3072
            s_add_u32 s37, s37, s4
            s_mul_i32 s4, s7, 12288
            s_add_u32 s37, s37, s4
            s_mov_b32 s45, 0
            s_cmp_eq_u32 s7, 0
            s_cbranch_scc1 L_noearly
            v_cmp_ne_u32 vcc, s75, v12
            s_cbranch_vccnz L_noearly
            s_mov_b32 s45, 1""")
    for st in range(NX, 4): emit(a, oload(f"o{st}", HEAD[st], 0, 2, 24*st))
    a.label("L_noearly"); a.vm = []
    a.e(f"v_sub_u32 v27, v29, v{VL16}\nv_add_u32 v27, v27, v{VOL}")
    psync()
    stamp(a, "c_bar", opt)
    for qb in range(3): a.e(f"ds_read_b64 v[{8+2*qb}:{9+2*qb}], v31 offset:{qb*256}")
    RC = (32, 48, 64, 112, 128, 144)
    def recv(blk):
        for g in range(4): a.e(f"ds_read_b128 {vr(RC[blk]+4*g,4)}, v29 offset:{xo(blk*4 + g)}")
    recv(0); recv(1)
    SC = 16
    for qb in range(3):
        pn, pl, on, ol = 8 + 2*qb, 9 + 2*qb, 2 + 2*qb, 3 + 2*qb
        a.auto(f"v_min_f32 v22, v{on}, v{pn}")
        a.e(f"""v_sub_f32 v23, v22, v{on}
                v_sub_f32 v24, v22, v{pn}
                v_exp_f32 v23, v23
                v_exp_f32 v24, v24
                v_mul_f32 v{ol}, v{ol}, v23
                v_fmac_f32 v{ol}, v{pl}, v24
                v_rcp_f32 v{ol}, v{ol}
                v_mul_f32 v{SC+2*qb}, v23, v{ol}
                v_mul_f32 v{SC+2*qb+1}, v24, v{ol}""")
    recv(2); recv(3); recv(4); recv(5)
    for blk in range(6):
        i, qb = divmod(blk, 3)
        K = 160 + blk*16; Rr = RC[blk]
        a.wait(lgregs=regs_of(vr(Rr, 16)))
        for r in range(0, 16, 2):
            a.e(f"v_pk_mul_f32 v[{Rr+r}:{Rr+r+1}], v[{Rr+r}:{Rr+r+1}], v[{SC+2*qb}:{SC+2*qb+1}] op_sel:[0,1] op_sel_hi:[1,1]")
        for r in range(0, 16, 2):
            a.e(f"v_pk_fma_f32 v[{K+r}:{K+r+1}], v[{K+r}:{K+r+1}], v[{SC+2*qb}:{SC+2*qb+1}], v[{Rr+r}:{Rr+r+1}] op_sel_hi:[1,0,1]")
        for j in range(8):
            a.e(f"v_cvt_pk_bf16_f32 v{K+8*(j//4)+j%4}, v{K+2*j}, v{K+2*j+1}")
        a.e(f"s_add_u32 s47, s52, {WS_O + (i*6 + 2*qb)*1024}")
        for s in range(2):
            a.e(f"buffer_store_dwordx4 {vr(K+8*s,4)}, v{VOL}, s[24:27], s47 offen offset:{512*s} sc1")
            a.e(f"ds_write_b128 v27, {vr(K+8*s,4)} offset:{xo(i*6 + 2*qb) + 512*s}")
    stamp(a, "comb", opt)
    a.e("v_mov_b32 v14, s75\ns_cmp_eq_u32 s7, 1\ns_cbranch_scc1 L_tailY")
    stT = save(a)
    other_pair("L_yq", 24, 1 + opt.xgate)
    emit(a, wX(0, VO))
    a.e(f"""s_waitcnt vmcnt(18)
            buffer_store_dword v14, v108, s[24:27], s70 offen sc1
            v_add_u32 v3, 8192, v{VL16}
            s_waitcnt lgkmcnt(0)""")
    psync()
    a.e("s_cmp_eq_u32 s6, 1\ns_cbranch_scc1 L_x1")
    sv = save(a)
    for qh in range(2):
        if qh: a.label("L_x1"); load(a, sv)
        for db in range(4):
            for j in range(3): a.e(f"ds_read_b128 {ar(192 + (db*3+j)*4, 4)}, v{3 if db < 2 else VL16} offset:{xo((db % 2)*6 + 3*qh + j)}")
        if qh == 0: a.e("s_branch L_x2")
    a.label("L_x2")
    VOR = 224
    emit(a, vo_calc(VOR, "rev"))
    a.wait(vmtags=["w0"], lg0=True); psync()
    emit(a, wreads(0, 0, WF))
    RS = (192, 0, 48 if NX == 4 else 192, 192)
    wN = lambda st: wX(st, VO if st < NX else VOR)
    xl = lambda st: oload(f"x{st}", HEAD[st], 0, 4, RS[st])
    ask("s71", team)
    for st in range(NX):
        b = BUFOF[st]
        w = wN(1) if st == 0 else []
        if st >= 1: a.wait(vmtags=[f"x{st}"])
        kstep(WF, RS[st], st == 0, wreads(b, 32, WF + 36), w[:9])
        kstep(WF + 36, RS[st] + 12, False, wreads(b, 64, WF), w[9:])
        j = []
        if st == 0:
            check("A"); stamp(a, "chkA", opt)
            for k in range(1, NX):
                if RS[k] != 192: j += xl(k)
        kstep(WF, RS[st] + 24, False, wreads(b, 96, WF + 36), j)
        a.wait(vmtags=[f"w{st+1}"], lg0=True); psync()
        kstep(WF + 36, RS[st] + 36, False, wreads(BUFOF[st + 1], 0, WF) if st + 1 < NX else [], wN(st + 2))
        if st == 0:
            for k in range(1, NX):
                if RS[k] == 192: emit(a, xl(k))
    for st in range(NX, 4): emit(a, oload(f"o{st}", HEAD[st], 0, 2, 24*st))
    a.e("s_waitcnt vmcnt(0)\ns_branch L_join")
    a.label("L_tailY"); load(a, stT)
    a.e("s_cmp_eq_u32 s45, 1\ns_cbranch_scc1 L_hadearly")
    sv = save(a)
    ask("s71", team); check("Y")
    a.vm = list(sv[2])
    for st in range(NX, 4): emit(a, oload(f"o{st}", HEAD[st], 0, 2, 24*st))
    a.label("L_hadearly")
    a.e("s_waitcnt lgkmcnt(0)")
    a.label("L_join"); a.lg = []
    a.e(f"""s_add_u32 s71, s71, 8
            v_add_u32 v220, {SB[2] - SB[1]}, v{AD+1}
            v_add_u32 v221, {SB[3] - SB[1]}, v{AD+1}
            s_mul_i32 s3, s7, -8192
            s_add_u32 s3, s3, {YB + 8192}
            v_add_u32 v2, s3, v{VL16}
            v_mov_b32 v15, s75
            s_barrier""")
    stamp(a, "join", opt)
    emit(a, wreads(BUFOF[NX], 0, WF))
    a.e("s_cmp_eq_u32 s6, 1\ns_cbranch_scc1 L_own1")
    sv = save(a)
    for qh in range(2):
        if qh: a.label("L_own1"); load(a, sv)
        for kl in range(2):
            for j in range(3): a.e(f"ds_read_b128 {ar(96 + (kl*3+j)*4, 4)}, v2 offset:{xo(kl*6 + 3*qh + j)}")
        if qh == 0: a.e("s_branch L_own2")
    a.label("L_own2")
    a.wait(vmtags=[f"o{NX}"])
    a.e("s_cmp_eq_u32 s7, 1\ns_cbranch_scc1 L_fy")
    sv = save(a)
    kstep(WF, 24*NX, False, wreads(BUFOF[NX], 32, WF + 36), wS(NX + 2))
    a.e("s_branch L_fx")
    a.label("L_fy"); load(a, sv)
    kstep(WF, 24*NX, True, wreads(BUFOF[NX], 32, WF + 36), wS(NX + 2))
    a.e("s_waitcnt vmcnt(9)\nbuffer_store_dword v15, v108, s[24:27], s70 offen sc1 ; @junk")
    a.label("L_fx"); a.vm = [o for o in a.vm if o.tag == f"w{NX+2}"]
    A = max(NX, min(opt.askat, 4))
    oy = lambda k: oload(f"o{k}", HEAD[k], 0, 2, 24*k)
    plan = {}
    for k in range(NX + 4, 8): plan.setdefault((k - 4, 1) if k - 4 > NX else (NX + 1, 0), []).append(wS(k))
    plan.setdefault((NX, 1), []).append(wS(NX + 3))
    if A <= 3:
        for i, k in enumerate((5, 6, 7)): plan.setdefault((A + (i + 1) // 2, (i + 1) % 2), []).insert(0, oy(k))
    job = lambda st, kl: [x for y in plan.get((st, kl), []) for x in y]
    for st in range(NX, 8):
        stamp(a, f"s{st}", opt)
        if st > NX:
            if st == A: ask("s71", team)
            if st >= 5: a.wait(vmtags=[f"o{st}"])
            kstep(WF, 24*st, False, wreads(BUFOF[st], 32, WF + 36), job(st, 0))
        elif st == A: ask("s71", team)
        if st == A and A <= 3: check("B"); stamp(a, "chk1", opt)
        if st < 7:
            a.wait(vmtags=[f"w{st+1}"], lg0=True); a.e("s_barrier")
            kstep(WF + 36, 24*st + 12, False, wreads(BUFOF[st + 1], 0, WF), job(st, 1))
        if st == A and A == 4:
            check("B"); stamp(a, "chk1", opt); emit(a, oy(5) + oy(6) + oy(7))
    a.e(f"""s_lshl_b32 s3, s28, 14
            v_add_u32 v13, s3, v{VL16}
            v_xor_b32 v14, 32768, v13
            s_lshl_b32 s52, s39, 2
            s_add_u32 s52, s52, s32
            s_lshl_b32 s53, s52, 2
            s_add_u32 s53, s53, s30
            s_mul_i32 s53, s53, 36864
            s_mul_i32 s3, s28, 9216
            s_add_u32 s53, s53, s3
            s_add_u32 s47, s53, {WS_P}
            s_waitcnt lgkmcnt(0)
            s_barrier""")
    F, O = WF + 36, 180
    T = lambda nb, j: ACC + (nb*3+j)*4
    ms = [f"v_mfma_f32_16x16x32_bf16 {vr(T(nb,j), 4)}, {vr(F+nb*4,4)}, {ar(O+j*4,4)}, {vr(T(nb,j), 4)}" for nb in (8, 7, 6, 5, 4, 0, 1, 2, 3) for j in range(3)]
    snd = [f"ds_write_b128 v13, {vr(T(nb,j),4)} offset:{((8-nb)*3+j)*1024}" for nb in range(8, 3, -1) for j in range(3)]
    emit(a, ms[:6])
    for k in range(15): emit(a, [ms[6 + k], snd[k]])
    emit(a, ms[21:])
    stamp(a, "gend", opt)
    a.e("s_waitcnt lgkmcnt(0)\ns_barrier")
    order = [(k, j) for k in range(3) for j in range(3)]
    for k, j in order:
        for nb in range(2*k, min(2*k + 2, 5)): a.e(f"ds_read_b128 {vr(WF + (nb*3+j)*4, 4)}, v14 offset:{(nb*3+j)*1024}")
    for k, j in order:
        r = T(2*k, j)
        for h, nb in enumerate(range(2*k, min(2*k + 2, 5))):
            t, q = T(nb, j), WF + (nb*3+j)*4
            a.wait(lgregs=regs_of(vr(q, 4)))
            a.e(f"v_pk_add_f32 v[{t}:{t+1}], v[{t}:{t+1}], v[{q}:{q+1}]\nv_pk_add_f32 v[{t+2}:{t+3}], v[{t+2}:{t+3}], v[{q+2}:{q+3}]")
            a.e(f"v_cvt_pk_bf16_f32 v{r+2*h}, v{t}, v{t+1}\nv_cvt_pk_bf16_f32 v{r+2*h+1}, v{t+2}, v{t+3}")
        if k < 2: a.e(f"buffer_store_dwordx4 {vr(r,4)}, v{VL16}, s[24:27], s47 offen offset:{j*1024} sc1")
        else: a.e(f"buffer_store_dwordx2 {vr(r,2)}, v{VL16}, s[24:27], s47 offen offset:{j*1024} sc1")
        if j == 2 and k < 2: a.e("s_add_u32 s47, s47, 3072")
    a.e(f"""s_add_u32 s70, s70, 32768
            s_andn2_b32 s71, s2, 3
            s_lshl_b32 s71, s71, 7
            s_add_u32 s71, s71, 32768
            v_and_b32 v10, 15, v1
            v_mul_u32_u24 v10, 2304, v10
            v_lshrrev_b32 v11, 4, v1
            v_lshl_add_u32 v10, v11, 3, v10
            s_mul_i32 s52, s52, {4*36864}
            s_add_u32 s52, s52, {WS_P}
            s_mul_i32 s53, s31, {96*2304}
            s_mul_i32 s3, s29, 1152
            s_add_u32 s53, s53, s3
            s_mul_i32 s3, s32, 288
            s_add_u32 s53, s53, s3
            s_lshl_b32 s54, s30, 2
            s_add_u32 s54, s54, s28""")
    srd(a, 8, "s78", "s79", 1769472)
    def decode(i):
        A, B, C = 56 + 4*i, 57 + 4*i, 58 + 4*i
        a.e(f"""s_add_u32 s3, s54, {16*i}
                s_mul_i32 s4, s3, 43
                s_lshr_b32 s4, s4, 8
                s_mul_i32 s5, s4, 6
                s_sub_u32 s3, s3, s5            ; q16
                s_mul_i32 s{B}, s3, {16*2304}
                s_add_u32 s{B}, s{B}, s53
                s_cmp_ge_u32 s3, 3
                s_cselect_b32 s5, {9216 - 3072}, 0
                s_lshl_b32 s3, s3, 10
                s_add_u32 s{A}, s3, s5          ; qh * 9216 + j * 1024
                s_add_u32 s{A}, s{A}, s52
                s_and_b32 s3, s4, 1
                s_cmp_eq_u32 s4, 4
                s_cselect_b32 s3, 2, s3         ; k
                s_cselect_b32 s{C}, 0, 32
                s_mul_i32 s5, s3, 3072
                s_add_u32 s{A}, s{A}, s5
                s_lshl_b32 s3, s3, 6
                s_and_b32 s4, s4, 2
                s_cmp_eq_u32 s4, 2
                s_cselect_b32 s5, 18432, 0
                s_add_u32 s{A}, s{A}, s5
                s_cmp_eq_u32 s4, 2
                s_cselect_b32 s{C}, -32, s{C}
                s_sub_u32 s5, 256, s3
                s_cmp_eq_u32 s4, 2
                s_cselect_b32 s3, s5, s3
                s_add_u32 s{B}, s{B}, s3""")
    decode(0); decode(1)
    a.e("s_waitcnt vmcnt(0)\nbuffer_store_dword v15, v108, s[24:27], s70 offen sc1")
    stamp(a, "pub2", opt)
    ask("s71", "v_and_b32 v13, 3, v1\nv_lshlrev_b32 v13, 7, v13\nv_and_b32 v14, 12, v1\nv_add_u32 v13, v13, v14"); check(2)
    stamp(a, "chk2", opt)
    def loads(i):
        for o in range(4):
            a.e(f"buffer_load_dwordx4 {vr(16+16*i+4*o,4)}, v{VL16}, s[24:27], s{56+4*i} offen sc1")
            if o < 3: a.e(f"s_add_u32 s{56+4*i}, s{56+4*i}, 36864")
    def fin(i, left):
        b, D = 16 + 16*i, 112 + 16*i
        for o in range(4):
            a.e(f"s_waitcnt vmcnt({left + 3 - o})")
            for k in range(4):
                r = b + 4*o + k
                if o == 0: a.e(f"v_lshlrev_b32 v{D+2*k}, 16, v{r}\nv_and_b32 v{D+2*k+1}, 0xffff0000, v{r}")
                else: a.e(f"v_lshlrev_b32 v{D+8}, 16, v{r}\nv_and_b32 v{r}, 0xffff0000, v{r}\nv_add_f32 v{D+2*k}, v{D+2*k}, v{D+8}\nv_add_f32 v{D+2*k+1}, v{D+2*k+1}, v{r}")
        for k in range(4): a.e(f"v_cvt_pk_bf16_f32 v{D+k}, v{D+2*k}, v{D+2*k+1}")
        a.e(f"""buffer_store_dwordx2 v[{D}:{D+1}], v10, s[8:11], s{57+4*i} offen{opt.opol}
                s_add_u32 s{57+4*i}, s{57+4*i}, s{58+4*i}""")
        if i == 1: a.e("s_cmp_eq_u32 s62, 0\ns_cbranch_scc1 L_rd2")
        a.e(f"buffer_store_dwordx2 v[{D+2}:{D+3}], v10, s[8:11], s{57+4*i} offen{opt.opol}")
    loads(0)
    a.e("s_cmp_ge_u32 s54, 14\ns_cbranch_scc1 L_rd1")
    sv = save(a)
    loads(1); fin(0, 4); fin(1, 2)
    a.e("s_branch L_rd2")
    a.label("L_rd1"); load(a, sv)
    fin(0, 0)
    a.label("L_rd2")
    stamp(a, "end", opt)
    if opt.stamps:
        a.e(f"s_lshl_b32 s3, s2, 2\ns_add_u32 s3, s3, s28\ns_lshl_b32 s3, s3, 7\ns_add_u32 s3, s3, {WS_STAMP}\nv_mov_b32 v0, 0")
        for i in range(1 + len(opt.sset)):
            a.e(f"v_mov_b32 v2, s{STB+2*i}\nv_mov_b32 v3, s{STB+1+2*i}\nbuffer_store_dwordx2 v[2:3], v0, s[24:27], s3 offen offset:{8*i}\ns_waitcnt vmcnt(0)")
    a.label("L_done")
    a.e("s_endpgm")
    for qb in range(3): rare(a, qb)
    a.label("L_hold", reset=True)
    a.e("s_mov_b32 s47, 0x400000")
    a.label("L_hold1")
    a.e("""s_sleep 4
           ds_read_b64 v[30:31], v26
           s_sub_u32 s47, s47, 1
           s_waitcnt lgkmcnt(0)
           v_min_u32 v30, v30, v31
           v_readfirstlane_b32 s3, v30
           s_lshl_b32 s3, s3, 4
           s_cmp_eq_u32 s47, 0
           s_cselect_b32 s3, s38, s3
           s_cmp_lt_i32 s3, s38
           s_cbranch_scc1 L_hold1
           s_setpc_b64 s[40:41]""")

def build(opt):
    a = Asm()
    a.raw("; @launch grid=(256,1,1) block=(256,1,1) lds=163840")
    a.raw('.amdgcn_target "amdgcn-amd-amdhsa--gfx950"')
    kernel(a, NAME + "_kernel", opt)
    a.raw('.section .rodata,"a"\n.p2align 6')
    a.raw("\n".join([f".amdhsa_kernel {NAME}_kernel", "  .amdhsa_next_free_vgpr 512", "  .amdhsa_next_free_sgpr 102",
        "  .amdhsa_accum_offset 256", "  .amdhsa_group_segment_fixed_size 0", "  .amdhsa_kernarg_size 104",
        "  .amdhsa_user_sgpr_count 2", "  .amdhsa_user_sgpr_kernarg_segment_ptr 1",
        "  .amdhsa_system_sgpr_workgroup_id_x 1", ".end_amdhsa_kernel"]))
    return a.text(), a

if __name__ == "__main__":
    opt = Opt()
    out = sys.argv[1] if len(sys.argv) > 1 else "k.s"
    for kv in sys.argv[2:]:
        k, v = kv.split("=", 1); assert hasattr(opt, k), k
        setattr(opt, k, eval(v))
    t, a = build(opt)
    open(out, "w").write(t)
    print(out, "lines", t.count("\n"), "pad", a.npad)
```

```python
import sys, struct, math
sys.path.insert(0, "dev")
from asmlib import Asm, spread, regs_of, level_fill
import gen5
from gen5 import (NAME, f2u, CSC, THR_LOG2, WS_BYTES, WS_O, WS_P, WS_F, WS_STAMP, STB, vr, ar, srd, stamp, emit,
                  VOFFK, VOFFV, VKA, VVA, LSUM, TMAX, VT, NM, S0, Q0, KF, VF, Sreg, Qreg, Oacc, softmax, qk, pv, rare)

class Opt:
    wp = "pppp"
    noB = False
    stamps = False
    sset = ['q0', 'k0', 't15', 'comb', 'join', 'chk1', 'gend', 'pub2', 'end']
    thr0 = 0.0
    thr1 = 1.25
    clk = "s_memrealtime"
    rot = True
    krot = 3
    pbf16 = True
    k1early = False
    wot = None
    wotnt = None
    tlb = 0
    nx = 1
    accearly = True
    cap = (7, 6)
    capend = 30
    hold = False
    xgate = 0
    last = (0, 0)
    ylast = 1
    kvsame = False
    unroll = False
    a0at = 2
    opol = ''
    late = 2
    prio = 0
    gate = 12
    pace = 1.0
    d1 = (8, 10, 12, 14, 22, 24, 26, 27)
    d2 = (29, 31, 33, 35, 37, 39, 44, 47)
    dcost = 4.0
    acct = 0
    w0 = 10
    askat = 3
    fewwait = True
    vwin = (16, 22)
    kwin = (40, 44)
    tpol = ''
    wopol = ''

SLOT = 16384
STG = lambda i: 45056 + 28672 * i
TOP = 159744
SB = (122880, 0, 86016, 49152)
NS = 3
YB = 49152

def dma_unit(u, opt):
    kind = "KV"[u % 2]; sreg = "s36" if kind == "K" else "s35"
    srdn = "s[8:11]" if kind == "K" else "s[12:15]"
    G = []
    for j in range(8):
        g = []
        if j == 0: g += [f"s_add_u32 m0, s37, {(u % NS) * SLOT}", f"s_add_u32 s51, s34, {sreg}"]
        if j == 1 and not opt.kvsame: g += [f"s_add_u32 {sreg}, {sreg}, 16384", f"s_and_b32 {sreg}, {sreg}, 0x3ffff"]
        if j == 4: g += [f"s_add_u32 m0, s37, {(u % NS) * SLOT + 4096}", "s_add_u32 s51, s51, 4096"]
        vo = VOFFK + j % 4 if kind == "K" else VOFFV
        if opt.cap and 3 <= u <= opt.capend:
            cx, cy = opt.cap
            cx, cy = (c if isinstance(c, int) else c[j % len(c)] for c in (cx, cy))
            dma_unit.n += 1; n = dma_unit.n
            g += ["s_cmp_eq_u32 s50, 0", f"s_cbranch_scc1 L_cap{n}", f"RAW s_waitcnt vmcnt({cx - 1})"]
            if cy < cx: g += ["RAW s_cmp_eq_u32 s50, 1", f"RAW s_cbranch_scc1 L_cap{n}", f"RAW s_waitcnt vmcnt({cy - 1})"]
            g += [f"LABEL L_cap{n}"]
        g.append(f"buffer_load_dwordx4 v{vo}, {srdn}, s51 offen offset:{(j % 4)*1024} nt lds ; @u{u}")
        G.append("\n".join(g))
    return G
dma_unit.n = 0
def kreads(t): return [f"ds_read_b128 {ar(KF+4*s,4)}, v{VKA+s} offset:{((2*t) % NS) * SLOT}" for s in range(8)]
def vreads(t):
    return [f"ds_read_b64_tr_b16 {ar(VF + db*8 + s*4 + k*2, 2)}, v{VVA+db} offset:{((2*t+1) % NS)*SLOT + 4096*s + 2048*k}"
            for s in range(2) for db in range(4) for k in range(2)]
def tile_body(a, opt, t, carry, extra=()):
    first = t == 0
    M = qk(0, first) + (pv(2, t == 1) if t else [None]*8) + qk(1, first) + pv(0, first) + qk(2, first) + pv(1, first)
    W = opt.w0
    sl = [[] for _ in range(48 + W)]
    def at(G, slots):
        for g, k in zip(G, slots): sl[k].append(g)
    if 2*t + NS <= 31: at(dma_unit(2*t + NS, opt), opt.d1)
    spread(sl, [f"WAITVM u{2*t+1}"] + vreads(t), *opt.vwin)
    if 2*t + NS + 1 <= 31: at(dma_unit(2*t + NS + 1, opt), opt.d2)
    if t < 15: spread(sl, [f"WAITVM u{2*t+2}"] + kreads(t + 1), *opt.kwin)
    if t == 14 and opt.xgate: sl[30].append('v_mov_b32 v27, 2\nds_write_b32 v109, v27 offset:16')
    if opt.hold or t == 0: sl[46].append("s_add_u32 s45, s45, 1\nv_mov_b32 v27, s45\nds_write_b32 v109, v27 offset:16")
    if 1 <= t <= 14 and opt.hold:
        sl[44].append("ds_read_b64 v[30:31], v26")
        sl[47].append(f"""AUTO v_min_u32 v30, v30, v31
s_add_u32 s38, s38, s50
s_min_i32 s38, s38, 256
v_readfirstlane_b32 s3, v30
s_lshl_b32 s3, s3, 4
s_cmp_ge_i32 s3, s38
s_cbranch_scc1 L_go{t}
s_call_b64 s[40:41], L_hold
LABEL L_go{t}""")
    for e in extra: spread(sl, *e)
    for i, x in enumerate(carry): sl[i] = x + sl[i]
    ghost = {48 + k: "buffer_x\ns_nop 0\ns_nop 0" for k in opt.d1 if k < W}
    for k, g in ghost.items(): sl[k].append(g)
    level_fill(sl, softmax(0, t, first), W, W + 16, opt.dcost)
    level_fill(sl, softmax(1, t, first), W + 16, W + 32, opt.dcost)
    level_fill(sl, softmax(2, t, first), W + 32, W + 48, opt.dcost)
    for k in ghost: sl[k] = sl[k][1:]
    for i in range(48):
        if opt.fewwait:
            if i == 0: a.wait(lgregs=regs_of(ar(KF, 32)))
            if i == 24: a.wait(lgregs=regs_of(ar(VF, 32)))
        if M[i]: emit(a, [M[i]])
        for x in sl[i]:
            if opt.acct and x.startswith("WAITVM"):
                keep = list(a.lg)
                a.e("s_memtime s[94:95]"); emit(a, [x]); a.e("s_memtime s[96:97]\ns_waitcnt lgkmcnt(0)\ns_sub_u32 s96, s96, s94")
                r = 98 if int(x.split("u")[1]) % 2 else 100
                a.e(f"s_add_u32 s{r}, s{r}, s96")
            elif opt.acct == 2 and "lds ;" in x:
                a.e("s_memtime s[94:95]"); emit(a, [x]); a.e("s_memtime s[96:97]\ns_waitcnt lgkmcnt(0)\ns_sub_u32 s96, s96, s94\ns_add_u32 s92, s92, s96")
            else: emit(a, [x])
    return sl[48:]

def save(a): return (list(a.hist), list(a.lg), list(a.vm))
def load(a, st): a.hist, a.lg, a.vm = (list(x) for x in st)

def kernel(a, name, opt):
    a.raw(".text"); a.raw(f".globl {name}"); a.raw(".p2align 8"); a.raw(f".type {name},@function")
    a.label(name, reset=True)
    a.e("""s_load_dwordx8 s[56:63], s[0:1], 0
           s_load_dwordx8 s[64:71], s[0:1], 40
           s_load_dwordx2 s[72:73], s[0:1], 96
           s_load_dwordx2 s[40:41], s[0:1], 32
           s_load_dwordx2 s[42:43], s[0:1], 72
           s_load_dwordx4 s[44:47], s[0:1], 80
           s_memrealtime s[48:49]
           s_cmp_ge_u32 s2, 256
           s_cbranch_scc1 L_done""")
    if opt.stamps: a.e(f"{opt.clk} s[{STB}:{STB+1}]")
    VW, VXA, VXB, AW, AX, VD = 72, 73, 74, 76, 64, 111
    G, L15, H, L31, G1, R, C4 = 88, 89, 90, 91, 92, 81, 82
    VFO, VFP = 109, 110
    a.e(f"""v_lshrrev_b32 v1, 6, v0
            s_and_b32 s3, s2, 7
            s_lshr_b32 s29, s3, 2
            s_and_b32 s30, s3, 3
            v_readfirstlane_b32 s28, v1
            s_lshr_b32 s3, s2, 3
            s_lshr_b32 s31, s3, 2
            s_and_b32 s32, s3, 3
            v_and_b32 v1, 63, v0
            v_lshrrev_b32 v{G}, 4, v1
            v_and_b32 v{L15}, 15, v1
            v_lshrrev_b32 v56, 3, v1
            v_and_b32 v57, 7, v1
            v_and_b32 v{G1}, 1, v{G}
            v_lshlrev_b32 v59, 2, v{G1}
            v_xor_b32 v59, v57, v59
            v_lshlrev_b32 v59, 4, v59
            v_lshl_add_u32 v{VW}, v56, 13, v59
            v_mul_u32_u24 v60, 1152, v56
            v_xor_b32 v61, v57, v{G}
            s_and_b32 s6, s28, 1
            s_lshr_b32 s7, s28, 1
            s_lshl_b32 s3, s6, 2
            v_xor_b32 v61, s3, v61
            v_lshl_add_u32 v{VXA}, v61, 4, v60
            v_xor_b32 v61, 4, v61
            v_lshl_add_u32 v{VXB}, v61, 4, v60
            s_mul_i32 s37, s7, {YB}
            s_lshl_b32 s3, s6, 13
            s_add_u32 s37, s37, s3
            s_lshl_b32 s33, s30, 3
            s_lshl_b32 s3, s32, 1
            s_add_u32 s33, s33, s3              ; head X
            s_add_u32 s74, s3, s31              ; b + 2p
            s_lshl_b32 s52, s33, 8
            s_lshl_b32 s3, s28, 7
            s_add_u32 s52, s52, s3
            s_mul_i32 s53, s31, 110592
            s_mul_i32 s3, s28, 27648
            s_add_u32 s53, s53, s3              ; x rows 24w..
            s_mul_i32 s55, s28, 3072
            s_mov_b32 s18, 884736
            s_mov_b32 s19, 0x20000
            s_mov_b32 s22, 4718592
            s_mov_b32 s23, 0x20000""")
    if opt.krot == 0: a.e("s_mov_b32 s74, 0")
    elif opt.krot == 1: a.e("s_cmp_ge_u32 s74, 9\ns_cselect_b32 s3, 9, 0\ns_sub_u32 s74, s74, s3")
    elif opt.krot == 3: a.e("s_and_b32 s74, s74, 1\ns_lshl_b32 s74, s74, 2")
    a.e("s_cmp_eq_u32 s29, 0\ns_waitcnt lgkmcnt(0)")
    for d, o in ((20, 6), (16, 0), (8, 2), (12, 4)):
        a.e(f"s_cselect_b32 s{d}, s{56+o}, s{64+o}\ns_cselect_b32 s{d+1}, s{57+o}, s{65+o}")
    a.e("""s_cselect_b32 s76, s40, s42
           s_cselect_b32 s77, s41, s43
           s_mov_b64 s[78:79], s[44:45]
           s_mov_b64 s[80:81], s[46:47]
           s_or_b32 s75, s48, 1""")
    P = lambda ch: " nt" if ch == "n" else ""
    XS = 98304
    def stage(c):
        buf = c % 3; Gs = []
        for j in range(8):
            g = ["s_lshl_b32 s4, s74, 19", "s_add_u32 s4, s4, s52"] if j == 0 else ["s_add_u32 s4, s4, 65536"]
            g += [f"s_add_u32 m0, s37, {buf*SLOT + j*1024}", f"buffer_load_dwordx4 v{VW}, s[20:23], s4 offen{P(opt.wp[0])} lds ; @s{c}"]
            Gs.append("\n".join(g))
        for i in range(3):
            g = ["s_lshl_b32 s5, s74, 7", "s_add_u32 s5, s5, s53"] if i == 0 else [f"s_add_u32 s5, s5, {8*1152}"]
            g += [f"s_add_u32 m0, s55, {XS + buf*12288 + i*1024}", f"buffer_load_dwordx4 v{VXB if i % 2 else VXA}, s[16:19], s5 offen{P(opt.wp[1])} lds ; @s{c}"]
            if i == 2: g += ["s_add_u32 s74, s74, 1", "s_cmp_eq_u32 s74, 9", "s_cselect_b32 s74, 0, s74"]
            Gs.append("\n".join(g))
        return Gs
    stamp(a, 'ka', opt)
    wtouch = [x.strip() for x in """s_lshr_b32 s3, s2, 3
            s_lshl_b32 s3, s3, 2
            s_add_u32 s3, s3, s28
            s_mul_i32 s3, s3, 9216
            s_mul_i32 s47, s30, 1179648
            v_lshlrev_b32 v24, 7, v1
            v_add_u32 v24, s3, v24
            v_add_u32 v25, 8192, v24
            v_cmp_gt_u32 s[70:71], 8, v1
            v_cndmask_b32 v25, -1, v25, s[70:71]""".split("\n")]
    wtouch = ["\n".join(wtouch + ["buffer_load_dword v23, v24, s[60:63], s47 offen ; @junk"]), "s_mul_i32 s47, s30, 1179648\nbuffer_load_dword v23, v25, s[60:63], s47 offen ; @junk"]
    if opt.wot is not None: srd(a, 60, "s76", "s77", 4718592)
    if opt.wot == 'a': emit(a, wtouch)
    emit(a, stage(0))
    if opt.wot == 'b': emit(a, wtouch)
    stamp(a, 'i0', opt)
    srd(a, 56, "s80", "s81", 256)
    a.e("""s_lshl_b32 s3, s2, 8
           v_add_u32 v106, s3, v0
           v_min_u32 v106, 1, v106
           v_lshlrev_b32 v106, 12, v106
           v_mov_b32 v107, s75
           buffer_store_dword v107, v106, s[56:59], 0 offen sc1""")
    emit(a, stage(1))
    if opt.wot == 'c': emit(a, wtouch)
    for d in (8, 12): a.e(f"s_mov_b32 s{d+2}, {1 << 26}\ns_mov_b32 s{d+3}, 0x20000")
    srd(a, 24, "s72", "s73", WS_BYTES)
    srd(a, 60, "s76", "s77", 4718592)
    a.e(f"""v_lshrrev_b32 v{H}, 5, v1
            v_and_b32 v{L31}, 31, v1
            v_lshrrev_b32 v{R}, 2, v{L15}
            v_and_b32 v{C4}, 3, v1
            v_lshl_add_u32 v59, v{H}, 3, v{R}
            v_lshlrev_b32 v59, 7, v59
            v_lshrrev_b32 v60, 1, v{R}
            v_lshl_add_u32 v59, v60, 6, v59
            v_lshl_add_u32 v59, v{G1}, 5, v59
            v_lshl_add_u32 v59, v{C4}, 3, v59
            v_add_u32 v{AW}, s37, v59
            v_xor_b32 v{AW+1}, 64, v{AW}
            v_bfe_u32 v60, v1, 1, 3
            v_xor_b32 v60, v60, v{H}
            v_lshlrev_b32 v60, 4, v60
            v_lshl_add_u32 v60, v{L31}, 7, v60
            v_add_u32 v{AX}, {XS}, v60""")
    for s in range(1, 4): a.e(f"v_xor_b32 v{AX+s}, {32*s}, v{AX}")
    a.e(f"""s_lshl_b32 s3, s28, 2
            s_add_u32 s3, s3, {TOP + 3072}
            v_mov_b32 v{VFO}, s3
            v_xor_b32 v{VFP}, 4, v{VFO}
            v_mov_b32 v61, 0
            ds_write_b32 v{VFO}, v61
            ds_write_b32 v{VFO}, v61 offset:16
            s_mov_b32 s44, 0
            s_mov_b32 s45, 0""")
    def frag_reads(c, s, F):
        buf = c % 3
        L = [f"ds_read_b64_tr_b16 {vr(F + db*4 + k*2, 2)}, v{AW+db} offset:{buf*SLOT + (16*s + 4*k) * 128}" for db in range(2) for k in range(2)]
        return L + [f"ds_read_b128 {vr(F + 8 + qb*4, 4)}, v{AX+s} offset:{buf*12288 + qb*4096}" for qb in range(3)]
    setup = f"""v_lshlrev_b32 v26, 8, v{G}
            v_xor_b32 v27, v{L15}, v{G}
            v_lshl_add_u32 v{VOFFK}, v27, 4, v26
            v_xor_b32 v{VOFFK+1}, 64, v{VOFFK}
            v_xor_b32 v{VOFFK+2}, 128, v{VOFFK}
            v_xor_b32 v{VOFFK+3}, 192, v{VOFFK}
            v_lshlrev_b32 v27, 2, v{G}
            v_xor_b32 v27, v{L15}, v27
            v_lshl_add_u32 v{VOFFV}, v27, 4, v26
            s_lshl_b32 s3, s6, 13
            s_add_u32 s33, s33, s7
            s_lshl_b32 s34, s31, 5
            s_add_u32 s34, s34, s33
            s_lshl_b32 s34, s34, 18
            s_add_u32 s34, s34, s3"""
    if opt.rot:
        setup += """
            s_lshl_b32 s3, s2, 2
            s_add_u32 s3, s3, s7
            s_mul_i32 s3, s3, 0x1e3779b1
            s_lshr_b32 s47, s3, 15
            s_xor_b32 s3, s3, s47
            s_mul_i32 s3, s3, 0x2c1b3c6d
            s_lshr_b32 s3, s3, 20
            s_and_b32 s3, s3, 15
            s_lshl_b32 s35, s3, 14"""
    else: setup += "\ns_mov_b32 s35, 0"
    setup += f"""
            s_mov_b32 s36, s35
            v_xor_b32 v27, v{H}, v{L15}
            v_lshlrev_b32 v27, 4, v27
            v_lshl_add_u32 v27, v{L31}, 8, v27
            v_add_u32 v{VKA}, s37, v27"""
    for s in range(1, 8): setup += f"\nv_xor_b32 v{VKA+s}, {32*s}, v{VKA}"
    setup += f"""
            v_lshl_add_u32 v28, v{H}, 2, v{R}
            v_lshlrev_b32 v28, 8, v28
            v_lshl_add_u32 v28, v{R}, 6, v28
            v_lshl_add_u32 v28, v{G1}, 5, v28
            v_lshl_add_u32 v28, v{C4}, 3, v28
            s_lshl_b32 s47, s6, 7
            v_xor_b32 v28, s47, v28
            v_add_u32 v{VVA}, s37, v28"""
    for db in range(1, 4): setup += f"\nv_xor_b32 v{VVA+db}, {64*db}, v{VVA}"
    setup += f"\ns_mov_b32 s42, {f2u(CSC):#x}\ns_mov_b32 s43, {f2u(THR_LOG2):#x}"
    for qb in range(3): setup += f"\nv_mov_b32 v{LSUM+qb}, 0"
    setup = [x.strip() for x in setup.split("\n")]
    VO, VL16, AD, VOL = 93, 102, 103, 107
    def vo_calc(dst, rev):
        L = []
        for i in range(9):
            L += [f"v_add_u32 v84, {64*i}, v1", "v_mul_u32_u24 v85, 58255, v84", "v_lshrrev_b32 v85, 20, v85", "v_mul_u32_u24 v86, 18, v85",
                  "v_sub_u32 v86, v84, v86", "v_xor_b32 v87, 1, v86", "v_sub_u32 v87, 17, v87"]
            if rev == "vcc": L += ["v_cndmask_b32 v87, v86, v87, vcc"]
            L += ["v_mul_u32_u24 v85, 1152, v85", f"v_lshl_add_u32 v{dst+i}, v87, 4, v85"]
        return L
    setup2 = ["s_cmp_eq_u32 s7, 1\ns_cselect_b64 vcc, -1, 0"] + vo_calc(VO, "vcc") + [x.strip() for x in f"""v_lshlrev_b32 v{VL16}, 4, v1
            v_lshlrev_b32 v84, 4, v{H}
            v_lshl_add_u32 v84, v{G1}, 2, v84
            v_add_u32 v84, v84, v{R}
            v_mul_u32_u24 v84, 288, v84
            v_lshl_add_u32 v84, v{C4}, 3, v84
            s_mul_i32 s3, s7, 18432
            v_add_u32 v{AD+1}, s3, v84
            v_add_u32 v{AD}, {SB[0]}, v{AD+1}
            v_lshlrev_b32 v{VOL}, 10, v{G1}
            v_lshl_add_u32 v{VOL}, v{H}, 8, v{VOL}
            v_lshl_add_u32 v{VOL}, v{L15}, 4, v{VOL}
            v_mov_b32 v108, 0
            s_mul_i32 s67, s30, 1179648
            s_mul_i32 s3, s32, 288
            s_add_u32 s64, s67, s3              ; wo: rows of the octet, columns 144p..
            s_lshl_b32 s39, s29, 3
            s_add_u32 s39, s39, s31""".split("\n")]
    setW = ["s_lshl_b32 s66, s32, 1", "s_mul_i32 s65, s28, 9216", f"s_mul_i32 s68, s28, {32*1152}", "s_add_u32 s68, s68, s64"]
    def psync(pre_wait=True):
        psync.n += 1; n = psync.n
        a.e(f"""s_add_u32 s44, s44, 1
                v_mov_b32 v{VD}, s44
                ds_write_b32 v{VFO}, v{VD}
                s_mov_b32 s47, 0x400000""")
        a.label(f"L_ps{n}")
        a.e(f"""ds_read_b32 v{VD}, v{VFP}
                s_sub_u32 s47, s47, 1
                s_waitcnt lgkmcnt(0)
                v_readfirstlane_b32 s3, v{VD}
                s_cmp_eq_u32 s47, 0
                s_cselect_b32 s3, s44, s3
                s_cmp_lt_u32 s3, s44
                s_cbranch_scc1 L_ps{n}""")
    psync.n = 0
    def other_pair(name, word, val, T=84):
        a.e(f"v_mov_b32 v{T+2}, {TOP + 3072 + word}\ns_mov_b32 s47, 0x400000")
        a.label(name)
        a.e(f"""s_sleep 2
                ds_read_b64 v[{T}:{T+1}], v{T+2}
                s_sub_u32 s47, s47, 1
                s_waitcnt lgkmcnt(0)
                v_min_u32 v{T}, v{T}, v{T+1}
                v_readfirstlane_b32 s3, v{T}
                s_cmp_eq_u32 s47, 0
                s_cselect_b32 s3, {val}, s3
                s_cmp_lt_u32 s3, {val}
                s_cbranch_scc1 {name}""")

    ACC = 112
    def qwrite(blocks, dreg, area, extra=()):
        a.e(f"""v_xor_b32 v55, {dreg}, v{L15}
                v_lshlrev_b32 v55, 4, v55
                v_lshl_add_u32 v55, v{L31}, 8, v55
                v_lshl_add_u32 v55, v{H}, 3, v55
                v_add_u32 v55, {area}, v55
                v_mov_b32 v62, s42""")
        for db in range(blocks):
            for i in range(4):
                a.e(f"v_xor_b32 v54, {(4*db + i)*16}, v55")
                if extra: emit(a, [extra[4*db + i]])
                for qb in range(3):
                    r = ACC + (db*3 + qb)*16 + 4*i; tq = 56 + 2 * qb
                    a.e(f"""v_pk_mul_f32 v[{r}:{r+1}], v[{r}:{r+1}], v[62:63] op_sel_hi:[1,0]
                            v_pk_mul_f32 v[{r+2}:{r+3}], v[{r+2}:{r+3}], v[62:63] op_sel_hi:[1,0]
                            v_cvt_pk_bf16_f32 v{tq}, v{r}, v{r+1}
                            v_cvt_pk_bf16_f32 v{tq+1}, v{r+2}, v{r+3}
                            ds_write_b64 v54, v[{tq}:{tq+1}] offset:{qb*8192}""")
    def qread(area):
        a.e(f"s_sub_u32 s3, {area}, s37")
        for s in range(8): a.e(f"v_add_u32 v{32+s}, s3, v{VKA+s}")
        for qb in range(3):
            for s in range(8): a.e(f"ds_read_b128 {vr(Qreg(qb,s),4)}, v{32+s} offset:{qb*8192}")
    FA, FB = 208, 228
    a.wait(vmtags=["s0"], lg0=True); a.e("s_barrier")
    stamp(a, "q0", opt)
    emit(a, frag_reads(0, 0, FA))
    sl = [[] for _ in range(216 + 24)]
    spread(sl, stage(2), 0, 18)
    spread(sl, setup, 0, 18)
    spread(sl, setup2 + setW, 18, 150)
    for c in range(9):
        for s in range(4):
            F, nF = (FA, FB) if s % 2 == 0 else (FB, FA)
            k0 = (c*4 + s) * 6
            if s == 3:
                a.wait(vmtags=[f"s{c+1}"], lg0=True); a.e("s_barrier")
                stamp(a, f"c{c}", opt)
                spread(sl, (stage(c + 3) if c + 3 <= 8 else dma_unit(c - 6, opt) if c < 8 else []) + (wtouch if opt.wot == c else []) + ([x.replace(' offen ;', ' offen nt ;') for x in wtouch] if opt.wotnt == c else []), k0, k0 + 24)
                if c < 8: emit(a, frag_reads(c + 1, 0, nF))
            else: emit(a, frag_reads(c, s + 1, nF))
            i = 0
            for db in range(2):
                for qb in range(3):
                    d = vr(ACC + (db*3 + qb)*16, 16)
                    emit(a, [f"v_mfma_f32_32x32x16_bf16 {d}, {vr(F+db*4,4)}, {vr(F+8+qb*4,4)}, " + ("0" if (c == 0 and s == 0) else d)] + sl[k0 + i]); i += 1
    assert not any(sl[216:])
    a.e(f"s_lshl_b32 s3, s6, 3\ns_mul_i32 s4, s7, 24576\ns_add_u32 s4, s4, {XS}")
    qwrite(2, "s3", "s4", dma_unit(2, opt) if opt.k1early else ())
    a.e("s_waitcnt lgkmcnt(0)\ns_barrier")
    qread("s4")
    stamp(a, "qx", opt)
    if not opt.k1early: emit(a, dma_unit(2, opt))
    a.wait(vmtags=["u0"], lg0=True)
    emit(a, kreads(0))
    stamp(a, "k0", opt)
    a.e(f"""v_mov_b32 v26, {TOP + 3072 + 16}
            s_cmp_eq_u32 s7, 1
            s_cselect_b32 s50, {round(opt.thr1 * 16)}, 0
            s_cselect_b32 s38, {round((opt.thr0 + opt.thr1) * 16)}, -1""")
    if not opt.hold: a.e("s_add_u32 s50, s7, 1")
    if opt.acct: a.e(f"s_mov_b64 s[98:99], s[{STB}:{STB+1}]\ns_mov_b64 s[100:101], s[{STB}:{STB+1}]\ns_mov_b64 s[92:93], s[{STB}:{STB+1}]")
    def wpieces(tag, head, rows, lds, voreg):
        Gs = []
        for i in range(9):
            g = [f"s_add_u32 s4, s66, {head}", "s_and_b32 s4, s4, 7", f"s_mul_i32 s4, s4, {128*1152}", "s_add_u32 s4, s4, s68",
                 f"s_add_u32 s4, s4, {rows*1152}"] if i == 0 else []
            g += [f"s_add_u32 m0, s65, {lds + i*1024}", f"buffer_load_dwordx4 v{voreg+i}, s[60:63], s4 offen{opt.wopol} lds ; @{tag}"]
            Gs.append("\n".join(g))
        return Gs
    HEAD = (0, 2, 4, 6, 1, 3, 5, 7)
    NX = opt.nx
    BUFOF = [st % 2 for st in range(NX + 2)] + [2, 3]
    while len(BUFOF) < 8: BUFOF.append(BUFOF[len(BUFOF) - 4])
    wS = lambda st: wpieces(f"w{st}", HEAD[st], 0, SB[BUFOF[st]], VO)
    wX = lambda st, VOR: wpieces(f"w{st}", HEAD[st], 0, SB[BUFOF[st]], VO) + wpieces(f"w{st}", HEAD[st], 64, SB[BUFOF[st]] + 18432, VOR)
    carry = tile_body(a, opt, 0, [])
    carry = tile_body(a, opt, 1, carry)
    if opt.unroll:
        for t in range(2, 14):
            stamp(a, f'r{t}', opt); carry = tile_body(a, opt, t, carry)
    else:
        stamp(a, "l0", opt)
        a.e("s_mov_b32 s46, 4")
        a.raw(".p2align 6"); a.label("L_tile")
        keep = list(a.vm)
        if not opt.hold: a.e(f"s_cmp_eq_u32 s7, 0\ns_cselect_b32 s3, {opt.last[0]}, {opt.last[1]}\ns_cmp_gt_u32 s46, 1\ns_cselect_b32 s50, s50, s3")
        if opt.late:
            a.e(f"""s_lshl_b32 s3, s7, 3
                    s_add_u32 s3, s3, s46
                    s_cmp_lg_u32 s3, {opt.late}
                    s_cbranch_scc1 L_nolate
                    s_lshr_b32 s3, s2, 3
                    s_lshl_b32 s3, s3, 1
                    s_add_u32 s3, s3, s6
                    s_mul_i32 s3, s3, 18432
                    v_lshlrev_b32 v84, 7, v1
                    v_add_u32 v84, s3, v84
                    v_add_u32 v85, 8192, v84
                    v_add_u32 v86, 16384, v84
                    v_cmp_gt_u32 vcc, 16, v1
                    v_cndmask_b32 v86, -1, v86, vcc""")
            emit(a, [f"buffer_load_dword v87, v{r}, s[60:63], s67 offen{opt.tpol} ; @junk" for r in (84, 85, 86)])
            a.label("L_nolate")
        if opt.tlb:
            a.e(f"""s_cmp_lg_u32 s46, {opt.tlb}
                    s_cbranch_scc1 L_notlb
                    s_lshl_b32 s3, s39, 2
                    s_add_u32 s4, s3, s30
                    s_mul_i32 s4, s4, {8*24576}
                    v_mov_b32 v84, s4
                    s_add_u32 s4, s4, {8*24576 - 128}
                    v_writelane_b32 v84, s4, 1
                    s_add_u32 s3, s3, s32
                    s_mul_i32 s4, s3, {4*36864}
                    s_add_u32 s4, s4, {WS_P}
                    v_writelane_b32 v84, s4, 2
                    s_add_u32 s4, s4, {4*36864 - 128}
                    v_writelane_b32 v84, s4, 3
                    s_mov_b32 s4, {WS_F + 65536 - 128}
                    v_writelane_b32 v84, s4, 4
                    s_mul_i32 s4, s31, {96*2304}
                    v_mov_b32 v85, s4
                    s_add_u32 s4, s4, {96*2304 - 128}
                    v_writelane_b32 v85, s4, 1
                    s_mov_b64 s[16:17], s[78:79]
                    s_mov_b32 s18, 1769472
                    buffer_load_dword v87, v84, s[24:27], 0 offen nt ; @junk
                    buffer_load_dword v87, v85, s[16:19], 0 offen nt ; @junk""")
            a.label("L_notlb")
        a.vm = keep
        for t in (2, 3, 4): carry = tile_body(a, opt, t, carry)
        a.e("s_sub_u32 s46, s46, 1\ns_cmp_lg_u32 s46, 0\ns_cbranch_scc1 L_tile")
        for o in a.vm:
            if o.tag and o.tag[0] == "u": o.tag = f"u{int(o.tag[1:]) + 18}"
    stamp(a, "l1", opt)
    carry = tile_body(a, opt, 14, carry)
    xo = lambda k: (k // 8) * SLOT + (k % 8) * 1024
    def send(qb):
        return [f"ds_write_b128 v28, {ar(Oacc(2+i,qb) + 4*g, 4)} offset:{xo((i*3 + qb)*4 + g)}" for i in range(2) for g in range(4)]
    accr = lambda qb: [f"v_accvgpr_read_b32 v{160 + (i*3+qb)*16 + r}, a{Oacc(i,qb) + r}" for i in range(2) for r in range(16)]
    pre = ["buffer_load_dword v106, v108, s[56:59], 0 offen sc1 ; @tag",
           f"v_add_u32 v28, s37, v{VL16}", "s_lshl_b32 s3, s6, 14\ns_sub_u32 s3, 8192, s3", "v_add_u32 v29, s3, v28",
           f"s_mul_i32 s3, s28, 768\ns_add_u32 s3, s3, {TOP}", f"v_lshlrev_b32 v30, 3, v{L31}", "v_add_u32 v30, s3, v30",
           f"s_xor_b32 s3, s28, 1\ns_mul_i32 s3, s3, 768\ns_add_u32 s3, s3, {TOP}", f"v_lshlrev_b32 v31, 3, v{L31}", "v_add_u32 v31, s3, v31"]
    team = "v_and_b32 v13, 3, v1\nv_lshlrev_b32 v13, 10, v13\nv_and_b32 v14, 4, v1\nv_add_u32 v13, v13, v14"
    askX = [f"s_andn2_b32 s71, s2, 24\ns_lshl_b32 s71, s71, 7\ns_add_u32 s69, s71, {WS_F}"] + team.split("\n") + ["buffer_load_dword v12, v13, s[24:27], s69 offen sc1"]
    carry = tile_body(a, opt, 15, carry, extra=[(pre, 8, 16), (askX, 28, 34), (send(0), 34, 48)] + ([(accr(0), 33, 44)] if opt.accearly else []))
    sl = [[] for _ in range(8)]
    carry = [x for y in carry for x in y]
    cut = max([i + 1 for i, x in enumerate(carry) if x.startswith(f"v_cvt_pk_bf16_f32 v{Sreg(2,3)},")] + [len(carry) - 16, 0])
    emit(a, carry[:cut])
    spread(sl, carry[cut:], 0, 3)
    st = []
    for qb in range(3): st += [f"v_mov_b32 v{3+2*qb}, v{LSUM+qb}", f"v_mov_b32 v{2+2*qb}, v{NM+16*qb}"]
    for qb in range(3): st += [f"v_permlane32_swap_b32 v{LSUM+qb}, v{3+2*qb}"]
    for qb in range(3): st += [f"v_add_f32 v{3+2*qb}, v{LSUM+qb}, v{3+2*qb}", f"ds_write_b64 v30, v[{2+2*qb}:{3+2*qb}] offset:{qb*256}"]
    spread(sl, st + send(1), 3, 8)
    for m, f in zip(pv(2, False), sl): emit(a, [m] + f)
    stamp(a, "t15", opt)
    emit(a, accr(1)[:12] + send(2))
    emit(a, ([] if opt.accearly else accr(0)) + accr(1)[12:] + accr(2))
    a.e("s_mov_b32 s4, 0x100000")
    a.label("L_tag")
    a.e("""s_waitcnt vmcnt(0)
           v_readfirstlane_b32 s75, v106
           s_cmp_lg_u32 s75, 0
           s_cbranch_scc1 L_tag_ok
           buffer_load_dword v106, v108, s[56:59], 0 offen sc1 ; @junk
           s_sub_u32 s4, s4, 1
           s_cmp_lg_u32 s4, 0
           s_cbranch_scc1 L_tag""")
    a.label("L_tag_ok"); a.vm = []
    a.e(f"""s_lshl_b32 s3, s39, 5
            s_add_u32 s3, s3, s33
            s_mul_i32 s52, s3, 24576
            s_mul_i32 s3, s6, 12288
            s_add_u32 s52, s52, s3
            s_waitcnt lgkmcnt(0)""")
    ACC, WF, OF = 112, 16, 0
    def ask(base, lanes):
        a.e(f"s_add_u32 s69, {base}, {WS_F}\n{lanes}\nbuffer_load_dword v12, v13, s[24:27], s69 offen sc1")
    def check(tag):
        a.e("s_mov_b32 s4, 0x100000")
        a.label(f"L_poll{tag}")
        a.e(f"""s_waitcnt vmcnt(0)
                v_cmp_ne_u32 vcc, s75, v12
                s_cbranch_vccz L_got{tag}
                s_sleep 1
                buffer_load_dword v12, v13, s[24:27], s69 offen sc1
                s_sub_u32 s4, s4, 1
                s_cmp_lg_u32 s4, 0
                s_cbranch_scc1 L_poll{tag}""")
        a.label(f"L_got{tag}")
        a.e("s_waitcnt vmcnt(0)")
    def wreads(buf, rows, F):
        reg, boff = (AD, AD + 1, 220, 221)[buf], 0
        return [f"ds_read_b64_tr_b16 {vr(F + nb*4 + 2*k, 2)}, v{reg} offset:{boff + (rows + 8*k) * 288 + 32*nb}" for nb in range(9) for k in range(2)]
    def oload(tag, head, db0, nks, dst):
        Gs = []
        for kl in range(nks):
            for j in range(3):
                g = [f"s_add_u32 s47, s66, {head}", "s_and_b32 s47, s47, 7", "s_mul_i32 s47, s47, 24576", "s_add_u32 s47, s47, s37"] + \
                    ([f"s_add_u32 s47, s47, {db0}"] if db0 else []) if kl + j == 0 else ["s_add_u32 s47, s47, 6144"] if j == 0 else []
                Gs.append("\n".join(g + [f"buffer_load_dwordx4 {ar(dst + (kl*3+j)*4, 4)}, v{VL16}, s[24:27], s47 offen offset:{j*1024} sc1 ; @{tag}"]))
        return Gs
    def kstep(F, O, zero, reads, jobs):
        ms = [f"v_mfma_f32_16x16x32_bf16 {vr(ACC + (nb*3+j)*4, 4)}, {vr(F+nb*4,4)}, {ar(O+j*4,4)}, " + ("0" if zero else vr(ACC + (nb*3+j)*4, 4))
              for nb in range(9) for j in range(3)]
        sl = [[] for _ in range(27)]
        spread(sl, reads, 0, 20); spread(sl, jobs, 0, 27)
        a.e("s_waitcnt lgkmcnt(0)")
        for m, f in zip(ms, sl): emit(a, [m] + f)
        return ms
    team = "v_and_b32 v13, 3, v1\nv_lshlrev_b32 v13, 10, v13\nv_and_b32 v14, 4, v1\nv_add_u32 v13, v13, v14"
    a.e(f"""s_lshl_b32 s3, s2, 7
            s_lshl_b32 s4, s28, 2
            s_add_u32 s70, s3, s4
            s_add_u32 s70, s70, {WS_F}
            s_lshl_b32 s3, s39, 2
            s_add_u32 s3, s3, s30
            s_mul_i32 s37, s3, {8*24576}
            s_mul_i32 s4, s6, 3072
            s_add_u32 s37, s37, s4
            s_mul_i32 s4, s7, 12288
            s_add_u32 s37, s37, s4
            s_mov_b32 s45, 0
            s_cmp_eq_u32 s7, 0
            s_cbranch_scc1 L_noearly
            v_cmp_ne_u32 vcc, s75, v12
            s_cbranch_vccnz L_noearly
            s_mov_b32 s45, 1""")
    for st in range(NX, 4): emit(a, oload(f"o{st}", HEAD[st], 0, 2, 24*st))
    a.label("L_noearly"); a.vm = []
    a.e(f"v_sub_u32 v27, v29, v{VL16}\nv_add_u32 v27, v27, v{VOL}")
    psync()
    stamp(a, "c_bar", opt)
    for qb in range(3): a.e(f"ds_read_b64 v[{8+2*qb}:{9+2*qb}], v31 offset:{qb*256}")
    RC = (32, 48, 64, 112, 128, 144)
    def recv(blk):
        for g in range(4): a.e(f"ds_read_b128 {vr(RC[blk]+4*g,4)}, v29 offset:{xo(blk*4 + g)}")
    recv(0); recv(1)
    SC = 16
    for qb in range(3):
        pn, pl, on, ol = 8 + 2*qb, 9 + 2*qb, 2 + 2*qb, 3 + 2*qb
        a.auto(f"v_min_f32 v22, v{on}, v{pn}")
        a.e(f"""v_sub_f32 v23, v22, v{on}
                v_sub_f32 v24, v22, v{pn}
                v_exp_f32 v23, v23
                v_exp_f32 v24, v24
                v_mul_f32 v{ol}, v{ol}, v23
                v_fmac_f32 v{ol}, v{pl}, v24
                v_rcp_f32 v{ol}, v{ol}
                v_mul_f32 v{SC+2*qb}, v23, v{ol}
                v_mul_f32 v{SC+2*qb+1}, v24, v{ol}""")
    recv(2); recv(3); recv(4); recv(5)
    for blk in range(6):
        i, qb = divmod(blk, 3)
        K = 160 + blk*16; Rr = RC[blk]
        a.wait(lgregs=regs_of(vr(Rr, 16)))
        for r in range(0, 16, 2):
            a.e(f"v_pk_mul_f32 v[{Rr+r}:{Rr+r+1}], v[{Rr+r}:{Rr+r+1}], v[{SC+2*qb}:{SC+2*qb+1}] op_sel:[0,1] op_sel_hi:[1,1]")
        for r in range(0, 16, 2):
            a.e(f"v_pk_fma_f32 v[{K+r}:{K+r+1}], v[{K+r}:{K+r+1}], v[{SC+2*qb}:{SC+2*qb+1}], v[{Rr+r}:{Rr+r+1}] op_sel_hi:[1,0,1]")
        for j in range(8):
            a.e(f"v_cvt_pk_bf16_f32 v{K+8*(j//4)+j%4}, v{K+2*j}, v{K+2*j+1}")
        a.e(f"s_add_u32 s47, s52, {WS_O + (i*6 + 2*qb)*1024}")
        for s in range(2):
            a.e(f"buffer_store_dwordx4 {vr(K+8*s,4)}, v{VOL}, s[24:27], s47 offen offset:{512*s} sc1")
            a.e(f"ds_write_b128 v27, {vr(K+8*s,4)} offset:{xo(i*6 + 2*qb) + 512*s}")
    stamp(a, "comb", opt)
    a.e("v_mov_b32 v14, s75\ns_cmp_eq_u32 s7, 1\ns_cbranch_scc1 L_tailY")
    stT = save(a)
    other_pair("L_yq", 24, 1 + opt.xgate)
    emit(a, wX(0, VO))
    a.e(f"""s_waitcnt vmcnt(18)
            buffer_store_dword v14, v108, s[24:27], s70 offen sc1
            v_add_u32 v3, 8192, v{VL16}
            s_waitcnt lgkmcnt(0)""")
    psync()
    a.e("s_cmp_eq_u32 s6, 1\ns_cbranch_scc1 L_x1")
    sv = save(a)
    for qh in range(2):
        if qh: a.label("L_x1"); load(a, sv)
        for db in range(4):
            for j in range(3): a.e(f"ds_read_b128 {ar(192 + (db*3+j)*4, 4)}, v{3 if db < 2 else VL16} offset:{xo((db % 2)*6 + 3*qh + j)}")
        if qh == 0: a.e("s_branch L_x2")
    a.label("L_x2")
    VOR = 224
    emit(a, vo_calc(VOR, "rev"))
    a.wait(vmtags=["w0"], lg0=True); psync()
    emit(a, wreads(0, 0, WF))
    RS = (192, 0, 48 if NX == 4 else 192, 192)
    wN = lambda st: wX(st, VO if st < NX else VOR)
    xl = lambda st: oload(f"x{st}", HEAD[st], 0, 4, RS[st])
    ask("s71", team)
    for st in range(NX):
        b = BUFOF[st]
        w = wN(1) if st == 0 else []
        if st >= 1: a.wait(vmtags=[f"x{st}"])
        kstep(WF, RS[st], st == 0, wreads(b, 32, WF + 36), w[:9])
        kstep(WF + 36, RS[st] + 12, False, wreads(b, 64, WF), w[9:])
        j = []
        if st == 0:
            check("A"); stamp(a, "chkA", opt)
            for k in range(1, NX):
                if RS[k] != 192: j += xl(k)
        kstep(WF, RS[st] + 24, False, wreads(b, 96, WF + 36), j)
        a.wait(vmtags=[f"w{st+1}"], lg0=True); psync()
        kstep(WF + 36, RS[st] + 36, False, wreads(BUFOF[st + 1], 0, WF) if st + 1 < NX else [], wN(st + 2))
        if st == 0:
            for k in range(1, NX):
                if RS[k] == 192: emit(a, xl(k))
    for st in range(NX, 4): emit(a, oload(f"o{st}", HEAD[st], 0, 2, 24*st))
    a.e("s_waitcnt vmcnt(0)\ns_branch L_join")
    a.label("L_tailY"); load(a, stT)
    a.e("s_cmp_eq_u32 s45, 1\ns_cbranch_scc1 L_hadearly")
    sv = save(a)
    ask("s71", team); check("Y")
    a.vm = list(sv[2])
    for st in range(NX, 4): emit(a, oload(f"o{st}", HEAD[st], 0, 2, 24*st))
    a.label("L_hadearly")
    a.e("s_waitcnt lgkmcnt(0)")
    a.label("L_join"); a.lg = []
    a.e(f"""s_add_u32 s71, s71, 8
            v_add_u32 v220, {SB[2] - SB[1]}, v{AD+1}
            v_add_u32 v221, {SB[3] - SB[1]}, v{AD+1}
            s_mul_i32 s3, s7, -8192
            s_add_u32 s3, s3, {YB + 8192}
            v_add_u32 v2, s3, v{VL16}
            v_mov_b32 v15, s75
            s_barrier""")
    stamp(a, "join", opt)
    emit(a, wreads(BUFOF[NX], 0, WF))
    a.e("s_cmp_eq_u32 s6, 1\ns_cbranch_scc1 L_own1")
    sv = save(a)
    for qh in range(2):
        if qh: a.label("L_own1"); load(a, sv)
        for kl in range(2):
            for j in range(3): a.e(f"ds_read_b128 {ar(96 + (kl*3+j)*4, 4)}, v2 offset:{xo(kl*6 + 3*qh + j)}")
        if qh == 0: a.e("s_branch L_own2")
    a.label("L_own2")
    a.wait(vmtags=[f"o{NX}"])
    a.e("s_cmp_eq_u32 s7, 1\ns_cbranch_scc1 L_fy")
    sv = save(a)
    kstep(WF, 24*NX, False, wreads(BUFOF[NX], 32, WF + 36), wS(NX + 2))
    a.e("s_branch L_fx")
    a.label("L_fy"); load(a, sv)
    kstep(WF, 24*NX, True, wreads(BUFOF[NX], 32, WF + 36), wS(NX + 2))
    a.e("s_waitcnt vmcnt(9)\nbuffer_store_dword v15, v108, s[24:27], s70 offen sc1 ; @junk")
    a.label("L_fx"); a.vm = [o for o in a.vm if o.tag == f"w{NX+2}"]
    A = max(NX, min(opt.askat, 4))
    oy = lambda k: oload(f"o{k}", HEAD[k], 0, 2, 24*k)
    plan = {}
    for k in range(NX + 4, 8): plan.setdefault((k - 4, 1) if k - 4 > NX else (NX + 1, 0), []).append(wS(k))
    plan.setdefault((NX, 1), []).append(wS(NX + 3))
    if A <= 3:
        for i, k in enumerate((5, 6, 7)): plan.setdefault((A + (i + 1) // 2, (i + 1) % 2), []).insert(0, oy(k))
    job = lambda st, kl: [x for y in plan.get((st, kl), []) for x in y]
    for st in range(NX, 8):
        stamp(a, f"s{st}", opt)
        if st > NX:
            if st == A: ask("s71", team)
            if st >= 5: a.wait(vmtags=[f"o{st}"])
            kstep(WF, 24*st, False, wreads(BUFOF[st], 32, WF + 36), job(st, 0))
        elif st == A: ask("s71", team)
        if st == A and A <= 3: check("B"); stamp(a, "chk1", opt)
        if st < 7:
            a.wait(vmtags=[f"w{st+1}"], lg0=True); a.e("s_barrier")
            kstep(WF + 36, 24*st + 12, False, wreads(BUFOF[st + 1], 0, WF), job(st, 1))
        if st == A and A == 4:
            check("B"); stamp(a, "chk1", opt); emit(a, oy(5) + oy(6) + oy(7))
    a.e(f"""s_lshl_b32 s3, s28, 14
            v_add_u32 v13, s3, v{VL16}
            v_xor_b32 v14, 32768, v13
            s_lshl_b32 s52, s39, 2
            s_add_u32 s52, s52, s32
            s_lshl_b32 s53, s52, 2
            s_add_u32 s53, s53, s30
            s_mul_i32 s53, s53, 36864
            s_mul_i32 s3, s28, 9216
            s_add_u32 s53, s53, s3
            s_add_u32 s47, s53, {WS_P}
            s_waitcnt lgkmcnt(0)
            s_barrier""")
    F, O = WF + 36, 180
    T = lambda nb, j: ACC + (nb*3+j)*4
    ms = [f"v_mfma_f32_16x16x32_bf16 {vr(T(nb,j), 4)}, {vr(F+nb*4,4)}, {ar(O+j*4,4)}, {vr(T(nb,j), 4)}" for nb in (8, 7, 6, 5, 4, 0, 1, 2, 3) for j in range(3)]
    snd = [f"ds_write_b128 v13, {vr(T(nb,j),4)} offset:{((8-nb)*3+j)*1024}" for nb in range(8, 3, -1) for j in range(3)]
    emit(a, ms[:6])
    for k in range(15): emit(a, [ms[6 + k], snd[k]])
    emit(a, ms[21:])
    stamp(a, "gend", opt)
    a.e("s_waitcnt lgkmcnt(0)\ns_barrier")
    order = [(k, j) for k in range(3) for j in range(3)]
    for k, j in order:
        for nb in range(2*k, min(2*k + 2, 5)): a.e(f"ds_read_b128 {vr(WF + (nb*3+j)*4, 4)}, v14 offset:{(nb*3+j)*1024}")
    for k, j in order:
        r = T(2*k, j)
        for h, nb in enumerate(range(2*k, min(2*k + 2, 5))):
            t, q = T(nb, j), WF + (nb*3+j)*4
            a.wait(lgregs=regs_of(vr(q, 4)))
            a.e(f"v_pk_add_f32 v[{t}:{t+1}], v[{t}:{t+1}], v[{q}:{q+1}]\nv_pk_add_f32 v[{t+2}:{t+3}], v[{t+2}:{t+3}], v[{q+2}:{q+3}]")
            a.e(f"v_cvt_pk_bf16_f32 v{r+2*h}, v{t}, v{t+1}\nv_cvt_pk_bf16_f32 v{r+2*h+1}, v{t+2}, v{t+3}")
        if k < 2: a.e(f"buffer_store_dwordx4 {vr(r,4)}, v{VL16}, s[24:27], s47 offen offset:{j*1024} sc1")
        else: a.e(f"buffer_store_dwordx2 {vr(r,2)}, v{VL16}, s[24:27], s47 offen offset:{j*1024} sc1")
        if j == 2 and k < 2: a.e("s_add_u32 s47, s47, 3072")
    a.e(f"""s_add_u32 s70, s70, 32768
            s_andn2_b32 s71, s2, 3
            s_lshl_b32 s71, s71, 7
            s_add_u32 s71, s71, 32768
            v_and_b32 v10, 15, v1
            v_mul_u32_u24 v10, 2304, v10
            v_lshrrev_b32 v11, 4, v1
            v_lshl_add_u32 v10, v11, 3, v10
            s_mul_i32 s52, s52, {4*36864}
            s_add_u32 s52, s52, {WS_P}
            s_mul_i32 s53, s31, {96*2304}
            s_mul_i32 s3, s29, 1152
            s_add_u32 s53, s53, s3
            s_mul_i32 s3, s32, 288
            s_add_u32 s53, s53, s3
            s_lshl_b32 s54, s30, 2
            s_add_u32 s54, s54, s28""")
    srd(a, 8, "s78", "s79", 1769472)
    def decode(i):
        A, B, C = 56 + 4*i, 57 + 4*i, 58 + 4*i
        a.e(f"""s_add_u32 s3, s54, {16*i}
                s_mul_i32 s4, s3, 43
                s_lshr_b32 s4, s4, 8
                s_mul_i32 s5, s4, 6
                s_sub_u32 s3, s3, s5            ; q16
                s_mul_i32 s{B}, s3, {16*2304}
                s_add_u32 s{B}, s{B}, s53
                s_cmp_ge_u32 s3, 3
                s_cselect_b32 s5, {9216 - 3072}, 0
                s_lshl_b32 s3, s3, 10
                s_add_u32 s{A}, s3, s5          ; qh * 9216 + j * 1024
                s_add_u32 s{A}, s{A}, s52
                s_and_b32 s3, s4, 1
                s_cmp_eq_u32 s4, 4
                s_cselect_b32 s3, 2, s3         ; k
                s_cselect_b32 s{C}, 0, 32
                s_mul_i32 s5, s3, 3072
                s_add_u32 s{A}, s{A}, s5
                s_lshl_b32 s3, s3, 6
                s_and_b32 s4, s4, 2
                s_cmp_eq_u32 s4, 2
                s_cselect_b32 s5, 18432, 0
                s_add_u32 s{A}, s{A}, s5
                s_cmp_eq_u32 s4, 2
                s_cselect_b32 s{C}, -32, s{C}
                s_sub_u32 s5, 256, s3
                s_cmp_eq_u32 s4, 2
                s_cselect_b32 s3, s5, s3
                s_add_u32 s{B}, s{B}, s3""")
    decode(0); decode(1)
    a.e("s_waitcnt vmcnt(0)\nbuffer_store_dword v15, v108, s[24:27], s70 offen sc1")
    stamp(a, "pub2", opt)
    ask("s71", "v_and_b32 v13, 3, v1\nv_lshlrev_b32 v13, 7, v13\nv_and_b32 v14, 12, v1\nv_add_u32 v13, v13, v14"); check(2)
    stamp(a, "chk2", opt)
    def loads(i):
        for o in range(4):
            a.e(f"buffer_load_dwordx4 {vr(16+16*i+4*o,4)}, v{VL16}, s[24:27], s{56+4*i} offen sc1")
            if o < 3: a.e(f"s_add_u32 s{56+4*i}, s{56+4*i}, 36864")
    def fin(i, left):
        b, D = 16 + 16*i, 112 + 16*i
        for o in range(4):
            a.e(f"s_waitcnt vmcnt({left + 3 - o})")
            for k in range(4):
                r = b + 4*o + k
                if o == 0: a.e(f"v_lshlrev_b32 v{D+2*k}, 16, v{r}\nv_and_b32 v{D+2*k+1}, 0xffff0000, v{r}")
                else: a.e(f"v_lshlrev_b32 v{D+8}, 16, v{r}\nv_and_b32 v{r}, 0xffff0000, v{r}\nv_add_f32 v{D+2*k}, v{D+2*k}, v{D+8}\nv_add_f32 v{D+2*k+1}, v{D+2*k+1}, v{r}")
        for k in range(4): a.e(f"v_cvt_pk_bf16_f32 v{D+k}, v{D+2*k}, v{D+2*k+1}")
        a.e(f"""buffer_store_dwordx2 v[{D}:{D+1}], v10, s[8:11], s{57+4*i} offen{opt.opol}
                s_add_u32 s{57+4*i}, s{57+4*i}, s{58+4*i}""")
        if i == 1: a.e("s_cmp_eq_u32 s62, 0\ns_cbranch_scc1 L_rd2")
        a.e(f"buffer_store_dwordx2 v[{D+2}:{D+3}], v10, s[8:11], s{57+4*i} offen{opt.opol}")
    loads(0)
    a.e("s_cmp_ge_u32 s54, 14\ns_cbranch_scc1 L_rd1")
    sv = save(a)
    loads(1); fin(0, 4); fin(1, 2)
    a.e("s_branch L_rd2")
    a.label("L_rd1"); load(a, sv)
    fin(0, 0)
    a.label("L_rd2")
    stamp(a, "end", opt)
    if opt.stamps:
        a.e(f"s_lshl_b32 s3, s2, 2\ns_add_u32 s3, s3, s28\ns_lshl_b32 s3, s3, 7\ns_add_u32 s3, s3, {WS_STAMP}\nv_mov_b32 v0, 0")
        for i in range(1 + len(opt.sset)):
            a.e(f"v_mov_b32 v2, s{STB+2*i}\nv_mov_b32 v3, s{STB+1+2*i}\nbuffer_store_dwordx2 v[2:3], v0, s[24:27], s3 offen offset:{8*i}\ns_waitcnt vmcnt(0)")
    a.label("L_done")
    a.e("s_endpgm")
    for qb in range(3): rare(a, qb)
    a.label("L_hold", reset=True)
    a.e("s_mov_b32 s47, 0x400000")
    a.label("L_hold1")
    a.e("""s_sleep 4
           ds_read_b64 v[30:31], v26
           s_sub_u32 s47, s47, 1
           s_waitcnt lgkmcnt(0)
           v_min_u32 v30, v30, v31
           v_readfirstlane_b32 s3, v30
           s_lshl_b32 s3, s3, 4
           s_cmp_eq_u32 s47, 0
           s_cselect_b32 s3, s38, s3
           s_cmp_lt_i32 s3, s38
           s_cbranch_scc1 L_hold1
           s_setpc_b64 s[40:41]""")

def build(opt):
    a = Asm()
    a.raw("; @launch grid=(256,1,1) block=(256,1,1) lds=163840")
    a.raw('.amdgcn_target "amdgcn-amd-amdhsa--gfx950"')
    kernel(a, NAME + "_kernel", opt)
    a.raw('.section .rodata,"a"\n.p2align 6')
    a.raw("\n".join([f".amdhsa_kernel {NAME}_kernel", "  .amdhsa_next_free_vgpr 512", "  .amdhsa_next_free_sgpr 102",
        "  .amdhsa_accum_offset 256", "  .amdhsa_group_segment_fixed_size 0", "  .amdhsa_kernarg_size 104",
        "  .amdhsa_user_sgpr_count 2", "  .amdhsa_user_sgpr_kernarg_segment_ptr 1",
        "  .amdhsa_system_sgpr_workgroup_id_x 1", ".end_amdhsa_kernel"]))
    return a.text(), a

if __name__ == "__main__":
    opt = Opt()
    out = sys.argv[1] if len(sys.argv) > 1 else "k.s"
    for kv in sys.argv[2:]:
        k, v = kv.split("=", 1); assert hasattr(opt, k), k
        setattr(opt, k, eval(v))
    t, a = build(opt)
    open(out, "w").write(t)
    print(out, "lines", t.count("\n"), "pad", a.npad)
```

```python
import sys, struct, math
sys.path.insert(0, "dev")
from asmlib import Asm, spread, regs_of, level_fill
import gen5
from gen5 import (NAME, f2u, CSC, THR_LOG2, WS_BYTES, WS_O, WS_P, WS_F, WS_STAMP, STB, vr, ar, srd, stamp, emit,
                  VOFFK, VOFFV, VKA, VVA, LSUM, TMAX, VT, NM, S0, Q0, KF, VF, Sreg, Qreg, Oacc, softmax, qk, pv, rare)

class Opt:
    wp = "pppp"
    noB = False
    stamps = False
    sset = ['q0', 'k0', 't15', 'comb', 'join', 'chk1', 'gend', 'pub2', 'end']
    thr0 = 0.0
    thr1 = 1.25
    clk = "s_memrealtime"
    rot = True
    krot = 5
    qlev = True
    pbf16 = True
    k1early = False
    wot = None
    wotnt = None
    tlb = 1
    nx = 1
    accearly = True
    cap = (7, 6)
    capend = 30
    hold = False
    xgate = 0
    last = (0, 0)
    ylast = 1
    kvsame = False
    unroll = False
    a0at = 2
    opol = ''
    late = 2
    prio = 0
    gate = 12
    pace = 1.0
    d1 = (8, 10, 12, 14, 22, 24, 26, 27)
    d2 = (29, 31, 33, 35, 37, 39, 44, 47)
    dcost = 4.0
    acct = 0
    w0 = 10
    askat = 3
    fewwait = True
    vwin = (16, 22)
    kwin = (40, 44)
    tpol = ''
    wopol = ''

SLOT = 16384
STG = lambda i: 45056 + 28672 * i
TOP = 159744
SB = (122880, 0, 86016, 49152)
NS = 3
YB = 49152

def dma_unit(u, opt):
    kind = "KV"[u % 2]; sreg = "s36" if kind == "K" else "s35"
    srdn = "s[8:11]" if kind == "K" else "s[12:15]"
    G = []
    for j in range(8):
        g = []
        if j == 0: g += [f"s_add_u32 m0, s37, {(u % NS) * SLOT}", f"s_add_u32 s51, s34, {sreg}"]
        if j == 1 and not opt.kvsame: g += [f"s_add_u32 {sreg}, {sreg}, 16384", f"s_and_b32 {sreg}, {sreg}, 0x3ffff"]
        if j == 4: g += [f"s_add_u32 m0, s37, {(u % NS) * SLOT + 4096}", "s_add_u32 s51, s51, 4096"]
        vo = VOFFK + j % 4 if kind == "K" else VOFFV
        if opt.cap and 3 <= u <= opt.capend:
            cx, cy = opt.cap
            cx, cy = (c if isinstance(c, int) else c[j % len(c)] for c in (cx, cy))
            dma_unit.n += 1; n = dma_unit.n
            g += ["s_cmp_eq_u32 s50, 0", f"s_cbranch_scc1 L_cap{n}", f"RAW s_waitcnt vmcnt({cx - 1})"]
            if cy < cx: g += ["RAW s_cmp_eq_u32 s50, 1", f"RAW s_cbranch_scc1 L_cap{n}", f"RAW s_waitcnt vmcnt({cy - 1})"]
            g += [f"LABEL L_cap{n}"]
        g.append(f"buffer_load_dwordx4 v{vo}, {srdn}, s51 offen offset:{(j % 4)*1024} nt lds ; @u{u}")
        G.append("\n".join(g))
    return G
dma_unit.n = 0
def kreads(t): return [f"ds_read_b128 {ar(KF+4*s,4)}, v{VKA+s} offset:{((2*t) % NS) * SLOT}" for s in range(8)]
def vreads(t):
    return [f"ds_read_b64_tr_b16 {ar(VF + db*8 + s*4 + k*2, 2)}, v{VVA+db} offset:{((2*t+1) % NS)*SLOT + 4096*s + 2048*k}"
            for s in range(2) for db in range(4) for k in range(2)]
def tile_body(a, opt, t, carry, extra=()):
    first = t == 0
    M = qk(0, first) + (pv(2, t == 1) if t else [None]*8) + qk(1, first) + pv(0, first) + qk(2, first) + pv(1, first)
    W = opt.w0
    sl = [[] for _ in range(48 + W)]
    def at(G, slots):
        for g, k in zip(G, slots): sl[k].append(g)
    if 2*t + NS <= 31: at(dma_unit(2*t + NS, opt), opt.d1)
    spread(sl, [f"WAITVM u{2*t+1}"] + vreads(t), *opt.vwin)
    if 2*t + NS + 1 <= 31: at(dma_unit(2*t + NS + 1, opt), opt.d2)
    if t < 15: spread(sl, [f"WAITVM u{2*t+2}"] + kreads(t + 1), *opt.kwin)
    if t == 14 and opt.xgate: sl[30].append('v_mov_b32 v27, 2\nds_write_b32 v109, v27 offset:16')
    if opt.hold or t == 0: sl[46].append("s_add_u32 s45, s45, 1\nv_mov_b32 v27, s45\nds_write_b32 v109, v27 offset:16")
    if 1 <= t <= 14 and opt.hold:
        sl[44].append("ds_read_b64 v[30:31], v26")
        sl[47].append(f"""AUTO v_min_u32 v30, v30, v31
s_add_u32 s38, s38, s50
s_min_i32 s38, s38, 256
v_readfirstlane_b32 s3, v30
s_lshl_b32 s3, s3, 4
s_cmp_ge_i32 s3, s38
s_cbranch_scc1 L_go{t}
s_call_b64 s[40:41], L_hold
LABEL L_go{t}""")
    for e in extra: spread(sl, *e)
    for i, x in enumerate(carry): sl[i] = x + sl[i]
    ghost = {48 + k: "buffer_x\ns_nop 0\ns_nop 0" for k in opt.d1 if k < W}
    for k, g in ghost.items(): sl[k].append(g)
    level_fill(sl, softmax(0, t, first), W, W + 16, opt.dcost)
    level_fill(sl, softmax(1, t, first), W + 16, W + 32, opt.dcost)
    level_fill(sl, softmax(2, t, first), W + 32, W + 48, opt.dcost)
    for k in ghost: sl[k] = sl[k][1:]
    for i in range(48):
        if opt.fewwait:
            if i == 0: a.wait(lgregs=regs_of(ar(KF, 32)))
            if i == 24: a.wait(lgregs=regs_of(ar(VF, 32)))
        if M[i]: emit(a, [M[i]])
        for x in sl[i]:
            if opt.acct and x.startswith("WAITVM"):
                keep = list(a.lg)
                a.e("s_memtime s[94:95]"); emit(a, [x]); a.e("s_memtime s[96:97]\ns_waitcnt lgkmcnt(0)\ns_sub_u32 s96, s96, s94")
                r = 98 if int(x.split("u")[1]) % 2 else 100
                a.e(f"s_add_u32 s{r}, s{r}, s96")
            elif opt.acct == 2 and "lds ;" in x:
                a.e("s_memtime s[94:95]"); emit(a, [x]); a.e("s_memtime s[96:97]\ns_waitcnt lgkmcnt(0)\ns_sub_u32 s96, s96, s94\ns_add_u32 s92, s92, s96")
            else: emit(a, [x])
    return sl[48:]

def save(a): return (list(a.hist), list(a.lg), list(a.vm))
def load(a, st): a.hist, a.lg, a.vm = (list(x) for x in st)

def kernel(a, name, opt):
    a.raw(".text"); a.raw(f".globl {name}"); a.raw(".p2align 8"); a.raw(f".type {name},@function")
    a.label(name, reset=True)
    a.e("""s_load_dwordx8 s[56:63], s[0:1], 0
           s_load_dwordx8 s[64:71], s[0:1], 40
           s_load_dwordx2 s[72:73], s[0:1], 96
           s_load_dwordx2 s[40:41], s[0:1], 32
           s_load_dwordx2 s[42:43], s[0:1], 72
           s_load_dwordx4 s[44:47], s[0:1], 80
           s_memrealtime s[48:49]
           s_cmp_ge_u32 s2, 256
           s_cbranch_scc1 L_done""")
    if opt.stamps: a.e(f"{opt.clk} s[{STB}:{STB+1}]")
    VW, VXA, VXB, AW, AX, VD = 72, 73, 74, 76, 64, 111
    G, L15, H, L31, G1, R, C4 = 88, 89, 90, 91, 92, 81, 82
    VFO, VFP = 109, 110
    a.e(f"""v_lshrrev_b32 v1, 6, v0
            s_and_b32 s3, s2, 7
            s_lshr_b32 s29, s3, 2
            s_and_b32 s30, s3, 3
            v_readfirstlane_b32 s28, v1
            s_lshr_b32 s3, s2, 3
            s_lshr_b32 s31, s3, 2
            s_and_b32 s32, s3, 3
            v_and_b32 v1, 63, v0
            v_lshrrev_b32 v{G}, 4, v1
            v_and_b32 v{L15}, 15, v1
            v_lshrrev_b32 v56, 3, v1
            v_and_b32 v57, 7, v1
            v_and_b32 v{G1}, 1, v{G}
            v_lshlrev_b32 v59, 2, v{G1}
            v_xor_b32 v59, v57, v59
            v_lshlrev_b32 v59, 4, v59
            v_lshl_add_u32 v{VW}, v56, 13, v59
            v_mul_u32_u24 v60, 1152, v56
            v_xor_b32 v61, v57, v{G}
            s_and_b32 s6, s28, 1
            s_lshr_b32 s7, s28, 1
            s_lshl_b32 s3, s6, 2
            v_xor_b32 v61, s3, v61
            v_lshl_add_u32 v{VXA}, v61, 4, v60
            v_xor_b32 v61, 4, v61
            v_lshl_add_u32 v{VXB}, v61, 4, v60
            s_mul_i32 s37, s7, {YB}
            s_lshl_b32 s3, s6, 13
            s_add_u32 s37, s37, s3
            s_lshl_b32 s33, s30, 3
            s_lshl_b32 s3, s32, 1
            s_add_u32 s33, s33, s3              ; head X
            s_add_u32 s74, s3, s31              ; b + 2p
            s_lshl_b32 s52, s33, 8
            s_lshl_b32 s3, s28, 7
            s_add_u32 s52, s52, s3
            s_mul_i32 s53, s31, 110592
            s_mul_i32 s3, s28, 27648
            s_add_u32 s53, s53, s3              ; x rows 24w..
            s_mul_i32 s55, s28, 3072
            s_mov_b32 s18, 884736
            s_mov_b32 s19, 0x20000
            s_mov_b32 s22, 4718592
            s_mov_b32 s23, 0x20000""")
    if opt.krot == 0: a.e("s_mov_b32 s74, 0")
    elif opt.krot == 1: a.e("s_cmp_ge_u32 s74, 9\ns_cselect_b32 s3, 9, 0\ns_sub_u32 s74, s74, s3")
    elif opt.krot == 3: a.e("s_and_b32 s74, s74, 1\ns_lshl_b32 s74, s74, 2")
    elif opt.krot == 2: a.e("s_add_u32 s74, s31, s32\ns_mul_i32 s3, s74, 86\ns_lshr_b32 s3, s3, 8\ns_mul_i32 s3, s3, 3\ns_sub_u32 s74, s74, s3\ns_mul_i32 s74, s74, 3")
    elif opt.krot == 4: a.e("s_add_u32 s74, s31, s32\ns_and_b32 s74, s74, 3\ns_mul_i32 s74, s74, 9\ns_lshr_b32 s74, s74, 2")
    elif opt.krot == 5: a.e("s_add_u32 s74, s31, s32\ns_and_b32 s74, s74, 1\ns_lshl_b32 s74, s74, 2")
    a.e("s_cmp_eq_u32 s29, 0\ns_waitcnt lgkmcnt(0)")
    for d, o in ((20, 6), (16, 0), (8, 2), (12, 4)):
        a.e(f"s_cselect_b32 s{d}, s{56+o}, s{64+o}\ns_cselect_b32 s{d+1}, s{57+o}, s{65+o}")
    a.e("""s_cselect_b32 s76, s40, s42
           s_cselect_b32 s77, s41, s43
           s_mov_b64 s[78:79], s[44:45]
           s_mov_b64 s[80:81], s[46:47]
           s_or_b32 s75, s48, 1""")
    P = lambda ch: " nt" if ch == "n" else ""
    XS = 98304
    VW4, VX3 = 32, 36
    a.e(f"""v_mov_b32 v{VW4}, v{VW}
            v_add_u32 v{VW4+1}, {65536 - 1024}, v{VW}
            v_add_u32 v{VW4+2}, {2*(65536 - 1024)}, v{VW}
            v_add_u32 v{VW4+3}, {3*(65536 - 1024)}, v{VW}
            v_mov_b32 v{VX3}, v{VXA}
            v_add_u32 v{VX3+1}, {9216 - 1024}, v{VXB}
            v_add_u32 v{VX3+2}, {2*(9216 - 1024)}, v{VXA}
            s_lshl_b32 s4, s74, 19
            s_add_u32 s4, s4, s52
            s_lshl_b32 s5, s74, 7
            s_add_u32 s5, s5, s53
            s_sub_u32 s74, 9, s74""")
    def stage(c):
        buf = c % 3; Gs = []
        for j in range(8):
            g = [f"s_add_u32 m0, s37, {buf*SLOT}", "s_nop 0"] if j == 0 else [f"s_add_u32 m0, s37, {buf*SLOT + 4096}", "s_add_u32 s4, s4, 262144"] if j == 4 else []
            Gs.append("\n".join(g + [f"buffer_load_dwordx4 v{VW4 + j % 4}, s[20:23], s4 offen offset:{(j % 4)*1024}{P(opt.wp[0])} lds ; @s{c}"]))
        for i in range(3):
            g = [f"s_add_u32 m0, s55, {XS + buf*12288}", "s_add_u32 s4, s4, 262144"] if i == 0 else []
            g += [f"buffer_load_dwordx4 v{VX3 + i}, s[16:19], s5 offen offset:{i*1024}{P(opt.wp[1])} lds ; @s{c}"]
            if i == 2: g += ["s_add_u32 s5, s5, 128", "s_sub_u32 s74, s74, 1", f"s_cbranch_scc0 L_nw{c}", ]
            Gs.append("\n".join(g))
        Gs[-1] = Gs[-1].replace(f"s_sub_u32 s74, s74, 1\ns_cbranch_scc0 L_nw{c}", f"s_sub_u32 s74, s74, 1\ns_cmp_lg_u32 s74, 0\ns_cbranch_scc1 L_nw{c}\nRAW s_mov_b32 s4, s52\nRAW s_mov_b32 s5, s53\nLABEL L_nw{c}")
        return Gs
    stamp(a, 'ka', opt)
    wtouch = [x.strip() for x in """s_lshr_b32 s3, s2, 3
            s_lshl_b32 s3, s3, 2
            s_add_u32 s3, s3, s28
            s_mul_i32 s3, s3, 9216
            s_mul_i32 s47, s30, 1179648
            v_lshlrev_b32 v24, 7, v1
            v_add_u32 v24, s3, v24
            v_add_u32 v25, 8192, v24
            v_cmp_gt_u32 s[70:71], 8, v1
            v_cndmask_b32 v25, -1, v25, s[70:71]""".split("\n")]
    wtouch = ["\n".join(wtouch + ["buffer_load_dword v23, v24, s[60:63], s47 offen ; @junk"]), "s_mul_i32 s47, s30, 1179648\nbuffer_load_dword v23, v25, s[60:63], s47 offen ; @junk"]
    if opt.wot is not None: srd(a, 60, "s76", "s77", 4718592)
    if opt.wot == 'a': emit(a, wtouch)
    emit(a, stage(0))
    if opt.wot == 'b': emit(a, wtouch)
    stamp(a, 'i0', opt)
    srd(a, 56, "s80", "s81", 256)
    a.e("""s_lshl_b32 s3, s2, 8
           v_add_u32 v106, s3, v0
           v_min_u32 v106, 1, v106
           v_lshlrev_b32 v106, 12, v106
           v_mov_b32 v107, s75
           buffer_store_dword v107, v106, s[56:59], 0 offen sc1""")
    emit(a, stage(1))
    if opt.wot == 'c': emit(a, wtouch)
    for d in (8, 12): a.e(f"s_mov_b32 s{d+2}, {1 << 26}\ns_mov_b32 s{d+3}, 0x20000")
    srd(a, 24, "s72", "s73", WS_BYTES)
    srd(a, 60, "s76", "s77", 4718592)
    a.e(f"""v_lshrrev_b32 v{H}, 5, v1
            v_and_b32 v{L31}, 31, v1
            v_lshrrev_b32 v{R}, 2, v{L15}
            v_and_b32 v{C4}, 3, v1
            v_lshl_add_u32 v59, v{H}, 3, v{R}
            v_lshlrev_b32 v59, 7, v59
            v_lshrrev_b32 v60, 1, v{R}
            v_lshl_add_u32 v59, v60, 6, v59
            v_lshl_add_u32 v59, v{G1}, 5, v59
            v_lshl_add_u32 v59, v{C4}, 3, v59
            v_add_u32 v{AW}, s37, v59
            v_xor_b32 v{AW+1}, 64, v{AW}
            v_bfe_u32 v60, v1, 1, 3
            v_xor_b32 v60, v60, v{H}
            v_lshlrev_b32 v60, 4, v60
            v_lshl_add_u32 v60, v{L31}, 7, v60
            v_add_u32 v{AX}, {XS}, v60""")
    for s in range(1, 4): a.e(f"v_xor_b32 v{AX+s}, {32*s}, v{AX}")
    a.e(f"""s_lshl_b32 s3, s28, 2
            s_add_u32 s3, s3, {TOP + 3072}
            v_mov_b32 v{VFO}, s3
            v_xor_b32 v{VFP}, 4, v{VFO}
            v_mov_b32 v61, 0
            ds_write_b32 v{VFO}, v61
            ds_write_b32 v{VFO}, v61 offset:16
            s_mov_b32 s44, 0
            s_mov_b32 s45, 0""")
    def frag_reads(c, s, F):
        buf = c % 3
        L = [f"ds_read_b64_tr_b16 {vr(F + db*4 + k*2, 2)}, v{AW+db} offset:{buf*SLOT + (16*s + 4*k) * 128}" for db in range(2) for k in range(2)]
        return L + [f"ds_read_b128 {vr(F + 8 + qb*4, 4)}, v{AX+s} offset:{buf*12288 + qb*4096}" for qb in range(3)]
    setup = f"""v_lshlrev_b32 v26, 8, v{G}
            v_xor_b32 v27, v{L15}, v{G}
            v_lshl_add_u32 v{VOFFK}, v27, 4, v26
            v_xor_b32 v{VOFFK+1}, 64, v{VOFFK}
            v_xor_b32 v{VOFFK+2}, 128, v{VOFFK}
            v_xor_b32 v{VOFFK+3}, 192, v{VOFFK}
            v_lshlrev_b32 v27, 2, v{G}
            v_xor_b32 v27, v{L15}, v27
            v_lshl_add_u32 v{VOFFV}, v27, 4, v26
            s_lshl_b32 s3, s6, 13
            s_add_u32 s33, s33, s7
            s_lshl_b32 s34, s31, 5
            s_add_u32 s34, s34, s33
            s_lshl_b32 s34, s34, 18
            s_add_u32 s34, s34, s3"""
    if opt.rot:
        setup += """
            s_lshl_b32 s3, s2, 2
            s_add_u32 s3, s3, s7
            s_mul_i32 s3, s3, 0x1e3779b1
            s_lshr_b32 s47, s3, 15
            s_xor_b32 s3, s3, s47
            s_mul_i32 s3, s3, 0x2c1b3c6d
            s_lshr_b32 s3, s3, 20
            s_and_b32 s3, s3, 15
            s_lshl_b32 s35, s3, 14"""
    else: setup += "\ns_mov_b32 s35, 0"
    setup += f"""
            s_mov_b32 s36, s35
            v_xor_b32 v27, v{H}, v{L15}
            v_lshlrev_b32 v27, 4, v27
            v_lshl_add_u32 v27, v{L31}, 8, v27
            v_add_u32 v{VKA}, s37, v27"""
    for s in range(1, 8): setup += f"\nv_xor_b32 v{VKA+s}, {32*s}, v{VKA}"
    setup += f"""
            v_lshl_add_u32 v28, v{H}, 2, v{R}
            v_lshlrev_b32 v28, 8, v28
            v_lshl_add_u32 v28, v{R}, 6, v28
            v_lshl_add_u32 v28, v{G1}, 5, v28
            v_lshl_add_u32 v28, v{C4}, 3, v28
            s_lshl_b32 s47, s6, 7
            v_xor_b32 v28, s47, v28
            v_add_u32 v{VVA}, s37, v28"""
    for db in range(1, 4): setup += f"\nv_xor_b32 v{VVA+db}, {64*db}, v{VVA}"
    setup += f"\ns_mov_b32 s42, {f2u(CSC):#x}\ns_mov_b32 s43, {f2u(THR_LOG2):#x}"
    for qb in range(3): setup += f"\nv_mov_b32 v{LSUM+qb}, 0"
    setup = [x.strip() for x in setup.split("\n")]
    VO, VL16, AD, VOL = 93, 102, 103, 107
    def vo_calc(dst, rev):
        L = []
        for i in range(9):
            L += [f"v_add_u32 v80, {64*i}, v1", "v_mul_u32_u24 v28, 58255, v80", "v_lshrrev_b32 v28, 20, v28", "v_mul_u32_u24 v83, 18, v28",
                  "v_sub_u32 v83, v80, v83", "v_xor_b32 v29, 1, v83", "v_sub_u32 v29, 17, v29"]
            if rev == "vcc": L += ["v_cndmask_b32 v29, v83, v29, s[70:71]"]
            L += ["v_mul_u32_u24 v28, 1152, v28", f"v_lshl_add_u32 v{dst+i}, v29, 4, v28"]
        return L
    setup2 = ["s_cmp_eq_u32 s7, 1\ns_cselect_b64 s[70:71], -1, 0"] + vo_calc(VO, "vcc") + [x.strip() for x in f"""v_lshlrev_b32 v{VL16}, 4, v1
            v_lshlrev_b32 v80, 4, v{H}
            v_lshl_add_u32 v80, v{G1}, 2, v80
            v_add_u32 v80, v80, v{R}
            v_mul_u32_u24 v80, 288, v80
            v_lshl_add_u32 v80, v{C4}, 3, v80
            s_mul_i32 s3, s7, 18432
            v_add_u32 v{AD+1}, s3, v80
            v_add_u32 v{AD}, {SB[0]}, v{AD+1}
            v_lshlrev_b32 v{VOL}, 10, v{G1}
            v_lshl_add_u32 v{VOL}, v{H}, 8, v{VOL}
            v_lshl_add_u32 v{VOL}, v{L15}, 4, v{VOL}
            v_mov_b32 v108, 0
            s_mul_i32 s67, s30, 1179648
            s_mul_i32 s3, s32, 288
            s_add_u32 s64, s67, s3              ; wo: rows of the octet, columns 144p..
            s_lshl_b32 s39, s29, 3
            s_add_u32 s39, s39, s31""".split("\n")]
    setW = ["s_lshl_b32 s66, s32, 1", "s_mul_i32 s65, s28, 9216", f"s_mul_i32 s68, s28, {32*1152}", "s_add_u32 s68, s68, s64"]
    def psync(pre_wait=True):
        psync.n += 1; n = psync.n
        a.e(f"""s_add_u32 s44, s44, 1
                v_mov_b32 v{VD}, s44
                ds_write_b32 v{VFO}, v{VD}
                s_mov_b32 s47, 0x400000""")
        a.label(f"L_ps{n}")
        a.e(f"""ds_read_b32 v{VD}, v{VFP}
                s_sub_u32 s47, s47, 1
                s_waitcnt lgkmcnt(0)
                v_readfirstlane_b32 s3, v{VD}
                s_cmp_eq_u32 s47, 0
                s_cselect_b32 s3, s44, s3
                s_cmp_lt_u32 s3, s44
                s_cbranch_scc1 L_ps{n}""")
    psync.n = 0
    def other_pair(name, word, val, T=84):
        a.e(f"v_mov_b32 v{T+2}, {TOP + 3072 + word}\ns_mov_b32 s47, 0x400000")
        a.label(name)
        a.e(f"""s_sleep 2
                ds_read_b64 v[{T}:{T+1}], v{T+2}
                s_sub_u32 s47, s47, 1
                s_waitcnt lgkmcnt(0)
                v_min_u32 v{T}, v{T}, v{T+1}
                v_readfirstlane_b32 s3, v{T}
                s_cmp_eq_u32 s47, 0
                s_cselect_b32 s3, {val}, s3
                s_cmp_lt_u32 s3, {val}
                s_cbranch_scc1 {name}""")

    ACC = 112
    def qwrite(blocks, dreg, area, extra=()):
        a.e(f"""v_xor_b32 v55, {dreg}, v{L15}
                v_lshlrev_b32 v55, 4, v55
                v_lshl_add_u32 v55, v{L31}, 8, v55
                v_lshl_add_u32 v55, v{H}, 3, v55
                v_add_u32 v55, {area}, v55
                v_mov_b32 v62, s42""")
        for db in range(blocks):
            for i in range(4):
                a.e(f"v_xor_b32 v54, {(4*db + i)*16}, v55")
                if extra: emit(a, [extra[4*db + i]])
                for qb in range(3):
                    r = ACC + (db*3 + qb)*16 + 4*i; tq = 56 + 2 * qb
                    a.e(f"""v_pk_mul_f32 v[{r}:{r+1}], v[{r}:{r+1}], v[62:63] op_sel_hi:[1,0]
                            v_pk_mul_f32 v[{r+2}:{r+3}], v[{r+2}:{r+3}], v[62:63] op_sel_hi:[1,0]
                            v_cvt_pk_bf16_f32 v{tq}, v{r}, v{r+1}
                            v_cvt_pk_bf16_f32 v{tq+1}, v{r+2}, v{r+3}
                            ds_write_b64 v54, v[{tq}:{tq+1}] offset:{qb*8192}""")
    def qread(area):
        a.e(f"s_sub_u32 s3, {area}, s37")
        for s in range(8): a.e(f"v_add_u32 v{32+s}, s3, v{VKA+s}")
        for qb in range(3):
            for s in range(8): a.e(f"ds_read_b128 {vr(Qreg(qb,s),4)}, v{32+s} offset:{qb*8192}")
    FA, FB = 208, 228
    a.wait(vmtags=["s0"], lg0=True); a.e("s_barrier")
    stamp(a, "q0", opt)
    emit(a, frag_reads(0, 0, FA))
    sl = [[] for _ in range(216 + 24)]
    spread(sl, stage(2), 0, 18)
    spread(sl, setup, 18, 130)
    for c in range(9):
        for s in range(4):
            F, nF = (FA, FB) if s % 2 == 0 else (FB, FA)
            k0 = (c*4 + s) * 6
            if s == 3:
                a.wait(vmtags=[f"s{c+1}"], lg0=True); a.e("s_barrier")
                stamp(a, f"c{c}", opt)
                spread(sl, (stage(c + 3) if c + 3 <= 8 else dma_unit(c - 6, opt) if c < 8 else []) + (wtouch if opt.wot == c else []) + ([x.replace(' offen ;', ' offen nt ;') for x in wtouch] if opt.wotnt == c else []), k0, k0 + 24)
            rd = (frag_reads(c + 1, 0, nF) if c < 8 else []) if s == 3 else frag_reads(c, s + 1, nF)
            if opt.qlev:
                for k, x in enumerate(rd): sl[k0 + (0, 0, 1, 1, 2, 3, 4)[k]].insert(0, x)
                a.wait(lgregs=regs_of(vr(F, 20)))
            else: emit(a, rd)
            i = 0
            for db in range(2):
                for qb in range(3):
                    d = vr(ACC + (db*3 + qb)*16, 16)
                    emit(a, [f"v_mfma_f32_32x32x16_bf16 {d}, {vr(F+db*4,4)}, {vr(F+8+qb*4,4)}, " + ("0" if (c == 0 and s == 0) else d)] + sl[k0 + i]); i += 1
    assert not any(sl[216:])
    a.e(f"s_lshl_b32 s3, s6, 3\ns_mul_i32 s4, s7, 24576\ns_add_u32 s4, s4, {XS}")
    qwrite(2, "s3", "s4", dma_unit(2, opt) if opt.k1early else ())
    a.e("s_waitcnt lgkmcnt(0)\ns_barrier")
    qread("s4")
    stamp(a, "qx", opt)
    if not opt.k1early: emit(a, dma_unit(2, opt))
    a.wait(vmtags=["u0"], lg0=True)
    emit(a, kreads(0))
    stamp(a, "k0", opt)
    a.e(f"""v_mov_b32 v26, {TOP + 3072 + 16}
            s_cmp_eq_u32 s7, 1
            s_cselect_b32 s50, {round(opt.thr1 * 16)}, 0
            s_cselect_b32 s38, {round((opt.thr0 + opt.thr1) * 16)}, -1""")
    if not opt.hold: a.e("s_add_u32 s50, s7, 1")
    if opt.acct: a.e(f"s_mov_b64 s[98:99], s[{STB}:{STB+1}]\ns_mov_b64 s[100:101], s[{STB}:{STB+1}]\ns_mov_b64 s[92:93], s[{STB}:{STB+1}]")
    def wpieces(tag, head, rows, lds, voreg):
        Gs = []
        for i in range(9):
            g = [f"s_add_u32 s4, s66, {head}", "s_and_b32 s4, s4, 7", f"s_mul_i32 s4, s4, {128*1152}", "s_add_u32 s4, s4, s68",
                 f"s_add_u32 s4, s4, {rows*1152}"] if i == 0 else []
            g += [f"s_add_u32 m0, s65, {lds + i*1024}", f"buffer_load_dwordx4 v{voreg+i}, s[60:63], s4 offen{opt.wopol} lds ; @{tag}"]
            Gs.append("\n".join(g))
        return Gs
    HEAD = (0, 2, 4, 6, 1, 3, 5, 7)
    NX = opt.nx
    BUFOF = [st % 2 for st in range(NX + 2)] + [2, 3]
    while len(BUFOF) < 8: BUFOF.append(BUFOF[len(BUFOF) - 4])
    wS = lambda st: wpieces(f"w{st}", HEAD[st], 0, SB[BUFOF[st]], VO)
    wX = lambda st, VOR: wpieces(f"w{st}", HEAD[st], 0, SB[BUFOF[st]], VO) + wpieces(f"w{st}", HEAD[st], 64, SB[BUFOF[st]] + 18432, VOR)
    carry = tile_body(a, opt, 0, [])
    carry = tile_body(a, opt, 1, carry, extra=[(setup2 + setW, 0, 41)])
    carry1 = [[x.replace('L_sk1_', 'L_sk4_') for x in y] for y in carry]
    if opt.unroll:
        for t in range(2, 14):
            stamp(a, f'r{t}', opt); carry = tile_body(a, opt, t, carry)
    else:
        stamp(a, "l0", opt)
        a.e("s_mov_b32 s46, 4")
        a.raw(".p2align 6"); a.label("L_tile")
        keep = list(a.vm)
        if not opt.hold: a.e(f"s_cmp_eq_u32 s7, 0\ns_cselect_b32 s3, {opt.last[0]}, {opt.last[1]}\ns_cmp_gt_u32 s46, 1\ns_cselect_b32 s50, s50, s3")
        if opt.late:
            a.e(f"""s_lshl_b32 s3, s7, 3
                    s_add_u32 s3, s3, s46
                    s_cmp_lg_u32 s3, {opt.late}
                    s_cbranch_scc1 L_nolate
                    s_lshr_b32 s3, s2, 3
                    s_lshl_b32 s3, s3, 1
                    s_add_u32 s3, s3, s6
                    s_mul_i32 s3, s3, 18432
                    v_lshlrev_b32 v84, 7, v1
                    v_add_u32 v84, s3, v84
                    v_add_u32 v85, 8192, v84
                    v_add_u32 v86, 16384, v84
                    v_cmp_gt_u32 vcc, 16, v1
                    v_cndmask_b32 v86, -1, v86, vcc""")
            emit(a, [f"buffer_load_dword v87, v{r}, s[60:63], s67 offen{opt.tpol} ; @junk" for r in (84, 85, 86)])
            a.label("L_nolate")
        if opt.tlb:
            a.e(f"""s_cmp_lg_u32 s46, {opt.tlb}
                    s_cbranch_scc1 L_notlb
                    s_lshl_b32 s3, s39, 2
                    s_add_u32 s4, s3, s30
                    s_mul_i32 s4, s4, {8*24576}
                    v_mov_b32 v84, s4
                    s_add_u32 s4, s4, {8*24576 - 128}
                    v_writelane_b32 v84, s4, 1
                    s_add_u32 s3, s3, s32
                    s_mul_i32 s4, s3, {4*36864}
                    s_add_u32 s4, s4, {WS_P}
                    v_writelane_b32 v84, s4, 2
                    s_add_u32 s4, s4, {4*36864 - 128}
                    v_writelane_b32 v84, s4, 3
                    s_mov_b32 s4, {WS_F + 65536 - 128}
                    v_writelane_b32 v84, s4, 4
                    s_mul_i32 s4, s31, {96*2304}
                    v_mov_b32 v85, s4
                    s_add_u32 s4, s4, {96*2304 - 128}
                    v_writelane_b32 v85, s4, 1
                    s_mov_b64 s[16:17], s[78:79]
                    s_mov_b32 s18, 1769472
                    buffer_load_dword v87, v84, s[24:27], 0 offen nt ; @junk
                    buffer_load_dword v87, v85, s[16:19], 0 offen nt ; @junk""")
            a.label("L_notlb")
        a.vm = keep
        for t in (2, 3, 4): carry = tile_body(a, opt, t, carry)
        assert carry == carry1
        a.e("s_sub_u32 s46, s46, 1\ns_cmp_lg_u32 s46, 0\ns_cbranch_scc1 L_tile")
        for o in a.vm:
            if o.tag and o.tag[0] == "u": o.tag = f"u{int(o.tag[1:]) + 18}"
    stamp(a, "l1", opt)
    carry = tile_body(a, opt, 14, carry)
    xo = lambda k: (k // 8) * SLOT + (k % 8) * 1024
    def send(qb):
        return [f"ds_write_b128 v28, {ar(Oacc(2+i,qb) + 4*g, 4)} offset:{xo((i*3 + qb)*4 + g)}" for i in range(2) for g in range(4)]
    accr = lambda qb: [f"v_accvgpr_read_b32 v{160 + (i*3+qb)*16 + r}, a{Oacc(i,qb) + r}" for i in range(2) for r in range(16)]
    pre = ["buffer_load_dword v106, v108, s[56:59], 0 offen sc1 ; @tag",
           f"v_add_u32 v28, s37, v{VL16}", "s_lshl_b32 s3, s6, 14\ns_sub_u32 s3, 8192, s3", "v_add_u32 v29, s3, v28",
           f"s_mul_i32 s3, s28, 768\ns_add_u32 s3, s3, {TOP}", f"v_lshlrev_b32 v30, 3, v{L31}", "v_add_u32 v30, s3, v30",
           f"s_xor_b32 s3, s28, 1\ns_mul_i32 s3, s3, 768\ns_add_u32 s3, s3, {TOP}", f"v_lshlrev_b32 v31, 3, v{L31}", "v_add_u32 v31, s3, v31"]
    team = "v_and_b32 v13, 3, v1\nv_lshlrev_b32 v13, 10, v13\nv_and_b32 v14, 4, v1\nv_add_u32 v13, v13, v14"
    askX = [f"s_andn2_b32 s71, s2, 24\ns_lshl_b32 s71, s71, 7\ns_add_u32 s69, s71, {WS_F}"] + team.split("\n") + ["buffer_load_dword v12, v13, s[24:27], s69 offen sc1"]
    carry = tile_body(a, opt, 15, carry, extra=[(pre, 8, 16), (askX, 28, 34), (send(0), 34, 48)] + ([(accr(0), 33, 44)] if opt.accearly else []))
    sl = [[] for _ in range(8)]
    carry = [x for y in carry for x in y]
    cut = max([i + 1 for i, x in enumerate(carry) if x.startswith(f"v_cvt_pk_bf16_f32 v{Sreg(2,3)},")] + [len(carry) - 16, 0])
    emit(a, carry[:cut])
    spread(sl, carry[cut:], 0, 3)
    st = []
    for qb in range(3): st += [f"v_mov_b32 v{3+2*qb}, v{LSUM+qb}", f"v_mov_b32 v{2+2*qb}, v{NM+16*qb}"]
    for qb in range(3): st += [f"v_permlane32_swap_b32 v{LSUM+qb}, v{3+2*qb}"]
    for qb in range(3): st += [f"v_add_f32 v{3+2*qb}, v{LSUM+qb}, v{3+2*qb}", f"ds_write_b64 v30, v[{2+2*qb}:{3+2*qb}] offset:{qb*256}"]
    spread(sl, st + send(1), 3, 8)
    for m, f in zip(pv(2, False), sl): emit(a, [m] + f)
    stamp(a, "t15", opt)
    emit(a, accr(1)[:12] + send(2))
    emit(a, ([] if opt.accearly else accr(0)) + accr(1)[12:] + accr(2))
    a.e("s_mov_b32 s4, 0x100000")
    a.label("L_tag")
    a.e("""s_waitcnt vmcnt(0)
           v_readfirstlane_b32 s75, v106
           s_cmp_lg_u32 s75, 0
           s_cbranch_scc1 L_tag_ok
           buffer_load_dword v106, v108, s[56:59], 0 offen sc1 ; @junk
           s_sub_u32 s4, s4, 1
           s_cmp_lg_u32 s4, 0
           s_cbranch_scc1 L_tag""")
    a.label("L_tag_ok"); a.vm = []
    a.e(f"""s_lshl_b32 s3, s39, 5
            s_add_u32 s3, s3, s33
            s_mul_i32 s52, s3, 24576
            s_mul_i32 s3, s6, 12288
            s_add_u32 s52, s52, s3
            s_waitcnt lgkmcnt(0)""")
    ACC, WF, OF = 112, 16, 0
    def ask(base, lanes):
        a.e(f"s_add_u32 s69, {base}, {WS_F}\n{lanes}\nbuffer_load_dword v12, v13, s[24:27], s69 offen sc1")
    def check(tag):
        a.e("s_mov_b32 s4, 0x100000")
        a.label(f"L_poll{tag}")
        a.e(f"""s_waitcnt vmcnt(0)
                v_cmp_ne_u32 vcc, s75, v12
                s_cbranch_vccz L_got{tag}
                s_sleep 1
                buffer_load_dword v12, v13, s[24:27], s69 offen sc1
                s_sub_u32 s4, s4, 1
                s_cmp_lg_u32 s4, 0
                s_cbranch_scc1 L_poll{tag}""")
        a.label(f"L_got{tag}")
        a.e("s_waitcnt vmcnt(0)")
    def wreads(buf, rows, F):
        reg, boff = (AD, AD + 1, 220, 221)[buf], 0
        return [f"ds_read_b64_tr_b16 {vr(F + nb*4 + 2*k, 2)}, v{reg} offset:{boff + (rows + 8*k) * 288 + 32*nb}" for nb in range(9) for k in range(2)]
    def oload(tag, head, db0, nks, dst):
        Gs = []
        for kl in range(nks):
            for j in range(3):
                g = [f"s_add_u32 s47, s66, {head}", "s_and_b32 s47, s47, 7", "s_mul_i32 s47, s47, 24576", "s_add_u32 s47, s47, s37"] + \
                    ([f"s_add_u32 s47, s47, {db0}"] if db0 else []) if kl + j == 0 else ["s_add_u32 s47, s47, 6144"] if j == 0 else []
                Gs.append("\n".join(g + [f"buffer_load_dwordx4 {ar(dst + (kl*3+j)*4, 4)}, v{VL16}, s[24:27], s47 offen offset:{j*1024} sc1 ; @{tag}"]))
        return Gs
    def kstep(F, O, zero, reads, jobs):
        ms = [f"v_mfma_f32_16x16x32_bf16 {vr(ACC + (nb*3+j)*4, 4)}, {vr(F+nb*4,4)}, {ar(O+j*4,4)}, " + ("0" if zero else vr(ACC + (nb*3+j)*4, 4))
              for nb in range(9) for j in range(3)]
        sl = [[] for _ in range(27)]
        spread(sl, reads, 0, 20); spread(sl, jobs, 0, 27)
        a.e("s_waitcnt lgkmcnt(0)")
        for m, f in zip(ms, sl): emit(a, [m] + f)
        return ms
    team = "v_and_b32 v13, 3, v1\nv_lshlrev_b32 v13, 10, v13\nv_and_b32 v14, 4, v1\nv_add_u32 v13, v13, v14"
    a.e(f"""s_lshl_b32 s3, s2, 7
            s_lshl_b32 s4, s28, 2
            s_add_u32 s70, s3, s4
            s_add_u32 s70, s70, {WS_F}
            s_lshl_b32 s3, s39, 2
            s_add_u32 s3, s3, s30
            s_mul_i32 s37, s3, {8*24576}
            s_mul_i32 s4, s6, 3072
            s_add_u32 s37, s37, s4
            s_mul_i32 s4, s7, 12288
            s_add_u32 s37, s37, s4
            s_mov_b32 s45, 0
            s_cmp_eq_u32 s7, 0
            s_cbranch_scc1 L_noearly
            v_cmp_ne_u32 vcc, s75, v12
            s_cbranch_vccnz L_noearly
            s_mov_b32 s45, 1""")
    for st in range(NX, 4): emit(a, oload(f"o{st}", HEAD[st], 0, 2, 24*st))
    a.label("L_noearly"); a.vm = []
    a.e(f"v_sub_u32 v27, v29, v{VL16}\nv_add_u32 v27, v27, v{VOL}")
    psync()
    stamp(a, "c_bar", opt)
    for qb in range(3): a.e(f"ds_read_b64 v[{8+2*qb}:{9+2*qb}], v31 offset:{qb*256}")
    RC = (32, 48, 64, 112, 128, 144)
    def recv(blk):
        for g in range(4): a.e(f"ds_read_b128 {vr(RC[blk]+4*g,4)}, v29 offset:{xo(blk*4 + g)}")
    recv(0); recv(1)
    SC = 16
    for qb in range(3):
        pn, pl, on, ol = 8 + 2*qb, 9 + 2*qb, 2 + 2*qb, 3 + 2*qb
        a.auto(f"v_min_f32 v22, v{on}, v{pn}")
        a.e(f"""v_sub_f32 v23, v22, v{on}
                v_sub_f32 v24, v22, v{pn}
                v_exp_f32 v23, v23
                v_exp_f32 v24, v24
                v_mul_f32 v{ol}, v{ol}, v23
                v_fmac_f32 v{ol}, v{pl}, v24
                v_rcp_f32 v{ol}, v{ol}
                v_mul_f32 v{SC+2*qb}, v23, v{ol}
                v_mul_f32 v{SC+2*qb+1}, v24, v{ol}""")
    recv(2); recv(3); recv(4); recv(5)
    for blk in range(6):
        i, qb = divmod(blk, 3)
        K = 160 + blk*16; Rr = RC[blk]
        a.wait(lgregs=regs_of(vr(Rr, 16)))
        for r in range(0, 16, 2):
            a.e(f"v_pk_mul_f32 v[{Rr+r}:{Rr+r+1}], v[{Rr+r}:{Rr+r+1}], v[{SC+2*qb}:{SC+2*qb+1}] op_sel:[0,1] op_sel_hi:[1,1]")
        for r in range(0, 16, 2):
            a.e(f"v_pk_fma_f32 v[{K+r}:{K+r+1}], v[{K+r}:{K+r+1}], v[{SC+2*qb}:{SC+2*qb+1}], v[{Rr+r}:{Rr+r+1}] op_sel_hi:[1,0,1]")
        for j in range(8):
            a.e(f"v_cvt_pk_bf16_f32 v{K+8*(j//4)+j%4}, v{K+2*j}, v{K+2*j+1}")
        a.e(f"s_add_u32 s47, s52, {WS_O + (i*6 + 2*qb)*1024}")
        for s in range(2):
            a.e(f"buffer_store_dwordx4 {vr(K+8*s,4)}, v{VOL}, s[24:27], s47 offen offset:{512*s} sc1")
            a.e(f"ds_write_b128 v27, {vr(K+8*s,4)} offset:{xo(i*6 + 2*qb) + 512*s}")
    stamp(a, "comb", opt)
    a.e("v_mov_b32 v14, s75\ns_cmp_eq_u32 s7, 1\ns_cbranch_scc1 L_tailY")
    stT = save(a)
    other_pair("L_yq", 24, 1 + opt.xgate)
    emit(a, wX(0, VO))
    a.e(f"""s_waitcnt vmcnt(18)
            buffer_store_dword v14, v108, s[24:27], s70 offen sc1
            v_add_u32 v3, 8192, v{VL16}
            s_waitcnt lgkmcnt(0)""")
    psync()
    a.e("s_cmp_eq_u32 s6, 1\ns_cbranch_scc1 L_x1")
    sv = save(a)
    for qh in range(2):
        if qh: a.label("L_x1"); load(a, sv)
        for db in range(4):
            for j in range(3): a.e(f"ds_read_b128 {ar(192 + (db*3+j)*4, 4)}, v{3 if db < 2 else VL16} offset:{xo((db % 2)*6 + 3*qh + j)}")
        if qh == 0: a.e("s_branch L_x2")
    a.label("L_x2")
    VOR = 224
    emit(a, vo_calc(VOR, "rev"))
    a.wait(vmtags=["w0"], lg0=True); psync()
    emit(a, wreads(0, 0, WF))
    RS = (192, 0, 48 if NX == 4 else 192, 192)
    wN = lambda st: wX(st, VO if st < NX else VOR)
    xl = lambda st: oload(f"x{st}", HEAD[st], 0, 4, RS[st])
    ask("s71", team)
    for st in range(NX):
        b = BUFOF[st]
        w = wN(1) if st == 0 else []
        if st >= 1: a.wait(vmtags=[f"x{st}"])
        kstep(WF, RS[st], st == 0, wreads(b, 32, WF + 36), w[:9])
        kstep(WF + 36, RS[st] + 12, False, wreads(b, 64, WF), w[9:])
        j = []
        if st == 0:
            check("A"); stamp(a, "chkA", opt)
            for k in range(1, NX):
                if RS[k] != 192: j += xl(k)
        kstep(WF, RS[st] + 24, False, wreads(b, 96, WF + 36), j)
        a.wait(vmtags=[f"w{st+1}"], lg0=True); psync()
        kstep(WF + 36, RS[st] + 36, False, wreads(BUFOF[st + 1], 0, WF) if st + 1 < NX else [], wN(st + 2))
        if st == 0:
            for k in range(1, NX):
                if RS[k] == 192: emit(a, xl(k))
    for st in range(NX, 4): emit(a, oload(f"o{st}", HEAD[st], 0, 2, 24*st))
    a.e("s_waitcnt vmcnt(0)\ns_branch L_join")
    a.label("L_tailY"); load(a, stT)
    a.e("s_cmp_eq_u32 s45, 1\ns_cbranch_scc1 L_hadearly")
    sv = save(a)
    ask("s71", team); check("Y")
    a.vm = list(sv[2])
    for st in range(NX, 4): emit(a, oload(f"o{st}", HEAD[st], 0, 2, 24*st))
    a.label("L_hadearly")
    a.e("s_waitcnt lgkmcnt(0)")
    a.label("L_join"); a.lg = []
    a.e(f"""s_add_u32 s71, s71, 8
            v_add_u32 v220, {SB[2] - SB[1]}, v{AD+1}
            v_add_u32 v221, {SB[3] - SB[1]}, v{AD+1}
            s_mul_i32 s3, s7, -8192
            s_add_u32 s3, s3, {YB + 8192}
            v_add_u32 v2, s3, v{VL16}
            v_mov_b32 v15, s75
            s_barrier""")
    stamp(a, "join", opt)
    emit(a, wreads(BUFOF[NX], 0, WF))
    a.e("s_cmp_eq_u32 s6, 1\ns_cbranch_scc1 L_own1")
    sv = save(a)
    for qh in range(2):
        if qh: a.label("L_own1"); load(a, sv)
        for kl in range(2):
            for j in range(3): a.e(f"ds_read_b128 {ar(96 + (kl*3+j)*4, 4)}, v2 offset:{xo(kl*6 + 3*qh + j)}")
        if qh == 0: a.e("s_branch L_own2")
    a.label("L_own2")
    a.wait(vmtags=[f"o{NX}"])
    a.e("s_cmp_eq_u32 s7, 1\ns_cbranch_scc1 L_fy")
    sv = save(a)
    kstep(WF, 24*NX, False, wreads(BUFOF[NX], 32, WF + 36), wS(NX + 2))
    a.e("s_branch L_fx")
    a.label("L_fy"); load(a, sv)
    kstep(WF, 24*NX, True, wreads(BUFOF[NX], 32, WF + 36), wS(NX + 2))
    a.e("s_waitcnt vmcnt(9)\nbuffer_store_dword v15, v108, s[24:27], s70 offen sc1 ; @junk")
    a.label("L_fx"); a.vm = [o for o in a.vm if o.tag == f"w{NX+2}"]
    A = max(NX, min(opt.askat, 4))
    oy = lambda k: oload(f"o{k}", HEAD[k], 0, 2, 24*k)
    plan = {}
    for k in range(NX + 4, 8): plan.setdefault((k - 4, 1) if k - 4 > NX else (NX + 1, 0), []).append(wS(k))
    plan.setdefault((NX, 1), []).append(wS(NX + 3))
    if A <= 3:
        for i, k in enumerate((5, 6, 7)): plan.setdefault((A + (i + 1) // 2, (i + 1) % 2), []).insert(0, oy(k))
    job = lambda st, kl: [x for y in plan.get((st, kl), []) for x in y]
    for st in range(NX, 8):
        stamp(a, f"s{st}", opt)
        if st > NX:
            if st == A: ask("s71", team)
            if st >= 5: a.wait(vmtags=[f"o{st}"])
            kstep(WF, 24*st, False, wreads(BUFOF[st], 32, WF + 36), job(st, 0))
        elif st == A: ask("s71", team)
        if st == A and A <= 3: check("B"); stamp(a, "chk1", opt)
        if st < 7:
            a.wait(vmtags=[f"w{st+1}"], lg0=True); a.e("s_barrier")
            kstep(WF + 36, 24*st + 12, False, wreads(BUFOF[st + 1], 0, WF), job(st, 1))
        if st == A and A == 4:
            check("B"); stamp(a, "chk1", opt); emit(a, oy(5) + oy(6) + oy(7))
    a.e(f"""s_lshl_b32 s3, s28, 14
            v_add_u32 v13, s3, v{VL16}
            v_xor_b32 v14, 32768, v13
            s_lshl_b32 s52, s39, 2
            s_add_u32 s52, s52, s32
            s_lshl_b32 s53, s52, 2
            s_add_u32 s53, s53, s30
            s_mul_i32 s53, s53, 36864
            s_mul_i32 s3, s28, 9216
            s_add_u32 s53, s53, s3
            s_add_u32 s47, s53, {WS_P}
            s_waitcnt lgkmcnt(0)
            s_barrier""")
    F, O = WF + 36, 180
    T = lambda nb, j: ACC + (nb*3+j)*4
    ms = [f"v_mfma_f32_16x16x32_bf16 {vr(T(nb,j), 4)}, {vr(F+nb*4,4)}, {ar(O+j*4,4)}, {vr(T(nb,j), 4)}" for nb in (8, 7, 6, 5, 4, 0, 1, 2, 3) for j in range(3)]
    snd = [f"ds_write_b128 v13, {vr(T(nb,j),4)} offset:{((8-nb)*3+j)*1024}" for nb in range(8, 3, -1) for j in range(3)]
    emit(a, ms[:6])
    for k in range(15): emit(a, [ms[6 + k], snd[k]])
    emit(a, ms[21:])
    stamp(a, "gend", opt)
    a.e("s_waitcnt lgkmcnt(0)\ns_barrier")
    order = [(k, j) for k in range(3) for j in range(3)]
    for k, j in order:
        for nb in range(2*k, min(2*k + 2, 5)): a.e(f"ds_read_b128 {vr(WF + (nb*3+j)*4, 4)}, v14 offset:{(nb*3+j)*1024}")
    for k, j in order:
        r = T(2*k, j)
        for h, nb in enumerate(range(2*k, min(2*k + 2, 5))):
            t, q = T(nb, j), WF + (nb*3+j)*4
            a.wait(lgregs=regs_of(vr(q, 4)))
            a.e(f"v_pk_add_f32 v[{t}:{t+1}], v[{t}:{t+1}], v[{q}:{q+1}]\nv_pk_add_f32 v[{t+2}:{t+3}], v[{t+2}:{t+3}], v[{q+2}:{q+3}]")
            a.e(f"v_cvt_pk_bf16_f32 v{r+2*h}, v{t}, v{t+1}\nv_cvt_pk_bf16_f32 v{r+2*h+1}, v{t+2}, v{t+3}")
        if k < 2: a.e(f"buffer_store_dwordx4 {vr(r,4)}, v{VL16}, s[24:27], s47 offen offset:{j*1024} sc1")
        else: a.e(f"buffer_store_dwordx2 {vr(r,2)}, v{VL16}, s[24:27], s47 offen offset:{j*1024} sc1")
        if j == 2 and k < 2: a.e("s_add_u32 s47, s47, 3072")
    a.e(f"""s_add_u32 s70, s70, 32768
            s_andn2_b32 s71, s2, 3
            s_lshl_b32 s71, s71, 7
            s_add_u32 s71, s71, 32768
            v_and_b32 v10, 15, v1
            v_mul_u32_u24 v10, 2304, v10
            v_lshrrev_b32 v11, 4, v1
            v_lshl_add_u32 v10, v11, 3, v10
            s_mul_i32 s52, s52, {4*36864}
            s_add_u32 s52, s52, {WS_P}
            s_mul_i32 s53, s31, {96*2304}
            s_mul_i32 s3, s29, 1152
            s_add_u32 s53, s53, s3
            s_mul_i32 s3, s32, 288
            s_add_u32 s53, s53, s3
            s_lshl_b32 s54, s30, 2
            s_add_u32 s54, s54, s28""")
    srd(a, 8, "s78", "s79", 1769472)
    def decode(i):
        A, B, C = 56 + 4*i, 57 + 4*i, 58 + 4*i
        a.e(f"""s_add_u32 s3, s54, {16*i}
                s_mul_i32 s4, s3, 43
                s_lshr_b32 s4, s4, 8
                s_mul_i32 s5, s4, 6
                s_sub_u32 s3, s3, s5            ; q16
                s_mul_i32 s{B}, s3, {16*2304}
                s_add_u32 s{B}, s{B}, s53
                s_cmp_ge_u32 s3, 3
                s_cselect_b32 s5, {9216 - 3072}, 0
                s_lshl_b32 s3, s3, 10
                s_add_u32 s{A}, s3, s5          ; qh * 9216 + j * 1024
                s_add_u32 s{A}, s{A}, s52
                s_and_b32 s3, s4, 1
                s_cmp_eq_u32 s4, 4
                s_cselect_b32 s3, 2, s3         ; k
                s_cselect_b32 s{C}, 0, 32
                s_mul_i32 s5, s3, 3072
                s_add_u32 s{A}, s{A}, s5
                s_lshl_b32 s3, s3, 6
                s_and_b32 s4, s4, 2
                s_cmp_eq_u32 s4, 2
                s_cselect_b32 s5, 18432, 0
                s_add_u32 s{A}, s{A}, s5
                s_cmp_eq_u32 s4, 2
                s_cselect_b32 s{C}, -32, s{C}
                s_sub_u32 s5, 256, s3
                s_cmp_eq_u32 s4, 2
                s_cselect_b32 s3, s5, s3
                s_add_u32 s{B}, s{B}, s3""")
    decode(0); decode(1)
    a.e("s_waitcnt vmcnt(0)\nbuffer_store_dword v15, v108, s[24:27], s70 offen sc1")
    stamp(a, "pub2", opt)
    ask("s71", "v_and_b32 v13, 3, v1\nv_lshlrev_b32 v13, 7, v13\nv_and_b32 v14, 12, v1\nv_add_u32 v13, v13, v14"); check(2)
    stamp(a, "chk2", opt)
    def loads(i):
        for o in range(4):
            a.e(f"buffer_load_dwordx4 {vr(16+16*i+4*o,4)}, v{VL16}, s[24:27], s{56+4*i} offen sc1")
            if o < 3: a.e(f"s_add_u32 s{56+4*i}, s{56+4*i}, 36864")
    def fin(i, left):
        b, D = 16 + 16*i, 112 + 16*i
        for o in range(4):
            a.e(f"s_waitcnt vmcnt({left + 3 - o})")
            for k in range(4):
                r = b + 4*o + k
                if o == 0: a.e(f"v_lshlrev_b32 v{D+2*k}, 16, v{r}\nv_and_b32 v{D+2*k+1}, 0xffff0000, v{r}")
                else: a.e(f"v_lshlrev_b32 v{D+8}, 16, v{r}\nv_and_b32 v{r}, 0xffff0000, v{r}\nv_add_f32 v{D+2*k}, v{D+2*k}, v{D+8}\nv_add_f32 v{D+2*k+1}, v{D+2*k+1}, v{r}")
        for k in range(4): a.e(f"v_cvt_pk_bf16_f32 v{D+k}, v{D+2*k}, v{D+2*k+1}")
        a.e(f"""buffer_store_dwordx2 v[{D}:{D+1}], v10, s[8:11], s{57+4*i} offen{opt.opol}
                s_add_u32 s{57+4*i}, s{57+4*i}, s{58+4*i}""")
        if i == 1: a.e("s_cmp_eq_u32 s62, 0\ns_cbranch_scc1 L_rd2")
        a.e(f"buffer_store_dwordx2 v[{D+2}:{D+3}], v10, s[8:11], s{57+4*i} offen{opt.opol}")
    loads(0)
    a.e("s_cmp_ge_u32 s54, 14\ns_cbranch_scc1 L_rd1")
    sv = save(a)
    loads(1); fin(0, 4); fin(1, 2)
    a.e("s_branch L_rd2")
    a.label("L_rd1"); load(a, sv)
    fin(0, 0)
    a.label("L_rd2")
    stamp(a, "end", opt)
    if opt.stamps:
        a.e(f"s_lshl_b32 s3, s2, 2\ns_add_u32 s3, s3, s28\ns_lshl_b32 s3, s3, 7\ns_add_u32 s3, s3, {WS_STAMP}\nv_mov_b32 v0, 0")
        for i in range(1 + len(opt.sset)):
            a.e(f"v_mov_b32 v2, s{STB+2*i}\nv_mov_b32 v3, s{STB+1+2*i}\nbuffer_store_dwordx2 v[2:3], v0, s[24:27], s3 offen offset:{8*i}\ns_waitcnt vmcnt(0)")
    a.label("L_done")
    a.e("s_endpgm")
    for qb in range(3): rare(a, qb)
    a.label("L_hold", reset=True)
    a.e("s_mov_b32 s47, 0x400000")
    a.label("L_hold1")
    a.e("""s_sleep 4
           ds_read_b64 v[30:31], v26
           s_sub_u32 s47, s47, 1
           s_waitcnt lgkmcnt(0)
           v_min_u32 v30, v30, v31
           v_readfirstlane_b32 s3, v30
           s_lshl_b32 s3, s3, 4
           s_cmp_eq_u32 s47, 0
           s_cselect_b32 s3, s38, s3
           s_cmp_lt_i32 s3, s38
           s_cbranch_scc1 L_hold1
           s_setpc_b64 s[40:41]""")

def build(opt):
    a = Asm()
    a.raw("; @launch grid=(256,1,1) block=(256,1,1) lds=163840")
    a.raw('.amdgcn_target "amdgcn-amd-amdhsa--gfx950"')
    kernel(a, NAME + "_kernel", opt)
    a.raw('.section .rodata,"a"\n.p2align 6')
    a.raw("\n".join([f".amdhsa_kernel {NAME}_kernel", "  .amdhsa_next_free_vgpr 512", "  .amdhsa_next_free_sgpr 102",
        "  .amdhsa_accum_offset 256", "  .amdhsa_group_segment_fixed_size 0", "  .amdhsa_kernarg_size 104",
        "  .amdhsa_user_sgpr_count 2", "  .amdhsa_user_sgpr_kernarg_segment_ptr 1",
        "  .amdhsa_system_sgpr_workgroup_id_x 1", ".end_amdhsa_kernel"]))
    return a.text(), a

if __name__ == "__main__":
    opt = Opt()
    out = sys.argv[1] if len(sys.argv) > 1 else "k.s"
    for kv in sys.argv[2:]:
        k, v = kv.split("=", 1); assert hasattr(opt, k), k
        setattr(opt, k, eval(v))
    t, a = build(opt)
    open(out, "w").write(t)
    print(out, "lines", t.count("\n"), "pad", a.npad)
```

```python
import sys, struct, math
sys.path.insert(0, "dev")
from asmlib import Asm, spread, regs_of, level_fill
import gen5
from gen5 import (NAME, f2u, CSC, THR_LOG2, WS_BYTES, WS_O, WS_P, WS_F, WS_STAMP, STB, vr, ar, srd, stamp, emit,
                  VOFFK, VOFFV, VKA, VVA, LSUM, TMAX, VT, NM, S0, Q0, KF, VF, Sreg, Qreg, Oacc, softmax, qk, pv, rare)

class Opt:
    wp = "pppp"
    noB = False
    stamps = False
    sset = ['q0', 'k0', 't15', 'comb', 'join', 'chk1', 'gend', 'pub2', 'end']
    thr0 = 0.0
    thr1 = 1.25
    clk = "s_memrealtime"
    rot = True
    krot = 5
    qlev = True
    kvtlb = False
    capb = None
    pbf16 = True
    k1early = False
    wot = None
    wotnt = None
    tlb = 0
    w0at = (14, 30)
    ysig = 't15'
    nx = 1
    accearly = True
    cap = (7, 6)
    capend = 30
    hold = False
    xgate = 0
    last = (0, 0)
    ylast = 1
    kvsame = False
    unroll = False
    a0at = 2
    opol = ''
    late = 2
    prio = 0
    gate = 12
    pace = 1.0
    d1 = (8, 10, 12, 14, 22, 24, 26, 27)
    d2 = (29, 31, 33, 35, 37, 39, 44, 47)
    dcost = 4.0
    acct = 0
    w0 = 10
    askat = 3
    fewwait = True
    vwin = (16, 22)
    kwin = (40, 44)
    tpol = ''
    wopol = ''

SLOT = 16384
STG = lambda i: 45056 + 28672 * i
TOP = 159744
SB = (122880, 0, 86016, 49152)
NS = 3
YB = 49152

def dma_unit(u, opt):
    kind = "KV"[u % 2]; sreg = "s36" if kind == "K" else "s35"
    srdn = "s[8:11]" if kind == "K" else "s[12:15]"
    G = []
    for j in range(8):
        g = []
        if j == 0: g += [f"s_add_u32 m0, s37, {(u % NS) * SLOT}", f"s_add_u32 s51, s34, {sreg}"]
        if j == 1 and not opt.kvsame: g += [f"s_add_u32 {sreg}, {sreg}, 16384", f"s_and_b32 {sreg}, {sreg}, 0x3ffff"]
        if j == 4: g += [f"s_add_u32 m0, s37, {(u % NS) * SLOT + 4096}", "s_add_u32 s51, s51, 4096"]
        vo = VOFFK + j % 4 if kind == "K" else VOFFV
        if opt.cap and 3 <= u <= opt.capend:
            cx, cy = opt.cap
            cx, cy = (c if isinstance(c, int) else c[j % len(c)] for c in (cx, cy))
            dma_unit.n += 1; n = dma_unit.n
            bx, by = (c if isinstance(c, int) else c[j % len(c)] for c in (opt.capb or opt.cap))
            prev = None
            for lv, c in enumerate((bx, cx, by, cy)):
                if c == prev: continue
                R_ = "RAW " if prev else ""
                g += [R_ + f"s_cmp_le_u32 s50, {lv}", R_ + f"s_cbranch_scc1 L_cap{n}", f"RAW s_waitcnt vmcnt({c - 1})"]
                assert prev is None or c < prev
                prev = c
            g += [f"LABEL L_cap{n}"]
        g.append(f"buffer_load_dwordx4 v{vo}, {srdn}, s51 offen offset:{(j % 4)*1024} nt lds ; @u{u}")
        G.append("\n".join(g))
    return G
dma_unit.n = 0
def kreads(t): return [f"ds_read_b128 {ar(KF+4*s,4)}, v{VKA+s} offset:{((2*t) % NS) * SLOT}" for s in range(8)]
def vreads(t):
    return [f"ds_read_b64_tr_b16 {ar(VF + db*8 + s*4 + k*2, 2)}, v{VVA+db} offset:{((2*t+1) % NS)*SLOT + 4096*s + 2048*k}"
            for s in range(2) for db in range(4) for k in range(2)]
def tile_body(a, opt, t, carry, extra=()):
    first = t == 0
    M = qk(0, first) + (pv(2, t == 1) if t else [None]*8) + qk(1, first) + pv(0, first) + qk(2, first) + pv(1, first)
    W = opt.w0
    sl = [[] for _ in range(48 + W)]
    def at(G, slots):
        for g, k in zip(G, slots): sl[k].append(g)
    if 2*t + NS <= 31: at(dma_unit(2*t + NS, opt), opt.d1)
    spread(sl, [f"WAITVM u{2*t+1}"] + vreads(t), *opt.vwin)
    if 2*t + NS + 1 <= 31: at(dma_unit(2*t + NS + 1, opt), opt.d2)
    if t < 15: spread(sl, [f"WAITVM u{2*t+2}"] + kreads(t + 1), *opt.kwin)
    if t == 14 and opt.xgate: sl[30].append('v_mov_b32 v27, 2\nds_write_b32 v109, v27 offset:16')
    if opt.hold or t == 0: sl[46].append("s_add_u32 s45, s45, 1\nv_mov_b32 v27, s45\nds_write_b32 v109, v27 offset:16")
    if 1 <= t <= 14 and opt.hold:
        sl[44].append("ds_read_b64 v[30:31], v26")
        sl[47].append(f"""AUTO v_min_u32 v30, v30, v31
s_add_u32 s38, s38, s50
s_min_i32 s38, s38, 256
v_readfirstlane_b32 s3, v30
s_lshl_b32 s3, s3, 4
s_cmp_ge_i32 s3, s38
s_cbranch_scc1 L_go{t}
s_call_b64 s[40:41], L_hold
LABEL L_go{t}""")
    for e in extra: spread(sl, *e)
    for i, x in enumerate(carry): sl[i] = x + sl[i]
    ghost = {48 + k: "buffer_x\ns_nop 0\ns_nop 0" for k in opt.d1 if k < W}
    for k, g in ghost.items(): sl[k].append(g)
    level_fill(sl, softmax(0, t, first), W, W + 16, opt.dcost)
    level_fill(sl, softmax(1, t, first), W + 16, W + 32, opt.dcost)
    level_fill(sl, softmax(2, t, first), W + 32, W + 48, opt.dcost)
    for k in ghost: sl[k] = sl[k][1:]
    for i in range(48):
        if opt.fewwait:
            if i == 0: a.wait(lgregs=regs_of(ar(KF, 32)))
            if i == 24: a.wait(lgregs=regs_of(ar(VF, 32)))
        if M[i]: emit(a, [M[i]])
        for x in sl[i]:
            if opt.acct and x.startswith("WAITVM"):
                keep = list(a.lg)
                a.e("s_memtime s[94:95]"); emit(a, [x]); a.e("s_memtime s[96:97]\ns_waitcnt lgkmcnt(0)\ns_sub_u32 s96, s96, s94")
                r = 98 if int(x.split("u")[1]) % 2 else 100
                a.e(f"s_add_u32 s{r}, s{r}, s96")
            elif opt.acct == 2 and "lds ;" in x:
                a.e("s_memtime s[94:95]"); emit(a, [x]); a.e("s_memtime s[96:97]\ns_waitcnt lgkmcnt(0)\ns_sub_u32 s96, s96, s94\ns_add_u32 s92, s92, s96")
            else: emit(a, [x])
    return sl[48:]

def save(a): return (list(a.hist), list(a.lg), list(a.vm))
def load(a, st): a.hist, a.lg, a.vm = (list(x) for x in st)

def kernel(a, name, opt):
    a.raw(".text"); a.raw(f".globl {name}"); a.raw(".p2align 8"); a.raw(f".type {name},@function")
    a.label(name, reset=True)
    a.e("""s_load_dwordx8 s[56:63], s[0:1], 0
           s_load_dwordx8 s[64:71], s[0:1], 40
           s_load_dwordx2 s[72:73], s[0:1], 96
           s_load_dwordx2 s[40:41], s[0:1], 32
           s_load_dwordx2 s[42:43], s[0:1], 72
           s_load_dwordx4 s[44:47], s[0:1], 80
           s_memrealtime s[48:49]
           s_cmp_ge_u32 s2, 256
           s_cbranch_scc1 L_done""")
    if opt.stamps: a.e(f"{opt.clk} s[{STB}:{STB+1}]")
    VW, VXA, VXB, AW, AX, VD = 72, 73, 74, 76, 64, 111
    G, L15, H, L31, G1, R, C4 = 88, 89, 90, 91, 92, 81, 82
    VFO, VFP = 109, 110
    a.e(f"""v_lshrrev_b32 v1, 6, v0
            s_and_b32 s3, s2, 7
            s_lshr_b32 s29, s3, 2
            s_and_b32 s30, s3, 3
            v_readfirstlane_b32 s28, v1
            s_lshr_b32 s3, s2, 3
            s_lshr_b32 s31, s3, 2
            s_and_b32 s32, s3, 3
            v_and_b32 v1, 63, v0
            v_lshrrev_b32 v{G}, 4, v1
            v_and_b32 v{L15}, 15, v1
            v_lshrrev_b32 v56, 3, v1
            v_and_b32 v57, 7, v1
            v_and_b32 v{G1}, 1, v{G}
            v_lshlrev_b32 v59, 2, v{G1}
            v_xor_b32 v59, v57, v59
            v_lshlrev_b32 v59, 4, v59
            v_lshl_add_u32 v{VW}, v56, 13, v59
            v_mul_u32_u24 v60, 1152, v56
            v_xor_b32 v61, v57, v{G}
            s_and_b32 s6, s28, 1
            s_lshr_b32 s7, s28, 1
            s_lshl_b32 s3, s6, 2
            v_xor_b32 v61, s3, v61
            v_lshl_add_u32 v{VXA}, v61, 4, v60
            v_xor_b32 v61, 4, v61
            v_lshl_add_u32 v{VXB}, v61, 4, v60
            s_mul_i32 s37, s7, {YB}
            s_lshl_b32 s3, s6, 13
            s_add_u32 s37, s37, s3
            s_lshl_b32 s33, s30, 3
            s_lshl_b32 s3, s32, 1
            s_add_u32 s33, s33, s3              ; head X
            s_add_u32 s74, s3, s31              ; b + 2p
            s_lshl_b32 s52, s33, 8
            s_lshl_b32 s3, s28, 7
            s_add_u32 s52, s52, s3
            s_mul_i32 s53, s31, 110592
            s_mul_i32 s3, s28, 27648
            s_add_u32 s53, s53, s3              ; x rows 24w..
            s_mul_i32 s55, s28, 3072
            s_mov_b32 s18, 884736
            s_mov_b32 s19, 0x20000
            s_mov_b32 s22, 4718592
            s_mov_b32 s23, 0x20000""")
    if opt.krot == 0: a.e("s_mov_b32 s74, 0")
    elif opt.krot == 1: a.e("s_cmp_ge_u32 s74, 9\ns_cselect_b32 s3, 9, 0\ns_sub_u32 s74, s74, s3")
    elif opt.krot == 3: a.e("s_and_b32 s74, s74, 1\ns_lshl_b32 s74, s74, 2")
    elif opt.krot == 2: a.e("s_add_u32 s74, s31, s32\ns_mul_i32 s3, s74, 86\ns_lshr_b32 s3, s3, 8\ns_mul_i32 s3, s3, 3\ns_sub_u32 s74, s74, s3\ns_mul_i32 s74, s74, 3")
    elif opt.krot == 4: a.e("s_add_u32 s74, s31, s32\ns_and_b32 s74, s74, 3\ns_mul_i32 s74, s74, 9\ns_lshr_b32 s74, s74, 2")
    elif opt.krot == 5: a.e("s_add_u32 s74, s31, s32\ns_and_b32 s74, s74, 1\ns_lshl_b32 s74, s74, 2")
    a.e("s_cmp_eq_u32 s29, 0\ns_waitcnt lgkmcnt(0)")
    for d, o in ((20, 6), (16, 0), (8, 2), (12, 4)):
        a.e(f"s_cselect_b32 s{d}, s{56+o}, s{64+o}\ns_cselect_b32 s{d+1}, s{57+o}, s{65+o}")
    a.e("""s_cselect_b32 s76, s40, s42
           s_cselect_b32 s77, s41, s43
           s_mov_b64 s[78:79], s[44:45]
           s_mov_b64 s[80:81], s[46:47]
           s_or_b32 s75, s48, 1""")
    P = lambda ch: " nt" if ch == "n" else ""
    XS = 98304
    VW4, VX3 = 32, 36
    a.e(f"""v_mov_b32 v{VW4}, v{VW}
            v_add_u32 v{VW4+1}, {65536 - 1024}, v{VW}
            v_add_u32 v{VW4+2}, {2*(65536 - 1024)}, v{VW}
            v_add_u32 v{VW4+3}, {3*(65536 - 1024)}, v{VW}
            v_mov_b32 v{VX3}, v{VXA}
            v_add_u32 v{VX3+1}, {9216 - 1024}, v{VXB}
            v_add_u32 v{VX3+2}, {2*(9216 - 1024)}, v{VXA}
            s_lshl_b32 s4, s74, 19
            s_add_u32 s4, s4, s52
            s_lshl_b32 s5, s74, 7
            s_add_u32 s5, s5, s53
            s_sub_u32 s74, 9, s74""")
    def stage(c):
        buf = c % 3; Gs = []
        for j in range(8):
            g = [f"s_add_u32 m0, s37, {buf*SLOT}", "s_nop 0"] if j == 0 else [f"s_add_u32 m0, s37, {buf*SLOT + 4096}", "s_add_u32 s4, s4, 262144"] if j == 4 else []
            Gs.append("\n".join(g + [f"buffer_load_dwordx4 v{VW4 + j % 4}, s[20:23], s4 offen offset:{(j % 4)*1024}{P(opt.wp[0])} lds ; @s{c}"]))
        for i in range(3):
            g = [f"s_add_u32 m0, s55, {XS + buf*12288}", "s_add_u32 s4, s4, 262144"] if i == 0 else []
            g += [f"buffer_load_dwordx4 v{VX3 + i}, s[16:19], s5 offen offset:{i*1024}{P(opt.wp[1])} lds ; @s{c}"]
            if i == 2: g += ["s_add_u32 s5, s5, 128", "s_sub_u32 s74, s74, 1", f"s_cbranch_scc0 L_nw{c}", ]
            Gs.append("\n".join(g))
        Gs[-1] = Gs[-1].replace(f"s_sub_u32 s74, s74, 1\ns_cbranch_scc0 L_nw{c}", f"s_sub_u32 s74, s74, 1\ns_cmp_lg_u32 s74, 0\ns_cbranch_scc1 L_nw{c}\nRAW s_mov_b32 s4, s52\nRAW s_mov_b32 s5, s53\nLABEL L_nw{c}")
        return Gs
    stamp(a, 'ka', opt)
    wtouch = [x.strip() for x in """s_lshr_b32 s3, s2, 3
            s_lshl_b32 s3, s3, 2
            s_add_u32 s3, s3, s28
            s_mul_i32 s3, s3, 9216
            s_mul_i32 s47, s30, 1179648
            v_lshlrev_b32 v24, 7, v1
            v_add_u32 v24, s3, v24
            v_add_u32 v25, 8192, v24
            v_cmp_gt_u32 s[70:71], 8, v1
            v_cndmask_b32 v25, -1, v25, s[70:71]""".split("\n")]
    wtouch = ["\n".join(wtouch + ["buffer_load_dword v23, v24, s[60:63], s47 offen ; @junk"]), "s_mul_i32 s47, s30, 1179648\nbuffer_load_dword v23, v25, s[60:63], s47 offen ; @junk"]
    if opt.wot is not None: srd(a, 60, "s76", "s77", 4718592)
    if opt.wot == 'a': emit(a, wtouch)
    emit(a, stage(0))
    if opt.kvtlb:
        a.e(f"""s_mov_b32 s10, {1 << 26}
                s_mov_b32 s11, 0x20000
                s_mov_b32 s14, {1 << 26}
                s_mov_b32 s15, 0x20000
                s_lshl_b32 s3, s31, 5
                s_add_u32 s3, s3, s33
                s_add_u32 s3, s3, s7
                s_lshl_b32 s3, s3, 18
                v_and_b32 v24, 3, v1
                v_lshlrev_b32 v24, 16, v24
                buffer_load_dword v23, v24, s[8:11], s3 offen nt ; @junk
                buffer_load_dword v23, v24, s[12:15], s3 offen nt ; @junk""")
    if opt.wot == 'b': emit(a, wtouch)
    stamp(a, 'i0', opt)
    srd(a, 56, "s80", "s81", 256)
    a.e("""s_lshl_b32 s3, s2, 8
           v_add_u32 v106, s3, v0
           v_min_u32 v106, 1, v106
           v_lshlrev_b32 v106, 12, v106
           v_mov_b32 v107, s75
           buffer_store_dword v107, v106, s[56:59], 0 offen sc1""")
    emit(a, stage(1))
    if opt.wot == 'c': emit(a, wtouch)
    for d in (8, 12): a.e(f"s_mov_b32 s{d+2}, {1 << 26}\ns_mov_b32 s{d+3}, 0x20000")
    srd(a, 24, "s72", "s73", WS_BYTES)
    srd(a, 60, "s76", "s77", 4718592)
    a.e(f"""v_lshrrev_b32 v{H}, 5, v1
            v_and_b32 v{L31}, 31, v1
            v_lshrrev_b32 v{R}, 2, v{L15}
            v_and_b32 v{C4}, 3, v1
            v_lshl_add_u32 v59, v{H}, 3, v{R}
            v_lshlrev_b32 v59, 7, v59
            v_lshrrev_b32 v60, 1, v{R}
            v_lshl_add_u32 v59, v60, 6, v59
            v_lshl_add_u32 v59, v{G1}, 5, v59
            v_lshl_add_u32 v59, v{C4}, 3, v59
            v_add_u32 v{AW}, s37, v59
            v_xor_b32 v{AW+1}, 64, v{AW}
            v_bfe_u32 v60, v1, 1, 3
            v_xor_b32 v60, v60, v{H}
            v_lshlrev_b32 v60, 4, v60
            v_lshl_add_u32 v60, v{L31}, 7, v60
            v_add_u32 v{AX}, {XS}, v60""")
    for s in range(1, 4): a.e(f"v_xor_b32 v{AX+s}, {32*s}, v{AX}")
    a.e(f"""s_lshl_b32 s3, s28, 2
            s_add_u32 s3, s3, {TOP + 3072}
            v_mov_b32 v{VFO}, s3
            v_xor_b32 v{VFP}, 4, v{VFO}
            v_mov_b32 v61, 0
            ds_write_b32 v{VFO}, v61
            ds_write_b32 v{VFO}, v61 offset:16
            ds_write_b32 v{VFO}, v61 offset:32
            s_mov_b32 s44, 0
            s_mov_b32 s45, 0""")
    def frag_reads(c, s, F):
        buf = c % 3
        L = [f"ds_read_b64_tr_b16 {vr(F + db*4 + k*2, 2)}, v{AW+db} offset:{buf*SLOT + (16*s + 4*k) * 128}" for db in range(2) for k in range(2)]
        return L + [f"ds_read_b128 {vr(F + 8 + qb*4, 4)}, v{AX+s} offset:{buf*12288 + qb*4096}" for qb in range(3)]
    setup = f"""v_lshlrev_b32 v26, 8, v{G}
            v_xor_b32 v27, v{L15}, v{G}
            v_lshl_add_u32 v{VOFFK}, v27, 4, v26
            v_xor_b32 v{VOFFK+1}, 64, v{VOFFK}
            v_xor_b32 v{VOFFK+2}, 128, v{VOFFK}
            v_xor_b32 v{VOFFK+3}, 192, v{VOFFK}
            v_lshlrev_b32 v27, 2, v{G}
            v_xor_b32 v27, v{L15}, v27
            v_lshl_add_u32 v{VOFFV}, v27, 4, v26
            s_lshl_b32 s3, s6, 13
            s_add_u32 s33, s33, s7
            s_lshl_b32 s34, s31, 5
            s_add_u32 s34, s34, s33
            s_lshl_b32 s34, s34, 18
            s_add_u32 s34, s34, s3"""
    if opt.rot:
        setup += """
            s_lshl_b32 s3, s2, 2
            s_add_u32 s3, s3, s7
            s_mul_i32 s3, s3, 0x1e3779b1
            s_lshr_b32 s47, s3, 15
            s_xor_b32 s3, s3, s47
            s_mul_i32 s3, s3, 0x2c1b3c6d
            s_lshr_b32 s3, s3, 20
            s_and_b32 s3, s3, 15
            s_lshl_b32 s35, s3, 14"""
    else: setup += "\ns_mov_b32 s35, 0"
    setup += f"""
            s_mov_b32 s36, s35
            v_xor_b32 v27, v{H}, v{L15}
            v_lshlrev_b32 v27, 4, v27
            v_lshl_add_u32 v27, v{L31}, 8, v27
            v_add_u32 v{VKA}, s37, v27"""
    for s in range(1, 8): setup += f"\nv_xor_b32 v{VKA+s}, {32*s}, v{VKA}"
    setup += f"""
            v_lshl_add_u32 v28, v{H}, 2, v{R}
            v_lshlrev_b32 v28, 8, v28
            v_lshl_add_u32 v28, v{R}, 6, v28
            v_lshl_add_u32 v28, v{G1}, 5, v28
            v_lshl_add_u32 v28, v{C4}, 3, v28
            s_lshl_b32 s47, s6, 7
            v_xor_b32 v28, s47, v28
            v_add_u32 v{VVA}, s37, v28"""
    for db in range(1, 4): setup += f"\nv_xor_b32 v{VVA+db}, {64*db}, v{VVA}"
    setup += f"\ns_mov_b32 s42, {f2u(CSC):#x}\ns_mov_b32 s43, {f2u(THR_LOG2):#x}"
    for qb in range(3): setup += f"\nv_mov_b32 v{LSUM+qb}, 0"
    setup = [x.strip() for x in setup.split("\n")]
    VO, VL16, AD, VOL = 93, 102, 103, 107
    def vo_calc(dst, rev):
        L = []
        for i in range(9):
            L += [f"v_add_u32 v80, {64*i}, v1", "v_mul_u32_u24 v28, 58255, v80", "v_lshrrev_b32 v28, 20, v28", "v_mul_u32_u24 v83, 18, v28",
                  "v_sub_u32 v83, v80, v83", "v_xor_b32 v29, 1, v83", "v_sub_u32 v29, 17, v29"]
            if rev == "vcc": L += ["v_cndmask_b32 v29, v83, v29, s[70:71]"]
            L += ["v_mul_u32_u24 v28, 1152, v28", f"v_lshl_add_u32 v{dst+i}, v29, 4, v28"]
        return L
    setup2 = ["s_cmp_eq_u32 s7, 1\ns_cselect_b64 s[70:71], -1, 0"] + vo_calc(VO, "vcc") + [x.strip() for x in f"""v_lshlrev_b32 v{VL16}, 4, v1
            v_lshlrev_b32 v80, 4, v{H}
            v_lshl_add_u32 v80, v{G1}, 2, v80
            v_add_u32 v80, v80, v{R}
            v_mul_u32_u24 v80, 288, v80
            v_lshl_add_u32 v80, v{C4}, 3, v80
            s_mul_i32 s3, s7, 18432
            v_add_u32 v{AD+1}, s3, v80
            v_add_u32 v{AD}, {SB[0]}, v{AD+1}
            v_lshlrev_b32 v{VOL}, 10, v{G1}
            v_lshl_add_u32 v{VOL}, v{H}, 8, v{VOL}
            v_lshl_add_u32 v{VOL}, v{L15}, 4, v{VOL}
            v_mov_b32 v108, 0
            s_mul_i32 s67, s30, 1179648
            s_mul_i32 s3, s32, 288
            s_add_u32 s64, s67, s3              ; wo: rows of the octet, columns 144p..
            s_lshl_b32 s39, s29, 3
            s_add_u32 s39, s39, s31""".split("\n")]
    setW = ["s_lshl_b32 s66, s32, 1", "s_mul_i32 s65, s28, 9216", f"s_mul_i32 s68, s28, {32*1152}", "s_add_u32 s68, s68, s64"]
    def psync(pre_wait=True):
        psync.n += 1; n = psync.n
        a.e(f"""s_add_u32 s44, s44, 1
                v_mov_b32 v{VD}, s44
                ds_write_b32 v{VFO}, v{VD}
                s_mov_b32 s47, 0x400000""")
        a.label(f"L_ps{n}")
        a.e(f"""ds_read_b32 v{VD}, v{VFP}
                s_sub_u32 s47, s47, 1
                s_waitcnt lgkmcnt(0)
                v_readfirstlane_b32 s3, v{VD}
                s_cmp_eq_u32 s47, 0
                s_cselect_b32 s3, s44, s3
                s_cmp_lt_u32 s3, s44
                s_cbranch_scc1 L_ps{n}""")
    psync.n = 0
    def other_pair(name, word, val, T=84):
        a.e(f"v_mov_b32 v{T+2}, {TOP + 3072 + word}\ns_mov_b32 s47, 0x400000")
        a.label(name)
        a.e(f"""s_sleep 2
                ds_read_b64 v[{T}:{T+1}], v{T+2}
                s_sub_u32 s47, s47, 1
                s_waitcnt lgkmcnt(0)
                v_min_u32 v{T}, v{T}, v{T+1}
                v_readfirstlane_b32 s3, v{T}
                s_cmp_eq_u32 s47, 0
                s_cselect_b32 s3, {val}, s3
                s_cmp_lt_u32 s3, {val}
                s_cbranch_scc1 {name}""")

    ACC = 112
    def qwrite(blocks, dreg, area, extra=()):
        a.e(f"""v_xor_b32 v55, {dreg}, v{L15}
                v_lshlrev_b32 v55, 4, v55
                v_lshl_add_u32 v55, v{L31}, 8, v55
                v_lshl_add_u32 v55, v{H}, 3, v55
                v_add_u32 v55, {area}, v55
                v_mov_b32 v62, s42""")
        for db in range(blocks):
            for i in range(4):
                a.e(f"v_xor_b32 v54, {(4*db + i)*16}, v55")
                if extra: emit(a, [extra[4*db + i]])
                for qb in range(3):
                    r = ACC + (db*3 + qb)*16 + 4*i; tq = 56 + 2 * qb
                    a.e(f"""v_pk_mul_f32 v[{r}:{r+1}], v[{r}:{r+1}], v[62:63] op_sel_hi:[1,0]
                            v_pk_mul_f32 v[{r+2}:{r+3}], v[{r+2}:{r+3}], v[62:63] op_sel_hi:[1,0]
                            v_cvt_pk_bf16_f32 v{tq}, v{r}, v{r+1}
                            v_cvt_pk_bf16_f32 v{tq+1}, v{r+2}, v{r+3}
                            ds_write_b64 v54, v[{tq}:{tq+1}] offset:{qb*8192}""")
    def qread(area):
        a.e(f"s_sub_u32 s3, {area}, s37")
        for s in range(8): a.e(f"v_add_u32 v{32+s}, s3, v{VKA+s}")
        for qb in range(3):
            for s in range(8): a.e(f"ds_read_b128 {vr(Qreg(qb,s),4)}, v{32+s} offset:{qb*8192}")
    FA, FB = 208, 228
    a.wait(vmtags=["s0"], lg0=True); a.e("s_barrier")
    stamp(a, "q0", opt)
    emit(a, frag_reads(0, 0, FA))
    sl = [[] for _ in range(216 + 24)]
    spread(sl, stage(2), 0, 18)
    spread(sl, setup, 18, 130)
    for c in range(9):
        for s in range(4):
            F, nF = (FA, FB) if s % 2 == 0 else (FB, FA)
            k0 = (c*4 + s) * 6
            if s == 3:
                a.wait(vmtags=[f"s{c+1}"], lg0=True); a.e("s_barrier")
                stamp(a, f"c{c}", opt)
                spread(sl, (stage(c + 3) if c + 3 <= 8 else dma_unit(c - 6, opt) if c < 8 else []) + (wtouch if opt.wot == c else []) + ([x.replace(' offen ;', ' offen nt ;') for x in wtouch] if opt.wotnt == c else []), k0, k0 + 24)
            rd = (frag_reads(c + 1, 0, nF) if c < 8 else []) if s == 3 else frag_reads(c, s + 1, nF)
            if opt.qlev:
                for k, x in enumerate(rd): sl[k0 + (0, 0, 1, 1, 2, 3, 4)[k]].insert(0, x)
                a.wait(lgregs=regs_of(vr(F, 20)))
            else: emit(a, rd)
            i = 0
            for db in range(2):
                for qb in range(3):
                    d = vr(ACC + (db*3 + qb)*16, 16)
                    emit(a, [f"v_mfma_f32_32x32x16_bf16 {d}, {vr(F+db*4,4)}, {vr(F+8+qb*4,4)}, " + ("0" if (c == 0 and s == 0) else d)] + sl[k0 + i]); i += 1
    assert not any(sl[216:])
    a.e(f"s_lshl_b32 s3, s6, 3\ns_mul_i32 s4, s7, 24576\ns_add_u32 s4, s4, {XS}")
    qwrite(2, "s3", "s4", dma_unit(2, opt) if opt.k1early else ())
    a.e("s_waitcnt lgkmcnt(0)\ns_barrier")
    qread("s4")
    stamp(a, "qx", opt)
    if not opt.k1early: emit(a, dma_unit(2, opt))
    a.wait(vmtags=["u0"], lg0=True)
    emit(a, kreads(0))
    stamp(a, "k0", opt)
    a.e(f"""v_mov_b32 v26, {TOP + 3072 + 16}
            s_cmp_eq_u32 s7, 1
            s_cselect_b32 s50, {round(opt.thr1 * 16)}, 0
            s_cselect_b32 s38, {round((opt.thr0 + opt.thr1) * 16)}, -1""")
    if not opt.hold: a.e("s_lshl_b32 s50, s7, 1\ns_add_u32 s50, s50, 2\ns_sub_u32 s50, s50, s29")
    if opt.acct: a.e(f"s_mov_b64 s[98:99], s[{STB}:{STB+1}]\ns_mov_b64 s[100:101], s[{STB}:{STB+1}]\ns_mov_b64 s[92:93], s[{STB}:{STB+1}]")
    def wpieces(tag, head, rows, lds, voreg):
        Gs = []
        for i in range(9):
            g = [f"s_add_u32 s4, s66, {head}", "s_and_b32 s4, s4, 7", f"s_mul_i32 s4, s4, {128*1152}", "s_add_u32 s4, s4, s68",
                 f"s_add_u32 s4, s4, {rows*1152}"] if i == 0 else []
            g += [f"s_add_u32 m0, s65, {lds + i*1024}", f"buffer_load_dwordx4 v{voreg+i}, s[60:63], s4 offen{opt.wopol} lds ; @{tag}"]
            Gs.append("\n".join(g))
        return Gs
    HEAD = (0, 2, 4, 6, 1, 3, 5, 7)
    NX = opt.nx
    BUFOF = [st % 2 for st in range(NX + 2)] + [2, 3]
    while len(BUFOF) < 8: BUFOF.append(BUFOF[len(BUFOF) - 4])
    wS = lambda st, b: wpieces(f"w{st}", HEAD[st], 0, SB[b], VO)
    wX = lambda st, VOR: wpieces(f"w{st}", HEAD[st], 0, SB[st % 2], VO) + wpieces(f"w{st}", HEAD[st], 64, SB[st % 2] + 18432, VOR)
    carry = tile_body(a, opt, 0, [])
    carry = tile_body(a, opt, 1, carry, extra=[(setup2 + setW, 0, 41)])
    carry1 = [[x.replace('L_sk1_', 'L_sk4_') for x in y] for y in carry]
    if opt.unroll:
        for t in range(2, 14):
            stamp(a, f'r{t}', opt); carry = tile_body(a, opt, t, carry)
    else:
        stamp(a, "l0", opt)
        a.e("s_mov_b32 s46, 4")
        a.raw(".p2align 6"); a.label("L_tile")
        keep = list(a.vm)
        if not opt.hold: a.e(f"s_cmp_eq_u32 s7, 0\ns_cselect_b32 s3, {2*opt.last[0]}, {2*opt.last[1]}\ns_cmp_gt_u32 s46, 1\ns_cselect_b32 s50, s50, s3")
        if opt.late:
            a.e(f"""s_lshl_b32 s3, s7, 3
                    s_add_u32 s3, s3, s46
                    s_cmp_lg_u32 s3, {opt.late}
                    s_cbranch_scc1 L_nolate
                    s_lshr_b32 s3, s2, 3
                    s_lshl_b32 s3, s3, 1
                    s_add_u32 s3, s3, s6
                    s_mul_i32 s3, s3, 18432
                    v_lshlrev_b32 v84, 7, v1
                    v_add_u32 v84, s3, v84
                    v_add_u32 v85, 8192, v84
                    v_add_u32 v86, 16384, v84
                    v_cmp_gt_u32 vcc, 16, v1
                    v_cndmask_b32 v86, -1, v86, vcc""")
            emit(a, [f"buffer_load_dword v87, v{r}, s[60:63], s67 offen{opt.tpol} ; @junk" for r in (84, 85, 86)])
            a.label("L_nolate")
        if opt.tlb:
            a.e(f"""s_cmp_lg_u32 s46, {opt.tlb}
                    s_cbranch_scc1 L_notlb
                    s_lshl_b32 s3, s39, 2
                    s_add_u32 s4, s3, s30
                    s_mul_i32 s4, s4, {8*24576}
                    v_mov_b32 v84, s4
                    s_add_u32 s4, s4, {8*24576 - 128}
                    v_writelane_b32 v84, s4, 1
                    s_add_u32 s3, s3, s32
                    s_mul_i32 s4, s3, {4*36864}
                    s_add_u32 s4, s4, {WS_P}
                    v_writelane_b32 v84, s4, 2
                    s_add_u32 s4, s4, {4*36864 - 128}
                    v_writelane_b32 v84, s4, 3
                    s_mov_b32 s4, {WS_F + 65536 - 128}
                    v_writelane_b32 v84, s4, 4
                    s_mul_i32 s4, s31, {96*2304}
                    v_mov_b32 v85, s4
                    s_add_u32 s4, s4, {96*2304 - 128}
                    v_writelane_b32 v85, s4, 1
                    s_mov_b64 s[16:17], s[78:79]
                    s_mov_b32 s18, 1769472
                    buffer_load_dword v87, v84, s[24:27], 0 offen nt ; @junk
                    buffer_load_dword v87, v85, s[16:19], 0 offen nt ; @junk""")
            a.label("L_notlb")
        a.vm = keep
        for t in (2, 3, 4): carry = tile_body(a, opt, t, carry)
        assert carry == carry1
        a.e("s_sub_u32 s46, s46, 1\ns_cmp_lg_u32 s46, 0\ns_cbranch_scc1 L_tile")
        for o in a.vm:
            if o.tag and o.tag[0] == "u": o.tag = f"u{int(o.tag[1:]) + 18}"
    stamp(a, "l1", opt)
    raw = lambda L: "\n".join(("LABEL " + y[6:] if y.startswith("LABEL ") else "RAW " + y) for x in L for y in x.split("\n"))
    w0blk = "s_cmp_eq_u32 s7, 1\ns_cbranch_scc1 L_now0\n" + raw([f"""v_mov_b32 v86, {TOP + 3072 + 24}
s_mov_b32 s47, 0x400000
LABEL L_yq
ds_read_b64 v[84:85], v86
s_sub_u32 s47, s47, 1
s_waitcnt lgkmcnt(0)
v_min_u32 v84, v84, v85
s_nop 1
v_readfirstlane_b32 s3, v84
s_nop 1
s_cmp_eq_u32 s47, 0
s_cselect_b32 s3, 1, s3
s_cmp_lt_u32 s3, 1
s_cbranch_scc1 L_yq"""] + [x.replace("buffer_load", "s_nop 0\nbuffer_load") for x in wX(0, VO)]) + "\nLABEL L_now0"
    W0 = lambda t: [([w0blk], opt.w0at[1], opt.w0at[1] + 1)] if opt.w0at and opt.w0at[0] == t else []
    carry = tile_body(a, opt, 14, carry, extra=W0(14))
    xo = lambda k: (k // 8) * SLOT + (k % 8) * 1024
    def send(qb):
        return [f"ds_write_b128 v28, {ar(Oacc(2+i,qb) + 4*g, 4)} offset:{xo((i*3 + qb)*4 + g)}" for i in range(2) for g in range(4)]
    accr = lambda qb: [f"v_accvgpr_read_b32 v{160 + (i*3+qb)*16 + r}, a{Oacc(i,qb) + r}" for i in range(2) for r in range(16)]
    pre = ["buffer_load_dword v106, v108, s[56:59], 0 offen sc1 ; @tag",
           f"v_add_u32 v28, s37, v{VL16}", "s_lshl_b32 s3, s6, 14\ns_sub_u32 s3, 8192, s3", "v_add_u32 v29, s3, v28",
           f"s_mul_i32 s3, s28, 768\ns_add_u32 s3, s3, {TOP}", f"v_lshlrev_b32 v30, 3, v{L31}", "v_add_u32 v30, s3, v30",
           f"s_xor_b32 s3, s28, 1\ns_mul_i32 s3, s3, 768\ns_add_u32 s3, s3, {TOP}", f"v_lshlrev_b32 v31, 3, v{L31}", "v_add_u32 v31, s3, v31"]
    team = "v_and_b32 v13, 3, v1\nv_lshlrev_b32 v13, 10, v13\nv_and_b32 v14, 4, v1\nv_add_u32 v13, v13, v14"
    askX = [f"s_andn2_b32 s71, s2, 24\ns_lshl_b32 s71, s71, 7\ns_add_u32 s69, s71, {WS_F}"] + team.split("\n") + ["buffer_load_dword v12, v13, s[24:27], s69 offen sc1"]
    carry = tile_body(a, opt, 15, carry, extra=[(pre, 8, 16), (askX, 28, 34), (send(0), 34, 48)] + W0(15) + ([] if opt.ysig == 't15' else [(['v_mov_b32 v27, 2\nds_write_b32 v109, v27 offset:16'], opt.ysig, opt.ysig + 1)]) + ([(accr(0), 33, 44)] if opt.accearly else []))
    sl = [[] for _ in range(8)]
    carry = [x for y in carry for x in y]
    cut = max([i + 1 for i, x in enumerate(carry) if x.startswith(f"v_cvt_pk_bf16_f32 v{Sreg(2,3)},")] + [len(carry) - 16, 0])
    emit(a, carry[:cut])
    spread(sl, carry[cut:], 0, 3)
    st = []
    for qb in range(3): st += [f"v_mov_b32 v{3+2*qb}, v{LSUM+qb}", f"v_mov_b32 v{2+2*qb}, v{NM+16*qb}"]
    for qb in range(3): st += [f"v_permlane32_swap_b32 v{LSUM+qb}, v{3+2*qb}"]
    for qb in range(3): st += [f"v_add_f32 v{3+2*qb}, v{LSUM+qb}, v{3+2*qb}", f"ds_write_b64 v30, v[{2+2*qb}:{3+2*qb}] offset:{qb*256}"]
    spread(sl, st + send(1), 3, 8)
    for m, f in zip(pv(2, False), sl): emit(a, [m] + f)
    stamp(a, "t15", opt)
    if opt.ysig == "t15": a.e("v_mov_b32 v27, 2\nds_write_b32 v109, v27 offset:16")
    emit(a, accr(1)[:12] + send(2))
    emit(a, ([] if opt.accearly else accr(0)) + accr(1)[12:] + accr(2))
    a.e("s_mov_b32 s4, 0x100000")
    a.label("L_tag")
    a.e("""s_waitcnt vmcnt(0)
           v_readfirstlane_b32 s75, v106
           s_cmp_lg_u32 s75, 0
           s_cbranch_scc1 L_tag_ok
           buffer_load_dword v106, v108, s[56:59], 0 offen sc1 ; @junk
           s_sub_u32 s4, s4, 1
           s_cmp_lg_u32 s4, 0
           s_cbranch_scc1 L_tag""")
    a.label("L_tag_ok"); a.vm = []
    a.e(f"""s_lshl_b32 s3, s39, 5
            s_add_u32 s3, s3, s33
            s_mul_i32 s52, s3, 24576
            s_mul_i32 s3, s6, 12288
            s_add_u32 s52, s52, s3
            s_waitcnt lgkmcnt(0)""")
    ACC, WF, OF = 112, 16, 0
    def ask(base, lanes):
        a.e(f"s_add_u32 s69, {base}, {WS_F}\n{lanes}\nbuffer_load_dword v12, v13, s[24:27], s69 offen sc1")
    def check(tag):
        a.e("s_mov_b32 s4, 0x100000")
        a.label(f"L_poll{tag}")
        a.e(f"""s_waitcnt vmcnt(0)
                v_cmp_ne_u32 vcc, s75, v12
                s_cbranch_vccz L_got{tag}
                s_sleep 1
                buffer_load_dword v12, v13, s[24:27], s69 offen sc1
                s_sub_u32 s4, s4, 1
                s_cmp_lg_u32 s4, 0
                s_cbranch_scc1 L_poll{tag}""")
        a.label(f"L_got{tag}")
        a.e("s_waitcnt vmcnt(0)")
    def wreads(buf, rows, F, rev=False):
        reg = (AD, AD + 1, 220, 221)[buf]
        return [f"ds_read_b64_tr_b16 {vr(F + nb*4 + 2*k, 2)}, v{reg} offset:{(rows + 8*k) * 288 + 32*(8 - nb if rev else nb)}" for nb in range(9) for k in range(2)]
    def oload(tag, head, db0, nks, dst):
        Gs = []
        for kl in range(nks):
            for j in range(3):
                g = [f"s_add_u32 s47, s66, {head}", "s_and_b32 s47, s47, 7", "s_mul_i32 s47, s47, 24576", "s_add_u32 s47, s47, s37"] + \
                    ([f"s_add_u32 s47, s47, {db0}"] if db0 else []) if kl + j == 0 else ["s_add_u32 s47, s47, 6144"] if j == 0 else []
                Gs.append("\n".join(g + [f"buffer_load_dwordx4 {ar(dst + (kl*3+j)*4, 4)}, v{VL16}, s[24:27], s47 offen offset:{j*1024} sc1 ; @{tag}"]))
        return Gs
    def kstep(F, O, zero, reads, jobs):
        ms = [f"v_mfma_f32_16x16x32_bf16 {vr(ACC + (nb*3+j)*4, 4)}, {vr(F+nb*4,4)}, {ar(O+j*4,4)}, " + ("0" if zero else vr(ACC + (nb*3+j)*4, 4))
              for nb in range(9) for j in range(3)]
        sl = [[] for _ in range(27)]
        spread(sl, reads, 0, 20); spread(sl, jobs, 0, 27)
        a.e("s_waitcnt lgkmcnt(0)")
        for m, f in zip(ms, sl): emit(a, [m] + f)
        return ms
    team = "v_and_b32 v13, 3, v1\nv_lshlrev_b32 v13, 10, v13\nv_and_b32 v14, 4, v1\nv_add_u32 v13, v13, v14"
    a.e(f"""s_lshl_b32 s3, s2, 7
            s_lshl_b32 s4, s28, 2
            s_add_u32 s70, s3, s4
            s_add_u32 s70, s70, {WS_F}
            s_lshl_b32 s3, s39, 2
            s_add_u32 s3, s3, s30
            s_mul_i32 s37, s3, {8*24576}
            s_mul_i32 s4, s6, 3072
            s_add_u32 s37, s37, s4
            s_mul_i32 s4, s7, 12288
            s_add_u32 s37, s37, s4
            s_mov_b32 s45, 0
            s_cmp_eq_u32 s7, 0
            s_cbranch_scc1 L_noearly
            v_cmp_ne_u32 vcc, s75, v12
            s_cbranch_vccnz L_noearly
            s_mov_b32 s45, 1""")
    for st in range(1, 4): emit(a, oload(f"o{st}", HEAD[st], 0, 2, 24*st))
    a.label("L_noearly"); a.vm = []
    a.e(f"v_sub_u32 v27, v29, v{VL16}\nv_add_u32 v27, v27, v{VOL}")
    psync()
    stamp(a, "c_bar", opt)
    for qb in range(3): a.e(f"ds_read_b64 v[{8+2*qb}:{9+2*qb}], v31 offset:{qb*256}")
    RC = (32, 48, 64, 112, 128, 144)
    def recv(blk):
        for g in range(4): a.e(f"ds_read_b128 {vr(RC[blk]+4*g,4)}, v29 offset:{xo(blk*4 + g)}")
    recv(0); recv(1)
    SC = 16
    for qb in range(3):
        pn, pl, on, ol = 8 + 2*qb, 9 + 2*qb, 2 + 2*qb, 3 + 2*qb
        a.auto(f"v_min_f32 v22, v{on}, v{pn}")
        a.e(f"""v_sub_f32 v23, v22, v{on}
                v_sub_f32 v24, v22, v{pn}
                v_exp_f32 v23, v23
                v_exp_f32 v24, v24
                v_mul_f32 v{ol}, v{ol}, v23
                v_fmac_f32 v{ol}, v{pl}, v24
                v_rcp_f32 v{ol}, v{ol}
                v_mul_f32 v{SC+2*qb}, v23, v{ol}
                v_mul_f32 v{SC+2*qb+1}, v24, v{ol}""")
    recv(2); recv(3); recv(4); recv(5)
    for blk in range(6):
        i, qb = divmod(blk, 3)
        K = 160 + blk*16; Rr = RC[blk]
        a.wait(lgregs=regs_of(vr(Rr, 16)))
        for r in range(0, 16, 2):
            a.e(f"v_pk_mul_f32 v[{Rr+r}:{Rr+r+1}], v[{Rr+r}:{Rr+r+1}], v[{SC+2*qb}:{SC+2*qb+1}] op_sel:[0,1] op_sel_hi:[1,1]")
        for r in range(0, 16, 2):
            a.e(f"v_pk_fma_f32 v[{K+r}:{K+r+1}], v[{K+r}:{K+r+1}], v[{SC+2*qb}:{SC+2*qb+1}], v[{Rr+r}:{Rr+r+1}] op_sel_hi:[1,0,1]")
        for j in range(8):
            a.e(f"v_cvt_pk_bf16_f32 v{K+8*(j//4)+j%4}, v{K+2*j}, v{K+2*j+1}")
        a.e(f"s_add_u32 s47, s52, {WS_O + (i*6 + 2*qb)*1024}")
        for s in range(2):
            a.e(f"buffer_store_dwordx4 {vr(K+8*s,4)}, v{VOL}, s[24:27], s47 offen offset:{512*s} sc1")
            a.e(f"ds_write_b128 v27, {vr(K+8*s,4)} offset:{xo(i*6 + 2*qb) + 512*s}")
    stamp(a, "comb", opt)
    a.e("v_mov_b32 v14, s75\ns_cmp_eq_u32 s7, 1\ns_cbranch_scc1 L_tailY")
    stT = save(a)
    if not opt.w0at:
        other_pair("L_yq", 24, 1)
        emit(a, wX(0, VO))
    a.e(f"""s_waitcnt vmcnt({0 if opt.w0at else 18})
            buffer_store_dword v14, v108, s[24:27], s70 offen sc1
            v_add_u32 v3, 8192, v{VL16}
            s_waitcnt lgkmcnt(0)""")
    psync()
    a.e("s_cmp_eq_u32 s6, 1\ns_cbranch_scc1 L_x1")
    sv = save(a)
    for qh in range(2):
        if qh: a.label("L_x1"); load(a, sv)
        for db in range(4):
            for j in range(3): a.e(f"ds_read_b128 {ar(192 + (db*3+j)*4, 4)}, v{3 if db < 2 else VL16} offset:{xo((db % 2)*6 + 3*qh + j)}")
        if qh == 0: a.e("s_branch L_x2")
    a.label("L_x2")
    VOR = 224
    emit(a, vo_calc(VOR, "rev"))
    a.wait(vmtags=["w0"], lg0=True); psync()
    emit(a, wreads(0, 0, WF))
    ask("s71", team)
    a.e(f"v_mov_b32 v4, {TOP + 3072 + 24}")
    def psync_more(k):
        a.e(f"""ds_read_b64 v[6:7], v4
                s_waitcnt lgkmcnt(0)
                v_min_u32 v6, v6, v7
                v_readfirstlane_b32 s3, v6
                s_cmp_lt_u32 s3, 2
                s_cselect_b32 s38, {1 if k < 4 else 0}, 0
                s_add_u32 s3, s38, {2*k}
                v_mov_b32 v{VD}, s3
                ds_write_b32 v{VFO}, v{VD} offset:32
                s_mov_b32 s47, 0x400000""")
        a.label(f"L_pm{k}")
        a.e(f"""ds_read_b32 v{VD}, v{VFP} offset:32
                s_sub_u32 s47, s47, 1
                s_waitcnt lgkmcnt(0)
                v_readfirstlane_b32 s3, v{VD}
                s_cmp_eq_u32 s47, 0
                s_cselect_b32 s3, {2*k}, s3
                s_cmp_lt_u32 s3, {2*k}
                s_cbranch_scc1 L_pm{k}
                s_and_b32 s3, s3, 1
                s_cmp_eq_u32 s6, 0
                s_cselect_b32 s38, s38, s3""")
    for st in range(4):
        b = st % 2; lo, up = (192, 216) if st == 0 else (24*st, 72 + 24*st)
        w = wX(1, VOR) if st == 0 else []
        if st: a.wait(vmtags=[f"o{st}"])
        kstep(WF, lo, st == 0, wreads(b, 32, WF + 36), w[:9])
        kstep(WF + 36, lo + 12, False, wreads(b, 64, WF, st > 0), w[9:])
        j = []
        if st == 0:
            check("A"); stamp(a, "chkA", opt)
            j = [x for k in (1, 2, 3) for x in oload(f"o{k}", HEAD[k], 0, 2, 24*k)]
        else: a.wait(vmtags=[f"x{st}"])
        kstep(WF, up, False, wreads(b, 96, WF + 36, st > 0), j)
        a.wait(vmtags=[f"w{st+1}"], lg0=True); psync_more(st + 1)
        j = wX(st + 2, VOR)
        kstep(WF + 36, up + 12, False, wreads(1 - b, 0, WF), j)
        a.e(f"s_mov_b32 s50, {st + 1}")
        if st < 3: a.e("s_cmp_eq_u32 s38, 0\ns_cbranch_scc1 L_xend")
        if st == 0: emit(a, [x for k in (1, 2, 3) for x in oload(f"x{k}", HEAD[k], 12288, 2, 72 + 24*k)])
    a.label("L_xend")
    a.e(f"v_mov_b32 v{VD}, s50\nds_write_b32 v4, v{VD} offset:24\ns_waitcnt vmcnt(0) lgkmcnt(0)\ns_branch L_join")
    a.label("L_tailY"); load(a, stT)
    a.e("s_cmp_eq_u32 s45, 1\ns_cbranch_scc1 L_hadearly")
    sv = save(a)
    ask("s71", team); check("Y")
    a.vm = list(sv[2])
    for st in range(1, 4): emit(a, oload(f"o{st}", HEAD[st], 0, 2, 24*st))
    a.label("L_hadearly")
    a.e(f"v_mov_b32 v4, {TOP + 3072 + 24}\ns_waitcnt lgkmcnt(0)")
    a.label("L_join"); a.lg = []
    a.e(f"""s_add_u32 s71, s71, 8
            v_add_u32 v220, {SB[2] - SB[1]}, v{AD+1}
            v_add_u32 v221, {SB[3] - SB[1]}, v{AD+1}
            s_mul_i32 s3, s7, -8192
            s_add_u32 s3, s3, {YB + 8192}
            v_add_u32 v2, s3, v{VL16}
            v_mov_b32 v15, s75
            s_barrier""")
    stamp(a, "join", opt)
    a.e("ds_read_b32 v5, v4 offset:24\ns_cmp_eq_u32 s6, 1\ns_cbranch_scc1 L_own1")
    sv = save(a)
    for qh in range(2):
        if qh: a.label("L_own1"); load(a, sv)
        for kl in range(2):
            for j in range(3): a.e(f"ds_read_b128 {ar(96 + (kl*3+j)*4, 4)}, v2 offset:{xo(kl*6 + 3*qh + j)}")
        if qh == 0: a.e("s_branch L_own2")
    a.label("L_own2")
    a.auto("v_readfirstlane_b32 s50, v5")
    for n in (2, 3, 4): a.e(f"s_cmp_eq_u32 s50, {n}\ns_cbranch_scc1 L_joint{n}")
    stJ = save(a)
    oy = lambda k: oload(f"o{k}", HEAD[k], 0, 2, 24*k)
    for NX in (4, 3, 2, 1)[::-1]:
        if NX > 1: a.label(f"L_joint{NX}"); load(a, stJ)
        BUFOF = [st % 2 for st in range(NX + 2)] + [2, 3]
        while len(BUFOF) < 8: BUFOF.append(BUFOF[len(BUFOF) - 4])
        W_ = lambda st: wS(st, BUFOF[st])
        emit(a, wreads(BUFOF[NX], 0, WF))
        a.wait(vmtags=[f"o{NX}"])
        a.e(f"s_cmp_eq_u32 s7, 1\ns_cbranch_scc1 L_fy{NX}")
        sv = save(a); chk = a.check
        a.check = False
        kstep(WF, 24*NX, False, wreads(BUFOF[NX], 32, WF + 36), W_(NX + 2))
        a.e(f"s_branch L_fx{NX}")
        a.label(f"L_fy{NX}"); load(a, sv)
        kstep(WF, 24*NX, True, wreads(BUFOF[NX], 32, WF + 36), W_(NX + 2))
        a.check = chk
        a.e("s_waitcnt vmcnt(9)\nbuffer_store_dword v15, v108, s[24:27], s70 offen sc1 ; @junk")
        a.label(f"L_fx{NX}"); a.vm = [o for o in a.vm if o.tag == f"w{NX+2}"]
        A = max(NX, min(opt.askat, 4))
        plan = {}
        for k in range(NX + 4, 8): plan.setdefault((k - 4, 1) if k - 4 > NX else (NX + 1, 0), []).append(W_(k))
        plan.setdefault((NX, 1), []).append(W_(NX + 3))
        if A <= 3:
            for i, k in enumerate((5, 6, 7)): plan.setdefault((A + (i + 1) // 2, (i + 1) % 2), []).insert(0, oy(k))
        job = lambda st, kl: [x for y in plan.get((st, kl), []) for x in y]
        for st in range(NX, 8):
            if st > NX:
                if st == A: ask("s71", team)
                if st >= 5: a.wait(vmtags=[f"o{st}"])
                kstep(WF, 24*st, False, wreads(BUFOF[st], 32, WF + 36), job(st, 0))
            elif st == A: ask("s71", team)
            if st == A and A <= 3: check(f"B{NX}"); stamp(a, "chk1", opt)
            if st < 7:
                a.wait(vmtags=[f"w{st+1}"], lg0=True); a.e("s_barrier")
                kstep(WF + 36, 24*st + 12, False, wreads(BUFOF[st + 1], 0, WF), job(st, 1))
            if st == A and A == 4:
                check(f"B{NX}"); stamp(a, "chk1", opt); emit(a, oy(5) + oy(6) + oy(7))
        if NX < 4: a.e("s_branch L_fin")
    a.label("L_fin")
    a.e(f"""s_lshl_b32 s3, s28, 14
            v_add_u32 v13, s3, v{VL16}
            v_xor_b32 v14, 32768, v13
            s_lshl_b32 s52, s39, 2
            s_add_u32 s52, s52, s32
            s_lshl_b32 s53, s52, 2
            s_add_u32 s53, s53, s30
            s_mul_i32 s53, s53, 36864
            s_mul_i32 s3, s28, 9216
            s_add_u32 s53, s53, s3
            s_add_u32 s47, s53, {WS_P}
            s_waitcnt lgkmcnt(0)
            s_barrier""")
    F, O = WF + 36, 180
    T = lambda nb, j: ACC + (nb*3+j)*4
    ms = [f"v_mfma_f32_16x16x32_bf16 {vr(T(nb,j), 4)}, {vr(F+nb*4,4)}, {ar(O+j*4,4)}, {vr(T(nb,j), 4)}" for nb in (8, 7, 6, 5, 4, 0, 1, 2, 3) for j in range(3)]
    snd = [f"ds_write_b128 v13, {vr(T(nb,j),4)} offset:{((8-nb)*3+j)*1024}" for nb in range(8, 3, -1) for j in range(3)]
    emit(a, ms[:6])
    for k in range(15): emit(a, [ms[6 + k], snd[k]])
    emit(a, ms[21:])
    stamp(a, "gend", opt)
    a.e("s_waitcnt lgkmcnt(0)\ns_barrier")
    order = [(k, j) for k in range(3) for j in range(3)]
    for k, j in order:
        for nb in range(2*k, min(2*k + 2, 5)): a.e(f"ds_read_b128 {vr(WF + (nb*3+j)*4, 4)}, v14 offset:{(nb*3+j)*1024}")
    for k, j in order:
        r = T(2*k, j)
        for h, nb in enumerate(range(2*k, min(2*k + 2, 5))):
            t, q = T(nb, j), WF + (nb*3+j)*4
            a.wait(lgregs=regs_of(vr(q, 4)))
            a.e(f"v_pk_add_f32 v[{t}:{t+1}], v[{t}:{t+1}], v[{q}:{q+1}]\nv_pk_add_f32 v[{t+2}:{t+3}], v[{t+2}:{t+3}], v[{q+2}:{q+3}]")
            a.e(f"v_cvt_pk_bf16_f32 v{r+2*h}, v{t}, v{t+1}\nv_cvt_pk_bf16_f32 v{r+2*h+1}, v{t+2}, v{t+3}")
        if k < 2: a.e(f"buffer_store_dwordx4 {vr(r,4)}, v{VL16}, s[24:27], s47 offen offset:{j*1024} sc1")
        else: a.e(f"buffer_store_dwordx2 {vr(r,2)}, v{VL16}, s[24:27], s47 offen offset:{j*1024} sc1")
        if j == 2 and k < 2: a.e("s_add_u32 s47, s47, 3072")
    a.e(f"""s_add_u32 s70, s70, 32768
            s_andn2_b32 s71, s2, 3
            s_lshl_b32 s71, s71, 7
            s_add_u32 s71, s71, 32768
            v_and_b32 v10, 15, v1
            v_mul_u32_u24 v10, 2304, v10
            v_lshrrev_b32 v11, 4, v1
            v_lshl_add_u32 v10, v11, 3, v10
            s_mul_i32 s52, s52, {4*36864}
            s_add_u32 s52, s52, {WS_P}
            s_mul_i32 s53, s31, {96*2304}
            s_mul_i32 s3, s29, 1152
            s_add_u32 s53, s53, s3
            s_mul_i32 s3, s32, 288
            s_add_u32 s53, s53, s3
            s_lshl_b32 s54, s30, 2
            s_add_u32 s54, s54, s28""")
    srd(a, 8, "s78", "s79", 1769472)
    def decode(i):
        A, B, C = 56 + 4*i, 57 + 4*i, 58 + 4*i
        a.e(f"""s_add_u32 s3, s54, {16*i}
                s_mul_i32 s4, s3, 43
                s_lshr_b32 s4, s4, 8
                s_mul_i32 s5, s4, 6
                s_sub_u32 s3, s3, s5            ; q16
                s_mul_i32 s{B}, s3, {16*2304}
                s_add_u32 s{B}, s{B}, s53
                s_cmp_ge_u32 s3, 3
                s_cselect_b32 s5, {9216 - 3072}, 0
                s_lshl_b32 s3, s3, 10
                s_add_u32 s{A}, s3, s5          ; qh * 9216 + j * 1024
                s_add_u32 s{A}, s{A}, s52
                s_and_b32 s3, s4, 1
                s_cmp_eq_u32 s4, 4
                s_cselect_b32 s3, 2, s3         ; k
                s_cselect_b32 s{C}, 0, 32
                s_mul_i32 s5, s3, 3072
                s_add_u32 s{A}, s{A}, s5
                s_lshl_b32 s3, s3, 6
                s_and_b32 s4, s4, 2
                s_cmp_eq_u32 s4, 2
                s_cselect_b32 s5, 18432, 0
                s_add_u32 s{A}, s{A}, s5
                s_cmp_eq_u32 s4, 2
                s_cselect_b32 s{C}, -32, s{C}
                s_sub_u32 s5, 256, s3
                s_cmp_eq_u32 s4, 2
                s_cselect_b32 s3, s5, s3
                s_add_u32 s{B}, s{B}, s3""")
    decode(0); decode(1)
    a.e("s_waitcnt vmcnt(0)\nbuffer_store_dword v15, v108, s[24:27], s70 offen sc1")
    stamp(a, "pub2", opt)
    ask("s71", "v_and_b32 v13, 3, v1\nv_lshlrev_b32 v13, 7, v13\nv_and_b32 v14, 12, v1\nv_add_u32 v13, v13, v14"); check(2)
    stamp(a, "chk2", opt)
    def loads(i):
        for o in range(4):
            a.e(f"buffer_load_dwordx4 {vr(16+16*i+4*o,4)}, v{VL16}, s[24:27], s{56+4*i} offen sc1")
            if o < 3: a.e(f"s_add_u32 s{56+4*i}, s{56+4*i}, 36864")
    def fin(i, left):
        b, D = 16 + 16*i, 112 + 16*i
        for o in range(4):
            a.e(f"s_waitcnt vmcnt({left + 3 - o})")
            for k in range(4):
                r = b + 4*o + k
                if o == 0: a.e(f"v_lshlrev_b32 v{D+2*k}, 16, v{r}\nv_and_b32 v{D+2*k+1}, 0xffff0000, v{r}")
                else: a.e(f"v_lshlrev_b32 v{D+8}, 16, v{r}\nv_and_b32 v{r}, 0xffff0000, v{r}\nv_add_f32 v{D+2*k}, v{D+2*k}, v{D+8}\nv_add_f32 v{D+2*k+1}, v{D+2*k+1}, v{r}")
        for k in range(4): a.e(f"v_cvt_pk_bf16_f32 v{D+k}, v{D+2*k}, v{D+2*k+1}")
        a.e(f"""buffer_store_dwordx2 v[{D}:{D+1}], v10, s[8:11], s{57+4*i} offen{opt.opol}
                s_add_u32 s{57+4*i}, s{57+4*i}, s{58+4*i}""")
        if i == 1: a.e("s_cmp_eq_u32 s62, 0\ns_cbranch_scc1 L_rd2")
        a.e(f"buffer_store_dwordx2 v[{D+2}:{D+3}], v10, s[8:11], s{57+4*i} offen{opt.opol}")
    loads(0)
    a.e("s_cmp_ge_u32 s54, 14\ns_cbranch_scc1 L_rd1")
    sv = save(a)
    loads(1); fin(0, 4); fin(1, 2)
    a.e("s_branch L_rd2")
    a.label("L_rd1"); load(a, sv)
    fin(0, 0)
    a.label("L_rd2")
    stamp(a, "end", opt)
    if opt.stamps:
        a.e(f"s_lshl_b32 s3, s2, 2\ns_add_u32 s3, s3, s28\ns_lshl_b32 s3, s3, 7\ns_add_u32 s3, s3, {WS_STAMP}\nv_mov_b32 v0, 0")
        for i in range(1 + len(opt.sset)):
            a.e(f"v_mov_b32 v2, s{STB+2*i}\nv_mov_b32 v3, s{STB+1+2*i}\nbuffer_store_dwordx2 v[2:3], v0, s[24:27], s3 offen offset:{8*i}\ns_waitcnt vmcnt(0)")
    a.label("L_done")
    a.e("s_endpgm")
    for qb in range(3): rare(a, qb)
    a.label("L_hold", reset=True)
    a.e("s_mov_b32 s47, 0x400000")
    a.label("L_hold1")
    a.e("""s_sleep 4
           ds_read_b64 v[30:31], v26
           s_sub_u32 s47, s47, 1
           s_waitcnt lgkmcnt(0)
           v_min_u32 v30, v30, v31
           v_readfirstlane_b32 s3, v30
           s_lshl_b32 s3, s3, 4
           s_cmp_eq_u32 s47, 0
           s_cselect_b32 s3, s38, s3
           s_cmp_lt_i32 s3, s38
           s_cbranch_scc1 L_hold1
           s_setpc_b64 s[40:41]""")

def build(opt):
    a = Asm()
    a.raw("; @launch grid=(256,1,1) block=(256,1,1) lds=163840")
    a.raw('.amdgcn_target "amdgcn-amd-amdhsa--gfx950"')
    kernel(a, NAME + "_kernel", opt)
    a.raw('.section .rodata,"a"\n.p2align 6')
    a.raw("\n".join([f".amdhsa_kernel {NAME}_kernel", "  .amdhsa_next_free_vgpr 512", "  .amdhsa_next_free_sgpr 102",
        "  .amdhsa_accum_offset 256", "  .amdhsa_group_segment_fixed_size 0", "  .amdhsa_kernarg_size 104",
        "  .amdhsa_user_sgpr_count 2", "  .amdhsa_user_sgpr_kernarg_segment_ptr 1",
        "  .amdhsa_system_sgpr_workgroup_id_x 1", ".end_amdhsa_kernel"]))
    return a.text(), a

if __name__ == "__main__":
    opt = Opt()
    out = sys.argv[1] if len(sys.argv) > 1 else "k.s"
    for kv in sys.argv[2:]:
        k, v = kv.split("=", 1); assert hasattr(opt, k), k
        setattr(opt, k, eval(v))
    t, a = build(opt)
    open(out, "w").write(t)
    print(out, "lines", t.count("\n"), "pad", a.npad)
```

```python
import sys, struct, math
sys.path.insert(0, "dev")
from asmlib import Asm, spread, regs_of, level_fill
import gen5
from gen5 import (NAME, f2u, CSC, THR_LOG2, WS_BYTES, WS_O, WS_P, WS_F, WS_STAMP, STB, vr, ar, srd, stamp, emit,
                  VOFFK, VOFFV, VKA, VVA, LSUM, TMAX, VT, NM, S0, Q0, KF, VF, Sreg, Qreg, Oacc, softmax, qk, pv, rare)

class Opt:
    wp = "pppp"
    noB = False
    stamps = False
    sset = ['q0', 'k0', 't15', 'comb', 'join', 'chk1', 'gend', 'pub2', 'end']
    thr0 = 0.0
    thr1 = 1.25
    clk = "s_memrealtime"
    rot = True
    krot = 5
    qlev = True
    rspan = 66
    kspan = 40
    wdel = 8
    kvtlb = False
    capb = None
    pbf16 = True
    k1early = False
    wot = None
    wotnt = None
    tlb = 0
    nx = 1
    accearly = True
    cap = (7, 6)
    capend = 30
    hold = False
    xgate = 0
    last = (0, 0)
    ylast = 1
    kvsame = False
    unroll = False
    a0at = 2
    opol = ''
    late = 2
    prio = 0
    gate = 12
    pace = 1.0
    d1 = (8, 10, 12, 14, 22, 24, 26, 27)
    d2 = (29, 31, 33, 35, 37, 39, 44, 47)
    dcost = 4.0
    acct = 0
    w0 = 10
    askat = 3
    fewwait = True
    vwin = (16, 22)
    kwin = (40, 44)
    tpol = ''
    wopol = ''

SLOT = 16384
SV = 126976
def slot(u): return (2 if u == 0 else (-u) % 3) * SLOT
STG = lambda i: 45056 + 28672 * i
TOP = 159744
SB = (122880, 0, 86016, 49152)
NS = 3
YB = 49152

def dma_unit(u, opt):
    kind = "KV"[u % 2]; sreg = "s36" if kind == "K" else "s35"
    srdn = "s[8:11]" if kind == "K" else "s[12:15]"
    G = []
    for j in range(8):
        g = []
        mb, mo = ("s54", 0) if u == 1 else ("s37", slot(u))
        if j == 0: g += [f"s_add_u32 m0, {mb}, {mo}", f"s_add_u32 s51, s34, {sreg}"]
        if j == 1 and not opt.kvsame: g += [f"s_add_u32 {sreg}, {sreg}, 16384", f"s_and_b32 {sreg}, {sreg}, 0x3ffff"]
        if j == 4: g += [f"s_add_u32 m0, {mb}, {mo + 4096}", "s_add_u32 s51, s51, 4096"]
        vo = VOFFK + j % 4 if kind == "K" else VOFFV
        if opt.cap and 4 <= u <= opt.capend:
            cx, cy = opt.cap
            cx, cy = (c if isinstance(c, int) else c[j % len(c)] for c in (cx, cy))
            dma_unit.n += 1; n = dma_unit.n
            bx, by = (c if isinstance(c, int) else c[j % len(c)] for c in (opt.capb or opt.cap))
            prev = None
            for lv, c in enumerate((bx, cx, by, cy)):
                if c == prev: continue
                R_ = "RAW " if prev else ""
                g += [R_ + f"s_cmp_le_u32 s50, {lv}", R_ + f"s_cbranch_scc1 L_cap{n}", f"RAW s_waitcnt vmcnt({c - 1})"]
                assert prev is None or c < prev
                prev = c
            g += [f"LABEL L_cap{n}"]
        g.append(f"buffer_load_dwordx4 v{vo}, {srdn}, s51 offen offset:{(j % 4)*1024} nt lds ; @u{u}")
        G.append("\n".join(g))
    return G
dma_unit.n = 0
def kreads(t): return [f"ds_read_b128 {ar(KF+4*s,4)}, v{VKA+s} offset:{slot(2*t)}" for s in range(8)]
def vreads(t):
    return [f"ds_read_b64_tr_b16 {ar(VF + db*8 + s*4 + k*2, 2)}, v{(VVA if t else 28)+db} offset:{(slot(2*t+1) if t else 0) + 4096*s + 2048*k}"
            for s in range(2) for db in range(4) for k in range(2)]
def tile_body(a, opt, t, carry, extra=()):
    first = t == 0
    M = qk(0, first) + (pv(2, t == 1) if t else [None]*8) + qk(1, first) + pv(0, first) + qk(2, first) + pv(1, first)
    W = opt.w0
    sl = [[] for _ in range(48 + W)]
    def at(G, slots):
        for g, k in zip(G, slots): sl[k].append(g)
    if 2*t + NS <= 31: at(dma_unit(2*t + NS if t else 4, opt), opt.d1)
    spread(sl, [f"WAITVM u{2*t+1}"] + vreads(t), *opt.vwin)
    if 2*t + NS + 1 <= 31 and t: at(dma_unit(2*t + NS + 1, opt), opt.d2)
    if t < 15: spread(sl, [f"WAITVM u{2*t+2}"] + kreads(t + 1), *opt.kwin)
    if t == 14 and opt.xgate: sl[30].append('v_mov_b32 v27, 2\nds_write_b32 v109, v27 offset:16')
    if opt.hold or t == 0: sl[46].append("s_add_u32 s45, s45, 1\nv_mov_b32 v27, s45\nds_write_b32 v109, v27 offset:16")
    if 1 <= t <= 14 and opt.hold:
        sl[44].append("ds_read_b64 v[30:31], v26")
        sl[47].append(f"""AUTO v_min_u32 v30, v30, v31
s_add_u32 s38, s38, s50
s_min_i32 s38, s38, 256
v_readfirstlane_b32 s3, v30
s_lshl_b32 s3, s3, 4
s_cmp_ge_i32 s3, s38
s_cbranch_scc1 L_go{t}
s_call_b64 s[40:41], L_hold
LABEL L_go{t}""")
    for e in extra: spread(sl, *e)
    for i, x in enumerate(carry): sl[i] = x + sl[i]
    ghost = {48 + k: "buffer_x\ns_nop 0\ns_nop 0" for k in opt.d1 if k < W}
    for k, g in ghost.items(): sl[k].append(g)
    level_fill(sl, softmax(0, t, first), W, W + 16, opt.dcost)
    level_fill(sl, softmax(1, t, first), W + 16, W + 32, opt.dcost)
    level_fill(sl, softmax(2, t, first), W + 32, W + 48, opt.dcost)
    for k in ghost: sl[k] = sl[k][1:]
    for i in range(48):
        if opt.fewwait:
            if i == 0: a.wait(lgregs=regs_of(ar(KF, 32)))
            if i == 24: a.wait(lgregs=regs_of(ar(VF, 32)))
        if M[i]: emit(a, [M[i]])
        for x in sl[i]:
            if opt.acct and x.startswith("WAITVM"):
                keep = list(a.lg)
                a.e("s_memtime s[94:95]"); emit(a, [x]); a.e("s_memtime s[96:97]\ns_waitcnt lgkmcnt(0)\ns_sub_u32 s96, s96, s94")
                r = 98 if int(x.split("u")[1]) % 2 else 100
                a.e(f"s_add_u32 s{r}, s{r}, s96")
            elif opt.acct == 2 and "lds ;" in x:
                a.e("s_memtime s[94:95]"); emit(a, [x]); a.e("s_memtime s[96:97]\ns_waitcnt lgkmcnt(0)\ns_sub_u32 s96, s96, s94\ns_add_u32 s92, s92, s96")
            else: emit(a, [x])
    return sl[48:]

def save(a): return (list(a.hist), list(a.lg), list(a.vm))
def load(a, st): a.hist, a.lg, a.vm = (list(x) for x in st)

def kernel(a, name, opt):
    a.raw(".text"); a.raw(f".globl {name}"); a.raw(".p2align 8"); a.raw(f".type {name},@function")
    a.label(name, reset=True)
    a.e("""s_load_dwordx8 s[56:63], s[0:1], 0
           s_load_dwordx8 s[64:71], s[0:1], 40
           s_load_dwordx2 s[72:73], s[0:1], 96
           s_load_dwordx2 s[40:41], s[0:1], 32
           s_load_dwordx2 s[42:43], s[0:1], 72
           s_load_dwordx4 s[44:47], s[0:1], 80
           s_memrealtime s[48:49]
           s_cmp_ge_u32 s2, 256
           s_cbranch_scc1 L_done""")
    if opt.stamps: a.e(f"{opt.clk} s[{STB}:{STB+1}]")
    VW, VXA, VXB, AW, AX, VD = 72, 73, 74, 76, 64, 111
    G, L15, H, L31, G1, R, C4 = 88, 89, 90, 91, 92, 81, 82
    VFO, VFP = 109, 110
    a.e(f"""v_lshrrev_b32 v1, 6, v0
            s_and_b32 s3, s2, 7
            s_lshr_b32 s29, s3, 2
            s_and_b32 s30, s3, 3
            v_readfirstlane_b32 s28, v1
            s_lshr_b32 s3, s2, 3
            s_lshr_b32 s31, s3, 2
            s_and_b32 s32, s3, 3
            v_and_b32 v1, 63, v0
            v_lshrrev_b32 v{G}, 4, v1
            v_and_b32 v{L15}, 15, v1
            v_lshrrev_b32 v56, 3, v1
            v_and_b32 v57, 7, v1
            v_and_b32 v{G1}, 1, v{G}
            v_lshlrev_b32 v59, 2, v{G1}
            v_xor_b32 v59, v57, v59
            v_lshlrev_b32 v59, 4, v59
            v_lshl_add_u32 v{VW}, v56, 13, v59
            v_mul_u32_u24 v60, 1152, v56
            v_xor_b32 v61, v57, v{G}
            s_and_b32 s6, s28, 1
            s_lshr_b32 s7, s28, 1
            s_lshl_b32 s3, s6, 2
            v_xor_b32 v61, s3, v61
            v_lshl_add_u32 v{VXA}, v61, 4, v60
            v_xor_b32 v61, 4, v61
            v_lshl_add_u32 v{VXB}, v61, 4, v60
            s_mul_i32 s37, s7, {YB}
            s_lshl_b32 s3, s6, 13
            s_add_u32 s37, s37, s3
            s_lshl_b32 s33, s30, 3
            s_lshl_b32 s3, s32, 1
            s_add_u32 s33, s33, s3              ; head X
            s_add_u32 s74, s3, s31              ; b + 2p
            s_lshl_b32 s52, s33, 8
            s_lshl_b32 s3, s28, 7
            s_add_u32 s52, s52, s3
            s_mul_i32 s53, s31, 110592
            s_mul_i32 s3, s28, 27648
            s_add_u32 s53, s53, s3              ; x rows 24w..
            s_mul_i32 s55, s28, 3072
            s_mov_b32 s18, 884736
            s_mov_b32 s19, 0x20000
            s_mov_b32 s22, 4718592
            s_mov_b32 s23, 0x20000""")
    if opt.krot == 0: a.e("s_mov_b32 s74, 0")
    elif opt.krot == 1: a.e("s_cmp_ge_u32 s74, 9\ns_cselect_b32 s3, 9, 0\ns_sub_u32 s74, s74, s3")
    elif opt.krot == 3: a.e("s_and_b32 s74, s74, 1\ns_lshl_b32 s74, s74, 2")
    elif opt.krot == 2: a.e("s_add_u32 s74, s31, s32\ns_mul_i32 s3, s74, 86\ns_lshr_b32 s3, s3, 8\ns_mul_i32 s3, s3, 3\ns_sub_u32 s74, s74, s3\ns_mul_i32 s74, s74, 3")
    elif opt.krot == 4: a.e("s_add_u32 s74, s31, s32\ns_and_b32 s74, s74, 3\ns_mul_i32 s74, s74, 9\ns_lshr_b32 s74, s74, 2")
    elif opt.krot == 5: a.e("s_add_u32 s74, s31, s32\ns_and_b32 s74, s74, 1\ns_lshl_b32 s74, s74, 2")
    a.e("s_cmp_eq_u32 s29, 0\ns_waitcnt lgkmcnt(0)")
    for d, o in ((20, 6), (16, 0), (8, 2), (12, 4)):
        a.e(f"s_cselect_b32 s{d}, s{56+o}, s{64+o}\ns_cselect_b32 s{d+1}, s{57+o}, s{65+o}")
    a.e("""s_cselect_b32 s76, s40, s42
           s_cselect_b32 s77, s41, s43
           s_mov_b64 s[78:79], s[44:45]
           s_mov_b64 s[80:81], s[46:47]
           s_or_b32 s75, s48, 1""")
    P = lambda ch: " nt" if ch == "n" else ""
    XS = 98304
    VW4, VX3 = 32, 36
    a.e(f"""v_mov_b32 v{VW4}, v{VW}
            v_add_u32 v{VW4+1}, {65536 - 1024}, v{VW}
            v_add_u32 v{VW4+2}, {2*(65536 - 1024)}, v{VW}
            v_add_u32 v{VW4+3}, {3*(65536 - 1024)}, v{VW}
            v_mov_b32 v{VX3}, v{VXA}
            v_add_u32 v{VX3+1}, {9216 - 1024}, v{VXB}
            v_add_u32 v{VX3+2}, {2*(9216 - 1024)}, v{VXA}
            s_lshl_b32 s4, s74, 19
            s_add_u32 s4, s4, s52
            s_lshl_b32 s5, s74, 7
            s_add_u32 s5, s5, s53
            s_sub_u32 s74, 9, s74""")
    WR = lambda c, j: ar(((c - 3)*8 + j)*4, 4)
    XR = lambda c, i: ar(192 + ((c-3)*3 + i)*4, 4) if (c-3)*3 + i < 16 else vr(40 + ((c-3)*3 + i - 16)*4, 4)
    def regstage(c):
        Gs = []
        for j in range(8):
            Gs.append(("s_add_u32 s4, s4, 262144\n" if j == 4 else "") + f"buffer_load_dwordx4 {WR(c,j)}, v{VW4 + j % 4}, s[20:23], s4 offen offset:{(j % 4)*1024}{P(opt.wp[0])} ; @s{c}")
        for i in range(3):
            g = ("s_add_u32 s4, s4, 262144\n" if i == 0 else "") + f"buffer_load_dwordx4 {XR(c,i)}, v{VX3 + i}, s[16:19], s5 offen offset:{i*1024}{P(opt.wp[1])} ; @s{c}"
            if i == 2: g += f"\ns_add_u32 s5, s5, 128\ns_sub_u32 s74, s74, 1\ns_cmp_lg_u32 s74, 0\ns_cbranch_scc1 L_nw{c}\nRAW s_mov_b32 s4, s52\nRAW s_mov_b32 s5, s53\nLABEL L_nw{c}"
            Gs.append(g)
        return Gs
    def regwrite(c):
        return [f"WAITVM s{c}"] + [f"ds_write_b128 v48, {WR(c,j)} offset:{(c % 2)*SLOT + j*1024}" for j in range(8)] + \
               [f"ds_write_b128 v49, {XR(c,i)} offset:{(c % 2)*12288 + i*1024}" for i in range(3)]
    def stage(c):
        buf = c % 3; Gs = []
        if c >= 3: return regstage(c)
        for j in range(8):
            g = [f"s_add_u32 m0, s37, {buf*SLOT}", "s_nop 0"] if j == 0 else [f"s_add_u32 m0, s37, {buf*SLOT + 4096}", "s_add_u32 s4, s4, 262144"] if j == 4 else []
            Gs.append("\n".join(g + [f"buffer_load_dwordx4 v{VW4 + j % 4}, s[20:23], s4 offen offset:{(j % 4)*1024}{P(opt.wp[0])} lds ; @s{c}"]))
        for i in range(3):
            g = [f"s_add_u32 m0, s55, {XS + buf*12288}", "s_add_u32 s4, s4, 262144"] if i == 0 else []
            g += [f"buffer_load_dwordx4 v{VX3 + i}, s[16:19], s5 offen offset:{i*1024}{P(opt.wp[1])} lds ; @s{c}"]
            if i == 2: g += ["s_add_u32 s5, s5, 128", "s_sub_u32 s74, s74, 1", f"s_cbranch_scc0 L_nw{c}", ]
            Gs.append("\n".join(g))
        Gs[-1] = Gs[-1].replace(f"s_sub_u32 s74, s74, 1\ns_cbranch_scc0 L_nw{c}", f"s_sub_u32 s74, s74, 1\ns_cmp_lg_u32 s74, 0\ns_cbranch_scc1 L_nw{c}\nRAW s_mov_b32 s4, s52\nRAW s_mov_b32 s5, s53\nLABEL L_nw{c}")
        return Gs
    stamp(a, 'ka', opt)
    wtouch = [x.strip() for x in """s_lshr_b32 s3, s2, 3
            s_lshl_b32 s3, s3, 2
            s_add_u32 s3, s3, s28
            s_mul_i32 s3, s3, 9216
            s_mul_i32 s47, s30, 1179648
            v_lshlrev_b32 v24, 7, v1
            v_add_u32 v24, s3, v24
            v_add_u32 v25, 8192, v24
            v_cmp_gt_u32 s[70:71], 8, v1
            v_cndmask_b32 v25, -1, v25, s[70:71]""".split("\n")]
    wtouch = ["\n".join(wtouch + ["buffer_load_dword v23, v24, s[60:63], s47 offen ; @junk"]), "s_mul_i32 s47, s30, 1179648\nbuffer_load_dword v23, v25, s[60:63], s47 offen ; @junk"]
    if opt.wot is not None: srd(a, 60, "s76", "s77", 4718592)
    if opt.wot == 'a': emit(a, wtouch)
    emit(a, stage(0))
    if opt.kvtlb:
        a.e(f"""s_mov_b32 s10, {1 << 26}
                s_mov_b32 s11, 0x20000
                s_mov_b32 s14, {1 << 26}
                s_mov_b32 s15, 0x20000
                s_lshl_b32 s3, s31, 5
                s_add_u32 s3, s3, s33
                s_add_u32 s3, s3, s7
                s_lshl_b32 s3, s3, 18
                v_and_b32 v24, 3, v1
                v_lshlrev_b32 v24, 16, v24
                buffer_load_dword v23, v24, s[8:11], s3 offen nt ; @junk
                buffer_load_dword v23, v24, s[12:15], s3 offen nt ; @junk""")
    if opt.wot == 'b': emit(a, wtouch)
    stamp(a, 'i0', opt)
    srd(a, 56, "s80", "s81", 256)
    a.e("""s_lshl_b32 s3, s2, 8
           v_add_u32 v106, s3, v0
           v_min_u32 v106, 1, v106
           v_lshlrev_b32 v106, 12, v106
           v_mov_b32 v107, s75
           buffer_store_dword v107, v106, s[56:59], 0 offen sc1""")
    emit(a, stage(1))
    if opt.wot == 'c': emit(a, wtouch)
    for d in (8, 12): a.e(f"s_mov_b32 s{d+2}, {1 << 26}\ns_mov_b32 s{d+3}, 0x20000")
    srd(a, 24, "s72", "s73", WS_BYTES)
    srd(a, 60, "s76", "s77", 4718592)
    a.e(f"""v_lshrrev_b32 v{H}, 5, v1
            v_and_b32 v{L31}, 31, v1
            v_lshrrev_b32 v{R}, 2, v{L15}
            v_and_b32 v{C4}, 3, v1
            v_lshl_add_u32 v59, v{H}, 3, v{R}
            v_lshlrev_b32 v59, 7, v59
            v_lshrrev_b32 v60, 1, v{R}
            v_lshl_add_u32 v59, v60, 6, v59
            v_lshl_add_u32 v59, v{G1}, 5, v59
            v_lshl_add_u32 v59, v{C4}, 3, v59
            v_add_u32 v{AW}, s37, v59
            v_xor_b32 v{AW+1}, 64, v{AW}
            v_bfe_u32 v60, v1, 1, 3
            v_xor_b32 v60, v60, v{H}
            v_lshlrev_b32 v60, 4, v60
            v_lshl_add_u32 v60, v{L31}, 7, v60
            v_add_u32 v{AX}, {XS}, v60""")
    for s in range(1, 4): a.e(f"v_xor_b32 v{AX+s}, {32*s}, v{AX}")
    a.e(f"""s_lshl_b32 s3, s28, 2
            s_add_u32 s3, s3, {TOP + 3072}
            v_mov_b32 v{VFO}, s3
            v_xor_b32 v{VFP}, 4, v{VFO}
            v_mov_b32 v61, 0
            ds_write_b32 v{VFO}, v61
            ds_write_b32 v{VFO}, v61 offset:16
            s_mov_b32 s44, 0
            s_mov_b32 s45, 0""")
    a.e(f"""v_lshlrev_b32 v49, 4, v1
            v_add_u32 v48, s37, v49
            s_add_u32 s3, s55, {XS}
            v_add_u32 v49, s3, v49
            s_lshl_b32 s54, s28, 13
            s_add_u32 s54, s54, {SV}""")
    def frag_reads(c, s, F):
        buf = c if c < 3 else c % 2
        L = [f"ds_read_b64_tr_b16 {vr(F + db*4 + k*2, 2)}, v{AW+db} offset:{buf*SLOT + (16*s + 4*k) * 128}" for db in range(2) for k in range(2)]
        return L + [f"ds_read_b128 {vr(F + 8 + qb*4, 4)}, v{AX+s} offset:{buf*12288 + qb*4096}" for qb in range(3)]
    setup = f"""v_lshlrev_b32 v26, 8, v{G}
            v_xor_b32 v27, v{L15}, v{G}
            v_lshl_add_u32 v{VOFFK}, v27, 4, v26
            v_xor_b32 v{VOFFK+1}, 64, v{VOFFK}
            v_xor_b32 v{VOFFK+2}, 128, v{VOFFK}
            v_xor_b32 v{VOFFK+3}, 192, v{VOFFK}
            v_lshlrev_b32 v27, 2, v{G}
            v_xor_b32 v27, v{L15}, v27
            v_lshl_add_u32 v{VOFFV}, v27, 4, v26
            s_lshl_b32 s3, s6, 13
            s_add_u32 s33, s33, s7
            s_lshl_b32 s34, s31, 5
            s_add_u32 s34, s34, s33
            s_lshl_b32 s34, s34, 18
            s_add_u32 s34, s34, s3"""
    if opt.rot:
        setup += """
            s_lshl_b32 s3, s2, 2
            s_add_u32 s3, s3, s7
            s_mul_i32 s3, s3, 0x1e3779b1
            s_lshr_b32 s47, s3, 15
            s_xor_b32 s3, s3, s47
            s_mul_i32 s3, s3, 0x2c1b3c6d
            s_lshr_b32 s3, s3, 20
            s_and_b32 s3, s3, 15
            s_lshl_b32 s35, s3, 14"""
    else: setup += "\ns_mov_b32 s35, 0"
    setup += f"""
            s_mov_b32 s36, s35
            v_xor_b32 v27, v{H}, v{L15}
            v_lshlrev_b32 v27, 4, v27
            v_lshl_add_u32 v27, v{L31}, 8, v27
            v_add_u32 v{VKA}, s37, v27"""
    for s in range(1, 8): setup += f"\nv_xor_b32 v{VKA+s}, {32*s}, v{VKA}"
    setup += f"""
            v_lshl_add_u32 v28, v{H}, 2, v{R}
            v_lshlrev_b32 v28, 8, v28
            v_lshl_add_u32 v28, v{R}, 6, v28
            v_lshl_add_u32 v28, v{G1}, 5, v28
            v_lshl_add_u32 v28, v{C4}, 3, v28
            s_lshl_b32 s47, s6, 7
            v_xor_b32 v28, s47, v28
            v_add_u32 v{VVA}, s37, v28"""
    for db in range(1, 4): setup += f"\nv_xor_b32 v{VVA+db}, {64*db}, v{VVA}"
    setup += "\nv_add_u32 v28, s54, v28"
    for db in range(1, 4): setup += f"\nv_xor_b32 v{28+db}, {64*db}, v28"
    setup += f"\ns_mov_b32 s42, {f2u(CSC):#x}\ns_mov_b32 s43, {f2u(THR_LOG2):#x}"
    for qb in range(3): setup += f"\nv_mov_b32 v{LSUM+qb}, 0"
    setup = [x.strip() for x in setup.split("\n")]
    VO, VL16, AD, VOL = 93, 102, 103, 107
    def vo_calc(dst, rev):
        L = []
        for i in range(9):
            L += [f"v_add_u32 v80, {64*i}, v1", "v_mul_u32_u24 v28, 58255, v80", "v_lshrrev_b32 v28, 20, v28", "v_mul_u32_u24 v83, 18, v28",
                  "v_sub_u32 v83, v80, v83", "v_xor_b32 v29, 1, v83", "v_sub_u32 v29, 17, v29"]
            if rev == "vcc": L += ["v_cndmask_b32 v29, v83, v29, s[70:71]"]
            L += ["v_mul_u32_u24 v28, 1152, v28", f"v_lshl_add_u32 v{dst+i}, v29, 4, v28"]
        return L
    setup2 = ["s_cmp_eq_u32 s7, 1\ns_cselect_b64 s[70:71], -1, 0"] + vo_calc(VO, "vcc") + [x.strip() for x in f"""v_lshlrev_b32 v{VL16}, 4, v1
            v_lshlrev_b32 v80, 4, v{H}
            v_lshl_add_u32 v80, v{G1}, 2, v80
            v_add_u32 v80, v80, v{R}
            v_mul_u32_u24 v80, 288, v80
            v_lshl_add_u32 v80, v{C4}, 3, v80
            s_mul_i32 s3, s7, 18432
            v_add_u32 v{AD+1}, s3, v80
            v_add_u32 v{AD}, {SB[0]}, v{AD+1}
            v_lshlrev_b32 v{VOL}, 10, v{G1}
            v_lshl_add_u32 v{VOL}, v{H}, 8, v{VOL}
            v_lshl_add_u32 v{VOL}, v{L15}, 4, v{VOL}
            v_mov_b32 v108, 0
            s_mul_i32 s67, s30, 1179648
            s_mul_i32 s3, s32, 288
            s_add_u32 s64, s67, s3              ; wo: rows of the octet, columns 144p..
            s_lshl_b32 s39, s29, 3
            s_add_u32 s39, s39, s31""".split("\n")]
    setW = ["s_lshl_b32 s66, s32, 1", "s_mul_i32 s65, s28, 9216", f"s_mul_i32 s68, s28, {32*1152}", "s_add_u32 s68, s68, s64"]
    def psync(pre_wait=True):
        psync.n += 1; n = psync.n
        a.e(f"""s_add_u32 s44, s44, 1
                v_mov_b32 v{VD}, s44
                ds_write_b32 v{VFO}, v{VD}
                s_mov_b32 s47, 0x400000""")
        a.label(f"L_ps{n}")
        a.e(f"""ds_read_b32 v{VD}, v{VFP}
                s_sub_u32 s47, s47, 1
                s_waitcnt lgkmcnt(0)
                v_readfirstlane_b32 s3, v{VD}
                s_cmp_eq_u32 s47, 0
                s_cselect_b32 s3, s44, s3
                s_cmp_lt_u32 s3, s44
                s_cbranch_scc1 L_ps{n}""")
    psync.n = 0
    def other_pair(name, word, val, T=84):
        a.e(f"v_mov_b32 v{T+2}, {TOP + 3072 + word}\ns_mov_b32 s47, 0x400000")
        a.label(name)
        a.e(f"""s_sleep 2
                ds_read_b64 v[{T}:{T+1}], v{T+2}
                s_sub_u32 s47, s47, 1
                s_waitcnt lgkmcnt(0)
                v_min_u32 v{T}, v{T}, v{T+1}
                v_readfirstlane_b32 s3, v{T}
                s_cmp_eq_u32 s47, 0
                s_cselect_b32 s3, {val}, s3
                s_cmp_lt_u32 s3, {val}
                s_cbranch_scc1 {name}""")

    ACC = 112
    def qwrite(blocks, dreg, area, extra=()):
        a.e(f"""v_xor_b32 v55, {dreg}, v{L15}
                v_lshlrev_b32 v55, 4, v55
                v_lshl_add_u32 v55, v{L31}, 8, v55
                v_lshl_add_u32 v55, v{H}, 3, v55
                v_add_u32 v55, {area}, v55
                v_mov_b32 v62, s42""")
        for db in range(blocks):
            for i in range(4):
                a.e(f"v_xor_b32 v54, {(4*db + i)*16}, v55")
                if extra: emit(a, [extra[4*db + i]])
                for qb in range(3):
                    r = ACC + (db*3 + qb)*16 + 4*i; tq = 56 + 2 * qb
                    a.e(f"""v_pk_mul_f32 v[{r}:{r+1}], v[{r}:{r+1}], v[62:63] op_sel_hi:[1,0]
                            v_pk_mul_f32 v[{r+2}:{r+3}], v[{r+2}:{r+3}], v[62:63] op_sel_hi:[1,0]
                            v_cvt_pk_bf16_f32 v{tq}, v{r}, v{r+1}
                            v_cvt_pk_bf16_f32 v{tq+1}, v{r+2}, v{r+3}
                            ds_write_b64 v54, v[{tq}:{tq+1}] offset:{qb*8192}""")
    def qread(area):
        a.e(f"s_sub_u32 s3, {area}, s37")
        for s in range(8): a.e(f"v_add_u32 v{32+s}, s3, v{VKA+s}")
        for qb in range(3):
            for s in range(8): a.e(f"ds_read_b128 {vr(Qreg(qb,s),4)}, v{32+s} offset:{qb*8192}")
    FA, FB = 208, 228
    a.wait(vmtags=["s0"], lg0=True); a.e("s_barrier")
    stamp(a, "q0", opt)
    emit(a, frag_reads(0, 0, FA))
    sl = [[] for _ in range(216 + 24)]
    spread(sl, [x for c in range(2, 9) for x in stage(c)], 0, opt.rspan)
    spread(sl, setup, 6, 64)
    for c in range(9):
        for s in range(4):
            F, nF = (FA, FB) if s % 2 == 0 else (FB, FA)
            k0 = (c*4 + s) * 6
            if s == 3:
                a.wait(vmtags=[f"s{c+1}"] if c < 2 else [], lg0=True); a.e("s_barrier")
                stamp(a, f"c{c}", opt)
                if 1 <= c <= 6: spread(sl, regwrite(c + 2), k0 + (opt.wdel if c == 1 else 1), k0 + 22)
                if c == 2: spread(sl, dma_unit(0, opt) + dma_unit(1, opt), max(k0, opt.rspan), max(k0, opt.rspan) + opt.kspan)
                if c == 7: spread(sl, dma_unit(2, opt), k0, k0 + 24)
            rd = (frag_reads(c + 1, 0, nF) if c < 8 else []) if s == 3 else frag_reads(c, s + 1, nF)
            if opt.qlev:
                for k, x in enumerate(rd): sl[k0 + (0, 0, 1, 1, 2, 3, 4)[k]].insert(0, x)
                a.wait(lgregs=regs_of(vr(F, 20)))
            else: emit(a, rd)
            i = 0
            for db in range(2):
                for qb in range(3):
                    d = vr(ACC + (db*3 + qb)*16, 16)
                    emit(a, [f"v_mfma_f32_32x32x16_bf16 {d}, {vr(F+db*4,4)}, {vr(F+8+qb*4,4)}, " + ("0" if (c == 0 and s == 0) else d)] + sl[k0 + i]); i += 1
    assert not any(sl[216:])
    a.e("s_lshl_b32 s3, s6, 3\ns_cmp_eq_u32 s7, 1\ns_cbranch_scc1 L_qy")
    sv = save(a)
    qwrite(2, "s3", XS, dma_unit(3, opt))
    a.e("s_waitcnt lgkmcnt(0)\ns_barrier")
    qread(XS)
    a.e("s_waitcnt lgkmcnt(0)\ns_barrier\ns_branch L_qdone")
    a.label("L_qy"); load(a, sv)
    emit(a, dma_unit(3, opt))
    a.e("s_barrier\ns_barrier\ns_lshl_b32 s3, s6, 3")
    qwrite(2, "s3", XS)
    a.e("s_waitcnt lgkmcnt(0)"); psync()
    qread(XS)
    a.label("L_qdone")
    stamp(a, "qx", opt)
    a.wait(vmtags=["u0"], lg0=True)
    emit(a, kreads(0))
    stamp(a, "k0", opt)
    a.e(f"""v_mov_b32 v26, {TOP + 3072 + 16}
            s_cmp_eq_u32 s7, 1
            s_cselect_b32 s50, {round(opt.thr1 * 16)}, 0
            s_cselect_b32 s38, {round((opt.thr0 + opt.thr1) * 16)}, -1""")
    if not opt.hold: a.e("s_lshl_b32 s50, s7, 1\ns_add_u32 s50, s50, 2\ns_sub_u32 s50, s50, s29")
    if opt.acct: a.e(f"s_mov_b64 s[98:99], s[{STB}:{STB+1}]\ns_mov_b64 s[100:101], s[{STB}:{STB+1}]\ns_mov_b64 s[92:93], s[{STB}:{STB+1}]")
    def wpieces(tag, head, rows, lds, voreg):
        Gs = []
        for i in range(9):
            g = [f"s_add_u32 s4, s66, {head}", "s_and_b32 s4, s4, 7", f"s_mul_i32 s4, s4, {128*1152}", "s_add_u32 s4, s4, s68",
                 f"s_add_u32 s4, s4, {rows*1152}"] if i == 0 else []
            g += [f"s_add_u32 m0, s65, {lds + i*1024}", f"buffer_load_dwordx4 v{voreg+i}, s[60:63], s4 offen{opt.wopol} lds ; @{tag}"]
            Gs.append("\n".join(g))
        return Gs
    HEAD = (0, 2, 4, 6, 1, 3, 5, 7)
    NX = opt.nx
    BUFOF = [st % 2 for st in range(NX + 2)] + [2, 3]
    while len(BUFOF) < 8: BUFOF.append(BUFOF[len(BUFOF) - 4])
    wS = lambda st: wpieces(f"w{st}", HEAD[st], 0, SB[BUFOF[st]], VO)
    wX = lambda st, VOR: wpieces(f"w{st}", HEAD[st], 0, SB[BUFOF[st]], VO) + wpieces(f"w{st}", HEAD[st], 64, SB[BUFOF[st]] + 18432, VOR)
    carry = tile_body(a, opt, 0, [])
    carry = tile_body(a, opt, 1, carry, extra=[(setup2 + setW, 0, 41)])
    carry1 = [[x.replace('L_sk1_', 'L_sk4_') for x in y] for y in carry]
    if opt.unroll:
        for t in range(2, 14):
            stamp(a, f'r{t}', opt); carry = tile_body(a, opt, t, carry)
    else:
        stamp(a, "l0", opt)
        a.e("s_mov_b32 s46, 4")
        a.raw(".p2align 6"); a.label("L_tile")
        keep = list(a.vm)
        if not opt.hold: a.e(f"s_cmp_eq_u32 s7, 0\ns_cselect_b32 s3, {2*opt.last[0]}, {2*opt.last[1]}\ns_cmp_gt_u32 s46, 1\ns_cselect_b32 s50, s50, s3")
        if opt.late:
            a.e(f"""s_lshl_b32 s3, s7, 3
                    s_add_u32 s3, s3, s46
                    s_cmp_lg_u32 s3, {opt.late}
                    s_cbranch_scc1 L_nolate
                    s_lshr_b32 s3, s2, 3
                    s_lshl_b32 s3, s3, 1
                    s_add_u32 s3, s3, s6
                    s_mul_i32 s3, s3, 18432
                    v_lshlrev_b32 v84, 7, v1
                    v_add_u32 v84, s3, v84
                    v_add_u32 v85, 8192, v84
                    v_add_u32 v86, 16384, v84
                    v_cmp_gt_u32 vcc, 16, v1
                    v_cndmask_b32 v86, -1, v86, vcc""")
            emit(a, [f"buffer_load_dword v87, v{r}, s[60:63], s67 offen{opt.tpol} ; @junk" for r in (84, 85, 86)])
            a.label("L_nolate")
        if opt.tlb:
            a.e(f"""s_cmp_lg_u32 s46, {opt.tlb}
                    s_cbranch_scc1 L_notlb
                    s_lshl_b32 s3, s39, 2
                    s_add_u32 s4, s3, s30
                    s_mul_i32 s4, s4, {8*24576}
                    v_mov_b32 v84, s4
                    s_add_u32 s4, s4, {8*24576 - 128}
                    v_writelane_b32 v84, s4, 1
                    s_add_u32 s3, s3, s32
                    s_mul_i32 s4, s3, {4*36864}
                    s_add_u32 s4, s4, {WS_P}
                    v_writelane_b32 v84, s4, 2
                    s_add_u32 s4, s4, {4*36864 - 128}
                    v_writelane_b32 v84, s4, 3
                    s_mov_b32 s4, {WS_F + 65536 - 128}
                    v_writelane_b32 v84, s4, 4
                    s_mul_i32 s4, s31, {96*2304}
                    v_mov_b32 v85, s4
                    s_add_u32 s4, s4, {96*2304 - 128}
                    v_writelane_b32 v85, s4, 1
                    s_mov_b64 s[16:17], s[78:79]
                    s_mov_b32 s18, 1769472
                    buffer_load_dword v87, v84, s[24:27], 0 offen nt ; @junk
                    buffer_load_dword v87, v85, s[16:19], 0 offen nt ; @junk""")
            a.label("L_notlb")
        a.vm = keep
        for t in (2, 3, 4): carry = tile_body(a, opt, t, carry)
        assert carry == carry1
        a.e("s_sub_u32 s46, s46, 1\ns_cmp_lg_u32 s46, 0\ns_cbranch_scc1 L_tile")
        for o in a.vm:
            if o.tag and o.tag[0] == "u": o.tag = f"u{int(o.tag[1:]) + 18}"
    stamp(a, "l1", opt)
    carry = tile_body(a, opt, 14, carry)
    xo = lambda k: (k // 8) * SLOT + (k % 8) * 1024
    def send(qb):
        return [f"ds_write_b128 v28, {ar(Oacc(2+i,qb) + 4*g, 4)} offset:{xo((i*3 + qb)*4 + g)}" for i in range(2) for g in range(4)]
    accr = lambda qb: [f"v_accvgpr_read_b32 v{160 + (i*3+qb)*16 + r}, a{Oacc(i,qb) + r}" for i in range(2) for r in range(16)]
    pre = ["buffer_load_dword v106, v108, s[56:59], 0 offen sc1 ; @tag",
           f"v_add_u32 v28, s37, v{VL16}", "s_lshl_b32 s3, s6, 14\ns_sub_u32 s3, 8192, s3", "v_add_u32 v29, s3, v28",
           f"s_mul_i32 s3, s28, 768\ns_add_u32 s3, s3, {TOP}", f"v_lshlrev_b32 v30, 3, v{L31}", "v_add_u32 v30, s3, v30",
           f"s_xor_b32 s3, s28, 1\ns_mul_i32 s3, s3, 768\ns_add_u32 s3, s3, {TOP}", f"v_lshlrev_b32 v31, 3, v{L31}", "v_add_u32 v31, s3, v31"]
    team = "v_and_b32 v13, 3, v1\nv_lshlrev_b32 v13, 10, v13\nv_and_b32 v14, 4, v1\nv_add_u32 v13, v13, v14"
    askX = [f"s_andn2_b32 s71, s2, 24\ns_lshl_b32 s71, s71, 7\ns_add_u32 s69, s71, {WS_F}"] + team.split("\n") + ["buffer_load_dword v12, v13, s[24:27], s69 offen sc1"]
    carry = tile_body(a, opt, 15, carry, extra=[(pre, 8, 16), (askX, 28, 34), (send(0), 34, 48)] + ([(accr(0), 33, 44)] if opt.accearly else []))
    sl = [[] for _ in range(8)]
    carry = [x for y in carry for x in y]
    cut = max([i + 1 for i, x in enumerate(carry) if x.startswith(f"v_cvt_pk_bf16_f32 v{Sreg(2,3)},")] + [len(carry) - 16, 0])
    emit(a, carry[:cut])
    spread(sl, carry[cut:], 0, 3)
    st = []
    for qb in range(3): st += [f"v_mov_b32 v{3+2*qb}, v{LSUM+qb}", f"v_mov_b32 v{2+2*qb}, v{NM+16*qb}"]
    for qb in range(3): st += [f"v_permlane32_swap_b32 v{LSUM+qb}, v{3+2*qb}"]
    for qb in range(3): st += [f"v_add_f32 v{3+2*qb}, v{LSUM+qb}, v{3+2*qb}", f"ds_write_b64 v30, v[{2+2*qb}:{3+2*qb}] offset:{qb*256}"]
    spread(sl, st + send(1), 3, 8)
    for m, f in zip(pv(2, False), sl): emit(a, [m] + f)
    stamp(a, "t15", opt)
    emit(a, accr(1)[:12] + send(2))
    emit(a, ([] if opt.accearly else accr(0)) + accr(1)[12:] + accr(2))
    a.e("s_mov_b32 s4, 0x100000")
    a.label("L_tag")
    a.e("""s_waitcnt vmcnt(0)
           v_readfirstlane_b32 s75, v106
           s_cmp_lg_u32 s75, 0
           s_cbranch_scc1 L_tag_ok
           buffer_load_dword v106, v108, s[56:59], 0 offen sc1 ; @junk
           s_sub_u32 s4, s4, 1
           s_cmp_lg_u32 s4, 0
           s_cbranch_scc1 L_tag""")
    a.label("L_tag_ok"); a.vm = []
    a.e(f"""s_lshl_b32 s3, s39, 5
            s_add_u32 s3, s3, s33
            s_mul_i32 s52, s3, 24576
            s_mul_i32 s3, s6, 12288
            s_add_u32 s52, s52, s3
            s_waitcnt lgkmcnt(0)""")
    ACC, WF, OF = 112, 16, 0
    def ask(base, lanes):
        a.e(f"s_add_u32 s69, {base}, {WS_F}\n{lanes}\nbuffer_load_dword v12, v13, s[24:27], s69 offen sc1")
    def check(tag):
        a.e("s_mov_b32 s4, 0x100000")
        a.label(f"L_poll{tag}")
        a.e(f"""s_waitcnt vmcnt(0)
                v_cmp_ne_u32 vcc, s75, v12
                s_cbranch_vccz L_got{tag}
                s_sleep 1
                buffer_load_dword v12, v13, s[24:27], s69 offen sc1
                s_sub_u32 s4, s4, 1
                s_cmp_lg_u32 s4, 0
                s_cbranch_scc1 L_poll{tag}""")
        a.label(f"L_got{tag}")
        a.e("s_waitcnt vmcnt(0)")
    def wreads(buf, rows, F):
        reg, boff = (AD, AD + 1, 220, 221)[buf], 0
        return [f"ds_read_b64_tr_b16 {vr(F + nb*4 + 2*k, 2)}, v{reg} offset:{boff + (rows + 8*k) * 288 + 32*nb}" for nb in range(9) for k in range(2)]
    def oload(tag, head, db0, nks, dst):
        Gs = []
        for kl in range(nks):
            for j in range(3):
                g = [f"s_add_u32 s47, s66, {head}", "s_and_b32 s47, s47, 7", "s_mul_i32 s47, s47, 24576", "s_add_u32 s47, s47, s37"] + \
                    ([f"s_add_u32 s47, s47, {db0}"] if db0 else []) if kl + j == 0 else ["s_add_u32 s47, s47, 6144"] if j == 0 else []
                Gs.append("\n".join(g + [f"buffer_load_dwordx4 {ar(dst + (kl*3+j)*4, 4)}, v{VL16}, s[24:27], s47 offen offset:{j*1024} sc1 ; @{tag}"]))
        return Gs
    def kstep(F, O, zero, reads, jobs):
        ms = [f"v_mfma_f32_16x16x32_bf16 {vr(ACC + (nb*3+j)*4, 4)}, {vr(F+nb*4,4)}, {ar(O+j*4,4)}, " + ("0" if zero else vr(ACC + (nb*3+j)*4, 4))
              for nb in range(9) for j in range(3)]
        sl = [[] for _ in range(27)]
        spread(sl, reads, 0, 20); spread(sl, jobs, 0, 27)
        a.e("s_waitcnt lgkmcnt(0)")
        for m, f in zip(ms, sl): emit(a, [m] + f)
        return ms
    team = "v_and_b32 v13, 3, v1\nv_lshlrev_b32 v13, 10, v13\nv_and_b32 v14, 4, v1\nv_add_u32 v13, v13, v14"
    a.e(f"""s_lshl_b32 s3, s2, 7
            s_lshl_b32 s4, s28, 2
            s_add_u32 s70, s3, s4
            s_add_u32 s70, s70, {WS_F}
            s_lshl_b32 s3, s39, 2
            s_add_u32 s3, s3, s30
            s_mul_i32 s37, s3, {8*24576}
            s_mul_i32 s4, s6, 3072
            s_add_u32 s37, s37, s4
            s_mul_i32 s4, s7, 12288
            s_add_u32 s37, s37, s4
            s_mov_b32 s45, 0
            s_cmp_eq_u32 s7, 0
            s_cbranch_scc1 L_noearly
            v_cmp_ne_u32 vcc, s75, v12
            s_cbranch_vccnz L_noearly
            s_mov_b32 s45, 1""")
    for st in range(NX, 4): emit(a, oload(f"o{st}", HEAD[st], 0, 2, 24*st))
    a.label("L_noearly"); a.vm = []
    a.e(f"v_sub_u32 v27, v29, v{VL16}\nv_add_u32 v27, v27, v{VOL}")
    psync()
    stamp(a, "c_bar", opt)
    for qb in range(3): a.e(f"ds_read_b64 v[{8+2*qb}:{9+2*qb}], v31 offset:{qb*256}")
    RC = (32, 48, 64, 112, 128, 144)
    def recv(blk):
        for g in range(4): a.e(f"ds_read_b128 {vr(RC[blk]+4*g,4)}, v29 offset:{xo(blk*4 + g)}")
    recv(0); recv(1)
    SC = 16
    for qb in range(3):
        pn, pl, on, ol = 8 + 2*qb, 9 + 2*qb, 2 + 2*qb, 3 + 2*qb
        a.auto(f"v_min_f32 v22, v{on}, v{pn}")
        a.e(f"""v_sub_f32 v23, v22, v{on}
                v_sub_f32 v24, v22, v{pn}
                v_exp_f32 v23, v23
                v_exp_f32 v24, v24
                v_mul_f32 v{ol}, v{ol}, v23
                v_fmac_f32 v{ol}, v{pl}, v24
                v_rcp_f32 v{ol}, v{ol}
                v_mul_f32 v{SC+2*qb}, v23, v{ol}
                v_mul_f32 v{SC+2*qb+1}, v24, v{ol}""")
    recv(2); recv(3); recv(4); recv(5)
    for blk in range(6):
        i, qb = divmod(blk, 3)
        K = 160 + blk*16; Rr = RC[blk]
        a.wait(lgregs=regs_of(vr(Rr, 16)))
        for r in range(0, 16, 2):
            a.e(f"v_pk_mul_f32 v[{Rr+r}:{Rr+r+1}], v[{Rr+r}:{Rr+r+1}], v[{SC+2*qb}:{SC+2*qb+1}] op_sel:[0,1] op_sel_hi:[1,1]")
        for r in range(0, 16, 2):
            a.e(f"v_pk_fma_f32 v[{K+r}:{K+r+1}], v[{K+r}:{K+r+1}], v[{SC+2*qb}:{SC+2*qb+1}], v[{Rr+r}:{Rr+r+1}] op_sel_hi:[1,0,1]")
        for j in range(8):
            a.e(f"v_cvt_pk_bf16_f32 v{K+8*(j//4)+j%4}, v{K+2*j}, v{K+2*j+1}")
        a.e(f"s_add_u32 s47, s52, {WS_O + (i*6 + 2*qb)*1024}")
        for s in range(2):
            a.e(f"buffer_store_dwordx4 {vr(K+8*s,4)}, v{VOL}, s[24:27], s47 offen offset:{512*s} sc1")
            a.e(f"ds_write_b128 v27, {vr(K+8*s,4)} offset:{xo(i*6 + 2*qb) + 512*s}")
    stamp(a, "comb", opt)
    a.e("v_mov_b32 v14, s75\ns_cmp_eq_u32 s7, 1\ns_cbranch_scc1 L_tailY")
    stT = save(a)
    other_pair("L_yq", 24, 1 + opt.xgate)
    if NX == 0:
        VOR = 224
        a.e("s_waitcnt vmcnt(0)\nbuffer_store_dword v14, v108, s[24:27], s70 offen sc1")
        emit(a, vo_calc(VOR, "rev") + wX(0, VOR))
        a.e("s_waitcnt lgkmcnt(0)"); psync()
        emit(a, wX(1, VOR))
        ask("s71", team); check("A"); stamp(a, "chkA", opt)
    else:
        emit(a, wX(0, VO))
        a.e(f"""s_waitcnt vmcnt(18)
                buffer_store_dword v14, v108, s[24:27], s70 offen sc1
                v_add_u32 v3, 8192, v{VL16}
                s_waitcnt lgkmcnt(0)""")
        psync()
        a.e("s_cmp_eq_u32 s6, 1\ns_cbranch_scc1 L_x1")
        sv = save(a)
        for qh in range(2):
            if qh: a.label("L_x1"); load(a, sv)
            for db in range(4):
                for j in range(3): a.e(f"ds_read_b128 {ar(192 + (db*3+j)*4, 4)}, v{3 if db < 2 else VL16} offset:{xo((db % 2)*6 + 3*qh + j)}")
            if qh == 0: a.e("s_branch L_x2")
        a.label("L_x2")
        VOR = 224
        emit(a, vo_calc(VOR, "rev"))
        a.wait(vmtags=["w0"], lg0=True); psync()
        emit(a, wreads(0, 0, WF))
        RS = (192, 0, 48 if NX == 4 else 192, 192)
        wN = lambda st: wX(st, VO if st < NX else VOR)
        xl = lambda st: oload(f"x{st}", HEAD[st], 0, 4, RS[st])
        ask("s71", team)
        for st in range(NX):
            b = BUFOF[st]
            w = wN(1) if st == 0 else []
            if st >= 1: a.wait(vmtags=[f"x{st}"])
            kstep(WF, RS[st], st == 0, wreads(b, 32, WF + 36), w[:9])
            kstep(WF + 36, RS[st] + 12, False, wreads(b, 64, WF), w[9:])
            j = []
            if st == 0:
                check("A"); stamp(a, "chkA", opt)
                for k in range(1, NX):
                    if RS[k] != 192: j += xl(k)
            kstep(WF, RS[st] + 24, False, wreads(b, 96, WF + 36), j)
            a.wait(vmtags=[f"w{st+1}"], lg0=True); psync()
            kstep(WF + 36, RS[st] + 36, False, wreads(BUFOF[st + 1], 0, WF) if st + 1 < NX else [], wN(st + 2))
            if st == 0:
                for k in range(1, NX):
                    if RS[k] == 192: emit(a, xl(k))
    for st in range(NX, 4): emit(a, oload(f"o{st}", HEAD[st], 0, 2, 24*st))
    a.e("s_waitcnt vmcnt(0)\ns_branch L_join")
    a.label("L_tailY"); load(a, stT)
    a.e("s_cmp_eq_u32 s45, 1\ns_cbranch_scc1 L_hadearly")
    sv = save(a)
    ask("s71", team); check("Y")
    a.vm = list(sv[2])
    for st in range(NX, 4): emit(a, oload(f"o{st}", HEAD[st], 0, 2, 24*st))
    a.label("L_hadearly")
    a.e("s_waitcnt lgkmcnt(0)")
    a.label("L_join"); a.lg = []
    a.e(f"""s_add_u32 s71, s71, 8
            v_add_u32 v220, {SB[2] - SB[1]}, v{AD+1}
            v_add_u32 v221, {SB[3] - SB[1]}, v{AD+1}
            s_mul_i32 s3, s7, -8192
            s_add_u32 s3, s3, {YB + 8192}
            v_add_u32 v2, s3, v{VL16}
            v_mov_b32 v15, s75
            s_barrier""")
    stamp(a, "join", opt)
    emit(a, wreads(BUFOF[NX], 0, WF))
    a.e("s_cmp_eq_u32 s6, 1\ns_cbranch_scc1 L_own1")
    sv = save(a)
    for qh in range(2):
        if qh: a.label("L_own1"); load(a, sv)
        for kl in range(2):
            for j in range(3): a.e(f"ds_read_b128 {ar(96 + (kl*3+j)*4, 4)}, v2 offset:{xo(kl*6 + 3*qh + j)}")
        if qh == 0: a.e("s_branch L_own2")
    a.label("L_own2")
    a.wait(vmtags=[f"o{NX}"])
    a.e("s_cmp_eq_u32 s7, 1\ns_cbranch_scc1 L_fy")
    sv = save(a)
    kstep(WF, 24*NX, NX == 0, wreads(BUFOF[NX], 32, WF + 36), wS(NX + 2))
    a.e("s_branch L_fx")
    a.label("L_fy"); load(a, sv)
    kstep(WF, 24*NX, True, wreads(BUFOF[NX], 32, WF + 36), wS(NX + 2))
    a.e("s_waitcnt vmcnt(9)\nbuffer_store_dword v15, v108, s[24:27], s70 offen sc1 ; @junk")
    a.label("L_fx"); a.vm = [o for o in a.vm if o.tag == f"w{NX+2}"]
    A = max(NX, min(opt.askat, 4))
    oy = lambda k: oload(f"o{k}", HEAD[k], 0, 2, 24*k)
    plan = {}
    for k in range(NX + 4, 8): plan.setdefault((k - 4, 1) if k - 4 > NX else (NX + 1, 0), []).append(wS(k))
    plan.setdefault((NX, 1), []).append(wS(NX + 3))
    if A <= 3:
        for i, k in enumerate((5, 6, 7)): plan.setdefault((A + (i + 1) // 2, (i + 1) % 2), []).insert(0, oy(k))
    job = lambda st, kl: [x for y in plan.get((st, kl), []) for x in y]
    for st in range(NX, 8):
        stamp(a, f"s{st}", opt)
        if st > NX:
            if st == A: ask("s71", team)
            if st >= 5: a.wait(vmtags=[f"o{st}"])
            kstep(WF, 24*st, False, wreads(BUFOF[st], 32, WF + 36), job(st, 0))
        elif st == A: ask("s71", team)
        if st == A and A <= 3: check("B"); stamp(a, "chk1", opt)
        if st < 7:
            a.wait(vmtags=[f"w{st+1}"], lg0=True); a.e("s_barrier")
            kstep(WF + 36, 24*st + 12, False, wreads(BUFOF[st + 1], 0, WF), job(st, 1))
        if st == A and A == 4:
            check("B"); stamp(a, "chk1", opt); emit(a, oy(5) + oy(6) + oy(7))
    a.e(f"""s_lshl_b32 s3, s28, 14
            v_add_u32 v13, s3, v{VL16}
            v_xor_b32 v14, 32768, v13
            s_lshl_b32 s52, s39, 2
            s_add_u32 s52, s52, s32
            s_lshl_b32 s53, s52, 2
            s_add_u32 s53, s53, s30
            s_mul_i32 s53, s53, 36864
            s_mul_i32 s3, s28, 9216
            s_add_u32 s53, s53, s3
            s_add_u32 s47, s53, {WS_P}
            s_waitcnt lgkmcnt(0)
            s_barrier""")
    F, O = WF + 36, 180
    T = lambda nb, j: ACC + (nb*3+j)*4
    ms = [f"v_mfma_f32_16x16x32_bf16 {vr(T(nb,j), 4)}, {vr(F+nb*4,4)}, {ar(O+j*4,4)}, {vr(T(nb,j), 4)}" for nb in (8, 7, 6, 5, 4, 0, 1, 2, 3) for j in range(3)]
    snd = [f"ds_write_b128 v13, {vr(T(nb,j),4)} offset:{((8-nb)*3+j)*1024}" for nb in range(8, 3, -1) for j in range(3)]
    emit(a, ms[:6])
    for k in range(15): emit(a, [ms[6 + k], snd[k]])
    emit(a, ms[21:])
    stamp(a, "gend", opt)
    a.e("s_waitcnt lgkmcnt(0)\ns_barrier")
    order = [(k, j) for k in range(3) for j in range(3)]
    for k, j in order:
        for nb in range(2*k, min(2*k + 2, 5)): a.e(f"ds_read_b128 {vr(WF + (nb*3+j)*4, 4)}, v14 offset:{(nb*3+j)*1024}")
    for k, j in order:
        r = T(2*k, j)
        for h, nb in enumerate(range(2*k, min(2*k + 2, 5))):
            t, q = T(nb, j), WF + (nb*3+j)*4
            a.wait(lgregs=regs_of(vr(q, 4)))
            a.e(f"v_pk_add_f32 v[{t}:{t+1}], v[{t}:{t+1}], v[{q}:{q+1}]\nv_pk_add_f32 v[{t+2}:{t+3}], v[{t+2}:{t+3}], v[{q+2}:{q+3}]")
            a.e(f"v_cvt_pk_bf16_f32 v{r+2*h}, v{t}, v{t+1}\nv_cvt_pk_bf16_f32 v{r+2*h+1}, v{t+2}, v{t+3}")
        if k < 2: a.e(f"buffer_store_dwordx4 {vr(r,4)}, v{VL16}, s[24:27], s47 offen offset:{j*1024} sc1")
        else: a.e(f"buffer_store_dwordx2 {vr(r,2)}, v{VL16}, s[24:27], s47 offen offset:{j*1024} sc1")
        if j == 2 and k < 2: a.e("s_add_u32 s47, s47, 3072")
    a.e(f"""s_add_u32 s70, s70, 32768
            s_andn2_b32 s71, s2, 3
            s_lshl_b32 s71, s71, 7
            s_add_u32 s71, s71, 32768
            v_and_b32 v10, 15, v1
            v_mul_u32_u24 v10, 2304, v10
            v_lshrrev_b32 v11, 4, v1
            v_lshl_add_u32 v10, v11, 3, v10
            s_mul_i32 s52, s52, {4*36864}
            s_add_u32 s52, s52, {WS_P}
            s_mul_i32 s53, s31, {96*2304}
            s_mul_i32 s3, s29, 1152
            s_add_u32 s53, s53, s3
            s_mul_i32 s3, s32, 288
            s_add_u32 s53, s53, s3
            s_lshl_b32 s54, s30, 2
            s_add_u32 s54, s54, s28""")
    srd(a, 8, "s78", "s79", 1769472)
    def decode(i):
        A, B, C = 56 + 4*i, 57 + 4*i, 58 + 4*i
        a.e(f"""s_add_u32 s3, s54, {16*i}
                s_mul_i32 s4, s3, 43
                s_lshr_b32 s4, s4, 8
                s_mul_i32 s5, s4, 6
                s_sub_u32 s3, s3, s5            ; q16
                s_mul_i32 s{B}, s3, {16*2304}
                s_add_u32 s{B}, s{B}, s53
                s_cmp_ge_u32 s3, 3
                s_cselect_b32 s5, {9216 - 3072}, 0
                s_lshl_b32 s3, s3, 10
                s_add_u32 s{A}, s3, s5          ; qh * 9216 + j * 1024
                s_add_u32 s{A}, s{A}, s52
                s_and_b32 s3, s4, 1
                s_cmp_eq_u32 s4, 4
                s_cselect_b32 s3, 2, s3         ; k
                s_cselect_b32 s{C}, 0, 32
                s_mul_i32 s5, s3, 3072
                s_add_u32 s{A}, s{A}, s5
                s_lshl_b32 s3, s3, 6
                s_and_b32 s4, s4, 2
                s_cmp_eq_u32 s4, 2
                s_cselect_b32 s5, 18432, 0
                s_add_u32 s{A}, s{A}, s5
                s_cmp_eq_u32 s4, 2
                s_cselect_b32 s{C}, -32, s{C}
                s_sub_u32 s5, 256, s3
                s_cmp_eq_u32 s4, 2
                s_cselect_b32 s3, s5, s3
                s_add_u32 s{B}, s{B}, s3""")
    decode(0); decode(1)
    a.e("s_waitcnt vmcnt(0)\nbuffer_store_dword v15, v108, s[24:27], s70 offen sc1")
    stamp(a, "pub2", opt)
    ask("s71", "v_and_b32 v13, 3, v1\nv_lshlrev_b32 v13, 7, v13\nv_and_b32 v14, 12, v1\nv_add_u32 v13, v13, v14"); check(2)
    stamp(a, "chk2", opt)
    def loads(i):
        for o in range(4):
            a.e(f"buffer_load_dwordx4 {vr(16+16*i+4*o,4)}, v{VL16}, s[24:27], s{56+4*i} offen sc1")
            if o < 3: a.e(f"s_add_u32 s{56+4*i}, s{56+4*i}, 36864")
    def fin(i, left):
        b, D = 16 + 16*i, 112 + 16*i
        for o in range(4):
            a.e(f"s_waitcnt vmcnt({left + 3 - o})")
            for k in range(4):
                r = b + 4*o + k
                if o == 0: a.e(f"v_lshlrev_b32 v{D+2*k}, 16, v{r}\nv_and_b32 v{D+2*k+1}, 0xffff0000, v{r}")
                else: a.e(f"v_lshlrev_b32 v{D+8}, 16, v{r}\nv_and_b32 v{r}, 0xffff0000, v{r}\nv_add_f32 v{D+2*k}, v{D+2*k}, v{D+8}\nv_add_f32 v{D+2*k+1}, v{D+2*k+1}, v{r}")
        for k in range(4): a.e(f"v_cvt_pk_bf16_f32 v{D+k}, v{D+2*k}, v{D+2*k+1}")
        a.e(f"""buffer_store_dwordx2 v[{D}:{D+1}], v10, s[8:11], s{57+4*i} offen{opt.opol}
                s_add_u32 s{57+4*i}, s{57+4*i}, s{58+4*i}""")
        if i == 1: a.e("s_cmp_eq_u32 s62, 0\ns_cbranch_scc1 L_rd2")
        a.e(f"buffer_store_dwordx2 v[{D+2}:{D+3}], v10, s[8:11], s{57+4*i} offen{opt.opol}")
    loads(0)
    a.e("s_cmp_ge_u32 s54, 14\ns_cbranch_scc1 L_rd1")
    sv = save(a)
    loads(1); fin(0, 4); fin(1, 2)
    a.e("s_branch L_rd2")
    a.label("L_rd1"); load(a, sv)
    fin(0, 0)
    a.label("L_rd2")
    stamp(a, "end", opt)
    if opt.stamps:
        a.e(f"s_lshl_b32 s3, s2, 2\ns_add_u32 s3, s3, s28\ns_lshl_b32 s3, s3, 7\ns_add_u32 s3, s3, {WS_STAMP}\nv_mov_b32 v0, 0")
        for i in range(1 + len(opt.sset)):
            a.e(f"v_mov_b32 v2, s{STB+2*i}\nv_mov_b32 v3, s{STB+1+2*i}\nbuffer_store_dwordx2 v[2:3], v0, s[24:27], s3 offen offset:{8*i}\ns_waitcnt vmcnt(0)")
    a.label("L_done")
    a.e("s_endpgm")
    for qb in range(3): rare(a, qb)
    a.label("L_hold", reset=True)
    a.e("s_mov_b32 s47, 0x400000")
    a.label("L_hold1")
    a.e("""s_sleep 4
           ds_read_b64 v[30:31], v26
           s_sub_u32 s47, s47, 1
           s_waitcnt lgkmcnt(0)
           v_min_u32 v30, v30, v31
           v_readfirstlane_b32 s3, v30
           s_lshl_b32 s3, s3, 4
           s_cmp_eq_u32 s47, 0
           s_cselect_b32 s3, s38, s3
           s_cmp_lt_i32 s3, s38
           s_cbranch_scc1 L_hold1
           s_setpc_b64 s[40:41]""")

def build(opt):
    a = Asm()
    a.raw("; @launch grid=(256,1,1) block=(256,1,1) lds=163840")
    a.raw('.amdgcn_target "amdgcn-amd-amdhsa--gfx950"')
    kernel(a, NAME + "_kernel", opt)
    a.raw('.section .rodata,"a"\n.p2align 6')
    a.raw("\n".join([f".amdhsa_kernel {NAME}_kernel", "  .amdhsa_next_free_vgpr 512", "  .amdhsa_next_free_sgpr 102",
        "  .amdhsa_accum_offset 256", "  .amdhsa_group_segment_fixed_size 0", "  .amdhsa_kernarg_size 104",
        "  .amdhsa_user_sgpr_count 2", "  .amdhsa_user_sgpr_kernarg_segment_ptr 1",
        "  .amdhsa_system_sgpr_workgroup_id_x 1", ".end_amdhsa_kernel"]))
    return a.text(), a

if __name__ == "__main__":
    opt = Opt()
    out = sys.argv[1] if len(sys.argv) > 1 else "k.s"
    for kv in sys.argv[2:]:
        k, v = kv.split("=", 1); assert hasattr(opt, k), k
        setattr(opt, k, eval(v))
    t, a = build(opt)
    open(out, "w").write(t)
    print(out, "lines", t.count("\n"), "pad", a.npad)
```

```python
import sys, struct, math
sys.path.insert(0, "dev")
from asmlib import Asm, spread, regs_of, level_fill
import gen5
from gen5 import (NAME, f2u, CSC, THR_LOG2, WS_BYTES, WS_O, WS_P, WS_F, WS_STAMP, STB, vr, ar, srd, stamp, emit,
                  VOFFK, VOFFV, VKA, VVA, LSUM, TMAX, VT, NM, S0, Q0, KF, VF, Sreg, Qreg, Oacc, softmax, qk, pv, rare)

class Opt:
    wp = "pppp"
    noB = False
    stamps = False
    sset = ['q0', 'k0', 't15', 'comb', 'join', 'chk1', 'gend', 'pub2', 'end']
    thr0 = 0.0
    thr1 = 1.25
    clk = "s_memrealtime"
    rot = True
    krot = 4
    qlev = True
    touch = {}
    rspan = 80
    kspan = 30
    wdel = 8
    kvtlb = False
    capb = None
    pbf16 = True
    k1early = False
    wot = 4
    wotnt = None
    tlb = 0
    nx = 1
    accearly = True
    cap = (7, 6)
    capend = 30
    hold = False
    xgate = 0
    last = (0, 0)
    ylast = 1
    kvsame = False
    unroll = False
    a0at = 2
    opol = ''
    late = 0
    prio = 0
    gate = 12
    pace = 1.0
    d1 = (8, 10, 12, 14, 22, 24, 26, 27)
    d2 = (29, 31, 33, 35, 37, 39, 44, 47)
    dcost = 4.0
    acct = 0
    w0 = 10
    askat = 3
    fewwait = True
    vwin = (16, 22)
    kwin = (40, 44)
    tpol = ''
    wopol = ''

SLOT = 16384
SV = 126976
def slot(u): return (2 if u == 0 else (-u) % 3) * SLOT
STG = lambda i: 45056 + 28672 * i
TOP = 159744
SB = (122880, 0, 86016, 49152)
NS = 3
YB = 49152

def dma_unit(u, opt):
    kind = "KV"[u % 2]; sreg = "s36" if kind == "K" else "s35"
    srdn = "s[8:11]" if kind == "K" else "s[12:15]"
    G = []
    for j in range(8):
        g = []
        mb, mo = ("s54", 0) if u == 1 else ("s37", slot(u))
        if j == 0: g += [f"s_add_u32 m0, {mb}, {mo}", f"s_add_u32 s51, s34, {sreg}"]
        if j == 1 and not opt.kvsame: g += [f"s_add_u32 {sreg}, {sreg}, 16384", f"s_and_b32 {sreg}, {sreg}, 0x3ffff"]
        if j == 4: g += [f"s_add_u32 m0, {mb}, {mo + 4096}", "s_add_u32 s51, s51, 4096"]
        vo = VOFFK + j % 4 if kind == "K" else VOFFV
        if opt.cap and 4 <= u <= opt.capend:
            cx, cy = opt.cap
            cx, cy = (c if isinstance(c, int) else c[j % len(c)] for c in (cx, cy))
            dma_unit.n += 1; n = dma_unit.n
            bx, by = (c if isinstance(c, int) else c[j % len(c)] for c in (opt.capb or opt.cap))
            prev = None
            for lv, c in enumerate((bx, cx, by, cy)):
                if c == prev: continue
                R_ = "RAW " if prev else ""
                g += [R_ + f"s_cmp_le_u32 s50, {lv}", R_ + f"s_cbranch_scc1 L_cap{n}", f"RAW s_waitcnt vmcnt({c - 1})"]
                assert prev is None or c < prev
                prev = c
            g += [f"LABEL L_cap{n}"]
        g.append(f"buffer_load_dwordx4 v{vo}, {srdn}, s51 offen offset:{(j % 4)*1024} nt lds ; @u{u}")
        G.append("\n".join(g))
    return G
dma_unit.n = 0
def kreads(t): return [f"ds_read_b128 {ar(KF+4*s,4)}, v{VKA+s} offset:{slot(2*t)}" for s in range(8)]
def vreads(t):
    return [f"ds_read_b64_tr_b16 {ar(VF + db*8 + s*4 + k*2, 2)}, v{(VVA if t else 28)+db} offset:{(slot(2*t+1) if t else 0) + 4096*s + 2048*k}"
            for s in range(2) for db in range(4) for k in range(2)]
def tile_body(a, opt, t, carry, extra=()):
    first = t == 0
    M = qk(0, first) + (pv(2, t == 1) if t else [None]*8) + qk(1, first) + pv(0, first) + qk(2, first) + pv(1, first)
    W = opt.w0
    sl = [[] for _ in range(48 + W)]
    def at(G, slots):
        for g, k in zip(G, slots): sl[k].append(g)
    if 2*t + NS <= 31: at(dma_unit(2*t + NS if t else 4, opt), opt.d1)
    spread(sl, [f"WAITVM u{2*t+1}"] + vreads(t), *opt.vwin)
    if 2*t + NS + 1 <= 31 and t: at(dma_unit(2*t + NS + 1, opt), opt.d2)
    if t < 15: spread(sl, [f"WAITVM u{2*t+2}"] + kreads(t + 1), *opt.kwin)
    if t == 14 and opt.xgate: sl[30].append('v_mov_b32 v27, 2\nds_write_b32 v109, v27 offset:16')
    if opt.hold or t == 0: sl[46].append("s_add_u32 s45, s45, 1\nv_mov_b32 v27, s45\nds_write_b32 v109, v27 offset:16")
    if 1 <= t <= 14 and opt.hold:
        sl[44].append("ds_read_b64 v[30:31], v26")
        sl[47].append(f"""AUTO v_min_u32 v30, v30, v31
s_add_u32 s38, s38, s50
s_min_i32 s38, s38, 256
v_readfirstlane_b32 s3, v30
s_lshl_b32 s3, s3, 4
s_cmp_ge_i32 s3, s38
s_cbranch_scc1 L_go{t}
s_call_b64 s[40:41], L_hold
LABEL L_go{t}""")
    for e in extra: spread(sl, *e)
    for i, x in enumerate(carry): sl[i] = x + sl[i]
    ghost = {48 + k: "buffer_x\ns_nop 0\ns_nop 0" for k in opt.d1 if k < W}
    for k, g in ghost.items(): sl[k].append(g)
    level_fill(sl, softmax(0, t, first), W, W + 16, opt.dcost)
    level_fill(sl, softmax(1, t, first), W + 16, W + 32, opt.dcost)
    level_fill(sl, softmax(2, t, first), W + 32, W + 48, opt.dcost)
    for k in ghost: sl[k] = sl[k][1:]
    for i in range(48):
        if opt.fewwait:
            if i == 0: a.wait(lgregs=regs_of(ar(KF, 32)))
            if i == 24: a.wait(lgregs=regs_of(ar(VF, 32)))
        if M[i]: emit(a, [M[i]])
        for x in sl[i]:
            if opt.acct and x.startswith("WAITVM"):
                keep = list(a.lg)
                a.e("s_memtime s[94:95]"); emit(a, [x]); a.e("s_memtime s[96:97]\ns_waitcnt lgkmcnt(0)\ns_sub_u32 s96, s96, s94")
                r = 98 if int(x.split("u")[1]) % 2 else 100
                a.e(f"s_add_u32 s{r}, s{r}, s96")
            elif opt.acct == 2 and "lds ;" in x:
                a.e("s_memtime s[94:95]"); emit(a, [x]); a.e("s_memtime s[96:97]\ns_waitcnt lgkmcnt(0)\ns_sub_u32 s96, s96, s94\ns_add_u32 s92, s92, s96")
            else: emit(a, [x])
    return sl[48:]

def save(a): return (list(a.hist), list(a.lg), list(a.vm))
def load(a, st): a.hist, a.lg, a.vm = (list(x) for x in st)

def kernel(a, name, opt):
    a.raw(".text"); a.raw(f".globl {name}"); a.raw(".p2align 8"); a.raw(f".type {name},@function")
    a.label(name, reset=True)
    a.e("""s_load_dwordx8 s[56:63], s[0:1], 0
           s_load_dwordx8 s[64:71], s[0:1], 40
           s_load_dwordx2 s[72:73], s[0:1], 96
           s_load_dwordx2 s[40:41], s[0:1], 32
           s_load_dwordx2 s[42:43], s[0:1], 72
           s_load_dwordx4 s[44:47], s[0:1], 80
           s_memrealtime s[48:49]
           s_cmp_ge_u32 s2, 256
           s_cbranch_scc1 L_done""")
    if opt.stamps: a.e(f"{opt.clk} s[{STB}:{STB+1}]")
    VW, VXA, VXB, AW, AX, VD = 72, 73, 74, 76, 64, 111
    G, L15, H, L31, G1, R, C4 = 88, 89, 90, 91, 92, 81, 82
    VFO, VFP = 109, 110
    a.e(f"""v_lshrrev_b32 v1, 6, v0
            s_and_b32 s3, s2, 7
            s_lshr_b32 s29, s3, 2
            s_and_b32 s30, s3, 3
            v_readfirstlane_b32 s28, v1
            s_lshr_b32 s3, s2, 3
            s_lshr_b32 s31, s3, 2
            s_and_b32 s32, s3, 3
            v_and_b32 v1, 63, v0
            v_lshrrev_b32 v{G}, 4, v1
            v_and_b32 v{L15}, 15, v1
            v_lshrrev_b32 v56, 3, v1
            v_and_b32 v57, 7, v1
            v_and_b32 v{G1}, 1, v{G}
            v_lshlrev_b32 v59, 2, v{G1}
            v_xor_b32 v59, v57, v59
            v_lshlrev_b32 v59, 4, v59
            v_lshl_add_u32 v{VW}, v56, 13, v59
            v_mul_u32_u24 v60, 1152, v56
            v_xor_b32 v61, v57, v{G}
            s_and_b32 s6, s28, 1
            s_lshr_b32 s7, s28, 1
            s_lshl_b32 s3, s6, 2
            v_xor_b32 v61, s3, v61
            v_lshl_add_u32 v{VXA}, v61, 4, v60
            v_xor_b32 v61, 4, v61
            v_lshl_add_u32 v{VXB}, v61, 4, v60
            s_mul_i32 s37, s7, {YB}
            s_lshl_b32 s3, s6, 13
            s_add_u32 s37, s37, s3
            s_lshl_b32 s33, s30, 3
            s_lshl_b32 s3, s32, 1
            s_add_u32 s33, s33, s3              ; head X
            s_add_u32 s74, s3, s31              ; b + 2p
            s_lshl_b32 s52, s33, 8
            s_lshl_b32 s3, s28, 7
            s_add_u32 s52, s52, s3
            s_mul_i32 s53, s31, 110592
            s_mul_i32 s3, s28, 27648
            s_add_u32 s53, s53, s3              ; x rows 24w..
            s_mul_i32 s55, s28, 3072
            s_mov_b32 s18, 884736
            s_mov_b32 s19, 0x20000
            s_mov_b32 s22, 4718592
            s_mov_b32 s23, 0x20000""")
    if opt.krot == 0: a.e("s_mov_b32 s74, 0")
    elif opt.krot == 1: a.e("s_cmp_ge_u32 s74, 9\ns_cselect_b32 s3, 9, 0\ns_sub_u32 s74, s74, s3")
    elif opt.krot == 3: a.e("s_and_b32 s74, s74, 1\ns_lshl_b32 s74, s74, 2")
    elif opt.krot == 2: a.e("s_add_u32 s74, s31, s32\ns_mul_i32 s3, s74, 86\ns_lshr_b32 s3, s3, 8\ns_mul_i32 s3, s3, 3\ns_sub_u32 s74, s74, s3\ns_mul_i32 s74, s74, 3")
    elif opt.krot == 4: a.e("s_add_u32 s74, s31, s32\ns_and_b32 s74, s74, 3\ns_mul_i32 s74, s74, 9\ns_lshr_b32 s74, s74, 2")
    elif opt.krot == 5: a.e("s_add_u32 s74, s31, s32\ns_and_b32 s74, s74, 1\ns_lshl_b32 s74, s74, 2")
    a.e("s_cmp_eq_u32 s29, 0\ns_waitcnt lgkmcnt(0)")
    for d, o in ((20, 6), (16, 0), (8, 2), (12, 4)):
        a.e(f"s_cselect_b32 s{d}, s{56+o}, s{64+o}\ns_cselect_b32 s{d+1}, s{57+o}, s{65+o}")
    a.e("""s_cselect_b32 s76, s40, s42
           s_cselect_b32 s77, s41, s43
           s_mov_b64 s[78:79], s[44:45]
           s_mov_b64 s[80:81], s[46:47]
           s_or_b32 s75, s48, 1""")
    P = lambda ch: " nt" if ch == "n" else ""
    XS = 98304
    VW4, VX3 = 32, 36
    a.e(f"""v_mov_b32 v{VW4}, v{VW}
            v_add_u32 v{VW4+1}, {65536 - 1024}, v{VW}
            v_add_u32 v{VW4+2}, {2*(65536 - 1024)}, v{VW}
            v_add_u32 v{VW4+3}, {3*(65536 - 1024)}, v{VW}
            v_mov_b32 v{VX3}, v{VXA}
            v_add_u32 v{VX3+1}, {9216 - 1024}, v{VXB}
            v_add_u32 v{VX3+2}, {2*(9216 - 1024)}, v{VXA}
            s_lshl_b32 s4, s74, 19
            s_add_u32 s4, s4, s52
            s_lshl_b32 s5, s74, 7
            s_add_u32 s5, s5, s53
            s_sub_u32 s74, 9, s74""")
    WR = lambda c, j: ar(((c - 3)*8 + j)*4, 4)
    XR = lambda c, i: ar(192 + ((c-3)*3 + i)*4, 4) if (c-3)*3 + i < 16 else vr(40 + ((c-3)*3 + i - 16)*4, 4)
    def regstage(c):
        Gs = []
        for j in range(8):
            Gs.append(("s_add_u32 s4, s4, 262144\n" if j == 4 else "") + f"buffer_load_dwordx4 {WR(c,j)}, v{VW4 + j % 4}, s[20:23], s4 offen offset:{(j % 4)*1024}{P(opt.wp[0])} ; @s{c}")
        for i in range(3):
            g = ("s_add_u32 s4, s4, 262144\n" if i == 0 else "") + f"buffer_load_dwordx4 {XR(c,i)}, v{VX3 + i}, s[16:19], s5 offen offset:{i*1024}{P(opt.wp[1])} ; @s{c}"
            if i == 2: g += f"\ns_add_u32 s5, s5, 128\ns_sub_u32 s74, s74, 1\ns_cmp_lg_u32 s74, 0\ns_cbranch_scc1 L_nw{c}\nRAW s_mov_b32 s4, s52\nRAW s_mov_b32 s5, s53\nLABEL L_nw{c}"
            Gs.append(g)
        return Gs
    def regwrite(c):
        return [f"WAITVM s{c}"] + [f"ds_write_b128 v48, {WR(c,j)} offset:{(c % 2)*SLOT + j*1024}" for j in range(8)] + \
               [f"ds_write_b128 v49, {XR(c,i)} offset:{(c % 2)*12288 + i*1024}" for i in range(3)]
    def stage(c):
        buf = c % 3; Gs = []
        if c >= 3: return regstage(c)
        for j in range(8):
            g = [f"s_add_u32 m0, s37, {buf*SLOT}", "s_nop 0"] if j == 0 else [f"s_add_u32 m0, s37, {buf*SLOT + 4096}", "s_add_u32 s4, s4, 262144"] if j == 4 else []
            Gs.append("\n".join(g + [f"buffer_load_dwordx4 v{VW4 + j % 4}, s[20:23], s4 offen offset:{(j % 4)*1024}{P(opt.wp[0])} lds ; @s{c}"]))
        for i in range(3):
            g = [f"s_add_u32 m0, s55, {XS + buf*12288}", "s_add_u32 s4, s4, 262144"] if i == 0 else []
            g += [f"buffer_load_dwordx4 v{VX3 + i}, s[16:19], s5 offen offset:{i*1024}{P(opt.wp[1])} lds ; @s{c}"]
            if i == 2: g += ["s_add_u32 s5, s5, 128", "s_sub_u32 s74, s74, 1", f"s_cbranch_scc0 L_nw{c}", ]
            Gs.append("\n".join(g))
        Gs[-1] = Gs[-1].replace(f"s_sub_u32 s74, s74, 1\ns_cbranch_scc0 L_nw{c}", f"s_sub_u32 s74, s74, 1\ns_cmp_lg_u32 s74, 0\ns_cbranch_scc1 L_nw{c}\nRAW s_mov_b32 s4, s52\nRAW s_mov_b32 s5, s53\nLABEL L_nw{c}")
        return Gs
    stamp(a, 'ka', opt)
    wtouch = [x.strip() for x in """s_lshr_b32 s3, s2, 3
            s_lshl_b32 s3, s3, 2
            s_add_u32 s3, s3, s28
            s_mul_i32 s3, s3, 9216
            s_mul_i32 s47, s30, 1179648
            v_lshlrev_b32 v24, 7, v1
            v_add_u32 v24, s3, v24
            v_add_u32 v25, 8192, v24
            v_cmp_gt_u32 s[70:71], 8, v1
            v_cndmask_b32 v25, -1, v25, s[70:71]""".split("\n")]
    wtouch = ["\n".join(wtouch + ["buffer_load_dword v23, v24, s[60:63], s47 offen ; @junk"]), "s_mul_i32 s47, s30, 1179648\nbuffer_load_dword v23, v25, s[60:63], s47 offen ; @junk"]
    if opt.wot is not None: srd(a, 60, "s76", "s77", 4718592)
    if opt.wot == 'a': emit(a, wtouch)
    emit(a, stage(0))
    if opt.kvtlb:
        a.e(f"""s_mov_b32 s10, {1 << 26}
                s_mov_b32 s11, 0x20000
                s_mov_b32 s14, {1 << 26}
                s_mov_b32 s15, 0x20000
                s_lshl_b32 s3, s31, 5
                s_add_u32 s3, s3, s33
                s_add_u32 s3, s3, s7
                s_lshl_b32 s3, s3, 18
                v_and_b32 v24, 3, v1
                v_lshlrev_b32 v24, 16, v24
                buffer_load_dword v23, v24, s[8:11], s3 offen nt ; @junk
                buffer_load_dword v23, v24, s[12:15], s3 offen nt ; @junk""")
    if opt.wot == 'b': emit(a, wtouch)
    stamp(a, 'i0', opt)
    srd(a, 56, "s80", "s81", 256)
    a.e("""s_lshl_b32 s3, s2, 8
           v_add_u32 v106, s3, v0
           v_min_u32 v106, 1, v106
           v_lshlrev_b32 v106, 12, v106
           v_mov_b32 v107, s75
           buffer_store_dword v107, v106, s[56:59], 0 offen sc1""")
    emit(a, stage(1))
    if opt.wot == 'c': emit(a, wtouch)
    for d in (8, 12): a.e(f"s_mov_b32 s{d+2}, {1 << 26}\ns_mov_b32 s{d+3}, 0x20000")
    srd(a, 24, "s72", "s73", WS_BYTES)
    srd(a, 60, "s76", "s77", 4718592)
    a.e(f"""v_lshrrev_b32 v{H}, 5, v1
            v_and_b32 v{L31}, 31, v1
            v_lshrrev_b32 v{R}, 2, v{L15}
            v_and_b32 v{C4}, 3, v1
            v_lshl_add_u32 v59, v{H}, 3, v{R}
            v_lshlrev_b32 v59, 7, v59
            v_lshrrev_b32 v60, 1, v{R}
            v_lshl_add_u32 v59, v60, 6, v59
            v_lshl_add_u32 v59, v{G1}, 5, v59
            v_lshl_add_u32 v59, v{C4}, 3, v59
            v_add_u32 v{AW}, s37, v59
            v_xor_b32 v{AW+1}, 64, v{AW}
            v_bfe_u32 v60, v1, 1, 3
            v_xor_b32 v60, v60, v{H}
            v_lshlrev_b32 v60, 4, v60
            v_lshl_add_u32 v60, v{L31}, 7, v60
            v_add_u32 v{AX}, {XS}, v60""")
    for s in range(1, 4): a.e(f"v_xor_b32 v{AX+s}, {32*s}, v{AX}")
    a.e(f"""s_lshl_b32 s3, s28, 2
            s_add_u32 s3, s3, {TOP + 3072}
            v_mov_b32 v{VFO}, s3
            v_xor_b32 v{VFP}, 4, v{VFO}
            v_mov_b32 v61, 0
            ds_write_b32 v{VFO}, v61
            ds_write_b32 v{VFO}, v61 offset:16
            s_mov_b32 s44, 0
            s_mov_b32 s45, 0""")
    a.e(f"""v_lshlrev_b32 v49, 4, v1
            v_add_u32 v48, s37, v49
            s_add_u32 s3, s55, {XS}
            v_add_u32 v49, s3, v49
            s_lshl_b32 s54, s28, 13
            s_add_u32 s54, s54, {SV}""")
    def frag_reads(c, s, F):
        buf = c if c < 3 else c % 2
        L = [f"ds_read_b64_tr_b16 {vr(F + db*4 + k*2, 2)}, v{AW+db} offset:{buf*SLOT + (16*s + 4*k) * 128}" for db in range(2) for k in range(2)]
        return L + [f"ds_read_b128 {vr(F + 8 + qb*4, 4)}, v{AX+s} offset:{buf*12288 + qb*4096}" for qb in range(3)]
    setup = f"""v_lshlrev_b32 v26, 8, v{G}
            v_xor_b32 v27, v{L15}, v{G}
            v_lshl_add_u32 v{VOFFK}, v27, 4, v26
            v_xor_b32 v{VOFFK+1}, 64, v{VOFFK}
            v_xor_b32 v{VOFFK+2}, 128, v{VOFFK}
            v_xor_b32 v{VOFFK+3}, 192, v{VOFFK}
            v_lshlrev_b32 v27, 2, v{G}
            v_xor_b32 v27, v{L15}, v27
            v_lshl_add_u32 v{VOFFV}, v27, 4, v26
            s_lshl_b32 s3, s6, 13
            s_add_u32 s33, s33, s7
            s_lshl_b32 s34, s31, 5
            s_add_u32 s34, s34, s33
            s_lshl_b32 s34, s34, 18
            s_add_u32 s34, s34, s3"""
    if opt.rot:
        setup += """
            s_lshl_b32 s3, s2, 2
            s_add_u32 s3, s3, s7
            s_mul_i32 s3, s3, 0x1e3779b1
            s_lshr_b32 s47, s3, 15
            s_xor_b32 s3, s3, s47
            s_mul_i32 s3, s3, 0x2c1b3c6d
            s_lshr_b32 s3, s3, 20
            s_and_b32 s3, s3, 15
            s_lshl_b32 s35, s3, 14"""
    else: setup += "\ns_mov_b32 s35, 0"
    setup += f"""
            s_mov_b32 s36, s35
            s_mov_b32 s69, s35
            v_lshlrev_b32 v50, 7, v1
            v_xor_b32 v27, v{H}, v{L15}
            v_lshlrev_b32 v27, 4, v27
            v_lshl_add_u32 v27, v{L31}, 8, v27
            v_add_u32 v{VKA}, s37, v27"""
    for s in range(1, 8): setup += f"\nv_xor_b32 v{VKA+s}, {32*s}, v{VKA}"
    setup += f"""
            v_lshl_add_u32 v28, v{H}, 2, v{R}
            v_lshlrev_b32 v28, 8, v28
            v_lshl_add_u32 v28, v{R}, 6, v28
            v_lshl_add_u32 v28, v{G1}, 5, v28
            v_lshl_add_u32 v28, v{C4}, 3, v28
            s_lshl_b32 s47, s6, 7
            v_xor_b32 v28, s47, v28
            v_add_u32 v{VVA}, s37, v28"""
    for db in range(1, 4): setup += f"\nv_xor_b32 v{VVA+db}, {64*db}, v{VVA}"
    setup += "\nv_add_u32 v28, s54, v28"
    for db in range(1, 4): setup += f"\nv_xor_b32 v{28+db}, {64*db}, v28"
    setup += f"\ns_mov_b32 s42, {f2u(CSC):#x}\ns_mov_b32 s43, {f2u(THR_LOG2):#x}"
    for qb in range(3): setup += f"\nv_mov_b32 v{LSUM+qb}, 0"
    setup = [x.strip() for x in setup.split("\n")]
    VO, VL16, AD, VOL = 93, 102, 103, 107
    def vo_calc(dst, rev):
        L = []
        for i in range(9):
            L += [f"v_add_u32 v80, {64*i}, v1", "v_mul_u32_u24 v28, 58255, v80", "v_lshrrev_b32 v28, 20, v28", "v_mul_u32_u24 v83, 18, v28",
                  "v_sub_u32 v83, v80, v83", "v_xor_b32 v29, 1, v83", "v_sub_u32 v29, 17, v29"]
            if rev == "vcc": L += ["v_cndmask_b32 v29, v83, v29, s[70:71]"]
            L += ["v_mul_u32_u24 v28, 1152, v28", f"v_lshl_add_u32 v{dst+i}, v29, 4, v28"]
        return L
    setup2 = ["s_cmp_eq_u32 s7, 1\ns_cselect_b64 s[70:71], -1, 0"] + vo_calc(VO, "vcc") + [x.strip() for x in f"""v_lshlrev_b32 v{VL16}, 4, v1
            v_lshlrev_b32 v80, 4, v{H}
            v_lshl_add_u32 v80, v{G1}, 2, v80
            v_add_u32 v80, v80, v{R}
            v_mul_u32_u24 v80, 288, v80
            v_lshl_add_u32 v80, v{C4}, 3, v80
            s_mul_i32 s3, s7, 18432
            v_add_u32 v{AD+1}, s3, v80
            v_add_u32 v{AD}, {SB[0]}, v{AD+1}
            v_lshlrev_b32 v{VOL}, 10, v{G1}
            v_lshl_add_u32 v{VOL}, v{H}, 8, v{VOL}
            v_lshl_add_u32 v{VOL}, v{L15}, 4, v{VOL}
            v_mov_b32 v108, 0
            s_mul_i32 s67, s30, 1179648
            s_mul_i32 s3, s32, 288
            s_add_u32 s64, s67, s3              ; wo: rows of the octet, columns 144p..
            s_lshl_b32 s39, s29, 3
            s_add_u32 s39, s39, s31""".split("\n")]
    setW = ["s_lshl_b32 s66, s32, 1", "s_mul_i32 s65, s28, 9216", f"s_mul_i32 s68, s28, {32*1152}", "s_add_u32 s68, s68, s64"]
    def psync(pre_wait=True):
        psync.n += 1; n = psync.n
        a.e(f"""s_add_u32 s44, s44, 1
                v_mov_b32 v{VD}, s44
                ds_write_b32 v{VFO}, v{VD}
                s_mov_b32 s47, 0x400000""")
        a.label(f"L_ps{n}")
        a.e(f"""ds_read_b32 v{VD}, v{VFP}
                s_sub_u32 s47, s47, 1
                s_waitcnt lgkmcnt(0)
                v_readfirstlane_b32 s3, v{VD}
                s_cmp_eq_u32 s47, 0
                s_cselect_b32 s3, s44, s3
                s_cmp_lt_u32 s3, s44
                s_cbranch_scc1 L_ps{n}""")
    psync.n = 0
    def other_pair(name, word, val, T=84):
        a.e(f"v_mov_b32 v{T+2}, {TOP + 3072 + word}\ns_mov_b32 s47, 0x400000")
        a.label(name)
        a.e(f"""s_sleep 2
                ds_read_b64 v[{T}:{T+1}], v{T+2}
                s_sub_u32 s47, s47, 1
                s_waitcnt lgkmcnt(0)
                v_min_u32 v{T}, v{T}, v{T+1}
                v_readfirstlane_b32 s3, v{T}
                s_cmp_eq_u32 s47, 0
                s_cselect_b32 s3, {val}, s3
                s_cmp_lt_u32 s3, {val}
                s_cbranch_scc1 {name}""")

    ACC = 112
    def qwrite(blocks, dreg, area, extra=()):
        a.e(f"""v_xor_b32 v55, {dreg}, v{L15}
                v_lshlrev_b32 v55, 4, v55
                v_lshl_add_u32 v55, v{L31}, 8, v55
                v_lshl_add_u32 v55, v{H}, 3, v55
                v_add_u32 v55, {area}, v55
                v_mov_b32 v62, s42""")
        for db in range(blocks):
            for i in range(4):
                a.e(f"v_xor_b32 v54, {(4*db + i)*16}, v55")
                if extra: emit(a, [extra[4*db + i]])
                for qb in range(3):
                    r = ACC + (db*3 + qb)*16 + 4*i; tq = 56 + 2 * qb
                    a.e(f"""v_pk_mul_f32 v[{r}:{r+1}], v[{r}:{r+1}], v[62:63] op_sel_hi:[1,0]
                            v_pk_mul_f32 v[{r+2}:{r+3}], v[{r+2}:{r+3}], v[62:63] op_sel_hi:[1,0]
                            v_cvt_pk_bf16_f32 v{tq}, v{r}, v{r+1}
                            v_cvt_pk_bf16_f32 v{tq+1}, v{r+2}, v{r+3}
                            ds_write_b64 v54, v[{tq}:{tq+1}] offset:{qb*8192}""")
    def qread(area):
        a.e(f"s_sub_u32 s3, {area}, s37")
        for s in range(8): a.e(f"v_add_u32 v{32+s}, s3, v{VKA+s}")
        for qb in range(3):
            for s in range(8): a.e(f"ds_read_b128 {vr(Qreg(qb,s),4)}, v{32+s} offset:{qb*8192}")
    FA, FB = 208, 228
    a.wait(vmtags=["s0"], lg0=True); a.e("s_barrier")
    stamp(a, "q0", opt)
    emit(a, frag_reads(0, 0, FA))
    sl = [[] for _ in range(216 + 24)]
    spread(sl, [x for c in range(2, 9) for x in stage(c)], 0, opt.rspan)
    spread(sl, setup, 6, 64)
    for c in range(9):
        for s in range(4):
            F, nF = (FA, FB) if s % 2 == 0 else (FB, FA)
            k0 = (c*4 + s) * 6
            if s == 3:
                a.wait(vmtags=[f"s{c+1}"] if c < 2 else [], lg0=True); a.e("s_barrier")
                stamp(a, f"c{c}", opt)
                if 1 <= c <= 6: spread(sl, regwrite(c + 2), k0 + (opt.wdel if c == 1 else 1), k0 + 22)
                if c == 2: spread(sl, dma_unit(0, opt) + dma_unit(1, opt), max(k0, opt.rspan), max(k0, opt.rspan) + opt.kspan)
                if c == 7: spread(sl, dma_unit(2, opt), k0, k0 + 18)
                for u in opt.touch.get(c, []):
                    sl[k0 + 20].append(f"s_add_u32 s47, s69, {(u // 2) * 16384}\ns_and_b32 s47, s47, 0x3ffff\ns_add_u32 s47, s47, s34\n" +
                                       f"buffer_load_dword v51, v50, {'s[8:11]' if u % 2 == 0 else 's[12:15]'}, s47 offen nt ; @junk")
                if opt.wot == c: spread(sl, wtouch, k0 + 12, k0 + 22)
            rd = (frag_reads(c + 1, 0, nF) if c < 8 else []) if s == 3 else frag_reads(c, s + 1, nF)
            if opt.qlev:
                for k, x in enumerate(rd): sl[k0 + (0, 0, 1, 1, 2, 3, 4)[k]].insert(0, x)
                a.wait(lgregs=regs_of(vr(F, 20)))
            else: emit(a, rd)
            i = 0
            for db in range(2):
                for qb in range(3):
                    d = vr(ACC + (db*3 + qb)*16, 16)
                    emit(a, [f"v_mfma_f32_32x32x16_bf16 {d}, {vr(F+db*4,4)}, {vr(F+8+qb*4,4)}, " + ("0" if (c == 0 and s == 0) else d)] + sl[k0 + i]); i += 1
    assert not any(sl[216:])
    a.e("s_lshl_b32 s3, s6, 3\ns_cmp_eq_u32 s7, 1\ns_cbranch_scc1 L_qy")
    sv = save(a)
    qwrite(2, "s3", XS, dma_unit(3, opt))
    a.e("s_waitcnt lgkmcnt(0)\ns_barrier")
    qread(XS)
    a.e("s_waitcnt lgkmcnt(0)\ns_barrier\ns_branch L_qdone")
    a.label("L_qy"); load(a, sv)
    emit(a, dma_unit(3, opt))
    a.e("s_barrier\ns_barrier\ns_lshl_b32 s3, s6, 3")
    qwrite(2, "s3", XS)
    a.e("s_waitcnt lgkmcnt(0)"); psync()
    qread(XS)
    a.label("L_qdone")
    stamp(a, "qx", opt)
    a.wait(vmtags=["u0"], lg0=True)
    emit(a, kreads(0))
    stamp(a, "k0", opt)
    a.e(f"""v_mov_b32 v26, {TOP + 3072 + 16}
            s_cmp_eq_u32 s7, 1
            s_cselect_b32 s50, {round(opt.thr1 * 16)}, 0
            s_cselect_b32 s38, {round((opt.thr0 + opt.thr1) * 16)}, -1""")
    if not opt.hold: a.e("s_lshl_b32 s50, s7, 1\ns_add_u32 s50, s50, 2\ns_sub_u32 s50, s50, s29")
    if opt.acct: a.e(f"s_mov_b64 s[98:99], s[{STB}:{STB+1}]\ns_mov_b64 s[100:101], s[{STB}:{STB+1}]\ns_mov_b64 s[92:93], s[{STB}:{STB+1}]")
    def wpieces(tag, head, rows, lds, voreg):
        Gs = []
        for i in range(9):
            g = [f"s_add_u32 s4, s66, {head}", "s_and_b32 s4, s4, 7", f"s_mul_i32 s4, s4, {128*1152}", "s_add_u32 s4, s4, s68",
                 f"s_add_u32 s4, s4, {rows*1152}"] if i == 0 else []
            g += [f"s_add_u32 m0, s65, {lds + i*1024}", f"buffer_load_dwordx4 v{voreg+i}, s[60:63], s4 offen{opt.wopol} lds ; @{tag}"]
            Gs.append("\n".join(g))
        return Gs
    HEAD = (0, 2, 4, 6, 1, 3, 5, 7)
    NX = opt.nx
    BUFOF = [st % 2 for st in range(NX + 2)] + [2, 3]
    while len(BUFOF) < 8: BUFOF.append(BUFOF[len(BUFOF) - 4])
    wS = lambda st: wpieces(f"w{st}", HEAD[st], 0, SB[BUFOF[st]], VO)
    wX = lambda st, VOR: wpieces(f"w{st}", HEAD[st], 0, SB[BUFOF[st]], VO) + wpieces(f"w{st}", HEAD[st], 64, SB[BUFOF[st]] + 18432, VOR)
    carry = tile_body(a, opt, 0, [])
    carry = tile_body(a, opt, 1, carry, extra=[(setup2 + setW, 0, 41)])
    carry1 = [[x.replace('L_sk1_', 'L_sk4_') for x in y] for y in carry]
    if opt.unroll:
        for t in range(2, 14):
            stamp(a, f'r{t}', opt); carry = tile_body(a, opt, t, carry)
    else:
        stamp(a, "l0", opt)
        a.e("s_mov_b32 s46, 4")
        a.raw(".p2align 6"); a.label("L_tile")
        keep = list(a.vm)
        if not opt.hold: a.e(f"s_cmp_eq_u32 s7, 0\ns_cselect_b32 s3, {2*opt.last[0]}, {2*opt.last[1]}\ns_cmp_gt_u32 s46, 1\ns_cselect_b32 s50, s50, s3")
        if opt.late:
            a.e(f"""s_lshl_b32 s3, s7, 3
                    s_add_u32 s3, s3, s46
                    s_cmp_lg_u32 s3, {opt.late}
                    s_cbranch_scc1 L_nolate
                    s_lshr_b32 s3, s2, 3
                    s_lshl_b32 s3, s3, 1
                    s_add_u32 s3, s3, s6
                    s_mul_i32 s3, s3, 18432
                    v_lshlrev_b32 v84, 7, v1
                    v_add_u32 v84, s3, v84
                    v_add_u32 v85, 8192, v84
                    v_add_u32 v86, 16384, v84
                    v_cmp_gt_u32 vcc, 16, v1
                    v_cndmask_b32 v86, -1, v86, vcc""")
            emit(a, [f"buffer_load_dword v87, v{r}, s[60:63], s67 offen{opt.tpol} ; @junk" for r in (84, 85, 86)])
            a.label("L_nolate")
        if opt.tlb:
            a.e(f"""s_cmp_lg_u32 s46, {opt.tlb}
                    s_cbranch_scc1 L_notlb
                    s_lshl_b32 s3, s39, 2
                    s_add_u32 s4, s3, s30
                    s_mul_i32 s4, s4, {8*24576}
                    v_mov_b32 v84, s4
                    s_add_u32 s4, s4, {8*24576 - 128}
                    v_writelane_b32 v84, s4, 1
                    s_add_u32 s3, s3, s32
                    s_mul_i32 s4, s3, {4*36864}
                    s_add_u32 s4, s4, {WS_P}
                    v_writelane_b32 v84, s4, 2
                    s_add_u32 s4, s4, {4*36864 - 128}
                    v_writelane_b32 v84, s4, 3
                    s_mov_b32 s4, {WS_F + 65536 - 128}
                    v_writelane_b32 v84, s4, 4
                    s_mul_i32 s4, s31, {96*2304}
                    v_mov_b32 v85, s4
                    s_add_u32 s4, s4, {96*2304 - 128}
                    v_writelane_b32 v85, s4, 1
                    s_mov_b64 s[16:17], s[78:79]
                    s_mov_b32 s18, 1769472
                    buffer_load_dword v87, v84, s[24:27], 0 offen nt ; @junk
                    buffer_load_dword v87, v85, s[16:19], 0 offen nt ; @junk""")
            a.label("L_notlb")
        a.vm = keep
        for t in (2, 3, 4): carry = tile_body(a, opt, t, carry)
        assert carry == carry1
        a.e("s_sub_u32 s46, s46, 1\ns_cmp_lg_u32 s46, 0\ns_cbranch_scc1 L_tile")
        for o in a.vm:
            if o.tag and o.tag[0] == "u": o.tag = f"u{int(o.tag[1:]) + 18}"
    stamp(a, "l1", opt)
    carry = tile_body(a, opt, 14, carry)
    xo = lambda k: (k // 8) * SLOT + (k % 8) * 1024
    def send(qb):
        return [f"ds_write_b128 v28, {ar(Oacc(2+i,qb) + 4*g, 4)} offset:{xo((i*3 + qb)*4 + g)}" for i in range(2) for g in range(4)]
    accr = lambda qb: [f"v_accvgpr_read_b32 v{160 + (i*3+qb)*16 + r}, a{Oacc(i,qb) + r}" for i in range(2) for r in range(16)]
    pre = ["buffer_load_dword v106, v108, s[56:59], 0 offen sc1 ; @tag",
           f"v_add_u32 v28, s37, v{VL16}", "s_lshl_b32 s3, s6, 14\ns_sub_u32 s3, 8192, s3", "v_add_u32 v29, s3, v28",
           f"s_mul_i32 s3, s28, 768\ns_add_u32 s3, s3, {TOP}", f"v_lshlrev_b32 v30, 3, v{L31}", "v_add_u32 v30, s3, v30",
           f"s_xor_b32 s3, s28, 1\ns_mul_i32 s3, s3, 768\ns_add_u32 s3, s3, {TOP}", f"v_lshlrev_b32 v31, 3, v{L31}", "v_add_u32 v31, s3, v31"]
    team = "v_and_b32 v13, 3, v1\nv_lshlrev_b32 v13, 10, v13\nv_and_b32 v14, 4, v1\nv_add_u32 v13, v13, v14"
    askX = [f"s_andn2_b32 s71, s2, 24\ns_lshl_b32 s71, s71, 7\ns_add_u32 s69, s71, {WS_F}"] + team.split("\n") + ["buffer_load_dword v12, v13, s[24:27], s69 offen sc1"]
    carry = tile_body(a, opt, 15, carry, extra=[(pre, 8, 16), (askX, 28, 34), (send(0), 34, 48)] + ([(accr(0), 33, 44)] if opt.accearly else []))
    sl = [[] for _ in range(8)]
    carry = [x for y in carry for x in y]
    cut = max([i + 1 for i, x in enumerate(carry) if x.startswith(f"v_cvt_pk_bf16_f32 v{Sreg(2,3)},")] + [len(carry) - 16, 0])
    emit(a, carry[:cut])
    spread(sl, carry[cut:], 0, 3)
    st = []
    for qb in range(3): st += [f"v_mov_b32 v{3+2*qb}, v{LSUM+qb}", f"v_mov_b32 v{2+2*qb}, v{NM+16*qb}"]
    for qb in range(3): st += [f"v_permlane32_swap_b32 v{LSUM+qb}, v{3+2*qb}"]
    for qb in range(3): st += [f"v_add_f32 v{3+2*qb}, v{LSUM+qb}, v{3+2*qb}", f"ds_write_b64 v30, v[{2+2*qb}:{3+2*qb}] offset:{qb*256}"]
    spread(sl, st + send(1), 3, 8)
    for m, f in zip(pv(2, False), sl): emit(a, [m] + f)
    stamp(a, "t15", opt)
    emit(a, accr(1)[:12] + send(2))
    emit(a, ([] if opt.accearly else accr(0)) + accr(1)[12:] + accr(2))
    a.e("s_mov_b32 s4, 0x100000")
    a.label("L_tag")
    a.e("""s_waitcnt vmcnt(0)
           v_readfirstlane_b32 s75, v106
           s_cmp_lg_u32 s75, 0
           s_cbranch_scc1 L_tag_ok
           buffer_load_dword v106, v108, s[56:59], 0 offen sc1 ; @junk
           s_sub_u32 s4, s4, 1
           s_cmp_lg_u32 s4, 0
           s_cbranch_scc1 L_tag""")
    a.label("L_tag_ok"); a.vm = []
    a.e(f"""s_lshl_b32 s3, s39, 5
            s_add_u32 s3, s3, s33
            s_mul_i32 s52, s3, 24576
            s_mul_i32 s3, s6, 12288
            s_add_u32 s52, s52, s3
            s_waitcnt lgkmcnt(0)""")
    ACC, WF, OF = 112, 16, 0
    def ask(base, lanes):
        a.e(f"s_add_u32 s69, {base}, {WS_F}\n{lanes}\nbuffer_load_dword v12, v13, s[24:27], s69 offen sc1")
    def check(tag):
        a.e("s_mov_b32 s4, 0x100000")
        a.label(f"L_poll{tag}")
        a.e(f"""s_waitcnt vmcnt(0)
                v_cmp_ne_u32 vcc, s75, v12
                s_cbranch_vccz L_got{tag}
                s_sleep 1
                buffer_load_dword v12, v13, s[24:27], s69 offen sc1
                s_sub_u32 s4, s4, 1
                s_cmp_lg_u32 s4, 0
                s_cbranch_scc1 L_poll{tag}""")
        a.label(f"L_got{tag}")
        a.e("s_waitcnt vmcnt(0)")
    def wreads(buf, rows, F):
        reg, boff = (AD, AD + 1, 220, 221)[buf], 0
        return [f"ds_read_b64_tr_b16 {vr(F + nb*4 + 2*k, 2)}, v{reg} offset:{boff + (rows + 8*k) * 288 + 32*nb}" for nb in range(9) for k in range(2)]
    def oload(tag, head, db0, nks, dst):
        Gs = []
        for kl in range(nks):
            for j in range(3):
                g = [f"s_add_u32 s47, s66, {head}", "s_and_b32 s47, s47, 7", "s_mul_i32 s47, s47, 24576", "s_add_u32 s47, s47, s37"] + \
                    ([f"s_add_u32 s47, s47, {db0}"] if db0 else []) if kl + j == 0 else ["s_add_u32 s47, s47, 6144"] if j == 0 else []
                Gs.append("\n".join(g + [f"buffer_load_dwordx4 {ar(dst + (kl*3+j)*4, 4)}, v{VL16}, s[24:27], s47 offen offset:{j*1024} sc1 ; @{tag}"]))
        return Gs
    def kstep(F, O, zero, reads, jobs):
        ms = [f"v_mfma_f32_16x16x32_bf16 {vr(ACC + (nb*3+j)*4, 4)}, {vr(F+nb*4,4)}, {ar(O+j*4,4)}, " + ("0" if zero else vr(ACC + (nb*3+j)*4, 4))
              for nb in range(9) for j in range(3)]
        sl = [[] for _ in range(27)]
        spread(sl, reads, 0, 20); spread(sl, jobs, 0, 27)
        a.e("s_waitcnt lgkmcnt(0)")
        for m, f in zip(ms, sl): emit(a, [m] + f)
        return ms
    team = "v_and_b32 v13, 3, v1\nv_lshlrev_b32 v13, 10, v13\nv_and_b32 v14, 4, v1\nv_add_u32 v13, v13, v14"
    a.e(f"""s_lshl_b32 s3, s2, 7
            s_lshl_b32 s4, s28, 2
            s_add_u32 s70, s3, s4
            s_add_u32 s70, s70, {WS_F}
            s_lshl_b32 s3, s39, 2
            s_add_u32 s3, s3, s30
            s_mul_i32 s37, s3, {8*24576}
            s_mul_i32 s4, s6, 3072
            s_add_u32 s37, s37, s4
            s_mul_i32 s4, s7, 12288
            s_add_u32 s37, s37, s4
            s_mov_b32 s45, 0
            s_cmp_eq_u32 s7, 0
            s_cbranch_scc1 L_noearly
            v_cmp_ne_u32 vcc, s75, v12
            s_cbranch_vccnz L_noearly
            s_mov_b32 s45, 1""")
    for st in range(NX, 4): emit(a, oload(f"o{st}", HEAD[st], 0, 2, 24*st))
    a.label("L_noearly"); a.vm = []
    a.e(f"v_sub_u32 v27, v29, v{VL16}\nv_add_u32 v27, v27, v{VOL}")
    psync()
    stamp(a, "c_bar", opt)
    for qb in range(3): a.e(f"ds_read_b64 v[{8+2*qb}:{9+2*qb}], v31 offset:{qb*256}")
    RC = (32, 48, 64, 112, 128, 144)
    def recv(blk):
        for g in range(4): a.e(f"ds_read_b128 {vr(RC[blk]+4*g,4)}, v29 offset:{xo(blk*4 + g)}")
    recv(0); recv(1)
    SC = 16
    for qb in range(3):
        pn, pl, on, ol = 8 + 2*qb, 9 + 2*qb, 2 + 2*qb, 3 + 2*qb
        a.auto(f"v_min_f32 v22, v{on}, v{pn}")
        a.e(f"""v_sub_f32 v23, v22, v{on}
                v_sub_f32 v24, v22, v{pn}
                v_exp_f32 v23, v23
                v_exp_f32 v24, v24
                v_mul_f32 v{ol}, v{ol}, v23
                v_fmac_f32 v{ol}, v{pl}, v24
                v_rcp_f32 v{ol}, v{ol}
                v_mul_f32 v{SC+2*qb}, v23, v{ol}
                v_mul_f32 v{SC+2*qb+1}, v24, v{ol}""")
    recv(2); recv(3); recv(4); recv(5)
    for blk in range(6):
        i, qb = divmod(blk, 3)
        K = 160 + blk*16; Rr = RC[blk]
        a.wait(lgregs=regs_of(vr(Rr, 16)))
        for r in range(0, 16, 2):
            a.e(f"v_pk_mul_f32 v[{Rr+r}:{Rr+r+1}], v[{Rr+r}:{Rr+r+1}], v[{SC+2*qb}:{SC+2*qb+1}] op_sel:[0,1] op_sel_hi:[1,1]")
        for r in range(0, 16, 2):
            a.e(f"v_pk_fma_f32 v[{K+r}:{K+r+1}], v[{K+r}:{K+r+1}], v[{SC+2*qb}:{SC+2*qb+1}], v[{Rr+r}:{Rr+r+1}] op_sel_hi:[1,0,1]")
        for j in range(8):
            a.e(f"v_cvt_pk_bf16_f32 v{K+8*(j//4)+j%4}, v{K+2*j}, v{K+2*j+1}")
        a.e(f"s_add_u32 s47, s52, {WS_O + (i*6 + 2*qb)*1024}")
        for s in range(2):
            a.e(f"buffer_store_dwordx4 {vr(K+8*s,4)}, v{VOL}, s[24:27], s47 offen offset:{512*s} sc1")
            a.e(f"ds_write_b128 v27, {vr(K+8*s,4)} offset:{xo(i*6 + 2*qb) + 512*s}")
    stamp(a, "comb", opt)
    a.e("v_mov_b32 v14, s75\ns_cmp_eq_u32 s7, 1\ns_cbranch_scc1 L_tailY")
    stT = save(a)
    other_pair("L_yq", 24, 1 + opt.xgate)
    if NX == 0:
        VOR = 224
        a.e("s_waitcnt vmcnt(0)\nbuffer_store_dword v14, v108, s[24:27], s70 offen sc1")
        emit(a, vo_calc(VOR, "rev") + wX(0, VOR))
        a.e("s_waitcnt lgkmcnt(0)"); psync()
        emit(a, wX(1, VOR))
        ask("s71", team); check("A"); stamp(a, "chkA", opt)
    else:
        emit(a, wX(0, VO))
        a.e(f"""s_waitcnt vmcnt(18)
                buffer_store_dword v14, v108, s[24:27], s70 offen sc1
                v_add_u32 v3, 8192, v{VL16}
                s_waitcnt lgkmcnt(0)""")
        psync()
        a.e("s_cmp_eq_u32 s6, 1\ns_cbranch_scc1 L_x1")
        sv = save(a)
        for qh in range(2):
            if qh: a.label("L_x1"); load(a, sv)
            for db in range(4):
                for j in range(3): a.e(f"ds_read_b128 {ar(192 + (db*3+j)*4, 4)}, v{3 if db < 2 else VL16} offset:{xo((db % 2)*6 + 3*qh + j)}")
            if qh == 0: a.e("s_branch L_x2")
        a.label("L_x2")
        VOR = 224
        emit(a, vo_calc(VOR, "rev"))
        a.wait(vmtags=["w0"], lg0=True); psync()
        emit(a, wreads(0, 0, WF))
        RS = (192, 0, 48 if NX == 4 else 192, 192)
        wN = lambda st: wX(st, VO if st < NX else VOR)
        xl = lambda st: oload(f"x{st}", HEAD[st], 0, 4, RS[st])
        ask("s71", team)
        for st in range(NX):
            b = BUFOF[st]
            w = wN(1) if st == 0 else []
            if st >= 1: a.wait(vmtags=[f"x{st}"])
            kstep(WF, RS[st], st == 0, wreads(b, 32, WF + 36), w[:9])
            kstep(WF + 36, RS[st] + 12, False, wreads(b, 64, WF), w[9:])
            j = []
            if st == 0:
                check("A"); stamp(a, "chkA", opt)
                for k in range(1, NX):
                    if RS[k] != 192: j += xl(k)
            kstep(WF, RS[st] + 24, False, wreads(b, 96, WF + 36), j)
            a.wait(vmtags=[f"w{st+1}"], lg0=True); psync()
            kstep(WF + 36, RS[st] + 36, False, wreads(BUFOF[st + 1], 0, WF) if st + 1 < NX else [], wN(st + 2))
            if st == 0:
                for k in range(1, NX):
                    if RS[k] == 192: emit(a, xl(k))
    for st in range(NX, 4): emit(a, oload(f"o{st}", HEAD[st], 0, 2, 24*st))
    a.e("s_waitcnt vmcnt(0)\ns_branch L_join")
    a.label("L_tailY"); load(a, stT)
    a.e("s_cmp_eq_u32 s45, 1\ns_cbranch_scc1 L_hadearly")
    sv = save(a)
    ask("s71", team); check("Y")
    a.vm = list(sv[2])
    for st in range(NX, 4): emit(a, oload(f"o{st}", HEAD[st], 0, 2, 24*st))
    a.label("L_hadearly")
    a.e("s_waitcnt lgkmcnt(0)")
    a.label("L_join"); a.lg = []
    a.e(f"""s_add_u32 s71, s71, 8
            v_add_u32 v220, {SB[2] - SB[1]}, v{AD+1}
            v_add_u32 v221, {SB[3] - SB[1]}, v{AD+1}
            s_mul_i32 s3, s7, -8192
            s_add_u32 s3, s3, {YB + 8192}
            v_add_u32 v2, s3, v{VL16}
            v_mov_b32 v15, s75
            s_barrier""")
    stamp(a, "join", opt)
    emit(a, wreads(BUFOF[NX], 0, WF))
    a.e("s_cmp_eq_u32 s6, 1\ns_cbranch_scc1 L_own1")
    sv = save(a)
    for qh in range(2):
        if qh: a.label("L_own1"); load(a, sv)
        for kl in range(2):
            for j in range(3): a.e(f"ds_read_b128 {ar(96 + (kl*3+j)*4, 4)}, v2 offset:{xo(kl*6 + 3*qh + j)}")
        if qh == 0: a.e("s_branch L_own2")
    a.label("L_own2")
    a.wait(vmtags=[f"o{NX}"])
    a.e("s_cmp_eq_u32 s7, 1\ns_cbranch_scc1 L_fy")
    sv = save(a)
    kstep(WF, 24*NX, NX == 0, wreads(BUFOF[NX], 32, WF + 36), wS(NX + 2))
    a.e("s_branch L_fx")
    a.label("L_fy"); load(a, sv)
    kstep(WF, 24*NX, True, wreads(BUFOF[NX], 32, WF + 36), wS(NX + 2))
    a.e("s_waitcnt vmcnt(9)\nbuffer_store_dword v15, v108, s[24:27], s70 offen sc1 ; @junk")
    a.label("L_fx"); a.vm = [o for o in a.vm if o.tag == f"w{NX+2}"]
    A = max(NX, min(opt.askat, 4))
    oy = lambda k: oload(f"o{k}", HEAD[k], 0, 2, 24*k)
    plan = {}
    for k in range(NX + 4, 8): plan.setdefault((k - 4, 1) if k - 4 > NX else (NX + 1, 0), []).append(wS(k))
    plan.setdefault((NX, 1), []).append(wS(NX + 3))
    if A <= 3:
        for i, k in enumerate((5, 6, 7)): plan.setdefault((A + (i + 1) // 2, (i + 1) % 2), []).insert(0, oy(k))
    job = lambda st, kl: [x for y in plan.get((st, kl), []) for x in y]
    for st in range(NX, 8):
        stamp(a, f"s{st}", opt)
        if st > NX:
            if st == A: ask("s71", team)
            if st >= 5: a.wait(vmtags=[f"o{st}"])
            kstep(WF, 24*st, False, wreads(BUFOF[st], 32, WF + 36), job(st, 0))
        elif st == A: ask("s71", team)
        if st == A and A <= 3: check("B"); stamp(a, "chk1", opt)
        if st < 7:
            a.wait(vmtags=[f"w{st+1}"], lg0=True); a.e("s_barrier")
            kstep(WF + 36, 24*st + 12, False, wreads(BUFOF[st + 1], 0, WF), job(st, 1))
        if st == A and A == 4:
            check("B"); stamp(a, "chk1", opt); emit(a, oy(5) + oy(6) + oy(7))
    a.e(f"""s_lshl_b32 s3, s28, 14
            v_add_u32 v13, s3, v{VL16}
            v_xor_b32 v14, 32768, v13
            s_lshl_b32 s52, s39, 2
            s_add_u32 s52, s52, s32
            s_lshl_b32 s53, s52, 2
            s_add_u32 s53, s53, s30
            s_mul_i32 s53, s53, 36864
            s_mul_i32 s3, s28, 9216
            s_add_u32 s53, s53, s3
            s_add_u32 s47, s53, {WS_P}
            s_waitcnt lgkmcnt(0)
            s_barrier""")
    F, O = WF + 36, 180
    T = lambda nb, j: ACC + (nb*3+j)*4
    ms = [f"v_mfma_f32_16x16x32_bf16 {vr(T(nb,j), 4)}, {vr(F+nb*4,4)}, {ar(O+j*4,4)}, {vr(T(nb,j), 4)}" for nb in (8, 7, 6, 5, 4, 0, 1, 2, 3) for j in range(3)]
    snd = [f"ds_write_b128 v13, {vr(T(nb,j),4)} offset:{((8-nb)*3+j)*1024}" for nb in range(8, 3, -1) for j in range(3)]
    emit(a, ms[:6])
    for k in range(15): emit(a, [ms[6 + k], snd[k]])
    emit(a, ms[21:])
    stamp(a, "gend", opt)
    a.e("s_waitcnt lgkmcnt(0)\ns_barrier")
    order = [(k, j) for k in range(3) for j in range(3)]
    for k, j in order:
        for nb in range(2*k, min(2*k + 2, 5)): a.e(f"ds_read_b128 {vr(WF + (nb*3+j)*4, 4)}, v14 offset:{(nb*3+j)*1024}")
    for k, j in order:
        r = T(2*k, j)
        for h, nb in enumerate(range(2*k, min(2*k + 2, 5))):
            t, q = T(nb, j), WF + (nb*3+j)*4
            a.wait(lgregs=regs_of(vr(q, 4)))
            a.e(f"v_pk_add_f32 v[{t}:{t+1}], v[{t}:{t+1}], v[{q}:{q+1}]\nv_pk_add_f32 v[{t+2}:{t+3}], v[{t+2}:{t+3}], v[{q+2}:{q+3}]")
            a.e(f"v_cvt_pk_bf16_f32 v{r+2*h}, v{t}, v{t+1}\nv_cvt_pk_bf16_f32 v{r+2*h+1}, v{t+2}, v{t+3}")
        if k < 2: a.e(f"buffer_store_dwordx4 {vr(r,4)}, v{VL16}, s[24:27], s47 offen offset:{j*1024} sc1")
        else: a.e(f"buffer_store_dwordx2 {vr(r,2)}, v{VL16}, s[24:27], s47 offen offset:{j*1024} sc1")
        if j == 2 and k < 2: a.e("s_add_u32 s47, s47, 3072")
    a.e(f"""s_add_u32 s70, s70, 32768
            s_andn2_b32 s71, s2, 3
            s_lshl_b32 s71, s71, 7
            s_add_u32 s71, s71, 32768
            v_and_b32 v10, 15, v1
            v_mul_u32_u24 v10, 2304, v10
            v_lshrrev_b32 v11, 4, v1
            v_lshl_add_u32 v10, v11, 3, v10
            s_mul_i32 s52, s52, {4*36864}
            s_add_u32 s52, s52, {WS_P}
            s_mul_i32 s53, s31, {96*2304}
            s_mul_i32 s3, s29, 1152
            s_add_u32 s53, s53, s3
            s_mul_i32 s3, s32, 288
            s_add_u32 s53, s53, s3
            s_lshl_b32 s54, s30, 2
            s_add_u32 s54, s54, s28""")
    srd(a, 8, "s78", "s79", 1769472)
    def decode(i):
        A, B, C = 56 + 4*i, 57 + 4*i, 58 + 4*i
        a.e(f"""s_add_u32 s3, s54, {16*i}
                s_mul_i32 s4, s3, 43
                s_lshr_b32 s4, s4, 8
                s_mul_i32 s5, s4, 6
                s_sub_u32 s3, s3, s5            ; q16
                s_mul_i32 s{B}, s3, {16*2304}
                s_add_u32 s{B}, s{B}, s53
                s_cmp_ge_u32 s3, 3
                s_cselect_b32 s5, {9216 - 3072}, 0
                s_lshl_b32 s3, s3, 10
                s_add_u32 s{A}, s3, s5          ; qh * 9216 + j * 1024
                s_add_u32 s{A}, s{A}, s52
                s_and_b32 s3, s4, 1
                s_cmp_eq_u32 s4, 4
                s_cselect_b32 s3, 2, s3         ; k
                s_cselect_b32 s{C}, 0, 32
                s_mul_i32 s5, s3, 3072
                s_add_u32 s{A}, s{A}, s5
                s_lshl_b32 s3, s3, 6
                s_and_b32 s4, s4, 2
                s_cmp_eq_u32 s4, 2
                s_cselect_b32 s5, 18432, 0
                s_add_u32 s{A}, s{A}, s5
                s_cmp_eq_u32 s4, 2
                s_cselect_b32 s{C}, -32, s{C}
                s_sub_u32 s5, 256, s3
                s_cmp_eq_u32 s4, 2
                s_cselect_b32 s3, s5, s3
                s_add_u32 s{B}, s{B}, s3""")
    decode(0); decode(1)
    a.e("s_waitcnt vmcnt(0)\nbuffer_store_dword v15, v108, s[24:27], s70 offen sc1")
    stamp(a, "pub2", opt)
    ask("s71", "v_and_b32 v13, 3, v1\nv_lshlrev_b32 v13, 7, v13\nv_and_b32 v14, 12, v1\nv_add_u32 v13, v13, v14"); check(2)
    stamp(a, "chk2", opt)
    def loads(i):
        for o in range(4):
            a.e(f"buffer_load_dwordx4 {vr(16+16*i+4*o,4)}, v{VL16}, s[24:27], s{56+4*i} offen sc1")
            if o < 3: a.e(f"s_add_u32 s{56+4*i}, s{56+4*i}, 36864")
    def fin(i, left):
        b, D = 16 + 16*i, 112 + 16*i
        for o in range(4):
            a.e(f"s_waitcnt vmcnt({left + 3 - o})")
            for k in range(4):
                r = b + 4*o + k
                if o == 0: a.e(f"v_lshlrev_b32 v{D+2*k}, 16, v{r}\nv_and_b32 v{D+2*k+1}, 0xffff0000, v{r}")
                else: a.e(f"v_lshlrev_b32 v{D+8}, 16, v{r}\nv_and_b32 v{r}, 0xffff0000, v{r}\nv_add_f32 v{D+2*k}, v{D+2*k}, v{D+8}\nv_add_f32 v{D+2*k+1}, v{D+2*k+1}, v{r}")
        for k in range(4): a.e(f"v_cvt_pk_bf16_f32 v{D+k}, v{D+2*k}, v{D+2*k+1}")
        a.e(f"""buffer_store_dwordx2 v[{D}:{D+1}], v10, s[8:11], s{57+4*i} offen{opt.opol}
                s_add_u32 s{57+4*i}, s{57+4*i}, s{58+4*i}""")
        if i == 1: a.e("s_cmp_eq_u32 s62, 0\ns_cbranch_scc1 L_rd2")
        a.e(f"buffer_store_dwordx2 v[{D+2}:{D+3}], v10, s[8:11], s{57+4*i} offen{opt.opol}")
    loads(0)
    a.e("s_cmp_ge_u32 s54, 14\ns_cbranch_scc1 L_rd1")
    sv = save(a)
    loads(1); fin(0, 4); fin(1, 2)
    a.e("s_branch L_rd2")
    a.label("L_rd1"); load(a, sv)
    fin(0, 0)
    a.label("L_rd2")
    stamp(a, "end", opt)
    if opt.stamps:
        a.e(f"s_lshl_b32 s3, s2, 2\ns_add_u32 s3, s3, s28\ns_lshl_b32 s3, s3, 7\ns_add_u32 s3, s3, {WS_STAMP}\nv_mov_b32 v0, 0")
        for i in range(1 + len(opt.sset)):
            a.e(f"v_mov_b32 v2, s{STB+2*i}\nv_mov_b32 v3, s{STB+1+2*i}\nbuffer_store_dwordx2 v[2:3], v0, s[24:27], s3 offen offset:{8*i}\ns_waitcnt vmcnt(0)")
    a.label("L_done")
    a.e("s_endpgm")
    for qb in range(3): rare(a, qb)
    a.label("L_hold", reset=True)
    a.e("s_mov_b32 s47, 0x400000")
    a.label("L_hold1")
    a.e("""s_sleep 4
           ds_read_b64 v[30:31], v26
           s_sub_u32 s47, s47, 1
           s_waitcnt lgkmcnt(0)
           v_min_u32 v30, v30, v31
           v_readfirstlane_b32 s3, v30
           s_lshl_b32 s3, s3, 4
           s_cmp_eq_u32 s47, 0
           s_cselect_b32 s3, s38, s3
           s_cmp_lt_i32 s3, s38
           s_cbranch_scc1 L_hold1
           s_setpc_b64 s[40:41]""")

def build(opt):
    a = Asm()
    a.raw("; @launch grid=(256,1,1) block=(256,1,1) lds=163840")
    a.raw('.amdgcn_target "amdgcn-amd-amdhsa--gfx950"')
    kernel(a, NAME + "_kernel", opt)
    a.raw('.section .rodata,"a"\n.p2align 6')
    a.raw("\n".join([f".amdhsa_kernel {NAME}_kernel", "  .amdhsa_next_free_vgpr 512", "  .amdhsa_next_free_sgpr 102",
        "  .amdhsa_accum_offset 256", "  .amdhsa_group_segment_fixed_size 0", "  .amdhsa_kernarg_size 104",
        "  .amdhsa_user_sgpr_count 2", "  .amdhsa_user_sgpr_kernarg_segment_ptr 1",
        "  .amdhsa_system_sgpr_workgroup_id_x 1", ".end_amdhsa_kernel"]))
    return a.text(), a

if __name__ == "__main__":
    opt = Opt()
    out = sys.argv[1] if len(sys.argv) > 1 else "k.s"
    for kv in sys.argv[2:]:
        k, v = kv.split("=", 1); assert hasattr(opt, k), k
        setattr(opt, k, eval(v))
    t, a = build(opt)
    open(out, "w").write(t)
    print(out, "lines", t.count("\n"), "pad", a.npad)
```

```python
import re

TRANS = ("v_exp_f32", "v_log_f32", "v_rcp_f32", "v_rsq_f32", "v_sqrt_f32", "v_sin_f32", "v_cos_f32")

def regs_of(tok):
    tok = tok.strip()
    neg = tok.lstrip("-").replace("abs(", "").replace(")", "").replace("|", "")
    m = re.fullmatch(r"([vas])\[(\d+):(\d+)\]", neg)
    if m: return {f"{m.group(1)}{i}" for i in range(int(m.group(2)), int(m.group(3)) + 1)}
    m = re.fullmatch(r"([vas])(\d+)", neg)
    if m: return {neg}
    if neg in ("vcc", "exec", "m0"): return {neg}
    if neg in ("vcc_lo", "vcc_hi"): return {"vcc"}
    if neg in ("exec_lo", "exec_hi"): return {"exec"}
    return set()

class Ins:
    __slots__ = ("text", "op", "wr", "rd", "cls", "passes", "A", "B", "C", "D", "nops", "sdata", "tag")
    def __init__(self, text):
        m = re.search(r";\s*@(\S+)", text)
        self.tag = m.group(1) if m else None
        self.text = text
        t = text.split(";")[0].strip()
        parts = t.split(None, 1)
        self.op = op = parts[0]
        ops = []
        if len(parts) > 1:
            ops = [o.strip() for o in parts[1].split(",")]
            last = ops[-1].split()
            if last: ops[-1] = last[0]; mods = last[1:]
            else: mods = []
        else: mods = []
        self.wr, self.rd = set(), set()
        self.passes = 0; self.A = self.B = self.C = self.D = set(); self.nops = 1; self.sdata = set()
        R = [regs_of(o) for o in ops]
        if op.startswith("v_mfma"):
            self.cls = "mfma"; self.passes = 8 if "32x32x16" in op else 4
            self.D, self.A, self.B, self.C = R[0], R[1], R[2], R[3]
            self.wr = set(self.D); self.rd = self.A | self.B | self.C
        elif op.startswith("v_"):
            self.cls = "valu"
            if op.startswith("v_permlane32_swap") or op.startswith("v_permlane16_swap"):
                self.wr = R[0] | R[1]; self.rd = R[0] | R[1]
            else:
                self.wr = set(R[0])
                k = 1
                if op.startswith(("v_add_co", "v_sub_co", "v_addc_co", "v_subb_co")):
                    self.wr |= R[1]; k = 2
                for r in R[k:]: self.rd |= r
                if op.startswith(("v_fmac", "v_pk_fmac")): self.rd |= R[0]
                if op.startswith("v_cndmask") and len(R) == 3: self.rd.add("vcc")
        elif op.startswith("ds_"):
            self.cls = "ds"
            if op.startswith("ds_read") or op.startswith("ds_bpermute") or op.startswith("ds_swizzle"):
                self.wr = set(R[0])
                for r in R[1:]: self.rd |= r
            else:
                for r in R: self.rd |= r
        elif op.startswith(("buffer_", "global_")):
            self.cls = "vmem"
            islds = "lds" in mods or "_lds_" in op
            if op in ("buffer_wbl2", "buffer_inv"): pass
            elif islds:
                for r in R: self.rd |= r
                self.rd.add("m0"); self.cls = "dma"
            elif "load" in op:
                self.wr = set(R[0])
                for r in R[1:]: self.rd |= r
            elif "atomic" in op:
                for r in R: self.rd |= r
                if "sc0" in mods:
                    self.wr = set(R[0])
            else:
                for r in R: self.rd |= r
                if op.endswith(("x3", "x4")):
                    self.sdata = set(R[0]) if op.startswith("buffer_") else set(R[1])
        elif op == "s_nop":
            self.cls = "nop"; self.nops = int(ops[0], 0) + 1
        elif op == "s_waitcnt":
            self.cls = "wait"
        elif op.startswith(("s_load", "s_buffer_load", "s_memtime", "s_memrealtime")):
            self.cls = "smem"; self.wr = set(R[0])
            for r in R[1:]: self.rd |= r
        elif op.startswith("s_"):
            self.cls = "salu"
            if op.startswith(("s_cmp", "s_cbranch", "s_branch", "s_barrier", "s_sleep", "s_setprio", "s_endpgm", "s_setpc", "s_bitcmp")):
                for r in R: self.rd |= r
            else:
                if R: self.wr = set(R[0])
                for r in R[1:]: self.rd |= r
                if "saveexec" in op: self.wr.add("exec"); self.rd.add("exec")
        else:
            raise ValueError("unknown instruction: " + text)

def need(p, c):
    n = 0
    isv = lambda s: {r for r in s if r[0] in "va" and r != "vcc"}
    iss = lambda s: {r for r in s if r[0] == "s" or r == "vcc"}
    if p.cls == "valu":
        wv = isv(p.wr); ws = iss(p.wr)
        if c.cls == "mfma" and wv & c.rd: n = max(n, 2)
        if c.cls == "valu":
            if c.op.startswith("v_permlane") and wv & c.rd: n = max(n, 2)
            if c.op.startswith(("v_readlane", "v_readfirstlane")) and wv & c.rd: n = max(n, 1)
            if "dpp" in c.text or "row_" in c.text or "quad_perm" in c.text:
                if wv & c.rd: n = max(n, 2)
            if p.op.startswith(TRANS) and not c.op.startswith(TRANS) and wv & (c.rd): n = max(n, 1)
            if ws & c.rd: n = max(n, 4 if c.op.startswith(("v_readlane", "v_writelane")) else 2)
        if p.op.startswith(TRANS) and c.cls in ("ds", "vmem", "mfma") and wv & c.rd: n = max(n, 2)
        if c.cls in ("vmem", "dma") and ws & c.rd: n = max(n, 5)
        if c.cls == "salu" and ws & c.rd: n = max(n, 1)
    if p.cls == "mfma":
        big = p.passes == 8
        if c.cls == "mfma":
            if p.D & (c.A | c.B): n = max(n, 12 if big else 8)
            if p.D & c.C and not (p.D == c.C and p.passes == c.passes): n = max(n, 10 if big else 6)
            if p.D & c.D and not (p.D == c.C and p.passes == c.passes): n = max(n, 12 if big else 8)
        elif c.cls in ("valu", "ds", "vmem", "dma"):
            if p.D & (c.rd | c.wr): n = max(n, 12 if big else 8)
            if c.cls == "valu" and p.C & c.wr: n = max(n, 7 if big else 3)
    if p.cls == "salu" and "m0" in p.wr and c.cls == "dma": n = max(n, 1)
    if p.sdata and p.sdata & c.wr: n = max(n, 2)
    return n

def vkind(o): return 'dma' if o.cls == 'dma' else 'load' if o.wr else 'store'

class Asm:
    def __init__(self):
        self.out = []
        self.hist = []
        self.lg = []
        self.vm = []
        self.check = True
        self.npad = 0
    def raw(self, s): self.out.append(s)
    def comment(self, s): self.out.append("; " + s)
    def label(self, name, reset=False):
        self.out.append(name + ":")
        if reset: self.forget()
    def forget(self):
        self.hist = []; self.lg = []; self.vm = []
    def e(self, text):
        for line in text.split("\n"):
            line = line.strip()
            if line: self._e(line)
    def _e(self, text):
        c = Ins(text)
        dist = 0; pad = 0
        for p in reversed(self.hist):
            nd = need(p, c)
            if nd > dist: pad = max(pad, nd - dist)
            dist += p.nops
            if dist >= 24: break
        while pad > 0:
            k = min(pad, 16)
            nop = Ins(f"s_nop {k-1}"); self.hist.append(nop); self.out.append("    " + nop.text); pad -= k; self.npad += k
        if c.cls == "wait":
            m = re.search(r"lgkmcnt\((\d+)\)", text)
            if m:
                n = int(m.group(1)); assert n < 15
                if any(o.cls == "smem" for o in self.lg):
                    if n == 0: self.lg = []
                else: self.lg = self.lg[len(self.lg) - n:] if n else []
            m = re.search(r"vmcnt\((\d+)\)", text)
            if m:
                n = int(m.group(1)); assert n < 63
                self.vm = [o for i, o in enumerate(self.vm) if sum(vkind(y) == vkind(o) for y in self.vm[i+1:]) < n]
        elif self.check:
            for o in self.lg + self.vm:
                if o.tag == "junk": continue
                if o.wr & (c.rd | c.wr):
                    raise RuntimeError(f"missing waitcnt: '{c.text}' touches dest of pending '{o.text}'")
            if c.cls in ("valu", "mfma"):
                pass
        if c.cls in ("ds", "smem"): self.lg.append(c)
        if c.cls in ("vmem", "dma") and c.op not in ("buffer_inv",): self.vm.append(c)
        if len(self.lg) > 15 and c.cls == "ds": pass
        self.hist.append(c)
        if len(self.hist) > 40: self.hist = self.hist[-40:]
        self.out.append("    " + text)
    def vm_count(self, tag):
        idx = [i for i, o in enumerate(self.vm) if o.tag == tag]
        if not idx: return None
        return min(sum(vkind(o) == vkind(self.vm[i]) for o in self.vm[i+1:]) for i in idx)
    def lg_count(self, regs):
        idx = [i for i, o in enumerate(self.lg) if o.wr & regs]
        return None if not idx else len(self.lg) - 1 - idx[-1]
    def wait(self, vmtags=(), lgregs=None, lg0=False):
        parts = []
        n = [self.vm_count(t) for t in vmtags]; n = [x for x in n if x is not None]
        if n: parts.append(f"vmcnt({min(62, min(n))})")
        if lg0: parts.append("lgkmcnt(0)")
        elif lgregs is not None:
            k = self.lg_count(lgregs)
            if k is not None: parts.append(f"lgkmcnt({min(14, k)})")
        if parts: self.e("s_waitcnt " + " ".join(parts))
    def auto(self, text):
        c = Ins(text)
        self.wait(lgregs=c.rd | c.wr)
        self.e(text)
    def text(self): return "\n".join(self.out) + "\n"

def cost(text):
    op = text.split()[0]
    if op.startswith(TRANS): return 2.0
    if op.startswith("buffer_") : return 3.0
    if op.startswith("s_"): return 0.5
    return 1.0

def interleave(prim, fill, per=5.5, lead=0):
    out = []
    tot = sum(cost(f) for f in fill)
    n = len(prim)
    share = tot / n if n else 0
    acc = 0.0; j = 0
    for i, m in enumerate(prim):
        out.append(m)
        target = share * (i + 1)
        while j < len(fill) and acc + cost(fill[j]) * 0.5 <= target:
            out.append(fill[j]); acc += cost(fill[j]); j += 1
    out += fill[j:]
    return out


def spread(slots, items, lo, hi):
    tot = sum(sum(cost(y) for y in x.split("\n") if not y.startswith("LABEL")) for x in items)
    if not items: return
    acc = 0.0; n = hi - lo
    for x in items:
        c = sum(cost(y) for y in x.split("\n") if not y.startswith("LABEL"))
        k = lo + min(n - 1, int((acc + c * 0.5) / tot * n))
        slots[k].append(x); acc += c

def icost(x, dma=4.0):
    c = 0.0
    for y in x.split("\n"):
        if y.startswith(("LABEL", "s_call", "RAW")): continue
        op = y.split()[0]
        c += 2.0 if op.startswith(TRANS) else dma if op.startswith("buffer_") else 1.0
    return c

def level_fill(slots, items, lo, hi, dma=4.0):
    base = [sum(icost(x, dma) for x in slots[i]) for i in range(lo, hi)]
    def place(level):
        out = []; k = 0; cur = base[0]
        for x in items:
            c = icost(x, dma)
            while k < len(base) and cur + c > level + 1e-9:
                k += 1
                if k < len(base): cur = base[k]
            if k >= len(base): return None
            out.append(k); cur += c
        return out
    level = 2.0
    while True:
        p = place(level)
        if p is not None: break
        level += 0.5
    for x, k in zip(items, p): slots[lo + k].append(x)
    return level
```

```python
import sys, struct, math
sys.path.insert(0, "dev")
from asmlib import Asm, spread, regs_of, level_fill
import gen5
from gen5 import (NAME, f2u, CSC, THR_LOG2, WS_BYTES, WS_O, WS_P, WS_F, WS_STAMP, STB, vr, ar, srd, stamp, emit,
                  VOFFK, VOFFV, VKA, VVA, LSUM, TMAX, VT, NM, S0, Q0, KF, VF, Sreg, Qreg, Oacc, softmax, qk, pv, rare)

class Opt:
    wp = "pppp"
    noB = False
    stamps = False
    sset = ['q0', 'k0', 't15', 'comb', 'join', 'chk1', 'gend', 'pub2', 'end']
    thr0 = 0.0
    thr1 = 1.25
    clk = "s_memrealtime"
    rot = True
    krot = 4
    qlev = True
    touch = {}
    rlate = 0
    rspan = 80
    kspan = 30
    wdel = 8
    kvtlb = False
    capb = None
    pbf16 = True
    k1early = False
    wot = 4
    wotnt = None
    tlb = 0
    nx = 1
    accearly = True
    cap = (7, 6)
    capend = 30
    hold = False
    xgate = 0
    last = (0, 0)
    ylast = 1
    kvsame = False
    unroll = False
    a0at = 2
    opol = ''
    late = 0
    prio = 0
    gate = 12
    pace = 1.0
    d1 = (8, 10, 12, 14, 22, 24, 26, 27)
    d2 = (29, 31, 33, 35, 37, 39, 44, 47)
    dcost = 4.0
    acct = 0
    w0 = 10
    askat = 3
    fewwait = True
    vwin = (16, 22)
    kwin = (40, 44)
    tpol = ''
    wopol = ''

SLOT = 16384
SV = 126976
def slot(u): return (2 if u == 0 else (-u) % 3) * SLOT
STG = lambda i: 45056 + 28672 * i
TOP = 159744
SB = (122880, 0, 86016, 49152)
NS = 3
YB = 49152

def dma_unit(u, opt):
    kind = "KV"[u % 2]; sreg = "s36" if kind == "K" else "s35"
    srdn = "s[8:11]" if kind == "K" else "s[12:15]"
    G = []
    for j in range(8):
        g = []
        mb, mo = ("s54", 0) if u == 1 else ("s37", slot(u))
        if j == 0: g += [f"s_add_u32 m0, {mb}, {mo}", f"s_add_u32 s51, s34, {sreg}"]
        if j == 1 and not opt.kvsame: g += [f"s_add_u32 {sreg}, {sreg}, 16384", f"s_and_b32 {sreg}, {sreg}, 0x3ffff"]
        if j == 4: g += [f"s_add_u32 m0, {mb}, {mo + 4096}", "s_add_u32 s51, s51, 4096"]
        vo = VOFFK + j % 4 if kind == "K" else VOFFV
        if opt.cap and 4 <= u <= opt.capend:
            cx, cy = opt.cap
            cx, cy = (c if isinstance(c, int) else c[j % len(c)] for c in (cx, cy))
            dma_unit.n += 1; n = dma_unit.n
            bx, by = (c if isinstance(c, int) else c[j % len(c)] for c in (opt.capb or opt.cap))
            prev = None
            for lv, c in enumerate((bx, cx, by, cy)):
                if c == prev: continue
                R_ = "RAW " if prev else ""
                g += [R_ + f"s_cmp_le_u32 s50, {lv}", R_ + f"s_cbranch_scc1 L_cap{n}", f"RAW s_waitcnt vmcnt({c - 1})"]
                assert prev is None or c < prev
                prev = c
            g += [f"LABEL L_cap{n}"]
        g.append(f"buffer_load_dwordx4 v{vo}, {srdn}, s51 offen offset:{(j % 4)*1024} nt lds ; @u{u}")
        G.append("\n".join(g))
    return G
dma_unit.n = 0
def kreads(t): return [f"ds_read_b128 {ar(KF+4*s,4)}, v{VKA+s} offset:{slot(2*t)}" for s in range(8)]
def vreads(t):
    return [f"ds_read_b64_tr_b16 {ar(VF + db*8 + s*4 + k*2, 2)}, v{(VVA if t else 28)+db} offset:{(slot(2*t+1) if t else 0) + 4096*s + 2048*k}"
            for s in range(2) for db in range(4) for k in range(2)]
def tile_body(a, opt, t, carry, extra=()):
    first = t == 0
    M = qk(0, first) + (pv(2, t == 1) if t else [None]*8) + qk(1, first) + pv(0, first) + qk(2, first) + pv(1, first)
    W = opt.w0
    sl = [[] for _ in range(48 + W)]
    def at(G, slots):
        for g, k in zip(G, slots): sl[k].append(g)
    if 2*t + NS <= 31: at(dma_unit(2*t + NS if t else 4, opt), opt.d1)
    spread(sl, [f"WAITVM u{2*t+1}"] + vreads(t), *opt.vwin)
    if 2*t + NS + 1 <= 31 and t: at(dma_unit(2*t + NS + 1, opt), opt.d2)
    if t < 15: spread(sl, [f"WAITVM u{2*t+2}"] + kreads(t + 1), *opt.kwin)
    if t == 14 and opt.xgate: sl[30].append('v_mov_b32 v27, 2\nds_write_b32 v109, v27 offset:16')
    if opt.hold or t == 0: sl[46].append("s_add_u32 s45, s45, 1\nv_mov_b32 v27, s45\nds_write_b32 v109, v27 offset:16")
    if 1 <= t <= 14 and opt.hold:
        sl[44].append("ds_read_b64 v[30:31], v26")
        sl[47].append(f"""AUTO v_min_u32 v30, v30, v31
s_add_u32 s38, s38, s50
s_min_i32 s38, s38, 256
v_readfirstlane_b32 s3, v30
s_lshl_b32 s3, s3, 4
s_cmp_ge_i32 s3, s38
s_cbranch_scc1 L_go{t}
s_call_b64 s[40:41], L_hold
LABEL L_go{t}""")
    for e in extra: spread(sl, *e)
    for i, x in enumerate(carry): sl[i] = x + sl[i]
    ghost = {48 + k: "buffer_x\ns_nop 0\ns_nop 0" for k in opt.d1 if k < W}
    for k, g in ghost.items(): sl[k].append(g)
    level_fill(sl, softmax(0, t, first), W, W + 16, opt.dcost)
    level_fill(sl, softmax(1, t, first), W + 16, W + 32, opt.dcost)
    level_fill(sl, softmax(2, t, first), W + 32, W + 48, opt.dcost)
    for k in ghost: sl[k] = sl[k][1:]
    for i in range(48):
        if opt.fewwait:
            if i == 0: a.wait(lgregs=regs_of(ar(KF, 32)))
            if i == 24: a.wait(lgregs=regs_of(ar(VF, 32)))
        if M[i]: emit(a, [M[i]])
        for x in sl[i]:
            if opt.acct and x.startswith("WAITVM"):
                keep = list(a.lg)
                a.e("s_memtime s[94:95]"); emit(a, [x]); a.e("s_memtime s[96:97]\ns_waitcnt lgkmcnt(0)\ns_sub_u32 s96, s96, s94")
                r = 98 if int(x.split("u")[1]) % 2 else 100
                a.e(f"s_add_u32 s{r}, s{r}, s96")
            elif opt.acct == 2 and "lds ;" in x:
                a.e("s_memtime s[94:95]"); emit(a, [x]); a.e("s_memtime s[96:97]\ns_waitcnt lgkmcnt(0)\ns_sub_u32 s96, s96, s94\ns_add_u32 s92, s92, s96")
            else: emit(a, [x])
    return sl[48:]

def save(a): return (list(a.hist), list(a.lg), list(a.vm))
def load(a, st): a.hist, a.lg, a.vm = (list(x) for x in st)

def kernel(a, name, opt):
    a.raw(".text"); a.raw(f".globl {name}"); a.raw(".p2align 8"); a.raw(f".type {name},@function")
    a.label(name, reset=True)
    a.e("""s_load_dwordx8 s[56:63], s[0:1], 0
           s_load_dwordx8 s[64:71], s[0:1], 40
           s_load_dwordx2 s[72:73], s[0:1], 96
           s_load_dwordx2 s[40:41], s[0:1], 32
           s_load_dwordx2 s[42:43], s[0:1], 72
           s_load_dwordx4 s[44:47], s[0:1], 80
           s_memrealtime s[48:49]
           s_cmp_ge_u32 s2, 256
           s_cbranch_scc1 L_done""")
    if opt.stamps: a.e(f"{opt.clk} s[{STB}:{STB+1}]")
    VW, VXA, VXB, AW, AX, VD = 72, 73, 74, 76, 64, 111
    G, L15, H, L31, G1, R, C4 = 88, 89, 90, 91, 92, 81, 82
    VFO, VFP = 109, 110
    a.e(f"""v_lshrrev_b32 v1, 6, v0
            s_and_b32 s3, s2, 7
            s_lshr_b32 s29, s3, 2
            s_and_b32 s30, s3, 3
            v_readfirstlane_b32 s28, v1
            s_lshr_b32 s3, s2, 3
            s_lshr_b32 s31, s3, 2
            s_and_b32 s32, s3, 3
            v_and_b32 v1, 63, v0
            v_lshrrev_b32 v{G}, 4, v1
            v_and_b32 v{L15}, 15, v1
            v_lshrrev_b32 v56, 3, v1
            v_and_b32 v57, 7, v1
            v_and_b32 v{G1}, 1, v{G}
            v_lshlrev_b32 v59, 2, v{G1}
            v_xor_b32 v59, v57, v59
            v_lshlrev_b32 v59, 4, v59
            v_lshl_add_u32 v{VW}, v56, 13, v59
            v_mul_u32_u24 v60, 1152, v56
            v_xor_b32 v61, v57, v{G}
            s_and_b32 s6, s28, 1
            s_lshr_b32 s7, s28, 1
            s_lshl_b32 s3, s6, 2
            v_xor_b32 v61, s3, v61
            v_lshl_add_u32 v{VXA}, v61, 4, v60
            v_xor_b32 v61, 4, v61
            v_lshl_add_u32 v{VXB}, v61, 4, v60
            s_mul_i32 s37, s7, {YB}
            s_lshl_b32 s3, s6, 13
            s_add_u32 s37, s37, s3
            s_lshl_b32 s33, s30, 3
            s_lshl_b32 s3, s32, 1
            s_add_u32 s33, s33, s3              ; head X
            s_add_u32 s74, s3, s31              ; b + 2p
            s_lshl_b32 s52, s33, 8
            s_lshl_b32 s3, s28, 7
            s_add_u32 s52, s52, s3
            s_mul_i32 s53, s31, 110592
            s_mul_i32 s3, s28, 27648
            s_add_u32 s53, s53, s3              ; x rows 24w..
            s_mul_i32 s55, s28, 3072
            s_mov_b32 s18, 884736
            s_mov_b32 s19, 0x20000
            s_mov_b32 s22, 4718592
            s_mov_b32 s23, 0x20000""")
    if opt.krot == 0: a.e("s_mov_b32 s74, 0")
    elif opt.krot == 1: a.e("s_cmp_ge_u32 s74, 9\ns_cselect_b32 s3, 9, 0\ns_sub_u32 s74, s74, s3")
    elif opt.krot == 3: a.e("s_and_b32 s74, s74, 1\ns_lshl_b32 s74, s74, 2")
    elif opt.krot == 2: a.e("s_add_u32 s74, s31, s32\ns_mul_i32 s3, s74, 86\ns_lshr_b32 s3, s3, 8\ns_mul_i32 s3, s3, 3\ns_sub_u32 s74, s74, s3\ns_mul_i32 s74, s74, 3")
    elif opt.krot == 4: a.e("s_add_u32 s74, s31, s32\ns_and_b32 s74, s74, 3\ns_mul_i32 s74, s74, 9\ns_lshr_b32 s74, s74, 2")
    elif opt.krot == 5: a.e("s_add_u32 s74, s31, s32\ns_and_b32 s74, s74, 1\ns_lshl_b32 s74, s74, 2")
    a.e("s_cmp_eq_u32 s29, 0\ns_waitcnt lgkmcnt(0)")
    for d, o in ((20, 6), (16, 0), (8, 2), (12, 4)):
        a.e(f"s_cselect_b32 s{d}, s{56+o}, s{64+o}\ns_cselect_b32 s{d+1}, s{57+o}, s{65+o}")
    a.e("""s_cselect_b32 s76, s40, s42
           s_cselect_b32 s77, s41, s43
           s_mov_b64 s[78:79], s[44:45]
           s_mov_b64 s[80:81], s[46:47]
           s_or_b32 s75, s48, 1""")
    P = lambda ch: " nt" if ch == "n" else ""
    XS = 98304
    VW4, VX3 = 32, 36
    a.e(f"""v_mov_b32 v{VW4}, v{VW}
            v_add_u32 v{VW4+1}, {65536 - 1024}, v{VW}
            v_add_u32 v{VW4+2}, {2*(65536 - 1024)}, v{VW}
            v_add_u32 v{VW4+3}, {3*(65536 - 1024)}, v{VW}
            v_mov_b32 v{VX3}, v{VXA}
            v_add_u32 v{VX3+1}, {9216 - 1024}, v{VXB}
            v_add_u32 v{VX3+2}, {2*(9216 - 1024)}, v{VXA}
            s_lshl_b32 s4, s74, 19
            s_add_u32 s4, s4, s52
            s_lshl_b32 s5, s74, 7
            s_add_u32 s5, s5, s53
            s_sub_u32 s74, 9, s74""")
    WR = lambda c, j: ar(((c - 3)*8 + j)*4, 4)
    XR = lambda c, i: ar(192 + ((c-3)*3 + i)*4, 4) if (c-3)*3 + i < 16 else vr(40 + ((c-3)*3 + i - 16)*4, 4)
    def regstage(c):
        Gs = []
        for j in range(8):
            Gs.append(("s_add_u32 s4, s4, 262144\n" if j == 4 else "") + f"buffer_load_dwordx4 {WR(c,j)}, v{VW4 + j % 4}, s[20:23], s4 offen offset:{(j % 4)*1024}{P(opt.wp[0])} ; @s{c}")
        for i in range(3):
            g = ("s_add_u32 s4, s4, 262144\n" if i == 0 else "") + f"buffer_load_dwordx4 {XR(c,i)}, v{VX3 + i}, s[16:19], s5 offen offset:{i*1024}{P(opt.wp[1])} ; @s{c}"
            if i == 2: g += f"\ns_add_u32 s5, s5, 128\ns_sub_u32 s74, s74, 1\ns_cmp_lg_u32 s74, 0\ns_cbranch_scc1 L_nw{c}\nRAW s_mov_b32 s4, s52\nRAW s_mov_b32 s5, s53\nLABEL L_nw{c}"
            Gs.append(g)
        return Gs
    def regwrite(c):
        return [f"WAITVM s{c}"] + [f"ds_write_b128 v48, {WR(c,j)} offset:{(c % 2)*SLOT + j*1024}" for j in range(8)] + \
               [f"ds_write_b128 v49, {XR(c,i)} offset:{(c % 2)*12288 + i*1024}" for i in range(3)]
    def stage(c):
        buf = c % 3; Gs = []
        if c >= 3: return regstage(c)
        for j in range(8):
            g = [f"s_add_u32 m0, s37, {buf*SLOT}", "s_nop 0"] if j == 0 else [f"s_add_u32 m0, s37, {buf*SLOT + 4096}", "s_add_u32 s4, s4, 262144"] if j == 4 else []
            Gs.append("\n".join(g + [f"buffer_load_dwordx4 v{VW4 + j % 4}, s[20:23], s4 offen offset:{(j % 4)*1024}{P(opt.wp[0])} lds ; @s{c}"]))
        for i in range(3):
            g = [f"s_add_u32 m0, s55, {XS + buf*12288}", "s_add_u32 s4, s4, 262144"] if i == 0 else []
            g += [f"buffer_load_dwordx4 v{VX3 + i}, s[16:19], s5 offen offset:{i*1024}{P(opt.wp[1])} lds ; @s{c}"]
            if i == 2: g += ["s_add_u32 s5, s5, 128", "s_sub_u32 s74, s74, 1", f"s_cbranch_scc0 L_nw{c}", ]
            Gs.append("\n".join(g))
        Gs[-1] = Gs[-1].replace(f"s_sub_u32 s74, s74, 1\ns_cbranch_scc0 L_nw{c}", f"s_sub_u32 s74, s74, 1\ns_cmp_lg_u32 s74, 0\ns_cbranch_scc1 L_nw{c}\nRAW s_mov_b32 s4, s52\nRAW s_mov_b32 s5, s53\nLABEL L_nw{c}")
        return Gs
    stamp(a, 'ka', opt)
    wtouch = [x.strip() for x in """s_lshr_b32 s3, s2, 3
            s_lshl_b32 s3, s3, 2
            s_add_u32 s3, s3, s28
            s_mul_i32 s3, s3, 9216
            s_mul_i32 s47, s30, 1179648
            v_lshlrev_b32 v24, 7, v1
            v_add_u32 v24, s3, v24
            v_add_u32 v25, 8192, v24
            v_cmp_gt_u32 s[70:71], 8, v1
            v_cndmask_b32 v25, -1, v25, s[70:71]""".split("\n")]
    wtouch = ["\n".join(wtouch + ["buffer_load_dword v23, v24, s[60:63], s47 offen ; @junk"]), "s_mul_i32 s47, s30, 1179648\nbuffer_load_dword v23, v25, s[60:63], s47 offen ; @junk"]
    if opt.wot is not None: srd(a, 60, "s76", "s77", 4718592)
    if opt.wot == 'a': emit(a, wtouch)
    emit(a, stage(0))
    if opt.kvtlb:
        a.e(f"""s_mov_b32 s10, {1 << 26}
                s_mov_b32 s11, 0x20000
                s_mov_b32 s14, {1 << 26}
                s_mov_b32 s15, 0x20000
                s_lshl_b32 s3, s31, 5
                s_add_u32 s3, s3, s33
                s_add_u32 s3, s3, s7
                s_lshl_b32 s3, s3, 18
                v_and_b32 v24, 3, v1
                v_lshlrev_b32 v24, 16, v24
                buffer_load_dword v23, v24, s[8:11], s3 offen nt ; @junk
                buffer_load_dword v23, v24, s[12:15], s3 offen nt ; @junk""")
    if opt.wot == 'b': emit(a, wtouch)
    stamp(a, 'i0', opt)
    srd(a, 56, "s80", "s81", 256)
    a.e("""s_lshl_b32 s3, s2, 8
           v_add_u32 v106, s3, v0
           v_min_u32 v106, 1, v106
           v_lshlrev_b32 v106, 12, v106
           v_mov_b32 v107, s75
           buffer_store_dword v107, v106, s[56:59], 0 offen sc1""")
    emit(a, stage(1))
    if opt.wot == 'c': emit(a, wtouch)
    for d in (8, 12): a.e(f"s_mov_b32 s{d+2}, {1 << 26}\ns_mov_b32 s{d+3}, 0x20000")
    srd(a, 24, "s72", "s73", WS_BYTES)
    srd(a, 60, "s76", "s77", 4718592)
    a.e(f"""v_lshrrev_b32 v{H}, 5, v1
            v_and_b32 v{L31}, 31, v1
            v_lshrrev_b32 v{R}, 2, v{L15}
            v_and_b32 v{C4}, 3, v1
            v_lshl_add_u32 v59, v{H}, 3, v{R}
            v_lshlrev_b32 v59, 7, v59
            v_lshrrev_b32 v60, 1, v{R}
            v_lshl_add_u32 v59, v60, 6, v59
            v_lshl_add_u32 v59, v{G1}, 5, v59
            v_lshl_add_u32 v59, v{C4}, 3, v59
            v_add_u32 v{AW}, s37, v59
            v_xor_b32 v{AW+1}, 64, v{AW}
            v_bfe_u32 v60, v1, 1, 3
            v_xor_b32 v60, v60, v{H}
            v_lshlrev_b32 v60, 4, v60
            v_lshl_add_u32 v60, v{L31}, 7, v60
            v_add_u32 v{AX}, {XS}, v60""")
    for s in range(1, 4): a.e(f"v_xor_b32 v{AX+s}, {32*s}, v{AX}")
    a.e(f"""s_lshl_b32 s3, s28, 2
            s_add_u32 s3, s3, {TOP + 3072}
            v_mov_b32 v{VFO}, s3
            v_xor_b32 v{VFP}, 4, v{VFO}
            v_mov_b32 v61, 0
            ds_write_b32 v{VFO}, v61
            ds_write_b32 v{VFO}, v61 offset:16
            s_mov_b32 s44, 0
            s_mov_b32 s45, 0""")
    a.e(f"""v_lshlrev_b32 v49, 4, v1
            v_add_u32 v48, s37, v49
            s_add_u32 s3, s55, {XS}
            v_add_u32 v49, s3, v49
            s_lshl_b32 s54, s28, 13
            s_add_u32 s54, s54, {SV}""")
    def frag_reads(c, s, F):
        buf = c if c < 3 else c % 2
        L = [f"ds_read_b64_tr_b16 {vr(F + db*4 + k*2, 2)}, v{AW+db} offset:{buf*SLOT + (16*s + 4*k) * 128}" for db in range(2) for k in range(2)]
        return L + [f"ds_read_b128 {vr(F + 8 + qb*4, 4)}, v{AX+s} offset:{buf*12288 + qb*4096}" for qb in range(3)]
    setup = f"""v_lshlrev_b32 v26, 8, v{G}
            v_xor_b32 v27, v{L15}, v{G}
            v_lshl_add_u32 v{VOFFK}, v27, 4, v26
            v_xor_b32 v{VOFFK+1}, 64, v{VOFFK}
            v_xor_b32 v{VOFFK+2}, 128, v{VOFFK}
            v_xor_b32 v{VOFFK+3}, 192, v{VOFFK}
            v_lshlrev_b32 v27, 2, v{G}
            v_xor_b32 v27, v{L15}, v27
            v_lshl_add_u32 v{VOFFV}, v27, 4, v26
            s_lshl_b32 s3, s6, 13
            s_add_u32 s33, s33, s7
            s_lshl_b32 s34, s31, 5
            s_add_u32 s34, s34, s33
            s_lshl_b32 s34, s34, 18
            s_add_u32 s34, s34, s3"""
    if opt.rot:
        setup += """
            s_lshl_b32 s3, s2, 2
            s_add_u32 s3, s3, s7
            s_mul_i32 s3, s3, 0x1e3779b1
            s_lshr_b32 s47, s3, 15
            s_xor_b32 s3, s3, s47
            s_mul_i32 s3, s3, 0x2c1b3c6d
            s_lshr_b32 s3, s3, 20
            s_and_b32 s3, s3, 15
            s_lshl_b32 s35, s3, 14"""
    else: setup += "\ns_mov_b32 s35, 0"
    setup += f"""
            s_mov_b32 s36, s35
            s_mov_b32 s69, s35
            v_lshlrev_b32 v50, 7, v1
            v_xor_b32 v27, v{H}, v{L15}
            v_lshlrev_b32 v27, 4, v27
            v_lshl_add_u32 v27, v{L31}, 8, v27
            v_add_u32 v{VKA}, s37, v27"""
    for s in range(1, 8): setup += f"\nv_xor_b32 v{VKA+s}, {32*s}, v{VKA}"
    setup += f"""
            v_lshl_add_u32 v28, v{H}, 2, v{R}
            v_lshlrev_b32 v28, 8, v28
            v_lshl_add_u32 v28, v{R}, 6, v28
            v_lshl_add_u32 v28, v{G1}, 5, v28
            v_lshl_add_u32 v28, v{C4}, 3, v28
            s_lshl_b32 s47, s6, 7
            v_xor_b32 v28, s47, v28
            v_add_u32 v{VVA}, s37, v28"""
    for db in range(1, 4): setup += f"\nv_xor_b32 v{VVA+db}, {64*db}, v{VVA}"
    setup += "\nv_add_u32 v28, s54, v28"
    for db in range(1, 4): setup += f"\nv_xor_b32 v{28+db}, {64*db}, v28"
    setup += f"\ns_mov_b32 s42, {f2u(CSC):#x}\ns_mov_b32 s43, {f2u(THR_LOG2):#x}"
    for qb in range(3): setup += f"\nv_mov_b32 v{LSUM+qb}, 0"
    setup = [x.strip() for x in setup.split("\n")]
    VO, VL16, AD, VOL = 93, 102, 103, 107
    def vo_calc(dst, rev):
        L = []
        for i in range(9):
            L += [f"v_add_u32 v80, {64*i}, v1", "v_mul_u32_u24 v28, 58255, v80", "v_lshrrev_b32 v28, 20, v28", "v_mul_u32_u24 v83, 18, v28",
                  "v_sub_u32 v83, v80, v83", "v_xor_b32 v29, 1, v83", "v_sub_u32 v29, 17, v29"]
            if rev == "vcc": L += ["v_cndmask_b32 v29, v83, v29, s[70:71]"]
            L += ["v_mul_u32_u24 v28, 1152, v28", f"v_lshl_add_u32 v{dst+i}, v29, 4, v28"]
        return L
    setup2 = ["s_cmp_eq_u32 s7, 1\ns_cselect_b64 s[70:71], -1, 0"] + vo_calc(VO, "vcc") + [x.strip() for x in f"""v_lshlrev_b32 v{VL16}, 4, v1
            v_lshlrev_b32 v80, 4, v{H}
            v_lshl_add_u32 v80, v{G1}, 2, v80
            v_add_u32 v80, v80, v{R}
            v_mul_u32_u24 v80, 288, v80
            v_lshl_add_u32 v80, v{C4}, 3, v80
            s_mul_i32 s3, s7, 18432
            v_add_u32 v{AD+1}, s3, v80
            v_add_u32 v{AD}, {SB[0]}, v{AD+1}
            v_lshlrev_b32 v{VOL}, 10, v{G1}
            v_lshl_add_u32 v{VOL}, v{H}, 8, v{VOL}
            v_lshl_add_u32 v{VOL}, v{L15}, 4, v{VOL}
            v_mov_b32 v108, 0
            s_mul_i32 s67, s30, 1179648
            s_mul_i32 s3, s32, 288
            s_add_u32 s64, s67, s3              ; wo: rows of the octet, columns 144p..
            s_lshl_b32 s39, s29, 3
            s_add_u32 s39, s39, s31""".split("\n")]
    setW = ["s_lshl_b32 s66, s32, 1", "s_mul_i32 s65, s28, 9216", f"s_mul_i32 s68, s28, {32*1152}", "s_add_u32 s68, s68, s64"]
    def psync(pre_wait=True):
        psync.n += 1; n = psync.n
        a.e(f"""s_add_u32 s44, s44, 1
                v_mov_b32 v{VD}, s44
                ds_write_b32 v{VFO}, v{VD}
                s_mov_b32 s47, 0x400000""")
        a.label(f"L_ps{n}")
        a.e(f"""ds_read_b32 v{VD}, v{VFP}
                s_sub_u32 s47, s47, 1
                s_waitcnt lgkmcnt(0)
                v_readfirstlane_b32 s3, v{VD}
                s_cmp_eq_u32 s47, 0
                s_cselect_b32 s3, s44, s3
                s_cmp_lt_u32 s3, s44
                s_cbranch_scc1 L_ps{n}""")
    psync.n = 0
    def other_pair(name, word, val, T=84):
        a.e(f"v_mov_b32 v{T+2}, {TOP + 3072 + word}\ns_mov_b32 s47, 0x400000")
        a.label(name)
        a.e(f"""s_sleep 2
                ds_read_b64 v[{T}:{T+1}], v{T+2}
                s_sub_u32 s47, s47, 1
                s_waitcnt lgkmcnt(0)
                v_min_u32 v{T}, v{T}, v{T+1}
                v_readfirstlane_b32 s3, v{T}
                s_cmp_eq_u32 s47, 0
                s_cselect_b32 s3, {val}, s3
                s_cmp_lt_u32 s3, {val}
                s_cbranch_scc1 {name}""")

    ACC = 112
    def qwrite(blocks, dreg, area, extra=()):
        a.e(f"""v_xor_b32 v55, {dreg}, v{L15}
                v_lshlrev_b32 v55, 4, v55
                v_lshl_add_u32 v55, v{L31}, 8, v55
                v_lshl_add_u32 v55, v{H}, 3, v55
                v_add_u32 v55, {area}, v55
                v_mov_b32 v62, s42""")
        for db in range(blocks):
            for i in range(4):
                a.e(f"v_xor_b32 v54, {(4*db + i)*16}, v55")
                if extra: emit(a, [extra[4*db + i]])
                for qb in range(3):
                    r = ACC + (db*3 + qb)*16 + 4*i; tq = 56 + 2 * qb
                    a.e(f"""v_pk_mul_f32 v[{r}:{r+1}], v[{r}:{r+1}], v[62:63] op_sel_hi:[1,0]
                            v_pk_mul_f32 v[{r+2}:{r+3}], v[{r+2}:{r+3}], v[62:63] op_sel_hi:[1,0]
                            v_cvt_pk_bf16_f32 v{tq}, v{r}, v{r+1}
                            v_cvt_pk_bf16_f32 v{tq+1}, v{r+2}, v{r+3}
                            ds_write_b64 v54, v[{tq}:{tq+1}] offset:{qb*8192}""")
    def qread(area):
        a.e(f"s_sub_u32 s3, {area}, s37")
        for s in range(8): a.e(f"v_add_u32 v{32+s}, s3, v{VKA+s}")
        for qb in range(3):
            for s in range(8): a.e(f"ds_read_b128 {vr(Qreg(qb,s),4)}, v{32+s} offset:{qb*8192}")
    FA, FB = 208, 228
    a.wait(vmtags=["s0"], lg0=True); a.e("s_barrier")
    stamp(a, "q0", opt)
    emit(a, frag_reads(0, 0, FA))
    sl = [[] for _ in range(216 + 24)]
    spread(sl, [x for c in range(2, 9 - opt.rlate) for x in stage(c)], 0, opt.rspan)
    spread(sl, setup, 6, 64)
    for c in range(9):
        for s in range(4):
            F, nF = (FA, FB) if s % 2 == 0 else (FB, FA)
            k0 = (c*4 + s) * 6
            if s == 3:
                a.wait(vmtags=[f"s{c+1}"] if c < 2 else [], lg0=True); a.e("s_barrier")
                stamp(a, f"c{c}", opt)
                if 1 <= c <= 6: spread(sl, regwrite(c + 2), k0 + (opt.wdel if c == 1 else 1), k0 + 22)
                if c == 2: spread(sl, dma_unit(0, opt) + [x for k in range(9 - opt.rlate, 9) for x in stage(k)] + dma_unit(1, opt), max(k0, opt.rspan), max(k0, opt.rspan) + opt.kspan)
                if c == 7: spread(sl, dma_unit(2, opt), k0, k0 + 18)
                for u in opt.touch.get(c, []):
                    sl[k0 + 20].append(f"s_add_u32 s47, s69, {(u // 2) * 16384}\ns_and_b32 s47, s47, 0x3ffff\ns_add_u32 s47, s47, s34\n" +
                                       f"buffer_load_dword v51, v50, {'s[8:11]' if u % 2 == 0 else 's[12:15]'}, s47 offen nt ; @junk")
                if opt.wot == c: spread(sl, wtouch, k0 + 12, k0 + 22)
            rd = (frag_reads(c + 1, 0, nF) if c < 8 else []) if s == 3 else frag_reads(c, s + 1, nF)
            if opt.qlev:
                for k, x in enumerate(rd): sl[k0 + (0, 0, 1, 1, 2, 3, 4)[k]].insert(0, x)
                a.wait(lgregs=regs_of(vr(F, 20)))
            else: emit(a, rd)
            i = 0
            for db in range(2):
                for qb in range(3):
                    d = vr(ACC + (db*3 + qb)*16, 16)
                    emit(a, [f"v_mfma_f32_32x32x16_bf16 {d}, {vr(F+db*4,4)}, {vr(F+8+qb*4,4)}, " + ("0" if (c == 0 and s == 0) else d)] + sl[k0 + i]); i += 1
    assert not any(sl[216:])
    a.e("s_lshl_b32 s3, s6, 3\ns_cmp_eq_u32 s7, 1\ns_cbranch_scc1 L_qy")
    sv = save(a)
    qwrite(2, "s3", XS, dma_unit(3, opt))
    a.e("s_waitcnt lgkmcnt(0)\ns_barrier")
    qread(XS)
    a.e("s_waitcnt lgkmcnt(0)\ns_barrier\ns_branch L_qdone")
    a.label("L_qy"); load(a, sv)
    emit(a, dma_unit(3, opt))
    a.e("s_barrier\ns_barrier\ns_lshl_b32 s3, s6, 3")
    qwrite(2, "s3", XS)
    a.e("s_waitcnt lgkmcnt(0)"); psync()
    qread(XS)
    a.label("L_qdone")
    stamp(a, "qx", opt)
    a.wait(vmtags=["u0"], lg0=True)
    emit(a, kreads(0))
    stamp(a, "k0", opt)
    a.e(f"""v_mov_b32 v26, {TOP + 3072 + 16}
            s_cmp_eq_u32 s7, 1
            s_cselect_b32 s50, {round(opt.thr1 * 16)}, 0
            s_cselect_b32 s38, {round((opt.thr0 + opt.thr1) * 16)}, -1""")
    if not opt.hold: a.e("s_lshl_b32 s50, s7, 1\ns_add_u32 s50, s50, 2\ns_sub_u32 s50, s50, s29")
    if opt.acct: a.e(f"s_mov_b64 s[98:99], s[{STB}:{STB+1}]\ns_mov_b64 s[100:101], s[{STB}:{STB+1}]\ns_mov_b64 s[92:93], s[{STB}:{STB+1}]")
    def wpieces(tag, head, rows, lds, voreg):
        Gs = []
        for i in range(9):
            g = [f"s_add_u32 s4, s66, {head}", "s_and_b32 s4, s4, 7", f"s_mul_i32 s4, s4, {128*1152}", "s_add_u32 s4, s4, s68",
                 f"s_add_u32 s4, s4, {rows*1152}"] if i == 0 else []
            g += [f"s_add_u32 m0, s65, {lds + i*1024}", f"buffer_load_dwordx4 v{voreg+i}, s[60:63], s4 offen{opt.wopol} lds ; @{tag}"]
            Gs.append("\n".join(g))
        return Gs
    HEAD = (0, 2, 4, 6, 1, 3, 5, 7)
    NX = opt.nx
    BUFOF = [st % 2 for st in range(NX + 2)] + [2, 3]
    while len(BUFOF) < 8: BUFOF.append(BUFOF[len(BUFOF) - 4])
    wS = lambda st: wpieces(f"w{st}", HEAD[st], 0, SB[BUFOF[st]], VO)
    wX = lambda st, VOR: wpieces(f"w{st}", HEAD[st], 0, SB[BUFOF[st]], VO) + wpieces(f"w{st}", HEAD[st], 64, SB[BUFOF[st]] + 18432, VOR)
    carry = tile_body(a, opt, 0, [])
    carry = tile_body(a, opt, 1, carry, extra=[(setup2 + setW, 0, 41)])
    carry1 = [[x.replace('L_sk1_', 'L_sk4_') for x in y] for y in carry]
    if opt.unroll:
        for t in range(2, 14):
            stamp(a, f'r{t}', opt); carry = tile_body(a, opt, t, carry)
    else:
        stamp(a, "l0", opt)
        a.e("s_mov_b32 s46, 4")
        a.raw(".p2align 6"); a.label("L_tile")
        keep = list(a.vm)
        if not opt.hold: a.e(f"s_cmp_eq_u32 s7, 0\ns_cselect_b32 s3, {2*opt.last[0]}, {2*opt.last[1]}\ns_cmp_gt_u32 s46, 1\ns_cselect_b32 s50, s50, s3")
        if opt.late:
            a.e(f"""s_lshl_b32 s3, s7, 3
                    s_add_u32 s3, s3, s46
                    s_cmp_lg_u32 s3, {opt.late}
                    s_cbranch_scc1 L_nolate
                    s_lshr_b32 s3, s2, 3
                    s_lshl_b32 s3, s3, 1
                    s_add_u32 s3, s3, s6
                    s_mul_i32 s3, s3, 18432
                    v_lshlrev_b32 v84, 7, v1
                    v_add_u32 v84, s3, v84
                    v_add_u32 v85, 8192, v84
                    v_add_u32 v86, 16384, v84
                    v_cmp_gt_u32 vcc, 16, v1
                    v_cndmask_b32 v86, -1, v86, vcc""")
            emit(a, [f"buffer_load_dword v87, v{r}, s[60:63], s67 offen{opt.tpol} ; @junk" for r in (84, 85, 86)])
            a.label("L_nolate")
        if opt.tlb:
            a.e(f"""s_cmp_lg_u32 s46, {opt.tlb}
                    s_cbranch_scc1 L_notlb
                    s_lshl_b32 s3, s39, 2
                    s_add_u32 s4, s3, s30
                    s_mul_i32 s4, s4, {8*24576}
                    v_mov_b32 v84, s4
                    s_add_u32 s4, s4, {8*24576 - 128}
                    v_writelane_b32 v84, s4, 1
                    s_add_u32 s3, s3, s32
                    s_mul_i32 s4, s3, {4*36864}
                    s_add_u32 s4, s4, {WS_P}
                    v_writelane_b32 v84, s4, 2
                    s_add_u32 s4, s4, {4*36864 - 128}
                    v_writelane_b32 v84, s4, 3
                    s_mov_b32 s4, {WS_F + 65536 - 128}
                    v_writelane_b32 v84, s4, 4
                    s_mul_i32 s4, s31, {96*2304}
                    v_mov_b32 v85, s4
                    s_add_u32 s4, s4, {96*2304 - 128}
                    v_writelane_b32 v85, s4, 1
                    s_mov_b64 s[16:17], s[78:79]
                    s_mov_b32 s18, 1769472
                    buffer_load_dword v87, v84, s[24:27], 0 offen nt ; @junk
                    buffer_load_dword v87, v85, s[16:19], 0 offen nt ; @junk""")
            a.label("L_notlb")
        a.vm = keep
        for t in (2, 3, 4): carry = tile_body(a, opt, t, carry)
        assert carry == carry1
        a.e("s_sub_u32 s46, s46, 1\ns_cmp_lg_u32 s46, 0\ns_cbranch_scc1 L_tile")
        for o in a.vm:
            if o.tag and o.tag[0] == "u": o.tag = f"u{int(o.tag[1:]) + 18}"
    stamp(a, "l1", opt)
    carry = tile_body(a, opt, 14, carry)
    xo = lambda k: (k // 8) * SLOT + (k % 8) * 1024
    def send(qb):
        return [f"ds_write_b128 v28, {ar(Oacc(2+i,qb) + 4*g, 4)} offset:{xo((i*3 + qb)*4 + g)}" for i in range(2) for g in range(4)]
    accr = lambda qb: [f"v_accvgpr_read_b32 v{160 + (i*3+qb)*16 + r}, a{Oacc(i,qb) + r}" for i in range(2) for r in range(16)]
    pre = ["buffer_load_dword v106, v108, s[56:59], 0 offen sc1 ; @tag",
           f"v_add_u32 v28, s37, v{VL16}", "s_lshl_b32 s3, s6, 14\ns_sub_u32 s3, 8192, s3", "v_add_u32 v29, s3, v28",
           f"s_mul_i32 s3, s28, 768\ns_add_u32 s3, s3, {TOP}", f"v_lshlrev_b32 v30, 3, v{L31}", "v_add_u32 v30, s3, v30",
           f"s_xor_b32 s3, s28, 1\ns_mul_i32 s3, s3, 768\ns_add_u32 s3, s3, {TOP}", f"v_lshlrev_b32 v31, 3, v{L31}", "v_add_u32 v31, s3, v31"]
    team = "v_and_b32 v13, 3, v1\nv_lshlrev_b32 v13, 10, v13\nv_and_b32 v14, 4, v1\nv_add_u32 v13, v13, v14"
    askX = [f"s_andn2_b32 s71, s2, 24\ns_lshl_b32 s71, s71, 7\ns_add_u32 s69, s71, {WS_F}"] + team.split("\n") + ["buffer_load_dword v12, v13, s[24:27], s69 offen sc1"]
    carry = tile_body(a, opt, 15, carry, extra=[(pre, 8, 16), (askX, 28, 34), (send(0), 34, 48)] + ([(accr(0), 33, 44)] if opt.accearly else []))
    sl = [[] for _ in range(8)]
    carry = [x for y in carry for x in y]
    cut = max([i + 1 for i, x in enumerate(carry) if x.startswith(f"v_cvt_pk_bf16_f32 v{Sreg(2,3)},")] + [len(carry) - 16, 0])
    emit(a, carry[:cut])
    spread(sl, carry[cut:], 0, 3)
    st = []
    for qb in range(3): st += [f"v_mov_b32 v{3+2*qb}, v{LSUM+qb}", f"v_mov_b32 v{2+2*qb}, v{NM+16*qb}"]
    for qb in range(3): st += [f"v_permlane32_swap_b32 v{LSUM+qb}, v{3+2*qb}"]
    for qb in range(3): st += [f"v_add_f32 v{3+2*qb}, v{LSUM+qb}, v{3+2*qb}", f"ds_write_b64 v30, v[{2+2*qb}:{3+2*qb}] offset:{qb*256}"]
    spread(sl, st + send(1), 3, 8)
    for m, f in zip(pv(2, False), sl): emit(a, [m] + f)
    stamp(a, "t15", opt)
    emit(a, accr(1)[:12] + send(2))
    emit(a, ([] if opt.accearly else accr(0)) + accr(1)[12:] + accr(2))
    a.e("s_mov_b32 s4, 0x100000")
    a.label("L_tag")
    a.e("""s_waitcnt vmcnt(0)
           v_readfirstlane_b32 s75, v106
           s_cmp_lg_u32 s75, 0
           s_cbranch_scc1 L_tag_ok
           buffer_load_dword v106, v108, s[56:59], 0 offen sc1 ; @junk
           s_sub_u32 s4, s4, 1
           s_cmp_lg_u32 s4, 0
           s_cbranch_scc1 L_tag""")
    a.label("L_tag_ok"); a.vm = []
    a.e(f"""s_lshl_b32 s3, s39, 5
            s_add_u32 s3, s3, s33
            s_mul_i32 s52, s3, 24576
            s_mul_i32 s3, s6, 12288
            s_add_u32 s52, s52, s3
            s_waitcnt lgkmcnt(0)""")
    ACC, WF, OF = 112, 16, 0
    def ask(base, lanes):
        a.e(f"s_add_u32 s69, {base}, {WS_F}\n{lanes}\nbuffer_load_dword v12, v13, s[24:27], s69 offen sc1")
    def check(tag):
        a.e("s_mov_b32 s4, 0x100000")
        a.label(f"L_poll{tag}")
        a.e(f"""s_waitcnt vmcnt(0)
                v_cmp_ne_u32 vcc, s75, v12
                s_cbranch_vccz L_got{tag}
                s_sleep 1
                buffer_load_dword v12, v13, s[24:27], s69 offen sc1
                s_sub_u32 s4, s4, 1
                s_cmp_lg_u32 s4, 0
                s_cbranch_scc1 L_poll{tag}""")
        a.label(f"L_got{tag}")
        a.e("s_waitcnt vmcnt(0)")
    def wreads(buf, rows, F):
        reg, boff = (AD, AD + 1, 220, 221)[buf], 0
        return [f"ds_read_b64_tr_b16 {vr(F + nb*4 + 2*k, 2)}, v{reg} offset:{boff + (rows + 8*k) * 288 + 32*nb}" for nb in range(9) for k in range(2)]
    def oload(tag, head, db0, nks, dst):
        Gs = []
        for kl in range(nks):
            for j in range(3):
                g = [f"s_add_u32 s47, s66, {head}", "s_and_b32 s47, s47, 7", "s_mul_i32 s47, s47, 24576", "s_add_u32 s47, s47, s37"] + \
                    ([f"s_add_u32 s47, s47, {db0}"] if db0 else []) if kl + j == 0 else ["s_add_u32 s47, s47, 6144"] if j == 0 else []
                Gs.append("\n".join(g + [f"buffer_load_dwordx4 {ar(dst + (kl*3+j)*4, 4)}, v{VL16}, s[24:27], s47 offen offset:{j*1024} sc1 ; @{tag}"]))
        return Gs
    def kstep(F, O, zero, reads, jobs):
        ms = [f"v_mfma_f32_16x16x32_bf16 {vr(ACC + (nb*3+j)*4, 4)}, {vr(F+nb*4,4)}, {ar(O+j*4,4)}, " + ("0" if zero else vr(ACC + (nb*3+j)*4, 4))
              for nb in range(9) for j in range(3)]
        sl = [[] for _ in range(27)]
        spread(sl, reads, 0, 20); spread(sl, jobs, 0, 27)
        a.e("s_waitcnt lgkmcnt(0)")
        for m, f in zip(ms, sl): emit(a, [m] + f)
        return ms
    team = "v_and_b32 v13, 3, v1\nv_lshlrev_b32 v13, 10, v13\nv_and_b32 v14, 4, v1\nv_add_u32 v13, v13, v14"
    a.e(f"""s_lshl_b32 s3, s2, 7
            s_lshl_b32 s4, s28, 2
            s_add_u32 s70, s3, s4
            s_add_u32 s70, s70, {WS_F}
            s_lshl_b32 s3, s39, 2
            s_add_u32 s3, s3, s30
            s_mul_i32 s37, s3, {8*24576}
            s_mul_i32 s4, s6, 3072
            s_add_u32 s37, s37, s4
            s_mul_i32 s4, s7, 12288
            s_add_u32 s37, s37, s4
            s_mov_b32 s45, 0
            s_cmp_eq_u32 s7, 0
            s_cbranch_scc1 L_noearly
            v_cmp_ne_u32 vcc, s75, v12
            s_cbranch_vccnz L_noearly
            s_mov_b32 s45, 1""")
    for st in range(NX, 4): emit(a, oload(f"o{st}", HEAD[st], 0, 2, 24*st))
    a.label("L_noearly"); a.vm = []
    a.e(f"v_sub_u32 v27, v29, v{VL16}\nv_add_u32 v27, v27, v{VOL}")
    psync()
    stamp(a, "c_bar", opt)
    for qb in range(3): a.e(f"ds_read_b64 v[{8+2*qb}:{9+2*qb}], v31 offset:{qb*256}")
    RC = (32, 48, 64, 112, 128, 144)
    def recv(blk):
        for g in range(4): a.e(f"ds_read_b128 {vr(RC[blk]+4*g,4)}, v29 offset:{xo(blk*4 + g)}")
    recv(0); recv(1)
    SC = 16
    for qb in range(3):
        pn, pl, on, ol = 8 + 2*qb, 9 + 2*qb, 2 + 2*qb, 3 + 2*qb
        a.auto(f"v_min_f32 v22, v{on}, v{pn}")
        a.e(f"""v_sub_f32 v23, v22, v{on}
                v_sub_f32 v24, v22, v{pn}
                v_exp_f32 v23, v23
                v_exp_f32 v24, v24
                v_mul_f32 v{ol}, v{ol}, v23
                v_fmac_f32 v{ol}, v{pl}, v24
                v_rcp_f32 v{ol}, v{ol}
                v_mul_f32 v{SC+2*qb}, v23, v{ol}
                v_mul_f32 v{SC+2*qb+1}, v24, v{ol}""")
    recv(2); recv(3); recv(4); recv(5)
    for blk in range(6):
        i, qb = divmod(blk, 3)
        K = 160 + blk*16; Rr = RC[blk]
        a.wait(lgregs=regs_of(vr(Rr, 16)))
        for r in range(0, 16, 2):
            a.e(f"v_pk_mul_f32 v[{Rr+r}:{Rr+r+1}], v[{Rr+r}:{Rr+r+1}], v[{SC+2*qb}:{SC+2*qb+1}] op_sel:[0,1] op_sel_hi:[1,1]")
        for r in range(0, 16, 2):
            a.e(f"v_pk_fma_f32 v[{K+r}:{K+r+1}], v[{K+r}:{K+r+1}], v[{SC+2*qb}:{SC+2*qb+1}], v[{Rr+r}:{Rr+r+1}] op_sel_hi:[1,0,1]")
        for j in range(8):
            a.e(f"v_cvt_pk_bf16_f32 v{K+8*(j//4)+j%4}, v{K+2*j}, v{K+2*j+1}")
        a.e(f"s_add_u32 s47, s52, {WS_O + (i*6 + 2*qb)*1024}")
        for s in range(2):
            a.e(f"buffer_store_dwordx4 {vr(K+8*s,4)}, v{VOL}, s[24:27], s47 offen offset:{512*s} sc1")
            a.e(f"ds_write_b128 v27, {vr(K+8*s,4)} offset:{xo(i*6 + 2*qb) + 512*s}")
    stamp(a, "comb", opt)
    a.e("v_mov_b32 v14, s75\ns_cmp_eq_u32 s7, 1\ns_cbranch_scc1 L_tailY")
    stT = save(a)
    other_pair("L_yq", 24, 1 + opt.xgate)
    if NX == 0:
        VOR = 224
        a.e("s_waitcnt vmcnt(0)\nbuffer_store_dword v14, v108, s[24:27], s70 offen sc1")
        emit(a, vo_calc(VOR, "rev") + wX(0, VOR))
        a.e("s_waitcnt lgkmcnt(0)"); psync()
        emit(a, wX(1, VOR))
        ask("s71", team); check("A"); stamp(a, "chkA", opt)
    else:
        emit(a, wX(0, VO))
        a.e(f"""s_waitcnt vmcnt(0)
                buffer_store_dword v14, v108, s[24:27], s70 offen sc1
                v_add_u32 v3, 8192, v{VL16}
                s_waitcnt lgkmcnt(0)""")
        psync()
        a.e("s_cmp_eq_u32 s6, 1\ns_cbranch_scc1 L_x1")
        sv = save(a)
        for qh in range(2):
            if qh: a.label("L_x1"); load(a, sv)
            for db in range(4):
                for j in range(3): a.e(f"ds_read_b128 {ar(192 + (db*3+j)*4, 4)}, v{3 if db < 2 else VL16} offset:{xo((db % 2)*6 + 3*qh + j)}")
            if qh == 0: a.e("s_branch L_x2")
        a.label("L_x2")
        VOR = 224
        emit(a, vo_calc(VOR, "rev"))
        a.wait(vmtags=["w0"], lg0=True); psync()
        emit(a, wreads(0, 0, WF))
        RS = (192, 0, 48 if NX == 4 else 192, 192)
        wN = lambda st: wX(st, VO if st < NX else VOR)
        xl = lambda st: oload(f"x{st}", HEAD[st], 0, 4, RS[st])
        ask("s71", team)
        for st in range(NX):
            b = BUFOF[st]
            w = wN(1) if st == 0 else []
            if st >= 1: a.wait(vmtags=[f"x{st}"])
            kstep(WF, RS[st], st == 0, wreads(b, 32, WF + 36), w[:9])
            kstep(WF + 36, RS[st] + 12, False, wreads(b, 64, WF), w[9:])
            j = []
            if st == 0:
                check("A"); stamp(a, "chkA", opt)
                for k in range(1, NX):
                    if RS[k] != 192: j += xl(k)
            kstep(WF, RS[st] + 24, False, wreads(b, 96, WF + 36), j)
            a.wait(vmtags=[f"w{st+1}"], lg0=True); psync()
            kstep(WF + 36, RS[st] + 36, False, wreads(BUFOF[st + 1], 0, WF) if st + 1 < NX else [], wN(st + 2))
            if st == 0:
                for k in range(1, NX):
                    if RS[k] == 192: emit(a, xl(k))
    for st in range(NX, 4): emit(a, oload(f"o{st}", HEAD[st], 0, 2, 24*st))
    a.e("s_waitcnt vmcnt(0)\ns_branch L_join")
    a.label("L_tailY"); load(a, stT)
    a.e("s_cmp_eq_u32 s45, 1\ns_cbranch_scc1 L_hadearly")
    sv = save(a)
    ask("s71", team); check("Y")
    a.vm = list(sv[2])
    for st in range(NX, 4): emit(a, oload(f"o{st}", HEAD[st], 0, 2, 24*st))
    a.label("L_hadearly")
    a.e("s_waitcnt lgkmcnt(0)")
    a.label("L_join"); a.lg = []
    a.e(f"""s_add_u32 s71, s71, 8
            v_add_u32 v220, {SB[2] - SB[1]}, v{AD+1}
            v_add_u32 v221, {SB[3] - SB[1]}, v{AD+1}
            s_mul_i32 s3, s7, -8192
            s_add_u32 s3, s3, {YB + 8192}
            v_add_u32 v2, s3, v{VL16}
            v_mov_b32 v15, s75
            s_barrier""")
    stamp(a, "join", opt)
    emit(a, wreads(BUFOF[NX], 0, WF))
    a.e("s_cmp_eq_u32 s6, 1\ns_cbranch_scc1 L_own1")
    sv = save(a)
    for qh in range(2):
        if qh: a.label("L_own1"); load(a, sv)
        for kl in range(2):
            for j in range(3): a.e(f"ds_read_b128 {ar(96 + (kl*3+j)*4, 4)}, v2 offset:{xo(kl*6 + 3*qh + j)}")
        if qh == 0: a.e("s_branch L_own2")
    a.label("L_own2")
    a.wait(vmtags=[f"o{NX}"])
    a.e("s_cmp_eq_u32 s7, 1\ns_cbranch_scc1 L_fy")
    sv = save(a)
    kstep(WF, 24*NX, NX == 0, wreads(BUFOF[NX], 32, WF + 36), wS(NX + 2))
    a.e("s_branch L_fx")
    a.label("L_fy"); load(a, sv)
    kstep(WF, 24*NX, True, wreads(BUFOF[NX], 32, WF + 36), wS(NX + 2))
    a.e("s_waitcnt vmcnt(0)\nbuffer_store_dword v15, v108, s[24:27], s70 offen sc1 ; @junk")
    a.label("L_fx"); a.vm = [o for o in a.vm if o.tag == f"w{NX+2}"]
    A = max(NX, min(opt.askat, 4))
    oy = lambda k: oload(f"o{k}", HEAD[k], 0, 2, 24*k)
    plan = {}
    for k in range(NX + 4, 8): plan.setdefault((k - 4, 1) if k - 4 > NX else (NX + 1, 0), []).append(wS(k))
    plan.setdefault((NX, 1), []).append(wS(NX + 3))
    if A <= 3:
        for i, k in enumerate((5, 6, 7)): plan.setdefault((A + (i + 1) // 2, (i + 1) % 2), []).insert(0, oy(k))
    job = lambda st, kl: [x for y in plan.get((st, kl), []) for x in y]
    for st in range(NX, 8):
        stamp(a, f"s{st}", opt)
        if st > NX:
            if st == A: ask("s71", team)
            if st >= 5: a.wait(vmtags=[f"o{st}"])
            kstep(WF, 24*st, False, wreads(BUFOF[st], 32, WF + 36), job(st, 0))
        elif st == A: ask("s71", team)
        if st == A and A <= 3: check("B"); stamp(a, "chk1", opt)
        if st < 7:
            a.wait(vmtags=[f"w{st+1}"], lg0=True); a.e("s_barrier")
            kstep(WF + 36, 24*st + 12, False, wreads(BUFOF[st + 1], 0, WF), job(st, 1))
        if st == A and A == 4:
            check("B"); stamp(a, "chk1", opt); emit(a, oy(5) + oy(6) + oy(7))
    a.e(f"""s_lshl_b32 s3, s28, 14
            v_add_u32 v13, s3, v{VL16}
            v_xor_b32 v14, 32768, v13
            s_lshl_b32 s52, s39, 2
            s_add_u32 s52, s52, s32
            s_lshl_b32 s53, s52, 2
            s_add_u32 s53, s53, s30
            s_mul_i32 s53, s53, 36864
            s_mul_i32 s3, s28, 9216
            s_add_u32 s53, s53, s3
            s_add_u32 s47, s53, {WS_P}
            s_waitcnt lgkmcnt(0)
            s_barrier""")
    F, O = WF + 36, 180
    T = lambda nb, j: ACC + (nb*3+j)*4
    ms = [f"v_mfma_f32_16x16x32_bf16 {vr(T(nb,j), 4)}, {vr(F+nb*4,4)}, {ar(O+j*4,4)}, {vr(T(nb,j), 4)}" for nb in (8, 7, 6, 5, 4, 0, 1, 2, 3) for j in range(3)]
    snd = [f"ds_write_b128 v13, {vr(T(nb,j),4)} offset:{((8-nb)*3+j)*1024}" for nb in range(8, 3, -1) for j in range(3)]
    emit(a, ms[:6])
    for k in range(15): emit(a, [ms[6 + k], snd[k]])
    emit(a, ms[21:])
    stamp(a, "gend", opt)
    a.e("s_waitcnt lgkmcnt(0)\ns_barrier")
    order = [(k, j) for k in range(3) for j in range(3)]
    for k, j in order:
        for nb in range(2*k, min(2*k + 2, 5)): a.e(f"ds_read_b128 {vr(WF + (nb*3+j)*4, 4)}, v14 offset:{(nb*3+j)*1024}")
    for k, j in order:
        r = T(2*k, j)
        for h, nb in enumerate(range(2*k, min(2*k + 2, 5))):
            t, q = T(nb, j), WF + (nb*3+j)*4
            a.wait(lgregs=regs_of(vr(q, 4)))
            a.e(f"v_pk_add_f32 v[{t}:{t+1}], v[{t}:{t+1}], v[{q}:{q+1}]\nv_pk_add_f32 v[{t+2}:{t+3}], v[{t+2}:{t+3}], v[{q+2}:{q+3}]")
            a.e(f"v_cvt_pk_bf16_f32 v{r+2*h}, v{t}, v{t+1}\nv_cvt_pk_bf16_f32 v{r+2*h+1}, v{t+2}, v{t+3}")
        if k < 2: a.e(f"buffer_store_dwordx4 {vr(r,4)}, v{VL16}, s[24:27], s47 offen offset:{j*1024} sc1")
        else: a.e(f"buffer_store_dwordx2 {vr(r,2)}, v{VL16}, s[24:27], s47 offen offset:{j*1024} sc1")
        if j == 2 and k < 2: a.e("s_add_u32 s47, s47, 3072")
    a.e(f"""s_add_u32 s70, s70, 32768
            s_andn2_b32 s71, s2, 3
            s_lshl_b32 s71, s71, 7
            s_add_u32 s71, s71, 32768
            v_and_b32 v10, 15, v1
            v_mul_u32_u24 v10, 2304, v10
            v_lshrrev_b32 v11, 4, v1
            v_lshl_add_u32 v10, v11, 3, v10
            s_mul_i32 s52, s52, {4*36864}
            s_add_u32 s52, s52, {WS_P}
            s_mul_i32 s53, s31, {96*2304}
            s_mul_i32 s3, s29, 1152
            s_add_u32 s53, s53, s3
            s_mul_i32 s3, s32, 288
            s_add_u32 s53, s53, s3
            s_lshl_b32 s54, s30, 2
            s_add_u32 s54, s54, s28""")
    srd(a, 8, "s78", "s79", 1769472)
    def decode(i):
        A, B, C = 56 + 4*i, 57 + 4*i, 58 + 4*i
        a.e(f"""s_add_u32 s3, s54, {16*i}
                s_mul_i32 s4, s3, 43
                s_lshr_b32 s4, s4, 8
                s_mul_i32 s5, s4, 6
                s_sub_u32 s3, s3, s5            ; q16
                s_mul_i32 s{B}, s3, {16*2304}
                s_add_u32 s{B}, s{B}, s53
                s_cmp_ge_u32 s3, 3
                s_cselect_b32 s5, {9216 - 3072}, 0
                s_lshl_b32 s3, s3, 10
                s_add_u32 s{A}, s3, s5          ; qh * 9216 + j * 1024
                s_add_u32 s{A}, s{A}, s52
                s_and_b32 s3, s4, 1
                s_cmp_eq_u32 s4, 4
                s_cselect_b32 s3, 2, s3         ; k
                s_cselect_b32 s{C}, 0, 32
                s_mul_i32 s5, s3, 3072
                s_add_u32 s{A}, s{A}, s5
                s_lshl_b32 s3, s3, 6
                s_and_b32 s4, s4, 2
                s_cmp_eq_u32 s4, 2
                s_cselect_b32 s5, 18432, 0
                s_add_u32 s{A}, s{A}, s5
                s_cmp_eq_u32 s4, 2
                s_cselect_b32 s{C}, -32, s{C}
                s_sub_u32 s5, 256, s3
                s_cmp_eq_u32 s4, 2
                s_cselect_b32 s3, s5, s3
                s_add_u32 s{B}, s{B}, s3""")
    decode(0); decode(1)
    a.e("s_waitcnt vmcnt(0)\nbuffer_store_dword v15, v108, s[24:27], s70 offen sc1")
    stamp(a, "pub2", opt)
    ask("s71", "v_and_b32 v13, 3, v1\nv_lshlrev_b32 v13, 7, v13\nv_and_b32 v14, 12, v1\nv_add_u32 v13, v13, v14"); check(2)
    stamp(a, "chk2", opt)
    def loads(i):
        for o in range(4):
            a.e(f"buffer_load_dwordx4 {vr(16+16*i+4*o,4)}, v{VL16}, s[24:27], s{56+4*i} offen sc1")
            if o < 3: a.e(f"s_add_u32 s{56+4*i}, s{56+4*i}, 36864")
    def fin(i, left):
        b, D = 16 + 16*i, 112 + 16*i
        for o in range(4):
            a.e(f"s_waitcnt vmcnt({left + 3 - o})")
            for k in range(4):
                r = b + 4*o + k
                if o == 0: a.e(f"v_lshlrev_b32 v{D+2*k}, 16, v{r}\nv_and_b32 v{D+2*k+1}, 0xffff0000, v{r}")
                else: a.e(f"v_lshlrev_b32 v{D+8}, 16, v{r}\nv_and_b32 v{r}, 0xffff0000, v{r}\nv_add_f32 v{D+2*k}, v{D+2*k}, v{D+8}\nv_add_f32 v{D+2*k+1}, v{D+2*k+1}, v{r}")
        for k in range(4): a.e(f"v_cvt_pk_bf16_f32 v{D+k}, v{D+2*k}, v{D+2*k+1}")
        a.e(f"""buffer_store_dwordx2 v[{D}:{D+1}], v10, s[8:11], s{57+4*i} offen{opt.opol}
                s_add_u32 s{57+4*i}, s{57+4*i}, s{58+4*i}""")
        if i == 1: a.e("s_cmp_eq_u32 s62, 0\ns_cbranch_scc1 L_rd2")
        a.e(f"buffer_store_dwordx2 v[{D+2}:{D+3}], v10, s[8:11], s{57+4*i} offen{opt.opol}")
    loads(0)
    a.e("s_cmp_ge_u32 s54, 14\ns_cbranch_scc1 L_rd1")
    sv = save(a)
    loads(1); fin(0, 4); fin(1, 0)
    a.e("s_branch L_rd2")
    a.label("L_rd1"); load(a, sv)
    fin(0, 0)
    a.label("L_rd2")
    stamp(a, "end", opt)
    if opt.stamps:
        a.e(f"s_lshl_b32 s3, s2, 2\ns_add_u32 s3, s3, s28\ns_lshl_b32 s3, s3, 7\ns_add_u32 s3, s3, {WS_STAMP}\nv_mov_b32 v0, 0")
        for i in range(1 + len(opt.sset)):
            a.e(f"v_mov_b32 v2, s{STB+2*i}\nv_mov_b32 v3, s{STB+1+2*i}\nbuffer_store_dwordx2 v[2:3], v0, s[24:27], s3 offen offset:{8*i}\ns_waitcnt vmcnt(0)")
    a.label("L_done")
    a.e("s_endpgm")
    for qb in range(3): rare(a, qb)
    a.label("L_hold", reset=True)
    a.e("s_mov_b32 s47, 0x400000")
    a.label("L_hold1")
    a.e("""s_sleep 4
           ds_read_b64 v[30:31], v26
           s_sub_u32 s47, s47, 1
           s_waitcnt lgkmcnt(0)
           v_min_u32 v30, v30, v31
           v_readfirstlane_b32 s3, v30
           s_lshl_b32 s3, s3, 4
           s_cmp_eq_u32 s47, 0
           s_cselect_b32 s3, s38, s3
           s_cmp_lt_i32 s3, s38
           s_cbranch_scc1 L_hold1
           s_setpc_b64 s[40:41]""")

def build(opt):
    a = Asm()
    a.raw("; @launch grid=(256,1,1) block=(256,1,1) lds=163840")
    a.raw('.amdgcn_target "amdgcn-amd-amdhsa--gfx950"')
    kernel(a, NAME + "_kernel", opt)
    a.raw('.section .rodata,"a"\n.p2align 6')
    a.raw("\n".join([f".amdhsa_kernel {NAME}_kernel", "  .amdhsa_next_free_vgpr 512", "  .amdhsa_next_free_sgpr 102",
        "  .amdhsa_accum_offset 256", "  .amdhsa_group_segment_fixed_size 0", "  .amdhsa_kernarg_size 104",
        "  .amdhsa_user_sgpr_count 2", "  .amdhsa_user_sgpr_kernarg_segment_ptr 1",
        "  .amdhsa_system_sgpr_workgroup_id_x 1", ".end_amdhsa_kernel"]))
    return a.text(), a

if __name__ == "__main__":
    opt = Opt()
    out = sys.argv[1] if len(sys.argv) > 1 else "k.s"
    for kv in sys.argv[2:]:
        k, v = kv.split("=", 1); assert hasattr(opt, k), k
        setattr(opt, k, eval(v))
    t, a = build(opt)
    open(out, "w").write(t)
    print(out, "lines", t.count("\n"), "pad", a.npad)
```

```python
import sys, struct, math
sys.path.insert(0, "dev")
from asmlib import Asm, spread, regs_of, level_fill
import gen5
from gen5 import (NAME, f2u, CSC, THR_LOG2, WS_BYTES, WS_O, WS_P, WS_F, WS_STAMP, STB, vr, ar, srd, stamp, emit,
                  VOFFK, VOFFV, VKA, VVA, LSUM, TMAX, VT, NM, S0, Q0, KF, VF, Sreg, Qreg, Oacc, softmax, qk, pv, rare)

class Opt:
    wp = "pppp"
    noB = False
    stamps = False
    sset = ['q0', 'k0', 't15', 'comb', 'join', 'chk1', 'gend', 'pub2', 'end']
    thr0 = 0.0
    thr1 = 1.25
    clk = "s_memrealtime"
    rot = True
    krot = 4
    qlev = True
    touch = {}
    ctouch = None
    rlate = 0
    rspan = 80
    kspan = 30
    wdel = 8
    kvtlb = False
    capb = None
    pbf16 = True
    k1early = False
    wot = 4
    wotnt = None
    tlb = 0
    nx = 1
    accearly = True
    cap = (7, 6)
    capend = 30
    hold = False
    xgate = 0
    last = (0, 0)
    ylast = 1
    kvsame = False
    unroll = False
    a0at = 2
    opol = ''
    late = 0
    prio = 0
    gate = 12
    pace = 1.0
    d1 = (8, 10, 12, 14, 22, 24, 26, 27)
    d2 = (29, 31, 33, 35, 37, 39, 44, 47)
    dcost = 4.0
    acct = 0
    w0 = 10
    askat = 3
    fewwait = True
    vwin = (16, 22)
    kwin = (40, 44)
    tpol = ''
    wopol = ''

SLOT = 16384
SV = 126976
def slot(u): return (2 if u == 0 else (-u) % 3) * SLOT
STG = lambda i: 45056 + 28672 * i
TOP = 159744
SB = (122880, 0, 86016, 49152)
NS = 3
YB = 49152

def dma_unit(u, opt):
    kind = "KV"[u % 2]; sreg = "s36" if kind == "K" else "s35"
    srdn = "s[8:11]" if kind == "K" else "s[12:15]"
    G = []
    for j in range(8):
        g = []
        mb, mo = ("s54", 0) if u == 1 else ("s37", slot(u))
        if j == 0: g += [f"s_add_u32 m0, {mb}, {mo}", f"s_add_u32 s51, s34, {sreg}"]
        if j == 1 and not opt.kvsame: g += [f"s_add_u32 {sreg}, {sreg}, 16384", f"s_and_b32 {sreg}, {sreg}, 0x3ffff"]
        if j == 4: g += [f"s_add_u32 m0, {mb}, {mo + 4096}", "s_add_u32 s51, s51, 4096"]
        vo = VOFFK + j % 4 if kind == "K" else VOFFV
        if opt.cap and 4 <= u <= opt.capend:
            cx, cy = opt.cap
            cx, cy = (c if isinstance(c, int) else c[j % len(c)] for c in (cx, cy))
            dma_unit.n += 1; n = dma_unit.n
            bx, by = (c if isinstance(c, int) else c[j % len(c)] for c in (opt.capb or opt.cap))
            prev = None
            for lv, c in enumerate((bx, cx, by, cy)):
                if c == prev: continue
                R_ = "RAW " if prev else ""
                g += [R_ + f"s_cmp_le_u32 s50, {lv}", R_ + f"s_cbranch_scc1 L_cap{n}", f"RAW s_waitcnt vmcnt({c - 1})"]
                assert prev is None or c < prev
                prev = c
            g += [f"LABEL L_cap{n}"]
        g.append(f"buffer_load_dwordx4 v{vo}, {srdn}, s51 offen offset:{(j % 4)*1024} nt lds ; @u{u}")
        G.append("\n".join(g))
    return G
dma_unit.n = 0
def kreads(t): return [f"ds_read_b128 {ar(KF+4*s,4)}, v{VKA+s} offset:{slot(2*t)}" for s in range(8)]
def vreads(t):
    return [f"ds_read_b64_tr_b16 {ar(VF + db*8 + s*4 + k*2, 2)}, v{(VVA if t else 28)+db} offset:{(slot(2*t+1) if t else 0) + 4096*s + 2048*k}"
            for s in range(2) for db in range(4) for k in range(2)]
def tile_body(a, opt, t, carry, extra=()):
    first = t == 0
    M = qk(0, first) + (pv(2, t == 1) if t else [None]*8) + qk(1, first) + pv(0, first) + qk(2, first) + pv(1, first)
    W = opt.w0
    sl = [[] for _ in range(48 + W)]
    def at(G, slots):
        for g, k in zip(G, slots): sl[k].append(g)
    if 2*t + NS <= 31: at(dma_unit(2*t + NS if t else 4, opt), opt.d1)
    spread(sl, [f"WAITVM u{2*t+1}"] + vreads(t), *opt.vwin)
    if 2*t + NS + 1 <= 31 and t: at(dma_unit(2*t + NS + 1, opt), opt.d2)
    if t < 15: spread(sl, [f"WAITVM u{2*t+2}"] + kreads(t + 1), *opt.kwin)
    if t == 14 and opt.xgate: sl[30].append('v_mov_b32 v27, 2\nds_write_b32 v109, v27 offset:16')
    if opt.hold or t == 0: sl[46].append("s_add_u32 s45, s45, 1\nv_mov_b32 v27, s45\nds_write_b32 v109, v27 offset:16")
    if 1 <= t <= 14 and opt.hold:
        sl[44].append("ds_read_b64 v[30:31], v26")
        sl[47].append(f"""AUTO v_min_u32 v30, v30, v31
s_add_u32 s38, s38, s50
s_min_i32 s38, s38, 256
v_readfirstlane_b32 s3, v30
s_lshl_b32 s3, s3, 4
s_cmp_ge_i32 s3, s38
s_cbranch_scc1 L_go{t}
s_call_b64 s[40:41], L_hold
LABEL L_go{t}""")
    for e in extra: spread(sl, *e)
    for i, x in enumerate(carry): sl[i] = x + sl[i]
    ghost = {48 + k: "buffer_x\ns_nop 0\ns_nop 0" for k in opt.d1 if k < W}
    for k, g in ghost.items(): sl[k].append(g)
    level_fill(sl, softmax(0, t, first), W, W + 16, opt.dcost)
    level_fill(sl, softmax(1, t, first), W + 16, W + 32, opt.dcost)
    level_fill(sl, softmax(2, t, first), W + 32, W + 48, opt.dcost)
    for k in ghost: sl[k] = sl[k][1:]
    for i in range(48):
        if opt.fewwait:
            if i == 0: a.wait(lgregs=regs_of(ar(KF, 32)))
            if i == 24: a.wait(lgregs=regs_of(ar(VF, 32)))
        if M[i]: emit(a, [M[i]])
        for x in sl[i]:
            if opt.acct and x.startswith("WAITVM"):
                keep = list(a.lg)
                a.e("s_memtime s[94:95]"); emit(a, [x]); a.e("s_memtime s[96:97]\ns_waitcnt lgkmcnt(0)\ns_sub_u32 s96, s96, s94")
                r = 98 if int(x.split("u")[1]) % 2 else 100
                a.e(f"s_add_u32 s{r}, s{r}, s96")
            elif opt.acct == 2 and "lds ;" in x:
                a.e("s_memtime s[94:95]"); emit(a, [x]); a.e("s_memtime s[96:97]\ns_waitcnt lgkmcnt(0)\ns_sub_u32 s96, s96, s94\ns_add_u32 s92, s92, s96")
            else: emit(a, [x])
    return sl[48:]

def save(a): return (list(a.hist), list(a.lg), list(a.vm))
def load(a, st): a.hist, a.lg, a.vm = (list(x) for x in st)

def kernel(a, name, opt):
    a.raw(".text"); a.raw(f".globl {name}"); a.raw(".p2align 8"); a.raw(f".type {name},@function")
    a.label(name, reset=True)
    a.e("""s_load_dwordx8 s[56:63], s[0:1], 0
           s_load_dwordx8 s[64:71], s[0:1], 40
           s_load_dwordx2 s[72:73], s[0:1], 96
           s_load_dwordx2 s[40:41], s[0:1], 32
           s_load_dwordx2 s[42:43], s[0:1], 72
           s_load_dwordx4 s[44:47], s[0:1], 80
           s_memrealtime s[48:49]
           s_cmp_ge_u32 s2, 256
           s_cbranch_scc1 L_done""")
    if opt.stamps: a.e(f"{opt.clk} s[{STB}:{STB+1}]")
    VW, VXA, VXB, AW, AX, VD = 72, 73, 74, 76, 64, 111
    G, L15, H, L31, G1, R, C4 = 88, 89, 90, 91, 92, 81, 82
    VFO, VFP = 109, 110
    a.e(f"""v_lshrrev_b32 v1, 6, v0
            s_and_b32 s3, s2, 7
            s_lshr_b32 s29, s3, 2
            s_and_b32 s30, s3, 3
            v_readfirstlane_b32 s28, v1
            s_lshr_b32 s3, s2, 3
            s_lshr_b32 s31, s3, 2
            s_and_b32 s32, s3, 3
            v_and_b32 v1, 63, v0
            v_lshrrev_b32 v{G}, 4, v1
            v_and_b32 v{L15}, 15, v1
            v_lshrrev_b32 v56, 3, v1
            v_and_b32 v57, 7, v1
            v_and_b32 v{G1}, 1, v{G}
            v_lshlrev_b32 v59, 2, v{G1}
            v_xor_b32 v59, v57, v59
            v_lshlrev_b32 v59, 4, v59
            v_lshl_add_u32 v{VW}, v56, 13, v59
            v_mul_u32_u24 v60, 1152, v56
            v_xor_b32 v61, v57, v{G}
            s_and_b32 s6, s28, 1
            s_lshr_b32 s7, s28, 1
            s_lshl_b32 s3, s6, 2
            v_xor_b32 v61, s3, v61
            v_lshl_add_u32 v{VXA}, v61, 4, v60
            v_xor_b32 v61, 4, v61
            v_lshl_add_u32 v{VXB}, v61, 4, v60
            s_mul_i32 s37, s7, {YB}
            s_lshl_b32 s3, s6, 13
            s_add_u32 s37, s37, s3
            s_lshl_b32 s33, s30, 3
            s_lshl_b32 s3, s32, 1
            s_add_u32 s33, s33, s3              ; head X
            s_add_u32 s74, s3, s31              ; b + 2p
            s_lshl_b32 s52, s33, 8
            s_lshl_b32 s3, s28, 7
            s_add_u32 s52, s52, s3
            s_mul_i32 s53, s31, 110592
            s_mul_i32 s3, s28, 27648
            s_add_u32 s53, s53, s3              ; x rows 24w..
            s_mul_i32 s55, s28, 3072
            s_mov_b32 s18, 884736
            s_mov_b32 s19, 0x20000
            s_mov_b32 s22, 4718592
            s_mov_b32 s23, 0x20000""")
    if opt.krot == 0: a.e("s_mov_b32 s74, 0")
    elif opt.krot == 1: a.e("s_cmp_ge_u32 s74, 9\ns_cselect_b32 s3, 9, 0\ns_sub_u32 s74, s74, s3")
    elif opt.krot == 3: a.e("s_and_b32 s74, s74, 1\ns_lshl_b32 s74, s74, 2")
    elif opt.krot == 2: a.e("s_add_u32 s74, s31, s32\ns_mul_i32 s3, s74, 86\ns_lshr_b32 s3, s3, 8\ns_mul_i32 s3, s3, 3\ns_sub_u32 s74, s74, s3\ns_mul_i32 s74, s74, 3")
    elif opt.krot == 4: a.e("s_add_u32 s74, s31, s32\ns_and_b32 s74, s74, 3\ns_mul_i32 s74, s74, 9\ns_lshr_b32 s74, s74, 2")
    elif opt.krot == 5: a.e("s_add_u32 s74, s31, s32\ns_and_b32 s74, s74, 1\ns_lshl_b32 s74, s74, 2")
    a.e("s_cmp_eq_u32 s29, 0\ns_waitcnt lgkmcnt(0)")
    for d, o in ((20, 6), (16, 0), (8, 2), (12, 4)):
        a.e(f"s_cselect_b32 s{d}, s{56+o}, s{64+o}\ns_cselect_b32 s{d+1}, s{57+o}, s{65+o}")
    a.e("""s_cselect_b32 s76, s40, s42
           s_cselect_b32 s77, s41, s43
           s_mov_b64 s[78:79], s[44:45]
           s_mov_b64 s[80:81], s[46:47]
           s_or_b32 s75, s48, 1""")
    P = lambda ch: " nt" if ch == "n" else ""
    XS = 98304
    VW4, VX3 = 32, 36
    a.e(f"""v_mov_b32 v{VW4}, v{VW}
            v_add_u32 v{VW4+1}, {65536 - 1024}, v{VW}
            v_add_u32 v{VW4+2}, {2*(65536 - 1024)}, v{VW}
            v_add_u32 v{VW4+3}, {3*(65536 - 1024)}, v{VW}
            v_mov_b32 v{VX3}, v{VXA}
            v_add_u32 v{VX3+1}, {9216 - 1024}, v{VXB}
            v_add_u32 v{VX3+2}, {2*(9216 - 1024)}, v{VXA}
            s_lshl_b32 s4, s74, 19
            s_add_u32 s4, s4, s52
            s_lshl_b32 s5, s74, 7
            s_add_u32 s5, s5, s53
            s_sub_u32 s74, 9, s74""")
    WR = lambda c, j: ar(((c - 3)*8 + j)*4, 4)
    XR = lambda c, i: ar(192 + ((c-3)*3 + i)*4, 4) if (c-3)*3 + i < 16 else vr(40 + ((c-3)*3 + i - 16)*4, 4)
    def regstage(c):
        Gs = []
        for j in range(8):
            Gs.append(("s_add_u32 s4, s4, 262144\n" if j == 4 else "") + f"buffer_load_dwordx4 {WR(c,j)}, v{VW4 + j % 4}, s[20:23], s4 offen offset:{(j % 4)*1024}{P(opt.wp[0])} ; @s{c}")
        for i in range(3):
            g = ("s_add_u32 s4, s4, 262144\n" if i == 0 else "") + f"buffer_load_dwordx4 {XR(c,i)}, v{VX3 + i}, s[16:19], s5 offen offset:{i*1024}{P(opt.wp[1])} ; @s{c}"
            if i == 2: g += f"\ns_add_u32 s5, s5, 128\ns_sub_u32 s74, s74, 1\ns_cmp_lg_u32 s74, 0\ns_cbranch_scc1 L_nw{c}\nRAW s_mov_b32 s4, s52\nRAW s_mov_b32 s5, s53\nLABEL L_nw{c}"
            Gs.append(g)
        return Gs
    def regwrite(c):
        return [f"WAITVM s{c}"] + [f"ds_write_b128 v48, {WR(c,j)} offset:{(c % 2)*SLOT + j*1024}" for j in range(8)] + \
               [f"ds_write_b128 v49, {XR(c,i)} offset:{(c % 2)*12288 + i*1024}" for i in range(3)]
    def stage(c):
        buf = c % 3; Gs = []
        if c >= 3: return regstage(c)
        for j in range(8):
            g = [f"s_add_u32 m0, s37, {buf*SLOT}", "s_nop 0"] if j == 0 else [f"s_add_u32 m0, s37, {buf*SLOT + 4096}", "s_add_u32 s4, s4, 262144"] if j == 4 else []
            Gs.append("\n".join(g + [f"buffer_load_dwordx4 v{VW4 + j % 4}, s[20:23], s4 offen offset:{(j % 4)*1024}{P(opt.wp[0])} lds ; @s{c}"]))
        for i in range(3):
            g = [f"s_add_u32 m0, s55, {XS + buf*12288}", "s_add_u32 s4, s4, 262144"] if i == 0 else []
            g += [f"buffer_load_dwordx4 v{VX3 + i}, s[16:19], s5 offen offset:{i*1024}{P(opt.wp[1])} lds ; @s{c}"]
            if i == 2: g += ["s_add_u32 s5, s5, 128", "s_sub_u32 s74, s74, 1", f"s_cbranch_scc0 L_nw{c}", ]
            Gs.append("\n".join(g))
        Gs[-1] = Gs[-1].replace(f"s_sub_u32 s74, s74, 1\ns_cbranch_scc0 L_nw{c}", f"s_sub_u32 s74, s74, 1\ns_cmp_lg_u32 s74, 0\ns_cbranch_scc1 L_nw{c}\nRAW s_mov_b32 s4, s52\nRAW s_mov_b32 s5, s53\nLABEL L_nw{c}")
        return Gs
    stamp(a, 'ka', opt)
    wtouch = [x.strip() for x in """s_lshr_b32 s3, s2, 3
            s_lshl_b32 s3, s3, 2
            s_add_u32 s3, s3, s28
            s_mul_i32 s3, s3, 9216
            s_mul_i32 s47, s30, 1179648
            v_lshlrev_b32 v24, 7, v1
            v_add_u32 v24, s3, v24
            v_add_u32 v25, 8192, v24
            v_cmp_gt_u32 s[70:71], 8, v1
            v_cndmask_b32 v25, -1, v25, s[70:71]""".split("\n")]
    wtouch = ["\n".join(wtouch + ["buffer_load_dword v23, v24, s[60:63], s47 offen ; @junk"]), "s_mul_i32 s47, s30, 1179648\nbuffer_load_dword v23, v25, s[60:63], s47 offen ; @junk"]
    if opt.wot is not None: srd(a, 60, "s76", "s77", 4718592)
    if opt.wot == 'a': emit(a, wtouch)
    emit(a, stage(0))
    if opt.kvtlb:
        a.e(f"""s_mov_b32 s10, {1 << 26}
                s_mov_b32 s11, 0x20000
                s_mov_b32 s14, {1 << 26}
                s_mov_b32 s15, 0x20000
                s_lshl_b32 s3, s31, 5
                s_add_u32 s3, s3, s33
                s_add_u32 s3, s3, s7
                s_lshl_b32 s3, s3, 18
                v_and_b32 v24, 3, v1
                v_lshlrev_b32 v24, 16, v24
                buffer_load_dword v23, v24, s[8:11], s3 offen nt ; @junk
                buffer_load_dword v23, v24, s[12:15], s3 offen nt ; @junk""")
    if opt.wot == 'b': emit(a, wtouch)
    stamp(a, 'i0', opt)
    srd(a, 56, "s80", "s81", 256)
    a.e("""s_lshl_b32 s3, s2, 8
           v_add_u32 v106, s3, v0
           v_min_u32 v106, 1, v106
           v_lshlrev_b32 v106, 12, v106
           v_mov_b32 v107, s75
           buffer_store_dword v107, v106, s[56:59], 0 offen sc1""")
    emit(a, stage(1))
    if opt.wot == 'c': emit(a, wtouch)
    for d in (8, 12): a.e(f"s_mov_b32 s{d+2}, {1 << 26}\ns_mov_b32 s{d+3}, 0x20000")
    srd(a, 24, "s72", "s73", WS_BYTES)
    srd(a, 60, "s76", "s77", 4718592)
    a.e(f"""v_lshrrev_b32 v{H}, 5, v1
            v_and_b32 v{L31}, 31, v1
            v_lshrrev_b32 v{R}, 2, v{L15}
            v_and_b32 v{C4}, 3, v1
            v_lshl_add_u32 v59, v{H}, 3, v{R}
            v_lshlrev_b32 v59, 7, v59
            v_lshrrev_b32 v60, 1, v{R}
            v_lshl_add_u32 v59, v60, 6, v59
            v_lshl_add_u32 v59, v{G1}, 5, v59
            v_lshl_add_u32 v59, v{C4}, 3, v59
            v_add_u32 v{AW}, s37, v59
            v_xor_b32 v{AW+1}, 64, v{AW}
            v_bfe_u32 v60, v1, 1, 3
            v_xor_b32 v60, v60, v{H}
            v_lshlrev_b32 v60, 4, v60
            v_lshl_add_u32 v60, v{L31}, 7, v60
            v_add_u32 v{AX}, {XS}, v60""")
    for s in range(1, 4): a.e(f"v_xor_b32 v{AX+s}, {32*s}, v{AX}")
    a.e(f"""s_lshl_b32 s3, s28, 2
            s_add_u32 s3, s3, {TOP + 3072}
            v_mov_b32 v{VFO}, s3
            v_xor_b32 v{VFP}, 4, v{VFO}
            v_mov_b32 v61, 0
            ds_write_b32 v{VFO}, v61
            ds_write_b32 v{VFO}, v61 offset:16
            s_mov_b32 s44, 0
            s_mov_b32 s45, 0""")
    a.e(f"""v_lshlrev_b32 v49, 4, v1
            v_add_u32 v48, s37, v49
            s_add_u32 s3, s55, {XS}
            v_add_u32 v49, s3, v49
            s_lshl_b32 s54, s28, 13
            s_add_u32 s54, s54, {SV}""")
    def frag_reads(c, s, F):
        buf = c if c < 3 else c % 2
        L = [f"ds_read_b64_tr_b16 {vr(F + db*4 + k*2, 2)}, v{AW+db} offset:{buf*SLOT + (16*s + 4*k) * 128}" for db in range(2) for k in range(2)]
        return L + [f"ds_read_b128 {vr(F + 8 + qb*4, 4)}, v{AX+s} offset:{buf*12288 + qb*4096}" for qb in range(3)]
    setup = f"""v_lshlrev_b32 v26, 8, v{G}
            v_xor_b32 v27, v{L15}, v{G}
            v_lshl_add_u32 v{VOFFK}, v27, 4, v26
            v_xor_b32 v{VOFFK+1}, 64, v{VOFFK}
            v_xor_b32 v{VOFFK+2}, 128, v{VOFFK}
            v_xor_b32 v{VOFFK+3}, 192, v{VOFFK}
            v_lshlrev_b32 v27, 2, v{G}
            v_xor_b32 v27, v{L15}, v27
            v_lshl_add_u32 v{VOFFV}, v27, 4, v26
            s_lshl_b32 s3, s6, 13
            s_add_u32 s33, s33, s7
            s_lshl_b32 s34, s31, 5
            s_add_u32 s34, s34, s33
            s_lshl_b32 s34, s34, 18
            s_add_u32 s34, s34, s3"""
    if opt.rot:
        setup += """
            s_lshl_b32 s3, s2, 2
            s_add_u32 s3, s3, s7
            s_mul_i32 s3, s3, 0x1e3779b1
            s_lshr_b32 s47, s3, 15
            s_xor_b32 s3, s3, s47
            s_mul_i32 s3, s3, 0x2c1b3c6d
            s_lshr_b32 s3, s3, 20
            s_and_b32 s3, s3, 15
            s_lshl_b32 s35, s3, 14"""
    else: setup += "\ns_mov_b32 s35, 0"
    setup += f"""
            s_mov_b32 s36, s35
            s_mov_b32 s69, s35
            v_lshlrev_b32 v50, 7, v1
            v_xor_b32 v27, v{H}, v{L15}
            v_lshlrev_b32 v27, 4, v27
            v_lshl_add_u32 v27, v{L31}, 8, v27
            v_add_u32 v{VKA}, s37, v27"""
    for s in range(1, 8): setup += f"\nv_xor_b32 v{VKA+s}, {32*s}, v{VKA}"
    setup += f"""
            v_lshl_add_u32 v28, v{H}, 2, v{R}
            v_lshlrev_b32 v28, 8, v28
            v_lshl_add_u32 v28, v{R}, 6, v28
            v_lshl_add_u32 v28, v{G1}, 5, v28
            v_lshl_add_u32 v28, v{C4}, 3, v28
            s_lshl_b32 s47, s6, 7
            v_xor_b32 v28, s47, v28
            v_add_u32 v{VVA}, s37, v28"""
    for db in range(1, 4): setup += f"\nv_xor_b32 v{VVA+db}, {64*db}, v{VVA}"
    setup += "\nv_add_u32 v28, s54, v28"
    for db in range(1, 4): setup += f"\nv_xor_b32 v{28+db}, {64*db}, v28"
    setup += f"\ns_mov_b32 s42, {f2u(CSC):#x}\ns_mov_b32 s43, {f2u(THR_LOG2):#x}"
    for qb in range(3): setup += f"\nv_mov_b32 v{LSUM+qb}, 0"
    setup = [x.strip() for x in setup.split("\n")]
    VO, VL16, AD, VOL = 93, 102, 103, 107
    def vo_calc(dst, rev):
        L = []
        for i in range(9):
            L += [f"v_add_u32 v80, {64*i}, v1", "v_mul_u32_u24 v28, 58255, v80", "v_lshrrev_b32 v28, 20, v28", "v_mul_u32_u24 v83, 18, v28",
                  "v_sub_u32 v83, v80, v83", "v_xor_b32 v29, 1, v83", "v_sub_u32 v29, 17, v29"]
            if rev == "vcc": L += ["v_cndmask_b32 v29, v83, v29, s[70:71]"]
            L += ["v_mul_u32_u24 v28, 1152, v28", f"v_lshl_add_u32 v{dst+i}, v29, 4, v28"]
        return L
    setup2 = ["s_cmp_eq_u32 s7, 1\ns_cselect_b64 s[70:71], -1, 0"] + vo_calc(VO, "vcc") + [x.strip() for x in f"""v_lshlrev_b32 v{VL16}, 4, v1
            v_lshlrev_b32 v80, 4, v{H}
            v_lshl_add_u32 v80, v{G1}, 2, v80
            v_add_u32 v80, v80, v{R}
            v_mul_u32_u24 v80, 288, v80
            v_lshl_add_u32 v80, v{C4}, 3, v80
            s_mul_i32 s3, s7, 18432
            v_add_u32 v{AD+1}, s3, v80
            v_add_u32 v{AD}, {SB[0]}, v{AD+1}
            v_lshlrev_b32 v{VOL}, 10, v{G1}
            v_lshl_add_u32 v{VOL}, v{H}, 8, v{VOL}
            v_lshl_add_u32 v{VOL}, v{L15}, 4, v{VOL}
            v_mov_b32 v108, 0
            s_mul_i32 s67, s30, 1179648
            s_mul_i32 s3, s32, 288
            s_add_u32 s64, s67, s3              ; wo: rows of the octet, columns 144p..
            s_lshl_b32 s39, s29, 3
            s_add_u32 s39, s39, s31""".split("\n")]
    setW = ["s_lshl_b32 s66, s32, 1", "s_mul_i32 s65, s28, 9216", f"s_mul_i32 s68, s28, {32*1152}", "s_add_u32 s68, s68, s64"]
    def psync(pre_wait=True):
        psync.n += 1; n = psync.n
        a.e(f"""s_add_u32 s44, s44, 1
                v_mov_b32 v{VD}, s44
                ds_write_b32 v{VFO}, v{VD}
                s_mov_b32 s47, 0x400000""")
        a.label(f"L_ps{n}")
        a.e(f"""ds_read_b32 v{VD}, v{VFP}
                s_sub_u32 s47, s47, 1
                s_waitcnt lgkmcnt(0)
                v_readfirstlane_b32 s3, v{VD}
                s_cmp_eq_u32 s47, 0
                s_cselect_b32 s3, s44, s3
                s_cmp_lt_u32 s3, s44
                s_cbranch_scc1 L_ps{n}""")
    psync.n = 0
    def other_pair(name, word, val, T=84):
        a.e(f"v_mov_b32 v{T+2}, {TOP + 3072 + word}\ns_mov_b32 s47, 0x400000")
        a.label(name)
        a.e(f"""s_sleep 2
                ds_read_b64 v[{T}:{T+1}], v{T+2}
                s_sub_u32 s47, s47, 1
                s_waitcnt lgkmcnt(0)
                v_min_u32 v{T}, v{T}, v{T+1}
                v_readfirstlane_b32 s3, v{T}
                s_cmp_eq_u32 s47, 0
                s_cselect_b32 s3, {val}, s3
                s_cmp_lt_u32 s3, {val}
                s_cbranch_scc1 {name}""")

    ACC = 112
    def qwrite(blocks, dreg, area, extra=()):
        a.e(f"""v_xor_b32 v55, {dreg}, v{L15}
                v_lshlrev_b32 v55, 4, v55
                v_lshl_add_u32 v55, v{L31}, 8, v55
                v_lshl_add_u32 v55, v{H}, 3, v55
                v_add_u32 v55, {area}, v55
                v_mov_b32 v62, s42""")
        for db in range(blocks):
            for i in range(4):
                a.e(f"v_xor_b32 v54, {(4*db + i)*16}, v55")
                if extra: emit(a, [extra[4*db + i]])
                for qb in range(3):
                    r = ACC + (db*3 + qb)*16 + 4*i; tq = 56 + 2 * qb
                    a.e(f"""v_pk_mul_f32 v[{r}:{r+1}], v[{r}:{r+1}], v[62:63] op_sel_hi:[1,0]
                            v_pk_mul_f32 v[{r+2}:{r+3}], v[{r+2}:{r+3}], v[62:63] op_sel_hi:[1,0]
                            v_cvt_pk_bf16_f32 v{tq}, v{r}, v{r+1}
                            v_cvt_pk_bf16_f32 v{tq+1}, v{r+2}, v{r+3}
                            ds_write_b64 v54, v[{tq}:{tq+1}] offset:{qb*8192}""")
    def qread(area):
        a.e(f"s_sub_u32 s3, {area}, s37")
        for s in range(8): a.e(f"v_add_u32 v{32+s}, s3, v{VKA+s}")
        for qb in range(3):
            for s in range(8): a.e(f"ds_read_b128 {vr(Qreg(qb,s),4)}, v{32+s} offset:{qb*8192}")
    FA, FB = 208, 228
    a.wait(vmtags=["s0"], lg0=True); a.e("s_barrier")
    stamp(a, "q0", opt)
    emit(a, frag_reads(0, 0, FA))
    sl = [[] for _ in range(216 + 24)]
    spread(sl, [x for c in range(2, 9 - opt.rlate) for x in stage(c)], 0, opt.rspan)
    spread(sl, setup, 6, 64)
    for c in range(9):
        for s in range(4):
            F, nF = (FA, FB) if s % 2 == 0 else (FB, FA)
            k0 = (c*4 + s) * 6
            if s == 3:
                a.wait(vmtags=[f"s{c+1}"] if c < 2 else [], lg0=True); a.e("s_barrier")
                stamp(a, f"c{c}", opt)
                if 1 <= c <= 6: spread(sl, regwrite(c + 2), k0 + (opt.wdel if c == 1 else 1), k0 + 22)
                if c == 2: spread(sl, dma_unit(0, opt) + [x for k in range(9 - opt.rlate, 9) for x in stage(k)] + dma_unit(1, opt), max(k0, opt.rspan), max(k0, opt.rspan) + opt.kspan)
                if c == 7: spread(sl, dma_unit(2, opt), k0, k0 + 18)
                for u in opt.touch.get(c, []):
                    sl[k0 + 20].append(f"s_add_u32 s47, s69, {(u // 2) * 16384}\ns_and_b32 s47, s47, 0x3ffff\ns_add_u32 s47, s47, s34\n" +
                                       f"buffer_load_dword v51, v50, {'s[8:11]' if u % 2 == 0 else 's[12:15]'}, s47 offen nt ; @junk")
                if opt.wot == c: spread(sl, wtouch, k0 + 12, k0 + 22)
                if opt.ctouch == c:
                    sl[k0 + 6].append("s_getpc_b64 s[70:71]\nLABEL L_pc\nv_lshlrev_b32 v24, 7, v0\nv_add_u32 v24, L_qcode-L_pc, v24\nv_min_u32 v24, L_end-L_pc-4, v24\nglobal_load_dword v23, v24, s[70:71] ; @junk")
            rd = (frag_reads(c + 1, 0, nF) if c < 8 else []) if s == 3 else frag_reads(c, s + 1, nF)
            if opt.qlev:
                for k, x in enumerate(rd): sl[k0 + (0, 0, 1, 1, 2, 3, 4)[k]].insert(0, x)
                a.wait(lgregs=regs_of(vr(F, 20)))
            else: emit(a, rd)
            i = 0
            for db in range(2):
                for qb in range(3):
                    d = vr(ACC + (db*3 + qb)*16, 16)
                    emit(a, [f"v_mfma_f32_32x32x16_bf16 {d}, {vr(F+db*4,4)}, {vr(F+8+qb*4,4)}, " + ("0" if (c == 0 and s == 0) else d)] + sl[k0 + i]); i += 1
    assert not any(sl[216:])
    a.label("L_qcode")
    a.e("s_lshl_b32 s3, s6, 3\ns_cmp_eq_u32 s7, 1\ns_cbranch_scc1 L_qy")
    sv = save(a)
    qwrite(2, "s3", XS, dma_unit(3, opt))
    a.e("s_waitcnt lgkmcnt(0)\ns_barrier")
    qread(XS)
    a.e("s_waitcnt lgkmcnt(0)\ns_barrier\ns_branch L_qdone")
    a.label("L_qy"); load(a, sv)
    emit(a, dma_unit(3, opt))
    a.e("s_barrier\ns_barrier\ns_lshl_b32 s3, s6, 3")
    qwrite(2, "s3", XS)
    a.e("s_waitcnt lgkmcnt(0)"); psync()
    qread(XS)
    a.label("L_qdone")
    stamp(a, "qx", opt)
    a.wait(vmtags=["u0"], lg0=True)
    emit(a, kreads(0))
    stamp(a, "k0", opt)
    a.e(f"""v_mov_b32 v26, {TOP + 3072 + 16}
            s_cmp_eq_u32 s7, 1
            s_cselect_b32 s50, {round(opt.thr1 * 16)}, 0
            s_cselect_b32 s38, {round((opt.thr0 + opt.thr1) * 16)}, -1""")
    if not opt.hold: a.e("s_lshl_b32 s50, s7, 1\ns_add_u32 s50, s50, 2\ns_sub_u32 s50, s50, s29")
    if opt.acct: a.e(f"s_mov_b64 s[98:99], s[{STB}:{STB+1}]\ns_mov_b64 s[100:101], s[{STB}:{STB+1}]\ns_mov_b64 s[92:93], s[{STB}:{STB+1}]")
    def wpieces(tag, head, rows, lds, voreg):
        Gs = []
        for i in range(9):
            g = [f"s_add_u32 s4, s66, {head}", "s_and_b32 s4, s4, 7", f"s_mul_i32 s4, s4, {128*1152}", "s_add_u32 s4, s4, s68",
                 f"s_add_u32 s4, s4, {rows*1152}"] if i == 0 else []
            g += [f"s_add_u32 m0, s65, {lds + i*1024}", f"buffer_load_dwordx4 v{voreg+i}, s[60:63], s4 offen{opt.wopol} lds ; @{tag}"]
            Gs.append("\n".join(g))
        return Gs
    HEAD = (0, 2, 4, 6, 1, 3, 5, 7)
    NX = opt.nx
    BUFOF = [st % 2 for st in range(NX + 2)] + [2, 3]
    while len(BUFOF) < 8: BUFOF.append(BUFOF[len(BUFOF) - 4])
    wS = lambda st: wpieces(f"w{st}", HEAD[st], 0, SB[BUFOF[st]], VO)
    wX = lambda st, VOR: wpieces(f"w{st}", HEAD[st], 0, SB[BUFOF[st]], VO) + wpieces(f"w{st}", HEAD[st], 64, SB[BUFOF[st]] + 18432, VOR)
    carry = tile_body(a, opt, 0, [])
    carry = tile_body(a, opt, 1, carry, extra=[(setup2 + setW, 0, 41)])
    carry1 = [[x.replace('L_sk1_', 'L_sk4_') for x in y] for y in carry]
    if opt.unroll:
        for t in range(2, 14):
            stamp(a, f'r{t}', opt); carry = tile_body(a, opt, t, carry)
    else:
        stamp(a, "l0", opt)
        a.e("s_mov_b32 s46, 4")
        a.raw(".p2align 6"); a.label("L_tile")
        keep = list(a.vm)
        if not opt.hold: a.e(f"s_cmp_eq_u32 s7, 0\ns_cselect_b32 s3, {2*opt.last[0]}, {2*opt.last[1]}\ns_cmp_gt_u32 s46, 1\ns_cselect_b32 s50, s50, s3")
        if opt.late:
            a.e(f"""s_lshl_b32 s3, s7, 3
                    s_add_u32 s3, s3, s46
                    s_cmp_lg_u32 s3, {opt.late}
                    s_cbranch_scc1 L_nolate
                    s_lshr_b32 s3, s2, 3
                    s_lshl_b32 s3, s3, 1
                    s_add_u32 s3, s3, s6
                    s_mul_i32 s3, s3, 18432
                    v_lshlrev_b32 v84, 7, v1
                    v_add_u32 v84, s3, v84
                    v_add_u32 v85, 8192, v84
                    v_add_u32 v86, 16384, v84
                    v_cmp_gt_u32 vcc, 16, v1
                    v_cndmask_b32 v86, -1, v86, vcc""")
            emit(a, [f"buffer_load_dword v87, v{r}, s[60:63], s67 offen{opt.tpol} ; @junk" for r in (84, 85, 86)])
            a.label("L_nolate")
        if opt.tlb:
            a.e(f"""s_cmp_lg_u32 s46, {opt.tlb}
                    s_cbranch_scc1 L_notlb
                    s_lshl_b32 s3, s39, 2
                    s_add_u32 s4, s3, s30
                    s_mul_i32 s4, s4, {8*24576}
                    v_mov_b32 v84, s4
                    s_add_u32 s4, s4, {8*24576 - 128}
                    v_writelane_b32 v84, s4, 1
                    s_add_u32 s3, s3, s32
                    s_mul_i32 s4, s3, {4*36864}
                    s_add_u32 s4, s4, {WS_P}
                    v_writelane_b32 v84, s4, 2
                    s_add_u32 s4, s4, {4*36864 - 128}
                    v_writelane_b32 v84, s4, 3
                    s_mov_b32 s4, {WS_F + 65536 - 128}
                    v_writelane_b32 v84, s4, 4
                    s_mul_i32 s4, s31, {96*2304}
                    v_mov_b32 v85, s4
                    s_add_u32 s4, s4, {96*2304 - 128}
                    v_writelane_b32 v85, s4, 1
                    s_mov_b64 s[16:17], s[78:79]
                    s_mov_b32 s18, 1769472
                    buffer_load_dword v87, v84, s[24:27], 0 offen nt ; @junk
                    buffer_load_dword v87, v85, s[16:19], 0 offen nt ; @junk""")
            a.label("L_notlb")
        a.vm = keep
        for t in (2, 3, 4): carry = tile_body(a, opt, t, carry)
        assert carry == carry1
        a.e("s_sub_u32 s46, s46, 1\ns_cmp_lg_u32 s46, 0\ns_cbranch_scc1 L_tile")
        for o in a.vm:
            if o.tag and o.tag[0] == "u": o.tag = f"u{int(o.tag[1:]) + 18}"
    stamp(a, "l1", opt)
    carry = tile_body(a, opt, 14, carry)
    xo = lambda k: (k // 8) * SLOT + (k % 8) * 1024
    def send(qb):
        return [f"ds_write_b128 v28, {ar(Oacc(2+i,qb) + 4*g, 4)} offset:{xo((i*3 + qb)*4 + g)}" for i in range(2) for g in range(4)]
    accr = lambda qb: [f"v_accvgpr_read_b32 v{160 + (i*3+qb)*16 + r}, a{Oacc(i,qb) + r}" for i in range(2) for r in range(16)]
    pre = ["buffer_load_dword v106, v108, s[56:59], 0 offen sc1 ; @tag",
           f"v_add_u32 v28, s37, v{VL16}", "s_lshl_b32 s3, s6, 14\ns_sub_u32 s3, 8192, s3", "v_add_u32 v29, s3, v28",
           f"s_mul_i32 s3, s28, 768\ns_add_u32 s3, s3, {TOP}", f"v_lshlrev_b32 v30, 3, v{L31}", "v_add_u32 v30, s3, v30",
           f"s_xor_b32 s3, s28, 1\ns_mul_i32 s3, s3, 768\ns_add_u32 s3, s3, {TOP}", f"v_lshlrev_b32 v31, 3, v{L31}", "v_add_u32 v31, s3, v31"]
    team = "v_and_b32 v13, 3, v1\nv_lshlrev_b32 v13, 10, v13\nv_and_b32 v14, 4, v1\nv_add_u32 v13, v13, v14"
    askX = [f"s_andn2_b32 s71, s2, 24\ns_lshl_b32 s71, s71, 7\ns_add_u32 s69, s71, {WS_F}"] + team.split("\n") + ["buffer_load_dword v12, v13, s[24:27], s69 offen sc1"]
    carry = tile_body(a, opt, 15, carry, extra=[(pre, 8, 16), (askX, 28, 34), (send(0), 34, 48)] + ([(accr(0), 33, 44)] if opt.accearly else []))
    sl = [[] for _ in range(8)]
    carry = [x for y in carry for x in y]
    cut = max([i + 1 for i, x in enumerate(carry) if x.startswith(f"v_cvt_pk_bf16_f32 v{Sreg(2,3)},")] + [len(carry) - 16, 0])
    emit(a, carry[:cut])
    spread(sl, carry[cut:], 0, 3)
    st = []
    for qb in range(3): st += [f"v_mov_b32 v{3+2*qb}, v{LSUM+qb}", f"v_mov_b32 v{2+2*qb}, v{NM+16*qb}"]
    for qb in range(3): st += [f"v_permlane32_swap_b32 v{LSUM+qb}, v{3+2*qb}"]
    for qb in range(3): st += [f"v_add_f32 v{3+2*qb}, v{LSUM+qb}, v{3+2*qb}", f"ds_write_b64 v30, v[{2+2*qb}:{3+2*qb}] offset:{qb*256}"]
    spread(sl, st + send(1), 3, 8)
    for m, f in zip(pv(2, False), sl): emit(a, [m] + f)
    stamp(a, "t15", opt)
    emit(a, accr(1)[:12] + send(2))
    emit(a, ([] if opt.accearly else accr(0)) + accr(1)[12:] + accr(2))
    a.e("s_mov_b32 s4, 0x100000")
    a.label("L_tag")
    a.e("""s_waitcnt vmcnt(0)
           v_readfirstlane_b32 s75, v106
           s_cmp_lg_u32 s75, 0
           s_cbranch_scc1 L_tag_ok
           buffer_load_dword v106, v108, s[56:59], 0 offen sc1 ; @junk
           s_sub_u32 s4, s4, 1
           s_cmp_lg_u32 s4, 0
           s_cbranch_scc1 L_tag""")
    a.label("L_tag_ok"); a.vm = []
    a.e(f"""s_lshl_b32 s3, s39, 5
            s_add_u32 s3, s3, s33
            s_mul_i32 s52, s3, 24576
            s_mul_i32 s3, s6, 12288
            s_add_u32 s52, s52, s3
            s_waitcnt lgkmcnt(0)""")
    ACC, WF, OF = 112, 16, 0
    def ask(base, lanes):
        a.e(f"s_add_u32 s69, {base}, {WS_F}\n{lanes}\nbuffer_load_dword v12, v13, s[24:27], s69 offen sc1")
    def check(tag):
        a.e("s_mov_b32 s4, 0x100000")
        a.label(f"L_poll{tag}")
        a.e(f"""s_waitcnt vmcnt(0)
                v_cmp_ne_u32 vcc, s75, v12
                s_cbranch_vccz L_got{tag}
                s_sleep 1
                buffer_load_dword v12, v13, s[24:27], s69 offen sc1
                s_sub_u32 s4, s4, 1
                s_cmp_lg_u32 s4, 0
                s_cbranch_scc1 L_poll{tag}""")
        a.label(f"L_got{tag}")
        a.e("s_waitcnt vmcnt(0)")
    def wreads(buf, rows, F):
        reg, boff = (AD, AD + 1, 220, 221)[buf], 0
        return [f"ds_read_b64_tr_b16 {vr(F + nb*4 + 2*k, 2)}, v{reg} offset:{boff + (rows + 8*k) * 288 + 32*nb}" for nb in range(9) for k in range(2)]
    def oload(tag, head, db0, nks, dst):
        Gs = []
        for kl in range(nks):
            for j in range(3):
                g = [f"s_add_u32 s47, s66, {head}", "s_and_b32 s47, s47, 7", "s_mul_i32 s47, s47, 24576", "s_add_u32 s47, s47, s37"] + \
                    ([f"s_add_u32 s47, s47, {db0}"] if db0 else []) if kl + j == 0 else ["s_add_u32 s47, s47, 6144"] if j == 0 else []
                Gs.append("\n".join(g + [f"buffer_load_dwordx4 {ar(dst + (kl*3+j)*4, 4)}, v{VL16}, s[24:27], s47 offen offset:{j*1024} sc1 ; @{tag}"]))
        return Gs
    def kstep(F, O, zero, reads, jobs):
        ms = [f"v_mfma_f32_16x16x32_bf16 {vr(ACC + (nb*3+j)*4, 4)}, {vr(F+nb*4,4)}, {ar(O+j*4,4)}, " + ("0" if zero else vr(ACC + (nb*3+j)*4, 4))
              for nb in range(9) for j in range(3)]
        sl = [[] for _ in range(27)]
        spread(sl, reads, 0, 20); spread(sl, jobs, 0, 27)
        a.e("s_waitcnt lgkmcnt(0)")
        for m, f in zip(ms, sl): emit(a, [m] + f)
        return ms
    team = "v_and_b32 v13, 3, v1\nv_lshlrev_b32 v13, 10, v13\nv_and_b32 v14, 4, v1\nv_add_u32 v13, v13, v14"
    a.e(f"""s_lshl_b32 s3, s2, 7
            s_lshl_b32 s4, s28, 2
            s_add_u32 s70, s3, s4
            s_add_u32 s70, s70, {WS_F}
            s_lshl_b32 s3, s39, 2
            s_add_u32 s3, s3, s30
            s_mul_i32 s37, s3, {8*24576}
            s_mul_i32 s4, s6, 3072
            s_add_u32 s37, s37, s4
            s_mul_i32 s4, s7, 12288
            s_add_u32 s37, s37, s4
            s_mov_b32 s45, 0
            s_cmp_eq_u32 s7, 0
            s_cbranch_scc1 L_noearly
            v_cmp_ne_u32 vcc, s75, v12
            s_cbranch_vccnz L_noearly
            s_mov_b32 s45, 1""")
    for st in range(NX, 4): emit(a, oload(f"o{st}", HEAD[st], 0, 2, 24*st))
    a.label("L_noearly"); a.vm = []
    a.e(f"v_sub_u32 v27, v29, v{VL16}\nv_add_u32 v27, v27, v{VOL}")
    psync()
    stamp(a, "c_bar", opt)
    for qb in range(3): a.e(f"ds_read_b64 v[{8+2*qb}:{9+2*qb}], v31 offset:{qb*256}")
    RC = (32, 48, 64, 112, 128, 144)
    def recv(blk):
        for g in range(4): a.e(f"ds_read_b128 {vr(RC[blk]+4*g,4)}, v29 offset:{xo(blk*4 + g)}")
    recv(0); recv(1)
    SC = 16
    for qb in range(3):
        pn, pl, on, ol = 8 + 2*qb, 9 + 2*qb, 2 + 2*qb, 3 + 2*qb
        a.auto(f"v_min_f32 v22, v{on}, v{pn}")
        a.e(f"""v_sub_f32 v23, v22, v{on}
                v_sub_f32 v24, v22, v{pn}
                v_exp_f32 v23, v23
                v_exp_f32 v24, v24
                v_mul_f32 v{ol}, v{ol}, v23
                v_fmac_f32 v{ol}, v{pl}, v24
                v_rcp_f32 v{ol}, v{ol}
                v_mul_f32 v{SC+2*qb}, v23, v{ol}
                v_mul_f32 v{SC+2*qb+1}, v24, v{ol}""")
    recv(2); recv(3); recv(4); recv(5)
    for blk in range(6):
        i, qb = divmod(blk, 3)
        K = 160 + blk*16; Rr = RC[blk]
        a.wait(lgregs=regs_of(vr(Rr, 16)))
        for r in range(0, 16, 2):
            a.e(f"v_pk_mul_f32 v[{Rr+r}:{Rr+r+1}], v[{Rr+r}:{Rr+r+1}], v[{SC+2*qb}:{SC+2*qb+1}] op_sel:[0,1] op_sel_hi:[1,1]")
        for r in range(0, 16, 2):
            a.e(f"v_pk_fma_f32 v[{K+r}:{K+r+1}], v[{K+r}:{K+r+1}], v[{SC+2*qb}:{SC+2*qb+1}], v[{Rr+r}:{Rr+r+1}] op_sel_hi:[1,0,1]")
        for j in range(8):
            a.e(f"v_cvt_pk_bf16_f32 v{K+8*(j//4)+j%4}, v{K+2*j}, v{K+2*j+1}")
        a.e(f"s_add_u32 s47, s52, {WS_O + (i*6 + 2*qb)*1024}")
        for s in range(2):
            a.e(f"buffer_store_dwordx4 {vr(K+8*s,4)}, v{VOL}, s[24:27], s47 offen offset:{512*s} sc1")
            a.e(f"ds_write_b128 v27, {vr(K+8*s,4)} offset:{xo(i*6 + 2*qb) + 512*s}")
    stamp(a, "comb", opt)
    a.e("v_mov_b32 v14, s75\ns_cmp_eq_u32 s7, 1\ns_cbranch_scc1 L_tailY")
    stT = save(a)
    other_pair("L_yq", 24, 1 + opt.xgate)
    if NX == 0:
        VOR = 224
        a.e("s_waitcnt vmcnt(0)\nbuffer_store_dword v14, v108, s[24:27], s70 offen sc1")
        emit(a, vo_calc(VOR, "rev") + wX(0, VOR))
        a.e("s_waitcnt lgkmcnt(0)"); psync()
        emit(a, wX(1, VOR))
        ask("s71", team); check("A"); stamp(a, "chkA", opt)
    else:
        emit(a, wX(0, VO))
        a.e(f"""s_waitcnt vmcnt(0)
                buffer_store_dword v14, v108, s[24:27], s70 offen sc1
                v_add_u32 v3, 8192, v{VL16}
                s_waitcnt lgkmcnt(0)""")
        psync()
        a.e("s_cmp_eq_u32 s6, 1\ns_cbranch_scc1 L_x1")
        sv = save(a)
        for qh in range(2):
            if qh: a.label("L_x1"); load(a, sv)
            for db in range(4):
                for j in range(3): a.e(f"ds_read_b128 {ar(192 + (db*3+j)*4, 4)}, v{3 if db < 2 else VL16} offset:{xo((db % 2)*6 + 3*qh + j)}")
            if qh == 0: a.e("s_branch L_x2")
        a.label("L_x2")
        VOR = 224
        emit(a, vo_calc(VOR, "rev"))
        a.wait(vmtags=["w0"], lg0=True); psync()
        emit(a, wreads(0, 0, WF))
        RS = (192, 0, 48 if NX == 4 else 192, 192)
        wN = lambda st: wX(st, VO if st < NX else VOR)
        xl = lambda st: oload(f"x{st}", HEAD[st], 0, 4, RS[st])
        ask("s71", team)
        for st in range(NX):
            b = BUFOF[st]
            w = wN(1) if st == 0 else []
            if st >= 1: a.wait(vmtags=[f"x{st}"])
            kstep(WF, RS[st], st == 0, wreads(b, 32, WF + 36), w[:9])
            kstep(WF + 36, RS[st] + 12, False, wreads(b, 64, WF), w[9:])
            j = []
            if st == 0:
                check("A"); stamp(a, "chkA", opt)
                for k in range(1, NX):
                    if RS[k] != 192: j += xl(k)
            kstep(WF, RS[st] + 24, False, wreads(b, 96, WF + 36), j)
            a.wait(vmtags=[f"w{st+1}"], lg0=True); psync()
            kstep(WF + 36, RS[st] + 36, False, wreads(BUFOF[st + 1], 0, WF) if st + 1 < NX else [], wN(st + 2))
            if st == 0:
                for k in range(1, NX):
                    if RS[k] == 192: emit(a, xl(k))
    for st in range(NX, 4): emit(a, oload(f"o{st}", HEAD[st], 0, 2, 24*st))
    a.e("s_waitcnt vmcnt(0)\ns_branch L_join")
    a.label("L_tailY"); load(a, stT)
    a.e("s_cmp_eq_u32 s45, 1\ns_cbranch_scc1 L_hadearly")
    sv = save(a)
    ask("s71", team); check("Y")
    a.vm = list(sv[2])
    for st in range(NX, 4): emit(a, oload(f"o{st}", HEAD[st], 0, 2, 24*st))
    a.label("L_hadearly")
    a.e("s_waitcnt lgkmcnt(0)")
    a.label("L_join"); a.lg = []
    a.e(f"""s_add_u32 s71, s71, 8
            v_add_u32 v220, {SB[2] - SB[1]}, v{AD+1}
            v_add_u32 v221, {SB[3] - SB[1]}, v{AD+1}
            s_mul_i32 s3, s7, -8192
            s_add_u32 s3, s3, {YB + 8192}
            v_add_u32 v2, s3, v{VL16}
            v_mov_b32 v15, s75
            s_barrier""")
    stamp(a, "join", opt)
    emit(a, wreads(BUFOF[NX], 0, WF))
    a.e("s_cmp_eq_u32 s6, 1\ns_cbranch_scc1 L_own1")
    sv = save(a)
    for qh in range(2):
        if qh: a.label("L_own1"); load(a, sv)
        for kl in range(2):
            for j in range(3): a.e(f"ds_read_b128 {ar(96 + (kl*3+j)*4, 4)}, v2 offset:{xo(kl*6 + 3*qh + j)}")
        if qh == 0: a.e("s_branch L_own2")
    a.label("L_own2")
    a.wait(vmtags=[f"o{NX}"])
    a.e("s_cmp_eq_u32 s7, 1\ns_cbranch_scc1 L_fy")
    sv = save(a)
    kstep(WF, 24*NX, NX == 0, wreads(BUFOF[NX], 32, WF + 36), wS(NX + 2))
    a.e("s_branch L_fx")
    a.label("L_fy"); load(a, sv)
    kstep(WF, 24*NX, True, wreads(BUFOF[NX], 32, WF + 36), wS(NX + 2))
    a.e("s_waitcnt vmcnt(0)\nbuffer_store_dword v15, v108, s[24:27], s70 offen sc1 ; @junk")
    a.label("L_fx"); a.vm = [o for o in a.vm if o.tag == f"w{NX+2}"]
    A = max(NX, min(opt.askat, 4))
    oy = lambda k: oload(f"o{k}", HEAD[k], 0, 2, 24*k)
    plan = {}
    for k in range(NX + 4, 8): plan.setdefault((k - 4, 1) if k - 4 > NX else (NX + 1, 0), []).append(wS(k))
    plan.setdefault((NX, 1), []).append(wS(NX + 3))
    if A <= 3:
        for i, k in enumerate((5, 6, 7)): plan.setdefault((A + (i + 1) // 2, (i + 1) % 2), []).insert(0, oy(k))
    job = lambda st, kl: [x for y in plan.get((st, kl), []) for x in y]
    for st in range(NX, 8):
        stamp(a, f"s{st}", opt)
        if st > NX:
            if st == A: ask("s71", team)
            if st >= 5: a.wait(vmtags=[f"o{st}"])
            kstep(WF, 24*st, False, wreads(BUFOF[st], 32, WF + 36), job(st, 0))
        elif st == A: ask("s71", team)
        if st == A and A <= 3: check("B"); stamp(a, "chk1", opt)
        if st < 7:
            a.wait(vmtags=[f"w{st+1}"], lg0=True); a.e("s_barrier")
            kstep(WF + 36, 24*st + 12, False, wreads(BUFOF[st + 1], 0, WF), job(st, 1))
        if st == A and A == 4:
            check("B"); stamp(a, "chk1", opt); emit(a, oy(5) + oy(6) + oy(7))
    a.e(f"""s_lshl_b32 s3, s28, 14
            v_add_u32 v13, s3, v{VL16}
            v_xor_b32 v14, 32768, v13
            s_lshl_b32 s52, s39, 2
            s_add_u32 s52, s52, s32
            s_lshl_b32 s53, s52, 2
            s_add_u32 s53, s53, s30
            s_mul_i32 s53, s53, 36864
            s_mul_i32 s3, s28, 9216
            s_add_u32 s53, s53, s3
            s_add_u32 s47, s53, {WS_P}
            s_waitcnt lgkmcnt(0)
            s_barrier""")
    F, O = WF + 36, 180
    T = lambda nb, j: ACC + (nb*3+j)*4
    ms = [f"v_mfma_f32_16x16x32_bf16 {vr(T(nb,j), 4)}, {vr(F+nb*4,4)}, {ar(O+j*4,4)}, {vr(T(nb,j), 4)}" for nb in (8, 7, 6, 5, 4, 0, 1, 2, 3) for j in range(3)]
    snd = [f"ds_write_b128 v13, {vr(T(nb,j),4)} offset:{((8-nb)*3+j)*1024}" for nb in range(8, 3, -1) for j in range(3)]
    emit(a, ms[:6])
    for k in range(15): emit(a, [ms[6 + k], snd[k]])
    emit(a, ms[21:])
    stamp(a, "gend", opt)
    a.e("s_waitcnt lgkmcnt(0)\ns_barrier")
    order = [(k, j) for k in range(3) for j in range(3)]
    for k, j in order:
        for nb in range(2*k, min(2*k + 2, 5)): a.e(f"ds_read_b128 {vr(WF + (nb*3+j)*4, 4)}, v14 offset:{(nb*3+j)*1024}")
    for k, j in order:
        r = T(2*k, j)
        for h, nb in enumerate(range(2*k, min(2*k + 2, 5))):
            t, q = T(nb, j), WF + (nb*3+j)*4
            a.wait(lgregs=regs_of(vr(q, 4)))
            a.e(f"v_pk_add_f32 v[{t}:{t+1}], v[{t}:{t+1}], v[{q}:{q+1}]\nv_pk_add_f32 v[{t+2}:{t+3}], v[{t+2}:{t+3}], v[{q+2}:{q+3}]")
            a.e(f"v_cvt_pk_bf16_f32 v{r+2*h}, v{t}, v{t+1}\nv_cvt_pk_bf16_f32 v{r+2*h+1}, v{t+2}, v{t+3}")
        if k < 2: a.e(f"buffer_store_dwordx4 {vr(r,4)}, v{VL16}, s[24:27], s47 offen offset:{j*1024} sc1")
        else: a.e(f"buffer_store_dwordx2 {vr(r,2)}, v{VL16}, s[24:27], s47 offen offset:{j*1024} sc1")
        if j == 2 and k < 2: a.e("s_add_u32 s47, s47, 3072")
    a.e(f"""s_add_u32 s70, s70, 32768
            s_andn2_b32 s71, s2, 3
            s_lshl_b32 s71, s71, 7
            s_add_u32 s71, s71, 32768
            v_and_b32 v10, 15, v1
            v_mul_u32_u24 v10, 2304, v10
            v_lshrrev_b32 v11, 4, v1
            v_lshl_add_u32 v10, v11, 3, v10
            s_mul_i32 s52, s52, {4*36864}
            s_add_u32 s52, s52, {WS_P}
            s_mul_i32 s53, s31, {96*2304}
            s_mul_i32 s3, s29, 1152
            s_add_u32 s53, s53, s3
            s_mul_i32 s3, s32, 288
            s_add_u32 s53, s53, s3
            s_lshl_b32 s54, s30, 2
            s_add_u32 s54, s54, s28""")
    srd(a, 8, "s78", "s79", 1769472)
    def decode(i):
        A, B, C = 56 + 4*i, 57 + 4*i, 58 + 4*i
        a.e(f"""s_add_u32 s3, s54, {16*i}
                s_mul_i32 s4, s3, 43
                s_lshr_b32 s4, s4, 8
                s_mul_i32 s5, s4, 6
                s_sub_u32 s3, s3, s5            ; q16
                s_mul_i32 s{B}, s3, {16*2304}
                s_add_u32 s{B}, s{B}, s53
                s_cmp_ge_u32 s3, 3
                s_cselect_b32 s5, {9216 - 3072}, 0
                s_lshl_b32 s3, s3, 10
                s_add_u32 s{A}, s3, s5          ; qh * 9216 + j * 1024
                s_add_u32 s{A}, s{A}, s52
                s_and_b32 s3, s4, 1
                s_cmp_eq_u32 s4, 4
                s_cselect_b32 s3, 2, s3         ; k
                s_cselect_b32 s{C}, 0, 32
                s_mul_i32 s5, s3, 3072
                s_add_u32 s{A}, s{A}, s5
                s_lshl_b32 s3, s3, 6
                s_and_b32 s4, s4, 2
                s_cmp_eq_u32 s4, 2
                s_cselect_b32 s5, 18432, 0
                s_add_u32 s{A}, s{A}, s5
                s_cmp_eq_u32 s4, 2
                s_cselect_b32 s{C}, -32, s{C}
                s_sub_u32 s5, 256, s3
                s_cmp_eq_u32 s4, 2
                s_cselect_b32 s3, s5, s3
                s_add_u32 s{B}, s{B}, s3""")
    decode(0); decode(1)
    a.e("s_waitcnt vmcnt(0)\nbuffer_store_dword v15, v108, s[24:27], s70 offen sc1")
    stamp(a, "pub2", opt)
    ask("s71", "v_and_b32 v13, 3, v1\nv_lshlrev_b32 v13, 7, v13\nv_and_b32 v14, 12, v1\nv_add_u32 v13, v13, v14"); check(2)
    stamp(a, "chk2", opt)
    def loads(i):
        for o in range(4):
            a.e(f"buffer_load_dwordx4 {vr(16+16*i+4*o,4)}, v{VL16}, s[24:27], s{56+4*i} offen sc1")
            if o < 3: a.e(f"s_add_u32 s{56+4*i}, s{56+4*i}, 36864")
    def fin(i, left):
        b, D = 16 + 16*i, 112 + 16*i
        for o in range(4):
            a.e(f"s_waitcnt vmcnt({left + 3 - o})")
            for k in range(4):
                r = b + 4*o + k
                if o == 0: a.e(f"v_lshlrev_b32 v{D+2*k}, 16, v{r}\nv_and_b32 v{D+2*k+1}, 0xffff0000, v{r}")
                else: a.e(f"v_lshlrev_b32 v{D+8}, 16, v{r}\nv_and_b32 v{r}, 0xffff0000, v{r}\nv_add_f32 v{D+2*k}, v{D+2*k}, v{D+8}\nv_add_f32 v{D+2*k+1}, v{D+2*k+1}, v{r}")
        for k in range(4): a.e(f"v_cvt_pk_bf16_f32 v{D+k}, v{D+2*k}, v{D+2*k+1}")
        a.e(f"""buffer_store_dwordx2 v[{D}:{D+1}], v10, s[8:11], s{57+4*i} offen{opt.opol}
                s_add_u32 s{57+4*i}, s{57+4*i}, s{58+4*i}""")
        if i == 1: a.e("s_cmp_eq_u32 s62, 0\ns_cbranch_scc1 L_rd2")
        a.e(f"buffer_store_dwordx2 v[{D+2}:{D+3}], v10, s[8:11], s{57+4*i} offen{opt.opol}")
    loads(0)
    a.e("s_cmp_ge_u32 s54, 14\ns_cbranch_scc1 L_rd1")
    sv = save(a)
    loads(1); fin(0, 4); fin(1, 0)
    a.e("s_branch L_rd2")
    a.label("L_rd1"); load(a, sv)
    fin(0, 0)
    a.label("L_rd2")
    stamp(a, "end", opt)
    if opt.stamps:
        a.e(f"s_lshl_b32 s3, s2, 2\ns_add_u32 s3, s3, s28\ns_lshl_b32 s3, s3, 7\ns_add_u32 s3, s3, {WS_STAMP}\nv_mov_b32 v0, 0")
        for i in range(1 + len(opt.sset)):
            a.e(f"v_mov_b32 v2, s{STB+2*i}\nv_mov_b32 v3, s{STB+1+2*i}\nbuffer_store_dwordx2 v[2:3], v0, s[24:27], s3 offen offset:{8*i}\ns_waitcnt vmcnt(0)")
    a.label("L_done")
    a.e("s_endpgm")
    a.label("L_end")
    for qb in range(3): rare(a, qb)
    a.label("L_hold", reset=True)
    a.e("s_mov_b32 s47, 0x400000")
    a.label("L_hold1")
    a.e("""s_sleep 4
           ds_read_b64 v[30:31], v26
           s_sub_u32 s47, s47, 1
           s_waitcnt lgkmcnt(0)
           v_min_u32 v30, v30, v31
           v_readfirstlane_b32 s3, v30
           s_lshl_b32 s3, s3, 4
           s_cmp_eq_u32 s47, 0
           s_cselect_b32 s3, s38, s3
           s_cmp_lt_i32 s3, s38
           s_cbranch_scc1 L_hold1
           s_setpc_b64 s[40:41]""")

def build(opt):
    a = Asm()
    a.raw("; @launch grid=(256,1,1) block=(256,1,1) lds=163840")
    a.raw('.amdgcn_target "amdgcn-amd-amdhsa--gfx950"')
    kernel(a, NAME + "_kernel", opt)
    a.raw('.section .rodata,"a"\n.p2align 6')
    a.raw("\n".join([f".amdhsa_kernel {NAME}_kernel", "  .amdhsa_next_free_vgpr 512", "  .amdhsa_next_free_sgpr 102",
        "  .amdhsa_accum_offset 256", "  .amdhsa_group_segment_fixed_size 0", "  .amdhsa_kernarg_size 104",
        "  .amdhsa_user_sgpr_count 2", "  .amdhsa_user_sgpr_kernarg_segment_ptr 1",
        "  .amdhsa_system_sgpr_workgroup_id_x 1", ".end_amdhsa_kernel"]))
    return a.text(), a

if __name__ == "__main__":
    opt = Opt()
    out = sys.argv[1] if len(sys.argv) > 1 else "k.s"
    for kv in sys.argv[2:]:
        k, v = kv.split("=", 1); assert hasattr(opt, k), k
        setattr(opt, k, eval(v))
    t, a = build(opt)
    open(out, "w").write(t)
    print(out, "lines", t.count("\n"), "pad", a.npad)
```

```python
import sys, struct, math
sys.path.insert(0, "dev")
from asmlib import Asm, spread, regs_of, level_fill
import gen5
from gen5 import (NAME, f2u, CSC, THR_LOG2, WS_BYTES, WS_O, WS_P, WS_F, WS_STAMP, STB, vr, ar, srd, stamp, emit,
                  VOFFK, VOFFV, VKA, VVA, LSUM, TMAX, VT, NM, S0, Q0, KF, VF, Sreg, Qreg, Oacc, softmax, qk, pv, rare)

class Opt:
    wp = "pppp"
    noB = False
    stamps = False
    sset = ['q0', 'k0', 't15', 'comb', 'join', 'chk1', 'gend', 'pub2', 'end']
    thr0 = 0.0
    thr1 = 1.25
    clk = "s_memrealtime"
    rot = True
    krot = 4
    qlev = True
    touch = {}
    ctouch = None
    w0at = (14, 44)
    plan2 = True
    rlate = 0
    rspan = 80
    kspan = 30
    wdel = 8
    kvtlb = False
    capb = None
    pbf16 = True
    k1early = False
    wot = 4
    wotnt = None
    tlb = 0
    nx = 1
    accearly = True
    cap = (6, 5)
    capend = 30
    hold = False
    xgate = 0
    last = (0, 0)
    ylast = 1
    kvsame = False
    unroll = False
    a0at = 2
    opol = ''
    late = 0
    prio = 0
    gate = 12
    pace = 1.0
    d1 = (8, 10, 12, 14, 22, 24, 26, 27)
    d2 = (29, 31, 33, 35, 37, 39, 44, 47)
    dcost = 4.0
    acct = 0
    w0 = 10
    askat = 3
    fewwait = True
    vwin = (16, 22)
    kwin = (40, 44)
    tpol = ''
    wopol = ''

SLOT = 16384
SV = 126976
def slot(u): return (2 if u == 0 else (-u) % 3) * SLOT
STG = lambda i: 45056 + 28672 * i
TOP = 159744
SB = (122880, 0, 86016, 49152)
NS = 3
YB = 49152

def dma_unit(u, opt):
    kind = "KV"[u % 2]; sreg = "s36" if kind == "K" else "s35"
    srdn = "s[8:11]" if kind == "K" else "s[12:15]"
    G = []
    for j in range(8):
        g = []
        mb, mo = ("s54", 0) if u == 1 else ("s37", slot(u))
        if j == 0: g += [f"s_add_u32 m0, {mb}, {mo}", f"s_add_u32 s51, s34, {sreg}"]
        if j == 1 and not opt.kvsame: g += [f"s_add_u32 {sreg}, {sreg}, 16384", f"s_and_b32 {sreg}, {sreg}, 0x3ffff"]
        if j == 4: g += [f"s_add_u32 m0, {mb}, {mo + 4096}", "s_add_u32 s51, s51, 4096"]
        vo = VOFFK + j % 4 if kind == "K" else VOFFV
        if opt.cap and 4 <= u <= opt.capend:
            cx, cy = opt.cap
            cx, cy = (c if isinstance(c, int) else c[j % len(c)] for c in (cx, cy))
            dma_unit.n += 1; n = dma_unit.n
            bx, by = (c if isinstance(c, int) else c[j % len(c)] for c in (opt.capb or opt.cap))
            prev = None
            for lv, c in enumerate((bx, cx, by, cy)):
                if c == prev: continue
                R_ = "RAW " if prev else ""
                g += [R_ + f"s_cmp_le_u32 s50, {lv}", R_ + f"s_cbranch_scc1 L_cap{n}", f"RAW s_waitcnt vmcnt({c - 1})"]
                assert prev is None or c < prev
                prev = c
            g += [f"LABEL L_cap{n}"]
        g.append(f"buffer_load_dwordx4 v{vo}, {srdn}, s51 offen offset:{(j % 4)*1024} nt lds ; @u{u}")
        G.append("\n".join(g))
    return G
dma_unit.n = 0
def kreads(t): return [f"ds_read_b128 {ar(KF+4*s,4)}, v{VKA+s} offset:{slot(2*t)}" for s in range(8)]
def vreads(t):
    return [f"ds_read_b64_tr_b16 {ar(VF + db*8 + s*4 + k*2, 2)}, v{(VVA if t else 28)+db} offset:{(slot(2*t+1) if t else 0) + 4096*s + 2048*k}"
            for s in range(2) for db in range(4) for k in range(2)]
def tile_body(a, opt, t, carry, extra=()):
    first = t == 0
    M = qk(0, first) + (pv(2, t == 1) if t else [None]*8) + qk(1, first) + pv(0, first) + qk(2, first) + pv(1, first)
    W = opt.w0
    sl = [[] for _ in range(48 + W)]
    def at(G, slots):
        for g, k in zip(G, slots): sl[k].append(g)
    if 2*t + NS <= 31: at(dma_unit(2*t + NS if t else 4, opt), opt.d1)
    spread(sl, [f"WAITVM u{2*t+1}"] + vreads(t), *opt.vwin)
    if 2*t + NS + 1 <= 31 and t: at(dma_unit(2*t + NS + 1, opt), opt.d2)
    if t < 15: spread(sl, [f"WAITVM u{2*t+2}"] + kreads(t + 1), *opt.kwin)
    if t == 14 and opt.xgate: sl[30].append('v_mov_b32 v27, 2\nds_write_b32 v109, v27 offset:16')
    if opt.hold or t == 0: sl[46].append("s_add_u32 s45, s45, 1\nv_mov_b32 v27, s45\nds_write_b32 v109, v27 offset:16")
    if 1 <= t <= 14 and opt.hold:
        sl[44].append("ds_read_b64 v[30:31], v26")
        sl[47].append(f"""AUTO v_min_u32 v30, v30, v31
s_add_u32 s38, s38, s50
s_min_i32 s38, s38, 256
v_readfirstlane_b32 s3, v30
s_lshl_b32 s3, s3, 4
s_cmp_ge_i32 s3, s38
s_cbranch_scc1 L_go{t}
s_call_b64 s[40:41], L_hold
LABEL L_go{t}""")
    for e in extra: spread(sl, *e)
    for i, x in enumerate(carry): sl[i] = x + sl[i]
    ghost = {48 + k: "buffer_x\ns_nop 0\ns_nop 0" for k in opt.d1 if k < W}
    for k, g in ghost.items(): sl[k].append(g)
    level_fill(sl, softmax(0, t, first), W, W + 16, opt.dcost)
    level_fill(sl, softmax(1, t, first), W + 16, W + 32, opt.dcost)
    level_fill(sl, softmax(2, t, first), W + 32, W + 48, opt.dcost)
    for k in ghost: sl[k] = sl[k][1:]
    for i in range(48):
        if opt.fewwait:
            if i == 0: a.wait(lgregs=regs_of(ar(KF, 32)))
            if i == 24: a.wait(lgregs=regs_of(ar(VF, 32)))
        if M[i]: emit(a, [M[i]])
        for x in sl[i]:
            if opt.acct and x.startswith("WAITVM"):
                keep = list(a.lg)
                a.e("s_memtime s[94:95]"); emit(a, [x]); a.e("s_memtime s[96:97]\ns_waitcnt lgkmcnt(0)\ns_sub_u32 s96, s96, s94")
                r = 98 if int(x.split("u")[1]) % 2 else 100
                a.e(f"s_add_u32 s{r}, s{r}, s96")
            elif opt.acct == 2 and "lds ;" in x:
                a.e("s_memtime s[94:95]"); emit(a, [x]); a.e("s_memtime s[96:97]\ns_waitcnt lgkmcnt(0)\ns_sub_u32 s96, s96, s94\ns_add_u32 s92, s92, s96")
            else: emit(a, [x])
    return sl[48:]

def save(a): return (list(a.hist), list(a.lg), list(a.vm))
def load(a, st): a.hist, a.lg, a.vm = (list(x) for x in st)

def kernel(a, name, opt):
    a.raw(".text"); a.raw(f".globl {name}"); a.raw(".p2align 8"); a.raw(f".type {name},@function")
    a.label(name, reset=True)
    a.e("""s_load_dwordx8 s[56:63], s[0:1], 0
           s_load_dwordx8 s[64:71], s[0:1], 40
           s_load_dwordx2 s[72:73], s[0:1], 96
           s_load_dwordx2 s[40:41], s[0:1], 32
           s_load_dwordx2 s[42:43], s[0:1], 72
           s_load_dwordx4 s[44:47], s[0:1], 80
           s_memrealtime s[48:49]
           s_cmp_ge_u32 s2, 256
           s_cbranch_scc1 L_done""")
    if opt.stamps: a.e(f"{opt.clk} s[{STB}:{STB+1}]")
    VW, VXA, VXB, AW, AX, VD = 72, 73, 74, 76, 64, 111
    G, L15, H, L31, G1, R, C4 = 88, 89, 90, 91, 92, 81, 82
    VFO, VFP = 109, 110
    a.e(f"""v_lshrrev_b32 v1, 6, v0
            s_and_b32 s3, s2, 7
            s_lshr_b32 s29, s3, 2
            s_and_b32 s30, s3, 3
            v_readfirstlane_b32 s28, v1
            s_lshr_b32 s3, s2, 3
            s_lshr_b32 s31, s3, 2
            s_and_b32 s32, s3, 3
            v_and_b32 v1, 63, v0
            v_lshrrev_b32 v{G}, 4, v1
            v_and_b32 v{L15}, 15, v1
            v_lshrrev_b32 v56, 3, v1
            v_and_b32 v57, 7, v1
            v_and_b32 v{G1}, 1, v{G}
            v_lshlrev_b32 v59, 2, v{G1}
            v_xor_b32 v59, v57, v59
            v_lshlrev_b32 v59, 4, v59
            v_lshl_add_u32 v{VW}, v56, 13, v59
            v_mul_u32_u24 v60, 1152, v56
            v_xor_b32 v61, v57, v{G}
            s_and_b32 s6, s28, 1
            s_lshr_b32 s7, s28, 1
            s_lshl_b32 s3, s6, 2
            v_xor_b32 v61, s3, v61
            v_lshl_add_u32 v{VXA}, v61, 4, v60
            v_xor_b32 v61, 4, v61
            v_lshl_add_u32 v{VXB}, v61, 4, v60
            s_mul_i32 s37, s7, {YB}
            s_lshl_b32 s3, s6, 13
            s_add_u32 s37, s37, s3
            s_lshl_b32 s33, s30, 3
            s_lshl_b32 s3, s32, 1
            s_add_u32 s33, s33, s3              ; head X
            s_add_u32 s74, s3, s31              ; b + 2p
            s_lshl_b32 s52, s33, 8
            s_lshl_b32 s3, s28, 7
            s_add_u32 s52, s52, s3
            s_mul_i32 s53, s31, 110592
            s_mul_i32 s3, s28, 27648
            s_add_u32 s53, s53, s3              ; x rows 24w..
            s_mul_i32 s55, s28, 3072
            s_mov_b32 s18, 884736
            s_mov_b32 s19, 0x20000
            s_mov_b32 s22, 4718592
            s_mov_b32 s23, 0x20000""")
    if opt.krot == 0: a.e("s_mov_b32 s74, 0")
    elif opt.krot == 1: a.e("s_cmp_ge_u32 s74, 9\ns_cselect_b32 s3, 9, 0\ns_sub_u32 s74, s74, s3")
    elif opt.krot == 3: a.e("s_and_b32 s74, s74, 1\ns_lshl_b32 s74, s74, 2")
    elif opt.krot == 2: a.e("s_add_u32 s74, s31, s32\ns_mul_i32 s3, s74, 86\ns_lshr_b32 s3, s3, 8\ns_mul_i32 s3, s3, 3\ns_sub_u32 s74, s74, s3\ns_mul_i32 s74, s74, 3")
    elif opt.krot == 4: a.e("s_add_u32 s74, s31, s32\ns_and_b32 s74, s74, 3\ns_mul_i32 s74, s74, 9\ns_lshr_b32 s74, s74, 2")
    elif opt.krot == 5: a.e("s_add_u32 s74, s31, s32\ns_and_b32 s74, s74, 1\ns_lshl_b32 s74, s74, 2")
    a.e("s_cmp_eq_u32 s29, 0\ns_waitcnt lgkmcnt(0)")
    for d, o in ((20, 6), (16, 0), (8, 2), (12, 4)):
        a.e(f"s_cselect_b32 s{d}, s{56+o}, s{64+o}\ns_cselect_b32 s{d+1}, s{57+o}, s{65+o}")
    a.e("""s_cselect_b32 s76, s40, s42
           s_cselect_b32 s77, s41, s43
           s_mov_b64 s[78:79], s[44:45]
           s_mov_b64 s[80:81], s[46:47]
           s_or_b32 s75, s48, 1""")
    P = lambda ch: " nt" if ch == "n" else ""
    XS = 98304
    VW4, VX3 = 32, 36
    a.e(f"""v_mov_b32 v{VW4}, v{VW}
            v_add_u32 v{VW4+1}, {65536 - 1024}, v{VW}
            v_add_u32 v{VW4+2}, {2*(65536 - 1024)}, v{VW}
            v_add_u32 v{VW4+3}, {3*(65536 - 1024)}, v{VW}
            v_mov_b32 v{VX3}, v{VXA}
            v_add_u32 v{VX3+1}, {9216 - 1024}, v{VXB}
            v_add_u32 v{VX3+2}, {2*(9216 - 1024)}, v{VXA}
            s_lshl_b32 s4, s74, 19
            s_add_u32 s4, s4, s52
            s_lshl_b32 s5, s74, 7
            s_add_u32 s5, s5, s53
            s_sub_u32 s74, 9, s74""")
    WR = lambda c, j: ar(((c - 3)*8 + j)*4, 4)
    XR = lambda c, i: ar(192 + ((c-3)*3 + i)*4, 4) if (c-3)*3 + i < 16 else vr(40 + ((c-3)*3 + i - 16)*4, 4)
    def regstage(c):
        Gs = []
        for j in range(8):
            Gs.append(("s_add_u32 s4, s4, 262144\n" if j == 4 else "") + f"buffer_load_dwordx4 {WR(c,j)}, v{VW4 + j % 4}, s[20:23], s4 offen offset:{(j % 4)*1024}{P(opt.wp[0])} ; @s{c}")
        for i in range(3):
            g = ("s_add_u32 s4, s4, 262144\n" if i == 0 else "") + f"buffer_load_dwordx4 {XR(c,i)}, v{VX3 + i}, s[16:19], s5 offen offset:{i*1024}{P(opt.wp[1])} ; @s{c}"
            if i == 2: g += f"\ns_add_u32 s5, s5, 128\ns_sub_u32 s74, s74, 1\ns_cmp_lg_u32 s74, 0\ns_cbranch_scc1 L_nw{c}\nRAW s_mov_b32 s4, s52\nRAW s_mov_b32 s5, s53\nLABEL L_nw{c}"
            Gs.append(g)
        return Gs
    def regwrite(c):
        return [f"WAITVM s{c}"] + [f"ds_write_b128 v48, {WR(c,j)} offset:{(c % 2)*SLOT + j*1024}" for j in range(8)] + \
               [f"ds_write_b128 v49, {XR(c,i)} offset:{(c % 2)*12288 + i*1024}" for i in range(3)]
    def stage(c):
        buf = c % 3; Gs = []
        if c >= 3: return regstage(c)
        for j in range(8):
            g = [f"s_add_u32 m0, s37, {buf*SLOT}", "s_nop 0"] if j == 0 else [f"s_add_u32 m0, s37, {buf*SLOT + 4096}", "s_add_u32 s4, s4, 262144"] if j == 4 else []
            Gs.append("\n".join(g + [f"buffer_load_dwordx4 v{VW4 + j % 4}, s[20:23], s4 offen offset:{(j % 4)*1024}{P(opt.wp[0])} lds ; @s{c}"]))
        for i in range(3):
            g = [f"s_add_u32 m0, s55, {XS + buf*12288}", "s_add_u32 s4, s4, 262144"] if i == 0 else []
            g += [f"buffer_load_dwordx4 v{VX3 + i}, s[16:19], s5 offen offset:{i*1024}{P(opt.wp[1])} lds ; @s{c}"]
            if i == 2: g += ["s_add_u32 s5, s5, 128", "s_sub_u32 s74, s74, 1", f"s_cbranch_scc0 L_nw{c}", ]
            Gs.append("\n".join(g))
        Gs[-1] = Gs[-1].replace(f"s_sub_u32 s74, s74, 1\ns_cbranch_scc0 L_nw{c}", f"s_sub_u32 s74, s74, 1\ns_cmp_lg_u32 s74, 0\ns_cbranch_scc1 L_nw{c}\nRAW s_mov_b32 s4, s52\nRAW s_mov_b32 s5, s53\nLABEL L_nw{c}")
        return Gs
    stamp(a, 'ka', opt)
    wtouch = [x.strip() for x in """s_lshr_b32 s3, s2, 3
            s_lshl_b32 s3, s3, 2
            s_add_u32 s3, s3, s28
            s_mul_i32 s3, s3, 9216
            s_mul_i32 s47, s30, 1179648
            v_lshlrev_b32 v24, 7, v1
            v_add_u32 v24, s3, v24
            v_add_u32 v25, 8192, v24
            v_cmp_gt_u32 s[70:71], 8, v1
            v_cndmask_b32 v25, -1, v25, s[70:71]""".split("\n")]
    wtouch = ["\n".join(wtouch + ["buffer_load_dword v23, v24, s[60:63], s47 offen ; @junk"]), "s_mul_i32 s47, s30, 1179648\nbuffer_load_dword v23, v25, s[60:63], s47 offen ; @junk"]
    if opt.wot is not None: srd(a, 60, "s76", "s77", 4718592)
    if opt.wot == 'a': emit(a, wtouch)
    emit(a, stage(0))
    if opt.kvtlb:
        a.e(f"""s_mov_b32 s10, {1 << 26}
                s_mov_b32 s11, 0x20000
                s_mov_b32 s14, {1 << 26}
                s_mov_b32 s15, 0x20000
                s_lshl_b32 s3, s31, 5
                s_add_u32 s3, s3, s33
                s_add_u32 s3, s3, s7
                s_lshl_b32 s3, s3, 18
                v_and_b32 v24, 3, v1
                v_lshlrev_b32 v24, 16, v24
                buffer_load_dword v23, v24, s[8:11], s3 offen nt ; @junk
                buffer_load_dword v23, v24, s[12:15], s3 offen nt ; @junk""")
    if opt.wot == 'b': emit(a, wtouch)
    stamp(a, 'i0', opt)
    srd(a, 56, "s80", "s81", 256)
    a.e("""s_lshl_b32 s3, s2, 8
           v_add_u32 v106, s3, v0
           v_min_u32 v106, 1, v106
           v_lshlrev_b32 v106, 12, v106
           v_mov_b32 v107, s75
           buffer_store_dword v107, v106, s[56:59], 0 offen sc1""")
    emit(a, stage(1))
    if opt.wot == 'c': emit(a, wtouch)
    for d in (8, 12): a.e(f"s_mov_b32 s{d+2}, {1 << 26}\ns_mov_b32 s{d+3}, 0x20000")
    srd(a, 24, "s72", "s73", WS_BYTES)
    srd(a, 60, "s76", "s77", 4718592)
    a.e(f"""v_lshrrev_b32 v{H}, 5, v1
            v_and_b32 v{L31}, 31, v1
            v_lshrrev_b32 v{R}, 2, v{L15}
            v_and_b32 v{C4}, 3, v1
            v_lshl_add_u32 v59, v{H}, 3, v{R}
            v_lshlrev_b32 v59, 7, v59
            v_lshrrev_b32 v60, 1, v{R}
            v_lshl_add_u32 v59, v60, 6, v59
            v_lshl_add_u32 v59, v{G1}, 5, v59
            v_lshl_add_u32 v59, v{C4}, 3, v59
            v_add_u32 v{AW}, s37, v59
            v_xor_b32 v{AW+1}, 64, v{AW}
            v_bfe_u32 v60, v1, 1, 3
            v_xor_b32 v60, v60, v{H}
            v_lshlrev_b32 v60, 4, v60
            v_lshl_add_u32 v60, v{L31}, 7, v60
            v_add_u32 v{AX}, {XS}, v60""")
    for s in range(1, 4): a.e(f"v_xor_b32 v{AX+s}, {32*s}, v{AX}")
    a.e(f"""s_lshl_b32 s3, s28, 2
            s_add_u32 s3, s3, {TOP + 3072}
            v_mov_b32 v{VFO}, s3
            v_xor_b32 v{VFP}, 4, v{VFO}
            v_mov_b32 v61, 0
            ds_write_b32 v{VFO}, v61
            ds_write_b32 v{VFO}, v61 offset:16
            s_mov_b32 s44, 0
            s_mov_b32 s45, 0""")
    a.e(f"""v_lshlrev_b32 v49, 4, v1
            v_add_u32 v48, s37, v49
            s_add_u32 s3, s55, {XS}
            v_add_u32 v49, s3, v49
            s_lshl_b32 s54, s28, 13
            s_add_u32 s54, s54, {SV}""")
    def frag_reads(c, s, F):
        buf = c if c < 3 else c % 2
        L = [f"ds_read_b64_tr_b16 {vr(F + db*4 + k*2, 2)}, v{AW+db} offset:{buf*SLOT + (16*s + 4*k) * 128}" for db in range(2) for k in range(2)]
        return L + [f"ds_read_b128 {vr(F + 8 + qb*4, 4)}, v{AX+s} offset:{buf*12288 + qb*4096}" for qb in range(3)]
    setup = f"""v_lshlrev_b32 v26, 8, v{G}
            v_xor_b32 v27, v{L15}, v{G}
            v_lshl_add_u32 v{VOFFK}, v27, 4, v26
            v_xor_b32 v{VOFFK+1}, 64, v{VOFFK}
            v_xor_b32 v{VOFFK+2}, 128, v{VOFFK}
            v_xor_b32 v{VOFFK+3}, 192, v{VOFFK}
            v_lshlrev_b32 v27, 2, v{G}
            v_xor_b32 v27, v{L15}, v27
            v_lshl_add_u32 v{VOFFV}, v27, 4, v26
            s_lshl_b32 s3, s6, 13
            s_add_u32 s33, s33, s7
            s_lshl_b32 s34, s31, 5
            s_add_u32 s34, s34, s33
            s_lshl_b32 s34, s34, 18
            s_add_u32 s34, s34, s3"""
    if opt.rot:
        setup += """
            s_lshl_b32 s3, s2, 2
            s_add_u32 s3, s3, s7
            s_mul_i32 s3, s3, 0x1e3779b1
            s_lshr_b32 s47, s3, 15
            s_xor_b32 s3, s3, s47
            s_mul_i32 s3, s3, 0x2c1b3c6d
            s_lshr_b32 s3, s3, 20
            s_and_b32 s3, s3, 15
            s_lshl_b32 s35, s3, 14"""
    else: setup += "\ns_mov_b32 s35, 0"
    setup += f"""
            s_mov_b32 s36, s35
            s_mov_b32 s69, s35
            v_lshlrev_b32 v50, 7, v1
            v_xor_b32 v27, v{H}, v{L15}
            v_lshlrev_b32 v27, 4, v27
            v_lshl_add_u32 v27, v{L31}, 8, v27
            v_add_u32 v{VKA}, s37, v27"""
    for s in range(1, 8): setup += f"\nv_xor_b32 v{VKA+s}, {32*s}, v{VKA}"
    setup += f"""
            v_lshl_add_u32 v28, v{H}, 2, v{R}
            v_lshlrev_b32 v28, 8, v28
            v_lshl_add_u32 v28, v{R}, 6, v28
            v_lshl_add_u32 v28, v{G1}, 5, v28
            v_lshl_add_u32 v28, v{C4}, 3, v28
            s_lshl_b32 s47, s6, 7
            v_xor_b32 v28, s47, v28
            v_add_u32 v{VVA}, s37, v28"""
    for db in range(1, 4): setup += f"\nv_xor_b32 v{VVA+db}, {64*db}, v{VVA}"
    setup += "\nv_add_u32 v28, s54, v28"
    for db in range(1, 4): setup += f"\nv_xor_b32 v{28+db}, {64*db}, v28"
    setup += f"\ns_mov_b32 s42, {f2u(CSC):#x}\ns_mov_b32 s43, {f2u(THR_LOG2):#x}"
    for qb in range(3): setup += f"\nv_mov_b32 v{LSUM+qb}, 0"
    setup = [x.strip() for x in setup.split("\n")]
    VO, VL16, AD, VOL = 93, 102, 103, 107
    def vo_calc(dst, rev):
        L = []
        for i in range(9):
            L += [f"v_add_u32 v80, {64*i}, v1", "v_mul_u32_u24 v28, 58255, v80", "v_lshrrev_b32 v28, 20, v28", "v_mul_u32_u24 v83, 18, v28",
                  "v_sub_u32 v83, v80, v83", "v_xor_b32 v29, 1, v83", "v_sub_u32 v29, 17, v29"]
            if rev == "vcc": L += ["v_cndmask_b32 v29, v83, v29, s[70:71]"]
            L += ["v_mul_u32_u24 v28, 1152, v28", f"v_lshl_add_u32 v{dst+i}, v29, 4, v28"]
        return L
    setup2 = ["s_cmp_eq_u32 s7, 1\ns_cselect_b64 s[70:71], -1, 0"] + vo_calc(VO, "vcc") + [x.strip() for x in f"""v_lshlrev_b32 v{VL16}, 4, v1
            v_lshlrev_b32 v80, 4, v{H}
            v_lshl_add_u32 v80, v{G1}, 2, v80
            v_add_u32 v80, v80, v{R}
            v_mul_u32_u24 v80, 288, v80
            v_lshl_add_u32 v80, v{C4}, 3, v80
            s_mul_i32 s3, s7, 18432
            v_add_u32 v{AD+1}, s3, v80
            v_add_u32 v{AD}, {SB[0]}, v{AD+1}
            v_lshlrev_b32 v{VOL}, 10, v{G1}
            v_lshl_add_u32 v{VOL}, v{H}, 8, v{VOL}
            v_lshl_add_u32 v{VOL}, v{L15}, 4, v{VOL}
            v_mov_b32 v108, 0
            s_mul_i32 s67, s30, 1179648
            s_mul_i32 s3, s32, 288
            s_add_u32 s64, s67, s3              ; wo: rows of the octet, columns 144p..
            s_lshl_b32 s39, s29, 3
            s_add_u32 s39, s39, s31""".split("\n")]
    setW = ["s_lshl_b32 s66, s32, 1", "s_mul_i32 s65, s28, 9216", f"s_mul_i32 s68, s28, {32*1152}", "s_add_u32 s68, s68, s64"]
    def psync(pre_wait=True):
        psync.n += 1; n = psync.n
        a.e(f"""s_add_u32 s44, s44, 1
                v_mov_b32 v{VD}, s44
                ds_write_b32 v{VFO}, v{VD}
                s_mov_b32 s47, 0x400000""")
        a.label(f"L_ps{n}")
        a.e(f"""ds_read_b32 v{VD}, v{VFP}
                s_sub_u32 s47, s47, 1
                s_waitcnt lgkmcnt(0)
                v_readfirstlane_b32 s3, v{VD}
                s_cmp_eq_u32 s47, 0
                s_cselect_b32 s3, s44, s3
                s_cmp_lt_u32 s3, s44
                s_cbranch_scc1 L_ps{n}""")
    psync.n = 0
    def other_pair(name, word, val, T=84):
        a.e(f"v_mov_b32 v{T+2}, {TOP + 3072 + word}\ns_mov_b32 s47, 0x400000")
        a.label(name)
        a.e(f"""s_sleep 2
                ds_read_b64 v[{T}:{T+1}], v{T+2}
                s_sub_u32 s47, s47, 1
                s_waitcnt lgkmcnt(0)
                v_min_u32 v{T}, v{T}, v{T+1}
                v_readfirstlane_b32 s3, v{T}
                s_cmp_eq_u32 s47, 0
                s_cselect_b32 s3, {val}, s3
                s_cmp_lt_u32 s3, {val}
                s_cbranch_scc1 {name}""")

    ACC = 112
    def qwrite(blocks, dreg, area, extra=()):
        a.e(f"""v_xor_b32 v55, {dreg}, v{L15}
                v_lshlrev_b32 v55, 4, v55
                v_lshl_add_u32 v55, v{L31}, 8, v55
                v_lshl_add_u32 v55, v{H}, 3, v55
                v_add_u32 v55, {area}, v55
                v_mov_b32 v62, s42""")
        for db in range(blocks):
            for i in range(4):
                a.e(f"v_xor_b32 v54, {(4*db + i)*16}, v55")
                if extra: emit(a, [extra[4*db + i]])
                for qb in range(3):
                    r = ACC + (db*3 + qb)*16 + 4*i; tq = 56 + 2 * qb
                    a.e(f"""v_pk_mul_f32 v[{r}:{r+1}], v[{r}:{r+1}], v[62:63] op_sel_hi:[1,0]
                            v_pk_mul_f32 v[{r+2}:{r+3}], v[{r+2}:{r+3}], v[62:63] op_sel_hi:[1,0]
                            v_cvt_pk_bf16_f32 v{tq}, v{r}, v{r+1}
                            v_cvt_pk_bf16_f32 v{tq+1}, v{r+2}, v{r+3}
                            ds_write_b64 v54, v[{tq}:{tq+1}] offset:{qb*8192}""")
    def qread(area):
        a.e(f"s_sub_u32 s3, {area}, s37")
        for s in range(8): a.e(f"v_add_u32 v{32+s}, s3, v{VKA+s}")
        for qb in range(3):
            for s in range(8): a.e(f"ds_read_b128 {vr(Qreg(qb,s),4)}, v{32+s} offset:{qb*8192}")
    FA, FB = 208, 228
    a.wait(vmtags=["s0"], lg0=True); a.e("s_barrier")
    stamp(a, "q0", opt)
    emit(a, frag_reads(0, 0, FA))
    sl = [[] for _ in range(216 + 24)]
    spread(sl, [x for c in range(2, 9 - opt.rlate) for x in stage(c)], 0, opt.rspan)
    spread(sl, setup, 6, 64)
    for c in range(9):
        for s in range(4):
            F, nF = (FA, FB) if s % 2 == 0 else (FB, FA)
            k0 = (c*4 + s) * 6
            if s == 3:
                a.wait(vmtags=[f"s{c+1}"] if c < 2 else [], lg0=True); a.e("s_barrier")
                stamp(a, f"c{c}", opt)
                if 1 <= c <= 6: spread(sl, regwrite(c + 2), k0 + (opt.wdel if c == 1 else 1), k0 + 22)
                if c == 2: spread(sl, dma_unit(0, opt) + [x for k in range(9 - opt.rlate, 9) for x in stage(k)] + dma_unit(1, opt), max(k0, opt.rspan), max(k0, opt.rspan) + opt.kspan)
                if c == 7: spread(sl, dma_unit(2, opt), k0, k0 + 18)
                for u in opt.touch.get(c, []):
                    sl[k0 + 20].append(f"s_add_u32 s47, s69, {(u // 2) * 16384}\ns_and_b32 s47, s47, 0x3ffff\ns_add_u32 s47, s47, s34\n" +
                                       f"buffer_load_dword v51, v50, {'s[8:11]' if u % 2 == 0 else 's[12:15]'}, s47 offen nt ; @junk")
                if opt.wot == c: spread(sl, wtouch, k0 + 12, k0 + 22)
                if opt.ctouch == c:
                    sl[k0 + 6].append("s_getpc_b64 s[70:71]\nLABEL L_pc\nv_lshlrev_b32 v24, 7, v0\nv_add_u32 v24, L_qcode-L_pc, v24\nv_min_u32 v24, L_end-L_pc-4, v24\nglobal_load_dword v23, v24, s[70:71] ; @junk")
            rd = (frag_reads(c + 1, 0, nF) if c < 8 else []) if s == 3 else frag_reads(c, s + 1, nF)
            if opt.qlev:
                for k, x in enumerate(rd): sl[k0 + (0, 0, 1, 1, 2, 3, 4)[k]].insert(0, x)
                a.wait(lgregs=regs_of(vr(F, 20)))
            else: emit(a, rd)
            i = 0
            for db in range(2):
                for qb in range(3):
                    d = vr(ACC + (db*3 + qb)*16, 16)
                    emit(a, [f"v_mfma_f32_32x32x16_bf16 {d}, {vr(F+db*4,4)}, {vr(F+8+qb*4,4)}, " + ("0" if (c == 0 and s == 0) else d)] + sl[k0 + i]); i += 1
    assert not any(sl[216:])
    a.label("L_qcode")
    a.e("s_lshl_b32 s3, s6, 3\ns_cmp_eq_u32 s7, 1\ns_cbranch_scc1 L_qy")
    sv = save(a)
    qwrite(2, "s3", XS, dma_unit(3, opt))
    a.e("s_waitcnt lgkmcnt(0)\ns_barrier")
    qread(XS)
    a.e("s_waitcnt lgkmcnt(0)\ns_barrier\ns_branch L_qdone")
    a.label("L_qy"); load(a, sv)
    emit(a, dma_unit(3, opt))
    a.e("s_barrier\ns_barrier\ns_lshl_b32 s3, s6, 3")
    qwrite(2, "s3", XS)
    a.e("s_waitcnt lgkmcnt(0)"); psync()
    qread(XS)
    a.label("L_qdone")
    stamp(a, "qx", opt)
    a.wait(vmtags=["u0"], lg0=True)
    emit(a, kreads(0))
    stamp(a, "k0", opt)
    a.e(f"""v_mov_b32 v26, {TOP + 3072 + 16}
            s_cmp_eq_u32 s7, 1
            s_cselect_b32 s50, {round(opt.thr1 * 16)}, 0
            s_cselect_b32 s38, {round((opt.thr0 + opt.thr1) * 16)}, -1""")
    if not opt.hold: a.e("s_lshl_b32 s50, s7, 1\ns_add_u32 s50, s50, 2\ns_sub_u32 s50, s50, s29")
    if opt.acct: a.e(f"s_mov_b64 s[98:99], s[{STB}:{STB+1}]\ns_mov_b64 s[100:101], s[{STB}:{STB+1}]\ns_mov_b64 s[92:93], s[{STB}:{STB+1}]")
    def wpieces(tag, head, rows, lds, voreg):
        Gs = []
        for i in range(9):
            g = [f"s_add_u32 s4, s66, {head}", "s_and_b32 s4, s4, 7", f"s_mul_i32 s4, s4, {128*1152}", "s_add_u32 s4, s4, s68",
                 f"s_add_u32 s4, s4, {rows*1152}"] if i == 0 else []
            g += [f"s_add_u32 m0, s65, {lds + i*1024}", f"buffer_load_dwordx4 v{voreg+i}, s[60:63], s4 offen{opt.wopol} lds ; @{tag}"]
            Gs.append("\n".join(g))
        return Gs
    HEAD = (0, 2, 4, 6, 1, 3, 5, 7)
    NX = opt.nx
    BUFOF = [st % 2 for st in range(NX + 2)] + [2, 3]
    while len(BUFOF) < 8: BUFOF.append(BUFOF[len(BUFOF) - 4])
    wS = lambda st: wpieces(f"w{st}", HEAD[st], 0, SB[BUFOF[st]], VO)
    wX = lambda st, VOR: wpieces(f"w{st}", HEAD[st], 0, SB[BUFOF[st]], VO) + wpieces(f"w{st}", HEAD[st], 64, SB[BUFOF[st]] + 18432, VOR)
    carry = tile_body(a, opt, 0, [])
    carry = tile_body(a, opt, 1, carry, extra=[(setup2 + setW, 0, 41)])
    carry1 = [[x.replace('L_sk1_', 'L_sk4_') for x in y] for y in carry]
    if opt.unroll:
        for t in range(2, 14):
            stamp(a, f'r{t}', opt); carry = tile_body(a, opt, t, carry)
    else:
        stamp(a, "l0", opt)
        a.e("s_mov_b32 s46, 4")
        a.raw(".p2align 6"); a.label("L_tile")
        keep = list(a.vm)
        if not opt.hold: a.e(f"s_cmp_eq_u32 s7, 0\ns_cselect_b32 s3, {2*opt.last[0]}, {2*opt.last[1]}\ns_cmp_gt_u32 s46, 1\ns_cselect_b32 s50, s50, s3")
        if opt.late:
            a.e(f"""s_lshl_b32 s3, s7, 3
                    s_add_u32 s3, s3, s46
                    s_cmp_lg_u32 s3, {opt.late}
                    s_cbranch_scc1 L_nolate
                    s_lshr_b32 s3, s2, 3
                    s_lshl_b32 s3, s3, 1
                    s_add_u32 s3, s3, s6
                    s_mul_i32 s3, s3, 18432
                    v_lshlrev_b32 v84, 7, v1
                    v_add_u32 v84, s3, v84
                    v_add_u32 v85, 8192, v84
                    v_add_u32 v86, 16384, v84
                    v_cmp_gt_u32 vcc, 16, v1
                    v_cndmask_b32 v86, -1, v86, vcc""")
            emit(a, [f"buffer_load_dword v87, v{r}, s[60:63], s67 offen{opt.tpol} ; @junk" for r in (84, 85, 86)])
            a.label("L_nolate")
        if opt.tlb:
            a.e(f"""s_cmp_lg_u32 s46, {opt.tlb}
                    s_cbranch_scc1 L_notlb
                    s_lshl_b32 s3, s39, 2
                    s_add_u32 s4, s3, s30
                    s_mul_i32 s4, s4, {8*24576}
                    v_mov_b32 v84, s4
                    s_add_u32 s4, s4, {8*24576 - 128}
                    v_writelane_b32 v84, s4, 1
                    s_add_u32 s3, s3, s32
                    s_mul_i32 s4, s3, {4*36864}
                    s_add_u32 s4, s4, {WS_P}
                    v_writelane_b32 v84, s4, 2
                    s_add_u32 s4, s4, {4*36864 - 128}
                    v_writelane_b32 v84, s4, 3
                    s_mov_b32 s4, {WS_F + 65536 - 128}
                    v_writelane_b32 v84, s4, 4
                    s_mul_i32 s4, s31, {96*2304}
                    v_mov_b32 v85, s4
                    s_add_u32 s4, s4, {96*2304 - 128}
                    v_writelane_b32 v85, s4, 1
                    s_mov_b64 s[16:17], s[78:79]
                    s_mov_b32 s18, 1769472
                    buffer_load_dword v87, v84, s[24:27], 0 offen nt ; @junk
                    buffer_load_dword v87, v85, s[16:19], 0 offen nt ; @junk""")
            a.label("L_notlb")
        a.vm = keep
        for t in (2, 3, 4): carry = tile_body(a, opt, t, carry)
        assert carry == carry1
        a.e("s_sub_u32 s46, s46, 1\ns_cmp_lg_u32 s46, 0\ns_cbranch_scc1 L_tile")
        for o in a.vm:
            if o.tag and o.tag[0] == "u": o.tag = f"u{int(o.tag[1:]) + 18}"
    stamp(a, "l1", opt)
    raw = lambda L: "\n".join(("LABEL " + y[6:] if y.startswith("LABEL ") else "RAW " + y) for x in L for y in x.split("\n"))
    w0blk = "s_cmp_eq_u32 s7, 1\ns_cbranch_scc1 L_now0\n" + raw([f"""v_mov_b32 v86, {TOP + 3072 + 24}
s_mov_b32 s47, 0x400000
LABEL L_yq
ds_read_b64 v[84:85], v86
s_sub_u32 s47, s47, 1
s_waitcnt lgkmcnt(0)
v_min_u32 v84, v84, v85
s_nop 1
v_readfirstlane_b32 s3, v84
s_nop 1
s_cmp_eq_u32 s47, 0
s_cselect_b32 s3, 1, s3
s_cmp_lt_u32 s3, 1
s_cbranch_scc1 L_yq"""] + [x.replace("buffer_load", "s_nop 0\nbuffer_load") for x in wX(0, VO)]) + "\nLABEL L_now0"
    W0 = lambda t: [([w0blk], opt.w0at[1], opt.w0at[1] + 1)] if opt.w0at and opt.w0at[0] == t else []
    carry = tile_body(a, opt, 14, carry, extra=W0(14))
    xo = lambda k: (k // 8) * SLOT + (k % 8) * 1024
    def send(qb):
        return [f"ds_write_b128 v28, {ar(Oacc(2+i,qb) + 4*g, 4)} offset:{xo((i*3 + qb)*4 + g)}" for i in range(2) for g in range(4)]
    accr = lambda qb: [f"v_accvgpr_read_b32 v{160 + (i*3+qb)*16 + r}, a{Oacc(i,qb) + r}" for i in range(2) for r in range(16)]
    pre = ["buffer_load_dword v106, v108, s[56:59], 0 offen sc1 ; @tag",
           f"v_add_u32 v28, s37, v{VL16}", "s_lshl_b32 s3, s6, 14\ns_sub_u32 s3, 8192, s3", "v_add_u32 v29, s3, v28",
           f"s_mul_i32 s3, s28, 768\ns_add_u32 s3, s3, {TOP}", f"v_lshlrev_b32 v30, 3, v{L31}", "v_add_u32 v30, s3, v30",
           f"s_xor_b32 s3, s28, 1\ns_mul_i32 s3, s3, 768\ns_add_u32 s3, s3, {TOP}", f"v_lshlrev_b32 v31, 3, v{L31}", "v_add_u32 v31, s3, v31"]
    team = "v_and_b32 v13, 3, v1\nv_lshlrev_b32 v13, 10, v13\nv_and_b32 v14, 4, v1\nv_add_u32 v13, v13, v14"
    askX = [f"s_andn2_b32 s71, s2, 24\ns_lshl_b32 s71, s71, 7\ns_add_u32 s69, s71, {WS_F}"] + team.split("\n") + ["buffer_load_dword v12, v13, s[24:27], s69 offen sc1"]
    carry = tile_body(a, opt, 15, carry, extra=[(pre, 8, 16), (askX, 28, 34), (send(0), 34, 48)] + W0(15) + ([(accr(0), 33, 44)] if opt.accearly else []))
    sl = [[] for _ in range(8)]
    carry = [x for y in carry for x in y]
    cut = max([i + 1 for i, x in enumerate(carry) if x.startswith(f"v_cvt_pk_bf16_f32 v{Sreg(2,3)},")] + [len(carry) - 16, 0])
    emit(a, carry[:cut])
    spread(sl, carry[cut:], 0, 3)
    st = []
    for qb in range(3): st += [f"v_mov_b32 v{3+2*qb}, v{LSUM+qb}", f"v_mov_b32 v{2+2*qb}, v{NM+16*qb}"]
    for qb in range(3): st += [f"v_permlane32_swap_b32 v{LSUM+qb}, v{3+2*qb}"]
    for qb in range(3): st += [f"v_add_f32 v{3+2*qb}, v{LSUM+qb}, v{3+2*qb}", f"ds_write_b64 v30, v[{2+2*qb}:{3+2*qb}] offset:{qb*256}"]
    spread(sl, st + send(1), 3, 8)
    for m, f in zip(pv(2, False), sl): emit(a, [m] + f)
    stamp(a, "t15", opt)
    emit(a, accr(1)[:12] + send(2))
    emit(a, ([] if opt.accearly else accr(0)) + accr(1)[12:] + accr(2))
    a.e("s_mov_b32 s4, 0x100000")
    a.label("L_tag")
    a.e("""s_waitcnt vmcnt(0)
           v_readfirstlane_b32 s75, v106
           s_cmp_lg_u32 s75, 0
           s_cbranch_scc1 L_tag_ok
           buffer_load_dword v106, v108, s[56:59], 0 offen sc1 ; @junk
           s_sub_u32 s4, s4, 1
           s_cmp_lg_u32 s4, 0
           s_cbranch_scc1 L_tag""")
    a.label("L_tag_ok"); a.vm = []
    a.e(f"""s_lshl_b32 s3, s39, 5
            s_add_u32 s3, s3, s33
            s_mul_i32 s52, s3, 24576
            s_mul_i32 s3, s6, 12288
            s_add_u32 s52, s52, s3
            s_waitcnt lgkmcnt(0)""")
    ACC, WF, OF = 112, 16, 0
    def ask(base, lanes):
        a.e(f"s_add_u32 s69, {base}, {WS_F}\n{lanes}\nbuffer_load_dword v12, v13, s[24:27], s69 offen sc1")
    def check(tag):
        a.e("s_mov_b32 s4, 0x100000")
        a.label(f"L_poll{tag}")
        a.e(f"""s_waitcnt vmcnt(0)
                v_cmp_ne_u32 vcc, s75, v12
                s_cbranch_vccz L_got{tag}
                s_sleep 1
                buffer_load_dword v12, v13, s[24:27], s69 offen sc1
                s_sub_u32 s4, s4, 1
                s_cmp_lg_u32 s4, 0
                s_cbranch_scc1 L_poll{tag}""")
        a.label(f"L_got{tag}")
        a.e("s_waitcnt vmcnt(0)")
    def wreads(buf, rows, F):
        reg, boff = (AD, AD + 1, 220, 221)[buf], 0
        return [f"ds_read_b64_tr_b16 {vr(F + nb*4 + 2*k, 2)}, v{reg} offset:{boff + (rows + 8*k) * 288 + 32*nb}" for nb in range(9) for k in range(2)]
    def oload(tag, head, db0, nks, dst):
        Gs = []
        for kl in range(nks):
            for j in range(3):
                g = [f"s_add_u32 s47, s66, {head}", "s_and_b32 s47, s47, 7", "s_mul_i32 s47, s47, 24576", "s_add_u32 s47, s47, s37"] + \
                    ([f"s_add_u32 s47, s47, {db0}"] if db0 else []) if kl + j == 0 else ["s_add_u32 s47, s47, 6144"] if j == 0 else []
                Gs.append("\n".join(g + [f"buffer_load_dwordx4 {ar(dst + (kl*3+j)*4, 4)}, v{VL16}, s[24:27], s47 offen offset:{j*1024} sc1 ; @{tag}"]))
        return Gs
    def kstep(F, O, zero, reads, jobs):
        ms = [f"v_mfma_f32_16x16x32_bf16 {vr(ACC + (nb*3+j)*4, 4)}, {vr(F+nb*4,4)}, {ar(O+j*4,4)}, " + ("0" if zero else vr(ACC + (nb*3+j)*4, 4))
              for nb in range(9) for j in range(3)]
        sl = [[] for _ in range(27)]
        spread(sl, reads, 0, 20); spread(sl, jobs, 0, 27)
        a.e("s_waitcnt lgkmcnt(0)")
        for m, f in zip(ms, sl): emit(a, [m] + f)
        return ms
    team = "v_and_b32 v13, 3, v1\nv_lshlrev_b32 v13, 10, v13\nv_and_b32 v14, 4, v1\nv_add_u32 v13, v13, v14"
    a.e(f"""s_lshl_b32 s3, s2, 7
            s_lshl_b32 s4, s28, 2
            s_add_u32 s70, s3, s4
            s_add_u32 s70, s70, {WS_F}
            s_lshl_b32 s3, s39, 2
            s_add_u32 s3, s3, s30
            s_mul_i32 s37, s3, {8*24576}
            s_mul_i32 s4, s6, 3072
            s_add_u32 s37, s37, s4
            s_mul_i32 s4, s7, 12288
            s_add_u32 s37, s37, s4
            s_mov_b32 s45, 0
            s_cmp_eq_u32 s7, 0
            s_cbranch_scc1 L_noearly
            v_cmp_ne_u32 vcc, s75, v12
            s_cbranch_vccnz L_noearly
            s_mov_b32 s45, 1""")
    for st in range(NX, 4): emit(a, oload(f"o{st}", HEAD[st], 0, 2, 24*st))
    a.label("L_noearly"); a.vm = []
    a.e(f"v_sub_u32 v27, v29, v{VL16}\nv_add_u32 v27, v27, v{VOL}")
    psync()
    stamp(a, "c_bar", opt)
    for qb in range(3): a.e(f"ds_read_b64 v[{8+2*qb}:{9+2*qb}], v31 offset:{qb*256}")
    RC = (32, 48, 64, 112, 128, 144)
    def recv(blk):
        for g in range(4): a.e(f"ds_read_b128 {vr(RC[blk]+4*g,4)}, v29 offset:{xo(blk*4 + g)}")
    recv(0); recv(1)
    SC = 16
    for qb in range(3):
        pn, pl, on, ol = 8 + 2*qb, 9 + 2*qb, 2 + 2*qb, 3 + 2*qb
        a.auto(f"v_min_f32 v22, v{on}, v{pn}")
        a.e(f"""v_sub_f32 v23, v22, v{on}
                v_sub_f32 v24, v22, v{pn}
                v_exp_f32 v23, v23
                v_exp_f32 v24, v24
                v_mul_f32 v{ol}, v{ol}, v23
                v_fmac_f32 v{ol}, v{pl}, v24
                v_rcp_f32 v{ol}, v{ol}
                v_mul_f32 v{SC+2*qb}, v23, v{ol}
                v_mul_f32 v{SC+2*qb+1}, v24, v{ol}""")
    recv(2); recv(3); recv(4); recv(5)
    for blk in range(6):
        i, qb = divmod(blk, 3)
        K = 160 + blk*16; Rr = RC[blk]
        a.wait(lgregs=regs_of(vr(Rr, 16)))
        for r in range(0, 16, 2):
            a.e(f"v_pk_mul_f32 v[{Rr+r}:{Rr+r+1}], v[{Rr+r}:{Rr+r+1}], v[{SC+2*qb}:{SC+2*qb+1}] op_sel:[0,1] op_sel_hi:[1,1]")
        for r in range(0, 16, 2):
            a.e(f"v_pk_fma_f32 v[{K+r}:{K+r+1}], v[{K+r}:{K+r+1}], v[{SC+2*qb}:{SC+2*qb+1}], v[{Rr+r}:{Rr+r+1}] op_sel_hi:[1,0,1]")
        for j in range(8):
            a.e(f"v_cvt_pk_bf16_f32 v{K+8*(j//4)+j%4}, v{K+2*j}, v{K+2*j+1}")
        a.e(f"s_add_u32 s47, s52, {WS_O + (i*6 + 2*qb)*1024}")
        for s in range(2):
            a.e(f"buffer_store_dwordx4 {vr(K+8*s,4)}, v{VOL}, s[24:27], s47 offen offset:{512*s} sc1")
            a.e(f"ds_write_b128 v27, {vr(K+8*s,4)} offset:{xo(i*6 + 2*qb) + 512*s}")
    stamp(a, "comb", opt)
    a.e("v_mov_b32 v14, s75\ns_cmp_eq_u32 s7, 1\ns_cbranch_scc1 L_tailY")
    stT = save(a)
    if not opt.w0at: other_pair("L_yq", 24, 1)
    if NX == 0:
        VOR = 224
        a.e("s_waitcnt vmcnt(0)\nbuffer_store_dword v14, v108, s[24:27], s70 offen sc1")
        emit(a, vo_calc(VOR, "rev") + wX(0, VOR))
        a.e("s_waitcnt lgkmcnt(0)"); psync()
        emit(a, wX(1, VOR))
        ask("s71", team); check("A"); stamp(a, "chkA", opt)
    else:
        if not opt.w0at: emit(a, wX(0, VO))
        a.e(f"""s_waitcnt vmcnt(0)
                buffer_store_dword v14, v108, s[24:27], s70 offen sc1
                v_add_u32 v3, 8192, v{VL16}
                s_waitcnt lgkmcnt(0)""")
        psync()
        a.e("s_cmp_eq_u32 s6, 1\ns_cbranch_scc1 L_x1")
        sv = save(a)
        for qh in range(2):
            if qh: a.label("L_x1"); load(a, sv)
            for db in range(4):
                for j in range(3): a.e(f"ds_read_b128 {ar(192 + (db*3+j)*4, 4)}, v{3 if db < 2 else VL16} offset:{xo((db % 2)*6 + 3*qh + j)}")
            if qh == 0: a.e("s_branch L_x2")
        a.label("L_x2")
        VOR = 224
        emit(a, vo_calc(VOR, "rev"))
        a.wait(vmtags=["w0"], lg0=True); psync()
        emit(a, wreads(0, 0, WF))
        RS = (192, 0, 48 if NX == 4 else 192, 192)
        wN = lambda st: wX(st, VO if st < NX else VOR)
        xl = lambda st: oload(f"x{st}", HEAD[st], 0, 4, RS[st])
        ask("s71", team)
        for st in range(NX):
            b = BUFOF[st]
            w = wN(1) if st == 0 else []
            if st >= 1: a.wait(vmtags=[f"x{st}"])
            kstep(WF, RS[st], st == 0, wreads(b, 32, WF + 36), w[:9])
            kstep(WF + 36, RS[st] + 12, False, wreads(b, 64, WF), w[9:])
            j = []
            if st == 0:
                check("A"); stamp(a, "chkA", opt)
                for k in range(1, NX):
                    if RS[k] != 192: j += xl(k)
            kstep(WF, RS[st] + 24, False, wreads(b, 96, WF + 36), j)
            a.wait(vmtags=[f"w{st+1}"], lg0=True); psync()
            kstep(WF + 36, RS[st] + 36, False, wreads(BUFOF[st + 1], 0, WF) if st + 1 < NX else [], wN(st + 2))
            if st == 0:
                for k in range(1, NX):
                    if RS[k] == 192: emit(a, xl(k))
    for st in range(NX, 4): emit(a, oload(f"o{st}", HEAD[st], 0, 2, 24*st))
    a.e("s_waitcnt vmcnt(0)\ns_branch L_join")
    a.label("L_tailY"); load(a, stT)
    a.e("s_cmp_eq_u32 s45, 1\ns_cbranch_scc1 L_hadearly")
    sv = save(a)
    ask("s71", team); check("Y")
    a.vm = list(sv[2])
    for st in range(NX, 4): emit(a, oload(f"o{st}", HEAD[st], 0, 2, 24*st))
    a.label("L_hadearly")
    a.e("s_waitcnt lgkmcnt(0)")
    a.label("L_join"); a.lg = []
    a.e(f"""s_add_u32 s71, s71, 8
            v_add_u32 v220, {SB[2] - SB[1]}, v{AD+1}
            v_add_u32 v221, {SB[3] - SB[1]}, v{AD+1}
            s_mul_i32 s3, s7, -8192
            s_add_u32 s3, s3, {YB + 8192}
            v_add_u32 v2, s3, v{VL16}
            v_mov_b32 v15, s75
            s_barrier""")
    stamp(a, "join", opt)
    emit(a, wreads(BUFOF[NX], 0, WF))
    a.e("s_cmp_eq_u32 s6, 1\ns_cbranch_scc1 L_own1")
    sv = save(a)
    for qh in range(2):
        if qh: a.label("L_own1"); load(a, sv)
        for kl in range(2):
            for j in range(3): a.e(f"ds_read_b128 {ar(96 + (kl*3+j)*4, 4)}, v2 offset:{xo(kl*6 + 3*qh + j)}")
        if qh == 0: a.e("s_branch L_own2")
    a.label("L_own2")
    a.wait(vmtags=[f"o{NX}"])
    a.e("s_cmp_eq_u32 s7, 1\ns_cbranch_scc1 L_fy")
    sv = save(a)
    kstep(WF, 24*NX, NX == 0, wreads(BUFOF[NX], 32, WF + 36), [] if opt.plan2 else wS(NX + 2))
    a.e("s_branch L_fx")
    a.label("L_fy"); load(a, sv)
    kstep(WF, 24*NX, True, wreads(BUFOF[NX], 32, WF + 36), [] if opt.plan2 else wS(NX + 2))
    a.e("s_waitcnt vmcnt(0)\nbuffer_store_dword v15, v108, s[24:27], s70 offen sc1 ; @junk")
    a.label("L_fx"); a.vm = [o for o in a.vm if o.tag == f"w{NX+2}"]
    A = max(NX, min(opt.askat, 4))
    oy = lambda k: oload(f"o{k}", HEAD[k], 0, 2, 24*k)
    plan = {}
    for k in range(NX + 4, 8): plan.setdefault((k - 4, 1) if k - 4 > NX else (NX + 1, 0), []).append(wS(k))
    plan.setdefault((NX, 1), []).append(wS(NX + 3))
    if A <= 3:
        for i, k in enumerate((5, 6, 7)): plan.setdefault((A + (i + 1) // 2, (i + 1) % 2), []).insert(0, oy(k))
    if opt.plan2:
        assert NX == 1 and A == 3
        plan = {(1, 1): [wS(3)], (2, 0): [wS(4)], (2, 1): [wS(5)], (3, 1): [oy(5), oy(6)[:3]], (4, 0): [oy(6)[3:], oy(7)], (4, 1): [wS(6)], (5, 0): [wS(7)]}
    job = lambda st, kl: [x for y in plan.get((st, kl), []) for x in y]
    for st in range(NX, 8):
        stamp(a, f"s{st}", opt)
        if st > NX:
            if st == A: ask("s71", team)
            if st >= 5: a.wait(vmtags=[f"o{st}"])
            kstep(WF, 24*st, False, wreads(BUFOF[st], 32, WF + 36), job(st, 0))
        elif st == A: ask("s71", team)
        if st == A and A <= 3: check("B"); stamp(a, "chk1", opt)
        if st < 7:
            a.wait(vmtags=[f"w{st+1}"], lg0=True); a.e("s_barrier")
            kstep(WF + 36, 24*st + 12, False, wreads(BUFOF[st + 1], 0, WF), job(st, 1))
        if st == A and A == 4:
            check("B"); stamp(a, "chk1", opt); emit(a, oy(5) + oy(6) + oy(7))
    a.e(f"""s_lshl_b32 s3, s28, 14
            v_add_u32 v13, s3, v{VL16}
            v_xor_b32 v14, 32768, v13
            s_lshl_b32 s52, s39, 2
            s_add_u32 s52, s52, s32
            s_lshl_b32 s53, s52, 2
            s_add_u32 s53, s53, s30
            s_mul_i32 s53, s53, 36864
            s_mul_i32 s3, s28, 9216
            s_add_u32 s53, s53, s3
            s_add_u32 s47, s53, {WS_P}
            s_waitcnt lgkmcnt(0)
            s_barrier""")
    F, O = WF + 36, 180
    T = lambda nb, j: ACC + (nb*3+j)*4
    ms = [f"v_mfma_f32_16x16x32_bf16 {vr(T(nb,j), 4)}, {vr(F+nb*4,4)}, {ar(O+j*4,4)}, {vr(T(nb,j), 4)}" for nb in (8, 7, 6, 5, 4, 0, 1, 2, 3) for j in range(3)]
    snd = [f"ds_write_b128 v13, {vr(T(nb,j),4)} offset:{((8-nb)*3+j)*1024}" for nb in range(8, 3, -1) for j in range(3)]
    emit(a, ms[:6])
    for k in range(15): emit(a, [ms[6 + k], snd[k]])
    emit(a, ms[21:])
    stamp(a, "gend", opt)
    a.e("s_waitcnt lgkmcnt(0)\ns_barrier")
    order = [(k, j) for k in range(3) for j in range(3)]
    for k, j in order:
        for nb in range(2*k, min(2*k + 2, 5)): a.e(f"ds_read_b128 {vr(WF + (nb*3+j)*4, 4)}, v14 offset:{(nb*3+j)*1024}")
    for k, j in order:
        r = T(2*k, j)
        for h, nb in enumerate(range(2*k, min(2*k + 2, 5))):
            t, q = T(nb, j), WF + (nb*3+j)*4
            a.wait(lgregs=regs_of(vr(q, 4)))
            a.e(f"v_pk_add_f32 v[{t}:{t+1}], v[{t}:{t+1}], v[{q}:{q+1}]\nv_pk_add_f32 v[{t+2}:{t+3}], v[{t+2}:{t+3}], v[{q+2}:{q+3}]")
            a.e(f"v_cvt_pk_bf16_f32 v{r+2*h}, v{t}, v{t+1}\nv_cvt_pk_bf16_f32 v{r+2*h+1}, v{t+2}, v{t+3}")
        if k < 2: a.e(f"buffer_store_dwordx4 {vr(r,4)}, v{VL16}, s[24:27], s47 offen offset:{j*1024} sc1")
        else: a.e(f"buffer_store_dwordx2 {vr(r,2)}, v{VL16}, s[24:27], s47 offen offset:{j*1024} sc1")
        if j == 2 and k < 2: a.e("s_add_u32 s47, s47, 3072")
    a.e(f"""s_add_u32 s70, s70, 32768
            s_andn2_b32 s71, s2, 3
            s_lshl_b32 s71, s71, 7
            s_add_u32 s71, s71, 32768
            v_and_b32 v10, 15, v1
            v_mul_u32_u24 v10, 2304, v10
            v_lshrrev_b32 v11, 4, v1
            v_lshl_add_u32 v10, v11, 3, v10
            s_mul_i32 s52, s52, {4*36864}
            s_add_u32 s52, s52, {WS_P}
            s_mul_i32 s53, s31, {96*2304}
            s_mul_i32 s3, s29, 1152
            s_add_u32 s53, s53, s3
            s_mul_i32 s3, s32, 288
            s_add_u32 s53, s53, s3
            s_lshl_b32 s54, s30, 2
            s_add_u32 s54, s54, s28""")
    srd(a, 8, "s78", "s79", 1769472)
    def decode(i):
        A, B, C = 56 + 4*i, 57 + 4*i, 58 + 4*i
        a.e(f"""s_add_u32 s3, s54, {16*i}
                s_mul_i32 s4, s3, 43
                s_lshr_b32 s4, s4, 8
                s_mul_i32 s5, s4, 6
                s_sub_u32 s3, s3, s5            ; q16
                s_mul_i32 s{B}, s3, {16*2304}
                s_add_u32 s{B}, s{B}, s53
                s_cmp_ge_u32 s3, 3
                s_cselect_b32 s5, {9216 - 3072}, 0
                s_lshl_b32 s3, s3, 10
                s_add_u32 s{A}, s3, s5          ; qh * 9216 + j * 1024
                s_add_u32 s{A}, s{A}, s52
                s_and_b32 s3, s4, 1
                s_cmp_eq_u32 s4, 4
                s_cselect_b32 s3, 2, s3         ; k
                s_cselect_b32 s{C}, 0, 32
                s_mul_i32 s5, s3, 3072
                s_add_u32 s{A}, s{A}, s5
                s_lshl_b32 s3, s3, 6
                s_and_b32 s4, s4, 2
                s_cmp_eq_u32 s4, 2
                s_cselect_b32 s5, 18432, 0
                s_add_u32 s{A}, s{A}, s5
                s_cmp_eq_u32 s4, 2
                s_cselect_b32 s{C}, -32, s{C}
                s_sub_u32 s5, 256, s3
                s_cmp_eq_u32 s4, 2
                s_cselect_b32 s3, s5, s3
                s_add_u32 s{B}, s{B}, s3""")
    decode(0); decode(1)
    a.e("s_waitcnt vmcnt(0)\nbuffer_store_dword v15, v108, s[24:27], s70 offen sc1")
    stamp(a, "pub2", opt)
    ask("s71", "v_and_b32 v13, 3, v1\nv_lshlrev_b32 v13, 7, v13\nv_and_b32 v14, 12, v1\nv_add_u32 v13, v13, v14"); check(2)
    stamp(a, "chk2", opt)
    def loads(i):
        for o in range(4):
            a.e(f"buffer_load_dwordx4 {vr(16+16*i+4*o,4)}, v{VL16}, s[24:27], s{56+4*i} offen sc1")
            if o < 3: a.e(f"s_add_u32 s{56+4*i}, s{56+4*i}, 36864")
    def fin(i, left):
        b, D = 16 + 16*i, 112 + 16*i
        for o in range(4):
            a.e(f"s_waitcnt vmcnt({left + 3 - o})")
            for k in range(4):
                r = b + 4*o + k
                if o == 0: a.e(f"v_lshlrev_b32 v{D+2*k}, 16, v{r}\nv_and_b32 v{D+2*k+1}, 0xffff0000, v{r}")
                else: a.e(f"v_lshlrev_b32 v{D+8}, 16, v{r}\nv_and_b32 v{r}, 0xffff0000, v{r}\nv_add_f32 v{D+2*k}, v{D+2*k}, v{D+8}\nv_add_f32 v{D+2*k+1}, v{D+2*k+1}, v{r}")
        for k in range(4): a.e(f"v_cvt_pk_bf16_f32 v{D+k}, v{D+2*k}, v{D+2*k+1}")
        a.e(f"""buffer_store_dwordx2 v[{D}:{D+1}], v10, s[8:11], s{57+4*i} offen{opt.opol}
                s_add_u32 s{57+4*i}, s{57+4*i}, s{58+4*i}""")
        if i == 1: a.e("s_cmp_eq_u32 s62, 0\ns_cbranch_scc1 L_rd2")
        a.e(f"buffer_store_dwordx2 v[{D+2}:{D+3}], v10, s[8:11], s{57+4*i} offen{opt.opol}")
    loads(0)
    a.e("s_cmp_ge_u32 s54, 14\ns_cbranch_scc1 L_rd1")
    sv = save(a)
    loads(1); fin(0, 4); fin(1, 0)
    a.e("s_branch L_rd2")
    a.label("L_rd1"); load(a, sv)
    fin(0, 0)
    a.label("L_rd2")
    stamp(a, "end", opt)
    if opt.stamps:
        a.e(f"s_lshl_b32 s3, s2, 2\ns_add_u32 s3, s3, s28\ns_lshl_b32 s3, s3, 7\ns_add_u32 s3, s3, {WS_STAMP}\nv_mov_b32 v0, 0")
        for i in range(1 + len(opt.sset)):
            a.e(f"v_mov_b32 v2, s{STB+2*i}\nv_mov_b32 v3, s{STB+1+2*i}\nbuffer_store_dwordx2 v[2:3], v0, s[24:27], s3 offen offset:{8*i}\ns_waitcnt vmcnt(0)")
    a.label("L_done")
    a.e("s_endpgm")
    a.label("L_end")
    for qb in range(3): rare(a, qb)
    a.label("L_hold", reset=True)
    a.e("s_mov_b32 s47, 0x400000")
    a.label("L_hold1")
    a.e("""s_sleep 4
           ds_read_b64 v[30:31], v26
           s_sub_u32 s47, s47, 1
           s_waitcnt lgkmcnt(0)
           v_min_u32 v30, v30, v31
           v_readfirstlane_b32 s3, v30
           s_lshl_b32 s3, s3, 4
           s_cmp_eq_u32 s47, 0
           s_cselect_b32 s3, s38, s3
           s_cmp_lt_i32 s3, s38
           s_cbranch_scc1 L_hold1
           s_setpc_b64 s[40:41]""")

def build(opt):
    a = Asm()
    a.raw("; @launch grid=(256,1,1) block=(256,1,1) lds=163840")
    a.raw('.amdgcn_target "amdgcn-amd-amdhsa--gfx950"')
    kernel(a, NAME + "_kernel", opt)
    a.raw('.section .rodata,"a"\n.p2align 6')
    a.raw("\n".join([f".amdhsa_kernel {NAME}_kernel", "  .amdhsa_next_free_vgpr 512", "  .amdhsa_next_free_sgpr 102",
        "  .amdhsa_accum_offset 256", "  .amdhsa_group_segment_fixed_size 0", "  .amdhsa_kernarg_size 104",
        "  .amdhsa_user_sgpr_count 2", "  .amdhsa_user_sgpr_kernarg_segment_ptr 1",
        "  .amdhsa_system_sgpr_workgroup_id_x 1", ".end_amdhsa_kernel"]))
    return a.text(), a

if __name__ == "__main__":
    opt = Opt()
    out = sys.argv[1] if len(sys.argv) > 1 else "k.s"
    for kv in sys.argv[2:]:
        k, v = kv.split("=", 1); assert hasattr(opt, k), k
        setattr(opt, k, eval(v))
    t, a = build(opt)
    open(out, "w").write(t)
    print(out, "lines", t.count("\n"), "pad", a.npad)
```

```python
import sys, struct, math
sys.path.insert(0, "dev")
from asmlib import Asm, spread, regs_of, level_fill
import gen5
from gen5 import (NAME, f2u, CSC, THR_LOG2, WS_BYTES, WS_O, WS_P, WS_F, WS_STAMP, STB, vr, ar, srd, stamp, emit,
                  VOFFK, VOFFV, VKA, VVA, LSUM, TMAX, VT, NM, S0, Q0, KF, VF, Sreg, Qreg, Oacc, softmax, qk, pv, rare)

class Opt:
    wp = "pppp"
    noB = False
    stamps = False
    sset = ['q0', 'k0', 't15', 'comb', 'join', 'chk1', 'gend', 'pub2', 'end']
    thr0 = 0.0
    thr1 = 1.25
    clk = "s_memrealtime"
    rot = True
    krot = 4
    qlev = True
    touch = {}
    ctouch = None
    w0at = (14, 44)
    plan2 = True
    capfrom = 4
    firstfree = False
    free01 = False
    plan3 = 0
    earr = False
    rlate = 0
    rspan = 80
    kspan = 30
    wdel = 8
    kvtlb = False
    capb = None
    pbf16 = True
    k1early = False
    wot = 4
    wotnt = None
    tlb = 0
    nx = 1
    accearly = True
    cap = (6, 5)
    capend = 30
    hold = False
    xgate = 0
    last = (0, 0)
    ylast = 1
    kvsame = False
    unroll = False
    a0at = 2
    opol = ''
    late = 0
    prio = 0
    gate = 12
    pace = 1.0
    d1 = (8, 10, 12, 14, 22, 24, 26, 27)
    d2 = (29, 31, 33, 35, 37, 39, 44, 47)
    dcost = 4.0
    acct = 0
    w0 = 10
    askat = 3
    fewwait = True
    vwin = (16, 22)
    kwin = (40, 44)
    tpol = ''
    wopol = ''

SLOT = 16384
SV = 126976
def slot(u): return (2 if u == 0 else (-u) % 3) * SLOT
STG = lambda i: 45056 + 28672 * i
TOP = 159744
SB = (122880, 0, 86016, 49152)
NS = 3
YB = 49152

def dma_unit(u, opt):
    kind = "KV"[u % 2]; sreg = "s36" if kind == "K" else "s35"
    srdn = "s[8:11]" if kind == "K" else "s[12:15]"
    G = []
    for j in range(8):
        g = []
        mb, mo = ("s54", 0) if u == 1 else ("s37", slot(u))
        if j == 0: g += [f"s_add_u32 m0, {mb}, {mo}", f"s_add_u32 s51, s34, {sreg}"]
        if j == 1 and not opt.kvsame: g += [f"s_add_u32 {sreg}, {sreg}, 16384", f"s_and_b32 {sreg}, {sreg}, 0x3ffff"]
        if j == 4: g += [f"s_add_u32 m0, {mb}, {mo + 4096}", "s_add_u32 s51, s51, 4096"]
        vo = VOFFK + j % 4 if kind == "K" else VOFFV
        if opt.cap and opt.capfrom <= u <= opt.capend:
            cx, cy = opt.cap
            cx, cy = (c if isinstance(c, int) else c[j % len(c)] for c in (cx, cy))
            dma_unit.n += 1; n = dma_unit.n
            bx, by = (c if isinstance(c, int) else c[j % len(c)] for c in (opt.capb or opt.cap))
            prev = None
            for lv, c in enumerate((bx, cx, by, cy)):
                if c == prev: continue
                R_ = "RAW " if prev else ""
                g += [R_ + f"s_cmp_le_u32 s50, {lv}", R_ + f"s_cbranch_scc1 L_cap{n}", f"RAW s_waitcnt vmcnt({c - 1})"]
                assert prev is None or c < prev
                prev = c
            g += [f"LABEL L_cap{n}"]
        g.append(f"buffer_load_dwordx4 v{vo}, {srdn}, s51 offen offset:{(j % 4)*1024} nt lds ; @u{u}")
        G.append("\n".join(g))
    return G
dma_unit.n = 0
def kreads(t): return [f"ds_read_b128 {ar(KF+4*s,4)}, v{VKA+s} offset:{slot(2*t)}" for s in range(8)]
def vreads(t):
    return [f"ds_read_b64_tr_b16 {ar(VF + db*8 + s*4 + k*2, 2)}, v{(VVA if t else 28)+db} offset:{(slot(2*t+1) if t else 0) + 4096*s + 2048*k}"
            for s in range(2) for db in range(4) for k in range(2)]
def tile_body(a, opt, t, carry, extra=()):
    first = t == 0
    M = qk(0, first) + (pv(2, t == 1) if t else [None]*8) + qk(1, first) + pv(0, first) + qk(2, first) + pv(1, first)
    W = opt.w0
    sl = [[] for _ in range(48 + W)]
    def at(G, slots):
        for g, k in zip(G, slots): sl[k].append(g)
    if 2*t + NS <= 31: at(dma_unit(2*t + NS if t else 4, opt), opt.d1)
    spread(sl, [f"WAITVM u{2*t+1}"] + vreads(t), *opt.vwin)
    if 2*t + NS + 1 <= 31 and t: at(dma_unit(2*t + NS + 1, opt), opt.d2)
    if t < 15: spread(sl, [f"WAITVM u{2*t+2}"] + kreads(t + 1), *opt.kwin)
    if t == 14 and opt.xgate: sl[30].append('v_mov_b32 v27, 2\nds_write_b32 v109, v27 offset:16')
    if opt.hold or t == 0: sl[46].append("s_add_u32 s45, s45, 1\nv_mov_b32 v27, s45\nds_write_b32 v109, v27 offset:16")
    if 1 <= t <= 14 and opt.hold:
        sl[44].append("ds_read_b64 v[30:31], v26")
        sl[47].append(f"""AUTO v_min_u32 v30, v30, v31
s_add_u32 s38, s38, s50
s_min_i32 s38, s38, 256
v_readfirstlane_b32 s3, v30
s_lshl_b32 s3, s3, 4
s_cmp_ge_i32 s3, s38
s_cbranch_scc1 L_go{t}
s_call_b64 s[40:41], L_hold
LABEL L_go{t}""")
    for e in extra: spread(sl, *e)
    for i, x in enumerate(carry): sl[i] = x + sl[i]
    ghost = {48 + k: "buffer_x\ns_nop 0\ns_nop 0" for k in opt.d1 if k < W}
    for k, g in ghost.items(): sl[k].append(g)
    level_fill(sl, softmax(0, t, first), W, W + 16, opt.dcost)
    level_fill(sl, softmax(1, t, first), W + 16, W + 32, opt.dcost)
    level_fill(sl, softmax(2, t, first), W + 32, W + 48, opt.dcost)
    for k in ghost: sl[k] = sl[k][1:]
    for i in range(48):
        if opt.fewwait:
            if i == 0: a.wait(lgregs=regs_of(ar(KF, 32)))
            if i == 24: a.wait(lgregs=regs_of(ar(VF, 32)))
        if M[i]: emit(a, [M[i]])
        for x in sl[i]:
            if opt.acct and x.startswith("WAITVM"):
                keep = list(a.lg)
                a.e("s_memtime s[94:95]"); emit(a, [x]); a.e("s_memtime s[96:97]\ns_waitcnt lgkmcnt(0)\ns_sub_u32 s96, s96, s94")
                r = 98 if int(x.split("u")[1]) % 2 else 100
                a.e(f"s_add_u32 s{r}, s{r}, s96")
            elif opt.acct == 2 and "lds ;" in x:
                a.e("s_memtime s[94:95]"); emit(a, [x]); a.e("s_memtime s[96:97]\ns_waitcnt lgkmcnt(0)\ns_sub_u32 s96, s96, s94\ns_add_u32 s92, s92, s96")
            else: emit(a, [x])
    return sl[48:]

def save(a): return (list(a.hist), list(a.lg), list(a.vm))
def load(a, st): a.hist, a.lg, a.vm = (list(x) for x in st)

def kernel(a, name, opt):
    a.raw(".text"); a.raw(f".globl {name}"); a.raw(".p2align 8"); a.raw(f".type {name},@function")
    a.label(name, reset=True)
    a.e("""s_load_dwordx8 s[56:63], s[0:1], 0
           s_load_dwordx8 s[64:71], s[0:1], 40
           s_load_dwordx2 s[72:73], s[0:1], 96
           s_load_dwordx2 s[40:41], s[0:1], 32
           s_load_dwordx2 s[42:43], s[0:1], 72
           s_load_dwordx4 s[44:47], s[0:1], 80
           s_memrealtime s[48:49]
           s_cmp_ge_u32 s2, 256
           s_cbranch_scc1 L_done""")
    if opt.stamps: a.e(f"{opt.clk} s[{STB}:{STB+1}]")
    VW, VXA, VXB, AW, AX, VD = 72, 73, 74, 76, 64, 111
    G, L15, H, L31, G1, R, C4 = 88, 89, 90, 91, 92, 81, 82
    VFO, VFP = 109, 110
    a.e(f"""v_lshrrev_b32 v1, 6, v0
            s_and_b32 s3, s2, 7
            s_lshr_b32 s29, s3, 2
            s_and_b32 s30, s3, 3
            v_readfirstlane_b32 s28, v1
            s_lshr_b32 s3, s2, 3
            s_lshr_b32 s31, s3, 2
            s_and_b32 s32, s3, 3
            v_and_b32 v1, 63, v0
            v_lshrrev_b32 v{G}, 4, v1
            v_and_b32 v{L15}, 15, v1
            v_lshrrev_b32 v56, 3, v1
            v_and_b32 v57, 7, v1
            v_and_b32 v{G1}, 1, v{G}
            v_lshlrev_b32 v59, 2, v{G1}
            v_xor_b32 v59, v57, v59
            v_lshlrev_b32 v59, 4, v59
            v_lshl_add_u32 v{VW}, v56, 13, v59
            v_mul_u32_u24 v60, 1152, v56
            v_xor_b32 v61, v57, v{G}
            s_and_b32 s6, s28, 1
            s_lshr_b32 s7, s28, 1
            s_lshl_b32 s3, s6, 2
            v_xor_b32 v61, s3, v61
            v_lshl_add_u32 v{VXA}, v61, 4, v60
            v_xor_b32 v61, 4, v61
            v_lshl_add_u32 v{VXB}, v61, 4, v60
            s_mul_i32 s37, s7, {YB}
            s_lshl_b32 s3, s6, 13
            s_add_u32 s37, s37, s3
            s_lshl_b32 s33, s30, 3
            s_lshl_b32 s3, s32, 1
            s_add_u32 s33, s33, s3              ; head X
            s_add_u32 s74, s3, s31              ; b + 2p
            s_lshl_b32 s52, s33, 8
            s_lshl_b32 s3, s28, 7
            s_add_u32 s52, s52, s3
            s_mul_i32 s53, s31, 110592
            s_mul_i32 s3, s28, 27648
            s_add_u32 s53, s53, s3              ; x rows 24w..
            s_mul_i32 s55, s28, 3072
            s_mov_b32 s18, 884736
            s_mov_b32 s19, 0x20000
            s_mov_b32 s22, 4718592
            s_mov_b32 s23, 0x20000""")
    if opt.krot == 0: a.e("s_mov_b32 s74, 0")
    elif opt.krot == 1: a.e("s_cmp_ge_u32 s74, 9\ns_cselect_b32 s3, 9, 0\ns_sub_u32 s74, s74, s3")
    elif opt.krot == 3: a.e("s_and_b32 s74, s74, 1\ns_lshl_b32 s74, s74, 2")
    elif opt.krot == 2: a.e("s_add_u32 s74, s31, s32\ns_mul_i32 s3, s74, 86\ns_lshr_b32 s3, s3, 8\ns_mul_i32 s3, s3, 3\ns_sub_u32 s74, s74, s3\ns_mul_i32 s74, s74, 3")
    elif opt.krot == 4: a.e("s_add_u32 s74, s31, s32\ns_and_b32 s74, s74, 3\ns_mul_i32 s74, s74, 9\ns_lshr_b32 s74, s74, 2")
    elif opt.krot == 5: a.e("s_add_u32 s74, s31, s32\ns_and_b32 s74, s74, 1\ns_lshl_b32 s74, s74, 2")
    a.e("s_cmp_eq_u32 s29, 0\ns_waitcnt lgkmcnt(0)")
    for d, o in ((20, 6), (16, 0), (8, 2), (12, 4)):
        a.e(f"s_cselect_b32 s{d}, s{56+o}, s{64+o}\ns_cselect_b32 s{d+1}, s{57+o}, s{65+o}")
    a.e("""s_cselect_b32 s76, s40, s42
           s_cselect_b32 s77, s41, s43
           s_mov_b64 s[78:79], s[44:45]
           s_mov_b64 s[80:81], s[46:47]
           s_or_b32 s75, s48, 1""")
    P = lambda ch: " nt" if ch == "n" else ""
    XS = 98304
    VW4, VX3 = 32, 36
    a.e(f"""v_mov_b32 v{VW4}, v{VW}
            v_add_u32 v{VW4+1}, {65536 - 1024}, v{VW}
            v_add_u32 v{VW4+2}, {2*(65536 - 1024)}, v{VW}
            v_add_u32 v{VW4+3}, {3*(65536 - 1024)}, v{VW}
            v_mov_b32 v{VX3}, v{VXA}
            v_add_u32 v{VX3+1}, {9216 - 1024}, v{VXB}
            v_add_u32 v{VX3+2}, {2*(9216 - 1024)}, v{VXA}
            s_lshl_b32 s4, s74, 19
            s_add_u32 s4, s4, s52
            s_lshl_b32 s5, s74, 7
            s_add_u32 s5, s5, s53
            s_sub_u32 s74, 9, s74""")
    WR = lambda c, j: ar(((c - 3)*8 + j)*4, 4)
    XR = lambda c, i: ar(192 + ((c-3)*3 + i)*4, 4) if (c-3)*3 + i < 16 else vr(40 + ((c-3)*3 + i - 16)*4, 4)
    def regstage(c):
        Gs = []
        for j in range(8):
            Gs.append(("s_add_u32 s4, s4, 262144\n" if j == 4 else "") + f"buffer_load_dwordx4 {WR(c,j)}, v{VW4 + j % 4}, s[20:23], s4 offen offset:{(j % 4)*1024}{P(opt.wp[0])} ; @s{c}")
        for i in range(3):
            g = ("s_add_u32 s4, s4, 262144\n" if i == 0 else "") + f"buffer_load_dwordx4 {XR(c,i)}, v{VX3 + i}, s[16:19], s5 offen offset:{i*1024}{P(opt.wp[1])} ; @s{c}"
            if i == 2: g += f"\ns_add_u32 s5, s5, 128\ns_sub_u32 s74, s74, 1\ns_cmp_lg_u32 s74, 0\ns_cbranch_scc1 L_nw{c}\nRAW s_mov_b32 s4, s52\nRAW s_mov_b32 s5, s53\nLABEL L_nw{c}"
            Gs.append(g)
        return Gs
    def regwrite(c):
        return [f"WAITVM s{c}"] + [f"ds_write_b128 v48, {WR(c,j)} offset:{(c % 2)*SLOT + j*1024}" for j in range(8)] + \
               [f"ds_write_b128 v49, {XR(c,i)} offset:{(c % 2)*12288 + i*1024}" for i in range(3)]
    def stage(c):
        buf = c % 3; Gs = []
        if c >= 3: return regstage(c)
        for j in range(8):
            g = [f"s_add_u32 m0, s37, {buf*SLOT}", "s_nop 0"] if j == 0 else [f"s_add_u32 m0, s37, {buf*SLOT + 4096}", "s_add_u32 s4, s4, 262144"] if j == 4 else []
            Gs.append("\n".join(g + [f"buffer_load_dwordx4 v{VW4 + j % 4}, s[20:23], s4 offen offset:{(j % 4)*1024}{P(opt.wp[0])} lds ; @s{c}"]))
        for i in range(3):
            g = [f"s_add_u32 m0, s55, {XS + buf*12288}", "s_add_u32 s4, s4, 262144"] if i == 0 else []
            g += [f"buffer_load_dwordx4 v{VX3 + i}, s[16:19], s5 offen offset:{i*1024}{P(opt.wp[1])} lds ; @s{c}"]
            if i == 2: g += ["s_add_u32 s5, s5, 128", "s_sub_u32 s74, s74, 1", f"s_cbranch_scc0 L_nw{c}", ]
            Gs.append("\n".join(g))
        Gs[-1] = Gs[-1].replace(f"s_sub_u32 s74, s74, 1\ns_cbranch_scc0 L_nw{c}", f"s_sub_u32 s74, s74, 1\ns_cmp_lg_u32 s74, 0\ns_cbranch_scc1 L_nw{c}\nRAW s_mov_b32 s4, s52\nRAW s_mov_b32 s5, s53\nLABEL L_nw{c}")
        return Gs
    stamp(a, 'ka', opt)
    wtouch = [x.strip() for x in """s_lshr_b32 s3, s2, 3
            s_lshl_b32 s3, s3, 2
            s_add_u32 s3, s3, s28
            s_mul_i32 s3, s3, 9216
            s_mul_i32 s47, s30, 1179648
            v_lshlrev_b32 v24, 7, v1
            v_add_u32 v24, s3, v24
            v_add_u32 v25, 8192, v24
            v_cmp_gt_u32 s[70:71], 8, v1
            v_cndmask_b32 v25, -1, v25, s[70:71]""".split("\n")]
    wtouch = ["\n".join(wtouch + ["buffer_load_dword v23, v24, s[60:63], s47 offen ; @junk"]), "s_mul_i32 s47, s30, 1179648\nbuffer_load_dword v23, v25, s[60:63], s47 offen ; @junk"]
    if opt.wot is not None: srd(a, 60, "s76", "s77", 4718592)
    if opt.wot == 'a': emit(a, wtouch)
    emit(a, stage(0))
    if opt.kvtlb:
        a.e(f"""s_mov_b32 s10, {1 << 26}
                s_mov_b32 s11, 0x20000
                s_mov_b32 s14, {1 << 26}
                s_mov_b32 s15, 0x20000
                s_lshl_b32 s3, s31, 5
                s_add_u32 s3, s3, s33
                s_add_u32 s3, s3, s7
                s_lshl_b32 s3, s3, 18
                v_and_b32 v24, 3, v1
                v_lshlrev_b32 v24, 16, v24
                buffer_load_dword v23, v24, s[8:11], s3 offen nt ; @junk
                buffer_load_dword v23, v24, s[12:15], s3 offen nt ; @junk""")
    if opt.wot == 'b': emit(a, wtouch)
    stamp(a, 'i0', opt)
    srd(a, 56, "s80", "s81", 256)
    a.e("""s_lshl_b32 s3, s2, 8
           v_add_u32 v106, s3, v0
           v_min_u32 v106, 1, v106
           v_lshlrev_b32 v106, 12, v106
           v_mov_b32 v107, s75
           buffer_store_dword v107, v106, s[56:59], 0 offen sc1""")
    emit(a, stage(1))
    if opt.wot == 'c': emit(a, wtouch)
    for d in (8, 12): a.e(f"s_mov_b32 s{d+2}, {1 << 26}\ns_mov_b32 s{d+3}, 0x20000")
    srd(a, 24, "s72", "s73", WS_BYTES)
    srd(a, 60, "s76", "s77", 4718592)
    a.e(f"""v_lshrrev_b32 v{H}, 5, v1
            v_and_b32 v{L31}, 31, v1
            v_lshrrev_b32 v{R}, 2, v{L15}
            v_and_b32 v{C4}, 3, v1
            v_lshl_add_u32 v59, v{H}, 3, v{R}
            v_lshlrev_b32 v59, 7, v59
            v_lshrrev_b32 v60, 1, v{R}
            v_lshl_add_u32 v59, v60, 6, v59
            v_lshl_add_u32 v59, v{G1}, 5, v59
            v_lshl_add_u32 v59, v{C4}, 3, v59
            v_add_u32 v{AW}, s37, v59
            v_xor_b32 v{AW+1}, 64, v{AW}
            v_bfe_u32 v60, v1, 1, 3
            v_xor_b32 v60, v60, v{H}
            v_lshlrev_b32 v60, 4, v60
            v_lshl_add_u32 v60, v{L31}, 7, v60
            v_add_u32 v{AX}, {XS}, v60""")
    for s in range(1, 4): a.e(f"v_xor_b32 v{AX+s}, {32*s}, v{AX}")
    a.e(f"""s_lshl_b32 s3, s28, 2
            s_add_u32 s3, s3, {TOP + 3072}
            v_mov_b32 v{VFO}, s3
            v_xor_b32 v{VFP}, 4, v{VFO}
            v_mov_b32 v61, 0
            ds_write_b32 v{VFO}, v61
            ds_write_b32 v{VFO}, v61 offset:16
            s_mov_b32 s44, 0
            s_mov_b32 s45, 0""")
    a.e(f"""v_lshlrev_b32 v49, 4, v1
            v_add_u32 v48, s37, v49
            s_add_u32 s3, s55, {XS}
            v_add_u32 v49, s3, v49
            s_lshl_b32 s54, s28, 13
            s_add_u32 s54, s54, {SV}""")
    def frag_reads(c, s, F):
        buf = c if c < 3 else c % 2
        L = [f"ds_read_b64_tr_b16 {vr(F + db*4 + k*2, 2)}, v{AW+db} offset:{buf*SLOT + (16*s + 4*k) * 128}" for db in range(2) for k in range(2)]
        return L + [f"ds_read_b128 {vr(F + 8 + qb*4, 4)}, v{AX+s} offset:{buf*12288 + qb*4096}" for qb in range(3)]
    setup = f"""v_lshlrev_b32 v26, 8, v{G}
            v_xor_b32 v27, v{L15}, v{G}
            v_lshl_add_u32 v{VOFFK}, v27, 4, v26
            v_xor_b32 v{VOFFK+1}, 64, v{VOFFK}
            v_xor_b32 v{VOFFK+2}, 128, v{VOFFK}
            v_xor_b32 v{VOFFK+3}, 192, v{VOFFK}
            v_lshlrev_b32 v27, 2, v{G}
            v_xor_b32 v27, v{L15}, v27
            v_lshl_add_u32 v{VOFFV}, v27, 4, v26
            s_lshl_b32 s3, s6, 13
            s_add_u32 s33, s33, s7
            s_lshl_b32 s34, s31, 5
            s_add_u32 s34, s34, s33
            s_lshl_b32 s34, s34, 18
            s_add_u32 s34, s34, s3"""
    if opt.rot:
        setup += """
            s_lshl_b32 s3, s2, 2
            s_add_u32 s3, s3, s7
            s_mul_i32 s3, s3, 0x1e3779b1
            s_lshr_b32 s47, s3, 15
            s_xor_b32 s3, s3, s47
            s_mul_i32 s3, s3, 0x2c1b3c6d
            s_lshr_b32 s3, s3, 20
            s_and_b32 s3, s3, 15
            s_lshl_b32 s35, s3, 14"""
    else: setup += "\ns_mov_b32 s35, 0"
    setup += f"""
            s_mov_b32 s36, s35
            s_mov_b32 s69, s35
            v_lshlrev_b32 v50, 7, v1
            v_xor_b32 v27, v{H}, v{L15}
            v_lshlrev_b32 v27, 4, v27
            v_lshl_add_u32 v27, v{L31}, 8, v27
            v_add_u32 v{VKA}, s37, v27"""
    for s in range(1, 8): setup += f"\nv_xor_b32 v{VKA+s}, {32*s}, v{VKA}"
    setup += f"""
            v_lshl_add_u32 v28, v{H}, 2, v{R}
            v_lshlrev_b32 v28, 8, v28
            v_lshl_add_u32 v28, v{R}, 6, v28
            v_lshl_add_u32 v28, v{G1}, 5, v28
            v_lshl_add_u32 v28, v{C4}, 3, v28
            s_lshl_b32 s47, s6, 7
            v_xor_b32 v28, s47, v28
            v_add_u32 v{VVA}, s37, v28"""
    for db in range(1, 4): setup += f"\nv_xor_b32 v{VVA+db}, {64*db}, v{VVA}"
    setup += "\nv_add_u32 v28, s54, v28"
    for db in range(1, 4): setup += f"\nv_xor_b32 v{28+db}, {64*db}, v28"
    setup += f"\ns_mov_b32 s42, {f2u(CSC):#x}\ns_mov_b32 s43, {f2u(THR_LOG2):#x}"
    for qb in range(3): setup += f"\nv_mov_b32 v{LSUM+qb}, 0"
    setup = [x.strip() for x in setup.split("\n")]
    VO, VL16, AD, VOL = 93, 102, 103, 107
    def vo_calc(dst, rev):
        L = []
        for i in range(9):
            L += [f"v_add_u32 v80, {64*i}, v1", "v_mul_u32_u24 v28, 58255, v80", "v_lshrrev_b32 v28, 20, v28", "v_mul_u32_u24 v83, 18, v28",
                  "v_sub_u32 v83, v80, v83", "v_xor_b32 v29, 1, v83", "v_sub_u32 v29, 17, v29"]
            if rev == "vcc": L += ["v_cndmask_b32 v29, v83, v29, s[70:71]"]
            L += ["v_mul_u32_u24 v28, 1152, v28", f"v_lshl_add_u32 v{dst+i}, v29, 4, v28"]
        return L
    setup2 = ["s_cmp_eq_u32 s7, 1\ns_cselect_b64 s[70:71], -1, 0"] + vo_calc(VO, "vcc") + [x.strip() for x in f"""v_lshlrev_b32 v{VL16}, 4, v1
            v_lshlrev_b32 v80, 4, v{H}
            v_lshl_add_u32 v80, v{G1}, 2, v80
            v_add_u32 v80, v80, v{R}
            v_mul_u32_u24 v80, 288, v80
            v_lshl_add_u32 v80, v{C4}, 3, v80
            s_mul_i32 s3, s7, 18432
            v_add_u32 v{AD+1}, s3, v80
            v_add_u32 v{AD}, {SB[0]}, v{AD+1}
            v_lshlrev_b32 v{VOL}, 10, v{G1}
            v_lshl_add_u32 v{VOL}, v{H}, 8, v{VOL}
            v_lshl_add_u32 v{VOL}, v{L15}, 4, v{VOL}
            v_mov_b32 v108, 0
            s_mul_i32 s67, s30, 1179648
            s_mul_i32 s3, s32, 288
            s_add_u32 s64, s67, s3              ; wo: rows of the octet, columns 144p..
            s_lshl_b32 s39, s29, 3
            s_add_u32 s39, s39, s31""".split("\n")]
    setW = ["s_lshl_b32 s66, s32, 1", "s_mul_i32 s65, s28, 9216", f"s_mul_i32 s68, s28, {32*1152}", "s_add_u32 s68, s68, s64"]
    def arrive(): a.e(f"s_add_u32 s44, s44, 1\nv_mov_b32 v{VD}, s44\nds_write_b32 v{VFO}, v{VD}")
    def psync(arrived=False):
        psync.n += 1; n = psync.n
        if not arrived: arrive()
        a.e("s_mov_b32 s47, 0x400000")
        a.label(f"L_ps{n}")
        a.e(f"""ds_read_b32 v{VD}, v{VFP}
                s_sub_u32 s47, s47, 1
                s_waitcnt lgkmcnt(0)
                v_readfirstlane_b32 s3, v{VD}
                s_cmp_eq_u32 s47, 0
                s_cselect_b32 s3, s44, s3
                s_cmp_lt_u32 s3, s44
                s_cbranch_scc1 L_ps{n}""")
    psync.n = 0
    def other_pair(name, word, val, T=84):
        a.e(f"v_mov_b32 v{T+2}, {TOP + 3072 + word}\ns_mov_b32 s47, 0x400000")
        a.label(name)
        a.e(f"""s_sleep 2
                ds_read_b64 v[{T}:{T+1}], v{T+2}
                s_sub_u32 s47, s47, 1
                s_waitcnt lgkmcnt(0)
                v_min_u32 v{T}, v{T}, v{T+1}
                v_readfirstlane_b32 s3, v{T}
                s_cmp_eq_u32 s47, 0
                s_cselect_b32 s3, {val}, s3
                s_cmp_lt_u32 s3, {val}
                s_cbranch_scc1 {name}""")

    ACC = 112
    def qwrite(blocks, dreg, area, extra=()):
        a.e(f"""v_xor_b32 v55, {dreg}, v{L15}
                v_lshlrev_b32 v55, 4, v55
                v_lshl_add_u32 v55, v{L31}, 8, v55
                v_lshl_add_u32 v55, v{H}, 3, v55
                v_add_u32 v55, {area}, v55
                v_mov_b32 v62, s42""")
        for db in range(blocks):
            for i in range(4):
                a.e(f"v_xor_b32 v54, {(4*db + i)*16}, v55")
                if extra: emit(a, [extra[4*db + i]])
                for qb in range(3):
                    r = ACC + (db*3 + qb)*16 + 4*i; tq = 56 + 2 * qb
                    a.e(f"""v_pk_mul_f32 v[{r}:{r+1}], v[{r}:{r+1}], v[62:63] op_sel_hi:[1,0]
                            v_pk_mul_f32 v[{r+2}:{r+3}], v[{r+2}:{r+3}], v[62:63] op_sel_hi:[1,0]
                            v_cvt_pk_bf16_f32 v{tq}, v{r}, v{r+1}
                            v_cvt_pk_bf16_f32 v{tq+1}, v{r+2}, v{r+3}
                            ds_write_b64 v54, v[{tq}:{tq+1}] offset:{qb*8192}""")
    def qread(area):
        a.e(f"s_sub_u32 s3, {area}, s37")
        for s in range(8): a.e(f"v_add_u32 v{32+s}, s3, v{VKA+s}")
        for qb in range(3):
            for s in range(8): a.e(f"ds_read_b128 {vr(Qreg(qb,s),4)}, v{32+s} offset:{qb*8192}")
    FA, FB = 208, 228
    a.wait(vmtags=["s0"], lg0=True); a.e("s_barrier")
    stamp(a, "q0", opt)
    emit(a, frag_reads(0, 0, FA))
    sl = [[] for _ in range(216 + 24)]
    spread(sl, [x for c in range(2, 9 - opt.rlate) for x in stage(c)], 0, opt.rspan)
    spread(sl, setup, 6, 64)
    for c in range(9):
        for s in range(4):
            F, nF = (FA, FB) if s % 2 == 0 else (FB, FA)
            k0 = (c*4 + s) * 6
            if s == 3:
                a.wait(vmtags=[f"s{c+1}"] if c < 2 else [], lg0=True); a.e("s_barrier")
                stamp(a, f"c{c}", opt)
                if 1 <= c <= 6: spread(sl, regwrite(c + 2), k0 + (opt.wdel if c == 1 else 1), k0 + 22)
                if c == 2: spread(sl, dma_unit(0, opt) + [x for k in range(9 - opt.rlate, 9) for x in stage(k)] + dma_unit(1, opt), max(k0, opt.rspan), max(k0, opt.rspan) + opt.kspan)
                if c == 7: spread(sl, dma_unit(2, opt), k0, k0 + 18)
                for u in opt.touch.get(c, []):
                    sl[k0 + 20].append(f"s_add_u32 s47, s69, {(u // 2) * 16384}\ns_and_b32 s47, s47, 0x3ffff\ns_add_u32 s47, s47, s34\n" +
                                       f"buffer_load_dword v51, v50, {'s[8:11]' if u % 2 == 0 else 's[12:15]'}, s47 offen nt ; @junk")
                if opt.wot == c: spread(sl, wtouch, k0 + 12, k0 + 22)
                if opt.ctouch == c:
                    sl[k0 + 6].append("s_getpc_b64 s[70:71]\nLABEL L_pc\nv_lshlrev_b32 v24, 7, v0\nv_add_u32 v24, L_qcode-L_pc, v24\nv_min_u32 v24, L_end-L_pc-4, v24\nglobal_load_dword v23, v24, s[70:71] ; @junk")
            rd = (frag_reads(c + 1, 0, nF) if c < 8 else []) if s == 3 else frag_reads(c, s + 1, nF)
            if opt.qlev:
                for k, x in enumerate(rd): sl[k0 + (0, 0, 1, 1, 2, 3, 4)[k]].insert(0, x)
                a.wait(lgregs=regs_of(vr(F, 20)))
            else: emit(a, rd)
            i = 0
            for db in range(2):
                for qb in range(3):
                    d = vr(ACC + (db*3 + qb)*16, 16)
                    emit(a, [f"v_mfma_f32_32x32x16_bf16 {d}, {vr(F+db*4,4)}, {vr(F+8+qb*4,4)}, " + ("0" if (c == 0 and s == 0) else d)] + sl[k0 + i]); i += 1
    assert not any(sl[216:])
    a.label("L_qcode")
    a.e("s_lshl_b32 s3, s6, 3\ns_cmp_eq_u32 s7, 1\ns_cbranch_scc1 L_qy")
    sv = save(a)
    qwrite(2, "s3", XS, dma_unit(3, opt))
    a.e("s_waitcnt lgkmcnt(0)\ns_barrier")
    qread(XS)
    a.e("s_waitcnt lgkmcnt(0)\ns_barrier\ns_branch L_qdone")
    a.label("L_qy"); load(a, sv)
    emit(a, dma_unit(3, opt))
    a.e("s_barrier\ns_barrier\ns_lshl_b32 s3, s6, 3")
    qwrite(2, "s3", XS)
    a.e("s_waitcnt lgkmcnt(0)"); psync()
    qread(XS)
    a.label("L_qdone")
    stamp(a, "qx", opt)
    a.wait(vmtags=["u0"], lg0=True)
    emit(a, kreads(0))
    stamp(a, "k0", opt)
    a.e(f"""v_mov_b32 v26, {TOP + 3072 + 16}
            s_cmp_eq_u32 s7, 1
            s_cselect_b32 s50, {round(opt.thr1 * 16)}, 0
            s_cselect_b32 s38, {round((opt.thr0 + opt.thr1) * 16)}, -1""")
    if not opt.hold: a.e("s_lshl_b32 s50, s7, 1\ns_add_u32 s50, s50, 2\ns_sub_u32 s50, s50, s29\ns_mov_b32 s38, s50" + ("\ns_mov_b32 s50, 0" if opt.free01 else ""))
    if opt.acct: a.e(f"s_mov_b64 s[98:99], s[{STB}:{STB+1}]\ns_mov_b64 s[100:101], s[{STB}:{STB+1}]\ns_mov_b64 s[92:93], s[{STB}:{STB+1}]")
    def wpieces(tag, head, rows, lds, voreg):
        Gs = []
        for i in range(9):
            g = [f"s_add_u32 s4, s66, {head}", "s_and_b32 s4, s4, 7", f"s_mul_i32 s4, s4, {128*1152}", "s_add_u32 s4, s4, s68",
                 f"s_add_u32 s4, s4, {rows*1152}"] if i == 0 else []
            g += [f"s_add_u32 m0, s65, {lds + i*1024}", f"buffer_load_dwordx4 v{voreg+i}, s[60:63], s4 offen{opt.wopol} lds ; @{tag}"]
            Gs.append("\n".join(g))
        return Gs
    HEAD = (0, 2, 4, 6, 1, 3, 5, 7)
    NX = opt.nx
    BUFOF = [st % 2 for st in range(NX + 2)] + [2, 3]
    while len(BUFOF) < 8: BUFOF.append(BUFOF[len(BUFOF) - 4])
    wS = lambda st: wpieces(f"w{st}", HEAD[st], 0, SB[BUFOF[st]], VO)
    wX = lambda st, VOR: wpieces(f"w{st}", HEAD[st], 0, SB[BUFOF[st]], VO) + wpieces(f"w{st}", HEAD[st], 64, SB[BUFOF[st]] + 18432, VOR)
    carry = tile_body(a, opt, 0, [])
    carry = tile_body(a, opt, 1, carry, extra=[(setup2 + setW, 0, 41)])
    carry1 = [[x.replace('L_sk1_', 'L_sk4_') for x in y] for y in carry]
    if opt.unroll:
        for t in range(2, 14):
            stamp(a, f'r{t}', opt); carry = tile_body(a, opt, t, carry)
    else:
        stamp(a, "l0", opt)
        a.e("s_mov_b32 s46, 4")
        a.raw(".p2align 6"); a.label("L_tile")
        keep = list(a.vm)
        if opt.firstfree: a.e("s_cmp_eq_u32 s46, 4\ns_cselect_b32 s50, 0, s38")
        elif opt.free01: a.e("s_mov_b32 s50, s38")
        if not opt.hold: a.e(f"s_cmp_eq_u32 s7, 0\ns_cselect_b32 s3, {2*opt.last[0]}, {2*opt.last[1]}\ns_cmp_gt_u32 s46, 1\ns_cselect_b32 s50, s50, s3")
        if opt.late:
            a.e(f"""s_lshl_b32 s3, s7, 3
                    s_add_u32 s3, s3, s46
                    s_cmp_lg_u32 s3, {opt.late}
                    s_cbranch_scc1 L_nolate
                    s_lshr_b32 s3, s2, 3
                    s_lshl_b32 s3, s3, 1
                    s_add_u32 s3, s3, s6
                    s_mul_i32 s3, s3, 18432
                    v_lshlrev_b32 v84, 7, v1
                    v_add_u32 v84, s3, v84
                    v_add_u32 v85, 8192, v84
                    v_add_u32 v86, 16384, v84
                    v_cmp_gt_u32 vcc, 16, v1
                    v_cndmask_b32 v86, -1, v86, vcc""")
            emit(a, [f"buffer_load_dword v87, v{r}, s[60:63], s67 offen{opt.tpol} ; @junk" for r in (84, 85, 86)])
            a.label("L_nolate")
        if opt.tlb:
            a.e(f"""s_cmp_lg_u32 s46, {opt.tlb}
                    s_cbranch_scc1 L_notlb
                    s_lshl_b32 s3, s39, 2
                    s_add_u32 s4, s3, s30
                    s_mul_i32 s4, s4, {8*24576}
                    v_mov_b32 v84, s4
                    s_add_u32 s4, s4, {8*24576 - 128}
                    v_writelane_b32 v84, s4, 1
                    s_add_u32 s3, s3, s32
                    s_mul_i32 s4, s3, {4*36864}
                    s_add_u32 s4, s4, {WS_P}
                    v_writelane_b32 v84, s4, 2
                    s_add_u32 s4, s4, {4*36864 - 128}
                    v_writelane_b32 v84, s4, 3
                    s_mov_b32 s4, {WS_F + 65536 - 128}
                    v_writelane_b32 v84, s4, 4
                    s_mul_i32 s4, s31, {96*2304}
                    v_mov_b32 v85, s4
                    s_add_u32 s4, s4, {96*2304 - 128}
                    v_writelane_b32 v85, s4, 1
                    s_mov_b64 s[16:17], s[78:79]
                    s_mov_b32 s18, 1769472
                    buffer_load_dword v87, v84, s[24:27], 0 offen nt ; @junk
                    buffer_load_dword v87, v85, s[16:19], 0 offen nt ; @junk""")
            a.label("L_notlb")
        a.vm = keep
        for t in (2, 3, 4): carry = tile_body(a, opt, t, carry)
        assert carry == carry1
        a.e("s_sub_u32 s46, s46, 1\ns_cmp_lg_u32 s46, 0\ns_cbranch_scc1 L_tile")
        for o in a.vm:
            if o.tag and o.tag[0] == "u": o.tag = f"u{int(o.tag[1:]) + 18}"
    stamp(a, "l1", opt)
    raw = lambda L: "\n".join(("LABEL " + y[6:] if y.startswith("LABEL ") else "RAW " + y) for x in L for y in x.split("\n"))
    w0blk = "s_cmp_eq_u32 s7, 1\ns_cbranch_scc1 L_now0\n" + raw([f"""v_mov_b32 v86, {TOP + 3072 + 24}
s_mov_b32 s47, 0x400000
LABEL L_yq
ds_read_b64 v[84:85], v86
s_sub_u32 s47, s47, 1
s_waitcnt lgkmcnt(0)
v_min_u32 v84, v84, v85
s_nop 1
v_readfirstlane_b32 s3, v84
s_nop 1
s_cmp_eq_u32 s47, 0
s_cselect_b32 s3, 1, s3
s_cmp_lt_u32 s3, 1
s_cbranch_scc1 L_yq"""] + [x.replace("buffer_load", "s_nop 0\nbuffer_load") for x in wX(0, VO)]) + "\nLABEL L_now0"
    W0 = lambda t: [([w0blk], opt.w0at[1], opt.w0at[1] + 1)] if opt.w0at and opt.w0at[0] == t else []
    carry = tile_body(a, opt, 14, carry, extra=W0(14))
    xo = lambda k: (k // 8) * SLOT + (k % 8) * 1024
    def send(qb):
        return [f"ds_write_b128 v28, {ar(Oacc(2+i,qb) + 4*g, 4)} offset:{xo((i*3 + qb)*4 + g)}" for i in range(2) for g in range(4)]
    accr = lambda qb: [f"v_accvgpr_read_b32 v{160 + (i*3+qb)*16 + r}, a{Oacc(i,qb) + r}" for i in range(2) for r in range(16)]
    pre = ["buffer_load_dword v106, v108, s[56:59], 0 offen sc1 ; @tag",
           f"v_add_u32 v28, s37, v{VL16}", "s_lshl_b32 s3, s6, 14\ns_sub_u32 s3, 8192, s3", "v_add_u32 v29, s3, v28",
           f"s_mul_i32 s3, s28, 768\ns_add_u32 s3, s3, {TOP}", f"v_lshlrev_b32 v30, 3, v{L31}", "v_add_u32 v30, s3, v30",
           f"s_xor_b32 s3, s28, 1\ns_mul_i32 s3, s3, 768\ns_add_u32 s3, s3, {TOP}", f"v_lshlrev_b32 v31, 3, v{L31}", "v_add_u32 v31, s3, v31"]
    team = "v_and_b32 v13, 3, v1\nv_lshlrev_b32 v13, 10, v13\nv_and_b32 v14, 4, v1\nv_add_u32 v13, v13, v14"
    askX = [f"s_andn2_b32 s71, s2, 24\ns_lshl_b32 s71, s71, 7\ns_add_u32 s69, s71, {WS_F}"] + team.split("\n") + ["buffer_load_dword v12, v13, s[24:27], s69 offen sc1"]
    carry = tile_body(a, opt, 15, carry, extra=[(pre, 8, 16), (askX, 28, 34), (send(0), 34, 48)] + W0(15) + ([(accr(0), 33, 44)] if opt.accearly else []))
    sl = [[] for _ in range(8)]
    carry = [x for y in carry for x in y]
    cut = max([i + 1 for i, x in enumerate(carry) if x.startswith(f"v_cvt_pk_bf16_f32 v{Sreg(2,3)},")] + [len(carry) - 16, 0])
    emit(a, carry[:cut])
    spread(sl, carry[cut:], 0, 3)
    st = []
    for qb in range(3): st += [f"v_mov_b32 v{3+2*qb}, v{LSUM+qb}", f"v_mov_b32 v{2+2*qb}, v{NM+16*qb}"]
    for qb in range(3): st += [f"v_permlane32_swap_b32 v{LSUM+qb}, v{3+2*qb}"]
    for qb in range(3): st += [f"v_add_f32 v{3+2*qb}, v{LSUM+qb}, v{3+2*qb}", f"ds_write_b64 v30, v[{2+2*qb}:{3+2*qb}] offset:{qb*256}"]
    spread(sl, st + send(1), 3, 8)
    for m, f in zip(pv(2, False), sl): emit(a, [m] + f)
    stamp(a, "t15", opt)
    emit(a, accr(1)[:12] + send(2))
    emit(a, ([] if opt.accearly else accr(0)) + accr(1)[12:] + accr(2))
    a.e("s_mov_b32 s4, 0x100000")
    a.label("L_tag")
    a.e("""s_waitcnt vmcnt(0)
           v_readfirstlane_b32 s75, v106
           s_cmp_lg_u32 s75, 0
           s_cbranch_scc1 L_tag_ok
           buffer_load_dword v106, v108, s[56:59], 0 offen sc1 ; @junk
           s_sub_u32 s4, s4, 1
           s_cmp_lg_u32 s4, 0
           s_cbranch_scc1 L_tag""")
    a.label("L_tag_ok"); a.vm = []
    a.e(f"""s_lshl_b32 s3, s39, 5
            s_add_u32 s3, s3, s33
            s_mul_i32 s52, s3, 24576
            s_mul_i32 s3, s6, 12288
            s_add_u32 s52, s52, s3
            s_waitcnt lgkmcnt(0)""")
    if opt.earr: arrive()
    ACC, WF, OF = 112, 16, 0
    def ask(base, lanes):
        a.e(f"s_add_u32 s69, {base}, {WS_F}\n{lanes}\nbuffer_load_dword v12, v13, s[24:27], s69 offen sc1")
    def check(tag):
        a.e("s_mov_b32 s4, 0x100000")
        a.label(f"L_poll{tag}")
        a.e(f"""s_waitcnt vmcnt(0)
                v_cmp_ne_u32 vcc, s75, v12
                s_cbranch_vccz L_got{tag}
                s_sleep 1
                buffer_load_dword v12, v13, s[24:27], s69 offen sc1
                s_sub_u32 s4, s4, 1
                s_cmp_lg_u32 s4, 0
                s_cbranch_scc1 L_poll{tag}""")
        a.label(f"L_got{tag}")
        a.e("s_waitcnt vmcnt(0)")
    def wreads(buf, rows, F):
        reg, boff = (AD, AD + 1, 220, 221)[buf], 0
        return [f"ds_read_b64_tr_b16 {vr(F + nb*4 + 2*k, 2)}, v{reg} offset:{boff + (rows + 8*k) * 288 + 32*nb}" for nb in range(9) for k in range(2)]
    def oload(tag, head, db0, nks, dst):
        Gs = []
        for kl in range(nks):
            for j in range(3):
                g = [f"s_add_u32 s47, s66, {head}", "s_and_b32 s47, s47, 7", "s_mul_i32 s47, s47, 24576", "s_add_u32 s47, s47, s37"] + \
                    ([f"s_add_u32 s47, s47, {db0}"] if db0 else []) if kl + j == 0 else ["s_add_u32 s47, s47, 6144"] if j == 0 else []
                Gs.append("\n".join(g + [f"buffer_load_dwordx4 {ar(dst + (kl*3+j)*4, 4)}, v{VL16}, s[24:27], s47 offen offset:{j*1024} sc1 ; @{tag}"]))
        return Gs
    def kstep(F, O, zero, reads, jobs):
        ms = [f"v_mfma_f32_16x16x32_bf16 {vr(ACC + (nb*3+j)*4, 4)}, {vr(F+nb*4,4)}, {ar(O+j*4,4)}, " + ("0" if zero else vr(ACC + (nb*3+j)*4, 4))
              for nb in range(9) for j in range(3)]
        sl = [[] for _ in range(27)]
        spread(sl, reads, 0, 20); spread(sl, jobs, 0, 27)
        a.e("s_waitcnt lgkmcnt(0)")
        for m, f in zip(ms, sl): emit(a, [m] + f)
        return ms
    team = "v_and_b32 v13, 3, v1\nv_lshlrev_b32 v13, 10, v13\nv_and_b32 v14, 4, v1\nv_add_u32 v13, v13, v14"
    a.e(f"""s_lshl_b32 s3, s2, 7
            s_lshl_b32 s4, s28, 2
            s_add_u32 s70, s3, s4
            s_add_u32 s70, s70, {WS_F}
            s_lshl_b32 s3, s39, 2
            s_add_u32 s3, s3, s30
            s_mul_i32 s37, s3, {8*24576}
            s_mul_i32 s4, s6, 3072
            s_add_u32 s37, s37, s4
            s_mul_i32 s4, s7, 12288
            s_add_u32 s37, s37, s4
            s_mov_b32 s45, 0
            s_cmp_eq_u32 s7, 0
            s_cbranch_scc1 L_noearly
            v_cmp_ne_u32 vcc, s75, v12
            s_cbranch_vccnz L_noearly
            s_mov_b32 s45, 1""")
    for st in range(NX, 4): emit(a, oload(f"o{st}", HEAD[st], 0, 2, 24*st))
    a.label("L_noearly"); a.vm = []
    a.e(f"v_sub_u32 v27, v29, v{VL16}\nv_add_u32 v27, v27, v{VOL}")
    psync(opt.earr)
    stamp(a, "c_bar", opt)
    for qb in range(3): a.e(f"ds_read_b64 v[{8+2*qb}:{9+2*qb}], v31 offset:{qb*256}")
    RC = (32, 48, 64, 112, 128, 144)
    def recv(blk):
        for g in range(4): a.e(f"ds_read_b128 {vr(RC[blk]+4*g,4)}, v29 offset:{xo(blk*4 + g)}")
    recv(0); recv(1)
    SC = 16
    for qb in range(3):
        pn, pl, on, ol = 8 + 2*qb, 9 + 2*qb, 2 + 2*qb, 3 + 2*qb
        a.auto(f"v_min_f32 v22, v{on}, v{pn}")
        a.e(f"""v_sub_f32 v23, v22, v{on}
                v_sub_f32 v24, v22, v{pn}
                v_exp_f32 v23, v23
                v_exp_f32 v24, v24
                v_mul_f32 v{ol}, v{ol}, v23
                v_fmac_f32 v{ol}, v{pl}, v24
                v_rcp_f32 v{ol}, v{ol}
                v_mul_f32 v{SC+2*qb}, v23, v{ol}
                v_mul_f32 v{SC+2*qb+1}, v24, v{ol}""")
    recv(2); recv(3); recv(4); recv(5)
    for blk in range(6):
        i, qb = divmod(blk, 3)
        K = 160 + blk*16; Rr = RC[blk]
        a.wait(lgregs=regs_of(vr(Rr, 16)))
        for r in range(0, 16, 2):
            a.e(f"v_pk_mul_f32 v[{Rr+r}:{Rr+r+1}], v[{Rr+r}:{Rr+r+1}], v[{SC+2*qb}:{SC+2*qb+1}] op_sel:[0,1] op_sel_hi:[1,1]")
        for r in range(0, 16, 2):
            a.e(f"v_pk_fma_f32 v[{K+r}:{K+r+1}], v[{K+r}:{K+r+1}], v[{SC+2*qb}:{SC+2*qb+1}], v[{Rr+r}:{Rr+r+1}] op_sel_hi:[1,0,1]")
        for j in range(8):
            a.e(f"v_cvt_pk_bf16_f32 v{K+8*(j//4)+j%4}, v{K+2*j}, v{K+2*j+1}")
        a.e(f"s_add_u32 s47, s52, {WS_O + (i*6 + 2*qb)*1024}")
        for s in range(2):
            a.e(f"buffer_store_dwordx4 {vr(K+8*s,4)}, v{VOL}, s[24:27], s47 offen offset:{512*s} sc1")
            a.e(f"ds_write_b128 v27, {vr(K+8*s,4)} offset:{xo(i*6 + 2*qb) + 512*s}")
    stamp(a, "comb", opt)
    a.e("v_mov_b32 v14, s75\ns_cmp_eq_u32 s7, 1\ns_cbranch_scc1 L_tailY")
    stT = save(a)
    if not opt.w0at: other_pair("L_yq", 24, 1)
    if NX == 0:
        VOR = 224
        a.e("s_waitcnt vmcnt(0)\nbuffer_store_dword v14, v108, s[24:27], s70 offen sc1")
        emit(a, vo_calc(VOR, "rev") + wX(0, VOR))
        a.e("s_waitcnt lgkmcnt(0)"); psync()
        emit(a, wX(1, VOR))
        ask("s71", team); check("A"); stamp(a, "chkA", opt)
    else:
        if not opt.w0at: emit(a, wX(0, VO))
        a.e(f"""s_waitcnt vmcnt(0)
                buffer_store_dword v14, v108, s[24:27], s70 offen sc1
                v_add_u32 v3, 8192, v{VL16}
                s_waitcnt lgkmcnt(0)""")
        psync()
        a.e("s_cmp_eq_u32 s6, 1\ns_cbranch_scc1 L_x1")
        sv = save(a)
        for qh in range(2):
            if qh: a.label("L_x1"); load(a, sv)
            for db in range(4):
                for j in range(3): a.e(f"ds_read_b128 {ar(192 + (db*3+j)*4, 4)}, v{3 if db < 2 else VL16} offset:{xo((db % 2)*6 + 3*qh + j)}")
            if qh == 0: a.e("s_branch L_x2")
        a.label("L_x2")
        VOR = 224
        emit(a, vo_calc(VOR, "rev"))
        a.wait(vmtags=["w0"], lg0=True); psync()
        emit(a, wreads(0, 0, WF))
        RS = (192, 0, 48 if NX == 4 else 192, 192)
        wN = lambda st: wX(st, VO if st < NX else VOR)
        xl = lambda st: oload(f"x{st}", HEAD[st], 0, 4, RS[st])
        ask("s71", team)
        for st in range(NX):
            b = BUFOF[st]
            w = wN(1) if st == 0 else []
            if st >= 1: a.wait(vmtags=[f"x{st}"])
            kstep(WF, RS[st], st == 0, wreads(b, 32, WF + 36), w[:9])
            kstep(WF + 36, RS[st] + 12, False, wreads(b, 64, WF), w[9:])
            j = []
            if st == 0:
                check("A"); stamp(a, "chkA", opt)
                for k in range(1, NX):
                    if RS[k] != 192: j += xl(k)
            kstep(WF, RS[st] + 24, False, wreads(b, 96, WF + 36), j)
            a.wait(vmtags=[f"w{st+1}"], lg0=True); psync()
            kstep(WF + 36, RS[st] + 36, False, wreads(BUFOF[st + 1], 0, WF) if st + 1 < NX else [], wN(st + 2))
            if st == 0:
                for k in range(1, NX):
                    if RS[k] == 192: emit(a, xl(k))
    for st in range(NX, 4): emit(a, oload(f"o{st}", HEAD[st], 0, 2, 24*st))
    a.e("s_waitcnt vmcnt(0)\ns_branch L_join")
    a.label("L_tailY"); load(a, stT)
    a.e("s_cmp_eq_u32 s45, 1\ns_cbranch_scc1 L_hadearly")
    sv = save(a)
    ask("s71", team); check("Y")
    a.vm = list(sv[2])
    for st in range(NX, 4): emit(a, oload(f"o{st}", HEAD[st], 0, 2, 24*st))
    a.label("L_hadearly")
    a.e("s_waitcnt lgkmcnt(0)")
    a.label("L_join"); a.lg = []
    a.e(f"""s_add_u32 s71, s71, 8
            v_add_u32 v220, {SB[2] - SB[1]}, v{AD+1}
            v_add_u32 v221, {SB[3] - SB[1]}, v{AD+1}
            s_mul_i32 s3, s7, -8192
            s_add_u32 s3, s3, {YB + 8192}
            v_add_u32 v2, s3, v{VL16}
            v_mov_b32 v15, s75
            s_barrier""")
    stamp(a, "join", opt)
    emit(a, wreads(BUFOF[NX], 0, WF))
    a.e("s_cmp_eq_u32 s6, 1\ns_cbranch_scc1 L_own1")
    sv = save(a)
    for qh in range(2):
        if qh: a.label("L_own1"); load(a, sv)
        for kl in range(2):
            for j in range(3): a.e(f"ds_read_b128 {ar(96 + (kl*3+j)*4, 4)}, v2 offset:{xo(kl*6 + 3*qh + j)}")
        if qh == 0: a.e("s_branch L_own2")
    a.label("L_own2")
    a.wait(vmtags=[f"o{NX}"])
    a.e("s_cmp_eq_u32 s7, 1\ns_cbranch_scc1 L_fy")
    sv = save(a)
    kstep(WF, 24*NX, NX == 0, wreads(BUFOF[NX], 32, WF + 36), [] if opt.plan2 else wS(NX + 2))
    a.e("s_branch L_fx")
    a.label("L_fy"); load(a, sv)
    kstep(WF, 24*NX, True, wreads(BUFOF[NX], 32, WF + 36), [] if opt.plan2 else wS(NX + 2))
    a.e("s_waitcnt vmcnt(0)\nbuffer_store_dword v15, v108, s[24:27], s70 offen sc1 ; @junk")
    a.label("L_fx"); a.vm = [o for o in a.vm if o.tag == f"w{NX+2}"]
    A = max(NX, min(opt.askat, 4))
    oy = lambda k: oload(f"o{k}", HEAD[k], 0, 2, 24*k)
    plan = {}
    for k in range(NX + 4, 8): plan.setdefault((k - 4, 1) if k - 4 > NX else (NX + 1, 0), []).append(wS(k))
    plan.setdefault((NX, 1), []).append(wS(NX + 3))
    if A <= 3:
        for i, k in enumerate((5, 6, 7)): plan.setdefault((A + (i + 1) // 2, (i + 1) % 2), []).insert(0, oy(k))
    if opt.plan2:
        assert NX == 1 and A == 3
        plan = {(1, 1): [wS(3)], (2, 0): [wS(4)], (2, 1): [wS(5)], (3, 1): [oy(5), oy(6)[:3]], (4, 0): [oy(6)[3:], oy(7)], (4, 1): [wS(6)], (5, 0): [wS(7)]}
    if opt.plan3 == 1: plan = {(1, 1): [wS(3)], (2, 0): [wS(4), wS(5)[:4]], (2, 1): [wS(5)[4:], wS(6)], (3, 1): [oy(5), wS(7)], (4, 0): [oy(6)], (4, 1): [oy(7)]}
    if opt.plan3 == 2: plan = {(1, 1): [wS(3), wS(4)[:4]], (2, 0): [wS(4)[4:], wS(5)], (2, 1): [wS(6)], (3, 1): [oy(5), oy(6)[:3]], (4, 0): [oy(6)[3:], oy(7)], (4, 1): [wS(7)]}
    job = lambda st, kl: [x for y in plan.get((st, kl), []) for x in y]
    for st in range(NX, 8):
        stamp(a, f"s{st}", opt)
        if st > NX:
            if st == A: ask("s71", team)
            if st >= 5: a.wait(vmtags=[f"o{st}"])
            kstep(WF, 24*st, False, wreads(BUFOF[st], 32, WF + 36), job(st, 0))
        elif st == A: ask("s71", team)
        if st == A and A <= 3: check("B"); stamp(a, "chk1", opt)
        if st < 7:
            a.wait(vmtags=[f"w{st+1}"], lg0=True); a.e("s_barrier")
            kstep(WF + 36, 24*st + 12, False, wreads(BUFOF[st + 1], 0, WF), job(st, 1))
        if st == A and A == 4:
            check("B"); stamp(a, "chk1", opt); emit(a, oy(5) + oy(6) + oy(7))
    a.e(f"""s_lshl_b32 s3, s28, 14
            v_add_u32 v13, s3, v{VL16}
            v_xor_b32 v14, 32768, v13
            s_lshl_b32 s52, s39, 2
            s_add_u32 s52, s52, s32
            s_lshl_b32 s53, s52, 2
            s_add_u32 s53, s53, s30
            s_mul_i32 s53, s53, 36864
            s_mul_i32 s3, s28, 9216
            s_add_u32 s53, s53, s3
            s_add_u32 s47, s53, {WS_P}
            s_waitcnt lgkmcnt(0)
            s_barrier""")
    F, O = WF + 36, 180
    T = lambda nb, j: ACC + (nb*3+j)*4
    ms = [f"v_mfma_f32_16x16x32_bf16 {vr(T(nb,j), 4)}, {vr(F+nb*4,4)}, {ar(O+j*4,4)}, {vr(T(nb,j), 4)}" for nb in (8, 7, 6, 5, 4, 0, 1, 2, 3) for j in range(3)]
    snd = [f"ds_write_b128 v13, {vr(T(nb,j),4)} offset:{((8-nb)*3+j)*1024}" for nb in range(8, 3, -1) for j in range(3)]
    emit(a, ms[:6])
    for k in range(15): emit(a, [ms[6 + k], snd[k]])
    emit(a, ms[21:])
    stamp(a, "gend", opt)
    a.e("s_waitcnt lgkmcnt(0)\ns_barrier")
    stamp(a, "rbar", opt)
    order = [(k, j) for k in range(3) for j in range(3)]
    for k, j in order:
        for nb in range(2*k, min(2*k + 2, 5)): a.e(f"ds_read_b128 {vr(WF + (nb*3+j)*4, 4)}, v14 offset:{(nb*3+j)*1024}")
    for k, j in order:
        r = T(2*k, j)
        for h, nb in enumerate(range(2*k, min(2*k + 2, 5))):
            t, q = T(nb, j), WF + (nb*3+j)*4
            a.wait(lgregs=regs_of(vr(q, 4)))
            a.e(f"v_pk_add_f32 v[{t}:{t+1}], v[{t}:{t+1}], v[{q}:{q+1}]\nv_pk_add_f32 v[{t+2}:{t+3}], v[{t+2}:{t+3}], v[{q+2}:{q+3}]")
            a.e(f"v_cvt_pk_bf16_f32 v{r+2*h}, v{t}, v{t+1}\nv_cvt_pk_bf16_f32 v{r+2*h+1}, v{t+2}, v{t+3}")
        if k < 2: a.e(f"buffer_store_dwordx4 {vr(r,4)}, v{VL16}, s[24:27], s47 offen offset:{j*1024} sc1")
        else: a.e(f"buffer_store_dwordx2 {vr(r,2)}, v{VL16}, s[24:27], s47 offen offset:{j*1024} sc1")
        if j == 2 and k < 2: a.e("s_add_u32 s47, s47, 3072")
    a.e(f"""s_add_u32 s70, s70, 32768
            s_andn2_b32 s71, s2, 3
            s_lshl_b32 s71, s71, 7
            s_add_u32 s71, s71, 32768
            v_and_b32 v10, 15, v1
            v_mul_u32_u24 v10, 2304, v10
            v_lshrrev_b32 v11, 4, v1
            v_lshl_add_u32 v10, v11, 3, v10
            s_mul_i32 s52, s52, {4*36864}
            s_add_u32 s52, s52, {WS_P}
            s_mul_i32 s53, s31, {96*2304}
            s_mul_i32 s3, s29, 1152
            s_add_u32 s53, s53, s3
            s_mul_i32 s3, s32, 288
            s_add_u32 s53, s53, s3
            s_lshl_b32 s54, s30, 2
            s_add_u32 s54, s54, s28""")
    srd(a, 8, "s78", "s79", 1769472)
    def decode(i):
        A, B, C = 56 + 4*i, 57 + 4*i, 58 + 4*i
        a.e(f"""s_add_u32 s3, s54, {16*i}
                s_mul_i32 s4, s3, 43
                s_lshr_b32 s4, s4, 8
                s_mul_i32 s5, s4, 6
                s_sub_u32 s3, s3, s5            ; q16
                s_mul_i32 s{B}, s3, {16*2304}
                s_add_u32 s{B}, s{B}, s53
                s_cmp_ge_u32 s3, 3
                s_cselect_b32 s5, {9216 - 3072}, 0
                s_lshl_b32 s3, s3, 10
                s_add_u32 s{A}, s3, s5          ; qh * 9216 + j * 1024
                s_add_u32 s{A}, s{A}, s52
                s_and_b32 s3, s4, 1
                s_cmp_eq_u32 s4, 4
                s_cselect_b32 s3, 2, s3         ; k
                s_cselect_b32 s{C}, 0, 32
                s_mul_i32 s5, s3, 3072
                s_add_u32 s{A}, s{A}, s5
                s_lshl_b32 s3, s3, 6
                s_and_b32 s4, s4, 2
                s_cmp_eq_u32 s4, 2
                s_cselect_b32 s5, 18432, 0
                s_add_u32 s{A}, s{A}, s5
                s_cmp_eq_u32 s4, 2
                s_cselect_b32 s{C}, -32, s{C}
                s_sub_u32 s5, 256, s3
                s_cmp_eq_u32 s4, 2
                s_cselect_b32 s3, s5, s3
                s_add_u32 s{B}, s{B}, s3""")
    stamp(a, 'rst', opt)
    decode(0); decode(1)
    stamp(a, 'dec', opt)
    a.e("s_waitcnt vmcnt(0)\nbuffer_store_dword v15, v108, s[24:27], s70 offen sc1")
    stamp(a, "pub2", opt)
    ask("s71", "v_and_b32 v13, 3, v1\nv_lshlrev_b32 v13, 7, v13\nv_and_b32 v14, 12, v1\nv_add_u32 v13, v13, v14"); check(2)
    stamp(a, "chk2", opt)
    def loads(i):
        for o in range(4):
            a.e(f"buffer_load_dwordx4 {vr(16+16*i+4*o,4)}, v{VL16}, s[24:27], s{56+4*i} offen sc1")
            if o < 3: a.e(f"s_add_u32 s{56+4*i}, s{56+4*i}, 36864")
    def fin(i, left):
        b, D = 16 + 16*i, 112 + 16*i
        for o in range(4):
            a.e(f"s_waitcnt vmcnt({left + 3 - o})")
            for k in range(4):
                r = b + 4*o + k
                if o == 0: a.e(f"v_lshlrev_b32 v{D+2*k}, 16, v{r}\nv_and_b32 v{D+2*k+1}, 0xffff0000, v{r}")
                else: a.e(f"v_lshlrev_b32 v{D+8}, 16, v{r}\nv_and_b32 v{r}, 0xffff0000, v{r}\nv_add_f32 v{D+2*k}, v{D+2*k}, v{D+8}\nv_add_f32 v{D+2*k+1}, v{D+2*k+1}, v{r}")
        for k in range(4): a.e(f"v_cvt_pk_bf16_f32 v{D+k}, v{D+2*k}, v{D+2*k+1}")
        a.e(f"""buffer_store_dwordx2 v[{D}:{D+1}], v10, s[8:11], s{57+4*i} offen{opt.opol}
                s_add_u32 s{57+4*i}, s{57+4*i}, s{58+4*i}""")
        if i == 1: a.e("s_cmp_eq_u32 s62, 0\ns_cbranch_scc1 L_rd2")
        a.e(f"buffer_store_dwordx2 v[{D+2}:{D+3}], v10, s[8:11], s{57+4*i} offen{opt.opol}")
    loads(0)
    a.e("s_cmp_ge_u32 s54, 14\ns_cbranch_scc1 L_rd1")
    sv = save(a)
    loads(1); fin(0, 4); fin(1, 0)
    a.e("s_branch L_rd2")
    a.label("L_rd1"); load(a, sv)
    fin(0, 0)
    a.label("L_rd2")
    stamp(a, "end", opt)
    if opt.stamps:
        a.e(f"s_lshl_b32 s3, s2, 2\ns_add_u32 s3, s3, s28\ns_lshl_b32 s3, s3, 7\ns_add_u32 s3, s3, {WS_STAMP}\nv_mov_b32 v0, 0")
        for i in range(1 + len(opt.sset)):
            a.e(f"v_mov_b32 v2, s{STB+2*i}\nv_mov_b32 v3, s{STB+1+2*i}\nbuffer_store_dwordx2 v[2:3], v0, s[24:27], s3 offen offset:{8*i}\ns_waitcnt vmcnt(0)")
    a.label("L_done")
    a.e("s_endpgm")
    a.label("L_end")
    for qb in range(3): rare(a, qb)

def build(opt):
    a = Asm()
    for l in """; Fused q-projection + softmax attention + output projection for both halves (A, B); written with a generator script.
; One workgroup (4 waves, 512 registers each, 160 KB LDS) per CU handles two heads X, Y of one batch:
;   1. Q = x wq (MFMA 32x32x16, LDS / register staged), scaled by log2(e)/sqrt(d)
;   2. waves 0,1 = head X, waves 2,3 = head Y, keys split between the two waves; K/V tiles stream through a private
;      LDS-DMA ring; online softmax against a reference max that a per-tile check raises to the true max when needed
;   3. pair combine, O (bf16) handed to the three workgroups with the same batch and head octet (write-through
;      stores, per-wave flags carrying a launch tag), 96 x 144 x 1024 partial output projection (MFMA 16x16x32),
;      partial tiles summed over the four octets through a second hand-off""".split("\n"): a.raw(l)
    a.raw("; @launch grid=(256,1,1) block=(256,1,1) lds=163840")
    a.raw('.amdgcn_target "amdgcn-amd-amdhsa--gfx950"')
    kernel(a, NAME + "_kernel", opt)
    a.raw('.section .rodata,"a"\n.p2align 6')
    a.raw("\n".join([f".amdhsa_kernel {NAME}_kernel", "  .amdhsa_next_free_vgpr 512", "  .amdhsa_next_free_sgpr 102",
        "  .amdhsa_accum_offset 256", "  .amdhsa_group_segment_fixed_size 0", "  .amdhsa_kernarg_size 104",
        "  .amdhsa_user_sgpr_count 2", "  .amdhsa_user_sgpr_kernarg_segment_ptr 1",
        "  .amdhsa_system_sgpr_workgroup_id_x 1", ".end_amdhsa_kernel"]))
    return a.text(), a

if __name__ == "__main__":
    opt = Opt()
    out = sys.argv[1] if len(sys.argv) > 1 else "k.s"
    for kv in sys.argv[2:]:
        k, v = kv.split("=", 1); assert hasattr(opt, k), k
        setattr(opt, k, eval(v))
    t, a = build(opt)
    open(out, "w").write(t)
    print(out, "lines", t.count("\n"), "pad", a.npad)
```

```python
import sys, struct, math
sys.path.insert(0, "dev")
from asmlib import Asm, spread, regs_of, level_fill
import gen5
from gen5 import (NAME, f2u, CSC, THR_LOG2, WS_BYTES, WS_O, WS_P, WS_F, WS_STAMP, STB, vr, ar, srd, stamp, emit,
                  VOFFK, VOFFV, VKA, VVA, LSUM, TMAX, VT, NM, S0, Q0, KF, VF, Sreg, Qreg, Oacc, softmax, qk, pv, rare)

class Opt:
    wp = "pppp"
    noB = False
    stamps = False
    sset = ['q0', 'k0', 't15', 'comb', 'join', 'chk1', 'gend', 'pub2', 'end']
    thr0 = 0.0
    thr1 = 1.25
    clk = "s_memrealtime"
    rot = True
    krot = 4
    qlev = True
    touch = {}
    ctouch = None
    w0at = (14, 44)
    plan2 = True
    capfrom = 4
    firstfree = False
    free01 = False
    u3late = 0
    rwait = None
    plan3 = 0
    earr = False
    rlate = 0
    rspan = 80
    kspan = 30
    wdel = 8
    kvtlb = False
    capb = None
    pbf16 = True
    k1early = False
    wot = 4
    wotnt = None
    tlb = 0
    nx = 1
    accearly = True
    cap = ((6, 6, 7), 5)
    capend = 30
    hold = False
    xgate = 0
    last = (0, 0)
    ylast = 1
    kvsame = False
    unroll = False
    a0at = 2
    opol = ''
    late = 0
    prio = 0
    gate = 12
    pace = 1.0
    d1 = (8, 10, 12, 14, 22, 24, 26, 27)
    d2 = (29, 31, 33, 35, 37, 39, 44, 47)
    dcost = 4.0
    acct = 0
    w0 = 10
    askat = 3
    fewwait = True
    vwin = (16, 22)
    kwin = (40, 44)
    tpol = ''
    wopol = ''

SLOT = 16384
SV = 126976
def slot(u): return (2 if u == 0 else (-u) % 3) * SLOT
STG = lambda i: 45056 + 28672 * i
TOP = 159744
SB = (122880, 0, 86016, 49152)
NS = 3
YB = 49152

def dma_unit(u, opt):
    kind = "KV"[u % 2]; sreg = "s36" if kind == "K" else "s35"
    srdn = "s[8:11]" if kind == "K" else "s[12:15]"
    G = []
    for j in range(8):
        g = []
        mb, mo = ("s54", 0) if u == 1 else ("s37", slot(u))
        if j == 0: g += [f"s_add_u32 m0, {mb}, {mo}", f"s_add_u32 s51, s34, {sreg}"]
        if j == 1 and not opt.kvsame: g += [f"s_add_u32 {sreg}, {sreg}, 16384", f"s_and_b32 {sreg}, {sreg}, 0x3ffff"]
        if j == 4: g += [f"s_add_u32 m0, {mb}, {mo + 4096}", "s_add_u32 s51, s51, 4096"]
        vo = VOFFK + j % 4 if kind == "K" else VOFFV
        if opt.cap and opt.capfrom <= u <= opt.capend:
            cx, cy = opt.cap
            cx, cy = (c if isinstance(c, int) else c[j % len(c)] for c in (cx, cy))
            dma_unit.n += 1; n = dma_unit.n
            bx, by = (c if isinstance(c, int) else c[j % len(c)] for c in (opt.capb or opt.cap))
            prev = None
            for lv, c in enumerate((bx, cx, by, cy)):
                if c == prev: continue
                R_ = "RAW " if prev else ""
                g += [R_ + f"s_cmp_le_u32 s50, {lv}", R_ + f"s_cbranch_scc1 L_cap{n}", f"RAW s_waitcnt vmcnt({c - 1})"]
                assert prev is None or c < prev
                prev = c
            g += [f"LABEL L_cap{n}"]
        g.append(f"buffer_load_dwordx4 v{vo}, {srdn}, s51 offen offset:{(j % 4)*1024} nt lds ; @u{u}")
        G.append("\n".join(g))
    return G
dma_unit.n = 0
def kreads(t): return [f"ds_read_b128 {ar(KF+4*s,4)}, v{VKA+s} offset:{slot(2*t)}" for s in range(8)]
def vreads(t):
    return [f"ds_read_b64_tr_b16 {ar(VF + db*8 + s*4 + k*2, 2)}, v{(VVA if t else 28)+db} offset:{(slot(2*t+1) if t else 0) + 4096*s + 2048*k}"
            for s in range(2) for db in range(4) for k in range(2)]
def tile_body(a, opt, t, carry, extra=()):
    first = t == 0
    M = qk(0, first) + (pv(2, t == 1) if t else [None]*8) + qk(1, first) + pv(0, first) + qk(2, first) + pv(1, first)
    W = opt.w0
    sl = [[] for _ in range(48 + W)]
    def at(G, slots):
        for g, k in zip(G, slots): sl[k].append(g)
    if 2*t + NS <= 31: at(dma_unit(2*t + NS if t else 4, opt), opt.d1)
    spread(sl, [f"WAITVM u{2*t+1}"] + vreads(t), *opt.vwin)
    if 2*t + NS + 1 <= 31 and t: at(dma_unit(2*t + NS + 1, opt), opt.d2)
    if t < 15: spread(sl, [f"WAITVM u{2*t+2}"] + kreads(t + 1), *opt.kwin)
    if t == 14 and opt.xgate: sl[30].append('v_mov_b32 v27, 2\nds_write_b32 v109, v27 offset:16')
    if opt.hold or t == 0: sl[46].append("s_add_u32 s45, s45, 1\nv_mov_b32 v27, s45\nds_write_b32 v109, v27 offset:16")
    if 1 <= t <= 14 and opt.hold:
        sl[44].append("ds_read_b64 v[30:31], v26")
        sl[47].append(f"""AUTO v_min_u32 v30, v30, v31
s_add_u32 s38, s38, s50
s_min_i32 s38, s38, 256
v_readfirstlane_b32 s3, v30
s_lshl_b32 s3, s3, 4
s_cmp_ge_i32 s3, s38
s_cbranch_scc1 L_go{t}
s_call_b64 s[40:41], L_hold
LABEL L_go{t}""")
    for e in extra: spread(sl, *e)
    for i, x in enumerate(carry): sl[i] = x + sl[i]
    ghost = {48 + k: "buffer_x\ns_nop 0\ns_nop 0" for k in opt.d1 if k < W}
    for k, g in ghost.items(): sl[k].append(g)
    level_fill(sl, softmax(0, t, first), W, W + 16, opt.dcost)
    level_fill(sl, softmax(1, t, first), W + 16, W + 32, opt.dcost)
    level_fill(sl, softmax(2, t, first), W + 32, W + 48, opt.dcost)
    for k in ghost: sl[k] = sl[k][1:]
    for i in range(48):
        if opt.fewwait:
            if i == 0: a.wait(lgregs=regs_of(ar(KF, 32)))
            if i == 24: a.wait(lgregs=regs_of(ar(VF, 32)))
        if M[i]: emit(a, [M[i]])
        for x in sl[i]:
            if opt.acct and x.startswith("WAITVM"):
                keep = list(a.lg)
                a.e("s_memtime s[94:95]"); emit(a, [x]); a.e("s_memtime s[96:97]\ns_waitcnt lgkmcnt(0)\ns_sub_u32 s96, s96, s94")
                r = 98 if int(x.split("u")[1]) % 2 else 100
                a.e(f"s_add_u32 s{r}, s{r}, s96")
            elif opt.acct == 2 and "lds ;" in x:
                a.e("s_memtime s[94:95]"); emit(a, [x]); a.e("s_memtime s[96:97]\ns_waitcnt lgkmcnt(0)\ns_sub_u32 s96, s96, s94\ns_add_u32 s92, s92, s96")
            else: emit(a, [x])
    return sl[48:]

def save(a): return (list(a.hist), list(a.lg), list(a.vm))
def load(a, st): a.hist, a.lg, a.vm = (list(x) for x in st)

def kernel(a, name, opt):
    a.raw(".text"); a.raw(f".globl {name}"); a.raw(".p2align 8"); a.raw(f".type {name},@function")
    a.label(name, reset=True)
    a.e("""s_load_dwordx8 s[56:63], s[0:1], 0
           s_load_dwordx8 s[64:71], s[0:1], 40
           s_load_dwordx2 s[72:73], s[0:1], 96
           s_load_dwordx2 s[40:41], s[0:1], 32
           s_load_dwordx2 s[42:43], s[0:1], 72
           s_load_dwordx4 s[44:47], s[0:1], 80
           s_memrealtime s[48:49]
           s_cmp_ge_u32 s2, 256
           s_cbranch_scc1 L_done""")
    if opt.stamps: a.e(f"{opt.clk} s[{STB}:{STB+1}]")
    VW, VXA, VXB, AW, AX, VD = 72, 73, 74, 76, 64, 111
    G, L15, H, L31, G1, R, C4 = 88, 89, 90, 91, 92, 81, 82
    VFO, VFP = 109, 110
    a.e(f"""v_lshrrev_b32 v1, 6, v0
            s_and_b32 s3, s2, 7
            s_lshr_b32 s29, s3, 2
            s_and_b32 s30, s3, 3
            v_readfirstlane_b32 s28, v1
            s_lshr_b32 s3, s2, 3
            s_lshr_b32 s31, s3, 2
            s_and_b32 s32, s3, 3
            v_and_b32 v1, 63, v0
            v_lshrrev_b32 v{G}, 4, v1
            v_and_b32 v{L15}, 15, v1
            v_lshrrev_b32 v56, 3, v1
            v_and_b32 v57, 7, v1
            v_and_b32 v{G1}, 1, v{G}
            v_lshlrev_b32 v59, 2, v{G1}
            v_xor_b32 v59, v57, v59
            v_lshlrev_b32 v59, 4, v59
            v_lshl_add_u32 v{VW}, v56, 13, v59
            v_mul_u32_u24 v60, 1152, v56
            v_xor_b32 v61, v57, v{G}
            s_and_b32 s6, s28, 1
            s_lshr_b32 s7, s28, 1
            s_lshl_b32 s3, s6, 2
            v_xor_b32 v61, s3, v61
            v_lshl_add_u32 v{VXA}, v61, 4, v60
            v_xor_b32 v61, 4, v61
            v_lshl_add_u32 v{VXB}, v61, 4, v60
            s_mul_i32 s37, s7, {YB}
            s_lshl_b32 s3, s6, 13
            s_add_u32 s37, s37, s3
            s_lshl_b32 s33, s30, 3
            s_lshl_b32 s3, s32, 1
            s_add_u32 s33, s33, s3              ; head X
            s_add_u32 s74, s3, s31              ; b + 2p
            s_lshl_b32 s52, s33, 8
            s_lshl_b32 s3, s28, 7
            s_add_u32 s52, s52, s3
            s_mul_i32 s53, s31, 110592
            s_mul_i32 s3, s28, 27648
            s_add_u32 s53, s53, s3              ; x rows 24w..
            s_mul_i32 s55, s28, 3072
            s_mov_b32 s18, 884736
            s_mov_b32 s19, 0x20000
            s_mov_b32 s22, 4718592
            s_mov_b32 s23, 0x20000""")
    if opt.krot == 0: a.e("s_mov_b32 s74, 0")
    elif opt.krot == 1: a.e("s_cmp_ge_u32 s74, 9\ns_cselect_b32 s3, 9, 0\ns_sub_u32 s74, s74, s3")
    elif opt.krot == 3: a.e("s_and_b32 s74, s74, 1\ns_lshl_b32 s74, s74, 2")
    elif opt.krot == 2: a.e("s_add_u32 s74, s31, s32\ns_mul_i32 s3, s74, 86\ns_lshr_b32 s3, s3, 8\ns_mul_i32 s3, s3, 3\ns_sub_u32 s74, s74, s3\ns_mul_i32 s74, s74, 3")
    elif opt.krot == 4: a.e("s_add_u32 s74, s31, s32\ns_and_b32 s74, s74, 3\ns_mul_i32 s74, s74, 9\ns_lshr_b32 s74, s74, 2")
    elif opt.krot == 5: a.e("s_add_u32 s74, s31, s32\ns_and_b32 s74, s74, 1\ns_lshl_b32 s74, s74, 2")
    a.e("s_cmp_eq_u32 s29, 0\ns_waitcnt lgkmcnt(0)")
    for d, o in ((20, 6), (16, 0), (8, 2), (12, 4)):
        a.e(f"s_cselect_b32 s{d}, s{56+o}, s{64+o}\ns_cselect_b32 s{d+1}, s{57+o}, s{65+o}")
    a.e("""s_cselect_b32 s76, s40, s42
           s_cselect_b32 s77, s41, s43
           s_mov_b64 s[78:79], s[44:45]
           s_mov_b64 s[80:81], s[46:47]
           s_or_b32 s75, s48, 1""")
    P = lambda ch: " nt" if ch == "n" else ""
    XS = 98304
    VW4, VX3 = 32, 36
    a.e(f"""v_mov_b32 v{VW4}, v{VW}
            v_add_u32 v{VW4+1}, {65536 - 1024}, v{VW}
            v_add_u32 v{VW4+2}, {2*(65536 - 1024)}, v{VW}
            v_add_u32 v{VW4+3}, {3*(65536 - 1024)}, v{VW}
            v_mov_b32 v{VX3}, v{VXA}
            v_add_u32 v{VX3+1}, {9216 - 1024}, v{VXB}
            v_add_u32 v{VX3+2}, {2*(9216 - 1024)}, v{VXA}
            s_lshl_b32 s4, s74, 19
            s_add_u32 s4, s4, s52
            s_lshl_b32 s5, s74, 7
            s_add_u32 s5, s5, s53
            s_sub_u32 s74, 9, s74""")
    WR = lambda c, j: ar(((c - 3)*8 + j)*4, 4)
    XR = lambda c, i: ar(192 + ((c-3)*3 + i)*4, 4) if (c-3)*3 + i < 16 else vr(40 + ((c-3)*3 + i - 16)*4, 4)
    def regstage(c):
        Gs = []
        for j in range(8):
            Gs.append(("s_add_u32 s4, s4, 262144\n" if j == 4 else "") + f"buffer_load_dwordx4 {WR(c,j)}, v{VW4 + j % 4}, s[20:23], s4 offen offset:{(j % 4)*1024}{P(opt.wp[0])} ; @s{c}")
        for i in range(3):
            g = ("s_add_u32 s4, s4, 262144\n" if i == 0 else "") + f"buffer_load_dwordx4 {XR(c,i)}, v{VX3 + i}, s[16:19], s5 offen offset:{i*1024}{P(opt.wp[1])} ; @s{c}"
            if i == 2: g += f"\ns_add_u32 s5, s5, 128\ns_sub_u32 s74, s74, 1\ns_cmp_lg_u32 s74, 0\ns_cbranch_scc1 L_nw{c}\nRAW s_mov_b32 s4, s52\nRAW s_mov_b32 s5, s53\nLABEL L_nw{c}"
            Gs.append(g)
        return Gs
    def regwrite(c):
        return [f"WAITVM s{c}"] + [f"ds_write_b128 v48, {WR(c,j)} offset:{(c % 2)*SLOT + j*1024}" for j in range(8)] + \
               [f"ds_write_b128 v49, {XR(c,i)} offset:{(c % 2)*12288 + i*1024}" for i in range(3)]
    def stage(c):
        buf = c % 3; Gs = []
        if c >= 3: return regstage(c)
        for j in range(8):
            g = [f"s_add_u32 m0, s37, {buf*SLOT}", "s_nop 0"] if j == 0 else [f"s_add_u32 m0, s37, {buf*SLOT + 4096}", "s_add_u32 s4, s4, 262144"] if j == 4 else []
            Gs.append("\n".join(g + [f"buffer_load_dwordx4 v{VW4 + j % 4}, s[20:23], s4 offen offset:{(j % 4)*1024}{P(opt.wp[0])} lds ; @s{c}"]))
        for i in range(3):
            g = [f"s_add_u32 m0, s55, {XS + buf*12288}", "s_add_u32 s4, s4, 262144"] if i == 0 else []
            g += [f"buffer_load_dwordx4 v{VX3 + i}, s[16:19], s5 offen offset:{i*1024}{P(opt.wp[1])} lds ; @s{c}"]
            if i == 2: g += ["s_add_u32 s5, s5, 128", "s_sub_u32 s74, s74, 1", f"s_cbranch_scc0 L_nw{c}", ]
            Gs.append("\n".join(g))
        Gs[-1] = Gs[-1].replace(f"s_sub_u32 s74, s74, 1\ns_cbranch_scc0 L_nw{c}", f"s_sub_u32 s74, s74, 1\ns_cmp_lg_u32 s74, 0\ns_cbranch_scc1 L_nw{c}\nRAW s_mov_b32 s4, s52\nRAW s_mov_b32 s5, s53\nLABEL L_nw{c}")
        return Gs
    stamp(a, 'ka', opt)
    wtouch = [x.strip() for x in """s_lshr_b32 s3, s2, 3
            s_lshl_b32 s3, s3, 2
            s_add_u32 s3, s3, s28
            s_mul_i32 s3, s3, 9216
            s_mul_i32 s47, s30, 1179648
            v_lshlrev_b32 v24, 7, v1
            v_add_u32 v24, s3, v24
            v_add_u32 v25, 8192, v24
            v_cmp_gt_u32 s[70:71], 8, v1
            v_cndmask_b32 v25, -1, v25, s[70:71]""".split("\n")]
    wtouch = ["\n".join(wtouch + ["buffer_load_dword v23, v24, s[60:63], s47 offen ; @junk"]), "s_mul_i32 s47, s30, 1179648\nbuffer_load_dword v23, v25, s[60:63], s47 offen ; @junk"]
    if opt.wot is not None: srd(a, 60, "s76", "s77", 4718592)
    if opt.wot == 'a': emit(a, wtouch)
    emit(a, stage(0))
    if opt.kvtlb:
        a.e(f"""s_mov_b32 s10, {1 << 26}
                s_mov_b32 s11, 0x20000
                s_mov_b32 s14, {1 << 26}
                s_mov_b32 s15, 0x20000
                s_lshl_b32 s3, s31, 5
                s_add_u32 s3, s3, s33
                s_add_u32 s3, s3, s7
                s_lshl_b32 s3, s3, 18
                v_and_b32 v24, 3, v1
                v_lshlrev_b32 v24, 16, v24
                buffer_load_dword v23, v24, s[8:11], s3 offen nt ; @junk
                buffer_load_dword v23, v24, s[12:15], s3 offen nt ; @junk""")
    if opt.wot == 'b': emit(a, wtouch)
    stamp(a, 'i0', opt)
    srd(a, 56, "s80", "s81", 256)
    a.e("""s_lshl_b32 s3, s2, 8
           v_add_u32 v106, s3, v0
           v_min_u32 v106, 1, v106
           v_lshlrev_b32 v106, 12, v106
           v_mov_b32 v107, s75
           buffer_store_dword v107, v106, s[56:59], 0 offen sc1""")
    emit(a, stage(1))
    if opt.wot == 'c': emit(a, wtouch)
    for d in (8, 12): a.e(f"s_mov_b32 s{d+2}, {1 << 26}\ns_mov_b32 s{d+3}, 0x20000")
    srd(a, 24, "s72", "s73", WS_BYTES)
    srd(a, 60, "s76", "s77", 4718592)
    a.e(f"""v_lshrrev_b32 v{H}, 5, v1
            v_and_b32 v{L31}, 31, v1
            v_lshrrev_b32 v{R}, 2, v{L15}
            v_and_b32 v{C4}, 3, v1
            v_lshl_add_u32 v59, v{H}, 3, v{R}
            v_lshlrev_b32 v59, 7, v59
            v_lshrrev_b32 v60, 1, v{R}
            v_lshl_add_u32 v59, v60, 6, v59
            v_lshl_add_u32 v59, v{G1}, 5, v59
            v_lshl_add_u32 v59, v{C4}, 3, v59
            v_add_u32 v{AW}, s37, v59
            v_xor_b32 v{AW+1}, 64, v{AW}
            v_bfe_u32 v60, v1, 1, 3
            v_xor_b32 v60, v60, v{H}
            v_lshlrev_b32 v60, 4, v60
            v_lshl_add_u32 v60, v{L31}, 7, v60
            v_add_u32 v{AX}, {XS}, v60""")
    for s in range(1, 4): a.e(f"v_xor_b32 v{AX+s}, {32*s}, v{AX}")
    a.e(f"""s_lshl_b32 s3, s28, 2
            s_add_u32 s3, s3, {TOP + 3072}
            v_mov_b32 v{VFO}, s3
            v_xor_b32 v{VFP}, 4, v{VFO}
            v_mov_b32 v61, 0
            ds_write_b32 v{VFO}, v61
            ds_write_b32 v{VFO}, v61 offset:16
            s_mov_b32 s44, 0
            s_mov_b32 s45, 0""")
    a.e(f"""v_lshlrev_b32 v49, 4, v1
            v_add_u32 v48, s37, v49
            s_add_u32 s3, s55, {XS}
            v_add_u32 v49, s3, v49
            s_lshl_b32 s54, s28, 13
            s_add_u32 s54, s54, {SV}""")
    def frag_reads(c, s, F):
        buf = c if c < 3 else c % 2
        L = [f"ds_read_b64_tr_b16 {vr(F + db*4 + k*2, 2)}, v{AW+db} offset:{buf*SLOT + (16*s + 4*k) * 128}" for db in range(2) for k in range(2)]
        return L + [f"ds_read_b128 {vr(F + 8 + qb*4, 4)}, v{AX+s} offset:{buf*12288 + qb*4096}" for qb in range(3)]
    setup = f"""v_lshlrev_b32 v26, 8, v{G}
            v_xor_b32 v27, v{L15}, v{G}
            v_lshl_add_u32 v{VOFFK}, v27, 4, v26
            v_xor_b32 v{VOFFK+1}, 64, v{VOFFK}
            v_xor_b32 v{VOFFK+2}, 128, v{VOFFK}
            v_xor_b32 v{VOFFK+3}, 192, v{VOFFK}
            v_lshlrev_b32 v27, 2, v{G}
            v_xor_b32 v27, v{L15}, v27
            v_lshl_add_u32 v{VOFFV}, v27, 4, v26
            s_lshl_b32 s3, s6, 13
            s_add_u32 s33, s33, s7
            s_lshl_b32 s34, s31, 5
            s_add_u32 s34, s34, s33
            s_lshl_b32 s34, s34, 18
            s_add_u32 s34, s34, s3"""
    if opt.rot:
        setup += """
            s_lshl_b32 s3, s2, 2
            s_add_u32 s3, s3, s7
            s_mul_i32 s3, s3, 0x1e3779b1
            s_lshr_b32 s47, s3, 15
            s_xor_b32 s3, s3, s47
            s_mul_i32 s3, s3, 0x2c1b3c6d
            s_lshr_b32 s3, s3, 20
            s_and_b32 s3, s3, 15
            s_lshl_b32 s35, s3, 14"""
    else: setup += "\ns_mov_b32 s35, 0"
    setup += f"""
            s_mov_b32 s36, s35
            s_mov_b32 s69, s35
            v_lshlrev_b32 v50, 7, v1
            v_xor_b32 v27, v{H}, v{L15}
            v_lshlrev_b32 v27, 4, v27
            v_lshl_add_u32 v27, v{L31}, 8, v27
            v_add_u32 v{VKA}, s37, v27"""
    for s in range(1, 8): setup += f"\nv_xor_b32 v{VKA+s}, {32*s}, v{VKA}"
    setup += f"""
            v_lshl_add_u32 v28, v{H}, 2, v{R}
            v_lshlrev_b32 v28, 8, v28
            v_lshl_add_u32 v28, v{R}, 6, v28
            v_lshl_add_u32 v28, v{G1}, 5, v28
            v_lshl_add_u32 v28, v{C4}, 3, v28
            s_lshl_b32 s47, s6, 7
            v_xor_b32 v28, s47, v28
            v_add_u32 v{VVA}, s37, v28"""
    for db in range(1, 4): setup += f"\nv_xor_b32 v{VVA+db}, {64*db}, v{VVA}"
    setup += "\nv_add_u32 v28, s54, v28"
    for db in range(1, 4): setup += f"\nv_xor_b32 v{28+db}, {64*db}, v28"
    setup += f"\ns_mov_b32 s42, {f2u(CSC):#x}\ns_mov_b32 s43, {f2u(THR_LOG2):#x}"
    for qb in range(3): setup += f"\nv_mov_b32 v{LSUM+qb}, 0"
    setup = [x.strip() for x in setup.split("\n")]
    VO, VL16, AD, VOL = 93, 102, 103, 107
    def vo_calc(dst, rev):
        L = []
        for i in range(9):
            L += [f"v_add_u32 v80, {64*i}, v1", "v_mul_u32_u24 v28, 58255, v80", "v_lshrrev_b32 v28, 20, v28", "v_mul_u32_u24 v83, 18, v28",
                  "v_sub_u32 v83, v80, v83", "v_xor_b32 v29, 1, v83", "v_sub_u32 v29, 17, v29"]
            if rev == "vcc": L += ["v_cndmask_b32 v29, v83, v29, s[70:71]"]
            L += ["v_mul_u32_u24 v28, 1152, v28", f"v_lshl_add_u32 v{dst+i}, v29, 4, v28"]
        return L
    setup2 = ["s_cmp_eq_u32 s7, 1\ns_cselect_b64 s[70:71], -1, 0"] + vo_calc(VO, "vcc") + [x.strip() for x in f"""v_lshlrev_b32 v{VL16}, 4, v1
            v_lshlrev_b32 v80, 4, v{H}
            v_lshl_add_u32 v80, v{G1}, 2, v80
            v_add_u32 v80, v80, v{R}
            v_mul_u32_u24 v80, 288, v80
            v_lshl_add_u32 v80, v{C4}, 3, v80
            s_mul_i32 s3, s7, 18432
            v_add_u32 v{AD+1}, s3, v80
            v_add_u32 v{AD}, {SB[0]}, v{AD+1}
            v_lshlrev_b32 v{VOL}, 10, v{G1}
            v_lshl_add_u32 v{VOL}, v{H}, 8, v{VOL}
            v_lshl_add_u32 v{VOL}, v{L15}, 4, v{VOL}
            v_mov_b32 v108, 0
            s_mul_i32 s67, s30, 1179648
            s_mul_i32 s3, s32, 288
            s_add_u32 s64, s67, s3              ; wo: rows of the octet, columns 144p..
            s_lshl_b32 s39, s29, 3
            s_add_u32 s39, s39, s31""".split("\n")]
    setW = ["s_lshl_b32 s66, s32, 1", "s_mul_i32 s65, s28, 9216", f"s_mul_i32 s68, s28, {32*1152}", "s_add_u32 s68, s68, s64"]
    def arrive(): a.e(f"s_add_u32 s44, s44, 1\nv_mov_b32 v{VD}, s44\nds_write_b32 v{VFO}, v{VD}")
    def psync(arrived=False):
        psync.n += 1; n = psync.n
        if not arrived: arrive()
        a.e("s_mov_b32 s47, 0x400000")
        a.label(f"L_ps{n}")
        a.e(f"""ds_read_b32 v{VD}, v{VFP}
                s_sub_u32 s47, s47, 1
                s_waitcnt lgkmcnt(0)
                v_readfirstlane_b32 s3, v{VD}
                s_cmp_eq_u32 s47, 0
                s_cselect_b32 s3, s44, s3
                s_cmp_lt_u32 s3, s44
                s_cbranch_scc1 L_ps{n}""")
    psync.n = 0
    def other_pair(name, word, val, T=84):
        a.e(f"v_mov_b32 v{T+2}, {TOP + 3072 + word}\ns_mov_b32 s47, 0x400000")
        a.label(name)
        a.e(f"""s_sleep 2
                ds_read_b64 v[{T}:{T+1}], v{T+2}
                s_sub_u32 s47, s47, 1
                s_waitcnt lgkmcnt(0)
                v_min_u32 v{T}, v{T}, v{T+1}
                v_readfirstlane_b32 s3, v{T}
                s_cmp_eq_u32 s47, 0
                s_cselect_b32 s3, {val}, s3
                s_cmp_lt_u32 s3, {val}
                s_cbranch_scc1 {name}""")

    ACC = 112
    def qwrite(blocks, dreg, area, extra=()):
        a.e(f"""v_xor_b32 v55, {dreg}, v{L15}
                v_lshlrev_b32 v55, 4, v55
                v_lshl_add_u32 v55, v{L31}, 8, v55
                v_lshl_add_u32 v55, v{H}, 3, v55
                v_add_u32 v55, {area}, v55
                v_mov_b32 v62, s42""")
        for db in range(blocks):
            for i in range(4):
                a.e(f"v_xor_b32 v54, {(4*db + i)*16}, v55")
                if extra: emit(a, [extra[4*db + i]])
                for qb in range(3):
                    r = ACC + (db*3 + qb)*16 + 4*i; tq = 56 + 2 * qb
                    a.e(f"""v_pk_mul_f32 v[{r}:{r+1}], v[{r}:{r+1}], v[62:63] op_sel_hi:[1,0]
                            v_pk_mul_f32 v[{r+2}:{r+3}], v[{r+2}:{r+3}], v[62:63] op_sel_hi:[1,0]
                            v_cvt_pk_bf16_f32 v{tq}, v{r}, v{r+1}
                            v_cvt_pk_bf16_f32 v{tq+1}, v{r+2}, v{r+3}
                            ds_write_b64 v54, v[{tq}:{tq+1}] offset:{qb*8192}""")
    def qread(area):
        a.e(f"s_sub_u32 s3, {area}, s37")
        for s in range(8): a.e(f"v_add_u32 v{32+s}, s3, v{VKA+s}")
        for qb in range(3):
            for s in range(8): a.e(f"ds_read_b128 {vr(Qreg(qb,s),4)}, v{32+s} offset:{qb*8192}")
    FA, FB = 208, 228
    a.wait(vmtags=["s0"], lg0=True); a.e("s_barrier")
    stamp(a, "q0", opt)
    emit(a, frag_reads(0, 0, FA))
    sl = [[] for _ in range(216 + 24)]
    spread(sl, [x for c in range(2, 9 - opt.rlate) for x in stage(c)], 0, opt.rspan)
    spread(sl, setup, 6, 64)
    for c in range(9):
        for s in range(4):
            F, nF = (FA, FB) if s % 2 == 0 else (FB, FA)
            k0 = (c*4 + s) * 6
            if s == 3:
                a.wait(vmtags=[f"s{c+1}"] if c < 2 else [], lg0=True); a.e("s_barrier")
                stamp(a, f"c{c}", opt)
                if 1 <= c <= 6: spread(sl, regwrite(c + 2), k0 + (opt.wdel if c == 1 else 1), k0 + 22)
                if c == 2 and opt.rwait is not None:
                    p0 = max(k0, opt.rspan + opt.rwait); sl[p0].append("WAITVM s8")
                    spread(sl, dma_unit(0, opt) + dma_unit(1, opt), p0, p0 + opt.kspan)
                elif c == 2: spread(sl, dma_unit(0, opt) + [x for k in range(9 - opt.rlate, 9) for x in stage(k)] + dma_unit(1, opt), max(k0, opt.rspan), max(k0, opt.rspan) + opt.kspan)
                if c == 7: spread(sl, dma_unit(2, opt), k0, k0 + 18)
                for u in opt.touch.get(c, []):
                    sl[k0 + 20].append(f"s_add_u32 s47, s69, {(u // 2) * 16384}\ns_and_b32 s47, s47, 0x3ffff\ns_add_u32 s47, s47, s34\n" +
                                       f"buffer_load_dword v51, v50, {'s[8:11]' if u % 2 == 0 else 's[12:15]'}, s47 offen nt ; @junk")
                if opt.wot == c: spread(sl, wtouch, k0 + 12, k0 + 22)
                if opt.ctouch == c:
                    sl[k0 + 6].append("s_getpc_b64 s[70:71]\nLABEL L_pc\nv_lshlrev_b32 v24, 7, v0\nv_add_u32 v24, L_qcode-L_pc, v24\nv_min_u32 v24, L_end-L_pc-4, v24\nglobal_load_dword v23, v24, s[70:71] ; @junk")
            rd = (frag_reads(c + 1, 0, nF) if c < 8 else []) if s == 3 else frag_reads(c, s + 1, nF)
            if opt.qlev:
                for k, x in enumerate(rd): sl[k0 + (0, 0, 1, 1, 2, 3, 4)[k]].insert(0, x)
                a.wait(lgregs=regs_of(vr(F, 20)))
            else: emit(a, rd)
            i = 0
            for db in range(2):
                for qb in range(3):
                    d = vr(ACC + (db*3 + qb)*16, 16)
                    emit(a, [f"v_mfma_f32_32x32x16_bf16 {d}, {vr(F+db*4,4)}, {vr(F+8+qb*4,4)}, " + ("0" if (c == 0 and s == 0) else d)] + sl[k0 + i]); i += 1
    assert not any(sl[216:])
    a.label("L_qcode")
    a.e("s_lshl_b32 s3, s6, 3\ns_cmp_eq_u32 s7, 1\ns_cbranch_scc1 L_qy")
    sv = save(a)
    qwrite(2, "s3", XS, () if opt.u3late else dma_unit(3, opt))
    a.e("s_waitcnt lgkmcnt(0)\ns_barrier")
    qread(XS)
    if opt.u3late: emit(a, dma_unit(3, opt))
    a.e("s_waitcnt lgkmcnt(0)\ns_barrier\ns_branch L_qdone")
    a.label("L_qy"); load(a, sv)
    emit(a, dma_unit(3, opt))
    a.e("s_barrier\ns_barrier\ns_lshl_b32 s3, s6, 3")
    qwrite(2, "s3", XS)
    a.e("s_waitcnt lgkmcnt(0)"); psync()
    qread(XS)
    a.label("L_qdone")
    stamp(a, "qx", opt)
    a.wait(vmtags=["u0"], lg0=True)
    emit(a, kreads(0))
    stamp(a, "k0", opt)
    a.e(f"""v_mov_b32 v26, {TOP + 3072 + 16}
            s_cmp_eq_u32 s7, 1
            s_cselect_b32 s50, {round(opt.thr1 * 16)}, 0
            s_cselect_b32 s38, {round((opt.thr0 + opt.thr1) * 16)}, -1""")
    if not opt.hold: a.e("s_lshl_b32 s50, s7, 1\ns_add_u32 s50, s50, 2\ns_sub_u32 s50, s50, s29\ns_mov_b32 s38, s50" + ("\ns_mov_b32 s50, 0" if opt.free01 else ""))
    if opt.acct: a.e(f"s_mov_b64 s[98:99], s[{STB}:{STB+1}]\ns_mov_b64 s[100:101], s[{STB}:{STB+1}]\ns_mov_b64 s[92:93], s[{STB}:{STB+1}]")
    def wpieces(tag, head, rows, lds, voreg):
        Gs = []
        for i in range(9):
            g = [f"s_add_u32 s4, s66, {head}", "s_and_b32 s4, s4, 7", f"s_mul_i32 s4, s4, {128*1152}", "s_add_u32 s4, s4, s68",
                 f"s_add_u32 s4, s4, {rows*1152}"] if i == 0 else []
            g += [f"s_add_u32 m0, s65, {lds + i*1024}", f"buffer_load_dwordx4 v{voreg+i}, s[60:63], s4 offen{opt.wopol} lds ; @{tag}"]
            Gs.append("\n".join(g))
        return Gs
    HEAD = (0, 2, 4, 6, 1, 3, 5, 7)
    NX = opt.nx
    BUFOF = [st % 2 for st in range(NX + 2)] + [2, 3]
    while len(BUFOF) < 8: BUFOF.append(BUFOF[len(BUFOF) - 4])
    wS = lambda st: wpieces(f"w{st}", HEAD[st], 0, SB[BUFOF[st]], VO)
    wX = lambda st, VOR: wpieces(f"w{st}", HEAD[st], 0, SB[BUFOF[st]], VO) + wpieces(f"w{st}", HEAD[st], 64, SB[BUFOF[st]] + 18432, VOR)
    carry = tile_body(a, opt, 0, [])
    carry = tile_body(a, opt, 1, carry, extra=[(setup2 + setW, 0, 41)])
    carry1 = [[x.replace('L_sk1_', 'L_sk4_') for x in y] for y in carry]
    if opt.unroll:
        for t in range(2, 14):
            stamp(a, f'r{t}', opt); carry = tile_body(a, opt, t, carry)
    else:
        stamp(a, "l0", opt)
        a.e("s_mov_b32 s46, 4")
        a.raw(".p2align 6"); a.label("L_tile")
        keep = list(a.vm)
        if opt.firstfree: a.e("s_cmp_eq_u32 s46, 4\ns_cselect_b32 s50, 0, s38")
        elif opt.free01: a.e("s_mov_b32 s50, s38")
        if not opt.hold: a.e(f"s_cmp_eq_u32 s7, 0\ns_cselect_b32 s3, {2*opt.last[0]}, {2*opt.last[1]}\ns_cmp_gt_u32 s46, 1\ns_cselect_b32 s50, s50, s3")
        if opt.late:
            a.e(f"""s_lshl_b32 s3, s7, 3
                    s_add_u32 s3, s3, s46
                    s_cmp_lg_u32 s3, {opt.late}
                    s_cbranch_scc1 L_nolate
                    s_lshr_b32 s3, s2, 3
                    s_lshl_b32 s3, s3, 1
                    s_add_u32 s3, s3, s6
                    s_mul_i32 s3, s3, 18432
                    v_lshlrev_b32 v84, 7, v1
                    v_add_u32 v84, s3, v84
                    v_add_u32 v85, 8192, v84
                    v_add_u32 v86, 16384, v84
                    v_cmp_gt_u32 vcc, 16, v1
                    v_cndmask_b32 v86, -1, v86, vcc""")
            emit(a, [f"buffer_load_dword v87, v{r}, s[60:63], s67 offen{opt.tpol} ; @junk" for r in (84, 85, 86)])
            a.label("L_nolate")
        if opt.tlb:
            a.e(f"""s_cmp_lg_u32 s46, {opt.tlb}
                    s_cbranch_scc1 L_notlb
                    s_lshl_b32 s3, s39, 2
                    s_add_u32 s4, s3, s30
                    s_mul_i32 s4, s4, {8*24576}
                    v_mov_b32 v84, s4
                    s_add_u32 s4, s4, {8*24576 - 128}
                    v_writelane_b32 v84, s4, 1
                    s_add_u32 s3, s3, s32
                    s_mul_i32 s4, s3, {4*36864}
                    s_add_u32 s4, s4, {WS_P}
                    v_writelane_b32 v84, s4, 2
                    s_add_u32 s4, s4, {4*36864 - 128}
                    v_writelane_b32 v84, s4, 3
                    s_mov_b32 s4, {WS_F + 65536 - 128}
                    v_writelane_b32 v84, s4, 4
                    s_mul_i32 s4, s31, {96*2304}
                    v_mov_b32 v85, s4
                    s_add_u32 s4, s4, {96*2304 - 128}
                    v_writelane_b32 v85, s4, 1
                    s_mov_b64 s[16:17], s[78:79]
                    s_mov_b32 s18, 1769472
                    buffer_load_dword v87, v84, s[24:27], 0 offen nt ; @junk
                    buffer_load_dword v87, v85, s[16:19], 0 offen nt ; @junk""")
            a.label("L_notlb")
        a.vm = keep
        for t in (2, 3, 4): carry = tile_body(a, opt, t, carry)
        assert carry == carry1
        a.e("s_sub_u32 s46, s46, 1\ns_cmp_lg_u32 s46, 0\ns_cbranch_scc1 L_tile")
        for o in a.vm:
            if o.tag and o.tag[0] == "u": o.tag = f"u{int(o.tag[1:]) + 18}"
    stamp(a, "l1", opt)
    raw = lambda L: "\n".join(("LABEL " + y[6:] if y.startswith("LABEL ") else "RAW " + y) for x in L for y in x.split("\n"))
    w0blk = "s_cmp_eq_u32 s7, 1\ns_cbranch_scc1 L_now0\n" + raw([f"""v_mov_b32 v83, {TOP + 3072 + 16}
s_mov_b32 s47, 0x400000
LABEL L_yq
ds_read_b128 v[84:87], v83
s_sub_u32 s47, s47, 1
s_waitcnt lgkmcnt(0)
v_min3_u32 v84, v84, v85, v86
v_min_u32 v84, v84, v87
s_nop 1
v_readfirstlane_b32 s3, v84
s_nop 1
s_cmp_eq_u32 s47, 0
s_cselect_b32 s3, 1, s3
s_cmp_lt_u32 s3, 1
s_cbranch_scc1 L_yq"""] + [x.replace("buffer_load", "s_nop 0\nbuffer_load") for x in wX(0, VO)]) + "\nLABEL L_now0"
    W0 = lambda t: [([w0blk], opt.w0at[1], opt.w0at[1] + 1)] if opt.w0at and opt.w0at[0] == t else []
    carry = tile_body(a, opt, 14, carry, extra=W0(14))
    xo = lambda k: (k // 8) * SLOT + (k % 8) * 1024
    def send(qb):
        return [f"ds_write_b128 v28, {ar(Oacc(2+i,qb) + 4*g, 4)} offset:{xo((i*3 + qb)*4 + g)}" for i in range(2) for g in range(4)]
    accr = lambda qb: [f"v_accvgpr_read_b32 v{160 + (i*3+qb)*16 + r}, a{Oacc(i,qb) + r}" for i in range(2) for r in range(16)]
    pre = ["buffer_load_dword v106, v108, s[56:59], 0 offen sc1 ; @tag",
           f"v_add_u32 v28, s37, v{VL16}", "s_lshl_b32 s3, s6, 14\ns_sub_u32 s3, 8192, s3", "v_add_u32 v29, s3, v28",
           f"s_mul_i32 s3, s28, 768\ns_add_u32 s3, s3, {TOP}", f"v_lshlrev_b32 v30, 3, v{L31}", "v_add_u32 v30, s3, v30",
           f"s_xor_b32 s3, s28, 1\ns_mul_i32 s3, s3, 768\ns_add_u32 s3, s3, {TOP}", f"v_lshlrev_b32 v31, 3, v{L31}", "v_add_u32 v31, s3, v31"]
    team = "v_and_b32 v13, 3, v1\nv_lshlrev_b32 v13, 10, v13\nv_and_b32 v14, 4, v1\nv_add_u32 v13, v13, v14"
    askX = [f"s_andn2_b32 s71, s2, 24\ns_lshl_b32 s71, s71, 7\ns_add_u32 s69, s71, {WS_F}"] + team.split("\n") + ["buffer_load_dword v12, v13, s[24:27], s69 offen sc1"]
    carry = tile_body(a, opt, 15, carry, extra=[(pre, 8, 16), (askX, 28, 34), (send(0), 34, 48)] + W0(15) + ([(accr(0), 33, 44)] if opt.accearly else []))
    sl = [[] for _ in range(8)]
    carry = [x for y in carry for x in y]
    cut = max([i + 1 for i, x in enumerate(carry) if x.startswith(f"v_cvt_pk_bf16_f32 v{Sreg(2,3)},")] + [len(carry) - 16, 0])
    emit(a, carry[:cut])
    spread(sl, carry[cut:], 0, 3)
    st = []
    for qb in range(3): st += [f"v_mov_b32 v{3+2*qb}, v{LSUM+qb}", f"v_mov_b32 v{2+2*qb}, v{NM+16*qb}"]
    for qb in range(3): st += [f"v_permlane32_swap_b32 v{LSUM+qb}, v{3+2*qb}"]
    for qb in range(3): st += [f"v_add_f32 v{3+2*qb}, v{LSUM+qb}, v{3+2*qb}", f"ds_write_b64 v30, v[{2+2*qb}:{3+2*qb}] offset:{qb*256}"]
    spread(sl, st + send(1), 3, 8)
    for m, f in zip(pv(2, False), sl): emit(a, [m] + f)
    stamp(a, "t15", opt)
    emit(a, accr(1)[:12] + send(2))
    emit(a, ([] if opt.accearly else accr(0)) + accr(1)[12:] + accr(2))
    a.e("s_mov_b32 s4, 0x100000")
    a.label("L_tag")
    a.e("""s_waitcnt vmcnt(0)
           v_readfirstlane_b32 s75, v106
           s_cmp_lg_u32 s75, 0
           s_cbranch_scc1 L_tag_ok
           buffer_load_dword v106, v108, s[56:59], 0 offen sc1 ; @junk
           s_sub_u32 s4, s4, 1
           s_cmp_lg_u32 s4, 0
           s_cbranch_scc1 L_tag""")
    a.label("L_tag_ok"); a.vm = []
    a.e(f"""s_lshl_b32 s3, s39, 5
            s_add_u32 s3, s3, s33
            s_mul_i32 s52, s3, 24576
            s_mul_i32 s3, s6, 12288
            s_add_u32 s52, s52, s3
            s_waitcnt lgkmcnt(0)""")
    if opt.earr: arrive()
    ACC, WF, OF = 112, 16, 0
    def ask(base, lanes):
        a.e(f"s_add_u32 s69, {base}, {WS_F}\n{lanes}\nbuffer_load_dword v12, v13, s[24:27], s69 offen sc1")
    def check(tag):
        a.e("s_mov_b32 s4, 0x100000")
        a.label(f"L_poll{tag}")
        a.e(f"""s_waitcnt vmcnt(0)
                v_cmp_ne_u32 vcc, s75, v12
                s_cbranch_vccz L_got{tag}
                s_sleep 1
                buffer_load_dword v12, v13, s[24:27], s69 offen sc1
                s_sub_u32 s4, s4, 1
                s_cmp_lg_u32 s4, 0
                s_cbranch_scc1 L_poll{tag}""")
        a.label(f"L_got{tag}")
        a.e("s_waitcnt vmcnt(0)")
    def wreads(buf, rows, F):
        reg, boff = (AD, AD + 1, 220, 221)[buf], 0
        return [f"ds_read_b64_tr_b16 {vr(F + nb*4 + 2*k, 2)}, v{reg} offset:{boff + (rows + 8*k) * 288 + 32*nb}" for nb in range(9) for k in range(2)]
    def oload(tag, head, db0, nks, dst):
        Gs = []
        for kl in range(nks):
            for j in range(3):
                g = [f"s_add_u32 s47, s66, {head}", "s_and_b32 s47, s47, 7", "s_mul_i32 s47, s47, 24576", "s_add_u32 s47, s47, s37"] + \
                    ([f"s_add_u32 s47, s47, {db0}"] if db0 else []) if kl + j == 0 else ["s_add_u32 s47, s47, 6144"] if j == 0 else []
                Gs.append("\n".join(g + [f"buffer_load_dwordx4 {ar(dst + (kl*3+j)*4, 4)}, v{VL16}, s[24:27], s47 offen offset:{j*1024} sc1 ; @{tag}"]))
        return Gs
    def kstep(F, O, zero, reads, jobs):
        ms = [f"v_mfma_f32_16x16x32_bf16 {vr(ACC + (nb*3+j)*4, 4)}, {vr(F+nb*4,4)}, {ar(O+j*4,4)}, " + ("0" if zero else vr(ACC + (nb*3+j)*4, 4))
              for nb in range(9) for j in range(3)]
        sl = [[] for _ in range(27)]
        spread(sl, reads, 0, 20); spread(sl, jobs, 0, 27)
        a.e("s_waitcnt lgkmcnt(0)")
        for m, f in zip(ms, sl): emit(a, [m] + f)
        return ms
    team = "v_and_b32 v13, 3, v1\nv_lshlrev_b32 v13, 10, v13\nv_and_b32 v14, 4, v1\nv_add_u32 v13, v13, v14"
    a.e(f"""s_lshl_b32 s3, s2, 7
            s_lshl_b32 s4, s28, 2
            s_add_u32 s70, s3, s4
            s_add_u32 s70, s70, {WS_F}
            s_lshl_b32 s3, s39, 2
            s_add_u32 s3, s3, s30
            s_mul_i32 s37, s3, {8*24576}
            s_mul_i32 s4, s6, 3072
            s_add_u32 s37, s37, s4
            s_mul_i32 s4, s7, 12288
            s_add_u32 s37, s37, s4
            s_mov_b32 s45, 0
            s_cmp_eq_u32 s7, 0
            s_cbranch_scc1 L_noearly
            v_cmp_ne_u32 vcc, s75, v12
            s_cbranch_vccnz L_noearly
            s_mov_b32 s45, 1""")
    for st in range(NX, 4): emit(a, oload(f"o{st}", HEAD[st], 0, 2, 24*st))
    a.label("L_noearly"); a.vm = []
    a.e(f"v_sub_u32 v27, v29, v{VL16}\nv_add_u32 v27, v27, v{VOL}")
    psync(opt.earr)
    stamp(a, "c_bar", opt)
    for qb in range(3): a.e(f"ds_read_b64 v[{8+2*qb}:{9+2*qb}], v31 offset:{qb*256}")
    RC = (32, 48, 64, 112, 128, 144)
    def recv(blk):
        for g in range(4): a.e(f"ds_read_b128 {vr(RC[blk]+4*g,4)}, v29 offset:{xo(blk*4 + g)}")
    recv(0); recv(1)
    SC = 16
    for qb in range(3):
        pn, pl, on, ol = 8 + 2*qb, 9 + 2*qb, 2 + 2*qb, 3 + 2*qb
        a.auto(f"v_min_f32 v22, v{on}, v{pn}")
        a.e(f"""v_sub_f32 v23, v22, v{on}
                v_sub_f32 v24, v22, v{pn}
                v_exp_f32 v23, v23
                v_exp_f32 v24, v24
                v_mul_f32 v{ol}, v{ol}, v23
                v_fmac_f32 v{ol}, v{pl}, v24
                v_rcp_f32 v{ol}, v{ol}
                v_mul_f32 v{SC+2*qb}, v23, v{ol}
                v_mul_f32 v{SC+2*qb+1}, v24, v{ol}""")
    recv(2); recv(3); recv(4); recv(5)
    for blk in range(6):
        i, qb = divmod(blk, 3)
        K = 160 + blk*16; Rr = RC[blk]
        a.wait(lgregs=regs_of(vr(Rr, 16)))
        for r in range(0, 16, 2):
            a.e(f"v_pk_mul_f32 v[{Rr+r}:{Rr+r+1}], v[{Rr+r}:{Rr+r+1}], v[{SC+2*qb}:{SC+2*qb+1}] op_sel:[0,1] op_sel_hi:[1,1]")
        for r in range(0, 16, 2):
            a.e(f"v_pk_fma_f32 v[{K+r}:{K+r+1}], v[{K+r}:{K+r+1}], v[{SC+2*qb}:{SC+2*qb+1}], v[{Rr+r}:{Rr+r+1}] op_sel_hi:[1,0,1]")
        for j in range(8):
            a.e(f"v_cvt_pk_bf16_f32 v{K+8*(j//4)+j%4}, v{K+2*j}, v{K+2*j+1}")
        a.e(f"s_add_u32 s47, s52, {WS_O + (i*6 + 2*qb)*1024}")
        for s in range(2):
            a.e(f"buffer_store_dwordx4 {vr(K+8*s,4)}, v{VOL}, s[24:27], s47 offen offset:{512*s} sc1")
            a.e(f"ds_write_b128 v27, {vr(K+8*s,4)} offset:{xo(i*6 + 2*qb) + 512*s}")
    stamp(a, "comb", opt)
    a.e("v_mov_b32 v14, s75\ns_cmp_eq_u32 s7, 1\ns_cbranch_scc1 L_tailY")
    stT = save(a)
    if not opt.w0at: other_pair("L_yq", 24, 1)
    if NX == 0:
        VOR = 224
        a.e("s_waitcnt vmcnt(0)\nbuffer_store_dword v14, v108, s[24:27], s70 offen sc1")
        emit(a, vo_calc(VOR, "rev") + wX(0, VOR))
        a.e("s_waitcnt lgkmcnt(0)"); psync()
        emit(a, wX(1, VOR))
        ask("s71", team); check("A"); stamp(a, "chkA", opt)
    else:
        if not opt.w0at: emit(a, wX(0, VO))
        a.e(f"""s_waitcnt vmcnt(0)
                buffer_store_dword v14, v108, s[24:27], s70 offen sc1
                v_add_u32 v3, 8192, v{VL16}
                s_waitcnt lgkmcnt(0)""")
        psync()
        a.e("s_cmp_eq_u32 s6, 1\ns_cbranch_scc1 L_x1")
        sv = save(a)
        for qh in range(2):
            if qh: a.label("L_x1"); load(a, sv)
            for db in range(4):
                for j in range(3): a.e(f"ds_read_b128 {ar(192 + (db*3+j)*4, 4)}, v{3 if db < 2 else VL16} offset:{xo((db % 2)*6 + 3*qh + j)}")
            if qh == 0: a.e("s_branch L_x2")
        a.label("L_x2")
        VOR = 224
        emit(a, vo_calc(VOR, "rev"))
        a.wait(vmtags=["w0"], lg0=True); psync()
        emit(a, wreads(0, 0, WF))
        RS = (192, 0, 48 if NX == 4 else 192, 192)
        wN = lambda st: wX(st, VO if st < NX else VOR)
        xl = lambda st: oload(f"x{st}", HEAD[st], 0, 4, RS[st])
        ask("s71", team)
        for st in range(NX):
            b = BUFOF[st]
            w = wN(1) if st == 0 else []
            if st >= 1: a.wait(vmtags=[f"x{st}"])
            kstep(WF, RS[st], st == 0, wreads(b, 32, WF + 36), w[:9])
            kstep(WF + 36, RS[st] + 12, False, wreads(b, 64, WF), w[9:])
            j = []
            if st == 0:
                check("A"); stamp(a, "chkA", opt)
                for k in range(1, NX):
                    if RS[k] != 192: j += xl(k)
            kstep(WF, RS[st] + 24, False, wreads(b, 96, WF + 36), j)
            a.wait(vmtags=[f"w{st+1}"], lg0=True); psync()
            kstep(WF + 36, RS[st] + 36, False, wreads(BUFOF[st + 1], 0, WF) if st + 1 < NX else [], wN(st + 2))
            if st == 0:
                for k in range(1, NX):
                    if RS[k] == 192: emit(a, xl(k))
    for st in range(NX, 4): emit(a, oload(f"o{st}", HEAD[st], 0, 2, 24*st))
    a.e("s_waitcnt vmcnt(0)\ns_branch L_join")
    a.label("L_tailY"); load(a, stT)
    a.e("s_cmp_eq_u32 s45, 1\ns_cbranch_scc1 L_hadearly")
    sv = save(a)
    ask("s71", team); check("Y")
    a.vm = list(sv[2])
    for st in range(NX, 4): emit(a, oload(f"o{st}", HEAD[st], 0, 2, 24*st))
    a.label("L_hadearly")
    a.e("s_waitcnt lgkmcnt(0)")
    a.label("L_join"); a.lg = []
    a.e(f"""s_add_u32 s71, s71, 8
            v_add_u32 v220, {SB[2] - SB[1]}, v{AD+1}
            v_add_u32 v221, {SB[3] - SB[1]}, v{AD+1}
            s_mul_i32 s3, s7, -8192
            s_add_u32 s3, s3, {YB + 8192}
            v_add_u32 v2, s3, v{VL16}
            v_mov_b32 v15, s75
            s_barrier""")
    stamp(a, "join", opt)
    emit(a, wreads(BUFOF[NX], 0, WF))
    a.e("s_cmp_eq_u32 s6, 1\ns_cbranch_scc1 L_own1")
    sv = save(a)
    for qh in range(2):
        if qh: a.label("L_own1"); load(a, sv)
        for kl in range(2):
            for j in range(3): a.e(f"ds_read_b128 {ar(96 + (kl*3+j)*4, 4)}, v2 offset:{xo(kl*6 + 3*qh + j)}")
        if qh == 0: a.e("s_branch L_own2")
    a.label("L_own2")
    a.wait(vmtags=[f"o{NX}"])
    a.e("s_cmp_eq_u32 s7, 1\ns_cbranch_scc1 L_fy")
    sv = save(a)
    kstep(WF, 24*NX, NX == 0, wreads(BUFOF[NX], 32, WF + 36), [] if opt.plan2 else wS(NX + 2))
    a.e("s_branch L_fx")
    a.label("L_fy"); load(a, sv)
    kstep(WF, 24*NX, True, wreads(BUFOF[NX], 32, WF + 36), [] if opt.plan2 else wS(NX + 2))
    a.e("s_waitcnt vmcnt(0)\nbuffer_store_dword v15, v108, s[24:27], s70 offen sc1 ; @junk")
    a.label("L_fx"); a.vm = [o for o in a.vm if o.tag == f"w{NX+2}"]
    A = max(NX, min(opt.askat, 4))
    oy = lambda k: oload(f"o{k}", HEAD[k], 0, 2, 24*k)
    plan = {}
    for k in range(NX + 4, 8): plan.setdefault((k - 4, 1) if k - 4 > NX else (NX + 1, 0), []).append(wS(k))
    plan.setdefault((NX, 1), []).append(wS(NX + 3))
    if A <= 3:
        for i, k in enumerate((5, 6, 7)): plan.setdefault((A + (i + 1) // 2, (i + 1) % 2), []).insert(0, oy(k))
    if opt.plan2:
        assert NX == 1 and A == 3
        plan = {(1, 1): [wS(3)], (2, 0): [wS(4)], (2, 1): [wS(5)], (3, 1): [oy(5), oy(6)[:3]], (4, 0): [oy(6)[3:], oy(7)], (4, 1): [wS(6)], (5, 0): [wS(7)]}
    if opt.plan3 == 1: plan = {(1, 1): [wS(3)], (2, 0): [wS(4), wS(5)[:4]], (2, 1): [wS(5)[4:], wS(6)], (3, 1): [oy(5), wS(7)], (4, 0): [oy(6)], (4, 1): [oy(7)]}
    if opt.plan3 == 2: plan = {(1, 1): [wS(3), wS(4)[:4]], (2, 0): [wS(4)[4:], wS(5)], (2, 1): [wS(6)], (3, 1): [oy(5), oy(6)[:3]], (4, 0): [oy(6)[3:], oy(7)], (4, 1): [wS(7)]}
    job = lambda st, kl: [x for y in plan.get((st, kl), []) for x in y]
    for st in range(NX, 8):
        stamp(a, f"s{st}", opt)
        if st > NX:
            if st == A: ask("s71", team)
            if st >= 5: a.wait(vmtags=[f"o{st}"])
            kstep(WF, 24*st, False, wreads(BUFOF[st], 32, WF + 36), job(st, 0))
        elif st == A: ask("s71", team)
        if st == A and A <= 3: check("B"); stamp(a, "chk1", opt)
        if st < 7:
            a.wait(vmtags=[f"w{st+1}"], lg0=True); a.e("s_barrier")
            kstep(WF + 36, 24*st + 12, False, wreads(BUFOF[st + 1], 0, WF), job(st, 1))
        if st == A and A == 4:
            check("B"); stamp(a, "chk1", opt); emit(a, oy(5) + oy(6) + oy(7))
    a.e(f"""s_lshl_b32 s3, s28, 14
            v_add_u32 v13, s3, v{VL16}
            v_xor_b32 v14, 32768, v13
            s_lshl_b32 s52, s39, 2
            s_add_u32 s52, s52, s32
            s_lshl_b32 s53, s52, 2
            s_add_u32 s53, s53, s30
            s_mul_i32 s53, s53, 36864
            s_mul_i32 s3, s28, 9216
            s_add_u32 s53, s53, s3
            s_add_u32 s47, s53, {WS_P}
            s_waitcnt lgkmcnt(0)
            s_barrier""")
    F, O = WF + 36, 180
    T = lambda nb, j: ACC + (nb*3+j)*4
    ms = [f"v_mfma_f32_16x16x32_bf16 {vr(T(nb,j), 4)}, {vr(F+nb*4,4)}, {ar(O+j*4,4)}, {vr(T(nb,j), 4)}" for nb in (8, 7, 6, 5, 4, 0, 1, 2, 3) for j in range(3)]
    snd = [f"ds_write_b128 v13, {vr(T(nb,j),4)} offset:{((8-nb)*3+j)*1024}" for nb in range(8, 3, -1) for j in range(3)]
    emit(a, ms[:6])
    for k in range(15): emit(a, [ms[6 + k], snd[k]])
    emit(a, ms[21:])
    stamp(a, "gend", opt)
    a.e("s_waitcnt lgkmcnt(0)\ns_barrier")
    stamp(a, "rbar", opt)
    order = [(k, j) for k in range(3) for j in range(3)]
    for k, j in order:
        for nb in range(2*k, min(2*k + 2, 5)): a.e(f"ds_read_b128 {vr(WF + (nb*3+j)*4, 4)}, v14 offset:{(nb*3+j)*1024}")
    for k, j in order:
        r = T(2*k, j)
        for h, nb in enumerate(range(2*k, min(2*k + 2, 5))):
            t, q = T(nb, j), WF + (nb*3+j)*4
            a.wait(lgregs=regs_of(vr(q, 4)))
            a.e(f"v_pk_add_f32 v[{t}:{t+1}], v[{t}:{t+1}], v[{q}:{q+1}]\nv_pk_add_f32 v[{t+2}:{t+3}], v[{t+2}:{t+3}], v[{q+2}:{q+3}]")
            a.e(f"v_cvt_pk_bf16_f32 v{r+2*h}, v{t}, v{t+1}\nv_cvt_pk_bf16_f32 v{r+2*h+1}, v{t+2}, v{t+3}")
        if k < 2: a.e(f"buffer_store_dwordx4 {vr(r,4)}, v{VL16}, s[24:27], s47 offen offset:{j*1024} sc1")
        else: a.e(f"buffer_store_dwordx2 {vr(r,2)}, v{VL16}, s[24:27], s47 offen offset:{j*1024} sc1")
        if j == 2 and k < 2: a.e("s_add_u32 s47, s47, 3072")
    a.e(f"""s_add_u32 s70, s70, 32768
            s_andn2_b32 s71, s2, 3
            s_lshl_b32 s71, s71, 7
            s_add_u32 s71, s71, 32768
            v_and_b32 v10, 15, v1
            v_mul_u32_u24 v10, 2304, v10
            v_lshrrev_b32 v11, 4, v1
            v_lshl_add_u32 v10, v11, 3, v10
            s_mul_i32 s52, s52, {4*36864}
            s_add_u32 s52, s52, {WS_P}
            s_mul_i32 s53, s31, {96*2304}
            s_mul_i32 s3, s29, 1152
            s_add_u32 s53, s53, s3
            s_mul_i32 s3, s32, 288
            s_add_u32 s53, s53, s3
            s_lshl_b32 s54, s30, 2
            s_add_u32 s54, s54, s28""")
    srd(a, 8, "s78", "s79", 1769472)
    def decode(i):
        A, B, C = 56 + 4*i, 57 + 4*i, 58 + 4*i
        a.e(f"""s_add_u32 s3, s54, {16*i}
                s_mul_i32 s4, s3, 43
                s_lshr_b32 s4, s4, 8
                s_mul_i32 s5, s4, 6
                s_sub_u32 s3, s3, s5            ; q16
                s_mul_i32 s{B}, s3, {16*2304}
                s_add_u32 s{B}, s{B}, s53
                s_cmp_ge_u32 s3, 3
                s_cselect_b32 s5, {9216 - 3072}, 0
                s_lshl_b32 s3, s3, 10
                s_add_u32 s{A}, s3, s5          ; qh * 9216 + j * 1024
                s_add_u32 s{A}, s{A}, s52
                s_and_b32 s3, s4, 1
                s_cmp_eq_u32 s4, 4
                s_cselect_b32 s3, 2, s3         ; k
                s_cselect_b32 s{C}, 0, 32
                s_mul_i32 s5, s3, 3072
                s_add_u32 s{A}, s{A}, s5
                s_lshl_b32 s3, s3, 6
                s_and_b32 s4, s4, 2
                s_cmp_eq_u32 s4, 2
                s_cselect_b32 s5, 18432, 0
                s_add_u32 s{A}, s{A}, s5
                s_cmp_eq_u32 s4, 2
                s_cselect_b32 s{C}, -32, s{C}
                s_sub_u32 s5, 256, s3
                s_cmp_eq_u32 s4, 2
                s_cselect_b32 s3, s5, s3
                s_add_u32 s{B}, s{B}, s3""")
    stamp(a, 'rst', opt)
    decode(0); decode(1)
    stamp(a, 'dec', opt)
    a.e("s_waitcnt vmcnt(0)\nbuffer_store_dword v15, v108, s[24:27], s70 offen sc1")
    stamp(a, "pub2", opt)
    ask("s71", "v_and_b32 v13, 3, v1\nv_lshlrev_b32 v13, 7, v13\nv_and_b32 v14, 12, v1\nv_add_u32 v13, v13, v14"); check(2)
    stamp(a, "chk2", opt)
    def loads(i):
        for o in range(4):
            a.e(f"buffer_load_dwordx4 {vr(16+16*i+4*o,4)}, v{VL16}, s[24:27], s{56+4*i} offen sc1")
            if o < 3: a.e(f"s_add_u32 s{56+4*i}, s{56+4*i}, 36864")
    def fin(i, left):
        b, D = 16 + 16*i, 112 + 16*i
        for o in range(4):
            a.e(f"s_waitcnt vmcnt({left + 3 - o})")
            for k in range(4):
                r = b + 4*o + k
                if o == 0: a.e(f"v_lshlrev_b32 v{D+2*k}, 16, v{r}\nv_and_b32 v{D+2*k+1}, 0xffff0000, v{r}")
                else: a.e(f"v_lshlrev_b32 v{D+8}, 16, v{r}\nv_and_b32 v{r}, 0xffff0000, v{r}\nv_add_f32 v{D+2*k}, v{D+2*k}, v{D+8}\nv_add_f32 v{D+2*k+1}, v{D+2*k+1}, v{r}")
        for k in range(4): a.e(f"v_cvt_pk_bf16_f32 v{D+k}, v{D+2*k}, v{D+2*k+1}")
        a.e(f"""buffer_store_dwordx2 v[{D}:{D+1}], v10, s[8:11], s{57+4*i} offen{opt.opol}
                s_add_u32 s{57+4*i}, s{57+4*i}, s{58+4*i}""")
        if i == 1: a.e("s_cmp_eq_u32 s62, 0\ns_cbranch_scc1 L_rd2")
        a.e(f"buffer_store_dwordx2 v[{D+2}:{D+3}], v10, s[8:11], s{57+4*i} offen{opt.opol}")
    loads(0)
    a.e("s_cmp_ge_u32 s54, 14\ns_cbranch_scc1 L_rd1")
    sv = save(a)
    loads(1); fin(0, 4); fin(1, 0)
    a.e("s_branch L_rd2")
    a.label("L_rd1"); load(a, sv)
    fin(0, 0)
    a.label("L_rd2")
    stamp(a, "end", opt)
    if opt.stamps:
        a.e(f"s_lshl_b32 s3, s2, 2\ns_add_u32 s3, s3, s28\ns_lshl_b32 s3, s3, 7\ns_add_u32 s3, s3, {WS_STAMP}\nv_mov_b32 v0, 0")
        for i in range(1 + len(opt.sset)):
            a.e(f"v_mov_b32 v2, s{STB+2*i}\nv_mov_b32 v3, s{STB+1+2*i}\nbuffer_store_dwordx2 v[2:3], v0, s[24:27], s3 offen offset:{8*i}\ns_waitcnt vmcnt(0)")
    a.label("L_done")
    a.e("s_endpgm")
    a.label("L_end")
    for qb in range(3): rare(a, qb)

def build(opt):
    a = Asm()
    for l in """; Fused q-projection + softmax attention + output projection for both halves (A, B); written with a generator script.
; One workgroup (4 waves, 512 registers each, 160 KB LDS) per CU handles two heads X, Y of one batch:
;   1. Q = x wq (MFMA 32x32x16, LDS / register staged), scaled by log2(e)/sqrt(d)
;   2. waves 0,1 = head X, waves 2,3 = head Y, keys split between the two waves; K/V tiles stream through a private
;      LDS-DMA ring; online softmax against a reference max that a per-tile check raises to the true max when needed
;   3. pair combine, O (bf16) handed to the three workgroups with the same batch and head octet (write-through
;      stores, per-wave flags carrying a launch tag), 96 x 144 x 1024 partial output projection (MFMA 16x16x32),
;      partial tiles summed over the four octets through a second hand-off""".split("\n"): a.raw(l)
    a.raw("; @launch grid=(256,1,1) block=(256,1,1) lds=163840")
    a.raw('.amdgcn_target "amdgcn-amd-amdhsa--gfx950"')
    kernel(a, NAME + "_kernel", opt)
    a.raw('.section .rodata,"a"\n.p2align 6')
    a.raw("\n".join([f".amdhsa_kernel {NAME}_kernel", "  .amdhsa_next_free_vgpr 512", "  .amdhsa_next_free_sgpr 102",
        "  .amdhsa_accum_offset 256", "  .amdhsa_group_segment_fixed_size 0", "  .amdhsa_kernarg_size 104",
        "  .amdhsa_user_sgpr_count 2", "  .amdhsa_user_sgpr_kernarg_segment_ptr 1",
        "  .amdhsa_system_sgpr_workgroup_id_x 1", ".end_amdhsa_kernel"]))
    return a.text(), a

if __name__ == "__main__":
    opt = Opt()
    out = sys.argv[1] if len(sys.argv) > 1 else "k.s"
    for kv in sys.argv[2:]:
        k, v = kv.split("=", 1); assert hasattr(opt, k), k
        setattr(opt, k, eval(v))
    t, a = build(opt)
    open(out, "w").write(t)
    print(out, "lines", t.count("\n"), "pad", a.npad)
```

```python
import sys, struct, math
sys.path.insert(0, "dev")
from asmlib import Asm, spread, regs_of, level_fill
import gen5
from gen5 import (NAME, f2u, CSC, THR_LOG2, WS_BYTES, WS_O, WS_P, WS_F, WS_STAMP, STB, vr, ar, srd, stamp, emit,
                  VOFFK, VOFFV, VKA, VVA, LSUM, TMAX, VT, NM, S0, Q0, KF, VF, Sreg, Qreg, Oacc, softmax, qk, pv, rare)

class Opt:
    wp = "pppp"
    noB = False
    stamps = False
    sset = ['q0', 'k0', 't15', 'comb', 'join', 'chk1', 'gend', 'pub2', 'end']
    thr0 = 0.0
    thr1 = 1.25
    clk = "s_memrealtime"
    rot = True
    krot = 4
    qlev = True
    touch = {}
    ctouch = None
    w0at = (14, 44)
    plan2 = True
    capfrom = 4
    firstfree = False
    free01 = False
    u3late = 0
    d14 = None
    rwait = None
    plan3 = 0
    earr = False
    rlate = 0
    rspan = 80
    kspan = 30
    wdel = 8
    kvtlb = False
    capb = None
    pbf16 = True
    k1early = False
    wot = 4
    wotnt = None
    tlb = 0
    nx = 1
    accearly = True
    cap = ((6, 6, 7), 5)
    capend = 30
    hold = False
    xgate = 0
    last = (0, 0)
    ylast = 1
    kvsame = False
    unroll = False
    a0at = 2
    opol = ''
    late = 0
    prio = 0
    gate = 12
    pace = 1.0
    d1 = (1, 4, 7, 10, 13, 16, 19, 22)
    d2 = (25, 28, 31, 34, 37, 40, 43, 46)
    dcost = 4.0
    acct = 0
    w0 = 10
    askat = 3
    fewwait = True
    vwin = (16, 22)
    kwin = (40, 44)
    tpol = ''
    wopol = ''

SLOT = 16384
SV = 126976
def slot(u): return (2 if u == 0 else (-u) % 3) * SLOT
STG = lambda i: 45056 + 28672 * i
TOP = 159744
SB = (122880, 0, 86016, 49152)
NS = 3
YB = 49152

def dma_unit(u, opt):
    kind = "KV"[u % 2]; sreg = "s36" if kind == "K" else "s35"
    srdn = "s[8:11]" if kind == "K" else "s[12:15]"
    G = []
    for j in range(8):
        g = []
        mb, mo = ("s54", 0) if u == 1 else ("s37", slot(u))
        if j == 0: g += [f"s_add_u32 m0, {mb}, {mo}", f"s_add_u32 s51, s34, {sreg}"]
        if j == 1 and not opt.kvsame: g += [f"s_add_u32 {sreg}, {sreg}, 16384", f"s_and_b32 {sreg}, {sreg}, 0x3ffff"]
        if j == 4: g += [f"s_add_u32 m0, {mb}, {mo + 4096}", "s_add_u32 s51, s51, 4096"]
        vo = VOFFK + j % 4 if kind == "K" else VOFFV
        if opt.cap and opt.capfrom <= u <= opt.capend:
            cx, cy = opt.cap
            cx, cy = (c if isinstance(c, int) else c[j % len(c)] for c in (cx, cy))
            dma_unit.n += 1; n = dma_unit.n
            bx, by = (c if isinstance(c, int) else c[j % len(c)] for c in (opt.capb or opt.cap))
            prev = None
            for lv, c in enumerate((bx, cx, by, cy)):
                if c == prev: continue
                R_ = "RAW " if prev else ""
                g += [R_ + f"s_cmp_le_u32 s50, {lv}", R_ + f"s_cbranch_scc1 L_cap{n}", f"RAW s_waitcnt vmcnt({c - 1})"]
                assert prev is None or c < prev
                prev = c
            g += [f"LABEL L_cap{n}"]
        g.append(f"buffer_load_dwordx4 v{vo}, {srdn}, s51 offen offset:{(j % 4)*1024} nt lds ; @u{u}")
        G.append("\n".join(g))
    return G
dma_unit.n = 0
def kreads(t): return [f"ds_read_b128 {ar(KF+4*s,4)}, v{VKA+s} offset:{slot(2*t)}" for s in range(8)]
def vreads(t):
    return [f"ds_read_b64_tr_b16 {ar(VF + db*8 + s*4 + k*2, 2)}, v{(VVA if t else 28)+db} offset:{(slot(2*t+1) if t else 0) + 4096*s + 2048*k}"
            for s in range(2) for db in range(4) for k in range(2)]
def tile_body(a, opt, t, carry, extra=()):
    first = t == 0
    M = qk(0, first) + (pv(2, t == 1) if t else [None]*8) + qk(1, first) + pv(0, first) + qk(2, first) + pv(1, first)
    W = opt.w0
    sl = [[] for _ in range(48 + W)]
    def at(G, slots):
        for g, k in zip(G, slots): sl[k].append(g)
    if 2*t + NS <= 31: at(dma_unit(2*t + NS if t else 4, opt), opt.d14 if t == 14 and opt.d14 else opt.d1)
    spread(sl, [f"WAITVM u{2*t+1}"] + vreads(t), *opt.vwin)
    if 2*t + NS + 1 <= 31 and t: at(dma_unit(2*t + NS + 1, opt), opt.d2)
    if t < 15: spread(sl, [f"WAITVM u{2*t+2}"] + kreads(t + 1), *opt.kwin)
    if t == 14 and opt.xgate: sl[30].append('v_mov_b32 v27, 2\nds_write_b32 v109, v27 offset:16')
    if opt.hold or t == 0: sl[46].append("s_add_u32 s45, s45, 1\nv_mov_b32 v27, s45\nds_write_b32 v109, v27 offset:16")
    if 1 <= t <= 14 and opt.hold:
        sl[44].append("ds_read_b64 v[30:31], v26")
        sl[47].append(f"""AUTO v_min_u32 v30, v30, v31
s_add_u32 s38, s38, s50
s_min_i32 s38, s38, 256
v_readfirstlane_b32 s3, v30
s_lshl_b32 s3, s3, 4
s_cmp_ge_i32 s3, s38
s_cbranch_scc1 L_go{t}
s_call_b64 s[40:41], L_hold
LABEL L_go{t}""")
    for e in extra: spread(sl, *e)
    for i, x in enumerate(carry): sl[i] = x + sl[i]
    ghost = {48 + k: "buffer_x\ns_nop 0\ns_nop 0" for k in opt.d1 if k < W}
    for k, g in ghost.items(): sl[k].append(g)
    level_fill(sl, softmax(0, t, first), W, W + 16, opt.dcost)
    level_fill(sl, softmax(1, t, first), W + 16, W + 32, opt.dcost)
    level_fill(sl, softmax(2, t, first), W + 32, W + 48, opt.dcost)
    for k in ghost: sl[k] = sl[k][1:]
    for i in range(48):
        if opt.fewwait:
            if i == 0: a.wait(lgregs=regs_of(ar(KF, 32)))
            if i == 24: a.wait(lgregs=regs_of(ar(VF, 32)))
        if M[i]: emit(a, [M[i]])
        for x in sl[i]:
            if opt.acct and x.startswith("WAITVM"):
                keep = list(a.lg)
                a.e("s_memtime s[94:95]"); emit(a, [x]); a.e("s_memtime s[96:97]\ns_waitcnt lgkmcnt(0)\ns_sub_u32 s96, s96, s94")
                r = 98 if int(x.split("u")[1]) % 2 else 100
                a.e(f"s_add_u32 s{r}, s{r}, s96")
            elif opt.acct == 2 and "lds ;" in x:
                a.e("s_memtime s[94:95]"); emit(a, [x]); a.e("s_memtime s[96:97]\ns_waitcnt lgkmcnt(0)\ns_sub_u32 s96, s96, s94\ns_add_u32 s92, s92, s96")
            else: emit(a, [x])
    return sl[48:]

def save(a): return (list(a.hist), list(a.lg), list(a.vm))
def load(a, st): a.hist, a.lg, a.vm = (list(x) for x in st)

def kernel(a, name, opt):
    a.raw(".text"); a.raw(f".globl {name}"); a.raw(".p2align 8"); a.raw(f".type {name},@function")
    a.label(name, reset=True)
    a.e("""s_load_dwordx8 s[56:63], s[0:1], 0
           s_load_dwordx8 s[64:71], s[0:1], 40
           s_load_dwordx2 s[72:73], s[0:1], 96
           s_load_dwordx2 s[40:41], s[0:1], 32
           s_load_dwordx2 s[42:43], s[0:1], 72
           s_load_dwordx4 s[44:47], s[0:1], 80
           s_memrealtime s[48:49]
           s_cmp_ge_u32 s2, 256
           s_cbranch_scc1 L_done""")
    if opt.stamps: a.e(f"{opt.clk} s[{STB}:{STB+1}]")
    VW, VXA, VXB, AW, AX, VD = 72, 73, 74, 76, 64, 111
    G, L15, H, L31, G1, R, C4 = 88, 89, 90, 91, 92, 81, 82
    VFO, VFP = 109, 110
    a.e(f"""v_lshrrev_b32 v1, 6, v0
            s_and_b32 s3, s2, 7
            s_lshr_b32 s29, s3, 2
            s_and_b32 s30, s3, 3
            v_readfirstlane_b32 s28, v1
            s_lshr_b32 s3, s2, 3
            s_lshr_b32 s31, s3, 2
            s_and_b32 s32, s3, 3
            v_and_b32 v1, 63, v0
            v_lshrrev_b32 v{G}, 4, v1
            v_and_b32 v{L15}, 15, v1
            v_lshrrev_b32 v56, 3, v1
            v_and_b32 v57, 7, v1
            v_and_b32 v{G1}, 1, v{G}
            v_lshlrev_b32 v59, 2, v{G1}
            v_xor_b32 v59, v57, v59
            v_lshlrev_b32 v59, 4, v59
            v_lshl_add_u32 v{VW}, v56, 13, v59
            v_mul_u32_u24 v60, 1152, v56
            v_xor_b32 v61, v57, v{G}
            s_and_b32 s6, s28, 1
            s_lshr_b32 s7, s28, 1
            s_lshl_b32 s3, s6, 2
            v_xor_b32 v61, s3, v61
            v_lshl_add_u32 v{VXA}, v61, 4, v60
            v_xor_b32 v61, 4, v61
            v_lshl_add_u32 v{VXB}, v61, 4, v60
            s_mul_i32 s37, s7, {YB}
            s_lshl_b32 s3, s6, 13
            s_add_u32 s37, s37, s3
            s_lshl_b32 s33, s30, 3
            s_lshl_b32 s3, s32, 1
            s_add_u32 s33, s33, s3              ; head X
            s_add_u32 s74, s3, s31              ; b + 2p
            s_lshl_b32 s52, s33, 8
            s_lshl_b32 s3, s28, 7
            s_add_u32 s52, s52, s3
            s_mul_i32 s53, s31, 110592
            s_mul_i32 s3, s28, 27648
            s_add_u32 s53, s53, s3              ; x rows 24w..
            s_mul_i32 s55, s28, 3072
            s_mov_b32 s18, 884736
            s_mov_b32 s19, 0x20000
            s_mov_b32 s22, 4718592
            s_mov_b32 s23, 0x20000""")
    if opt.krot == 0: a.e("s_mov_b32 s74, 0")
    elif opt.krot == 1: a.e("s_cmp_ge_u32 s74, 9\ns_cselect_b32 s3, 9, 0\ns_sub_u32 s74, s74, s3")
    elif opt.krot == 3: a.e("s_and_b32 s74, s74, 1\ns_lshl_b32 s74, s74, 2")
    elif opt.krot == 2: a.e("s_add_u32 s74, s31, s32\ns_mul_i32 s3, s74, 86\ns_lshr_b32 s3, s3, 8\ns_mul_i32 s3, s3, 3\ns_sub_u32 s74, s74, s3\ns_mul_i32 s74, s74, 3")
    elif opt.krot == 4: a.e("s_add_u32 s74, s31, s32\ns_and_b32 s74, s74, 3\ns_mul_i32 s74, s74, 9\ns_lshr_b32 s74, s74, 2")
    elif opt.krot == 5: a.e("s_add_u32 s74, s31, s32\ns_and_b32 s74, s74, 1\ns_lshl_b32 s74, s74, 2")
    a.e("s_cmp_eq_u32 s29, 0\ns_waitcnt lgkmcnt(0)")
    for d, o in ((20, 6), (16, 0), (8, 2), (12, 4)):
        a.e(f"s_cselect_b32 s{d}, s{56+o}, s{64+o}\ns_cselect_b32 s{d+1}, s{57+o}, s{65+o}")
    a.e("""s_cselect_b32 s76, s40, s42
           s_cselect_b32 s77, s41, s43
           s_mov_b64 s[78:79], s[44:45]
           s_mov_b64 s[80:81], s[46:47]
           s_or_b32 s75, s48, 1""")
    P = lambda ch: " nt" if ch == "n" else ""
    XS = 98304
    VW4, VX3 = 32, 36
    a.e(f"""v_mov_b32 v{VW4}, v{VW}
            v_add_u32 v{VW4+1}, {65536 - 1024}, v{VW}
            v_add_u32 v{VW4+2}, {2*(65536 - 1024)}, v{VW}
            v_add_u32 v{VW4+3}, {3*(65536 - 1024)}, v{VW}
            v_mov_b32 v{VX3}, v{VXA}
            v_add_u32 v{VX3+1}, {9216 - 1024}, v{VXB}
            v_add_u32 v{VX3+2}, {2*(9216 - 1024)}, v{VXA}
            s_lshl_b32 s4, s74, 19
            s_add_u32 s4, s4, s52
            s_lshl_b32 s5, s74, 7
            s_add_u32 s5, s5, s53
            s_sub_u32 s74, 9, s74""")
    WR = lambda c, j: ar(((c - 3)*8 + j)*4, 4)
    XR = lambda c, i: ar(192 + ((c-3)*3 + i)*4, 4) if (c-3)*3 + i < 16 else vr(40 + ((c-3)*3 + i - 16)*4, 4)
    def regstage(c):
        Gs = []
        for j in range(8):
            Gs.append(("s_add_u32 s4, s4, 262144\n" if j == 4 else "") + f"buffer_load_dwordx4 {WR(c,j)}, v{VW4 + j % 4}, s[20:23], s4 offen offset:{(j % 4)*1024}{P(opt.wp[0])} ; @s{c}")
        for i in range(3):
            g = ("s_add_u32 s4, s4, 262144\n" if i == 0 else "") + f"buffer_load_dwordx4 {XR(c,i)}, v{VX3 + i}, s[16:19], s5 offen offset:{i*1024}{P(opt.wp[1])} ; @s{c}"
            if i == 2: g += f"\ns_add_u32 s5, s5, 128\ns_sub_u32 s74, s74, 1\ns_cmp_lg_u32 s74, 0\ns_cbranch_scc1 L_nw{c}\nRAW s_mov_b32 s4, s52\nRAW s_mov_b32 s5, s53\nLABEL L_nw{c}"
            Gs.append(g)
        return Gs
    def regwrite(c):
        return [f"WAITVM s{c}"] + [f"ds_write_b128 v48, {WR(c,j)} offset:{(c % 2)*SLOT + j*1024}" for j in range(8)] + \
               [f"ds_write_b128 v49, {XR(c,i)} offset:{(c % 2)*12288 + i*1024}" for i in range(3)]
    def stage(c):
        buf = c % 3; Gs = []
        if c >= 3: return regstage(c)
        for j in range(8):
            g = [f"s_add_u32 m0, s37, {buf*SLOT}", "s_nop 0"] if j == 0 else [f"s_add_u32 m0, s37, {buf*SLOT + 4096}", "s_add_u32 s4, s4, 262144"] if j == 4 else []
            Gs.append("\n".join(g + [f"buffer_load_dwordx4 v{VW4 + j % 4}, s[20:23], s4 offen offset:{(j % 4)*1024}{P(opt.wp[0])} lds ; @s{c}"]))
        for i in range(3):
            g = [f"s_add_u32 m0, s55, {XS + buf*12288}", "s_add_u32 s4, s4, 262144"] if i == 0 else []
            g += [f"buffer_load_dwordx4 v{VX3 + i}, s[16:19], s5 offen offset:{i*1024}{P(opt.wp[1])} lds ; @s{c}"]
            if i == 2: g += ["s_add_u32 s5, s5, 128", "s_sub_u32 s74, s74, 1", f"s_cbranch_scc0 L_nw{c}", ]
            Gs.append("\n".join(g))
        Gs[-1] = Gs[-1].replace(f"s_sub_u32 s74, s74, 1\ns_cbranch_scc0 L_nw{c}", f"s_sub_u32 s74, s74, 1\ns_cmp_lg_u32 s74, 0\ns_cbranch_scc1 L_nw{c}\nRAW s_mov_b32 s4, s52\nRAW s_mov_b32 s5, s53\nLABEL L_nw{c}")
        return Gs
    stamp(a, 'ka', opt)
    wtouch = [x.strip() for x in """s_lshr_b32 s3, s2, 3
            s_lshl_b32 s3, s3, 2
            s_add_u32 s3, s3, s28
            s_mul_i32 s3, s3, 9216
            s_mul_i32 s47, s30, 1179648
            v_lshlrev_b32 v24, 7, v1
            v_add_u32 v24, s3, v24
            v_add_u32 v25, 8192, v24
            v_cmp_gt_u32 s[70:71], 8, v1
            v_cndmask_b32 v25, -1, v25, s[70:71]""".split("\n")]
    wtouch = ["\n".join(wtouch + ["buffer_load_dword v23, v24, s[60:63], s47 offen ; @junk"]), "s_mul_i32 s47, s30, 1179648\nbuffer_load_dword v23, v25, s[60:63], s47 offen ; @junk"]
    if opt.wot is not None: srd(a, 60, "s76", "s77", 4718592)
    if opt.wot == 'a': emit(a, wtouch)
    emit(a, stage(0))
    if opt.kvtlb:
        a.e(f"""s_mov_b32 s10, {1 << 26}
                s_mov_b32 s11, 0x20000
                s_mov_b32 s14, {1 << 26}
                s_mov_b32 s15, 0x20000
                s_lshl_b32 s3, s31, 5
                s_add_u32 s3, s3, s33
                s_add_u32 s3, s3, s7
                s_lshl_b32 s3, s3, 18
                v_and_b32 v24, 3, v1
                v_lshlrev_b32 v24, 16, v24
                buffer_load_dword v23, v24, s[8:11], s3 offen nt ; @junk
                buffer_load_dword v23, v24, s[12:15], s3 offen nt ; @junk""")
    if opt.wot == 'b': emit(a, wtouch)
    stamp(a, 'i0', opt)
    srd(a, 56, "s80", "s81", 256)
    a.e("""s_lshl_b32 s3, s2, 8
           v_add_u32 v106, s3, v0
           v_min_u32 v106, 1, v106
           v_lshlrev_b32 v106, 12, v106
           v_mov_b32 v107, s75
           buffer_store_dword v107, v106, s[56:59], 0 offen sc1""")
    emit(a, stage(1))
    if opt.wot == 'c': emit(a, wtouch)
    for d in (8, 12): a.e(f"s_mov_b32 s{d+2}, {1 << 26}\ns_mov_b32 s{d+3}, 0x20000")
    srd(a, 24, "s72", "s73", WS_BYTES)
    srd(a, 60, "s76", "s77", 4718592)
    a.e(f"""v_lshrrev_b32 v{H}, 5, v1
            v_and_b32 v{L31}, 31, v1
            v_lshrrev_b32 v{R}, 2, v{L15}
            v_and_b32 v{C4}, 3, v1
            v_lshl_add_u32 v59, v{H}, 3, v{R}
            v_lshlrev_b32 v59, 7, v59
            v_lshrrev_b32 v60, 1, v{R}
            v_lshl_add_u32 v59, v60, 6, v59
            v_lshl_add_u32 v59, v{G1}, 5, v59
            v_lshl_add_u32 v59, v{C4}, 3, v59
            v_add_u32 v{AW}, s37, v59
            v_xor_b32 v{AW+1}, 64, v{AW}
            v_bfe_u32 v60, v1, 1, 3
            v_xor_b32 v60, v60, v{H}
            v_lshlrev_b32 v60, 4, v60
            v_lshl_add_u32 v60, v{L31}, 7, v60
            v_add_u32 v{AX}, {XS}, v60""")
    for s in range(1, 4): a.e(f"v_xor_b32 v{AX+s}, {32*s}, v{AX}")
    a.e(f"""s_lshl_b32 s3, s28, 2
            s_add_u32 s3, s3, {TOP + 3072}
            v_mov_b32 v{VFO}, s3
            v_xor_b32 v{VFP}, 4, v{VFO}
            v_mov_b32 v61, 0
            ds_write_b32 v{VFO}, v61
            ds_write_b32 v{VFO}, v61 offset:16
            s_mov_b32 s44, 0
            s_mov_b32 s45, 0""")
    a.e(f"""v_lshlrev_b32 v49, 4, v1
            v_add_u32 v48, s37, v49
            s_add_u32 s3, s55, {XS}
            v_add_u32 v49, s3, v49
            s_lshl_b32 s54, s28, 13
            s_add_u32 s54, s54, {SV}""")
    def frag_reads(c, s, F):
        buf = c if c < 3 else c % 2
        L = [f"ds_read_b64_tr_b16 {vr(F + db*4 + k*2, 2)}, v{AW+db} offset:{buf*SLOT + (16*s + 4*k) * 128}" for db in range(2) for k in range(2)]
        return L + [f"ds_read_b128 {vr(F + 8 + qb*4, 4)}, v{AX+s} offset:{buf*12288 + qb*4096}" for qb in range(3)]
    setup = f"""v_lshlrev_b32 v26, 8, v{G}
            v_xor_b32 v27, v{L15}, v{G}
            v_lshl_add_u32 v{VOFFK}, v27, 4, v26
            v_xor_b32 v{VOFFK+1}, 64, v{VOFFK}
            v_xor_b32 v{VOFFK+2}, 128, v{VOFFK}
            v_xor_b32 v{VOFFK+3}, 192, v{VOFFK}
            v_lshlrev_b32 v27, 2, v{G}
            v_xor_b32 v27, v{L15}, v27
            v_lshl_add_u32 v{VOFFV}, v27, 4, v26
            s_lshl_b32 s3, s6, 13
            s_add_u32 s33, s33, s7
            s_lshl_b32 s34, s31, 5
            s_add_u32 s34, s34, s33
            s_lshl_b32 s34, s34, 18
            s_add_u32 s34, s34, s3"""
    if opt.rot:
        setup += """
            s_lshl_b32 s3, s2, 2
            s_add_u32 s3, s3, s7
            s_mul_i32 s3, s3, 0x1e3779b1
            s_lshr_b32 s47, s3, 15
            s_xor_b32 s3, s3, s47
            s_mul_i32 s3, s3, 0x2c1b3c6d
            s_lshr_b32 s3, s3, 20
            s_and_b32 s3, s3, 15
            s_lshl_b32 s35, s3, 14"""
    else: setup += "\ns_mov_b32 s35, 0"
    setup += f"""
            s_mov_b32 s36, s35
            s_mov_b32 s69, s35
            v_lshlrev_b32 v50, 7, v1
            v_xor_b32 v27, v{H}, v{L15}
            v_lshlrev_b32 v27, 4, v27
            v_lshl_add_u32 v27, v{L31}, 8, v27
            v_add_u32 v{VKA}, s37, v27"""
    for s in range(1, 8): setup += f"\nv_xor_b32 v{VKA+s}, {32*s}, v{VKA}"
    setup += f"""
            v_lshl_add_u32 v28, v{H}, 2, v{R}
            v_lshlrev_b32 v28, 8, v28
            v_lshl_add_u32 v28, v{R}, 6, v28
            v_lshl_add_u32 v28, v{G1}, 5, v28
            v_lshl_add_u32 v28, v{C4}, 3, v28
            s_lshl_b32 s47, s6, 7
            v_xor_b32 v28, s47, v28
            v_add_u32 v{VVA}, s37, v28"""
    for db in range(1, 4): setup += f"\nv_xor_b32 v{VVA+db}, {64*db}, v{VVA}"
    setup += "\nv_add_u32 v28, s54, v28"
    for db in range(1, 4): setup += f"\nv_xor_b32 v{28+db}, {64*db}, v28"
    setup += f"\ns_mov_b32 s42, {f2u(CSC):#x}\ns_mov_b32 s43, {f2u(THR_LOG2):#x}"
    for qb in range(3): setup += f"\nv_mov_b32 v{LSUM+qb}, 0"
    setup = [x.strip() for x in setup.split("\n")]
    VO, VL16, AD, VOL = 93, 102, 103, 107
    def vo_calc(dst, rev):
        L = []
        for i in range(9):
            L += [f"v_add_u32 v80, {64*i}, v1", "v_mul_u32_u24 v28, 58255, v80", "v_lshrrev_b32 v28, 20, v28", "v_mul_u32_u24 v83, 18, v28",
                  "v_sub_u32 v83, v80, v83", "v_xor_b32 v29, 1, v83", "v_sub_u32 v29, 17, v29"]
            if rev == "vcc": L += ["v_cndmask_b32 v29, v83, v29, s[70:71]"]
            L += ["v_mul_u32_u24 v28, 1152, v28", f"v_lshl_add_u32 v{dst+i}, v29, 4, v28"]
        return L
    setup2 = ["s_cmp_eq_u32 s7, 1\ns_cselect_b64 s[70:71], -1, 0"] + vo_calc(VO, "vcc") + [x.strip() for x in f"""v_lshlrev_b32 v{VL16}, 4, v1
            v_lshlrev_b32 v80, 4, v{H}
            v_lshl_add_u32 v80, v{G1}, 2, v80
            v_add_u32 v80, v80, v{R}
            v_mul_u32_u24 v80, 288, v80
            v_lshl_add_u32 v80, v{C4}, 3, v80
            s_mul_i32 s3, s7, 18432
            v_add_u32 v{AD+1}, s3, v80
            v_add_u32 v{AD}, {SB[0]}, v{AD+1}
            v_lshlrev_b32 v{VOL}, 10, v{G1}
            v_lshl_add_u32 v{VOL}, v{H}, 8, v{VOL}
            v_lshl_add_u32 v{VOL}, v{L15}, 4, v{VOL}
            v_mov_b32 v108, 0
            s_mul_i32 s67, s30, 1179648
            s_mul_i32 s3, s32, 288
            s_add_u32 s64, s67, s3              ; wo: rows of the octet, columns 144p..
            s_lshl_b32 s39, s29, 3
            s_add_u32 s39, s39, s31""".split("\n")]
    setW = ["s_lshl_b32 s66, s32, 1", "s_mul_i32 s65, s28, 9216", f"s_mul_i32 s68, s28, {32*1152}", "s_add_u32 s68, s68, s64"]
    def arrive(): a.e(f"s_add_u32 s44, s44, 1\nv_mov_b32 v{VD}, s44\nds_write_b32 v{VFO}, v{VD}")
    def psync(arrived=False):
        psync.n += 1; n = psync.n
        if not arrived: arrive()
        a.e("s_mov_b32 s47, 0x400000")
        a.label(f"L_ps{n}")
        a.e(f"""ds_read_b32 v{VD}, v{VFP}
                s_sub_u32 s47, s47, 1
                s_waitcnt lgkmcnt(0)
                v_readfirstlane_b32 s3, v{VD}
                s_cmp_eq_u32 s47, 0
                s_cselect_b32 s3, s44, s3
                s_cmp_lt_u32 s3, s44
                s_cbranch_scc1 L_ps{n}""")
    psync.n = 0
    def other_pair(name, word, val, T=84):
        a.e(f"v_mov_b32 v{T+2}, {TOP + 3072 + word}\ns_mov_b32 s47, 0x400000")
        a.label(name)
        a.e(f"""s_sleep 2
                ds_read_b64 v[{T}:{T+1}], v{T+2}
                s_sub_u32 s47, s47, 1
                s_waitcnt lgkmcnt(0)
                v_min_u32 v{T}, v{T}, v{T+1}
                v_readfirstlane_b32 s3, v{T}
                s_cmp_eq_u32 s47, 0
                s_cselect_b32 s3, {val}, s3
                s_cmp_lt_u32 s3, {val}
                s_cbranch_scc1 {name}""")

    ACC = 112
    def qwrite(blocks, dreg, area, extra=()):
        a.e(f"""v_xor_b32 v55, {dreg}, v{L15}
                v_lshlrev_b32 v55, 4, v55
                v_lshl_add_u32 v55, v{L31}, 8, v55
                v_lshl_add_u32 v55, v{H}, 3, v55
                v_add_u32 v55, {area}, v55
                v_mov_b32 v62, s42""")
        for db in range(blocks):
            for i in range(4):
                a.e(f"v_xor_b32 v54, {(4*db + i)*16}, v55")
                if extra: emit(a, [extra[4*db + i]])
                for qb in range(3):
                    r = ACC + (db*3 + qb)*16 + 4*i; tq = 56 + 2 * qb
                    a.e(f"""v_pk_mul_f32 v[{r}:{r+1}], v[{r}:{r+1}], v[62:63] op_sel_hi:[1,0]
                            v_pk_mul_f32 v[{r+2}:{r+3}], v[{r+2}:{r+3}], v[62:63] op_sel_hi:[1,0]
                            v_cvt_pk_bf16_f32 v{tq}, v{r}, v{r+1}
                            v_cvt_pk_bf16_f32 v{tq+1}, v{r+2}, v{r+3}
                            ds_write_b64 v54, v[{tq}:{tq+1}] offset:{qb*8192}""")
    def qread(area):
        a.e(f"s_sub_u32 s3, {area}, s37")
        for s in range(8): a.e(f"v_add_u32 v{32+s}, s3, v{VKA+s}")
        for qb in range(3):
            for s in range(8): a.e(f"ds_read_b128 {vr(Qreg(qb,s),4)}, v{32+s} offset:{qb*8192}")
    FA, FB = 208, 228
    a.wait(vmtags=["s0"], lg0=True); a.e("s_barrier")
    stamp(a, "q0", opt)
    emit(a, frag_reads(0, 0, FA))
    sl = [[] for _ in range(216 + 24)]
    spread(sl, [x for c in range(2, 9 - opt.rlate) for x in stage(c)], 0, opt.rspan)
    spread(sl, setup, 6, 64)
    for c in range(9):
        for s in range(4):
            F, nF = (FA, FB) if s % 2 == 0 else (FB, FA)
            k0 = (c*4 + s) * 6
            if s == 3:
                a.wait(vmtags=[f"s{c+1}"] if c < 2 else [], lg0=True); a.e("s_barrier")
                stamp(a, f"c{c}", opt)
                if 1 <= c <= 6: spread(sl, regwrite(c + 2), k0 + (opt.wdel if c == 1 else 1), k0 + 22)
                if c == 2 and opt.rwait is not None:
                    p0 = max(k0, opt.rspan + opt.rwait); sl[p0].append("WAITVM s8")
                    spread(sl, dma_unit(0, opt) + dma_unit(1, opt), p0, p0 + opt.kspan)
                elif c == 2: spread(sl, dma_unit(0, opt) + [x for k in range(9 - opt.rlate, 9) for x in stage(k)] + dma_unit(1, opt), max(k0, opt.rspan), max(k0, opt.rspan) + opt.kspan)
                if c == 7: spread(sl, dma_unit(2, opt), k0, k0 + 18)
                for u in opt.touch.get(c, []):
                    sl[k0 + 20].append(f"s_add_u32 s47, s69, {(u // 2) * 16384}\ns_and_b32 s47, s47, 0x3ffff\ns_add_u32 s47, s47, s34\n" +
                                       f"buffer_load_dword v51, v50, {'s[8:11]' if u % 2 == 0 else 's[12:15]'}, s47 offen nt ; @junk")
                if opt.wot == c: spread(sl, wtouch, k0 + 12, k0 + 22)
                if opt.ctouch == c:
                    sl[k0 + 6].append("s_getpc_b64 s[70:71]\nLABEL L_pc\nv_lshlrev_b32 v24, 7, v0\nv_add_u32 v24, L_qcode-L_pc, v24\nv_min_u32 v24, L_end-L_pc-4, v24\nglobal_load_dword v23, v24, s[70:71] ; @junk")
            rd = (frag_reads(c + 1, 0, nF) if c < 8 else []) if s == 3 else frag_reads(c, s + 1, nF)
            if opt.qlev:
                for k, x in enumerate(rd): sl[k0 + (0, 0, 1, 1, 2, 3, 4)[k]].insert(0, x)
                a.wait(lgregs=regs_of(vr(F, 20)))
            else: emit(a, rd)
            i = 0
            for db in range(2):
                for qb in range(3):
                    d = vr(ACC + (db*3 + qb)*16, 16)
                    emit(a, [f"v_mfma_f32_32x32x16_bf16 {d}, {vr(F+db*4,4)}, {vr(F+8+qb*4,4)}, " + ("0" if (c == 0 and s == 0) else d)] + sl[k0 + i]); i += 1
    assert not any(sl[216:])
    a.label("L_qcode")
    a.e("s_lshl_b32 s3, s6, 3\ns_cmp_eq_u32 s7, 1\ns_cbranch_scc1 L_qy")
    sv = save(a)
    qwrite(2, "s3", XS, () if opt.u3late else dma_unit(3, opt))
    a.e("s_waitcnt lgkmcnt(0)\ns_barrier")
    qread(XS)
    if opt.u3late: emit(a, dma_unit(3, opt))
    a.e("s_waitcnt lgkmcnt(0)\ns_barrier\ns_branch L_qdone")
    a.label("L_qy"); load(a, sv)
    emit(a, dma_unit(3, opt))
    a.e("s_barrier\ns_barrier\ns_lshl_b32 s3, s6, 3")
    qwrite(2, "s3", XS)
    a.e("s_waitcnt lgkmcnt(0)"); psync()
    qread(XS)
    a.label("L_qdone")
    stamp(a, "qx", opt)
    a.wait(vmtags=["u0"], lg0=True)
    emit(a, kreads(0))
    stamp(a, "k0", opt)
    a.e(f"""v_mov_b32 v26, {TOP + 3072 + 16}
            s_cmp_eq_u32 s7, 1
            s_cselect_b32 s50, {round(opt.thr1 * 16)}, 0
            s_cselect_b32 s38, {round((opt.thr0 + opt.thr1) * 16)}, -1""")
    if not opt.hold: a.e("s_lshl_b32 s50, s7, 1\ns_add_u32 s50, s50, 2\ns_sub_u32 s50, s50, s29\ns_mov_b32 s38, s50" + ("\ns_mov_b32 s50, 0" if opt.free01 else ""))
    if opt.acct: a.e(f"s_mov_b64 s[98:99], s[{STB}:{STB+1}]\ns_mov_b64 s[100:101], s[{STB}:{STB+1}]\ns_mov_b64 s[92:93], s[{STB}:{STB+1}]")
    def wpieces(tag, head, rows, lds, voreg):
        Gs = []
        for i in range(9):
            g = [f"s_add_u32 s4, s66, {head}", "s_and_b32 s4, s4, 7", f"s_mul_i32 s4, s4, {128*1152}", "s_add_u32 s4, s4, s68",
                 f"s_add_u32 s4, s4, {rows*1152}"] if i == 0 else []
            g += [f"s_add_u32 m0, s65, {lds + i*1024}", f"buffer_load_dwordx4 v{voreg+i}, s[60:63], s4 offen{opt.wopol} lds ; @{tag}"]
            Gs.append("\n".join(g))
        return Gs
    HEAD = (0, 2, 4, 6, 1, 3, 5, 7)
    NX = opt.nx
    BUFOF = [st % 2 for st in range(NX + 2)] + [2, 3]
    while len(BUFOF) < 8: BUFOF.append(BUFOF[len(BUFOF) - 4])
    wS = lambda st: wpieces(f"w{st}", HEAD[st], 0, SB[BUFOF[st]], VO)
    wX = lambda st, VOR: wpieces(f"w{st}", HEAD[st], 0, SB[BUFOF[st]], VO) + wpieces(f"w{st}", HEAD[st], 64, SB[BUFOF[st]] + 18432, VOR)
    carry = tile_body(a, opt, 0, [])
    carry = tile_body(a, opt, 1, carry, extra=[(setup2 + setW, 0, 41)])
    carry1 = [[x.replace('L_sk1_', 'L_sk4_') for x in y] for y in carry]
    if opt.unroll:
        for t in range(2, 14):
            stamp(a, f'r{t}', opt); carry = tile_body(a, opt, t, carry)
    else:
        stamp(a, "l0", opt)
        a.e("s_mov_b32 s46, 4")
        a.raw(".p2align 6"); a.label("L_tile")
        keep = list(a.vm)
        if opt.firstfree: a.e("s_cmp_eq_u32 s46, 4\ns_cselect_b32 s50, 0, s38")
        elif opt.free01: a.e("s_mov_b32 s50, s38")
        if not opt.hold: a.e(f"s_cmp_eq_u32 s7, 0\ns_cselect_b32 s3, {2*opt.last[0]}, {2*opt.last[1]}\ns_cmp_gt_u32 s46, 1\ns_cselect_b32 s50, s50, s3")
        if opt.late:
            a.e(f"""s_lshl_b32 s3, s7, 3
                    s_add_u32 s3, s3, s46
                    s_cmp_lg_u32 s3, {opt.late}
                    s_cbranch_scc1 L_nolate
                    s_lshr_b32 s3, s2, 3
                    s_lshl_b32 s3, s3, 1
                    s_add_u32 s3, s3, s6
                    s_mul_i32 s3, s3, 18432
                    v_lshlrev_b32 v84, 7, v1
                    v_add_u32 v84, s3, v84
                    v_add_u32 v85, 8192, v84
                    v_add_u32 v86, 16384, v84
                    v_cmp_gt_u32 vcc, 16, v1
                    v_cndmask_b32 v86, -1, v86, vcc""")
            emit(a, [f"buffer_load_dword v87, v{r}, s[60:63], s67 offen{opt.tpol} ; @junk" for r in (84, 85, 86)])
            a.label("L_nolate")
        if opt.tlb:
            a.e(f"""s_cmp_lg_u32 s46, {opt.tlb}
                    s_cbranch_scc1 L_notlb
                    s_lshl_b32 s3, s39, 2
                    s_add_u32 s4, s3, s30
                    s_mul_i32 s4, s4, {8*24576}
                    v_mov_b32 v84, s4
                    s_add_u32 s4, s4, {8*24576 - 128}
                    v_writelane_b32 v84, s4, 1
                    s_add_u32 s3, s3, s32
                    s_mul_i32 s4, s3, {4*36864}
                    s_add_u32 s4, s4, {WS_P}
                    v_writelane_b32 v84, s4, 2
                    s_add_u32 s4, s4, {4*36864 - 128}
                    v_writelane_b32 v84, s4, 3
                    s_mov_b32 s4, {WS_F + 65536 - 128}
                    v_writelane_b32 v84, s4, 4
                    s_mul_i32 s4, s31, {96*2304}
                    v_mov_b32 v85, s4
                    s_add_u32 s4, s4, {96*2304 - 128}
                    v_writelane_b32 v85, s4, 1
                    s_mov_b64 s[16:17], s[78:79]
                    s_mov_b32 s18, 1769472
                    buffer_load_dword v87, v84, s[24:27], 0 offen nt ; @junk
                    buffer_load_dword v87, v85, s[16:19], 0 offen nt ; @junk""")
            a.label("L_notlb")
        a.vm = keep
        for t in (2, 3, 4): carry = tile_body(a, opt, t, carry)
        assert carry == carry1
        a.e("s_sub_u32 s46, s46, 1\ns_cmp_lg_u32 s46, 0\ns_cbranch_scc1 L_tile")
        for o in a.vm:
            if o.tag and o.tag[0] == "u": o.tag = f"u{int(o.tag[1:]) + 18}"
    stamp(a, "l1", opt)
    raw = lambda L: "\n".join(("LABEL " + y[6:] if y.startswith("LABEL ") else "RAW " + y) for x in L for y in x.split("\n"))
    w0blk = "s_cmp_eq_u32 s7, 1\ns_cbranch_scc1 L_now0\n" + raw([f"""v_mov_b32 v83, {TOP + 3072 + 16}
s_mov_b32 s47, 0x400000
LABEL L_yq
ds_read_b128 v[84:87], v83
s_sub_u32 s47, s47, 1
s_waitcnt lgkmcnt(0)
v_min3_u32 v84, v84, v85, v86
v_min_u32 v84, v84, v87
s_nop 1
v_readfirstlane_b32 s3, v84
s_nop 1
s_cmp_eq_u32 s47, 0
s_cselect_b32 s3, 1, s3
s_cmp_lt_u32 s3, 1
s_cbranch_scc1 L_yq"""] + [x.replace("buffer_load", "s_nop 0\nbuffer_load") for x in wX(0, VO)]) + "\nLABEL L_now0"
    W0 = lambda t: [([w0blk], opt.w0at[1], opt.w0at[1] + 1)] if opt.w0at and opt.w0at[0] == t else []
    carry = tile_body(a, opt, 14, carry, extra=W0(14))
    xo = lambda k: (k // 8) * SLOT + (k % 8) * 1024
    def send(qb):
        return [f"ds_write_b128 v28, {ar(Oacc(2+i,qb) + 4*g, 4)} offset:{xo((i*3 + qb)*4 + g)}" for i in range(2) for g in range(4)]
    accr = lambda qb: [f"v_accvgpr_read_b32 v{160 + (i*3+qb)*16 + r}, a{Oacc(i,qb) + r}" for i in range(2) for r in range(16)]
    pre = ["buffer_load_dword v106, v108, s[56:59], 0 offen sc1 ; @tag",
           f"v_add_u32 v28, s37, v{VL16}", "s_lshl_b32 s3, s6, 14\ns_sub_u32 s3, 8192, s3", "v_add_u32 v29, s3, v28",
           f"s_mul_i32 s3, s28, 768\ns_add_u32 s3, s3, {TOP}", f"v_lshlrev_b32 v30, 3, v{L31}", "v_add_u32 v30, s3, v30",
           f"s_xor_b32 s3, s28, 1\ns_mul_i32 s3, s3, 768\ns_add_u32 s3, s3, {TOP}", f"v_lshlrev_b32 v31, 3, v{L31}", "v_add_u32 v31, s3, v31"]
    team = "v_and_b32 v13, 3, v1\nv_lshlrev_b32 v13, 10, v13\nv_and_b32 v14, 4, v1\nv_add_u32 v13, v13, v14"
    askX = [f"s_andn2_b32 s71, s2, 24\ns_lshl_b32 s71, s71, 7\ns_add_u32 s69, s71, {WS_F}"] + team.split("\n") + ["buffer_load_dword v12, v13, s[24:27], s69 offen sc1"]
    carry = tile_body(a, opt, 15, carry, extra=[(pre, 8, 16), (askX, 28, 34), (send(0), 34, 48)] + W0(15) + ([(accr(0), 33, 44)] if opt.accearly else []))
    sl = [[] for _ in range(8)]
    carry = [x for y in carry for x in y]
    cut = max([i + 1 for i, x in enumerate(carry) if x.startswith(f"v_cvt_pk_bf16_f32 v{Sreg(2,3)},")] + [len(carry) - 16, 0])
    emit(a, carry[:cut])
    spread(sl, carry[cut:], 0, 3)
    st = []
    for qb in range(3): st += [f"v_mov_b32 v{3+2*qb}, v{LSUM+qb}", f"v_mov_b32 v{2+2*qb}, v{NM+16*qb}"]
    for qb in range(3): st += [f"v_permlane32_swap_b32 v{LSUM+qb}, v{3+2*qb}"]
    for qb in range(3): st += [f"v_add_f32 v{3+2*qb}, v{LSUM+qb}, v{3+2*qb}", f"ds_write_b64 v30, v[{2+2*qb}:{3+2*qb}] offset:{qb*256}"]
    spread(sl, st + send(1), 3, 8)
    for m, f in zip(pv(2, False), sl): emit(a, [m] + f)
    stamp(a, "t15", opt)
    emit(a, accr(1)[:12] + send(2))
    emit(a, ([] if opt.accearly else accr(0)) + accr(1)[12:] + accr(2))
    a.e("s_mov_b32 s4, 0x100000")
    a.label("L_tag")
    a.e("""s_waitcnt vmcnt(0)
           v_readfirstlane_b32 s75, v106
           s_cmp_lg_u32 s75, 0
           s_cbranch_scc1 L_tag_ok
           buffer_load_dword v106, v108, s[56:59], 0 offen sc1 ; @junk
           s_sub_u32 s4, s4, 1
           s_cmp_lg_u32 s4, 0
           s_cbranch_scc1 L_tag""")
    a.label("L_tag_ok"); a.vm = []
    a.e(f"""s_lshl_b32 s3, s39, 5
            s_add_u32 s3, s3, s33
            s_mul_i32 s52, s3, 24576
            s_mul_i32 s3, s6, 12288
            s_add_u32 s52, s52, s3
            s_waitcnt lgkmcnt(0)""")
    if opt.earr: arrive()
    ACC, WF, OF = 112, 16, 0
    def ask(base, lanes):
        a.e(f"s_add_u32 s69, {base}, {WS_F}\n{lanes}\nbuffer_load_dword v12, v13, s[24:27], s69 offen sc1")
    def check(tag):
        a.e("s_mov_b32 s4, 0x100000")
        a.label(f"L_poll{tag}")
        a.e(f"""s_waitcnt vmcnt(0)
                v_cmp_ne_u32 vcc, s75, v12
                s_cbranch_vccz L_got{tag}
                s_sleep 1
                buffer_load_dword v12, v13, s[24:27], s69 offen sc1
                s_sub_u32 s4, s4, 1
                s_cmp_lg_u32 s4, 0
                s_cbranch_scc1 L_poll{tag}""")
        a.label(f"L_got{tag}")
        a.e("s_waitcnt vmcnt(0)")
    def wreads(buf, rows, F):
        reg, boff = (AD, AD + 1, 220, 221)[buf], 0
        return [f"ds_read_b64_tr_b16 {vr(F + nb*4 + 2*k, 2)}, v{reg} offset:{boff + (rows + 8*k) * 288 + 32*nb}" for nb in range(9) for k in range(2)]
    def oload(tag, head, db0, nks, dst):
        Gs = []
        for kl in range(nks):
            for j in range(3):
                g = [f"s_add_u32 s47, s66, {head}", "s_and_b32 s47, s47, 7", "s_mul_i32 s47, s47, 24576", "s_add_u32 s47, s47, s37"] + \
                    ([f"s_add_u32 s47, s47, {db0}"] if db0 else []) if kl + j == 0 else ["s_add_u32 s47, s47, 6144"] if j == 0 else []
                Gs.append("\n".join(g + [f"buffer_load_dwordx4 {ar(dst + (kl*3+j)*4, 4)}, v{VL16}, s[24:27], s47 offen offset:{j*1024} sc1 ; @{tag}"]))
        return Gs
    def kstep(F, O, zero, reads, jobs):
        ms = [f"v_mfma_f32_16x16x32_bf16 {vr(ACC + (nb*3+j)*4, 4)}, {vr(F+nb*4,4)}, {ar(O+j*4,4)}, " + ("0" if zero else vr(ACC + (nb*3+j)*4, 4))
              for nb in range(9) for j in range(3)]
        sl = [[] for _ in range(27)]
        spread(sl, reads, 0, 20); spread(sl, jobs, 0, 27)
        a.e("s_waitcnt lgkmcnt(0)")
        for m, f in zip(ms, sl): emit(a, [m] + f)
        return ms
    team = "v_and_b32 v13, 3, v1\nv_lshlrev_b32 v13, 10, v13\nv_and_b32 v14, 4, v1\nv_add_u32 v13, v13, v14"
    a.e(f"""s_lshl_b32 s3, s2, 7
            s_lshl_b32 s4, s28, 2
            s_add_u32 s70, s3, s4
            s_add_u32 s70, s70, {WS_F}
            s_lshl_b32 s3, s39, 2
            s_add_u32 s3, s3, s30
            s_mul_i32 s37, s3, {8*24576}
            s_mul_i32 s4, s6, 3072
            s_add_u32 s37, s37, s4
            s_mul_i32 s4, s7, 12288
            s_add_u32 s37, s37, s4
            s_mov_b32 s45, 0
            s_cmp_eq_u32 s7, 0
            s_cbranch_scc1 L_noearly
            v_cmp_ne_u32 vcc, s75, v12
            s_cbranch_vccnz L_noearly
            s_mov_b32 s45, 1""")
    for st in range(NX, 4): emit(a, oload(f"o{st}", HEAD[st], 0, 2, 24*st))
    a.label("L_noearly"); a.vm = []
    a.e(f"v_sub_u32 v27, v29, v{VL16}\nv_add_u32 v27, v27, v{VOL}")
    psync(opt.earr)
    stamp(a, "c_bar", opt)
    for qb in range(3): a.e(f"ds_read_b64 v[{8+2*qb}:{9+2*qb}], v31 offset:{qb*256}")
    RC = (32, 48, 64, 112, 128, 144)
    def recv(blk):
        for g in range(4): a.e(f"ds_read_b128 {vr(RC[blk]+4*g,4)}, v29 offset:{xo(blk*4 + g)}")
    recv(0); recv(1)
    SC = 16
    for qb in range(3):
        pn, pl, on, ol = 8 + 2*qb, 9 + 2*qb, 2 + 2*qb, 3 + 2*qb
        a.auto(f"v_min_f32 v22, v{on}, v{pn}")
        a.e(f"""v_sub_f32 v23, v22, v{on}
                v_sub_f32 v24, v22, v{pn}
                v_exp_f32 v23, v23
                v_exp_f32 v24, v24
                v_mul_f32 v{ol}, v{ol}, v23
                v_fmac_f32 v{ol}, v{pl}, v24
                v_rcp_f32 v{ol}, v{ol}
                v_mul_f32 v{SC+2*qb}, v23, v{ol}
                v_mul_f32 v{SC+2*qb+1}, v24, v{ol}""")
    recv(2); recv(3); recv(4); recv(5)
    for blk in range(6):
        i, qb = divmod(blk, 3)
        K = 160 + blk*16; Rr = RC[blk]
        a.wait(lgregs=regs_of(vr(Rr, 16)))
        for r in range(0, 16, 2):
            a.e(f"v_pk_mul_f32 v[{Rr+r}:{Rr+r+1}], v[{Rr+r}:{Rr+r+1}], v[{SC+2*qb}:{SC+2*qb+1}] op_sel:[0,1] op_sel_hi:[1,1]")
        for r in range(0, 16, 2):
            a.e(f"v_pk_fma_f32 v[{K+r}:{K+r+1}], v[{K+r}:{K+r+1}], v[{SC+2*qb}:{SC+2*qb+1}], v[{Rr+r}:{Rr+r+1}] op_sel_hi:[1,0,1]")
        for j in range(8):
            a.e(f"v_cvt_pk_bf16_f32 v{K+8*(j//4)+j%4}, v{K+2*j}, v{K+2*j+1}")
        a.e(f"s_add_u32 s47, s52, {WS_O + (i*6 + 2*qb)*1024}")
        for s in range(2):
            a.e(f"buffer_store_dwordx4 {vr(K+8*s,4)}, v{VOL}, s[24:27], s47 offen offset:{512*s} sc1")
            a.e(f"ds_write_b128 v27, {vr(K+8*s,4)} offset:{xo(i*6 + 2*qb) + 512*s}")
    stamp(a, "comb", opt)
    a.e("v_mov_b32 v14, s75\ns_cmp_eq_u32 s7, 1\ns_cbranch_scc1 L_tailY")
    stT = save(a)
    if not opt.w0at: other_pair("L_yq", 24, 1)
    if NX == 0:
        VOR = 224
        a.e("s_waitcnt vmcnt(0)\nbuffer_store_dword v14, v108, s[24:27], s70 offen sc1")
        emit(a, vo_calc(VOR, "rev") + wX(0, VOR))
        a.e("s_waitcnt lgkmcnt(0)"); psync()
        emit(a, wX(1, VOR))
        ask("s71", team); check("A"); stamp(a, "chkA", opt)
    else:
        if not opt.w0at: emit(a, wX(0, VO))
        a.e(f"""s_waitcnt vmcnt(0)
                buffer_store_dword v14, v108, s[24:27], s70 offen sc1
                v_add_u32 v3, 8192, v{VL16}
                s_waitcnt lgkmcnt(0)""")
        psync()
        a.e("s_cmp_eq_u32 s6, 1\ns_cbranch_scc1 L_x1")
        sv = save(a)
        for qh in range(2):
            if qh: a.label("L_x1"); load(a, sv)
            for db in range(4):
                for j in range(3): a.e(f"ds_read_b128 {ar(192 + (db*3+j)*4, 4)}, v{3 if db < 2 else VL16} offset:{xo((db % 2)*6 + 3*qh + j)}")
            if qh == 0: a.e("s_branch L_x2")
        a.label("L_x2")
        VOR = 224
        emit(a, vo_calc(VOR, "rev"))
        a.wait(vmtags=["w0"], lg0=True); psync()
        emit(a, wreads(0, 0, WF))
        RS = (192, 0, 48 if NX == 4 else 192, 192)
        wN = lambda st: wX(st, VO if st < NX else VOR)
        xl = lambda st: oload(f"x{st}", HEAD[st], 0, 4, RS[st])
        ask("s71", team)
        for st in range(NX):
            b = BUFOF[st]
            w = wN(1) if st == 0 else []
            if st >= 1: a.wait(vmtags=[f"x{st}"])
            kstep(WF, RS[st], st == 0, wreads(b, 32, WF + 36), w[:9])
            kstep(WF + 36, RS[st] + 12, False, wreads(b, 64, WF), w[9:])
            j = []
            if st == 0:
                check("A"); stamp(a, "chkA", opt)
                for k in range(1, NX):
                    if RS[k] != 192: j += xl(k)
            kstep(WF, RS[st] + 24, False, wreads(b, 96, WF + 36), j)
            a.wait(vmtags=[f"w{st+1}"], lg0=True); psync()
            kstep(WF + 36, RS[st] + 36, False, wreads(BUFOF[st + 1], 0, WF) if st + 1 < NX else [], wN(st + 2))
            if st == 0:
                for k in range(1, NX):
                    if RS[k] == 192: emit(a, xl(k))
    for st in range(NX, 4): emit(a, oload(f"o{st}", HEAD[st], 0, 2, 24*st))
    a.e("s_waitcnt vmcnt(0)\ns_branch L_join")
    a.label("L_tailY"); load(a, stT)
    a.e("s_cmp_eq_u32 s45, 1\ns_cbranch_scc1 L_hadearly")
    sv = save(a)
    ask("s71", team); check("Y")
    a.vm = list(sv[2])
    for st in range(NX, 4): emit(a, oload(f"o{st}", HEAD[st], 0, 2, 24*st))
    a.label("L_hadearly")
    a.e("s_waitcnt lgkmcnt(0)")
    a.label("L_join"); a.lg = []
    a.e(f"""s_add_u32 s71, s71, 8
            v_add_u32 v220, {SB[2] - SB[1]}, v{AD+1}
            v_add_u32 v221, {SB[3] - SB[1]}, v{AD+1}
            s_mul_i32 s3, s7, -8192
            s_add_u32 s3, s3, {YB + 8192}
            v_add_u32 v2, s3, v{VL16}
            v_mov_b32 v15, s75
            s_barrier""")
    stamp(a, "join", opt)
    emit(a, wreads(BUFOF[NX], 0, WF))
    a.e("s_cmp_eq_u32 s6, 1\ns_cbranch_scc1 L_own1")
    sv = save(a)
    for qh in range(2):
        if qh: a.label("L_own1"); load(a, sv)
        for kl in range(2):
            for j in range(3): a.e(f"ds_read_b128 {ar(96 + (kl*3+j)*4, 4)}, v2 offset:{xo(kl*6 + 3*qh + j)}")
        if qh == 0: a.e("s_branch L_own2")
    a.label("L_own2")
    a.wait(vmtags=[f"o{NX}"])
    a.e("s_cmp_eq_u32 s7, 1\ns_cbranch_scc1 L_fy")
    sv = save(a)
    kstep(WF, 24*NX, NX == 0, wreads(BUFOF[NX], 32, WF + 36), [] if opt.plan2 else wS(NX + 2))
    a.e("s_branch L_fx")
    a.label("L_fy"); load(a, sv)
    kstep(WF, 24*NX, True, wreads(BUFOF[NX], 32, WF + 36), [] if opt.plan2 else wS(NX + 2))
    a.e("s_waitcnt vmcnt(0)\nbuffer_store_dword v15, v108, s[24:27], s70 offen sc1 ; @junk")
    a.label("L_fx"); a.vm = [o for o in a.vm if o.tag == f"w{NX+2}"]
    A = max(NX, min(opt.askat, 4))
    oy = lambda k: oload(f"o{k}", HEAD[k], 0, 2, 24*k)
    plan = {}
    for k in range(NX + 4, 8): plan.setdefault((k - 4, 1) if k - 4 > NX else (NX + 1, 0), []).append(wS(k))
    plan.setdefault((NX, 1), []).append(wS(NX + 3))
    if A <= 3:
        for i, k in enumerate((5, 6, 7)): plan.setdefault((A + (i + 1) // 2, (i + 1) % 2), []).insert(0, oy(k))
    if opt.plan2:
        assert NX == 1 and A == 3
        plan = {(1, 1): [wS(3)], (2, 0): [wS(4)], (2, 1): [wS(5)], (3, 1): [oy(5), oy(6)[:3]], (4, 0): [oy(6)[3:], oy(7)], (4, 1): [wS(6)], (5, 0): [wS(7)]}
    if opt.plan3 == 1: plan = {(1, 1): [wS(3)], (2, 0): [wS(4), wS(5)[:4]], (2, 1): [wS(5)[4:], wS(6)], (3, 1): [oy(5), wS(7)], (4, 0): [oy(6)], (4, 1): [oy(7)]}
    if opt.plan3 == 2: plan = {(1, 1): [wS(3), wS(4)[:4]], (2, 0): [wS(4)[4:], wS(5)], (2, 1): [wS(6)], (3, 1): [oy(5), oy(6)[:3]], (4, 0): [oy(6)[3:], oy(7)], (4, 1): [wS(7)]}
    job = lambda st, kl: [x for y in plan.get((st, kl), []) for x in y]
    for st in range(NX, 8):
        stamp(a, f"s{st}", opt)
        if st > NX:
            if st == A: ask("s71", team)
            if st >= 5: a.wait(vmtags=[f"o{st}"])
            kstep(WF, 24*st, False, wreads(BUFOF[st], 32, WF + 36), job(st, 0))
        elif st == A: ask("s71", team)
        if st == A and A <= 3: check("B"); stamp(a, "chk1", opt)
        if st < 7:
            a.wait(vmtags=[f"w{st+1}"], lg0=True); a.e("s_barrier")
            kstep(WF + 36, 24*st + 12, False, wreads(BUFOF[st + 1], 0, WF), job(st, 1))
        if st == A and A == 4:
            check("B"); stamp(a, "chk1", opt); emit(a, oy(5) + oy(6) + oy(7))
    a.e(f"""s_lshl_b32 s3, s28, 14
            v_add_u32 v13, s3, v{VL16}
            v_xor_b32 v14, 32768, v13
            s_lshl_b32 s52, s39, 2
            s_add_u32 s52, s52, s32
            s_lshl_b32 s53, s52, 2
            s_add_u32 s53, s53, s30
            s_mul_i32 s53, s53, 36864
            s_mul_i32 s3, s28, 9216
            s_add_u32 s53, s53, s3
            s_add_u32 s47, s53, {WS_P}
            s_waitcnt lgkmcnt(0)
            s_barrier""")
    F, O = WF + 36, 180
    T = lambda nb, j: ACC + (nb*3+j)*4
    ms = [f"v_mfma_f32_16x16x32_bf16 {vr(T(nb,j), 4)}, {vr(F+nb*4,4)}, {ar(O+j*4,4)}, {vr(T(nb,j), 4)}" for nb in (8, 7, 6, 5, 4, 0, 1, 2, 3) for j in range(3)]
    snd = [f"ds_write_b128 v13, {vr(T(nb,j),4)} offset:{((8-nb)*3+j)*1024}" for nb in range(8, 3, -1) for j in range(3)]
    emit(a, ms[:6])
    for k in range(15): emit(a, [ms[6 + k], snd[k]])
    emit(a, ms[21:])
    stamp(a, "gend", opt)
    a.e("s_waitcnt lgkmcnt(0)\ns_barrier")
    stamp(a, "rbar", opt)
    order = [(k, j) for k in range(3) for j in range(3)]
    for k, j in order:
        for nb in range(2*k, min(2*k + 2, 5)): a.e(f"ds_read_b128 {vr(WF + (nb*3+j)*4, 4)}, v14 offset:{(nb*3+j)*1024}")
    for k, j in order:
        r = T(2*k, j)
        for h, nb in enumerate(range(2*k, min(2*k + 2, 5))):
            t, q = T(nb, j), WF + (nb*3+j)*4
            a.wait(lgregs=regs_of(vr(q, 4)))
            a.e(f"v_pk_add_f32 v[{t}:{t+1}], v[{t}:{t+1}], v[{q}:{q+1}]\nv_pk_add_f32 v[{t+2}:{t+3}], v[{t+2}:{t+3}], v[{q+2}:{q+3}]")
            a.e(f"v_cvt_pk_bf16_f32 v{r+2*h}, v{t}, v{t+1}\nv_cvt_pk_bf16_f32 v{r+2*h+1}, v{t+2}, v{t+3}")
        if k < 2: a.e(f"buffer_store_dwordx4 {vr(r,4)}, v{VL16}, s[24:27], s47 offen offset:{j*1024} sc1")
        else: a.e(f"buffer_store_dwordx2 {vr(r,2)}, v{VL16}, s[24:27], s47 offen offset:{j*1024} sc1")
        if j == 2 and k < 2: a.e("s_add_u32 s47, s47, 3072")
    a.e(f"""s_add_u32 s70, s70, 32768
            s_andn2_b32 s71, s2, 3
            s_lshl_b32 s71, s71, 7
            s_add_u32 s71, s71, 32768
            v_and_b32 v10, 15, v1
            v_mul_u32_u24 v10, 2304, v10
            v_lshrrev_b32 v11, 4, v1
            v_lshl_add_u32 v10, v11, 3, v10
            s_mul_i32 s52, s52, {4*36864}
            s_add_u32 s52, s52, {WS_P}
            s_mul_i32 s53, s31, {96*2304}
            s_mul_i32 s3, s29, 1152
            s_add_u32 s53, s53, s3
            s_mul_i32 s3, s32, 288
            s_add_u32 s53, s53, s3
            s_lshl_b32 s54, s30, 2
            s_add_u32 s54, s54, s28""")
    srd(a, 8, "s78", "s79", 1769472)
    def decode(i):
        A, B, C = 56 + 4*i, 57 + 4*i, 58 + 4*i
        a.e(f"""s_add_u32 s3, s54, {16*i}
                s_mul_i32 s4, s3, 43
                s_lshr_b32 s4, s4, 8
                s_mul_i32 s5, s4, 6
                s_sub_u32 s3, s3, s5            ; q16
                s_mul_i32 s{B}, s3, {16*2304}
                s_add_u32 s{B}, s{B}, s53
                s_cmp_ge_u32 s3, 3
                s_cselect_b32 s5, {9216 - 3072}, 0
                s_lshl_b32 s3, s3, 10
                s_add_u32 s{A}, s3, s5          ; qh * 9216 + j * 1024
                s_add_u32 s{A}, s{A}, s52
                s_and_b32 s3, s4, 1
                s_cmp_eq_u32 s4, 4
                s_cselect_b32 s3, 2, s3         ; k
                s_cselect_b32 s{C}, 0, 32
                s_mul_i32 s5, s3, 3072
                s_add_u32 s{A}, s{A}, s5
                s_lshl_b32 s3, s3, 6
                s_and_b32 s4, s4, 2
                s_cmp_eq_u32 s4, 2
                s_cselect_b32 s5, 18432, 0
                s_add_u32 s{A}, s{A}, s5
                s_cmp_eq_u32 s4, 2
                s_cselect_b32 s{C}, -32, s{C}
                s_sub_u32 s5, 256, s3
                s_cmp_eq_u32 s4, 2
                s_cselect_b32 s3, s5, s3
                s_add_u32 s{B}, s{B}, s3""")
    stamp(a, 'rst', opt)
    decode(0); decode(1)
    stamp(a, 'dec', opt)
    a.e("s_waitcnt vmcnt(0)\nbuffer_store_dword v15, v108, s[24:27], s70 offen sc1")
    stamp(a, "pub2", opt)
    ask("s71", "v_and_b32 v13, 3, v1\nv_lshlrev_b32 v13, 7, v13\nv_and_b32 v14, 12, v1\nv_add_u32 v13, v13, v14"); check(2)
    stamp(a, "chk2", opt)
    def loads(i):
        for o in range(4):
            a.e(f"buffer_load_dwordx4 {vr(16+16*i+4*o,4)}, v{VL16}, s[24:27], s{56+4*i} offen sc1")
            if o < 3: a.e(f"s_add_u32 s{56+4*i}, s{56+4*i}, 36864")
    def fin(i, left):
        b, D = 16 + 16*i, 112 + 16*i
        for o in range(4):
            a.e(f"s_waitcnt vmcnt({left + 3 - o})")
            for k in range(4):
                r = b + 4*o + k
                if o == 0: a.e(f"v_lshlrev_b32 v{D+2*k}, 16, v{r}\nv_and_b32 v{D+2*k+1}, 0xffff0000, v{r}")
                else: a.e(f"v_lshlrev_b32 v{D+8}, 16, v{r}\nv_and_b32 v{r}, 0xffff0000, v{r}\nv_add_f32 v{D+2*k}, v{D+2*k}, v{D+8}\nv_add_f32 v{D+2*k+1}, v{D+2*k+1}, v{r}")
        for k in range(4): a.e(f"v_cvt_pk_bf16_f32 v{D+k}, v{D+2*k}, v{D+2*k+1}")
        a.e(f"""buffer_store_dwordx2 v[{D}:{D+1}], v10, s[8:11], s{57+4*i} offen{opt.opol}
                s_add_u32 s{57+4*i}, s{57+4*i}, s{58+4*i}""")
        if i == 1: a.e("s_cmp_eq_u32 s62, 0\ns_cbranch_scc1 L_rd2")
        a.e(f"buffer_store_dwordx2 v[{D+2}:{D+3}], v10, s[8:11], s{57+4*i} offen{opt.opol}")
    loads(0)
    a.e("s_cmp_ge_u32 s54, 14\ns_cbranch_scc1 L_rd1")
    sv = save(a)
    loads(1); fin(0, 4); fin(1, 0)
    a.e("s_branch L_rd2")
    a.label("L_rd1"); load(a, sv)
    fin(0, 0)
    a.label("L_rd2")
    stamp(a, "end", opt)
    if opt.stamps:
        a.e(f"s_lshl_b32 s3, s2, 2\ns_add_u32 s3, s3, s28\ns_lshl_b32 s3, s3, 7\ns_add_u32 s3, s3, {WS_STAMP}\nv_mov_b32 v0, 0")
        for i in range(1 + len(opt.sset)):
            a.e(f"v_mov_b32 v2, s{STB+2*i}\nv_mov_b32 v3, s{STB+1+2*i}\nbuffer_store_dwordx2 v[2:3], v0, s[24:27], s3 offen offset:{8*i}\ns_waitcnt vmcnt(0)")
    a.label("L_done")
    a.e("s_endpgm")
    a.label("L_end")
    for qb in range(3): rare(a, qb)

def build(opt):
    a = Asm()
    for l in """; Fused q-projection + softmax attention + output projection for both halves (A, B); written with a generator script.
; One workgroup (4 waves, 512 registers each, 160 KB LDS) per CU handles two heads X, Y of one batch:
;   1. Q = x wq (MFMA 32x32x16, LDS / register staged), scaled by log2(e)/sqrt(d)
;   2. waves 0,1 = head X, waves 2,3 = head Y, keys split between the two waves; K/V tiles stream through a private
;      LDS-DMA ring; online softmax against a reference max that a per-tile check raises to the true max when needed
;   3. pair combine, O (bf16) handed to the three workgroups with the same batch and head octet (write-through
;      stores, per-wave flags carrying a launch tag), 96 x 144 x 1024 partial output projection (MFMA 16x16x32),
;      partial tiles summed over the four octets through a second hand-off""".split("\n"): a.raw(l)
    a.raw("; @launch grid=(256,1,1) block=(256,1,1) lds=163840")
    a.raw('.amdgcn_target "amdgcn-amd-amdhsa--gfx950"')
    kernel(a, NAME + "_kernel", opt)
    a.raw('.section .rodata,"a"\n.p2align 6')
    a.raw("\n".join([f".amdhsa_kernel {NAME}_kernel", "  .amdhsa_next_free_vgpr 512", "  .amdhsa_next_free_sgpr 102",
        "  .amdhsa_accum_offset 256", "  .amdhsa_group_segment_fixed_size 0", "  .amdhsa_kernarg_size 104",
        "  .amdhsa_user_sgpr_count 2", "  .amdhsa_user_sgpr_kernarg_segment_ptr 1",
        "  .amdhsa_system_sgpr_workgroup_id_x 1", ".end_amdhsa_kernel"]))
    return a.text(), a

if __name__ == "__main__":
    opt = Opt()
    out = sys.argv[1] if len(sys.argv) > 1 else "k.s"
    for kv in sys.argv[2:]:
        k, v = kv.split("=", 1); assert hasattr(opt, k), k
        setattr(opt, k, eval(v))
    t, a = build(opt)
    open(out, "w").write(t)
    print(out, "lines", t.count("\n"), "pad", a.npad)
```

```python
import sys, struct, math
sys.path.insert(0, "dev")
from asmlib import Asm, spread, regs_of, level_fill
import gen5
from gen5 import (NAME, f2u, CSC, THR_LOG2, WS_BYTES, WS_O, WS_P, WS_F, WS_STAMP, STB, vr, ar, srd, stamp, emit,
                  VOFFK, VOFFV, VKA, VVA, LSUM, TMAX, VT, NM, S0, Q0, KF, VF, Sreg, Qreg, Oacc, softmax, qk, pv, rare)

class Opt:
    wp = "pppp"
    noB = False
    stamps = False
    sset = ['q0', 'k0', 't15', 'comb', 'join', 'chk1', 'gend', 'pub2', 'end']
    thr0 = 0.0
    thr1 = 1.25
    clk = "s_memrealtime"
    rot = True
    krot = 4
    qlev = True
    touch = {}
    ctouch = None
    w0at = (14, 44)
    plan2 = True
    capfrom = 4
    firstfree = False
    free01 = False
    u3late = 0
    d14 = None
    rwait = None
    plan3 = 0
    earr = False
    rlate = 0
    rspan = 80
    kspan = 30
    wdel = 8
    kvtlb = False
    capb = None
    pbf16 = True
    k1early = False
    wot = 4
    wotnt = None
    tlb = 0
    nx = 1
    accearly = True
    cap = ((6, 6, 7), 5)
    capend = 30
    hold = False
    xgate = 0
    last = (0, 0)
    ylast = 1
    kvsame = False
    unroll = False
    a0at = 2
    opol = ''
    late = 0
    prio = 0
    gate = 12
    pace = 1.0
    d1 = (1, 4, 7, 10, 13, 16, 19, 22)
    d2 = (25, 28, 31, 34, 37, 40, 43, 46)
    dcost = 4.0
    acct = 0
    w0 = 10
    askat = 3
    fewwait = True
    vwin = (16, 22)
    kwin = (40, 44)
    tpol = ''
    wopol = ''

SLOT = 16384
SV = 126976
def slot(u): return (2 if u == 0 else (-u) % 3) * SLOT
STG = lambda i: 45056 + 28672 * i
TOP = 159744
SB = (122880, 0, 86016, 49152)
NS = 3
YB = 49152

def dma_unit(u, opt):
    kind = "KV"[u % 2]; sreg = "s36" if kind == "K" else "s35"
    srdn = "s[8:11]" if kind == "K" else "s[12:15]"
    G = []
    for j in range(8):
        g = []
        mb, mo = ("s54", 0) if u == 1 else ("s37", slot(u))
        if j == 0: g += [f"s_add_u32 m0, {mb}, {mo}", f"s_add_u32 s51, s34, {sreg}"]
        if j == 1 and not opt.kvsame: g += [f"s_add_u32 {sreg}, {sreg}, 16384", f"s_and_b32 {sreg}, {sreg}, 0x3ffff"]
        if j == 4: g += [f"s_add_u32 m0, {mb}, {mo + 4096}", "s_add_u32 s51, s51, 4096"]
        vo = VOFFK + j % 4 if kind == "K" else VOFFV
        if opt.cap and opt.capfrom <= u <= opt.capend:
            cx, cy = opt.cap
            cx, cy = (c if isinstance(c, int) else c[j % len(c)] for c in (cx, cy))
            dma_unit.n += 1; n = dma_unit.n
            bx, by = (c if isinstance(c, int) else c[j % len(c)] for c in (opt.capb or opt.cap))
            prev = None
            for lv, c in enumerate((bx, cx, by, cy)):
                if c == prev: continue
                R_ = "RAW " if prev else ""
                g += [R_ + f"s_cmp_le_u32 s50, {lv}", R_ + f"s_cbranch_scc1 L_cap{n}", f"RAW s_waitcnt vmcnt({c - 1})"]
                assert prev is None or c < prev
                prev = c
            g += [f"LABEL L_cap{n}"]
        g.append(f"buffer_load_dwordx4 v{vo}, {srdn}, s51 offen offset:{(j % 4)*1024} nt lds ; @u{u}")
        G.append("\n".join(g))
    return G
dma_unit.n = 0
def kreads(t): return [f"ds_read_b128 {ar(KF+4*s,4)}, v{VKA+s} offset:{slot(2*t)}" for s in range(8)]
def vreads(t):
    return [f"ds_read_b64_tr_b16 {ar(VF + db*8 + s*4 + k*2, 2)}, v{(VVA if t else 28)+db} offset:{(slot(2*t+1) if t else 0) + 4096*s + 2048*k}"
            for s in range(2) for db in range(4) for k in range(2)]
def tile_body(a, opt, t, carry, extra=()):
    first = t == 0
    M = qk(0, first) + (pv(2, t == 1) if t else [None]*8) + qk(1, first) + pv(0, first) + qk(2, first) + pv(1, first)
    W = opt.w0
    sl = [[] for _ in range(48 + W)]
    def at(G, slots):
        for g, k in zip(G, slots): sl[k].append(g)
    if 2*t + NS <= 31: at(dma_unit(2*t + NS if t else 4, opt), opt.d14 if t == 14 and opt.d14 else opt.d1)
    spread(sl, [f"WAITVM u{2*t+1}"] + vreads(t), *opt.vwin)
    if 2*t + NS + 1 <= 31 and t: at(dma_unit(2*t + NS + 1, opt), opt.d2)
    if t < 15: spread(sl, [f"WAITVM u{2*t+2}"] + kreads(t + 1), *opt.kwin)
    if t == 14 and opt.xgate: sl[30].append('v_mov_b32 v27, 2\nds_write_b32 v109, v27 offset:16')
    if opt.hold or t == 0: sl[46].append("s_add_u32 s45, s45, 1\nv_mov_b32 v27, s45\nds_write_b32 v109, v27 offset:16")
    if 1 <= t <= 14 and opt.hold:
        sl[44].append("ds_read_b64 v[30:31], v26")
        sl[47].append(f"""AUTO v_min_u32 v30, v30, v31
s_add_u32 s38, s38, s50
s_min_i32 s38, s38, 256
v_readfirstlane_b32 s3, v30
s_lshl_b32 s3, s3, 4
s_cmp_ge_i32 s3, s38
s_cbranch_scc1 L_go{t}
s_call_b64 s[40:41], L_hold
LABEL L_go{t}""")
    for e in extra: spread(sl, *e)
    for i, x in enumerate(carry): sl[i] = x + sl[i]
    ghost = {48 + k: "buffer_x\ns_nop 0\ns_nop 0" for k in opt.d1 if k < W}
    for k, g in ghost.items(): sl[k].append(g)
    level_fill(sl, softmax(0, t, first), W, W + 16, opt.dcost)
    level_fill(sl, softmax(1, t, first), W + 16, W + 32, opt.dcost)
    level_fill(sl, softmax(2, t, first), W + 32, W + 48, opt.dcost)
    for k in ghost: sl[k] = sl[k][1:]
    for i in range(48):
        if opt.fewwait:
            if i == 0: a.wait(lgregs=regs_of(ar(KF, 32)))
            if i == 24: a.wait(lgregs=regs_of(ar(VF, 32)))
        if M[i]: emit(a, [M[i]])
        for x in sl[i]:
            if opt.acct and x.startswith("WAITVM"):
                keep = list(a.lg)
                a.e("s_memtime s[94:95]"); emit(a, [x]); a.e("s_memtime s[96:97]\ns_waitcnt lgkmcnt(0)\ns_sub_u32 s96, s96, s94")
                r = 98 if int(x.split("u")[1]) % 2 else 100
                a.e(f"s_add_u32 s{r}, s{r}, s96")
            elif opt.acct == 2 and "lds ;" in x:
                a.e("s_memtime s[94:95]"); emit(a, [x]); a.e("s_memtime s[96:97]\ns_waitcnt lgkmcnt(0)\ns_sub_u32 s96, s96, s94\ns_add_u32 s92, s92, s96")
            else: emit(a, [x])
    return sl[48:]

def save(a): return (list(a.hist), list(a.lg), list(a.vm))
def load(a, st): a.hist, a.lg, a.vm = (list(x) for x in st)

def kernel(a, name, opt):
    a.raw(".text"); a.raw(f".globl {name}"); a.raw(".p2align 8"); a.raw(f".type {name},@function")
    a.label(name, reset=True)
    a.e("""s_load_dwordx8 s[56:63], s[0:1], 0
           s_load_dwordx8 s[64:71], s[0:1], 40
           s_load_dwordx2 s[72:73], s[0:1], 96
           s_load_dwordx2 s[40:41], s[0:1], 32
           s_load_dwordx2 s[42:43], s[0:1], 72
           s_load_dwordx4 s[44:47], s[0:1], 80
           s_memrealtime s[48:49]
           s_cmp_ge_u32 s2, 256
           s_cbranch_scc1 L_done""")
    if opt.stamps: a.e(f"{opt.clk} s[{STB}:{STB+1}]")
    VW, VXA, VXB, AW, AX, VD = 72, 73, 74, 76, 64, 111
    G, L15, H, L31, G1, R, C4 = 88, 89, 90, 91, 92, 81, 82
    VFO, VFP = 109, 110
    a.e(f"""v_lshrrev_b32 v1, 6, v0
            s_and_b32 s3, s2, 7
            s_lshr_b32 s29, s3, 2
            s_and_b32 s30, s3, 3
            v_readfirstlane_b32 s28, v1
            s_lshr_b32 s3, s2, 3
            s_lshr_b32 s31, s3, 2
            s_and_b32 s32, s3, 3
            v_and_b32 v1, 63, v0
            v_lshrrev_b32 v{G}, 4, v1
            v_and_b32 v{L15}, 15, v1
            v_lshrrev_b32 v56, 3, v1
            v_and_b32 v57, 7, v1
            v_and_b32 v{G1}, 1, v{G}
            v_lshlrev_b32 v59, 2, v{G1}
            v_xor_b32 v59, v57, v59
            v_lshlrev_b32 v59, 4, v59
            v_lshl_add_u32 v{VW}, v56, 13, v59
            v_mul_u32_u24 v60, 1152, v56
            v_xor_b32 v61, v57, v{G}
            s_and_b32 s6, s28, 1
            s_lshr_b32 s7, s28, 1
            s_lshl_b32 s3, s6, 2
            v_xor_b32 v61, s3, v61
            v_lshl_add_u32 v{VXA}, v61, 4, v60
            v_xor_b32 v61, 4, v61
            v_lshl_add_u32 v{VXB}, v61, 4, v60
            s_mul_i32 s37, s7, {YB}
            s_lshl_b32 s3, s6, 13
            s_add_u32 s37, s37, s3
            s_lshl_b32 s33, s30, 3
            s_lshl_b32 s3, s32, 1
            s_add_u32 s33, s33, s3              ; head X
            s_add_u32 s74, s3, s31              ; b + 2p
            s_lshl_b32 s52, s33, 8
            s_lshl_b32 s3, s28, 7
            s_add_u32 s52, s52, s3
            s_mul_i32 s53, s31, 110592
            s_mul_i32 s3, s28, 27648
            s_add_u32 s53, s53, s3              ; x rows 24w..
            s_mul_i32 s55, s28, 3072
            s_mov_b32 s18, 884736
            s_mov_b32 s19, 0x20000
            s_mov_b32 s22, 4718592
            s_mov_b32 s23, 0x20000""")
    if opt.krot == 0: a.e("s_mov_b32 s74, 0")
    elif opt.krot == 1: a.e("s_cmp_ge_u32 s74, 9\ns_cselect_b32 s3, 9, 0\ns_sub_u32 s74, s74, s3")
    elif opt.krot == 3: a.e("s_and_b32 s74, s74, 1\ns_lshl_b32 s74, s74, 2")
    elif opt.krot == 2: a.e("s_add_u32 s74, s31, s32\ns_mul_i32 s3, s74, 86\ns_lshr_b32 s3, s3, 8\ns_mul_i32 s3, s3, 3\ns_sub_u32 s74, s74, s3\ns_mul_i32 s74, s74, 3")
    elif opt.krot == 4: a.e("s_add_u32 s74, s31, s32\ns_and_b32 s74, s74, 3\ns_mul_i32 s74, s74, 9\ns_lshr_b32 s74, s74, 2")
    elif opt.krot == 5: a.e("s_add_u32 s74, s31, s32\ns_and_b32 s74, s74, 1\ns_lshl_b32 s74, s74, 2")
    a.e("s_cmp_eq_u32 s29, 0\ns_waitcnt lgkmcnt(0)")
    for d, o in ((20, 6), (16, 0), (8, 2), (12, 4)):
        a.e(f"s_cselect_b32 s{d}, s{56+o}, s{64+o}\ns_cselect_b32 s{d+1}, s{57+o}, s{65+o}")
    a.e("""s_cselect_b32 s76, s40, s42
           s_cselect_b32 s77, s41, s43
           s_mov_b64 s[78:79], s[44:45]
           s_mov_b64 s[80:81], s[46:47]
           s_or_b32 s75, s48, 1""")
    P = lambda ch: " nt" if ch == "n" else ""
    XS = 98304
    VW4, VX3 = 32, 36
    a.e(f"""v_mov_b32 v{VW4}, v{VW}
            v_add_u32 v{VW4+1}, {65536 - 1024}, v{VW}
            v_add_u32 v{VW4+2}, {2*(65536 - 1024)}, v{VW}
            v_add_u32 v{VW4+3}, {3*(65536 - 1024)}, v{VW}
            v_mov_b32 v{VX3}, v{VXA}
            v_add_u32 v{VX3+1}, {9216 - 1024}, v{VXB}
            v_add_u32 v{VX3+2}, {2*(9216 - 1024)}, v{VXA}
            s_lshl_b32 s4, s74, 19
            s_add_u32 s4, s4, s52
            s_lshl_b32 s5, s74, 7
            s_add_u32 s5, s5, s53
            s_sub_u32 s74, 9, s74""")
    WR = lambda c, j: ar(((c - 3)*8 + j)*4, 4)
    XR = lambda c, i: ar(192 + ((c-3)*3 + i)*4, 4) if (c-3)*3 + i < 16 else vr(40 + ((c-3)*3 + i - 16)*4, 4)
    def regstage(c):
        Gs = []
        for j in range(8):
            Gs.append(("s_add_u32 s4, s4, 262144\n" if j == 4 else "") + f"buffer_load_dwordx4 {WR(c,j)}, v{VW4 + j % 4}, s[20:23], s4 offen offset:{(j % 4)*1024}{P(opt.wp[0])} ; @s{c}")
        for i in range(3):
            g = ("s_add_u32 s4, s4, 262144\n" if i == 0 else "") + f"buffer_load_dwordx4 {XR(c,i)}, v{VX3 + i}, s[16:19], s5 offen offset:{i*1024}{P(opt.wp[1])} ; @s{c}"
            if i == 2: g += f"\ns_add_u32 s5, s5, 128\ns_sub_u32 s74, s74, 1\ns_cmp_lg_u32 s74, 0\ns_cbranch_scc1 L_nw{c}\nRAW s_mov_b32 s4, s52\nRAW s_mov_b32 s5, s53\nLABEL L_nw{c}"
            Gs.append(g)
        return Gs
    def regwrite(c):
        return [f"WAITVM s{c}"] + [f"ds_write_b128 v48, {WR(c,j)} offset:{(c % 2)*SLOT + j*1024}" for j in range(8)] + \
               [f"ds_write_b128 v49, {XR(c,i)} offset:{(c % 2)*12288 + i*1024}" for i in range(3)]
    def stage(c):
        buf = c % 3; Gs = []
        if c >= 3: return regstage(c)
        for j in range(8):
            g = [f"s_add_u32 m0, s37, {buf*SLOT}", "s_nop 0"] if j == 0 else [f"s_add_u32 m0, s37, {buf*SLOT + 4096}", "s_add_u32 s4, s4, 262144"] if j == 4 else []
            Gs.append("\n".join(g + [f"buffer_load_dwordx4 v{VW4 + j % 4}, s[20:23], s4 offen offset:{(j % 4)*1024}{P(opt.wp[0])} lds ; @s{c}"]))
        for i in range(3):
            g = [f"s_add_u32 m0, s55, {XS + buf*12288}", "s_add_u32 s4, s4, 262144"] if i == 0 else []
            g += [f"buffer_load_dwordx4 v{VX3 + i}, s[16:19], s5 offen offset:{i*1024}{P(opt.wp[1])} lds ; @s{c}"]
            if i == 2: g += ["s_add_u32 s5, s5, 128", "s_sub_u32 s74, s74, 1", f"s_cbranch_scc0 L_nw{c}", ]
            Gs.append("\n".join(g))
        Gs[-1] = Gs[-1].replace(f"s_sub_u32 s74, s74, 1\ns_cbranch_scc0 L_nw{c}", f"s_sub_u32 s74, s74, 1\ns_cmp_lg_u32 s74, 0\ns_cbranch_scc1 L_nw{c}\nRAW s_mov_b32 s4, s52\nRAW s_mov_b32 s5, s53\nLABEL L_nw{c}")
        return Gs
    stamp(a, 'ka', opt)
    wtouch = [x.strip() for x in """s_lshr_b32 s3, s2, 3
            s_lshl_b32 s3, s3, 2
            s_add_u32 s3, s3, s28
            s_mul_i32 s3, s3, 9216
            s_mul_i32 s47, s30, 1179648
            v_lshlrev_b32 v24, 7, v1
            v_add_u32 v24, s3, v24
            v_add_u32 v25, 8192, v24
            v_cmp_gt_u32 s[70:71], 8, v1
            v_cndmask_b32 v25, -1, v25, s[70:71]""".split("\n")]
    wtouch = ["\n".join(wtouch + ["buffer_load_dword v23, v24, s[60:63], s47 offen ; @junk"]), "s_mul_i32 s47, s30, 1179648\nbuffer_load_dword v23, v25, s[60:63], s47 offen ; @junk"]
    if opt.wot is not None: srd(a, 60, "s76", "s77", 4718592)
    if opt.wot == 'a': emit(a, wtouch)
    emit(a, stage(0))
    if opt.kvtlb:
        a.e(f"""s_mov_b32 s10, {1 << 26}
                s_mov_b32 s11, 0x20000
                s_mov_b32 s14, {1 << 26}
                s_mov_b32 s15, 0x20000
                s_lshl_b32 s3, s31, 5
                s_add_u32 s3, s3, s33
                s_add_u32 s3, s3, s7
                s_lshl_b32 s3, s3, 18
                v_and_b32 v24, 3, v1
                v_lshlrev_b32 v24, 16, v24
                buffer_load_dword v23, v24, s[8:11], s3 offen nt ; @junk
                buffer_load_dword v23, v24, s[12:15], s3 offen nt ; @junk""")
    if opt.wot == 'b': emit(a, wtouch)
    stamp(a, 'i0', opt)
    srd(a, 56, "s80", "s81", 256)
    a.e("""s_lshl_b32 s3, s2, 8
           v_add_u32 v106, s3, v0
           v_min_u32 v106, 1, v106
           v_lshlrev_b32 v106, 12, v106
           v_mov_b32 v107, s75
           buffer_store_dword v107, v106, s[56:59], 0 offen sc1""")
    emit(a, stage(1))
    if opt.wot == 'c': emit(a, wtouch)
    for d in (8, 12): a.e(f"s_mov_b32 s{d+2}, {1 << 26}\ns_mov_b32 s{d+3}, 0x20000")
    srd(a, 24, "s72", "s73", WS_BYTES)
    srd(a, 60, "s76", "s77", 4718592)
    a.e(f"""v_lshrrev_b32 v{H}, 5, v1
            v_and_b32 v{L31}, 31, v1
            v_lshrrev_b32 v{R}, 2, v{L15}
            v_and_b32 v{C4}, 3, v1
            v_lshl_add_u32 v59, v{H}, 3, v{R}
            v_lshlrev_b32 v59, 7, v59
            v_lshrrev_b32 v60, 1, v{R}
            v_lshl_add_u32 v59, v60, 6, v59
            v_lshl_add_u32 v59, v{G1}, 5, v59
            v_lshl_add_u32 v59, v{C4}, 3, v59
            v_add_u32 v{AW}, s37, v59
            v_xor_b32 v{AW+1}, 64, v{AW}
            v_bfe_u32 v60, v1, 1, 3
            v_xor_b32 v60, v60, v{H}
            v_lshlrev_b32 v60, 4, v60
            v_lshl_add_u32 v60, v{L31}, 7, v60
            v_add_u32 v{AX}, {XS}, v60""")
    for s in range(1, 4): a.e(f"v_xor_b32 v{AX+s}, {32*s}, v{AX}")
    a.e(f"""s_lshl_b32 s3, s28, 2
            s_add_u32 s3, s3, {TOP + 3072}
            v_mov_b32 v{VFO}, s3
            v_xor_b32 v{VFP}, 4, v{VFO}
            v_mov_b32 v61, 0
            ds_write_b32 v{VFO}, v61
            ds_write_b32 v{VFO}, v61 offset:16
            s_mov_b32 s44, 0
            s_mov_b32 s45, 0""")
    a.e(f"""v_lshlrev_b32 v49, 4, v1
            v_add_u32 v48, s37, v49
            s_add_u32 s3, s55, {XS}
            v_add_u32 v49, s3, v49
            s_lshl_b32 s54, s28, 13
            s_add_u32 s54, s54, {SV}""")
    def frag_reads(c, s, F):
        buf = c if c < 3 else c % 2
        L = [f"ds_read_b64_tr_b16 {vr(F + db*4 + k*2, 2)}, v{AW+db} offset:{buf*SLOT + (16*s + 4*k) * 128}" for db in range(2) for k in range(2)]
        return L + [f"ds_read_b128 {vr(F + 8 + qb*4, 4)}, v{AX+s} offset:{buf*12288 + qb*4096}" for qb in range(3)]
    setup = f"""v_lshlrev_b32 v26, 8, v{G}
            v_xor_b32 v27, v{L15}, v{G}
            v_lshl_add_u32 v{VOFFK}, v27, 4, v26
            v_xor_b32 v{VOFFK+1}, 64, v{VOFFK}
            v_xor_b32 v{VOFFK+2}, 128, v{VOFFK}
            v_xor_b32 v{VOFFK+3}, 192, v{VOFFK}
            v_lshlrev_b32 v27, 2, v{G}
            v_xor_b32 v27, v{L15}, v27
            v_lshl_add_u32 v{VOFFV}, v27, 4, v26
            s_lshl_b32 s3, s6, 13
            s_add_u32 s33, s33, s7
            s_lshl_b32 s34, s31, 5
            s_add_u32 s34, s34, s33
            s_lshl_b32 s34, s34, 18
            s_add_u32 s34, s34, s3"""
    if opt.rot:
        setup += """
            s_lshl_b32 s3, s2, 2
            s_add_u32 s3, s3, s7
            s_mul_i32 s3, s3, 0x1e3779b1
            s_lshr_b32 s47, s3, 15
            s_xor_b32 s3, s3, s47
            s_mul_i32 s3, s3, 0x2c1b3c6d
            s_lshr_b32 s3, s3, 20
            s_and_b32 s3, s3, 15
            s_lshl_b32 s35, s3, 14"""
    else: setup += "\ns_mov_b32 s35, 0"
    setup += f"""
            s_mov_b32 s36, s35
            s_mov_b32 s69, s35
            v_lshlrev_b32 v50, 7, v1
            v_xor_b32 v27, v{H}, v{L15}
            v_lshlrev_b32 v27, 4, v27
            v_lshl_add_u32 v27, v{L31}, 8, v27
            v_add_u32 v{VKA}, s37, v27"""
    for s in range(1, 8): setup += f"\nv_xor_b32 v{VKA+s}, {32*s}, v{VKA}"
    setup += f"""
            v_lshl_add_u32 v28, v{H}, 2, v{R}
            v_lshlrev_b32 v28, 8, v28
            v_lshl_add_u32 v28, v{R}, 6, v28
            v_lshl_add_u32 v28, v{G1}, 5, v28
            v_lshl_add_u32 v28, v{C4}, 3, v28
            s_lshl_b32 s47, s6, 7
            v_xor_b32 v28, s47, v28
            v_add_u32 v{VVA}, s37, v28"""
    for db in range(1, 4): setup += f"\nv_xor_b32 v{VVA+db}, {64*db}, v{VVA}"
    setup += "\nv_add_u32 v28, s54, v28"
    for db in range(1, 4): setup += f"\nv_xor_b32 v{28+db}, {64*db}, v28"
    setup += f"\ns_mov_b32 s42, {f2u(CSC):#x}\ns_mov_b32 s43, {f2u(THR_LOG2):#x}"
    for qb in range(3): setup += f"\nv_mov_b32 v{LSUM+qb}, 0"
    setup = [x.strip() for x in setup.split("\n")]
    VO, VL16, AD, VOL = 93, 102, 103, 107
    def vo_calc(dst, rev):
        L = []
        for i in range(9):
            L += [f"v_add_u32 v80, {64*i}, v1", "v_mul_u32_u24 v28, 58255, v80", "v_lshrrev_b32 v28, 20, v28", "v_mul_u32_u24 v83, 18, v28",
                  "v_sub_u32 v83, v80, v83", "v_xor_b32 v29, 1, v83", "v_sub_u32 v29, 17, v29"]
            if rev == "vcc": L += ["v_cndmask_b32 v29, v83, v29, s[70:71]"]
            L += ["v_mul_u32_u24 v28, 1152, v28", f"v_lshl_add_u32 v{dst+i}, v29, 4, v28"]
        return L
    setup2 = ["s_cmp_eq_u32 s7, 1\ns_cselect_b64 s[70:71], -1, 0"] + vo_calc(VO, "vcc") + [x.strip() for x in f"""v_lshlrev_b32 v{VL16}, 4, v1
            v_lshlrev_b32 v80, 4, v{H}
            v_lshl_add_u32 v80, v{G1}, 2, v80
            v_add_u32 v80, v80, v{R}
            v_mul_u32_u24 v80, 288, v80
            v_lshl_add_u32 v80, v{C4}, 3, v80
            s_mul_i32 s3, s7, 18432
            v_add_u32 v{AD+1}, s3, v80
            v_add_u32 v{AD}, {SB[0]}, v{AD+1}
            v_lshlrev_b32 v{VOL}, 10, v{G1}
            v_lshl_add_u32 v{VOL}, v{H}, 8, v{VOL}
            v_lshl_add_u32 v{VOL}, v{L15}, 4, v{VOL}
            v_mov_b32 v108, 0
            s_mul_i32 s67, s30, 1179648
            s_mul_i32 s3, s32, 288
            s_add_u32 s64, s67, s3              ; wo: rows of the octet, columns 144p..
            s_lshl_b32 s39, s29, 3
            s_add_u32 s39, s39, s31""".split("\n")]
    setW = ["s_lshl_b32 s66, s32, 1", "s_mul_i32 s65, s28, 9216", f"s_mul_i32 s68, s28, {32*1152}", "s_add_u32 s68, s68, s64"]
    def arrive(): a.e(f"s_add_u32 s44, s44, 1\nv_mov_b32 v{VD}, s44\nds_write_b32 v{VFO}, v{VD}")
    def psync(arrived=False):
        psync.n += 1; n = psync.n
        if not arrived: arrive()
        a.e("s_mov_b32 s47, 0x400000")
        a.label(f"L_ps{n}")
        a.e(f"""ds_read_b32 v{VD}, v{VFP}
                s_sub_u32 s47, s47, 1
                s_waitcnt lgkmcnt(0)
                v_readfirstlane_b32 s3, v{VD}
                s_cmp_eq_u32 s47, 0
                s_cselect_b32 s3, s44, s3
                s_cmp_lt_u32 s3, s44
                s_cbranch_scc1 L_ps{n}""")
    psync.n = 0
    def other_pair(name, word, val, T=84):
        a.e(f"v_mov_b32 v{T+2}, {TOP + 3072 + word}\ns_mov_b32 s47, 0x400000")
        a.label(name)
        a.e(f"""s_sleep 2
                ds_read_b64 v[{T}:{T+1}], v{T+2}
                s_sub_u32 s47, s47, 1
                s_waitcnt lgkmcnt(0)
                v_min_u32 v{T}, v{T}, v{T+1}
                v_readfirstlane_b32 s3, v{T}
                s_cmp_eq_u32 s47, 0
                s_cselect_b32 s3, {val}, s3
                s_cmp_lt_u32 s3, {val}
                s_cbranch_scc1 {name}""")

    ACC = 112
    def qwrite(blocks, dreg, area, extra=()):
        a.e(f"""v_xor_b32 v55, {dreg}, v{L15}
                v_lshlrev_b32 v55, 4, v55
                v_lshl_add_u32 v55, v{L31}, 8, v55
                v_lshl_add_u32 v55, v{H}, 3, v55
                v_add_u32 v55, {area}, v55
                v_mov_b32 v62, s42""")
        for db in range(blocks):
            for i in range(4):
                a.e(f"v_xor_b32 v54, {(4*db + i)*16}, v55")
                if extra: emit(a, [extra[4*db + i]])
                for qb in range(3):
                    r = ACC + (db*3 + qb)*16 + 4*i; tq = 56 + 2 * qb
                    a.e(f"""v_pk_mul_f32 v[{r}:{r+1}], v[{r}:{r+1}], v[62:63] op_sel_hi:[1,0]
                            v_pk_mul_f32 v[{r+2}:{r+3}], v[{r+2}:{r+3}], v[62:63] op_sel_hi:[1,0]
                            v_cvt_pk_bf16_f32 v{tq}, v{r}, v{r+1}
                            v_cvt_pk_bf16_f32 v{tq+1}, v{r+2}, v{r+3}
                            ds_write_b64 v54, v[{tq}:{tq+1}] offset:{qb*8192}""")
    def qread(area):
        a.e(f"s_sub_u32 s3, {area}, s37")
        for s in range(8): a.e(f"v_add_u32 v{32+s}, s3, v{VKA+s}")
        for qb in range(3):
            for s in range(8): a.e(f"ds_read_b128 {vr(Qreg(qb,s),4)}, v{32+s} offset:{qb*8192}")
    FA, FB = 208, 228
    a.wait(vmtags=["s0"], lg0=True); a.e("s_barrier")
    stamp(a, "q0", opt)
    emit(a, frag_reads(0, 0, FA))
    sl = [[] for _ in range(216 + 24)]
    spread(sl, [x for c in range(2, 9 - opt.rlate) for x in stage(c)], 0, opt.rspan)
    spread(sl, setup, 6, 64)
    for c in range(9):
        for s in range(4):
            F, nF = (FA, FB) if s % 2 == 0 else (FB, FA)
            k0 = (c*4 + s) * 6
            if s == 3:
                a.wait(vmtags=[f"s{c+1}"] if c < 2 else [], lg0=True); a.e("s_barrier")
                stamp(a, f"c{c}", opt)
                if 1 <= c <= 6: spread(sl, regwrite(c + 2), k0 + (opt.wdel if c == 1 else 1), k0 + 22)
                if c == 2 and opt.rwait is not None:
                    p0 = max(k0, opt.rspan + opt.rwait); sl[p0].append("WAITVM s8")
                    spread(sl, dma_unit(0, opt) + dma_unit(1, opt), p0, p0 + opt.kspan)
                elif c == 2: spread(sl, dma_unit(0, opt) + [x for k in range(9 - opt.rlate, 9) for x in stage(k)] + dma_unit(1, opt), max(k0, opt.rspan), max(k0, opt.rspan) + opt.kspan)
                if c == 7: spread(sl, dma_unit(2, opt), k0, k0 + 18)
                for u in opt.touch.get(c, []):
                    sl[k0 + 20].append(f"s_add_u32 s47, s69, {(u // 2) * 16384}\ns_and_b32 s47, s47, 0x3ffff\ns_add_u32 s47, s47, s34\n" +
                                       f"buffer_load_dword v51, v50, {'s[8:11]' if u % 2 == 0 else 's[12:15]'}, s47 offen nt ; @junk")
                if opt.wot == c: spread(sl, wtouch, k0 + 12, k0 + 22)
                if opt.ctouch == c:
                    sl[k0 + 6].append("s_getpc_b64 s[70:71]\nLABEL L_pc\nv_lshlrev_b32 v24, 7, v0\nv_add_u32 v24, L_qcode-L_pc, v24\nv_min_u32 v24, L_end-L_pc-4, v24\nglobal_load_dword v23, v24, s[70:71] ; @junk")
            rd = (frag_reads(c + 1, 0, nF) if c < 8 else []) if s == 3 else frag_reads(c, s + 1, nF)
            if opt.qlev:
                for k, x in enumerate(rd): sl[k0 + (0, 0, 1, 1, 2, 3, 4)[k]].insert(0, x)
                a.wait(lgregs=regs_of(vr(F, 20)))
            else: emit(a, rd)
            i = 0
            for db in range(2):
                for qb in range(3):
                    d = vr(ACC + (db*3 + qb)*16, 16)
                    emit(a, [f"v_mfma_f32_32x32x16_bf16 {d}, {vr(F+db*4,4)}, {vr(F+8+qb*4,4)}, " + ("0" if (c == 0 and s == 0) else d)] + sl[k0 + i]); i += 1
    assert not any(sl[216:])
    a.label("L_qcode")
    a.e("s_lshl_b32 s3, s6, 3\ns_cmp_eq_u32 s7, 1\ns_cbranch_scc1 L_qy")
    sv = save(a)
    qwrite(2, "s3", XS, () if opt.u3late else dma_unit(3, opt))
    a.e("s_waitcnt lgkmcnt(0)\ns_barrier")
    qread(XS)
    if opt.u3late: emit(a, dma_unit(3, opt))
    a.e("s_waitcnt lgkmcnt(0)\ns_barrier\ns_branch L_qdone")
    a.label("L_qy"); load(a, sv)
    emit(a, dma_unit(3, opt))
    a.e("s_barrier\ns_barrier\ns_lshl_b32 s3, s6, 3")
    qwrite(2, "s3", XS)
    a.e("s_waitcnt lgkmcnt(0)"); psync()
    qread(XS)
    a.label("L_qdone")
    stamp(a, "qx", opt)
    a.wait(vmtags=["u0"], lg0=True)
    emit(a, kreads(0))
    stamp(a, "k0", opt)
    a.e(f"""v_mov_b32 v26, {TOP + 3072 + 16}
            s_cmp_eq_u32 s7, 1
            s_cselect_b32 s50, {round(opt.thr1 * 16)}, 0
            s_cselect_b32 s38, {round((opt.thr0 + opt.thr1) * 16)}, -1""")
    if not opt.hold: a.e("s_lshl_b32 s50, s7, 1\ns_add_u32 s50, s50, 2\ns_sub_u32 s50, s50, s29\ns_mov_b32 s38, s50" + ("\ns_mov_b32 s50, 0" if opt.free01 else ""))
    if opt.acct: a.e(f"s_mov_b64 s[98:99], s[{STB}:{STB+1}]\ns_mov_b64 s[100:101], s[{STB}:{STB+1}]\ns_mov_b64 s[92:93], s[{STB}:{STB+1}]")
    def wpieces(tag, head, rows, lds, voreg):
        Gs = []
        for i in range(9):
            g = [f"s_add_u32 s4, s66, {head}", "s_and_b32 s4, s4, 7", f"s_mul_i32 s4, s4, {128*1152}", "s_add_u32 s4, s4, s68",
                 f"s_add_u32 s4, s4, {rows*1152}"] if i == 0 else []
            g += [f"s_add_u32 m0, s65, {lds + i*1024}", f"buffer_load_dwordx4 v{voreg+i}, s[60:63], s4 offen{opt.wopol} lds ; @{tag}"]
            Gs.append("\n".join(g))
        return Gs
    HEAD = (0, 2, 4, 6, 1, 3, 5, 7)
    NX = opt.nx
    BUFOF = [st % 2 for st in range(NX + 2)] + [2, 3]
    while len(BUFOF) < 8: BUFOF.append(BUFOF[len(BUFOF) - 4])
    wS = lambda st: wpieces(f"w{st}", HEAD[st], 0, SB[BUFOF[st]], VO)
    wX = lambda st, VOR: wpieces(f"w{st}", HEAD[st], 0, SB[BUFOF[st]], VO) + wpieces(f"w{st}", HEAD[st], 64, SB[BUFOF[st]] + 18432, VOR)
    carry = tile_body(a, opt, 0, [])
    carry = tile_body(a, opt, 1, carry, extra=[(setup2 + setW, 0, 41)])
    carry1 = [[x.replace('L_sk1_', 'L_sk4_') for x in y] for y in carry]
    if opt.unroll:
        for t in range(2, 14):
            stamp(a, f'r{t}', opt); carry = tile_body(a, opt, t, carry)
    else:
        stamp(a, "l0", opt)
        a.e("s_mov_b32 s46, 4")
        a.raw(".p2align 6"); a.label("L_tile")
        keep = list(a.vm)
        if opt.firstfree: a.e("s_cmp_eq_u32 s46, 4\ns_cselect_b32 s50, 0, s38")
        elif opt.free01: a.e("s_mov_b32 s50, s38")
        if not opt.hold: a.e(f"s_cmp_eq_u32 s7, 0\ns_cselect_b32 s3, {2*opt.last[0]}, {2*opt.last[1]}\ns_cmp_gt_u32 s46, 1\ns_cselect_b32 s50, s50, s3")
        if opt.late:
            a.e(f"""s_lshl_b32 s3, s7, 3
                    s_add_u32 s3, s3, s46
                    s_cmp_lg_u32 s3, {opt.late}
                    s_cbranch_scc1 L_nolate
                    s_lshr_b32 s3, s2, 3
                    s_lshl_b32 s3, s3, 1
                    s_add_u32 s3, s3, s6
                    s_mul_i32 s3, s3, 18432
                    v_lshlrev_b32 v84, 7, v1
                    v_add_u32 v84, s3, v84
                    v_add_u32 v85, 8192, v84
                    v_add_u32 v86, 16384, v84
                    v_cmp_gt_u32 vcc, 16, v1
                    v_cndmask_b32 v86, -1, v86, vcc""")
            emit(a, [f"buffer_load_dword v87, v{r}, s[60:63], s67 offen{opt.tpol} ; @junk" for r in (84, 85, 86)])
            a.label("L_nolate")
        if opt.tlb:
            a.e(f"""s_cmp_lg_u32 s46, {opt.tlb}
                    s_cbranch_scc1 L_notlb
                    s_lshl_b32 s3, s39, 2
                    s_add_u32 s4, s3, s30
                    s_mul_i32 s4, s4, {8*24576}
                    v_mov_b32 v84, s4
                    s_add_u32 s4, s4, {8*24576 - 128}
                    v_writelane_b32 v84, s4, 1
                    s_add_u32 s3, s3, s32
                    s_mul_i32 s4, s3, {4*36864}
                    s_add_u32 s4, s4, {WS_P}
                    v_writelane_b32 v84, s4, 2
                    s_add_u32 s4, s4, {4*36864 - 128}
                    v_writelane_b32 v84, s4, 3
                    s_mov_b32 s4, {WS_F + 65536 - 128}
                    v_writelane_b32 v84, s4, 4
                    s_mul_i32 s4, s31, {96*2304}
                    v_mov_b32 v85, s4
                    s_add_u32 s4, s4, {96*2304 - 128}
                    v_writelane_b32 v85, s4, 1
                    s_mov_b64 s[16:17], s[78:79]
                    s_mov_b32 s18, 1769472
                    buffer_load_dword v87, v84, s[24:27], 0 offen nt ; @junk
                    buffer_load_dword v87, v85, s[16:19], 0 offen nt ; @junk""")
            a.label("L_notlb")
        a.vm = keep
        for t in (2, 3, 4): carry = tile_body(a, opt, t, carry)
        assert carry == carry1
        a.e("s_sub_u32 s46, s46, 1\ns_cmp_lg_u32 s46, 0\ns_cbranch_scc1 L_tile")
        for o in a.vm:
            if o.tag and o.tag[0] == "u": o.tag = f"u{int(o.tag[1:]) + 18}"
    stamp(a, "l1", opt)
    raw = lambda L: "\n".join(("LABEL " + y[6:] if y.startswith("LABEL ") else "RAW " + y) for x in L for y in x.split("\n"))
    w0blk = "s_cmp_eq_u32 s7, 1\ns_cbranch_scc1 L_now0\n" + raw([f"""v_mov_b32 v83, {TOP + 3072 + 16}
s_mov_b32 s47, 0x400000
LABEL L_yq
ds_read_b128 v[84:87], v83
s_sub_u32 s47, s47, 1
s_waitcnt lgkmcnt(0)
v_min3_u32 v84, v84, v85, v86
v_min_u32 v84, v84, v87
s_nop 1
v_readfirstlane_b32 s3, v84
s_nop 1
s_cmp_eq_u32 s47, 0
s_cselect_b32 s3, 1, s3
s_cmp_lt_u32 s3, 1
s_cbranch_scc1 L_yq"""] + [x.replace("buffer_load", "s_nop 0\nbuffer_load") for x in wX(0, VO)]) + "\nLABEL L_now0"
    W0 = lambda t: [([w0blk], opt.w0at[1], opt.w0at[1] + 1)] if opt.w0at and opt.w0at[0] == t else []
    carry = tile_body(a, opt, 14, carry, extra=W0(14))
    xo = lambda k: (k // 8) * SLOT + (k % 8) * 1024
    def send(qb):
        return [f"ds_write_b128 v28, {ar(Oacc(2+i,qb) + 4*g, 4)} offset:{xo((i*3 + qb)*4 + g)}" for i in range(2) for g in range(4)]
    accr = lambda qb: [f"v_accvgpr_read_b32 v{160 + (i*3+qb)*16 + r}, a{Oacc(i,qb) + r}" for i in range(2) for r in range(16)]
    pre = ["buffer_load_dword v106, v108, s[56:59], 0 offen sc1 ; @tag",
           f"v_add_u32 v28, s37, v{VL16}", "s_lshl_b32 s3, s6, 14\ns_sub_u32 s3, 8192, s3", "v_add_u32 v29, s3, v28",
           f"s_mul_i32 s3, s28, 768\ns_add_u32 s3, s3, {TOP}", f"v_lshlrev_b32 v30, 3, v{L31}", "v_add_u32 v30, s3, v30",
           f"s_xor_b32 s3, s28, 1\ns_mul_i32 s3, s3, 768\ns_add_u32 s3, s3, {TOP}", f"v_lshlrev_b32 v31, 3, v{L31}", "v_add_u32 v31, s3, v31"]
    team = "v_and_b32 v13, 3, v1\nv_lshlrev_b32 v13, 10, v13\nv_and_b32 v14, 4, v1\nv_add_u32 v13, v13, v14"
    askX = [f"s_andn2_b32 s71, s2, 24\ns_lshl_b32 s71, s71, 7\ns_add_u32 s69, s71, {WS_F}"] + team.split("\n") + ["buffer_load_dword v12, v13, s[24:27], s69 offen sc1"]
    carry = tile_body(a, opt, 15, carry, extra=[(pre, 8, 16), (askX, 28, 34), (send(0), 34, 48)] + W0(15) + ([(accr(0), 33, 44)] if opt.accearly else []))
    sl = [[] for _ in range(8)]
    carry = [x for y in carry for x in y]
    cut = max([i + 1 for i, x in enumerate(carry) if x.startswith(f"v_cvt_pk_bf16_f32 v{Sreg(2,3)},")] + [len(carry) - 16, 0])
    emit(a, carry[:cut])
    spread(sl, carry[cut:], 0, 3)
    st = []
    for qb in range(3): st += [f"v_mov_b32 v{3+2*qb}, v{LSUM+qb}", f"v_mov_b32 v{2+2*qb}, v{NM+16*qb}"]
    for qb in range(3): st += [f"v_permlane32_swap_b32 v{LSUM+qb}, v{3+2*qb}"]
    for qb in range(3): st += [f"v_add_f32 v{3+2*qb}, v{LSUM+qb}, v{3+2*qb}", f"ds_write_b64 v30, v[{2+2*qb}:{3+2*qb}] offset:{qb*256}"]
    spread(sl, st + send(1), 3, 8)
    for m, f in zip(pv(2, False), sl): emit(a, [m] + f)
    stamp(a, "t15", opt)
    emit(a, accr(1)[:12] + send(2))
    emit(a, ([] if opt.accearly else accr(0)) + accr(1)[12:] + accr(2))
    a.e("s_mov_b32 s4, 0x100000")
    a.label("L_tag")
    a.e("""s_waitcnt vmcnt(0)
           v_readfirstlane_b32 s75, v106
           s_cmp_lg_u32 s75, 0
           s_cbranch_scc1 L_tag_ok
           buffer_load_dword v106, v108, s[56:59], 0 offen sc1 ; @junk
           s_sub_u32 s4, s4, 1
           s_cmp_lg_u32 s4, 0
           s_cbranch_scc1 L_tag""")
    a.label("L_tag_ok"); a.vm = []
    a.e(f"""s_lshl_b32 s3, s39, 5
            s_add_u32 s3, s3, s33
            s_mul_i32 s52, s3, 24576
            s_mul_i32 s3, s6, 12288
            s_add_u32 s52, s52, s3
            s_waitcnt lgkmcnt(0)""")
    if opt.earr: arrive()
    ACC, WF, OF = 112, 16, 0
    def ask(base, lanes):
        a.e(f"s_add_u32 s69, {base}, {WS_F}\n{lanes}\nbuffer_load_dword v12, v13, s[24:27], s69 offen sc1")
    def check(tag):
        a.e("s_mov_b32 s4, 0x100000")
        a.label(f"L_poll{tag}")
        a.e(f"""s_waitcnt vmcnt(0)
                v_cmp_ne_u32 vcc, s75, v12
                s_cbranch_vccz L_got{tag}
                s_sleep 1
                buffer_load_dword v12, v13, s[24:27], s69 offen sc1
                s_sub_u32 s4, s4, 1
                s_cmp_lg_u32 s4, 0
                s_cbranch_scc1 L_poll{tag}""")
        a.label(f"L_got{tag}")
        a.e("s_waitcnt vmcnt(0)")
    def wreads(buf, rows, F):
        reg, boff = (AD, AD + 1, 220, 221)[buf], 0
        return [f"ds_read_b64_tr_b16 {vr(F + nb*4 + 2*k, 2)}, v{reg} offset:{boff + (rows + 8*k) * 288 + 32*nb}" for nb in range(9) for k in range(2)]
    def oload(tag, head, db0, nks, dst):
        Gs = []
        for kl in range(nks):
            for j in range(3):
                g = [f"s_add_u32 s47, s66, {head}", "s_and_b32 s47, s47, 7", "s_mul_i32 s47, s47, 24576", "s_add_u32 s47, s47, s37"] + \
                    ([f"s_add_u32 s47, s47, {db0}"] if db0 else []) if kl + j == 0 else ["s_add_u32 s47, s47, 6144"] if j == 0 else []
                Gs.append("\n".join(g + [f"buffer_load_dwordx4 {ar(dst + (kl*3+j)*4, 4)}, v{VL16}, s[24:27], s47 offen offset:{j*1024} sc1 ; @{tag}"]))
        return Gs
    def kstep(F, O, zero, reads, jobs):
        ms = [f"v_mfma_f32_16x16x32_bf16 {vr(ACC + (nb*3+j)*4, 4)}, {vr(F+nb*4,4)}, {ar(O+j*4,4)}, " + ("0" if zero else vr(ACC + (nb*3+j)*4, 4))
              for nb in range(9) for j in range(3)]
        sl = [[] for _ in range(27)]
        spread(sl, reads, 0, 20); spread(sl, jobs, 0, 27)
        a.e("s_waitcnt lgkmcnt(0)")
        for m, f in zip(ms, sl): emit(a, [m] + f)
        return ms
    team = "v_and_b32 v13, 3, v1\nv_lshlrev_b32 v13, 10, v13\nv_and_b32 v14, 4, v1\nv_add_u32 v13, v13, v14"
    a.e(f"""s_lshl_b32 s3, s2, 7
            s_lshl_b32 s4, s28, 2
            s_add_u32 s70, s3, s4
            s_add_u32 s70, s70, {WS_F}
            s_lshl_b32 s3, s39, 2
            s_add_u32 s3, s3, s30
            s_mul_i32 s37, s3, {8*24576}
            s_mul_i32 s4, s6, 3072
            s_add_u32 s37, s37, s4
            s_mul_i32 s4, s7, 12288
            s_add_u32 s37, s37, s4
            s_mov_b32 s45, 0
            s_cmp_eq_u32 s7, 0
            s_cbranch_scc1 L_noearly
            v_cmp_ne_u32 vcc, s75, v12
            s_cbranch_vccnz L_noearly
            s_mov_b32 s45, 1""")
    for st in range(NX, 4): emit(a, oload(f"o{st}", HEAD[st], 0, 2, 24*st))
    a.label("L_noearly"); a.vm = []
    a.e(f"v_sub_u32 v27, v29, v{VL16}\nv_add_u32 v27, v27, v{VOL}")
    psync(opt.earr)
    stamp(a, "c_bar", opt)
    for qb in range(3): a.e(f"ds_read_b64 v[{8+2*qb}:{9+2*qb}], v31 offset:{qb*256}")
    RC = (32, 48, 64, 112, 128, 144)
    def recv(blk):
        for g in range(4): a.e(f"ds_read_b128 {vr(RC[blk]+4*g,4)}, v29 offset:{xo(blk*4 + g)}")
    recv(0); recv(1)
    SC = 16
    for qb in range(3):
        pn, pl, on, ol = 8 + 2*qb, 9 + 2*qb, 2 + 2*qb, 3 + 2*qb
        a.auto(f"v_min_f32 v22, v{on}, v{pn}")
        a.e(f"""v_sub_f32 v23, v22, v{on}
                v_sub_f32 v24, v22, v{pn}
                v_exp_f32 v23, v23
                v_exp_f32 v24, v24
                v_mul_f32 v{ol}, v{ol}, v23
                v_fmac_f32 v{ol}, v{pl}, v24
                v_rcp_f32 v{ol}, v{ol}
                v_mul_f32 v{SC+2*qb}, v23, v{ol}
                v_mul_f32 v{SC+2*qb+1}, v24, v{ol}""")
    recv(2); recv(3); recv(4); recv(5)
    for blk in range(6):
        i, qb = divmod(blk, 3)
        K = 160 + blk*16; Rr = RC[blk]
        a.wait(lgregs=regs_of(vr(Rr, 16)))
        for r in range(0, 16, 2):
            a.e(f"v_pk_mul_f32 v[{Rr+r}:{Rr+r+1}], v[{Rr+r}:{Rr+r+1}], v[{SC+2*qb}:{SC+2*qb+1}] op_sel:[0,1] op_sel_hi:[1,1]")
        for r in range(0, 16, 2):
            a.e(f"v_pk_fma_f32 v[{K+r}:{K+r+1}], v[{K+r}:{K+r+1}], v[{SC+2*qb}:{SC+2*qb+1}], v[{Rr+r}:{Rr+r+1}] op_sel_hi:[1,0,1]")
        for j in range(8):
            a.e(f"v_cvt_pk_bf16_f32 v{K+8*(j//4)+j%4}, v{K+2*j}, v{K+2*j+1}")
        a.e(f"s_add_u32 s47, s52, {WS_O + (i*6 + 2*qb)*1024}")
        for s in range(2):
            a.e(f"buffer_store_dwordx4 {vr(K+8*s,4)}, v{VOL}, s[24:27], s47 offen offset:{512*s} sc1")
            a.e(f"ds_write_b128 v27, {vr(K+8*s,4)} offset:{xo(i*6 + 2*qb) + 512*s}")
    stamp(a, "comb", opt)
    a.e("v_mov_b32 v14, s75\ns_cmp_eq_u32 s7, 1\ns_cbranch_scc1 L_tailY")
    stT = save(a)
    if not opt.w0at: other_pair("L_yq", 24, 1)
    if NX == 0:
        VOR = 224
        a.e("s_waitcnt vmcnt(0)\nbuffer_store_dword v14, v108, s[24:27], s70 offen sc1")
        emit(a, vo_calc(VOR, "rev") + wX(0, VOR))
        a.e("s_waitcnt lgkmcnt(0)"); psync()
        emit(a, wX(1, VOR))
        ask("s71", team); check("A"); stamp(a, "chkA", opt)
    else:
        if not opt.w0at: emit(a, wX(0, VO))
        a.e(f"""s_waitcnt vmcnt(0)
                buffer_store_dword v14, v108, s[24:27], s70 offen sc1
                v_add_u32 v3, 8192, v{VL16}
                s_waitcnt lgkmcnt(0)""")
        psync()
        a.e("s_cmp_eq_u32 s6, 1\ns_cbranch_scc1 L_x1")
        sv = save(a)
        for qh in range(2):
            if qh: a.label("L_x1"); load(a, sv)
            for db in range(4):
                for j in range(3): a.e(f"ds_read_b128 {ar(192 + (db*3+j)*4, 4)}, v{3 if db < 2 else VL16} offset:{xo((db % 2)*6 + 3*qh + j)}")
            if qh == 0: a.e("s_branch L_x2")
        a.label("L_x2")
        VOR = 224
        emit(a, vo_calc(VOR, "rev"))
        a.wait(vmtags=["w0"], lg0=True); psync()
        emit(a, wreads(0, 0, WF))
        RS = (192, 0, 48 if NX == 4 else 192, 192)
        wN = lambda st: wX(st, VO if st < NX else VOR)
        xl = lambda st: oload(f"x{st}", HEAD[st], 0, 4, RS[st])
        ask("s71", team)
        for st in range(NX):
            b = BUFOF[st]
            w = wN(1) if st == 0 else []
            if st >= 1: a.wait(vmtags=[f"x{st}"])
            kstep(WF, RS[st], st == 0, wreads(b, 32, WF + 36), w[:9])
            kstep(WF + 36, RS[st] + 12, False, wreads(b, 64, WF), w[9:])
            j = []
            if st == 0:
                check("A"); stamp(a, "chkA", opt)
                for k in range(1, NX):
                    if RS[k] != 192: j += xl(k)
            kstep(WF, RS[st] + 24, False, wreads(b, 96, WF + 36), j)
            a.wait(vmtags=[f"w{st+1}"], lg0=True); psync()
            kstep(WF + 36, RS[st] + 36, False, wreads(BUFOF[st + 1], 0, WF) if st + 1 < NX else [], wN(st + 2))
            if st == 0:
                for k in range(1, NX):
                    if RS[k] == 192: emit(a, xl(k))
    for st in range(NX, 4): emit(a, oload(f"o{st}", HEAD[st], 0, 2, 24*st))
    a.e("s_waitcnt vmcnt(0)\ns_branch L_join")
    a.label("L_tailY"); load(a, stT)
    a.e("s_cmp_eq_u32 s45, 1\ns_cbranch_scc1 L_hadearly")
    sv = save(a)
    ask("s71", team); check("Y")
    a.vm = list(sv[2])
    for st in range(NX, 4): emit(a, oload(f"o{st}", HEAD[st], 0, 2, 24*st))
    a.label("L_hadearly")
    a.e("s_waitcnt lgkmcnt(0)")
    a.label("L_join"); a.lg = []
    a.e(f"""s_add_u32 s71, s71, 8
            v_add_u32 v220, {SB[2] - SB[1]}, v{AD+1}
            v_add_u32 v221, {SB[3] - SB[1]}, v{AD+1}
            s_mul_i32 s3, s7, -8192
            s_add_u32 s3, s3, {YB + 8192}
            v_add_u32 v2, s3, v{VL16}
            v_mov_b32 v15, s75
            s_barrier""")
    stamp(a, "join", opt)
    emit(a, wreads(BUFOF[NX], 0, WF))
    a.e("s_cmp_eq_u32 s6, 1\ns_cbranch_scc1 L_own1")
    sv = save(a)
    for qh in range(2):
        if qh: a.label("L_own1"); load(a, sv)
        for kl in range(2):
            for j in range(3): a.e(f"ds_read_b128 {ar(96 + (kl*3+j)*4, 4)}, v2 offset:{xo(kl*6 + 3*qh + j)}")
        if qh == 0: a.e("s_branch L_own2")
    a.label("L_own2")
    a.wait(vmtags=[f"o{NX}"])
    a.e("s_cmp_eq_u32 s7, 1\ns_cbranch_scc1 L_fy")
    sv = save(a)
    kstep(WF, 24*NX, NX == 0, wreads(BUFOF[NX], 32, WF + 36), [] if opt.plan2 else wS(NX + 2))
    a.e("s_branch L_fx")
    a.label("L_fy"); load(a, sv)
    kstep(WF, 24*NX, True, wreads(BUFOF[NX], 32, WF + 36), [] if opt.plan2 else wS(NX + 2))
    a.e("s_waitcnt vmcnt(0)\nbuffer_store_dword v15, v108, s[24:27], s70 offen sc1 ; @junk")
    a.label("L_fx"); a.vm = [o for o in a.vm if o.tag == f"w{NX+2}"]
    A = max(NX, min(opt.askat, 4))
    oy = lambda k: oload(f"o{k}", HEAD[k], 0, 2, 24*k)
    plan = {}
    for k in range(NX + 4, 8): plan.setdefault((k - 4, 1) if k - 4 > NX else (NX + 1, 0), []).append(wS(k))
    plan.setdefault((NX, 1), []).append(wS(NX + 3))
    if A <= 3:
        for i, k in enumerate((5, 6, 7)): plan.setdefault((A + (i + 1) // 2, (i + 1) % 2), []).insert(0, oy(k))
    if opt.plan2:
        assert NX == 1 and A == 3
        plan = {(1, 1): [wS(3)], (2, 0): [wS(4)], (2, 1): [wS(5)], (3, 1): [oy(5), oy(6)[:3]], (4, 0): [oy(6)[3:], oy(7)], (4, 1): [wS(6)], (5, 0): [wS(7)]}
    if opt.plan3 == 1: plan = {(1, 1): [wS(3)], (2, 0): [wS(4), wS(5)[:4]], (2, 1): [wS(5)[4:], wS(6)], (3, 1): [oy(5), wS(7)], (4, 0): [oy(6)], (4, 1): [oy(7)]}
    if opt.plan3 == 2: plan = {(1, 1): [wS(3), wS(4)[:4]], (2, 0): [wS(4)[4:], wS(5)], (2, 1): [wS(6)], (3, 1): [oy(5), oy(6)[:3]], (4, 0): [oy(6)[3:], oy(7)], (4, 1): [wS(7)]}
    job = lambda st, kl: [x for y in plan.get((st, kl), []) for x in y]
    for st in range(NX, 8):
        stamp(a, f"s{st}", opt)
        if st > NX:
            if st == A: ask("s71", team)
            if st >= 5: a.wait(vmtags=[f"o{st}"])
            kstep(WF, 24*st, False, wreads(BUFOF[st], 32, WF + 36), job(st, 0))
        elif st == A: ask("s71", team)
        if st == A and A <= 3: check("B"); stamp(a, "chk1", opt)
        if st < 7:
            a.wait(vmtags=[f"w{st+1}"], lg0=True); a.e("s_barrier")
            kstep(WF + 36, 24*st + 12, False, wreads(BUFOF[st + 1], 0, WF), job(st, 1))
        if st == A and A == 4:
            check("B"); stamp(a, "chk1", opt); emit(a, oy(5) + oy(6) + oy(7))
    a.e(f"""s_lshl_b32 s3, s28, 14
            v_add_u32 v13, s3, v{VL16}
            v_xor_b32 v14, 32768, v13
            s_lshl_b32 s52, s39, 2
            s_add_u32 s52, s52, s32
            s_lshl_b32 s53, s52, 2
            s_add_u32 s53, s53, s30
            s_mul_i32 s53, s53, 40960
            s_mul_i32 s3, s28, 10240
            s_add_u32 s53, s53, s3
            s_add_u32 s47, s53, {WS_P}
            s_waitcnt lgkmcnt(0)
            s_barrier""")
    F, O = WF + 36, 180
    T = lambda nb, j: ACC + (nb*3+j)*4
    ms = [f"v_mfma_f32_16x16x32_bf16 {vr(T(nb,j), 4)}, {vr(F+nb*4,4)}, {ar(O+j*4,4)}, {vr(T(nb,j), 4)}" for nb in (8, 7, 6, 5, 4, 0, 1, 2, 3) for j in range(3)]
    snd = [f"ds_write_b128 v13, {vr(T(nb,j),4)} offset:{((8-nb)*3+j)*1024}" for nb in range(8, 3, -1) for j in range(3)]
    emit(a, ms[:6])
    for k in range(15): emit(a, [ms[6 + k], snd[k]])
    emit(a, ms[21:])
    stamp(a, "gend", opt)
    a.e("s_waitcnt lgkmcnt(0)\ns_barrier")
    stamp(a, "rbar", opt)
    for nb in range(5):
        for j in range(3): a.e(f"ds_read_b128 {vr(WF + (nb*3+j)*4, 4)}, v14 offset:{(nb*3+j)*1024}")
    G0 = 172
    for nb in range(5): a.e(f"v_mov_b32 v{G0+8*nb+3}, s75\nv_mov_b32 v{G0+8*nb+7}, s75")
    for nb in range(5):
        g = G0 + 8*nb
        for j in range(3):
            t, q = T(nb, j), WF + (nb*3+j)*4
            d0, d1 = ((g, g+1), (g+2, g+4), (g+5, g+6))[j]
            a.wait(lgregs=regs_of(vr(q, 4)))
            a.e(f"v_pk_add_f32 v[{t}:{t+1}], v[{t}:{t+1}], v[{q}:{q+1}]\nv_pk_add_f32 v[{t+2}:{t+3}], v[{t+2}:{t+3}], v[{q+2}:{q+3}]")
            a.e(f"v_cvt_pk_bf16_f32 v{d0}, v{t}, v{t+1}\nv_cvt_pk_bf16_f32 v{d1}, v{t+2}, v{t+3}")
            if j: a.e(f"buffer_store_dwordx4 {vr(g + 4*(j-1), 4)}, v{VL16}, s[24:27], s47 offen offset:{(nb % 2)*2048 + (j-1)*1024} sc1")
        if nb % 2: a.e("s_add_u32 s47, s47, 4096")
    stamp(a, "rst", opt)
    a.e(f"""v_and_b32 v10, 15, v1
            v_mul_u32_u24 v10, 2304, v10
            v_lshrrev_b32 v11, 4, v1
            v_lshl_add_u32 v10, v11, 3, v10
            v_and_b32 v13, 3, v1
            v_mul_u32_u24 v13, 40960, v13
            s_mul_i32 s52, s52, {4*40960}
            s_add_u32 s52, s52, {WS_P}
            s_mul_i32 s53, s31, {96*2304}
            s_mul_i32 s3, s29, 1152
            s_add_u32 s53, s53, s3
            s_mul_i32 s3, s32, 288
            s_add_u32 s53, s53, s3
            s_lshl_b32 s54, s30, 2
            s_add_u32 s54, s54, s28""")
    srd(a, 8, "s78", "s79", 1769472)
    def decode(i):
        A, B = 56 + 2*i, 57 + 2*i
        a.e(f"""s_add_u32 s3, s54, {16*i}
                s_cmp_ge_u32 s3, 10
                s_cselect_b32 s4, 1, 0          ; kh
                s_cselect_b32 s5, 10, 0
                s_cselect_b32 s60, 4, 5
                s_sub_u32 s3, s3, s5
                s_cmp_ge_u32 s3, s60
                s_cselect_b32 s5, 1, 0          ; qh
                s_cselect_b32 s60, s60, 0
                s_sub_u32 s3, s3, s60
                s_lshl_b32 s60, s4, 1
                s_add_u32 s60, s60, s5
                s_mul_i32 s60, s60, 10240
                s_lshl_b32 s61, s3, 11
                s_add_u32 s{A}, s60, s61
                s_add_u32 s{A}, s{A}, s52
                s_mul_i32 s{B}, s5, {48*2304}
                s_add_u32 s{B}, s{B}, s53
                s_sub_u32 s60, 8, s3
                s_cmp_eq_u32 s4, 1
                s_cselect_b32 s3, s60, s3
                s_lshl_b32 s3, s3, 5
                s_add_u32 s{B}, s{B}, s3""")
    def units(U):
        n = len(U); pay = (0, 1, 2, 4, 5, 6)
        a.e("s_mov_b32 s4, 0x100000")
        if n == 2: a.e("s_sub_u32 s3, s58, s56\nv_bfe_u32 v11, v1, 2, 1\nv_mul_lo_u32 v11, v11, s3\nv_add_u32 v13, v13, v11")
        a.label(f"L_pp{n}")
        a.e(f"""buffer_load_dword v12, v13, s[24:27], s56 offen offset:2044 sc1
                s_sub_u32 s4, s4, 1
                s_waitcnt vmcnt(0)
                v_cmp_ne_u32 vcc, s75, v12
                s_cbranch_vccz L_pd{n}
                s_cmp_lg_u32 s4, 0
                s_sleep 1
                s_cbranch_scc1 L_pp{n}""")
        a.label(f"L_pd{n}")
        for i in U:
            b = 16 + 32*i
            a.e(f"s_mov_b32 s47, s{56+2*i}")
            for o in range(4):
                a.e(f"buffer_load_dwordx4 {vr(b+8*o,4)}, v{VL16}, s[24:27], s47 offen sc1\nbuffer_load_dwordx4 {vr(b+8*o+4,4)}, v{VL16}, s[24:27], s47 offen offset:1024 sc1")
                if o < 3: a.e("s_add_u32 s47, s47, 40960")
        for i in U:
            b, D = 16 + 32*i, 112 + 16*i
            for o in range(4):
                a.e(f"s_waitcnt vmcnt({8*(n - 1 - i) + 6 - 2*o})")
                a.e(f"v_xor_b32 v{b+8*o+3}, s75, v{b+8*o+3}\nv_xor_b32 v{b+8*o+7}, s75, v{b+8*o+7}")
                a.e(f"v_or_b32 v11, v{b+3}, v{b+7}" if o + i == 0 else f"v_or3_b32 v11, v11, v{b+8*o+3}, v{b+8*o+7}")
                for k, r in enumerate(pay):
                    r += b + 8*o
                    if o == 0: a.e(f"v_lshlrev_b32 v{D+2*k}, 16, v{r}\nv_and_b32 v{D+2*k+1}, 0xffff0000, v{r}")
                    else: a.e(f"v_lshlrev_b32 v{D+12}, 16, v{r}\nv_and_b32 v{r}, 0xffff0000, v{r}\nv_add_f32 v{D+2*k}, v{D+2*k}, v{D+12}\nv_add_f32 v{D+2*k+1}, v{D+2*k+1}, v{r}")
        a.e(f"""v_cmp_ne_u32 vcc, 0, v11
                s_cbranch_vccz L_ok{n}
                s_sub_u32 s4, s4, 1
                s_cmp_gt_i32 s4, 0
                s_cbranch_scc1 L_pd{n}""")
        a.label(f"L_ok{n}")
        for i in U:
            D, B = 112 + 16*i, 57 + 2*i
            for k in range(6): a.e(f"v_cvt_pk_bf16_f32 v{D+k}, v{D+2*k}, v{D+2*k+1}")
            for j in range(3):
                a.e(f"buffer_store_dwordx2 v[{D+2*j}:{D+2*j+1}], v10, s[8:11], s{B} offen")
                if j < 2: a.e(f"s_add_u32 s{B}, s{B}, {16*2304}")
    decode(0)
    stamp(a, "pub2", opt)
    a.e("s_cmp_lt_u32 s54, 2\ns_cbranch_scc1 L_two")
    sv = save(a)
    units([0])
    a.e("s_branch L_rd2")
    a.label("L_two"); load(a, sv)
    decode(1)
    units([0, 1])
    a.label("L_rd2")
    stamp(a, "end", opt)
    if opt.stamps:
        a.e(f"s_lshl_b32 s3, s2, 2\ns_add_u32 s3, s3, s28\ns_lshl_b32 s3, s3, 7\ns_add_u32 s3, s3, {WS_STAMP}\nv_mov_b32 v0, 0")
        for i in range(1 + len(opt.sset)):
            a.e(f"v_mov_b32 v2, s{STB+2*i}\nv_mov_b32 v3, s{STB+1+2*i}\nbuffer_store_dwordx2 v[2:3], v0, s[24:27], s3 offen offset:{8*i}\ns_waitcnt vmcnt(0)")
    a.label("L_done")
    a.e("s_endpgm")
    a.label("L_end")
    for qb in range(3): rare(a, qb)

def build(opt):
    a = Asm()
    for l in """; Fused q-projection + softmax attention + output projection for both halves (A, B); written with a generator script.
; One workgroup (4 waves, 512 registers each, 160 KB LDS) per CU handles two heads X, Y of one batch:
;   1. Q = x wq (MFMA 32x32x16, LDS / register staged), scaled by log2(e)/sqrt(d)
;   2. waves 0,1 = head X, waves 2,3 = head Y, keys split between the two waves; K/V tiles stream through a private
;      LDS-DMA ring; online softmax against a reference max that a per-tile check raises to the true max when needed
;   3. pair combine, O (bf16) handed to the three workgroups with the same batch and head octet (write-through
;      stores, per-wave flags carrying a launch tag), 96 x 144 x 1024 partial output projection (MFMA 16x16x32),
;      partial tiles (bf16, 16-byte granules that each carry the launch tag) summed over the four octets""".split("\n"): a.raw(l)
    a.raw("; @launch grid=(256,1,1) block=(256,1,1) lds=163840")
    a.raw('.amdgcn_target "amdgcn-amd-amdhsa--gfx950"')
    kernel(a, NAME + "_kernel", opt)
    a.raw('.section .rodata,"a"\n.p2align 6')
    a.raw("\n".join([f".amdhsa_kernel {NAME}_kernel", "  .amdhsa_next_free_vgpr 512", "  .amdhsa_next_free_sgpr 102",
        "  .amdhsa_accum_offset 256", "  .amdhsa_group_segment_fixed_size 0", "  .amdhsa_kernarg_size 104",
        "  .amdhsa_user_sgpr_count 2", "  .amdhsa_user_sgpr_kernarg_segment_ptr 1",
        "  .amdhsa_system_sgpr_workgroup_id_x 1", ".end_amdhsa_kernel"]))
    return a.text(), a

if __name__ == "__main__":
    opt = Opt()
    out = sys.argv[1] if len(sys.argv) > 1 else "k.s"
    for kv in sys.argv[2:]:
        k, v = kv.split("=", 1); assert hasattr(opt, k), k
        setattr(opt, k, eval(v))
    t, a = build(opt)
    open(out, "w").write(t)
    print(out, "lines", t.count("\n"), "pad", a.npad)
```

```python
import sys, struct, math
sys.path.insert(0, "dev")
from asmlib import Asm, spread, regs_of, level_fill
import gen5
from gen5 import (NAME, f2u, CSC, THR_LOG2, WS_BYTES, WS_O, WS_P, WS_F, WS_STAMP, STB, vr, ar, srd, stamp, emit,
                  VOFFK, VOFFV, VKA, VVA, LSUM, TMAX, VT, NM, S0, Q0, KF, VF, Sreg, Qreg, Oacc, softmax, qk, pv, rare)

class Opt:
    wp = "pppp"
    noB = False
    stamps = False
    sset = ['q0', 'k0', 't15', 'comb', 'join', 'chk1', 'gend', 'pub2', 'end']
    thr0 = 0.0
    thr1 = 1.25
    clk = "s_memrealtime"
    rot = True
    krot = 4
    qlev = True
    touch = {}
    ctouch = None
    w0at = (14, 44)
    plan2 = True
    capfrom = 4
    firstfree = False
    free01 = False
    u3late = 0
    mid = True
    wsoff = 0
    d14 = None
    rwait = None
    plan3 = 0
    earr = False
    rlate = 0
    rspan = 80
    kspan = 30
    wdel = 8
    kvtlb = False
    capb = None
    pbf16 = True
    k1early = False
    wot = 4
    wotnt = None
    tlb = 0
    nx = 1
    accearly = True
    cap = ((6, 6, 7), 5)
    capend = 30
    hold = False
    xgate = 0
    last = (0, 0)
    ylast = 1
    kvsame = False
    unroll = False
    a0at = 2
    opol = ''
    late = 0
    prio = 0
    gate = 12
    pace = 1.0
    d1 = (1, 4, 7, 10, 13, 16, 19, 22)
    d2 = (25, 28, 31, 34, 37, 40, 43, 46)
    dcost = 4.0
    acct = 0
    w0 = 10
    askat = 3
    fewwait = True
    vwin = (16, 22)
    kwin = (40, 44)
    tpol = ''
    wopol = ''

SLOT = 16384
SV = 126976
def slot(u): return (2 if u == 0 else (-u) % 3) * SLOT
STG = lambda i: 45056 + 28672 * i
TOP = 159744
SB = (122880, 0, 86016, 49152)
NS = 3
YB = 49152

def dma_unit(u, opt):
    kind = "KV"[u % 2]; sreg = "s36" if kind == "K" else "s35"
    srdn = "s[8:11]" if kind == "K" else "s[12:15]"
    G = []
    for j in range(8):
        g = []
        mb, mo = ("s54", 0) if u == 1 else ("s37", slot(u))
        if j == 0: g += [f"s_add_u32 m0, {mb}, {mo}", f"s_add_u32 s51, s34, {sreg}"]
        if j == 1 and not opt.kvsame: g += [f"s_add_u32 {sreg}, {sreg}, 16384", f"s_and_b32 {sreg}, {sreg}, 0x3ffff"]
        if j == 4: g += [f"s_add_u32 m0, {mb}, {mo + 4096}", "s_add_u32 s51, s51, 4096"]
        vo = VOFFK + j % 4 if kind == "K" else VOFFV
        if opt.cap and opt.capfrom <= u <= opt.capend:
            cx, cy = opt.cap
            cx, cy = (c if isinstance(c, int) else c[j % len(c)] for c in (cx, cy))
            dma_unit.n += 1; n = dma_unit.n
            bx, by = (c if isinstance(c, int) else c[j % len(c)] for c in (opt.capb or opt.cap))
            prev = None
            for lv, c in enumerate((bx, cx, by, cy)):
                if c == prev: continue
                R_ = "RAW " if prev else ""
                g += [R_ + f"s_cmp_le_u32 s50, {lv}", R_ + f"s_cbranch_scc1 L_cap{n}", f"RAW s_waitcnt vmcnt({c - 1})"]
                assert prev is None or c < prev
                prev = c
            g += [f"LABEL L_cap{n}"]
        g.append(f"buffer_load_dwordx4 v{vo}, {srdn}, s51 offen offset:{(j % 4)*1024} nt lds ; @u{u}")
        G.append("\n".join(g))
    return G
dma_unit.n = 0
def kreads(t): return [f"ds_read_b128 {ar(KF+4*s,4)}, v{VKA+s} offset:{slot(2*t)}" for s in range(8)]
def vreads(t):
    return [f"ds_read_b64_tr_b16 {ar(VF + db*8 + s*4 + k*2, 2)}, v{(VVA if t else 28)+db} offset:{(slot(2*t+1) if t else 0) + 4096*s + 2048*k}"
            for s in range(2) for db in range(4) for k in range(2)]
def tile_body(a, opt, t, carry, extra=()):
    first = t == 0
    M = qk(0, first) + (pv(2, t == 1) if t else [None]*8) + qk(1, first) + pv(0, first) + qk(2, first) + pv(1, first)
    W = opt.w0
    sl = [[] for _ in range(48 + W)]
    def at(G, slots):
        for g, k in zip(G, slots): sl[k].append(g)
    if 2*t + NS <= 31: at(dma_unit(2*t + NS if t else 4, opt), opt.d14 if t == 14 and opt.d14 else opt.d1)
    spread(sl, [f"WAITVM u{2*t+1}"] + vreads(t), *opt.vwin)
    if 2*t + NS + 1 <= 31 and t: at(dma_unit(2*t + NS + 1, opt), opt.d2)
    if t < 15: spread(sl, [f"WAITVM u{2*t+2}"] + kreads(t + 1), *opt.kwin)
    if t == 14 and opt.xgate: sl[30].append('v_mov_b32 v27, 2\nds_write_b32 v109, v27 offset:16')
    if opt.hold or t == 0: sl[46].append("s_add_u32 s45, s45, 1\nv_mov_b32 v27, s45\nds_write_b32 v109, v27 offset:16")
    if 1 <= t <= 14 and opt.hold:
        sl[44].append("ds_read_b64 v[30:31], v26")
        sl[47].append(f"""AUTO v_min_u32 v30, v30, v31
s_add_u32 s38, s38, s50
s_min_i32 s38, s38, 256
v_readfirstlane_b32 s3, v30
s_lshl_b32 s3, s3, 4
s_cmp_ge_i32 s3, s38
s_cbranch_scc1 L_go{t}
s_call_b64 s[40:41], L_hold
LABEL L_go{t}""")
    for e in extra: spread(sl, *e)
    for i, x in enumerate(carry): sl[i] = x + sl[i]
    ghost = {48 + k: "buffer_x\ns_nop 0\ns_nop 0" for k in opt.d1 if k < W}
    for k, g in ghost.items(): sl[k].append(g)
    level_fill(sl, softmax(0, t, first), W, W + 16, opt.dcost)
    level_fill(sl, softmax(1, t, first), W + 16, W + 32, opt.dcost)
    level_fill(sl, softmax(2, t, first), W + 32, W + 48, opt.dcost)
    for k in ghost: sl[k] = sl[k][1:]
    for i in range(48):
        if opt.fewwait:
            if i == 0: a.wait(lgregs=regs_of(ar(KF, 32)))
            if i == 24: a.wait(lgregs=regs_of(ar(VF, 32)))
        if M[i]: emit(a, [M[i]])
        for x in sl[i]:
            if opt.acct and x.startswith("WAITVM"):
                keep = list(a.lg)
                a.e("s_memtime s[94:95]"); emit(a, [x]); a.e("s_memtime s[96:97]\ns_waitcnt lgkmcnt(0)\ns_sub_u32 s96, s96, s94")
                r = 98 if int(x.split("u")[1]) % 2 else 100
                a.e(f"s_add_u32 s{r}, s{r}, s96")
            elif opt.acct == 2 and "lds ;" in x:
                a.e("s_memtime s[94:95]"); emit(a, [x]); a.e("s_memtime s[96:97]\ns_waitcnt lgkmcnt(0)\ns_sub_u32 s96, s96, s94\ns_add_u32 s92, s92, s96")
            else: emit(a, [x])
    return sl[48:]

def save(a): return (list(a.hist), list(a.lg), list(a.vm))
def load(a, st): a.hist, a.lg, a.vm = (list(x) for x in st)

def kernel(a, name, opt):
    global WS_O, WS_P, WS_F
    WS_O, WS_P, WS_F = opt.wsoff, opt.wsoff + (16 << 20), opt.wsoff + (48 << 20)
    a.raw(".text"); a.raw(f".globl {name}"); a.raw(".p2align 8"); a.raw(f".type {name},@function")
    a.label(name, reset=True)
    a.e("""s_load_dwordx8 s[56:63], s[0:1], 0
           s_load_dwordx8 s[64:71], s[0:1], 40
           s_load_dwordx2 s[72:73], s[0:1], 96
           s_load_dwordx2 s[40:41], s[0:1], 32
           s_load_dwordx2 s[42:43], s[0:1], 72
           s_load_dwordx4 s[44:47], s[0:1], 80
           s_memrealtime s[48:49]
           s_cmp_ge_u32 s2, 256
           s_cbranch_scc1 L_done""")
    if opt.stamps: a.e(f"{opt.clk} s[{STB}:{STB+1}]")
    VW, VXA, VXB, AW, AX, VD = 72, 73, 74, 76, 64, 111
    G, L15, H, L31, G1, R, C4 = 88, 89, 90, 91, 92, 81, 82
    VFO, VFP = 109, 110
    a.e(f"""v_lshrrev_b32 v1, 6, v0
            s_and_b32 s3, s2, 7
            s_lshr_b32 s29, s3, 2
            s_and_b32 s30, s3, 3
            v_readfirstlane_b32 s28, v1
            s_lshr_b32 s3, s2, 3
            s_lshr_b32 s31, s3, 2
            s_and_b32 s32, s3, 3
            v_and_b32 v1, 63, v0
            v_lshrrev_b32 v{G}, 4, v1
            v_and_b32 v{L15}, 15, v1
            v_lshrrev_b32 v56, 3, v1
            v_and_b32 v57, 7, v1
            v_and_b32 v{G1}, 1, v{G}
            v_lshlrev_b32 v59, 2, v{G1}
            v_xor_b32 v59, v57, v59
            v_lshlrev_b32 v59, 4, v59
            v_lshl_add_u32 v{VW}, v56, 13, v59
            v_mul_u32_u24 v60, 1152, v56
            v_xor_b32 v61, v57, v{G}
            s_and_b32 s6, s28, 1
            s_lshr_b32 s7, s28, 1
            s_lshl_b32 s3, s6, 2
            v_xor_b32 v61, s3, v61
            v_lshl_add_u32 v{VXA}, v61, 4, v60
            v_xor_b32 v61, 4, v61
            v_lshl_add_u32 v{VXB}, v61, 4, v60
            s_mul_i32 s37, s7, {YB}
            s_lshl_b32 s3, s6, 13
            s_add_u32 s37, s37, s3
            s_lshl_b32 s33, s30, 3
            s_lshl_b32 s3, s32, 1
            s_add_u32 s33, s33, s3              ; head X
            s_add_u32 s74, s3, s31              ; b + 2p
            s_lshl_b32 s52, s33, 8
            s_lshl_b32 s3, s28, 7
            s_add_u32 s52, s52, s3
            s_mul_i32 s53, s31, 110592
            s_mul_i32 s3, s28, 27648
            s_add_u32 s53, s53, s3              ; x rows 24w..
            s_mul_i32 s55, s28, 3072
            s_mov_b32 s18, 884736
            s_mov_b32 s19, 0x20000
            s_mov_b32 s22, 4718592
            s_mov_b32 s23, 0x20000""")
    if opt.krot == 0: a.e("s_mov_b32 s74, 0")
    elif opt.krot == 1: a.e("s_cmp_ge_u32 s74, 9\ns_cselect_b32 s3, 9, 0\ns_sub_u32 s74, s74, s3")
    elif opt.krot == 3: a.e("s_and_b32 s74, s74, 1\ns_lshl_b32 s74, s74, 2")
    elif opt.krot == 2: a.e("s_add_u32 s74, s31, s32\ns_mul_i32 s3, s74, 86\ns_lshr_b32 s3, s3, 8\ns_mul_i32 s3, s3, 3\ns_sub_u32 s74, s74, s3\ns_mul_i32 s74, s74, 3")
    elif opt.krot == 4: a.e("s_add_u32 s74, s31, s32\ns_and_b32 s74, s74, 3\ns_mul_i32 s74, s74, 9\ns_lshr_b32 s74, s74, 2")
    elif opt.krot == 5: a.e("s_add_u32 s74, s31, s32\ns_and_b32 s74, s74, 1\ns_lshl_b32 s74, s74, 2")
    a.e("s_cmp_eq_u32 s29, 0\ns_waitcnt lgkmcnt(0)")
    for d, o in ((20, 6), (16, 0), (8, 2), (12, 4)):
        a.e(f"s_cselect_b32 s{d}, s{56+o}, s{64+o}\ns_cselect_b32 s{d+1}, s{57+o}, s{65+o}")
    a.e("""s_cselect_b32 s76, s40, s42
           s_cselect_b32 s77, s41, s43
           s_mov_b64 s[78:79], s[44:45]
           s_mov_b64 s[80:81], s[46:47]
           s_or_b32 s75, s48, 1""")
    P = lambda ch: " nt" if ch == "n" else ""
    XS = 98304
    VW4, VX3 = 32, 36
    a.e(f"""v_mov_b32 v{VW4}, v{VW}
            v_add_u32 v{VW4+1}, {65536 - 1024}, v{VW}
            v_add_u32 v{VW4+2}, {2*(65536 - 1024)}, v{VW}
            v_add_u32 v{VW4+3}, {3*(65536 - 1024)}, v{VW}
            v_mov_b32 v{VX3}, v{VXA}
            v_add_u32 v{VX3+1}, {9216 - 1024}, v{VXB}
            v_add_u32 v{VX3+2}, {2*(9216 - 1024)}, v{VXA}
            s_lshl_b32 s4, s74, 19
            s_add_u32 s4, s4, s52
            s_lshl_b32 s5, s74, 7
            s_add_u32 s5, s5, s53
            s_sub_u32 s74, 9, s74""")
    WR = lambda c, j: ar(((c - 3)*8 + j)*4, 4)
    XR = lambda c, i: ar(192 + ((c-3)*3 + i)*4, 4) if (c-3)*3 + i < 16 else vr(40 + ((c-3)*3 + i - 16)*4, 4)
    def regstage(c):
        Gs = []
        for j in range(8):
            Gs.append(("s_add_u32 s4, s4, 262144\n" if j == 4 else "") + f"buffer_load_dwordx4 {WR(c,j)}, v{VW4 + j % 4}, s[20:23], s4 offen offset:{(j % 4)*1024}{P(opt.wp[0])} ; @s{c}")
        for i in range(3):
            g = ("s_add_u32 s4, s4, 262144\n" if i == 0 else "") + f"buffer_load_dwordx4 {XR(c,i)}, v{VX3 + i}, s[16:19], s5 offen offset:{i*1024}{P(opt.wp[1])} ; @s{c}"
            if i == 2: g += f"\ns_add_u32 s5, s5, 128\ns_sub_u32 s74, s74, 1\ns_cmp_lg_u32 s74, 0\ns_cbranch_scc1 L_nw{c}\nRAW s_mov_b32 s4, s52\nRAW s_mov_b32 s5, s53\nLABEL L_nw{c}"
            Gs.append(g)
        return Gs
    def regwrite(c):
        return [f"WAITVM s{c}"] + [f"ds_write_b128 v48, {WR(c,j)} offset:{(c % 2)*SLOT + j*1024}" for j in range(8)] + \
               [f"ds_write_b128 v49, {XR(c,i)} offset:{(c % 2)*12288 + i*1024}" for i in range(3)]
    def stage(c):
        buf = c % 3; Gs = []
        if c >= 3: return regstage(c)
        for j in range(8):
            g = [f"s_add_u32 m0, s37, {buf*SLOT}", "s_nop 0"] if j == 0 else [f"s_add_u32 m0, s37, {buf*SLOT + 4096}", "s_add_u32 s4, s4, 262144"] if j == 4 else []
            Gs.append("\n".join(g + [f"buffer_load_dwordx4 v{VW4 + j % 4}, s[20:23], s4 offen offset:{(j % 4)*1024}{P(opt.wp[0])} lds ; @s{c}"]))
        for i in range(3):
            g = [f"s_add_u32 m0, s55, {XS + buf*12288}", "s_add_u32 s4, s4, 262144"] if i == 0 else []
            g += [f"buffer_load_dwordx4 v{VX3 + i}, s[16:19], s5 offen offset:{i*1024}{P(opt.wp[1])} lds ; @s{c}"]
            if i == 2: g += ["s_add_u32 s5, s5, 128", "s_sub_u32 s74, s74, 1", f"s_cbranch_scc0 L_nw{c}", ]
            Gs.append("\n".join(g))
        Gs[-1] = Gs[-1].replace(f"s_sub_u32 s74, s74, 1\ns_cbranch_scc0 L_nw{c}", f"s_sub_u32 s74, s74, 1\ns_cmp_lg_u32 s74, 0\ns_cbranch_scc1 L_nw{c}\nRAW s_mov_b32 s4, s52\nRAW s_mov_b32 s5, s53\nLABEL L_nw{c}")
        return Gs
    stamp(a, 'ka', opt)
    wtouch = [x.strip() for x in """s_lshr_b32 s3, s2, 3
            s_lshl_b32 s3, s3, 2
            s_add_u32 s3, s3, s28
            s_mul_i32 s3, s3, 9216
            s_mul_i32 s47, s30, 1179648
            v_lshlrev_b32 v24, 7, v1
            v_add_u32 v24, s3, v24
            v_add_u32 v25, 8192, v24
            v_cmp_gt_u32 s[70:71], 8, v1
            v_cndmask_b32 v25, -1, v25, s[70:71]""".split("\n")]
    wtouch = ["\n".join(wtouch + ["buffer_load_dword v23, v24, s[60:63], s47 offen ; @junk"]), "s_mul_i32 s47, s30, 1179648\nbuffer_load_dword v23, v25, s[60:63], s47 offen ; @junk"]
    if opt.wot is not None: srd(a, 60, "s76", "s77", 4718592)
    if opt.wot == 'a': emit(a, wtouch)
    emit(a, stage(0))
    if opt.kvtlb:
        a.e(f"""s_mov_b32 s10, {1 << 26}
                s_mov_b32 s11, 0x20000
                s_mov_b32 s14, {1 << 26}
                s_mov_b32 s15, 0x20000
                s_lshl_b32 s3, s31, 5
                s_add_u32 s3, s3, s33
                s_add_u32 s3, s3, s7
                s_lshl_b32 s3, s3, 18
                v_and_b32 v24, 3, v1
                v_lshlrev_b32 v24, 16, v24
                buffer_load_dword v23, v24, s[8:11], s3 offen nt ; @junk
                buffer_load_dword v23, v24, s[12:15], s3 offen nt ; @junk""")
    if opt.wot == 'b': emit(a, wtouch)
    stamp(a, 'i0', opt)
    srd(a, 56, "s80", "s81", 256)
    a.e("""s_lshl_b32 s3, s2, 8
           v_add_u32 v106, s3, v0
           v_min_u32 v106, 1, v106
           v_lshlrev_b32 v106, 12, v106
           v_mov_b32 v107, s75
           buffer_store_dword v107, v106, s[56:59], 0 offen sc1""")
    emit(a, stage(1))
    if opt.wot == 'c': emit(a, wtouch)
    for d in (8, 12): a.e(f"s_mov_b32 s{d+2}, {1 << 26}\ns_mov_b32 s{d+3}, 0x20000")
    srd(a, 24, "s72", "s73", WS_BYTES)
    srd(a, 60, "s76", "s77", 4718592)
    a.e(f"""v_lshrrev_b32 v{H}, 5, v1
            v_and_b32 v{L31}, 31, v1
            v_lshrrev_b32 v{R}, 2, v{L15}
            v_and_b32 v{C4}, 3, v1
            v_lshl_add_u32 v59, v{H}, 3, v{R}
            v_lshlrev_b32 v59, 7, v59
            v_lshrrev_b32 v60, 1, v{R}
            v_lshl_add_u32 v59, v60, 6, v59
            v_lshl_add_u32 v59, v{G1}, 5, v59
            v_lshl_add_u32 v59, v{C4}, 3, v59
            v_add_u32 v{AW}, s37, v59
            v_xor_b32 v{AW+1}, 64, v{AW}
            v_bfe_u32 v60, v1, 1, 3
            v_xor_b32 v60, v60, v{H}
            v_lshlrev_b32 v60, 4, v60
            v_lshl_add_u32 v60, v{L31}, 7, v60
            v_add_u32 v{AX}, {XS}, v60""")
    for s in range(1, 4): a.e(f"v_xor_b32 v{AX+s}, {32*s}, v{AX}")
    a.e(f"""s_lshl_b32 s3, s28, 2
            s_add_u32 s3, s3, {TOP + 3072}
            v_mov_b32 v{VFO}, s3
            v_xor_b32 v{VFP}, 4, v{VFO}
            v_mov_b32 v61, 0
            ds_write_b32 v{VFO}, v61
            ds_write_b32 v{VFO}, v61 offset:16
            s_mov_b32 s44, 0
            s_mov_b32 s45, 0""")
    a.e(f"""v_lshlrev_b32 v49, 4, v1
            v_add_u32 v48, s37, v49
            s_add_u32 s3, s55, {XS}
            v_add_u32 v49, s3, v49
            s_lshl_b32 s54, s28, 13
            s_add_u32 s54, s54, {SV}""")
    def frag_reads(c, s, F):
        buf = c if c < 3 else c % 2
        L = [f"ds_read_b64_tr_b16 {vr(F + db*4 + k*2, 2)}, v{AW+db} offset:{buf*SLOT + (16*s + 4*k) * 128}" for db in range(2) for k in range(2)]
        return L + [f"ds_read_b128 {vr(F + 8 + qb*4, 4)}, v{AX+s} offset:{buf*12288 + qb*4096}" for qb in range(3)]
    setup = f"""v_lshlrev_b32 v26, 8, v{G}
            v_xor_b32 v27, v{L15}, v{G}
            v_lshl_add_u32 v{VOFFK}, v27, 4, v26
            v_xor_b32 v{VOFFK+1}, 64, v{VOFFK}
            v_xor_b32 v{VOFFK+2}, 128, v{VOFFK}
            v_xor_b32 v{VOFFK+3}, 192, v{VOFFK}
            v_lshlrev_b32 v27, 2, v{G}
            v_xor_b32 v27, v{L15}, v27
            v_lshl_add_u32 v{VOFFV}, v27, 4, v26
            s_lshl_b32 s3, s6, 13
            s_add_u32 s33, s33, s7
            s_lshl_b32 s34, s31, 5
            s_add_u32 s34, s34, s33
            s_lshl_b32 s34, s34, 18
            s_add_u32 s34, s34, s3"""
    if opt.rot:
        setup += """
            s_lshl_b32 s3, s2, 2
            s_add_u32 s3, s3, s7
            s_mul_i32 s3, s3, 0x1e3779b1
            s_lshr_b32 s47, s3, 15
            s_xor_b32 s3, s3, s47
            s_mul_i32 s3, s3, 0x2c1b3c6d
            s_lshr_b32 s3, s3, 20
            s_and_b32 s3, s3, 15
            s_lshl_b32 s35, s3, 14"""
    else: setup += "\ns_mov_b32 s35, 0"
    setup += f"""
            s_mov_b32 s36, s35
            s_mov_b32 s69, s35
            v_lshlrev_b32 v50, 7, v1
            v_xor_b32 v27, v{H}, v{L15}
            v_lshlrev_b32 v27, 4, v27
            v_lshl_add_u32 v27, v{L31}, 8, v27
            v_add_u32 v{VKA}, s37, v27"""
    for s in range(1, 8): setup += f"\nv_xor_b32 v{VKA+s}, {32*s}, v{VKA}"
    setup += f"""
            v_lshl_add_u32 v28, v{H}, 2, v{R}
            v_lshlrev_b32 v28, 8, v28
            v_lshl_add_u32 v28, v{R}, 6, v28
            v_lshl_add_u32 v28, v{G1}, 5, v28
            v_lshl_add_u32 v28, v{C4}, 3, v28
            s_lshl_b32 s47, s6, 7
            v_xor_b32 v28, s47, v28
            v_add_u32 v{VVA}, s37, v28"""
    for db in range(1, 4): setup += f"\nv_xor_b32 v{VVA+db}, {64*db}, v{VVA}"
    setup += "\nv_add_u32 v28, s54, v28"
    for db in range(1, 4): setup += f"\nv_xor_b32 v{28+db}, {64*db}, v28"
    setup += f"\ns_mov_b32 s42, {f2u(CSC):#x}\ns_mov_b32 s43, {f2u(THR_LOG2):#x}"
    for qb in range(3): setup += f"\nv_mov_b32 v{LSUM+qb}, 0"
    setup = [x.strip() for x in setup.split("\n")]
    VO, VL16, AD, VOL = 93, 102, 103, 107
    def vo_calc(dst, rev):
        L = []
        for i in range(9):
            L += [f"v_add_u32 v80, {64*i}, v1", "v_mul_u32_u24 v28, 58255, v80", "v_lshrrev_b32 v28, 20, v28", "v_mul_u32_u24 v83, 18, v28",
                  "v_sub_u32 v83, v80, v83", "v_xor_b32 v29, 1, v83", "v_sub_u32 v29, 17, v29"]
            if rev == "vcc": L += ["v_cndmask_b32 v29, v83, v29, s[70:71]"]
            L += ["v_mul_u32_u24 v28, 1152, v28", f"v_lshl_add_u32 v{dst+i}, v29, 4, v28"]
        return L
    setup2 = ["s_cmp_eq_u32 s7, 1\ns_cselect_b64 s[70:71], -1, 0"] + vo_calc(VO, "vcc") + [x.strip() for x in f"""v_lshlrev_b32 v{VL16}, 4, v1
            v_lshlrev_b32 v80, 4, v{H}
            v_lshl_add_u32 v80, v{G1}, 2, v80
            v_add_u32 v80, v80, v{R}
            v_mul_u32_u24 v80, 288, v80
            v_lshl_add_u32 v80, v{C4}, 3, v80
            s_mul_i32 s3, s7, 18432
            v_add_u32 v{AD+1}, s3, v80
            v_add_u32 v{AD}, {SB[0]}, v{AD+1}
            v_lshlrev_b32 v{VOL}, 10, v{G1}
            v_lshl_add_u32 v{VOL}, v{H}, 8, v{VOL}
            v_lshl_add_u32 v{VOL}, v{L15}, 4, v{VOL}
            v_mov_b32 v108, 0
            s_mul_i32 s67, s30, 1179648
            s_mul_i32 s3, s32, 288
            s_add_u32 s64, s67, s3              ; wo: rows of the octet, columns 144p..
            s_lshl_b32 s39, s29, 3
            s_add_u32 s39, s39, s31""".split("\n")]
    setW = ["s_lshl_b32 s66, s32, 1", "s_mul_i32 s65, s28, 9216", f"s_mul_i32 s68, s28, {32*1152}", "s_add_u32 s68, s68, s64"]
    def arrive(): a.e(f"s_add_u32 s44, s44, 1\nv_mov_b32 v{VD}, s44\nds_write_b32 v{VFO}, v{VD}")
    def psync(arrived=False):
        psync.n += 1; n = psync.n
        if not arrived: arrive()
        a.e("s_mov_b32 s47, 0x400000")
        a.label(f"L_ps{n}")
        a.e(f"""ds_read_b32 v{VD}, v{VFP}
                s_sub_u32 s47, s47, 1
                s_waitcnt lgkmcnt(0)
                v_readfirstlane_b32 s3, v{VD}
                s_cmp_eq_u32 s47, 0
                s_cselect_b32 s3, s44, s3
                s_cmp_lt_u32 s3, s44
                s_cbranch_scc1 L_ps{n}""")
    psync.n = 0
    def other_pair(name, word, val, T=84):
        a.e(f"v_mov_b32 v{T+2}, {TOP + 3072 + word}\ns_mov_b32 s47, 0x400000")
        a.label(name)
        a.e(f"""s_sleep 2
                ds_read_b64 v[{T}:{T+1}], v{T+2}
                s_sub_u32 s47, s47, 1
                s_waitcnt lgkmcnt(0)
                v_min_u32 v{T}, v{T}, v{T+1}
                v_readfirstlane_b32 s3, v{T}
                s_cmp_eq_u32 s47, 0
                s_cselect_b32 s3, {val}, s3
                s_cmp_lt_u32 s3, {val}
                s_cbranch_scc1 {name}""")

    ACC = 112
    def qwrite(blocks, dreg, area, extra=()):
        a.e(f"""v_xor_b32 v55, {dreg}, v{L15}
                v_lshlrev_b32 v55, 4, v55
                v_lshl_add_u32 v55, v{L31}, 8, v55
                v_lshl_add_u32 v55, v{H}, 3, v55
                v_add_u32 v55, {area}, v55
                v_mov_b32 v62, s42""")
        for db in range(blocks):
            for i in range(4):
                a.e(f"v_xor_b32 v54, {(4*db + i)*16}, v55")
                if extra: emit(a, [extra[4*db + i]])
                for qb in range(3):
                    r = ACC + (db*3 + qb)*16 + 4*i; tq = 56 + 2 * qb
                    a.e(f"""v_pk_mul_f32 v[{r}:{r+1}], v[{r}:{r+1}], v[62:63] op_sel_hi:[1,0]
                            v_pk_mul_f32 v[{r+2}:{r+3}], v[{r+2}:{r+3}], v[62:63] op_sel_hi:[1,0]
                            v_cvt_pk_bf16_f32 v{tq}, v{r}, v{r+1}
                            v_cvt_pk_bf16_f32 v{tq+1}, v{r+2}, v{r+3}
                            ds_write_b64 v54, v[{tq}:{tq+1}] offset:{qb*8192}""")
    def qread(area):
        a.e(f"s_sub_u32 s3, {area}, s37")
        for s in range(8): a.e(f"v_add_u32 v{32+s}, s3, v{VKA+s}")
        for qb in range(3):
            for s in range(8): a.e(f"ds_read_b128 {vr(Qreg(qb,s),4)}, v{32+s} offset:{qb*8192}")
    FA, FB = 208, 228
    a.wait(vmtags=["s0"], lg0=True); a.e("s_barrier")
    stamp(a, "q0", opt)
    emit(a, frag_reads(0, 0, FA))
    sl = [[] for _ in range(216 + 24)]
    spread(sl, [x for c in range(2, 9 - opt.rlate) for x in stage(c)], 0, opt.rspan)
    spread(sl, setup, 6, 64)
    for c in range(9):
        for s in range(4):
            F, nF = (FA, FB) if s % 2 == 0 else (FB, FA)
            k0 = (c*4 + s) * 6
            if s == 3:
                a.wait(vmtags=[f"s{c+1}"] if c < 2 else [], lg0=True); a.e("s_barrier")
                stamp(a, f"c{c}", opt)
                if 1 <= c <= 6: spread(sl, regwrite(c + 2), k0 + (opt.wdel if c == 1 else 1), k0 + 22)
                if c == 2 and opt.rwait is not None:
                    p0 = max(k0, opt.rspan + opt.rwait); sl[p0].append("WAITVM s8")
                    spread(sl, dma_unit(0, opt) + dma_unit(1, opt), p0, p0 + opt.kspan)
                elif c == 2: spread(sl, dma_unit(0, opt) + [x for k in range(9 - opt.rlate, 9) for x in stage(k)] + dma_unit(1, opt), max(k0, opt.rspan), max(k0, opt.rspan) + opt.kspan)
                if c == 7: spread(sl, dma_unit(2, opt), k0, k0 + 18)
                for u in opt.touch.get(c, []):
                    sl[k0 + 20].append(f"s_add_u32 s47, s69, {(u // 2) * 16384}\ns_and_b32 s47, s47, 0x3ffff\ns_add_u32 s47, s47, s34\n" +
                                       f"buffer_load_dword v51, v50, {'s[8:11]' if u % 2 == 0 else 's[12:15]'}, s47 offen nt ; @junk")
                if opt.wot == c: spread(sl, wtouch, k0 + 12, k0 + 22)
                if opt.ctouch == c:
                    sl[k0 + 6].append("s_getpc_b64 s[70:71]\nLABEL L_pc\nv_lshlrev_b32 v24, 7, v0\nv_add_u32 v24, L_qcode-L_pc, v24\nv_min_u32 v24, L_end-L_pc-4, v24\nglobal_load_dword v23, v24, s[70:71] ; @junk")
            rd = (frag_reads(c + 1, 0, nF) if c < 8 else []) if s == 3 else frag_reads(c, s + 1, nF)
            if opt.qlev:
                for k, x in enumerate(rd): sl[k0 + (0, 0, 1, 1, 2, 3, 4)[k]].insert(0, x)
                a.wait(lgregs=regs_of(vr(F, 20)))
            else: emit(a, rd)
            i = 0
            for db in range(2):
                for qb in range(3):
                    d = vr(ACC + (db*3 + qb)*16, 16)
                    emit(a, [f"v_mfma_f32_32x32x16_bf16 {d}, {vr(F+db*4,4)}, {vr(F+8+qb*4,4)}, " + ("0" if (c == 0 and s == 0) else d)] + sl[k0 + i]); i += 1
    assert not any(sl[216:])
    a.label("L_qcode")
    a.e("s_lshl_b32 s3, s6, 3\ns_cmp_eq_u32 s7, 1\ns_cbranch_scc1 L_qy")
    sv = save(a)
    qwrite(2, "s3", XS, () if opt.u3late else dma_unit(3, opt))
    a.e("s_waitcnt lgkmcnt(0)\ns_barrier")
    qread(XS)
    if opt.u3late: emit(a, dma_unit(3, opt))
    a.e("s_waitcnt lgkmcnt(0)\ns_barrier\ns_branch L_qdone")
    a.label("L_qy"); load(a, sv)
    emit(a, dma_unit(3, opt))
    a.e("s_barrier\ns_barrier\ns_lshl_b32 s3, s6, 3")
    qwrite(2, "s3", XS)
    a.e("s_waitcnt lgkmcnt(0)"); psync()
    qread(XS)
    a.label("L_qdone")
    stamp(a, "qx", opt)
    a.wait(vmtags=["u0"], lg0=True)
    emit(a, kreads(0))
    stamp(a, "k0", opt)
    a.e(f"""v_mov_b32 v26, {TOP + 3072 + 16}
            s_cmp_eq_u32 s7, 1
            s_cselect_b32 s50, {round(opt.thr1 * 16)}, 0
            s_cselect_b32 s38, {round((opt.thr0 + opt.thr1) * 16)}, -1""")
    if not opt.hold: a.e("s_lshl_b32 s50, s7, 1\ns_add_u32 s50, s50, 2\ns_sub_u32 s50, s50, s29\ns_mov_b32 s38, s50" + ("\ns_mov_b32 s50, 0" if opt.free01 else ""))
    if opt.acct: a.e(f"s_mov_b64 s[98:99], s[{STB}:{STB+1}]\ns_mov_b64 s[100:101], s[{STB}:{STB+1}]\ns_mov_b64 s[92:93], s[{STB}:{STB+1}]")
    def wpieces(tag, head, rows, lds, voreg):
        Gs = []
        for i in range(9):
            g = [f"s_add_u32 s4, s66, {head}", "s_and_b32 s4, s4, 7", f"s_mul_i32 s4, s4, {128*1152}", "s_add_u32 s4, s4, s68",
                 f"s_add_u32 s4, s4, {rows*1152}"] if i == 0 else []
            g += [f"s_add_u32 m0, s65, {lds + i*1024}", f"buffer_load_dwordx4 v{voreg+i}, s[60:63], s4 offen{opt.wopol} lds ; @{tag}"]
            Gs.append("\n".join(g))
        return Gs
    HEAD = (0, 2, 4, 6, 1, 3, 5, 7)
    NX = opt.nx
    BUFOF = [st % 2 for st in range(NX + 2)] + [2, 3]
    while len(BUFOF) < 8: BUFOF.append(BUFOF[len(BUFOF) - 4])
    wS = lambda st: wpieces(f"w{st}", HEAD[st], 0, SB[BUFOF[st]], VO)
    wX = lambda st, VOR: wpieces(f"w{st}", HEAD[st], 0, SB[BUFOF[st]], VO) + wpieces(f"w{st}", HEAD[st], 64, SB[BUFOF[st]] + 18432, VOR)
    carry = tile_body(a, opt, 0, [])
    carry = tile_body(a, opt, 1, carry, extra=[(setup2 + setW, 0, 41)])
    carry1 = [[x.replace('L_sk1_', 'L_sk4_') for x in y] for y in carry]
    if opt.unroll:
        for t in range(2, 14):
            stamp(a, f'r{t}', opt); carry = tile_body(a, opt, t, carry)
    else:
        stamp(a, "l0", opt)
        a.e("s_mov_b32 s46, 4")
        a.raw(".p2align 6"); a.label("L_tile")
        keep = list(a.vm)
        if opt.firstfree: a.e("s_cmp_eq_u32 s46, 4\ns_cselect_b32 s50, 0, s38")
        elif opt.free01: a.e("s_mov_b32 s50, s38")
        if not opt.hold: a.e(f"s_cmp_eq_u32 s7, 0\ns_cselect_b32 s3, {2*opt.last[0]}, {2*opt.last[1]}\ns_cmp_gt_u32 s46, 1\ns_cselect_b32 s50, s50, s3")
        if opt.late:
            a.e(f"""s_lshl_b32 s3, s7, 3
                    s_add_u32 s3, s3, s46
                    s_cmp_lg_u32 s3, {opt.late}
                    s_cbranch_scc1 L_nolate
                    s_lshr_b32 s3, s2, 3
                    s_lshl_b32 s3, s3, 1
                    s_add_u32 s3, s3, s6
                    s_mul_i32 s3, s3, 18432
                    v_lshlrev_b32 v84, 7, v1
                    v_add_u32 v84, s3, v84
                    v_add_u32 v85, 8192, v84
                    v_add_u32 v86, 16384, v84
                    v_cmp_gt_u32 vcc, 16, v1
                    v_cndmask_b32 v86, -1, v86, vcc""")
            emit(a, [f"buffer_load_dword v87, v{r}, s[60:63], s67 offen{opt.tpol} ; @junk" for r in (84, 85, 86)])
            a.label("L_nolate")
        if opt.tlb:
            a.e(f"""s_cmp_lg_u32 s46, {opt.tlb}
                    s_cbranch_scc1 L_notlb
                    s_lshl_b32 s3, s39, 2
                    s_add_u32 s4, s3, s30
                    s_mul_i32 s4, s4, {8*24576}
                    v_mov_b32 v84, s4
                    s_add_u32 s4, s4, {8*24576 - 128}
                    v_writelane_b32 v84, s4, 1
                    s_add_u32 s3, s3, s32
                    s_mul_i32 s4, s3, {4*36864}
                    s_add_u32 s4, s4, {WS_P}
                    v_writelane_b32 v84, s4, 2
                    s_add_u32 s4, s4, {4*36864 - 128}
                    v_writelane_b32 v84, s4, 3
                    s_mov_b32 s4, {WS_F + 65536 - 128}
                    v_writelane_b32 v84, s4, 4
                    s_mul_i32 s4, s31, {96*2304}
                    v_mov_b32 v85, s4
                    s_add_u32 s4, s4, {96*2304 - 128}
                    v_writelane_b32 v85, s4, 1
                    s_mov_b64 s[16:17], s[78:79]
                    s_mov_b32 s18, 1769472
                    buffer_load_dword v87, v84, s[24:27], 0 offen nt ; @junk
                    buffer_load_dword v87, v85, s[16:19], 0 offen nt ; @junk""")
            a.label("L_notlb")
        a.vm = keep
        for t in (2, 3, 4): carry = tile_body(a, opt, t, carry)
        assert carry == carry1
        a.e("s_sub_u32 s46, s46, 1\ns_cmp_lg_u32 s46, 0\ns_cbranch_scc1 L_tile")
        for o in a.vm:
            if o.tag and o.tag[0] == "u": o.tag = f"u{int(o.tag[1:]) + 18}"
    stamp(a, "l1", opt)
    raw = lambda L: "\n".join(("LABEL " + y[6:] if y.startswith("LABEL ") else "RAW " + y) for x in L for y in x.split("\n"))
    w0blk = "s_cmp_eq_u32 s7, 1\ns_cbranch_scc1 L_now0\n" + raw([f"""v_mov_b32 v83, {TOP + 3072 + 16}
s_mov_b32 s47, 0x400000
LABEL L_yq
ds_read_b128 v[84:87], v83
s_sub_u32 s47, s47, 1
s_waitcnt lgkmcnt(0)
v_min3_u32 v84, v84, v85, v86
v_min_u32 v84, v84, v87
s_nop 1
v_readfirstlane_b32 s3, v84
s_nop 1
s_cmp_eq_u32 s47, 0
s_cselect_b32 s3, 1, s3
s_cmp_lt_u32 s3, 1
s_cbranch_scc1 L_yq"""] + [x.replace("buffer_load", "s_nop 0\nbuffer_load") for x in wX(0, VO)]) + "\nLABEL L_now0"
    W0 = lambda t: [([w0blk], opt.w0at[1], opt.w0at[1] + 1)] if opt.w0at and opt.w0at[0] == t else []
    carry = tile_body(a, opt, 14, carry, extra=W0(14))
    xo = lambda k: (k // 8) * SLOT + (k % 8) * 1024
    def send(qb):
        return [f"ds_write_b128 v28, {ar(Oacc(2+i,qb) + 4*g, 4)} offset:{xo((i*3 + qb)*4 + g)}" for i in range(2) for g in range(4)]
    accr = lambda qb: [f"v_accvgpr_read_b32 v{160 + (i*3+qb)*16 + r}, a{Oacc(i,qb) + r}" for i in range(2) for r in range(16)]
    pre = ["buffer_load_dword v106, v108, s[56:59], 0 offen sc1 ; @tag",
           f"v_add_u32 v28, s37, v{VL16}", "s_lshl_b32 s3, s6, 14\ns_sub_u32 s3, 8192, s3", "v_add_u32 v29, s3, v28",
           f"s_mul_i32 s3, s28, 768\ns_add_u32 s3, s3, {TOP}", f"v_lshlrev_b32 v30, 3, v{L31}", "v_add_u32 v30, s3, v30",
           f"s_xor_b32 s3, s28, 1\ns_mul_i32 s3, s3, 768\ns_add_u32 s3, s3, {TOP}", f"v_lshlrev_b32 v31, 3, v{L31}", "v_add_u32 v31, s3, v31"]
    team = "v_and_b32 v13, 3, v1\nv_lshlrev_b32 v13, 10, v13\nv_and_b32 v14, 4, v1\nv_add_u32 v13, v13, v14"
    askX = [f"s_andn2_b32 s71, s2, 24\ns_lshl_b32 s71, s71, 7\ns_add_u32 s69, s71, {WS_F}"] + team.split("\n") + ["buffer_load_dword v12, v13, s[24:27], s69 offen sc1"]
    carry = tile_body(a, opt, 15, carry, extra=[(pre, 8, 16), (askX, 28, 34), (send(0), 34, 48)] + W0(15) + ([(accr(0), 33, 44)] if opt.accearly else []))
    sl = [[] for _ in range(8)]
    carry = [x for y in carry for x in y]
    cut = max([i + 1 for i, x in enumerate(carry) if x.startswith(f"v_cvt_pk_bf16_f32 v{Sreg(2,3)},")] + [len(carry) - 16, 0])
    emit(a, carry[:cut])
    spread(sl, carry[cut:], 0, 3)
    st = []
    for qb in range(3): st += [f"v_mov_b32 v{3+2*qb}, v{LSUM+qb}", f"v_mov_b32 v{2+2*qb}, v{NM+16*qb}"]
    for qb in range(3): st += [f"v_permlane32_swap_b32 v{LSUM+qb}, v{3+2*qb}"]
    for qb in range(3): st += [f"v_add_f32 v{3+2*qb}, v{LSUM+qb}, v{3+2*qb}", f"ds_write_b64 v30, v[{2+2*qb}:{3+2*qb}] offset:{qb*256}"]
    spread(sl, st + send(1), 3, 8)
    for m, f in zip(pv(2, False), sl): emit(a, [m] + f)
    stamp(a, "t15", opt)
    emit(a, accr(1)[:12] + send(2))
    emit(a, ([] if opt.accearly else accr(0)) + accr(1)[12:] + accr(2))
    a.e("s_mov_b32 s4, 0x100000")
    a.label("L_tag")
    a.e("""s_waitcnt vmcnt(0)
           v_readfirstlane_b32 s75, v106
           s_cmp_lg_u32 s75, 0
           s_cbranch_scc1 L_tag_ok
           buffer_load_dword v106, v108, s[56:59], 0 offen sc1 ; @junk
           s_sub_u32 s4, s4, 1
           s_cmp_lg_u32 s4, 0
           s_cbranch_scc1 L_tag""")
    a.label("L_tag_ok"); a.vm = []
    a.e(f"""s_lshl_b32 s3, s39, 5
            s_add_u32 s3, s3, s33
            s_mul_i32 s52, s3, 24576
            s_mul_i32 s3, s6, 12288
            s_add_u32 s52, s52, s3
            s_waitcnt lgkmcnt(0)""")
    if opt.earr: arrive()
    ACC, WF, OF = 112, 16, 0
    def ask(base, lanes):
        a.e(f"s_add_u32 s69, {base}, {WS_F}\n{lanes}\nbuffer_load_dword v12, v13, s[24:27], s69 offen sc1")
    def check(tag):
        a.e("s_mov_b32 s4, 0x100000")
        a.label(f"L_poll{tag}")
        a.e(f"""s_waitcnt vmcnt(0)
                v_cmp_ne_u32 vcc, s75, v12
                s_cbranch_vccz L_got{tag}
                s_sleep 1
                buffer_load_dword v12, v13, s[24:27], s69 offen sc1
                s_sub_u32 s4, s4, 1
                s_cmp_lg_u32 s4, 0
                s_cbranch_scc1 L_poll{tag}""")
        a.label(f"L_got{tag}")
        a.e("s_waitcnt vmcnt(0)")
    def wreads(buf, rows, F):
        reg, boff = (AD, AD + 1, 220, 221)[buf], 0
        return [f"ds_read_b64_tr_b16 {vr(F + nb*4 + 2*k, 2)}, v{reg} offset:{boff + (rows + 8*k) * 288 + 32*nb}" for nb in range(9) for k in range(2)]
    def oload(tag, head, db0, nks, dst):
        Gs = []
        for kl in range(nks):
            for j in range(3):
                g = [f"s_add_u32 s47, s66, {head}", "s_and_b32 s47, s47, 7", "s_mul_i32 s47, s47, 24576", "s_add_u32 s47, s47, s37"] + \
                    ([f"s_add_u32 s47, s47, {db0}"] if db0 else []) if kl + j == 0 else ["s_add_u32 s47, s47, 6144"] if j == 0 else []
                Gs.append("\n".join(g + [f"buffer_load_dwordx4 {ar(dst + (kl*3+j)*4, 4)}, v{VL16}, s[24:27], s47 offen offset:{j*1024} sc1 ; @{tag}"]))
        return Gs
    def kstep(F, O, zero, reads, jobs):
        ms = [f"v_mfma_f32_16x16x32_bf16 {vr(ACC + (nb*3+j)*4, 4)}, {vr(F+nb*4,4)}, {ar(O+j*4,4)}, " + ("0" if zero else vr(ACC + (nb*3+j)*4, 4))
              for nb in range(9) for j in range(3)]
        sl = [[] for _ in range(27)]
        spread(sl, reads, 0, 20); spread(sl, jobs, 0, 27)
        a.e("s_waitcnt lgkmcnt(0)")
        for m, f in zip(ms, sl): emit(a, [m] + f)
        return ms
    team = "v_and_b32 v13, 3, v1\nv_lshlrev_b32 v13, 10, v13\nv_and_b32 v14, 4, v1\nv_add_u32 v13, v13, v14"
    a.e(f"""s_lshl_b32 s3, s2, 7
            s_lshl_b32 s4, s28, 2
            s_add_u32 s70, s3, s4
            s_add_u32 s70, s70, {WS_F}
            s_lshl_b32 s3, s39, 2
            s_add_u32 s3, s3, s30
            s_mul_i32 s37, s3, {8*24576}
            s_mul_i32 s4, s6, 3072
            s_add_u32 s37, s37, s4
            s_mul_i32 s4, s7, 12288
            s_add_u32 s37, s37, s4
            s_add_u32 s37, s37, {WS_O}
            s_mov_b32 s45, 0
            s_cmp_eq_u32 s7, 0
            s_cbranch_scc1 L_noearly
            v_cmp_ne_u32 vcc, s75, v12
            s_cbranch_vccnz L_noearly
            s_mov_b32 s45, 1""")
    for st in range(NX, 4): emit(a, oload(f"o{st}", HEAD[st], 0, 2, 24*st))
    a.label("L_noearly"); a.vm = []
    a.e(f"v_sub_u32 v27, v29, v{VL16}\nv_add_u32 v27, v27, v{VOL}")
    psync(opt.earr)
    stamp(a, "c_bar", opt)
    for qb in range(3): a.e(f"ds_read_b64 v[{8+2*qb}:{9+2*qb}], v31 offset:{qb*256}")
    RC = (32, 48, 64, 112, 128, 144)
    def recv(blk):
        for g in range(4): a.e(f"ds_read_b128 {vr(RC[blk]+4*g,4)}, v29 offset:{xo(blk*4 + g)}")
    recv(0); recv(1)
    SC = 16
    for qb in range(3):
        pn, pl, on, ol = 8 + 2*qb, 9 + 2*qb, 2 + 2*qb, 3 + 2*qb
        a.auto(f"v_min_f32 v22, v{on}, v{pn}")
        a.e(f"""v_sub_f32 v23, v22, v{on}
                v_sub_f32 v24, v22, v{pn}
                v_exp_f32 v23, v23
                v_exp_f32 v24, v24
                v_mul_f32 v{ol}, v{ol}, v23
                v_fmac_f32 v{ol}, v{pl}, v24
                v_rcp_f32 v{ol}, v{ol}
                v_mul_f32 v{SC+2*qb}, v23, v{ol}
                v_mul_f32 v{SC+2*qb+1}, v24, v{ol}""")
    recv(2); recv(3); recv(4); recv(5)
    for blk in range(6):
        i, qb = divmod(blk, 3)
        K = 160 + blk*16; Rr = RC[blk]
        a.wait(lgregs=regs_of(vr(Rr, 16)))
        for r in range(0, 16, 2):
            a.e(f"v_pk_mul_f32 v[{Rr+r}:{Rr+r+1}], v[{Rr+r}:{Rr+r+1}], v[{SC+2*qb}:{SC+2*qb+1}] op_sel:[0,1] op_sel_hi:[1,1]")
        for r in range(0, 16, 2):
            a.e(f"v_pk_fma_f32 v[{K+r}:{K+r+1}], v[{K+r}:{K+r+1}], v[{SC+2*qb}:{SC+2*qb+1}], v[{Rr+r}:{Rr+r+1}] op_sel_hi:[1,0,1]")
        for j in range(8):
            a.e(f"v_cvt_pk_bf16_f32 v{K+8*(j//4)+j%4}, v{K+2*j}, v{K+2*j+1}")
        a.e(f"s_add_u32 s47, s52, {WS_O + (i*6 + 2*qb)*1024}")
        for s in range(2):
            a.e(f"buffer_store_dwordx4 {vr(K+8*s,4)}, v{VOL}, s[24:27], s47 offen offset:{512*s} sc1")
            a.e(f"ds_write_b128 v27, {vr(K+8*s,4)} offset:{xo(i*6 + 2*qb) + 512*s}")
    stamp(a, "comb", opt)
    a.e("v_mov_b32 v14, s75\ns_cmp_eq_u32 s7, 1\ns_cbranch_scc1 L_tailY")
    stT = save(a)
    if not opt.w0at: other_pair("L_yq", 24, 1)
    if NX == 0:
        VOR = 224
        a.e("s_waitcnt vmcnt(0)\nbuffer_store_dword v14, v108, s[24:27], s70 offen sc1")
        emit(a, vo_calc(VOR, "rev") + wX(0, VOR))
        a.e("s_waitcnt lgkmcnt(0)"); psync()
        emit(a, wX(1, VOR))
        ask("s71", team); check("A"); stamp(a, "chkA", opt)
    else:
        if not opt.w0at: emit(a, wX(0, VO))
        a.e(f"""s_waitcnt vmcnt(0)
                buffer_store_dword v14, v108, s[24:27], s70 offen sc1
                v_add_u32 v3, 8192, v{VL16}
                s_waitcnt lgkmcnt(0)""")
        psync()
        a.e("s_cmp_eq_u32 s6, 1\ns_cbranch_scc1 L_x1")
        sv = save(a)
        for qh in range(2):
            if qh: a.label("L_x1"); load(a, sv)
            for db in range(4):
                for j in range(3): a.e(f"ds_read_b128 {ar(192 + (db*3+j)*4, 4)}, v{3 if db < 2 else VL16} offset:{xo((db % 2)*6 + 3*qh + j)}")
            if qh == 0: a.e("s_branch L_x2")
        a.label("L_x2")
        VOR = 224
        emit(a, vo_calc(VOR, "rev"))
        a.wait(vmtags=["w0"], lg0=True); psync()
        emit(a, wreads(0, 0, WF))
        RS = (192, 0, 48 if NX == 4 else 192, 192)
        wN = lambda st: wX(st, VO if st < NX else VOR)
        xl = lambda st: oload(f"x{st}", HEAD[st], 0, 4, RS[st])
        ask("s71", team)
        for st in range(NX):
            b = BUFOF[st]
            w = wN(1) if st == 0 else []
            if st >= 1: a.wait(vmtags=[f"x{st}"])
            kstep(WF, RS[st], st == 0, wreads(b, 32, WF + 36), w[:9])
            kstep(WF + 36, RS[st] + 12, False, wreads(b, 64, WF), w[9:])
            j = []
            if st == 0:
                check("A"); stamp(a, "chkA", opt)
                for k in range(1, NX):
                    if RS[k] != 192: j += xl(k)
            kstep(WF, RS[st] + 24, False, wreads(b, 96, WF + 36), j)
            a.wait(vmtags=[f"w{st+1}"], lg0=True); psync()
            kstep(WF + 36, RS[st] + 36, False, wreads(BUFOF[st + 1], 0, WF) if st + 1 < NX else [], wN(st + 2))
            if st == 0:
                for k in range(1, NX):
                    if RS[k] == 192: emit(a, xl(k))
    for st in range(NX, 4): emit(a, oload(f"o{st}", HEAD[st], 0, 2, 24*st))
    a.e("s_waitcnt vmcnt(0)\ns_branch L_join")
    a.label("L_tailY"); load(a, stT)
    a.e("s_cmp_eq_u32 s45, 1\ns_cbranch_scc1 L_hadearly")
    sv = save(a)
    ask("s71", team); check("Y")
    a.vm = list(sv[2])
    for st in range(NX, 4): emit(a, oload(f"o{st}", HEAD[st], 0, 2, 24*st))
    a.label("L_hadearly")
    a.e("s_waitcnt lgkmcnt(0)")
    a.label("L_join"); a.lg = []
    a.e(f"""s_add_u32 s71, s71, 8
            v_add_u32 v220, {SB[2] - SB[1]}, v{AD+1}
            v_add_u32 v221, {SB[3] - SB[1]}, v{AD+1}
            s_mul_i32 s3, s7, -8192
            s_add_u32 s3, s3, {YB + 8192}
            v_add_u32 v2, s3, v{VL16}
            v_mov_b32 v15, s75
            s_barrier""")
    stamp(a, "join", opt)
    emit(a, wreads(BUFOF[NX], 0, WF))
    a.e("s_cmp_eq_u32 s6, 1\ns_cbranch_scc1 L_own1")
    sv = save(a)
    for qh in range(2):
        if qh: a.label("L_own1"); load(a, sv)
        for kl in range(2):
            for j in range(3): a.e(f"ds_read_b128 {ar(96 + (kl*3+j)*4, 4)}, v2 offset:{xo(kl*6 + 3*qh + j)}")
        if qh == 0: a.e("s_branch L_own2")
    a.label("L_own2")
    a.wait(vmtags=[f"o{NX}"])
    a.e("s_cmp_eq_u32 s7, 1\ns_cbranch_scc1 L_fy")
    sv = save(a)
    kstep(WF, 24*NX, NX == 0, wreads(BUFOF[NX], 32, WF + 36), [] if opt.plan2 else wS(NX + 2))
    a.e("s_branch L_fx")
    a.label("L_fy"); load(a, sv)
    kstep(WF, 24*NX, True, wreads(BUFOF[NX], 32, WF + 36), [] if opt.plan2 else wS(NX + 2))
    a.e("s_waitcnt vmcnt(0)\nbuffer_store_dword v15, v108, s[24:27], s70 offen sc1 ; @junk")
    a.label("L_fx"); a.vm = [o for o in a.vm if o.tag == f"w{NX+2}"]
    A = max(NX, min(opt.askat, 4))
    oy = lambda k: oload(f"o{k}", HEAD[k], 0, 2, 24*k)
    plan = {}
    for k in range(NX + 4, 8): plan.setdefault((k - 4, 1) if k - 4 > NX else (NX + 1, 0), []).append(wS(k))
    plan.setdefault((NX, 1), []).append(wS(NX + 3))
    if A <= 3:
        for i, k in enumerate((5, 6, 7)): plan.setdefault((A + (i + 1) // 2, (i + 1) % 2), []).insert(0, oy(k))
    if opt.plan2:
        assert NX == 1 and A == 3
        plan = {(1, 1): [wS(3)], (2, 0): [wS(4)], (2, 1): [wS(5)], (3, 1): [oy(5), oy(6)[:3]], (4, 0): [oy(6)[3:], oy(7)], (4, 1): [wS(6)], (5, 0): [wS(7)]}
    if opt.plan3 == 1: plan = {(1, 1): [wS(3)], (2, 0): [wS(4), wS(5)[:4]], (2, 1): [wS(5)[4:], wS(6)], (3, 1): [oy(5), wS(7)], (4, 0): [oy(6)], (4, 1): [oy(7)]}
    if opt.plan3 == 2: plan = {(1, 1): [wS(3), wS(4)[:4]], (2, 0): [wS(4)[4:], wS(5)], (2, 1): [wS(6)], (3, 1): [oy(5), oy(6)[:3]], (4, 0): [oy(6)[3:], oy(7)], (4, 1): [wS(7)]}
    job = lambda st, kl: [x for y in plan.get((st, kl), []) for x in y]
    def second(st, jobs):
        a.wait(vmtags=[f"w{st+1}"], lg0=True); a.e("s_barrier")
        kstep(WF + 36, 24*st + 12, False, wreads(BUFOF[st + 1], 0, WF), jobs)
    first = lambda st, jobs: kstep(WF, 24*st, False, wreads(BUFOF[st], 32, WF + 36), jobs)
    second(1, job(1, 1)); first(2, job(2, 0)); second(2, job(2, 1))
    ask("s71", team); first(3, [])
    a.e("s_waitcnt vmcnt(0)\nv_cmp_ne_u32 vcc, s75, v12\ns_cbranch_vccnz L_late")
    sv = save(a)
    second(3, job(3, 1)); first(4, job(4, 0)); second(4, job(4, 1))
    a.e("s_branch L_s5"); fast_vm = list(a.vm)
    a.label("L_late"); load(a, sv)
    second(3, job(4, 1))
    if opt.mid:
        a.e("buffer_load_dword v12, v13, s[24:27], s69 offen sc1")
        first(4, [])
        a.e("s_waitcnt vmcnt(0)\nv_cmp_ne_u32 vcc, s75, v12\ns_cbranch_vccnz L_late2")
        sv2 = save(a)
        second(4, oy(5) + oy(6)); emit(a, oy(7))
        a.e("s_branch L_s5")
        a.label("L_late2"); load(a, sv2)
    else: first(4, [])
    a.e("buffer_load_dword v12, v13, s[24:27], s69 offen sc1")
    second(4, [])
    check("B")
    emit(a, oy(5) + oy(6) + oy(7))
    a.label("L_s5")
    assert [o.tag for o in a.vm if o.tag[0] == "o"] == [o.tag for o in fast_vm if o.tag[0] == "o"]
    a.vm = fast_vm
    for st in range(5, 8):
        stamp(a, f"s{st}", opt)
        a.wait(vmtags=[f"o{st}"])
        first(st, job(st, 0))
        if st < 7:
            second(st, job(st, 1))
    a.e(f"""s_lshl_b32 s3, s28, 14
            v_add_u32 v13, s3, v{VL16}
            v_xor_b32 v14, 32768, v13
            s_lshl_b32 s52, s39, 2
            s_add_u32 s52, s52, s32
            s_lshl_b32 s53, s52, 2
            s_add_u32 s53, s53, s30
            s_mul_i32 s53, s53, 40960
            s_mul_i32 s3, s28, 10240
            s_add_u32 s53, s53, s3
            s_add_u32 s47, s53, {WS_P}
            s_waitcnt lgkmcnt(0)
            s_barrier""")
    F, O = WF + 36, 180
    T = lambda nb, j: ACC + (nb*3+j)*4
    ms = [f"v_mfma_f32_16x16x32_bf16 {vr(T(nb,j), 4)}, {vr(F+nb*4,4)}, {ar(O+j*4,4)}, {vr(T(nb,j), 4)}" for nb in (8, 7, 6, 5, 4, 0, 1, 2, 3) for j in range(3)]
    snd = [f"ds_write_b128 v13, {vr(T(nb,j),4)} offset:{((8-nb)*3+j)*1024}" for nb in range(8, 3, -1) for j in range(3)]
    emit(a, ms[:6])
    for k in range(15): emit(a, [ms[6 + k], snd[k]])
    emit(a, ms[21:])
    stamp(a, "gend", opt)
    a.e("s_waitcnt lgkmcnt(0)\ns_barrier")
    stamp(a, "rbar", opt)
    for nb in range(5):
        for j in range(3): a.e(f"ds_read_b128 {vr(WF + (nb*3+j)*4, 4)}, v14 offset:{(nb*3+j)*1024}")
    G0 = 172
    for nb in range(5): a.e(f"v_mov_b32 v{G0+8*nb+3}, s75\nv_mov_b32 v{G0+8*nb+7}, s75")
    for nb in range(5):
        g = G0 + 8*nb
        for j in range(3):
            t, q = T(nb, j), WF + (nb*3+j)*4
            d0, d1 = ((g, g+1), (g+2, g+4), (g+5, g+6))[j]
            a.wait(lgregs=regs_of(vr(q, 4)))
            a.e(f"v_pk_add_f32 v[{t}:{t+1}], v[{t}:{t+1}], v[{q}:{q+1}]\nv_pk_add_f32 v[{t+2}:{t+3}], v[{t+2}:{t+3}], v[{q+2}:{q+3}]")
            a.e(f"v_cvt_pk_bf16_f32 v{d0}, v{t}, v{t+1}\nv_cvt_pk_bf16_f32 v{d1}, v{t+2}, v{t+3}")
            if j: a.e(f"buffer_store_dwordx4 {vr(g + 4*(j-1), 4)}, v{VL16}, s[24:27], s47 offen offset:{(nb % 2)*2048 + (j-1)*1024} sc1")
        if nb % 2: a.e("s_add_u32 s47, s47, 4096")
    stamp(a, "rst", opt)
    a.e(f"""v_and_b32 v10, 15, v1
            v_mul_u32_u24 v10, 2304, v10
            v_lshrrev_b32 v11, 4, v1
            v_lshl_add_u32 v10, v11, 3, v10
            v_and_b32 v13, 3, v1
            v_mul_u32_u24 v13, 40960, v13
            s_mul_i32 s52, s52, {4*40960}
            s_add_u32 s52, s52, {WS_P}
            s_mul_i32 s53, s31, {96*2304}
            s_mul_i32 s3, s29, 1152
            s_add_u32 s53, s53, s3
            s_mul_i32 s3, s32, 288
            s_add_u32 s53, s53, s3
            s_lshl_b32 s54, s30, 2
            s_add_u32 s54, s54, s28""")
    srd(a, 8, "s78", "s79", 1769472)
    def decode(i):
        A, B = 56 + 2*i, 57 + 2*i
        a.e(f"""s_add_u32 s3, s54, {16*i}
                s_cmp_ge_u32 s3, 10
                s_cselect_b32 s4, 1, 0          ; kh
                s_cselect_b32 s5, 10, 0
                s_cselect_b32 s60, 4, 5
                s_sub_u32 s3, s3, s5
                s_cmp_ge_u32 s3, s60
                s_cselect_b32 s5, 1, 0          ; qh
                s_cselect_b32 s60, s60, 0
                s_sub_u32 s3, s3, s60
                s_lshl_b32 s60, s4, 1
                s_add_u32 s60, s60, s5
                s_mul_i32 s60, s60, 10240
                s_lshl_b32 s61, s3, 11
                s_add_u32 s{A}, s60, s61
                s_add_u32 s{A}, s{A}, s52
                s_mul_i32 s{B}, s5, {48*2304}
                s_add_u32 s{B}, s{B}, s53
                s_sub_u32 s60, 8, s3
                s_cmp_eq_u32 s4, 1
                s_cselect_b32 s3, s60, s3
                s_lshl_b32 s3, s3, 5
                s_add_u32 s{B}, s{B}, s3""")
    def units(U):
        n = len(U); pay = (0, 1, 2, 4, 5, 6)
        a.e("s_mov_b32 s4, 0x100000")
        if n == 2: a.e("s_sub_u32 s3, s58, s56\nv_bfe_u32 v11, v1, 2, 1\nv_mul_lo_u32 v11, v11, s3\nv_add_u32 v13, v13, v11")
        a.label(f"L_pp{n}")
        a.e(f"""buffer_load_dword v12, v13, s[24:27], s56 offen offset:2044 sc1
                s_sub_u32 s4, s4, 1
                s_waitcnt vmcnt(0)
                v_cmp_ne_u32 vcc, s75, v12
                s_cbranch_vccz L_pd{n}
                s_cmp_lg_u32 s4, 0
                s_sleep 1
                s_cbranch_scc1 L_pp{n}""")
        a.label(f"L_pd{n}")
        for i in U:
            b = 16 + 32*i
            a.e(f"s_mov_b32 s47, s{56+2*i}")
            for o in range(4):
                a.e(f"buffer_load_dwordx4 {vr(b+8*o,4)}, v{VL16}, s[24:27], s47 offen sc1\nbuffer_load_dwordx4 {vr(b+8*o+4,4)}, v{VL16}, s[24:27], s47 offen offset:1024 sc1")
                if o < 3: a.e("s_add_u32 s47, s47, 40960")
        for i in U:
            b, D = 16 + 32*i, 112 + 16*i
            for o in range(4):
                a.e(f"s_waitcnt vmcnt({8*(n - 1 - i) + 6 - 2*o})")
                a.e(f"v_xor_b32 v{b+8*o+3}, s75, v{b+8*o+3}\nv_xor_b32 v{b+8*o+7}, s75, v{b+8*o+7}")
                a.e(f"v_or_b32 v11, v{b+3}, v{b+7}" if o + i == 0 else f"v_or3_b32 v11, v11, v{b+8*o+3}, v{b+8*o+7}")
                for k, r in enumerate(pay):
                    r += b + 8*o
                    if o == 0: a.e(f"v_lshlrev_b32 v{D+2*k}, 16, v{r}\nv_and_b32 v{D+2*k+1}, 0xffff0000, v{r}")
                    else: a.e(f"v_lshlrev_b32 v{D+12}, 16, v{r}\nv_and_b32 v{r}, 0xffff0000, v{r}\nv_add_f32 v{D+2*k}, v{D+2*k}, v{D+12}\nv_add_f32 v{D+2*k+1}, v{D+2*k+1}, v{r}")
        a.e(f"""v_cmp_ne_u32 vcc, 0, v11
                s_cbranch_vccz L_ok{n}
                s_sub_u32 s4, s4, 1
                s_cmp_gt_i32 s4, 0
                s_cbranch_scc1 L_pd{n}""")
        a.label(f"L_ok{n}")
        for i in U:
            D, B = 112 + 16*i, 57 + 2*i
            for k in range(6): a.e(f"v_cvt_pk_bf16_f32 v{D+k}, v{D+2*k}, v{D+2*k+1}")
            for j in range(3):
                a.e(f"buffer_store_dwordx2 v[{D+2*j}:{D+2*j+1}], v10, s[8:11], s{B} offen")
                if j < 2: a.e(f"s_add_u32 s{B}, s{B}, {16*2304}")
    decode(0)
    stamp(a, "pub2", opt)
    a.e("s_cmp_lt_u32 s54, 2\ns_cbranch_scc1 L_two")
    sv = save(a)
    units([0])
    a.e("s_branch L_rd2")
    a.label("L_two"); load(a, sv)
    decode(1)
    units([0, 1])
    a.label("L_rd2")
    stamp(a, "end", opt)
    if opt.stamps:
        a.e(f"s_lshl_b32 s3, s2, 2\ns_add_u32 s3, s3, s28\ns_lshl_b32 s3, s3, 7\ns_add_u32 s3, s3, {WS_STAMP}\nv_mov_b32 v0, 0")
        for i in range(1 + len(opt.sset)):
            a.e(f"v_mov_b32 v2, s{STB+2*i}\nv_mov_b32 v3, s{STB+1+2*i}\nbuffer_store_dwordx2 v[2:3], v0, s[24:27], s3 offen offset:{8*i}\ns_waitcnt vmcnt(0)")
    a.label("L_done")
    a.e("s_endpgm")
    a.label("L_end")
    for qb in range(3): rare(a, qb)

def build(opt):
    a = Asm()
    for l in """; Fused q-projection + softmax attention + output projection for both halves (A, B); written with a generator script.
; One workgroup (4 waves, 512 registers each, 160 KB LDS) per CU handles two heads X, Y of one batch:
;   1. Q = x wq (MFMA 32x32x16, LDS / register staged), scaled by log2(e)/sqrt(d)
;   2. waves 0,1 = head X, waves 2,3 = head Y, keys split between the two waves; K/V tiles stream through a private
;      LDS-DMA ring; online softmax against a reference max that a per-tile check raises to the true max when needed
;   3. pair combine, O (bf16) handed to the three workgroups with the same batch and head octet (write-through
;      stores, per-wave flags carrying a launch tag), 96 x 144 x 1024 partial output projection (MFMA 16x16x32),
;      partial tiles (bf16, 16-byte granules that each carry the launch tag) summed over the four octets""".split("\n"): a.raw(l)
    a.raw("; @launch grid=(256,1,1) block=(256,1,1) lds=163840")
    a.raw('.amdgcn_target "amdgcn-amd-amdhsa--gfx950"')
    kernel(a, NAME + "_kernel", opt)
    a.raw('.section .rodata,"a"\n.p2align 6')
    a.raw("\n".join([f".amdhsa_kernel {NAME}_kernel", "  .amdhsa_next_free_vgpr 512", "  .amdhsa_next_free_sgpr 102",
        "  .amdhsa_accum_offset 256", "  .amdhsa_group_segment_fixed_size 0", "  .amdhsa_kernarg_size 104",
        "  .amdhsa_user_sgpr_count 2", "  .amdhsa_user_sgpr_kernarg_segment_ptr 1",
        "  .amdhsa_system_sgpr_workgroup_id_x 1", ".end_amdhsa_kernel"]))
    return a.text(), a

if __name__ == "__main__":
    opt = Opt()
    out = sys.argv[1] if len(sys.argv) > 1 else "k.s"
    for kv in sys.argv[2:]:
        k, v = kv.split("=", 1); assert hasattr(opt, k), k
        setattr(opt, k, eval(v))
    t, a = build(opt)
    open(out, "w").write(t)
    print(out, "lines", t.count("\n"), "pad", a.npad)
```

```python
import sys, struct, math
sys.path.insert(0, "dev")
from asmlib import Asm, spread, regs_of, level_fill
import gen5
from gen5 import (NAME, f2u, CSC, THR_LOG2, WS_BYTES, WS_O, WS_P, WS_F, WS_STAMP, STB, vr, ar, srd, stamp, emit,
                  VOFFK, VOFFV, VKA, VVA, LSUM, TMAX, VT, NM, S0, Q0, KF, VF, Sreg, Qreg, Oacc, softmax, qk, pv, rare)

class Opt:
    wp = "pppp"
    noB = False
    stamps = False
    sset = ['q0', 'k0', 't15', 'comb', 'join', 'chk1', 'gend', 'pub2', 'end']
    thr0 = 0.0
    thr1 = 1.25
    clk = "s_memrealtime"
    rot = True
    krot = 4
    qlev = True
    touch = {}
    ctouch = None
    w0at = (14, 44)
    plan2 = True
    capfrom = 4
    firstfree = False
    free01 = False
    u3late = 0
    wsoff = 0
    d14 = None
    rwait = None
    plan3 = 0
    earr = False
    rlate = 0
    rspan = 80
    kspan = 30
    wdel = 8
    kvtlb = False
    capb = None
    pbf16 = True
    k1early = False
    wot = 4
    wotnt = None
    tlb = 0
    nx = 1
    accearly = True
    cap = ((6, 6, 7), 5)
    capend = 30
    hold = False
    xgate = 0
    last = (0, 0)
    ylast = 1
    kvsame = False
    unroll = False
    a0at = 2
    opol = ''
    late = 0
    prio = 0
    gate = 12
    pace = 1.0
    d1 = (1, 4, 7, 10, 13, 16, 19, 22)
    d2 = (25, 28, 31, 34, 37, 40, 43, 46)
    dcost = 4.0
    acct = 0
    w0 = 10
    askat = 3
    fewwait = True
    vwin = (16, 22)
    kwin = (40, 44)
    tpol = ''
    wopol = ''

SLOT = 16384
SV = 126976
def slot(u): return (2 if u == 0 else (-u) % 3) * SLOT
STG = lambda i: 45056 + 28672 * i
TOP = 159744
SB = (122880, 0, 86016, 49152)
NS = 3
YB = 49152

def dma_unit(u, opt):
    kind = "KV"[u % 2]; sreg = "s36" if kind == "K" else "s35"
    srdn = "s[8:11]" if kind == "K" else "s[12:15]"
    G = []
    for j in range(8):
        g = []
        mb, mo = ("s54", 0) if u == 1 else ("s37", slot(u))
        if j == 0: g += [f"s_add_u32 m0, {mb}, {mo}", f"s_add_u32 s51, s34, {sreg}"]
        if j == 1 and not opt.kvsame: g += [f"s_add_u32 {sreg}, {sreg}, 16384", f"s_and_b32 {sreg}, {sreg}, 0x3ffff"]
        if j == 4: g += [f"s_add_u32 m0, {mb}, {mo + 4096}", "s_add_u32 s51, s51, 4096"]
        vo = VOFFK + j % 4 if kind == "K" else VOFFV
        if opt.cap and opt.capfrom <= u <= opt.capend:
            cx, cy = opt.cap
            cx, cy = (c if isinstance(c, int) else c[j % len(c)] for c in (cx, cy))
            dma_unit.n += 1; n = dma_unit.n
            bx, by = (c if isinstance(c, int) else c[j % len(c)] for c in (opt.capb or opt.cap))
            prev = None
            for lv, c in enumerate((bx, cx, by, cy)):
                if c == prev: continue
                R_ = "RAW " if prev else ""
                g += [R_ + f"s_cmp_le_u32 s50, {lv}", R_ + f"s_cbranch_scc1 L_cap{n}", f"RAW s_waitcnt vmcnt({c - 1})"]
                assert prev is None or c < prev
                prev = c
            g += [f"LABEL L_cap{n}"]
        g.append(f"buffer_load_dwordx4 v{vo}, {srdn}, s51 offen offset:{(j % 4)*1024} nt lds ; @u{u}")
        G.append("\n".join(g))
    return G
dma_unit.n = 0
def kreads(t): return [f"ds_read_b128 {ar(KF+4*s,4)}, v{VKA+s} offset:{slot(2*t)}" for s in range(8)]
def vreads(t):
    return [f"ds_read_b64_tr_b16 {ar(VF + db*8 + s*4 + k*2, 2)}, v{(VVA if t else 28)+db} offset:{(slot(2*t+1) if t else 0) + 4096*s + 2048*k}"
            for s in range(2) for db in range(4) for k in range(2)]
def tile_body(a, opt, t, carry, extra=()):
    first = t == 0
    M = qk(0, first) + (pv(2, t == 1) if t else [None]*8) + qk(1, first) + pv(0, first) + qk(2, first) + pv(1, first)
    W = opt.w0
    sl = [[] for _ in range(48 + W)]
    def at(G, slots):
        for g, k in zip(G, slots): sl[k].append(g)
    if 2*t + NS <= 31: at(dma_unit(2*t + NS if t else 4, opt), opt.d14 if t == 14 and opt.d14 else opt.d1)
    spread(sl, [f"WAITVM u{2*t+1}"] + vreads(t), *opt.vwin)
    if 2*t + NS + 1 <= 31 and t: at(dma_unit(2*t + NS + 1, opt), opt.d2)
    if t < 15: spread(sl, [f"WAITVM u{2*t+2}"] + kreads(t + 1), *opt.kwin)
    if t == 14 and opt.xgate: sl[30].append('v_mov_b32 v27, 2\nds_write_b32 v109, v27 offset:16')
    if opt.hold or t == 0: sl[46].append("s_add_u32 s45, s45, 1\nv_mov_b32 v27, s45\nds_write_b32 v109, v27 offset:16")
    if 1 <= t <= 14 and opt.hold:
        sl[44].append("ds_read_b64 v[30:31], v26")
        sl[47].append(f"""AUTO v_min_u32 v30, v30, v31
s_add_u32 s38, s38, s50
s_min_i32 s38, s38, 256
v_readfirstlane_b32 s3, v30
s_lshl_b32 s3, s3, 4
s_cmp_ge_i32 s3, s38
s_cbranch_scc1 L_go{t}
s_call_b64 s[40:41], L_hold
LABEL L_go{t}""")
    for e in extra: spread(sl, *e)
    for i, x in enumerate(carry): sl[i] = x + sl[i]
    ghost = {48 + k: "buffer_x\ns_nop 0\ns_nop 0" for k in opt.d1 if k < W}
    for k, g in ghost.items(): sl[k].append(g)
    level_fill(sl, softmax(0, t, first), W, W + 16, opt.dcost)
    level_fill(sl, softmax(1, t, first), W + 16, W + 32, opt.dcost)
    level_fill(sl, softmax(2, t, first), W + 32, W + 48, opt.dcost)
    for k in ghost: sl[k] = sl[k][1:]
    for i in range(48):
        if opt.fewwait:
            if i == 0: a.wait(lgregs=regs_of(ar(KF, 32)))
            if i == 24: a.wait(lgregs=regs_of(ar(VF, 32)))
        if M[i]: emit(a, [M[i]])
        for x in sl[i]:
            if opt.acct and x.startswith("WAITVM"):
                keep = list(a.lg)
                a.e("s_memtime s[94:95]"); emit(a, [x]); a.e("s_memtime s[96:97]\ns_waitcnt lgkmcnt(0)\ns_sub_u32 s96, s96, s94")
                r = 98 if int(x.split("u")[1]) % 2 else 100
                a.e(f"s_add_u32 s{r}, s{r}, s96")
            elif opt.acct == 2 and "lds ;" in x:
                a.e("s_memtime s[94:95]"); emit(a, [x]); a.e("s_memtime s[96:97]\ns_waitcnt lgkmcnt(0)\ns_sub_u32 s96, s96, s94\ns_add_u32 s92, s92, s96")
            else: emit(a, [x])
    return sl[48:]

def save(a): return (list(a.hist), list(a.lg), list(a.vm))
def load(a, st): a.hist, a.lg, a.vm = (list(x) for x in st)

def kernel(a, name, opt):
    global WS_O, WS_P, WS_F
    WS_O, WS_P, WS_F = opt.wsoff, opt.wsoff + (16 << 20), opt.wsoff + (48 << 20)
    a.raw(".text"); a.raw(f".globl {name}"); a.raw(".p2align 8"); a.raw(f".type {name},@function")
    a.label(name, reset=True)
    a.e("""s_load_dwordx8 s[56:63], s[0:1], 0
           s_load_dwordx8 s[64:71], s[0:1], 40
           s_load_dwordx2 s[72:73], s[0:1], 96
           s_load_dwordx2 s[40:41], s[0:1], 32
           s_load_dwordx2 s[42:43], s[0:1], 72
           s_load_dwordx4 s[44:47], s[0:1], 80
           s_memrealtime s[48:49]
           s_cmp_ge_u32 s2, 256
           s_cbranch_scc1 L_done""")
    if opt.stamps: a.e(f"{opt.clk} s[{STB}:{STB+1}]")
    VW, VXA, VXB, AW, AX, VD = 72, 73, 74, 76, 64, 111
    G, L15, H, L31, G1, R, C4 = 88, 89, 90, 91, 92, 81, 82
    VFO, VFP = 109, 110
    a.e(f"""v_lshrrev_b32 v1, 6, v0
            s_and_b32 s3, s2, 7
            s_lshr_b32 s29, s3, 2
            s_and_b32 s30, s3, 3
            v_readfirstlane_b32 s28, v1
            s_lshr_b32 s3, s2, 3
            s_lshr_b32 s31, s3, 2
            s_and_b32 s32, s3, 3
            v_and_b32 v1, 63, v0
            v_lshrrev_b32 v{G}, 4, v1
            v_and_b32 v{L15}, 15, v1
            v_lshrrev_b32 v56, 3, v1
            v_and_b32 v57, 7, v1
            v_and_b32 v{G1}, 1, v{G}
            v_lshlrev_b32 v59, 2, v{G1}
            v_xor_b32 v59, v57, v59
            v_lshlrev_b32 v59, 4, v59
            v_lshl_add_u32 v{VW}, v56, 13, v59
            v_mul_u32_u24 v60, 1152, v56
            v_xor_b32 v61, v57, v{G}
            s_and_b32 s6, s28, 1
            s_lshr_b32 s7, s28, 1
            s_lshl_b32 s3, s6, 2
            v_xor_b32 v61, s3, v61
            v_lshl_add_u32 v{VXA}, v61, 4, v60
            v_xor_b32 v61, 4, v61
            v_lshl_add_u32 v{VXB}, v61, 4, v60
            s_mul_i32 s37, s7, {YB}
            s_lshl_b32 s3, s6, 13
            s_add_u32 s37, s37, s3
            s_lshl_b32 s33, s30, 3
            s_lshl_b32 s3, s32, 1
            s_add_u32 s33, s33, s3              ; head X
            s_add_u32 s74, s3, s31              ; b + 2p
            s_lshl_b32 s52, s33, 8
            s_lshl_b32 s3, s28, 7
            s_add_u32 s52, s52, s3
            s_mul_i32 s53, s31, 110592
            s_mul_i32 s3, s28, 27648
            s_add_u32 s53, s53, s3              ; x rows 24w..
            s_mul_i32 s55, s28, 3072
            s_mov_b32 s18, 884736
            s_mov_b32 s19, 0x20000
            s_mov_b32 s22, 4718592
            s_mov_b32 s23, 0x20000""")
    if opt.krot == 0: a.e("s_mov_b32 s74, 0")
    elif opt.krot == 1: a.e("s_cmp_ge_u32 s74, 9\ns_cselect_b32 s3, 9, 0\ns_sub_u32 s74, s74, s3")
    elif opt.krot == 3: a.e("s_and_b32 s74, s74, 1\ns_lshl_b32 s74, s74, 2")
    elif opt.krot == 2: a.e("s_add_u32 s74, s31, s32\ns_mul_i32 s3, s74, 86\ns_lshr_b32 s3, s3, 8\ns_mul_i32 s3, s3, 3\ns_sub_u32 s74, s74, s3\ns_mul_i32 s74, s74, 3")
    elif opt.krot == 4: a.e("s_add_u32 s74, s31, s32\ns_and_b32 s74, s74, 3\ns_mul_i32 s74, s74, 9\ns_lshr_b32 s74, s74, 2")
    elif opt.krot == 5: a.e("s_add_u32 s74, s31, s32\ns_and_b32 s74, s74, 1\ns_lshl_b32 s74, s74, 2")
    a.e("s_cmp_eq_u32 s29, 0\ns_waitcnt lgkmcnt(0)")
    for d, o in ((20, 6), (16, 0), (8, 2), (12, 4)):
        a.e(f"s_cselect_b32 s{d}, s{56+o}, s{64+o}\ns_cselect_b32 s{d+1}, s{57+o}, s{65+o}")
    a.e("""s_cselect_b32 s76, s40, s42
           s_cselect_b32 s77, s41, s43
           s_mov_b64 s[78:79], s[44:45]
           s_mov_b64 s[80:81], s[46:47]
           s_or_b32 s75, s48, 1""")
    P = lambda ch: " nt" if ch == "n" else ""
    XS = 98304
    VW4, VX3 = 32, 36
    a.e(f"""v_mov_b32 v{VW4}, v{VW}
            v_add_u32 v{VW4+1}, {65536 - 1024}, v{VW}
            v_add_u32 v{VW4+2}, {2*(65536 - 1024)}, v{VW}
            v_add_u32 v{VW4+3}, {3*(65536 - 1024)}, v{VW}
            v_mov_b32 v{VX3}, v{VXA}
            v_add_u32 v{VX3+1}, {9216 - 1024}, v{VXB}
            v_add_u32 v{VX3+2}, {2*(9216 - 1024)}, v{VXA}
            s_lshl_b32 s4, s74, 19
            s_add_u32 s4, s4, s52
            s_lshl_b32 s5, s74, 7
            s_add_u32 s5, s5, s53
            s_sub_u32 s74, 9, s74""")
    WR = lambda c, j: ar(((c - 3)*8 + j)*4, 4)
    XR = lambda c, i: ar(192 + ((c-3)*3 + i)*4, 4) if (c-3)*3 + i < 16 else vr(40 + ((c-3)*3 + i - 16)*4, 4)
    def regstage(c):
        Gs = []
        for j in range(8):
            Gs.append(("s_add_u32 s4, s4, 262144\n" if j == 4 else "") + f"buffer_load_dwordx4 {WR(c,j)}, v{VW4 + j % 4}, s[20:23], s4 offen offset:{(j % 4)*1024}{P(opt.wp[0])} ; @s{c}")
        for i in range(3):
            g = ("s_add_u32 s4, s4, 262144\n" if i == 0 else "") + f"buffer_load_dwordx4 {XR(c,i)}, v{VX3 + i}, s[16:19], s5 offen offset:{i*1024}{P(opt.wp[1])} ; @s{c}"
            if i == 2: g += f"\ns_add_u32 s5, s5, 128\ns_sub_u32 s74, s74, 1\ns_cmp_lg_u32 s74, 0\ns_cbranch_scc1 L_nw{c}\nRAW s_mov_b32 s4, s52\nRAW s_mov_b32 s5, s53\nLABEL L_nw{c}"
            Gs.append(g)
        return Gs
    def regwrite(c):
        return [f"WAITVM s{c}"] + [f"ds_write_b128 v48, {WR(c,j)} offset:{(c % 2)*SLOT + j*1024}" for j in range(8)] + \
               [f"ds_write_b128 v49, {XR(c,i)} offset:{(c % 2)*12288 + i*1024}" for i in range(3)]
    def stage(c):
        buf = c % 3; Gs = []
        if c >= 3: return regstage(c)
        for j in range(8):
            g = [f"s_add_u32 m0, s37, {buf*SLOT}", "s_nop 0"] if j == 0 else [f"s_add_u32 m0, s37, {buf*SLOT + 4096}", "s_add_u32 s4, s4, 262144"] if j == 4 else []
            Gs.append("\n".join(g + [f"buffer_load_dwordx4 v{VW4 + j % 4}, s[20:23], s4 offen offset:{(j % 4)*1024}{P(opt.wp[0])} lds ; @s{c}"]))
        for i in range(3):
            g = [f"s_add_u32 m0, s55, {XS + buf*12288}", "s_add_u32 s4, s4, 262144"] if i == 0 else []
            g += [f"buffer_load_dwordx4 v{VX3 + i}, s[16:19], s5 offen offset:{i*1024}{P(opt.wp[1])} lds ; @s{c}"]
            if i == 2: g += ["s_add_u32 s5, s5, 128", "s_sub_u32 s74, s74, 1", f"s_cbranch_scc0 L_nw{c}", ]
            Gs.append("\n".join(g))
        Gs[-1] = Gs[-1].replace(f"s_sub_u32 s74, s74, 1\ns_cbranch_scc0 L_nw{c}", f"s_sub_u32 s74, s74, 1\ns_cmp_lg_u32 s74, 0\ns_cbranch_scc1 L_nw{c}\nRAW s_mov_b32 s4, s52\nRAW s_mov_b32 s5, s53\nLABEL L_nw{c}")
        return Gs
    stamp(a, 'ka', opt)
    wtouch = [x.strip() for x in """s_lshr_b32 s3, s2, 3
            s_lshl_b32 s3, s3, 2
            s_add_u32 s3, s3, s28
            s_mul_i32 s3, s3, 9216
            s_mul_i32 s47, s30, 1179648
            v_lshlrev_b32 v24, 7, v1
            v_add_u32 v24, s3, v24
            v_add_u32 v25, 8192, v24
            v_cmp_gt_u32 s[70:71], 8, v1
            v_cndmask_b32 v25, -1, v25, s[70:71]""".split("\n")]
    wtouch = ["\n".join(wtouch + ["buffer_load_dword v23, v24, s[60:63], s47 offen ; @junk"]), "s_mul_i32 s47, s30, 1179648\nbuffer_load_dword v23, v25, s[60:63], s47 offen ; @junk"]
    if opt.wot is not None: srd(a, 60, "s76", "s77", 4718592)
    if opt.wot == 'a': emit(a, wtouch)
    emit(a, stage(0))
    if opt.kvtlb:
        a.e(f"""s_mov_b32 s10, {1 << 26}
                s_mov_b32 s11, 0x20000
                s_mov_b32 s14, {1 << 26}
                s_mov_b32 s15, 0x20000
                s_lshl_b32 s3, s31, 5
                s_add_u32 s3, s3, s33
                s_add_u32 s3, s3, s7
                s_lshl_b32 s3, s3, 18
                v_and_b32 v24, 3, v1
                v_lshlrev_b32 v24, 16, v24
                buffer_load_dword v23, v24, s[8:11], s3 offen nt ; @junk
                buffer_load_dword v23, v24, s[12:15], s3 offen nt ; @junk""")
    if opt.wot == 'b': emit(a, wtouch)
    stamp(a, 'i0', opt)
    srd(a, 56, "s80", "s81", 256)
    a.e("""s_lshl_b32 s3, s2, 8
           v_add_u32 v106, s3, v0
           v_min_u32 v106, 1, v106
           v_lshlrev_b32 v106, 12, v106
           v_mov_b32 v107, s75
           buffer_store_dword v107, v106, s[56:59], 0 offen sc1""")
    emit(a, stage(1))
    if opt.wot == 'c': emit(a, wtouch)
    for d in (8, 12): a.e(f"s_mov_b32 s{d+2}, {1 << 26}\ns_mov_b32 s{d+3}, 0x20000")
    srd(a, 24, "s72", "s73", WS_BYTES)
    srd(a, 60, "s76", "s77", 4718592)
    a.e(f"""v_lshrrev_b32 v{H}, 5, v1
            v_and_b32 v{L31}, 31, v1
            v_lshrrev_b32 v{R}, 2, v{L15}
            v_and_b32 v{C4}, 3, v1
            v_lshl_add_u32 v59, v{H}, 3, v{R}
            v_lshlrev_b32 v59, 7, v59
            v_lshrrev_b32 v60, 1, v{R}
            v_lshl_add_u32 v59, v60, 6, v59
            v_lshl_add_u32 v59, v{G1}, 5, v59
            v_lshl_add_u32 v59, v{C4}, 3, v59
            v_add_u32 v{AW}, s37, v59
            v_xor_b32 v{AW+1}, 64, v{AW}
            v_bfe_u32 v60, v1, 1, 3
            v_xor_b32 v60, v60, v{H}
            v_lshlrev_b32 v60, 4, v60
            v_lshl_add_u32 v60, v{L31}, 7, v60
            v_add_u32 v{AX}, {XS}, v60""")
    for s in range(1, 4): a.e(f"v_xor_b32 v{AX+s}, {32*s}, v{AX}")
    a.e(f"""s_lshl_b32 s3, s28, 2
            s_add_u32 s3, s3, {TOP + 3072}
            v_mov_b32 v{VFO}, s3
            v_xor_b32 v{VFP}, 4, v{VFO}
            v_mov_b32 v61, 0
            ds_write_b32 v{VFO}, v61
            ds_write_b32 v{VFO}, v61 offset:16
            s_mov_b32 s44, 0
            s_mov_b32 s45, 0""")
    a.e(f"""v_lshlrev_b32 v49, 4, v1
            v_add_u32 v48, s37, v49
            s_add_u32 s3, s55, {XS}
            v_add_u32 v49, s3, v49
            s_lshl_b32 s54, s28, 13
            s_add_u32 s54, s54, {SV}""")
    def frag_reads(c, s, F):
        buf = c if c < 3 else c % 2
        L = [f"ds_read_b64_tr_b16 {vr(F + db*4 + k*2, 2)}, v{AW+db} offset:{buf*SLOT + (16*s + 4*k) * 128}" for db in range(2) for k in range(2)]
        return L + [f"ds_read_b128 {vr(F + 8 + qb*4, 4)}, v{AX+s} offset:{buf*12288 + qb*4096}" for qb in range(3)]
    setup = f"""v_lshlrev_b32 v26, 8, v{G}
            v_xor_b32 v27, v{L15}, v{G}
            v_lshl_add_u32 v{VOFFK}, v27, 4, v26
            v_xor_b32 v{VOFFK+1}, 64, v{VOFFK}
            v_xor_b32 v{VOFFK+2}, 128, v{VOFFK}
            v_xor_b32 v{VOFFK+3}, 192, v{VOFFK}
            v_lshlrev_b32 v27, 2, v{G}
            v_xor_b32 v27, v{L15}, v27
            v_lshl_add_u32 v{VOFFV}, v27, 4, v26
            s_lshl_b32 s3, s6, 13
            s_add_u32 s33, s33, s7
            s_lshl_b32 s34, s31, 5
            s_add_u32 s34, s34, s33
            s_lshl_b32 s34, s34, 18
            s_add_u32 s34, s34, s3"""
    if opt.rot:
        setup += """
            s_lshl_b32 s3, s2, 2
            s_add_u32 s3, s3, s7
            s_mul_i32 s3, s3, 0x1e3779b1
            s_lshr_b32 s47, s3, 15
            s_xor_b32 s3, s3, s47
            s_mul_i32 s3, s3, 0x2c1b3c6d
            s_lshr_b32 s3, s3, 20
            s_and_b32 s3, s3, 15
            s_lshl_b32 s35, s3, 14"""
    else: setup += "\ns_mov_b32 s35, 0"
    setup += f"""
            s_mov_b32 s36, s35
            s_mov_b32 s69, s35
            v_lshlrev_b32 v50, 7, v1
            v_xor_b32 v27, v{H}, v{L15}
            v_lshlrev_b32 v27, 4, v27
            v_lshl_add_u32 v27, v{L31}, 8, v27
            v_add_u32 v{VKA}, s37, v27"""
    for s in range(1, 8): setup += f"\nv_xor_b32 v{VKA+s}, {32*s}, v{VKA}"
    setup += f"""
            v_lshl_add_u32 v28, v{H}, 2, v{R}
            v_lshlrev_b32 v28, 8, v28
            v_lshl_add_u32 v28, v{R}, 6, v28
            v_lshl_add_u32 v28, v{G1}, 5, v28
            v_lshl_add_u32 v28, v{C4}, 3, v28
            s_lshl_b32 s47, s6, 7
            v_xor_b32 v28, s47, v28
            v_add_u32 v{VVA}, s37, v28"""
    for db in range(1, 4): setup += f"\nv_xor_b32 v{VVA+db}, {64*db}, v{VVA}"
    setup += "\nv_add_u32 v28, s54, v28"
    for db in range(1, 4): setup += f"\nv_xor_b32 v{28+db}, {64*db}, v28"
    setup += f"\ns_mov_b32 s42, {f2u(CSC):#x}\ns_mov_b32 s43, {f2u(THR_LOG2):#x}"
    for qb in range(3): setup += f"\nv_mov_b32 v{LSUM+qb}, 0"
    setup = [x.strip() for x in setup.split("\n")]
    VO, VL16, AD, VOL = 93, 102, 103, 107
    def vo_calc(dst, rev):
        L = []
        for i in range(9):
            L += [f"v_add_u32 v80, {64*i}, v1", "v_mul_u32_u24 v28, 58255, v80", "v_lshrrev_b32 v28, 20, v28", "v_mul_u32_u24 v83, 18, v28",
                  "v_sub_u32 v83, v80, v83", "v_xor_b32 v29, 1, v83", "v_sub_u32 v29, 17, v29"]
            if rev == "vcc": L += ["v_cndmask_b32 v29, v83, v29, s[70:71]"]
            L += ["v_mul_u32_u24 v28, 1152, v28", f"v_lshl_add_u32 v{dst+i}, v29, 4, v28"]
        return L
    setup2 = ["s_cmp_eq_u32 s7, 1\ns_cselect_b64 s[70:71], -1, 0"] + vo_calc(VO, "vcc") + [x.strip() for x in f"""v_lshlrev_b32 v{VL16}, 4, v1
            v_lshlrev_b32 v80, 4, v{H}
            v_lshl_add_u32 v80, v{G1}, 2, v80
            v_add_u32 v80, v80, v{R}
            v_mul_u32_u24 v80, 288, v80
            v_lshl_add_u32 v80, v{C4}, 3, v80
            s_mul_i32 s3, s7, 18432
            v_add_u32 v{AD+1}, s3, v80
            v_add_u32 v{AD}, {SB[0]}, v{AD+1}
            v_lshlrev_b32 v{VOL}, 10, v{G1}
            v_lshl_add_u32 v{VOL}, v{H}, 8, v{VOL}
            v_lshl_add_u32 v{VOL}, v{L15}, 4, v{VOL}
            v_mov_b32 v108, 0
            s_mul_i32 s67, s30, 1179648
            s_mul_i32 s3, s32, 288
            s_add_u32 s64, s67, s3              ; wo: rows of the octet, columns 144p..
            s_lshl_b32 s39, s29, 3
            s_add_u32 s39, s39, s31""".split("\n")]
    setW = ["s_lshl_b32 s66, s32, 1", "s_mul_i32 s65, s28, 9216", f"s_mul_i32 s68, s28, {32*1152}", "s_add_u32 s68, s68, s64"]
    def arrive(): a.e(f"s_add_u32 s44, s44, 1\nv_mov_b32 v{VD}, s44\nds_write_b32 v{VFO}, v{VD}")
    def psync(arrived=False):
        psync.n += 1; n = psync.n
        if not arrived: arrive()
        a.e("s_mov_b32 s47, 0x400000")
        a.label(f"L_ps{n}")
        a.e(f"""ds_read_b32 v{VD}, v{VFP}
                s_sub_u32 s47, s47, 1
                s_waitcnt lgkmcnt(0)
                v_readfirstlane_b32 s3, v{VD}
                s_cmp_eq_u32 s47, 0
                s_cselect_b32 s3, s44, s3
                s_cmp_lt_u32 s3, s44
                s_cbranch_scc1 L_ps{n}""")
    psync.n = 0
    def other_pair(name, word, val, T=84):
        a.e(f"v_mov_b32 v{T+2}, {TOP + 3072 + word}\ns_mov_b32 s47, 0x400000")
        a.label(name)
        a.e(f"""s_sleep 2
                ds_read_b64 v[{T}:{T+1}], v{T+2}
                s_sub_u32 s47, s47, 1
                s_waitcnt lgkmcnt(0)
                v_min_u32 v{T}, v{T}, v{T+1}
                v_readfirstlane_b32 s3, v{T}
                s_cmp_eq_u32 s47, 0
                s_cselect_b32 s3, {val}, s3
                s_cmp_lt_u32 s3, {val}
                s_cbranch_scc1 {name}""")

    ACC = 112
    def qwrite(blocks, dreg, area, extra=()):
        a.e(f"""v_xor_b32 v55, {dreg}, v{L15}
                v_lshlrev_b32 v55, 4, v55
                v_lshl_add_u32 v55, v{L31}, 8, v55
                v_lshl_add_u32 v55, v{H}, 3, v55
                v_add_u32 v55, {area}, v55
                v_mov_b32 v62, s42""")
        for db in range(blocks):
            for i in range(4):
                a.e(f"v_xor_b32 v54, {(4*db + i)*16}, v55")
                if extra: emit(a, [extra[4*db + i]])
                for qb in range(3):
                    r = ACC + (db*3 + qb)*16 + 4*i; tq = 56 + 2 * qb
                    a.e(f"""v_pk_mul_f32 v[{r}:{r+1}], v[{r}:{r+1}], v[62:63] op_sel_hi:[1,0]
                            v_pk_mul_f32 v[{r+2}:{r+3}], v[{r+2}:{r+3}], v[62:63] op_sel_hi:[1,0]
                            v_cvt_pk_bf16_f32 v{tq}, v{r}, v{r+1}
                            v_cvt_pk_bf16_f32 v{tq+1}, v{r+2}, v{r+3}
                            ds_write_b64 v54, v[{tq}:{tq+1}] offset:{qb*8192}""")
    def qread(area):
        a.e(f"s_sub_u32 s3, {area}, s37")
        for s in range(8): a.e(f"v_add_u32 v{32+s}, s3, v{VKA+s}")
        for qb in range(3):
            for s in range(8): a.e(f"ds_read_b128 {vr(Qreg(qb,s),4)}, v{32+s} offset:{qb*8192}")
    FA, FB = 208, 228
    a.wait(vmtags=["s0"], lg0=True); a.e("s_barrier")
    stamp(a, "q0", opt)
    emit(a, frag_reads(0, 0, FA))
    sl = [[] for _ in range(216 + 24)]
    spread(sl, [x for c in range(2, 9 - opt.rlate) for x in stage(c)], 0, opt.rspan)
    spread(sl, setup, 6, 64)
    for c in range(9):
        for s in range(4):
            F, nF = (FA, FB) if s % 2 == 0 else (FB, FA)
            k0 = (c*4 + s) * 6
            if s == 3:
                a.wait(vmtags=[f"s{c+1}"] if c < 2 else [], lg0=True); a.e("s_barrier")
                stamp(a, f"c{c}", opt)
                if 1 <= c <= 6: spread(sl, regwrite(c + 2), k0 + (opt.wdel if c == 1 else 1), k0 + 22)
                if c == 2 and opt.rwait is not None:
                    p0 = max(k0, opt.rspan + opt.rwait); sl[p0].append("WAITVM s8")
                    spread(sl, dma_unit(0, opt) + dma_unit(1, opt), p0, p0 + opt.kspan)
                elif c == 2: spread(sl, dma_unit(0, opt) + [x for k in range(9 - opt.rlate, 9) for x in stage(k)] + dma_unit(1, opt), max(k0, opt.rspan), max(k0, opt.rspan) + opt.kspan)
                if c == 7: spread(sl, dma_unit(2, opt), k0, k0 + 18)
                for u in opt.touch.get(c, []):
                    sl[k0 + 20].append(f"s_add_u32 s47, s69, {(u // 2) * 16384}\ns_and_b32 s47, s47, 0x3ffff\ns_add_u32 s47, s47, s34\n" +
                                       f"buffer_load_dword v51, v50, {'s[8:11]' if u % 2 == 0 else 's[12:15]'}, s47 offen nt ; @junk")
                if opt.wot == c: spread(sl, wtouch, k0 + 12, k0 + 22)
                if opt.ctouch == c:
                    sl[k0 + 6].append("s_getpc_b64 s[70:71]\nLABEL L_pc\nv_lshlrev_b32 v24, 7, v0\nv_add_u32 v24, L_qcode-L_pc, v24\nv_min_u32 v24, L_end-L_pc-4, v24\nglobal_load_dword v23, v24, s[70:71] ; @junk")
            rd = (frag_reads(c + 1, 0, nF) if c < 8 else []) if s == 3 else frag_reads(c, s + 1, nF)
            if opt.qlev:
                for k, x in enumerate(rd): sl[k0 + (0, 0, 1, 1, 2, 3, 4)[k]].insert(0, x)
                a.wait(lgregs=regs_of(vr(F, 20)))
            else: emit(a, rd)
            i = 0
            for db in range(2):
                for qb in range(3):
                    d = vr(ACC + (db*3 + qb)*16, 16)
                    emit(a, [f"v_mfma_f32_32x32x16_bf16 {d}, {vr(F+db*4,4)}, {vr(F+8+qb*4,4)}, " + ("0" if (c == 0 and s == 0) else d)] + sl[k0 + i]); i += 1
    assert not any(sl[216:])
    a.label("L_qcode")
    a.e("s_lshl_b32 s3, s6, 3\ns_cmp_eq_u32 s7, 1\ns_cbranch_scc1 L_qy")
    sv = save(a)
    qwrite(2, "s3", XS, () if opt.u3late else dma_unit(3, opt))
    a.e("s_waitcnt lgkmcnt(0)\ns_barrier")
    qread(XS)
    if opt.u3late: emit(a, dma_unit(3, opt))
    a.e("s_waitcnt lgkmcnt(0)\ns_barrier\ns_branch L_qdone")
    a.label("L_qy"); load(a, sv)
    emit(a, dma_unit(3, opt))
    a.e("s_barrier\ns_barrier\ns_lshl_b32 s3, s6, 3")
    qwrite(2, "s3", XS)
    a.e("s_waitcnt lgkmcnt(0)"); psync()
    qread(XS)
    a.label("L_qdone")
    stamp(a, "qx", opt)
    a.wait(vmtags=["u0"], lg0=True)
    emit(a, kreads(0))
    stamp(a, "k0", opt)
    a.e(f"""v_mov_b32 v26, {TOP + 3072 + 16}
            s_cmp_eq_u32 s7, 1
            s_cselect_b32 s50, {round(opt.thr1 * 16)}, 0
            s_cselect_b32 s38, {round((opt.thr0 + opt.thr1) * 16)}, -1""")
    if not opt.hold: a.e("s_lshl_b32 s50, s7, 1\ns_add_u32 s50, s50, 2\ns_sub_u32 s50, s50, s29\ns_mov_b32 s38, s50" + ("\ns_mov_b32 s50, 0" if opt.free01 else ""))
    if opt.acct: a.e(f"s_mov_b64 s[98:99], s[{STB}:{STB+1}]\ns_mov_b64 s[100:101], s[{STB}:{STB+1}]\ns_mov_b64 s[92:93], s[{STB}:{STB+1}]")
    def wpieces(tag, head, rows, lds, voreg):
        Gs = []
        for i in range(9):
            g = [f"s_add_u32 s4, s66, {head}", "s_and_b32 s4, s4, 7", f"s_mul_i32 s4, s4, {128*1152}", "s_add_u32 s4, s4, s68",
                 f"s_add_u32 s4, s4, {rows*1152}"] if i == 0 else []
            g += [f"s_add_u32 m0, s65, {lds + i*1024}", f"buffer_load_dwordx4 v{voreg+i}, s[60:63], s4 offen{opt.wopol} lds ; @{tag}"]
            Gs.append("\n".join(g))
        return Gs
    HEAD = (0, 2, 4, 6, 1, 3, 5, 7)
    NX = opt.nx
    BUFOF = [st % 2 for st in range(NX + 2)] + [2, 3]
    while len(BUFOF) < 8: BUFOF.append(BUFOF[len(BUFOF) - 4])
    wS = lambda st: wpieces(f"w{st}", HEAD[st], 0, SB[BUFOF[st]], VO)
    wX = lambda st, VOR: wpieces(f"w{st}", HEAD[st], 0, SB[BUFOF[st]], VO) + wpieces(f"w{st}", HEAD[st], 64, SB[BUFOF[st]] + 18432, VOR)
    carry = tile_body(a, opt, 0, [])
    carry = tile_body(a, opt, 1, carry, extra=[(setup2 + setW, 0, 41)])
    carry1 = [[x.replace('L_sk1_', 'L_sk4_') for x in y] for y in carry]
    if opt.unroll:
        for t in range(2, 14):
            stamp(a, f'r{t}', opt); carry = tile_body(a, opt, t, carry)
    else:
        stamp(a, "l0", opt)
        a.e("s_mov_b32 s46, 4")
        a.raw(".p2align 6"); a.label("L_tile")
        keep = list(a.vm)
        if opt.firstfree: a.e("s_cmp_eq_u32 s46, 4\ns_cselect_b32 s50, 0, s38")
        elif opt.free01: a.e("s_mov_b32 s50, s38")
        if not opt.hold: a.e(f"s_cmp_eq_u32 s7, 0\ns_cselect_b32 s3, {2*opt.last[0]}, {2*opt.last[1]}\ns_cmp_gt_u32 s46, 1\ns_cselect_b32 s50, s50, s3")
        if opt.late:
            a.e(f"""s_lshl_b32 s3, s7, 3
                    s_add_u32 s3, s3, s46
                    s_cmp_lg_u32 s3, {opt.late}
                    s_cbranch_scc1 L_nolate
                    s_lshr_b32 s3, s2, 3
                    s_lshl_b32 s3, s3, 1
                    s_add_u32 s3, s3, s6
                    s_mul_i32 s3, s3, 18432
                    v_lshlrev_b32 v84, 7, v1
                    v_add_u32 v84, s3, v84
                    v_add_u32 v85, 8192, v84
                    v_add_u32 v86, 16384, v84
                    v_cmp_gt_u32 vcc, 16, v1
                    v_cndmask_b32 v86, -1, v86, vcc""")
            emit(a, [f"buffer_load_dword v87, v{r}, s[60:63], s67 offen{opt.tpol} ; @junk" for r in (84, 85, 86)])
            a.label("L_nolate")
        if opt.tlb:
            a.e(f"""s_cmp_lg_u32 s46, {opt.tlb}
                    s_cbranch_scc1 L_notlb
                    s_lshl_b32 s3, s39, 2
                    s_add_u32 s4, s3, s30
                    s_mul_i32 s4, s4, {8*24576}
                    v_mov_b32 v84, s4
                    s_add_u32 s4, s4, {8*24576 - 128}
                    v_writelane_b32 v84, s4, 1
                    s_add_u32 s3, s3, s32
                    s_mul_i32 s4, s3, {4*36864}
                    s_add_u32 s4, s4, {WS_P}
                    v_writelane_b32 v84, s4, 2
                    s_add_u32 s4, s4, {4*36864 - 128}
                    v_writelane_b32 v84, s4, 3
                    s_mov_b32 s4, {WS_F + 65536 - 128}
                    v_writelane_b32 v84, s4, 4
                    s_mul_i32 s4, s31, {96*2304}
                    v_mov_b32 v85, s4
                    s_add_u32 s4, s4, {96*2304 - 128}
                    v_writelane_b32 v85, s4, 1
                    s_mov_b64 s[16:17], s[78:79]
                    s_mov_b32 s18, 1769472
                    buffer_load_dword v87, v84, s[24:27], 0 offen nt ; @junk
                    buffer_load_dword v87, v85, s[16:19], 0 offen nt ; @junk""")
            a.label("L_notlb")
        a.vm = keep
        for t in (2, 3, 4): carry = tile_body(a, opt, t, carry)
        assert carry == carry1
        a.e("s_sub_u32 s46, s46, 1\ns_cmp_lg_u32 s46, 0\ns_cbranch_scc1 L_tile")
        for o in a.vm:
            if o.tag and o.tag[0] == "u": o.tag = f"u{int(o.tag[1:]) + 18}"
    stamp(a, "l1", opt)
    raw = lambda L: "\n".join(("LABEL " + y[6:] if y.startswith("LABEL ") else "RAW " + y) for x in L for y in x.split("\n"))
    w0blk = "s_cmp_eq_u32 s7, 1\ns_cbranch_scc1 L_now0\n" + raw([f"""v_mov_b32 v83, {TOP + 3072 + 16}
s_mov_b32 s47, 0x400000
LABEL L_yq
ds_read_b128 v[84:87], v83
s_sub_u32 s47, s47, 1
s_waitcnt lgkmcnt(0)
v_min3_u32 v84, v84, v85, v86
v_min_u32 v84, v84, v87
s_nop 1
v_readfirstlane_b32 s3, v84
s_nop 1
s_cmp_eq_u32 s47, 0
s_cselect_b32 s3, 1, s3
s_cmp_lt_u32 s3, 1
s_cbranch_scc1 L_yq"""] + [x.replace("buffer_load", "s_nop 0\nbuffer_load") for x in wX(0, VO)]) + "\nLABEL L_now0"
    W0 = lambda t: [([w0blk], opt.w0at[1], opt.w0at[1] + 1)] if opt.w0at and opt.w0at[0] == t else []
    carry = tile_body(a, opt, 14, carry, extra=W0(14))
    xo = lambda k: (k // 8) * SLOT + (k % 8) * 1024
    def send(qb):
        return [f"ds_write_b128 v28, {ar(Oacc(2+i,qb) + 4*g, 4)} offset:{xo((i*3 + qb)*4 + g)}" for i in range(2) for g in range(4)]
    accr = lambda qb: [f"v_accvgpr_read_b32 v{160 + (i*3+qb)*16 + r}, a{Oacc(i,qb) + r}" for i in range(2) for r in range(16)]
    pre = ["buffer_load_dword v106, v108, s[56:59], 0 offen sc1 ; @tag",
           f"v_add_u32 v28, s37, v{VL16}", "s_lshl_b32 s3, s6, 14\ns_sub_u32 s3, 8192, s3", "v_add_u32 v29, s3, v28",
           f"s_mul_i32 s3, s28, 768\ns_add_u32 s3, s3, {TOP}", f"v_lshlrev_b32 v30, 3, v{L31}", "v_add_u32 v30, s3, v30",
           f"s_xor_b32 s3, s28, 1\ns_mul_i32 s3, s3, 768\ns_add_u32 s3, s3, {TOP}", f"v_lshlrev_b32 v31, 3, v{L31}", "v_add_u32 v31, s3, v31"]
    team = "v_and_b32 v13, 3, v1\nv_lshlrev_b32 v13, 10, v13\nv_and_b32 v14, 4, v1\nv_add_u32 v13, v13, v14"
    askX = [f"s_andn2_b32 s71, s2, 24\ns_lshl_b32 s71, s71, 7\ns_add_u32 s69, s71, {WS_F}"] + team.split("\n") + ["buffer_load_dword v12, v13, s[24:27], s69 offen sc1"]
    carry = tile_body(a, opt, 15, carry, extra=[(pre, 8, 16), (askX, 28, 34), (send(0), 34, 48)] + W0(15) + ([(accr(0), 33, 44)] if opt.accearly else []))
    sl = [[] for _ in range(8)]
    carry = [x for y in carry for x in y]
    cut = max([i + 1 for i, x in enumerate(carry) if x.startswith(f"v_cvt_pk_bf16_f32 v{Sreg(2,3)},")] + [len(carry) - 16, 0])
    emit(a, carry[:cut])
    spread(sl, carry[cut:], 0, 3)
    st = []
    for qb in range(3): st += [f"v_mov_b32 v{3+2*qb}, v{LSUM+qb}", f"v_mov_b32 v{2+2*qb}, v{NM+16*qb}"]
    for qb in range(3): st += [f"v_permlane32_swap_b32 v{LSUM+qb}, v{3+2*qb}"]
    for qb in range(3): st += [f"v_add_f32 v{3+2*qb}, v{LSUM+qb}, v{3+2*qb}", f"ds_write_b64 v30, v[{2+2*qb}:{3+2*qb}] offset:{qb*256}"]
    spread(sl, st + send(1), 3, 8)
    for m, f in zip(pv(2, False), sl): emit(a, [m] + f)
    stamp(a, "t15", opt)
    emit(a, accr(1)[:12] + send(2))
    emit(a, ([] if opt.accearly else accr(0)) + accr(1)[12:] + accr(2))
    a.e("s_mov_b32 s4, 0x100000")
    a.label("L_tag")
    a.e("""s_waitcnt vmcnt(0)
           v_readfirstlane_b32 s75, v106
           s_cmp_lg_u32 s75, 0
           s_cbranch_scc1 L_tag_ok
           buffer_load_dword v106, v108, s[56:59], 0 offen sc1 ; @junk
           s_sub_u32 s4, s4, 1
           s_cmp_lg_u32 s4, 0
           s_cbranch_scc1 L_tag""")
    a.label("L_tag_ok"); a.vm = []
    a.e(f"""s_lshl_b32 s3, s39, 5
            s_add_u32 s3, s3, s33
            s_mul_i32 s52, s3, 24576
            s_mul_i32 s3, s6, 12288
            s_add_u32 s52, s52, s3
            s_waitcnt lgkmcnt(0)""")
    if opt.earr: arrive()
    ACC, WF, OF = 112, 16, 0
    def ask(base, lanes):
        a.e(f"s_add_u32 s69, {base}, {WS_F}\n{lanes}\nbuffer_load_dword v12, v13, s[24:27], s69 offen sc1")
    def check(tag):
        a.e("s_mov_b32 s4, 0x100000")
        a.label(f"L_poll{tag}")
        a.e(f"""s_waitcnt vmcnt(0)
                v_cmp_ne_u32 vcc, s75, v12
                s_cbranch_vccz L_got{tag}
                s_sleep 1
                buffer_load_dword v12, v13, s[24:27], s69 offen sc1
                s_sub_u32 s4, s4, 1
                s_cmp_lg_u32 s4, 0
                s_cbranch_scc1 L_poll{tag}""")
        a.label(f"L_got{tag}")
        a.e("s_waitcnt vmcnt(0)")
    def wreads(buf, rows, F):
        reg, boff = (AD, AD + 1, 220, 221)[buf], 0
        return [f"ds_read_b64_tr_b16 {vr(F + nb*4 + 2*k, 2)}, v{reg} offset:{boff + (rows + 8*k) * 288 + 32*nb}" for nb in range(9) for k in range(2)]
    def oload(tag, head, db0, nks, dst):
        Gs = []
        for kl in range(nks):
            for j in range(3):
                g = [f"s_add_u32 s47, s66, {head}", "s_and_b32 s47, s47, 7", "s_mul_i32 s47, s47, 24576", "s_add_u32 s47, s47, s37"] + \
                    ([f"s_add_u32 s47, s47, {db0}"] if db0 else []) if kl + j == 0 else ["s_add_u32 s47, s47, 6144"] if j == 0 else []
                Gs.append("\n".join(g + [f"buffer_load_dwordx4 {ar(dst + (kl*3+j)*4, 4)}, v{VL16}, s[24:27], s47 offen offset:{j*1024} sc1 ; @{tag}"]))
        return Gs
    def kstep(F, O, zero, reads, jobs):
        ms = [f"v_mfma_f32_16x16x32_bf16 {vr(ACC + (nb*3+j)*4, 4)}, {vr(F+nb*4,4)}, {ar(O+j*4,4)}, " + ("0" if zero else vr(ACC + (nb*3+j)*4, 4))
              for nb in range(9) for j in range(3)]
        sl = [[] for _ in range(27)]
        spread(sl, reads, 0, 20); spread(sl, jobs, 0, 27)
        a.e("s_waitcnt lgkmcnt(0)")
        for m, f in zip(ms, sl): emit(a, [m] + f)
        return ms
    team = "v_and_b32 v13, 3, v1\nv_lshlrev_b32 v13, 10, v13\nv_and_b32 v14, 4, v1\nv_add_u32 v13, v13, v14"
    a.e(f"""s_lshl_b32 s3, s2, 7
            s_lshl_b32 s4, s28, 2
            s_add_u32 s70, s3, s4
            s_add_u32 s70, s70, {WS_F}
            s_lshl_b32 s3, s39, 2
            s_add_u32 s3, s3, s30
            s_mul_i32 s37, s3, {8*24576}
            s_mul_i32 s4, s6, 3072
            s_add_u32 s37, s37, s4
            s_mul_i32 s4, s7, 12288
            s_add_u32 s37, s37, s4
            s_add_u32 s37, s37, {WS_O}
            s_mov_b32 s45, 0
            s_cmp_eq_u32 s7, 0
            s_cbranch_scc1 L_noearly
            v_cmp_ne_u32 vcc, s75, v12
            s_cbranch_vccnz L_noearly
            s_mov_b32 s45, 1""")
    for st in range(NX, 4): emit(a, oload(f"o{st}", HEAD[st], 0, 2, 24*st))
    a.label("L_noearly"); a.vm = []
    a.e(f"v_sub_u32 v27, v29, v{VL16}\nv_add_u32 v27, v27, v{VOL}")
    psync(opt.earr)
    stamp(a, "c_bar", opt)
    for qb in range(3): a.e(f"ds_read_b64 v[{8+2*qb}:{9+2*qb}], v31 offset:{qb*256}")
    RC = (32, 48, 64, 112, 128, 144)
    def recv(blk):
        for g in range(4): a.e(f"ds_read_b128 {vr(RC[blk]+4*g,4)}, v29 offset:{xo(blk*4 + g)}")
    recv(0); recv(1)
    SC = 16
    for qb in range(3):
        pn, pl, on, ol = 8 + 2*qb, 9 + 2*qb, 2 + 2*qb, 3 + 2*qb
        a.auto(f"v_min_f32 v22, v{on}, v{pn}")
        a.e(f"""v_sub_f32 v23, v22, v{on}
                v_sub_f32 v24, v22, v{pn}
                v_exp_f32 v23, v23
                v_exp_f32 v24, v24
                v_mul_f32 v{ol}, v{ol}, v23
                v_fmac_f32 v{ol}, v{pl}, v24
                v_rcp_f32 v{ol}, v{ol}
                v_mul_f32 v{SC+2*qb}, v23, v{ol}
                v_mul_f32 v{SC+2*qb+1}, v24, v{ol}""")
    recv(2); recv(3); recv(4); recv(5)
    for blk in range(6):
        i, qb = divmod(blk, 3)
        K = 160 + blk*16; Rr = RC[blk]
        a.wait(lgregs=regs_of(vr(Rr, 16)))
        for r in range(0, 16, 2):
            a.e(f"v_pk_mul_f32 v[{Rr+r}:{Rr+r+1}], v[{Rr+r}:{Rr+r+1}], v[{SC+2*qb}:{SC+2*qb+1}] op_sel:[0,1] op_sel_hi:[1,1]")
        for r in range(0, 16, 2):
            a.e(f"v_pk_fma_f32 v[{K+r}:{K+r+1}], v[{K+r}:{K+r+1}], v[{SC+2*qb}:{SC+2*qb+1}], v[{Rr+r}:{Rr+r+1}] op_sel_hi:[1,0,1]")
        for j in range(8):
            a.e(f"v_cvt_pk_bf16_f32 v{K+8*(j//4)+j%4}, v{K+2*j}, v{K+2*j+1}")
        a.e(f"s_add_u32 s47, s52, {WS_O + (i*6 + 2*qb)*1024}")
        for s in range(2):
            a.e(f"buffer_store_dwordx4 {vr(K+8*s,4)}, v{VOL}, s[24:27], s47 offen offset:{512*s} sc1")
            a.e(f"ds_write_b128 v27, {vr(K+8*s,4)} offset:{xo(i*6 + 2*qb) + 512*s}")
    stamp(a, "comb", opt)
    a.e("v_mov_b32 v14, s75\ns_cmp_eq_u32 s7, 1\ns_cbranch_scc1 L_tailY")
    stT = save(a)
    if not opt.w0at: other_pair("L_yq", 24, 1)
    if NX == 0:
        VOR = 224
        a.e("s_waitcnt vmcnt(0)\nbuffer_store_dword v14, v108, s[24:27], s70 offen sc1")
        emit(a, vo_calc(VOR, "rev") + wX(0, VOR))
        a.e("s_waitcnt lgkmcnt(0)"); psync()
        emit(a, wX(1, VOR))
        ask("s71", team); check("A"); stamp(a, "chkA", opt)
    else:
        if not opt.w0at: emit(a, wX(0, VO))
        a.e(f"""s_waitcnt vmcnt(0)
                buffer_store_dword v14, v108, s[24:27], s70 offen sc1
                v_add_u32 v3, 8192, v{VL16}
                s_waitcnt lgkmcnt(0)""")
        psync()
        a.e("s_cmp_eq_u32 s6, 1\ns_cbranch_scc1 L_x1")
        sv = save(a)
        for qh in range(2):
            if qh: a.label("L_x1"); load(a, sv)
            for db in range(4):
                for j in range(3): a.e(f"ds_read_b128 {ar(192 + (db*3+j)*4, 4)}, v{3 if db < 2 else VL16} offset:{xo((db % 2)*6 + 3*qh + j)}")
            if qh == 0: a.e("s_branch L_x2")
        a.label("L_x2")
        VOR = 224
        emit(a, vo_calc(VOR, "rev"))
        a.wait(vmtags=["w0"], lg0=True); psync()
        emit(a, wreads(0, 0, WF))
        RS = (192, 0, 48 if NX == 4 else 192, 192)
        wN = lambda st: wX(st, VO if st < NX else VOR)
        xl = lambda st: oload(f"x{st}", HEAD[st], 0, 4, RS[st])
        ask("s71", team)
        for st in range(NX):
            b = BUFOF[st]
            w = wN(1) if st == 0 else []
            if st >= 1: a.wait(vmtags=[f"x{st}"])
            kstep(WF, RS[st], st == 0, wreads(b, 32, WF + 36), w[:9])
            kstep(WF + 36, RS[st] + 12, False, wreads(b, 64, WF), w[9:])
            j = []
            if st == 0:
                check("A"); stamp(a, "chkA", opt)
                for k in range(1, NX):
                    if RS[k] != 192: j += xl(k)
            kstep(WF, RS[st] + 24, False, wreads(b, 96, WF + 36), j)
            a.wait(vmtags=[f"w{st+1}"], lg0=True); psync()
            kstep(WF + 36, RS[st] + 36, False, wreads(BUFOF[st + 1], 0, WF) if st + 1 < NX else [], wN(st + 2))
            if st == 0:
                for k in range(1, NX):
                    if RS[k] == 192: emit(a, xl(k))
    for st in range(NX, 4): emit(a, oload(f"o{st}", HEAD[st], 0, 2, 24*st))
    a.e("s_waitcnt vmcnt(0)\ns_branch L_join")
    a.label("L_tailY"); load(a, stT)
    a.e("s_cmp_eq_u32 s45, 1\ns_cbranch_scc1 L_hadearly")
    sv = save(a)
    ask("s71", team); check("Y")
    a.vm = list(sv[2])
    for st in range(NX, 4): emit(a, oload(f"o{st}", HEAD[st], 0, 2, 24*st))
    a.label("L_hadearly")
    a.e("s_waitcnt lgkmcnt(0)")
    a.label("L_join"); a.lg = []
    a.e(f"""s_add_u32 s71, s71, 8
            v_add_u32 v220, {SB[2] - SB[1]}, v{AD+1}
            v_add_u32 v221, {SB[3] - SB[1]}, v{AD+1}
            s_mul_i32 s3, s7, -8192
            s_add_u32 s3, s3, {YB + 8192}
            v_add_u32 v2, s3, v{VL16}
            v_mov_b32 v15, s75
            s_barrier""")
    stamp(a, "join", opt)
    emit(a, wreads(BUFOF[NX], 0, WF))
    a.e("s_cmp_eq_u32 s6, 1\ns_cbranch_scc1 L_own1")
    sv = save(a)
    for qh in range(2):
        if qh: a.label("L_own1"); load(a, sv)
        for kl in range(2):
            for j in range(3): a.e(f"ds_read_b128 {ar(96 + (kl*3+j)*4, 4)}, v2 offset:{xo(kl*6 + 3*qh + j)}")
        if qh == 0: a.e("s_branch L_own2")
    a.label("L_own2")
    a.wait(vmtags=[f"o{NX}"])
    a.e("s_cmp_eq_u32 s7, 1\ns_cbranch_scc1 L_fy")
    sv = save(a)
    kstep(WF, 24*NX, NX == 0, wreads(BUFOF[NX], 32, WF + 36), [] if opt.plan2 else wS(NX + 2))
    a.e("s_branch L_fx")
    a.label("L_fy"); load(a, sv)
    kstep(WF, 24*NX, True, wreads(BUFOF[NX], 32, WF + 36), [] if opt.plan2 else wS(NX + 2))
    a.e("s_waitcnt vmcnt(0)\nbuffer_store_dword v15, v108, s[24:27], s70 offen sc1 ; @junk")
    a.label("L_fx"); a.vm = [o for o in a.vm if o.tag == f"w{NX+2}"]
    A = max(NX, min(opt.askat, 4))
    oy = lambda k: oload(f"o{k}", HEAD[k], 0, 2, 24*k)
    plan = {}
    for k in range(NX + 4, 8): plan.setdefault((k - 4, 1) if k - 4 > NX else (NX + 1, 0), []).append(wS(k))
    plan.setdefault((NX, 1), []).append(wS(NX + 3))
    if A <= 3:
        for i, k in enumerate((5, 6, 7)): plan.setdefault((A + (i + 1) // 2, (i + 1) % 2), []).insert(0, oy(k))
    if opt.plan2:
        assert NX == 1 and A == 3
        plan = {(1, 1): [wS(3)], (2, 0): [wS(4)], (2, 1): [wS(5)], (3, 1): [oy(5), oy(6)[:3]], (4, 0): [oy(6)[3:], oy(7)], (4, 1): [wS(6)], (5, 0): [wS(7)]}
    if opt.plan3 == 1: plan = {(1, 1): [wS(3)], (2, 0): [wS(4), wS(5)[:4]], (2, 1): [wS(5)[4:], wS(6)], (3, 1): [oy(5), wS(7)], (4, 0): [oy(6)], (4, 1): [oy(7)]}
    if opt.plan3 == 2: plan = {(1, 1): [wS(3), wS(4)[:4]], (2, 0): [wS(4)[4:], wS(5)], (2, 1): [wS(6)], (3, 1): [oy(5), oy(6)[:3]], (4, 0): [oy(6)[3:], oy(7)], (4, 1): [wS(7)]}
    job = lambda st, kl: [x for y in plan.get((st, kl), []) for x in y]
    for st in range(NX, 8):
        stamp(a, f"s{st}", opt)
        if st > NX:
            if st == A: ask("s71", team)
            if st >= 5: a.wait(vmtags=[f"o{st}"])
            kstep(WF, 24*st, False, wreads(BUFOF[st], 32, WF + 36), job(st, 0))
        elif st == A: ask("s71", team)
        if st == A and A <= 3: check("B"); stamp(a, "chk1", opt)
        if st < 7:
            a.wait(vmtags=[f"w{st+1}"], lg0=True); a.e("s_barrier")
            kstep(WF + 36, 24*st + 12, False, wreads(BUFOF[st + 1], 0, WF), job(st, 1))
        if st == A and A == 4:
            check("B"); stamp(a, "chk1", opt); emit(a, oy(5) + oy(6) + oy(7))
    a.e(f"""s_lshl_b32 s3, s28, 14
            v_add_u32 v13, s3, v{VL16}
            v_xor_b32 v14, 32768, v13
            s_lshl_b32 s52, s39, 2
            s_add_u32 s52, s52, s32
            s_lshl_b32 s53, s52, 2
            s_add_u32 s53, s53, s30
            s_mul_i32 s53, s53, 40960
            s_mul_i32 s3, s28, 10240
            s_add_u32 s53, s53, s3
            s_add_u32 s47, s53, {WS_P}
            s_waitcnt lgkmcnt(0)
            s_barrier""")
    F, O = WF + 36, 180
    T = lambda nb, j: ACC + (nb*3+j)*4
    ms = [f"v_mfma_f32_16x16x32_bf16 {vr(T(nb,j), 4)}, {vr(F+nb*4,4)}, {ar(O+j*4,4)}, {vr(T(nb,j), 4)}" for nb in (8, 7, 6, 5, 4, 0, 1, 2, 3) for j in range(3)]
    snd = [f"ds_write_b128 v13, {vr(T(nb,j),4)} offset:{((8-nb)*3+j)*1024}" for nb in range(8, 3, -1) for j in range(3)]
    emit(a, ms[:6])
    for k in range(15): emit(a, [ms[6 + k], snd[k]])
    emit(a, ms[21:])
    stamp(a, "gend", opt)
    a.e("s_waitcnt lgkmcnt(0)\ns_barrier")
    stamp(a, "rbar", opt)
    for nb in range(5):
        for j in range(3): a.e(f"ds_read_b128 {vr(WF + (nb*3+j)*4, 4)}, v14 offset:{(nb*3+j)*1024}")
    G0 = 172
    for nb in range(5): a.e(f"v_mov_b32 v{G0+8*nb+3}, s75\nv_mov_b32 v{G0+8*nb+7}, s75")
    for nb in range(5):
        g = G0 + 8*nb
        for j in range(3):
            t, q = T(nb, j), WF + (nb*3+j)*4
            d0, d1 = ((g, g+1), (g+2, g+4), (g+5, g+6))[j]
            a.wait(lgregs=regs_of(vr(q, 4)))
            a.e(f"v_pk_add_f32 v[{t}:{t+1}], v[{t}:{t+1}], v[{q}:{q+1}]\nv_pk_add_f32 v[{t+2}:{t+3}], v[{t+2}:{t+3}], v[{q+2}:{q+3}]")
            a.e(f"v_cvt_pk_bf16_f32 v{d0}, v{t}, v{t+1}\nv_cvt_pk_bf16_f32 v{d1}, v{t+2}, v{t+3}")
            if j: a.e(f"buffer_store_dwordx4 {vr(g + 4*(j-1), 4)}, v{VL16}, s[24:27], s47 offen offset:{(nb % 2)*2048 + (j-1)*1024} sc1")
        if nb % 2: a.e("s_add_u32 s47, s47, 4096")
    stamp(a, "rst", opt)
    a.e(f"""v_and_b32 v10, 15, v1
            v_mul_u32_u24 v10, 2304, v10
            v_lshrrev_b32 v11, 4, v1
            v_lshl_add_u32 v10, v11, 3, v10
            v_and_b32 v13, 3, v1
            v_mul_u32_u24 v13, 40960, v13
            s_mul_i32 s52, s52, {4*40960}
            s_add_u32 s52, s52, {WS_P}
            s_mul_i32 s53, s31, {96*2304}
            s_mul_i32 s3, s29, 1152
            s_add_u32 s53, s53, s3
            s_mul_i32 s3, s32, 288
            s_add_u32 s53, s53, s3
            s_lshl_b32 s54, s30, 2
            s_add_u32 s54, s54, s28""")
    srd(a, 8, "s78", "s79", 1769472)
    def decode(i):
        A, B = 56 + 2*i, 57 + 2*i
        a.e(f"""s_add_u32 s3, s54, {16*i}
                s_cmp_ge_u32 s3, 10
                s_cselect_b32 s4, 1, 0          ; kh
                s_cselect_b32 s5, 10, 0
                s_cselect_b32 s60, 4, 5
                s_sub_u32 s3, s3, s5
                s_cmp_ge_u32 s3, s60
                s_cselect_b32 s5, 1, 0          ; qh
                s_cselect_b32 s60, s60, 0
                s_sub_u32 s3, s3, s60
                s_lshl_b32 s60, s4, 1
                s_add_u32 s60, s60, s5
                s_mul_i32 s60, s60, 10240
                s_lshl_b32 s61, s3, 11
                s_add_u32 s{A}, s60, s61
                s_add_u32 s{A}, s{A}, s52
                s_mul_i32 s{B}, s5, {48*2304}
                s_add_u32 s{B}, s{B}, s53
                s_sub_u32 s60, 8, s3
                s_cmp_eq_u32 s4, 1
                s_cselect_b32 s3, s60, s3
                s_lshl_b32 s3, s3, 5
                s_add_u32 s{B}, s{B}, s3""")
    def units(U):
        n = len(U); pay = (0, 1, 2, 4, 5, 6)
        a.e("s_mov_b32 s4, 0x100000")
        if n == 2: a.e("s_sub_u32 s3, s58, s56\nv_bfe_u32 v11, v1, 2, 1\nv_mul_lo_u32 v11, v11, s3\nv_add_u32 v13, v13, v11")
        a.label(f"L_pp{n}")
        a.e(f"""buffer_load_dword v12, v13, s[24:27], s56 offen offset:2044 sc1
                s_sub_u32 s4, s4, 1
                s_waitcnt vmcnt(0)
                v_cmp_ne_u32 vcc, s75, v12
                s_cbranch_vccz L_pd{n}
                s_cmp_lg_u32 s4, 0
                s_sleep 1
                s_cbranch_scc1 L_pp{n}""")
        a.label(f"L_pd{n}")
        for i in U:
            b = 16 + 32*i
            a.e(f"s_mov_b32 s47, s{56+2*i}")
            for o in range(4):
                a.e(f"buffer_load_dwordx4 {vr(b+8*o,4)}, v{VL16}, s[24:27], s47 offen sc1\nbuffer_load_dwordx4 {vr(b+8*o+4,4)}, v{VL16}, s[24:27], s47 offen offset:1024 sc1")
                if o < 3: a.e("s_add_u32 s47, s47, 40960")
        for i in U:
            b, D = 16 + 32*i, 112 + 16*i
            for o in range(4):
                a.e(f"s_waitcnt vmcnt({8*(n - 1 - i) + 6 - 2*o})")
                a.e(f"v_xor_b32 v{b+8*o+3}, s75, v{b+8*o+3}\nv_xor_b32 v{b+8*o+7}, s75, v{b+8*o+7}")
                a.e(f"v_or_b32 v11, v{b+3}, v{b+7}" if o + i == 0 else f"v_or3_b32 v11, v11, v{b+8*o+3}, v{b+8*o+7}")
                for k, r in enumerate(pay):
                    r += b + 8*o
                    if o == 0: a.e(f"v_lshlrev_b32 v{D+2*k}, 16, v{r}\nv_and_b32 v{D+2*k+1}, 0xffff0000, v{r}")
                    else: a.e(f"v_lshlrev_b32 v{D+12}, 16, v{r}\nv_and_b32 v{r}, 0xffff0000, v{r}\nv_add_f32 v{D+2*k}, v{D+2*k}, v{D+12}\nv_add_f32 v{D+2*k+1}, v{D+2*k+1}, v{r}")
        a.e(f"""v_cmp_ne_u32 vcc, 0, v11
                s_cbranch_vccz L_ok{n}
                s_sub_u32 s4, s4, 1
                s_cmp_gt_i32 s4, 0
                s_cbranch_scc1 L_pd{n}""")
        a.label(f"L_ok{n}")
        for i in U:
            D, B = 112 + 16*i, 57 + 2*i
            for k in range(6): a.e(f"v_cvt_pk_bf16_f32 v{D+k}, v{D+2*k}, v{D+2*k+1}")
            for j in range(3):
                a.e(f"buffer_store_dwordx2 v[{D+2*j}:{D+2*j+1}], v10, s[8:11], s{B} offen")
                if j < 2: a.e(f"s_add_u32 s{B}, s{B}, {16*2304}")
    decode(0)
    stamp(a, "pub2", opt)
    a.e("s_cmp_lt_u32 s54, 2\ns_cbranch_scc1 L_two")
    sv = save(a)
    units([0])
    a.e("s_branch L_rd2")
    a.label("L_two"); load(a, sv)
    decode(1)
    units([0, 1])
    a.label("L_rd2")
    stamp(a, "end", opt)
    if opt.stamps:
        a.e(f"s_lshl_b32 s3, s2, 2\ns_add_u32 s3, s3, s28\ns_lshl_b32 s3, s3, 7\ns_add_u32 s3, s3, {WS_STAMP}\nv_mov_b32 v0, 0")
        for i in range(1 + len(opt.sset)):
            a.e(f"v_mov_b32 v2, s{STB+2*i}\nv_mov_b32 v3, s{STB+1+2*i}\nbuffer_store_dwordx2 v[2:3], v0, s[24:27], s3 offen offset:{8*i}\ns_waitcnt vmcnt(0)")
    a.label("L_done")
    a.e("s_endpgm")
    a.label("L_end")
    for qb in range(3): rare(a, qb)

def build(opt):
    a = Asm()
    for l in """; Fused q-projection + softmax attention + output projection for both halves (A, B); written with a generator script.
; One workgroup (4 waves, 512 registers each, 160 KB LDS) per CU handles two heads X, Y of one batch:
;   1. Q = x wq (MFMA 32x32x16, LDS / register staged), scaled by log2(e)/sqrt(d)
;   2. waves 0,1 = head X, waves 2,3 = head Y, keys split between the two waves; K/V tiles stream through a private
;      LDS-DMA ring; online softmax against a reference max that a per-tile check raises to the true max when needed
;   3. pair combine, O (bf16) handed to the three workgroups with the same batch and head octet (write-through
;      stores, per-wave flags carrying a launch tag), 96 x 144 x 1024 partial output projection (MFMA 16x16x32),
;      partial tiles (bf16, 16-byte granules that each carry the launch tag) summed over the four octets""".split("\n"): a.raw(l)
    a.raw("; @launch grid=(256,1,1) block=(256,1,1) lds=163840")
    a.raw('.amdgcn_target "amdgcn-amd-amdhsa--gfx950"')
    kernel(a, NAME + "_kernel", opt)
    a.raw('.section .rodata,"a"\n.p2align 6')
    a.raw("\n".join([f".amdhsa_kernel {NAME}_kernel", "  .amdhsa_next_free_vgpr 512", "  .amdhsa_next_free_sgpr 102",
        "  .amdhsa_accum_offset 256", "  .amdhsa_group_segment_fixed_size 0", "  .amdhsa_kernarg_size 104",
        "  .amdhsa_user_sgpr_count 2", "  .amdhsa_user_sgpr_kernarg_segment_ptr 1",
        "  .amdhsa_system_sgpr_workgroup_id_x 1", ".end_amdhsa_kernel"]))
    return a.text(), a

if __name__ == "__main__":
    opt = Opt()
    out = sys.argv[1] if len(sys.argv) > 1 else "k.s"
    for kv in sys.argv[2:]:
        k, v = kv.split("=", 1); assert hasattr(opt, k), k
        setattr(opt, k, eval(v))
    t, a = build(opt)
    open(out, "w").write(t)
    print(out, "lines", t.count("\n"), "pad", a.npad)
```
